```python
import torch

def _softmax(x, axis=-1):
    return torch.softmax(x, dim=axis)
def _gelu(x):
    return torch.nn.functional.gelu(x, approximate="tanh")
def _silu(x):
    return torch.nn.functional.silu(x)
def _sigmoid(x):
    return torch.sigmoid(x)
def _layernorm(x, axis=-1, eps=1e-5):
    m = x.mean(dim=axis, keepdim=True)
    v = x.var(dim=axis, keepdim=True, unbiased=False)
    return (x - m) / torch.sqrt(v + eps)
def _scatter_add(tgt, idx, src, axis=0):
    return tgt.clone().index_add_(axis, idx, src)
def _segment_sum(src, seg, n):
    out = torch.zeros((n,) + src.shape[1:], dtype=src.dtype)
    return out.index_add_(0, seg, src)
def _pad(x, pw):
    flat = tuple(v for pair in reversed(pw) for v in pair)
    return torch.nn.functional.pad(x, flat)

kernel_name = 'sequential_preLN__spectral_fnet__moe_arch_mod__prompt'

def setup_inputs():

    _w = (lambda a: (lambda t: t.to(torch.bfloat16) if t.is_floating_point() else t)(torch.as_tensor(a)))
    def _A_setup():
        B, S, D = 1, 2048, 1024
        ns = torch.arange(S)[:, None] * torch.arange(S)[None, :]
        nd = torch.arange(D)[:, None] * torch.arange(D)[None, :]
        Ws_re = torch.cos(-2.0 * torch.pi * ns / S).to(float)
        Ws_im = torch.sin(-2.0 * torch.pi * ns / S).to(float)
        Wd_re = torch.cos(-2.0 * torch.pi * nd / D).to(float)
        Wd_im = torch.sin(-2.0 * torch.pi * nd / D).to(float)
        return {
            "x": _w((lambda *s: torch.randn(*s, dtype=torch.bfloat16) * 0.05)(B, S, D)),
            "dft_seq_re": _w(Ws_re),
            "dft_seq_im": _w(Ws_im),
            "dft_hid_re": _w(Wd_re),
            "dft_hid_im": _w(Wd_im),
        }
    _A_in = _A_setup()

    def _B_setup():
        B, S, D, F, C = 1, 2048, 1024, 3584, 1
        return {
            "x": _w((lambda *s: torch.randn(*s, dtype=torch.bfloat16) * 0.05)(B, S, D)),
            "w_r": _w((lambda *s: torch.randn(*s, dtype=torch.bfloat16) * 1.6)(D)),
            "w_gate": _w((lambda *s: torch.randn(*s, dtype=torch.bfloat16) * 0.4)(D, F)),
            "w_up": _w((lambda *s: torch.randn(*s, dtype=torch.bfloat16) * 0.4)(D, F)),
            "w_down": _w((lambda *s: torch.randn(*s, dtype=torch.bfloat16) * 0.4)(F, D)),
        }
    _B_in = _B_setup()

    return {
        "A_x": _A_in["x"],
        "A_dft_seq_re": _A_in["dft_seq_re"],
        "A_dft_seq_im": _A_in["dft_seq_im"],
        "A_dft_hid_re": _A_in["dft_hid_re"],
        "A_dft_hid_im": _A_in["dft_hid_im"],
        "B_x": _B_in["x"],
        "B_w_r": _B_in["w_r"],
        "B_w_gate": _B_in["w_gate"],
        "B_w_up": _B_in["w_up"],
        "B_w_down": _B_in["w_down"],
    }

def reference(A_x, A_dft_seq_re, A_dft_seq_im, A_dft_hid_re, A_dft_hid_im, B_x, B_w_r, B_w_gate, B_w_up, B_w_down):
    def _A_ref(x, dft_seq_re, dft_seq_im, dft_hid_re, dft_hid_im):
        a = torch.einsum("bsd,ed->bse", x, dft_hid_re)
        b = torch.einsum("bsd,ed->bse", x, dft_hid_im)
        y = torch.einsum("ts,bse->bte", dft_seq_re, a) - torch.einsum("ts,bse->bte", dft_seq_im, b)
        return y

    def _B_ref(x, w_r, w_gate, w_up, w_down):
        B, S, D = x.shape
        C = 1
        r = x @ w_r
        idx = torch.argsort(-r, axis=-1)[:, :C]
        idx_e = (lambda x, n, axis: torch.repeat_interleave(x, n, dim=axis))(idx.reshape(B, C, 1), D, axis=2)
        x_sel = (lambda x, i, axis: torch.take_along_dim(x, i, dim=axis))(x, idx_e, axis=1)
        g = _silu(x_sel @ w_gate)
        u = x_sel @ w_up
        y = (g * u) @ w_down
        r_sel = _sigmoid((lambda x, i, axis: torch.take_along_dim(x, i, dim=axis))(r, idx, axis=1))
        y = y * r_sel.reshape(B, C, 1)
        b_off = (torch.arange(B) * S).reshape(B, 1)
        flat_idx = (idx + b_off).reshape(B * C)
        zero = (x * 0.0).reshape(B * S, D)
        upd = _scatter_add(zero, flat_idx, y.reshape(B * C, D), axis=0)
        return x + upd.reshape(B, S, D)

    x = A_x
    h = x + _A_ref(_layernorm(x, axis=-1), A_dft_seq_re, A_dft_seq_im, A_dft_hid_re, A_dft_hid_im)
    h2 = h + _B_ref(_layernorm(h, axis=-1), B_w_r, B_w_gate, B_w_up, B_w_down)
    return h2
```

```python
import re
TRANS = {'v_exp_f32','v_log_f32','v_rcp_f32','v_rsq_f32','v_sqrt_f32','v_sin_f32','v_cos_f32','v_rcp_iflag_f32'}
def regs_of(op):
    op = op.strip()
    m = re.match(r'^-?\|?(?:abs\()?([vsa])(\d+)\)?\|?$', op)
    if m: return {(m.group(1), int(m.group(2)))}
    m = re.match(r'^-?([vsa])\[(\d+):(\d+)\]$', op)
    if m: return {(m.group(1), i) for i in range(int(m.group(2)), int(m.group(3)) + 1)}
    if op in ('vcc', 'exec', 'm0', 'scc'): return {('x', op)}
    if op in ('vcc_lo', 'vcc_hi'): return {('x', 'vcc')}
    if op in ('exec_lo', 'exec_hi'): return {('x', 'exec')}
    return set()

class Ins:
    __slots__ = ('text','mn','kind','wr','rd','dpp','pos','A','B','C','passes','stdata','wide')

class Asm:
    def __init__(self):
        self.lines = []
        self.hist = []
        self.pos = 0
        self.nops = 0
    def raw(self, s): self.lines.append(s)
    def comment(self, s): self.lines.append('    ; ' + s)
    def label(self, name):
        self.flush()
        self.lines.append(name + ':')
    def flush(self, n=None):
        need = 0
        for h in self.hist[-24:]:
            d = self.pos - h.pos - 1
            if h.kind == 'mfma': req = 12 if h.passes == 8 else 8
            elif h.kind == 'valu': req = 5
            elif h.kind == 'salu': req = 1
            elif h.kind == 'vst' and h.wide: req = 2
            else: req = 0
            need = max(need, req - d)
        self._nop(need)
    def _nop(self, n):
        while n > 0:
            k = min(n, 16)
            self.lines.append('    s_nop %d' % (k - 1))
            self.pos += k; self.nops += k
            n -= k
    def parse(self, text):
        t = text.split(';')[0].strip()
        m = re.match(r'^(\S+)\s*(.*)$', t)
        mn, rest = m.group(1), m.group(2)
        ops, depth, cur = [], 0, ''
        for ch in rest:
            if ch in '[(': depth += 1
            if ch in '])': depth -= 1
            if ch == ',' and depth == 0: ops.append(cur.strip()); cur = ''
            else: cur += ch
        if cur.strip(): ops.append(cur.strip())
        mods = ''
        if ops:
            parts = ops[-1].split(None, 1)
            if len(parts) > 1: ops[-1], mods = parts[0], parts[1]
        I = Ins(); I.text = text; I.mn = mn; I.wr = set(); I.rd = set(); I.dpp = False
        I.A = I.B = I.C = set(); I.passes = 0; I.stdata = set(); I.wide = False
        base = re.sub(r'_(e32|e64|dpp|sdwa)$', '', mn)
        R = [regs_of(o) for o in ops]
        if base.startswith('v_mfma'):
            I.kind = 'mfma'; I.wr = R[0]; I.A = R[1]; I.B = R[2]; I.C = R[3]; I.rd = R[1] | R[2] | R[3]
            I.passes = 8 if '32x32' in base else 4
        elif base.startswith('v_'):
            I.kind = 'valu'
            I.dpp = ('quad_perm' in mods or 'row_' in mods)
            if base.startswith('v_cmpx'):
                I.wr = R[0] | {('x', 'exec')}; I.rd = set().union(*R[1:])
            elif base in ('v_add_co_u32', 'v_sub_co_u32', 'v_addc_co_u32', 'v_subb_co_u32', 'v_div_scale_f32', 'v_mad_u64_u32'):
                I.wr = R[0] | R[1]; I.rd = set().union(*R[2:])
            elif base.startswith('v_permlane') and 'swap' in base:
                I.wr = R[0] | R[1]; I.rd = R[0] | R[1]
            else:
                I.wr = R[0]; I.rd = set().union(*R[1:]) if len(R) > 1 else set()
                if base.startswith('v_dot'): I.A = R[1] | R[2]
                if base in ('v_fma_mixlo_f16', 'v_fma_mixhi_f16'): I.rd = I.rd | R[0]
                if base.startswith('v_cndmask') and len(R) == 3: I.rd = I.rd | {('x', 'vcc')}
                if base in ('v_fmac_f32', 'v_dot2c_f32_bf16', 'v_pk_fmac_f16', 'v_writelane_b32') or I.dpp: I.rd = I.rd | R[0]
            I.rd = I.rd | {('x', 'exec')}
        elif base.startswith('buffer_') or base.startswith('global_'):
            lds = ' lds' in (' ' + mods) or base.startswith('global_load_lds')
            if 'store' in base:
                I.kind = 'vst'
                di = 0 if base.startswith('buffer_') else 1
                I.stdata = R[di]; I.rd = set().union(*R); I.wide = ('x3' in base or 'x4' in base)
            elif 'atomic' in base:
                I.kind = 'vst'; I.rd = set().union(*R)
                if 'sc0' in mods: I.wr = R[0]
            else:
                I.kind = 'vld'
                if lds: I.rd = set().union(*R) | {('x', 'm0')}
                else:
                    I.wr = R[0]; I.rd = set().union(*R[1:])
                    if 'd16' in base: I.rd |= R[0]
        elif base.startswith('ds_'):
            I.kind = 'ds'
            if 'read' in base or 'permute' in base or 'swizzle' in base:
                I.wr = R[0]; I.rd = set().union(*R[1:])
                if 'd16' in base: I.rd |= R[0]
            else: I.rd = set().union(*R)
        elif base.startswith('s_'):
            I.kind = 'salu'
            if base in ('s_waitcnt', 's_barrier', 's_endpgm', 's_setprio', 's_sleep', 's_branch') or base.startswith('s_cbranch') or base.startswith('s_cmp'):
                I.rd = set().union(*R) if R else set()
            elif base.startswith('s_load') or base == 's_memtime' or base == 's_memrealtime':
                I.kind = 'smem'; I.wr = R[0]; I.rd = set().union(*R[1:]) if len(R) > 1 else set()
            else:
                I.wr = R[0]; I.rd = set().union(*R[1:]) if len(R) > 1 else set()
                if 'saveexec' in base: I.wr = I.wr | {('x', 'exec')}
        else:
            raise ValueError('unknown instruction ' + text)
        I.mn = base
        return I
    def required(self, P, C):
        req = 0
        sg = lambda s: {r for r in s if r[0] in 's' or r == ('x', 'vcc')}
        vg = lambda s: {r for r in s if r[0] in 'va'}
        if P.kind == 'valu':
            wv = vg(P.wr); ws = sg(P.wr)
            if P.mn.startswith('v_dot') and C.kind != 'salu' and wv & (C.rd | C.wr):
                if not (C.mn == P.mn and not (wv & C.A)): req = max(req, 3)
            if ('mix' in P.mn) and C.kind in ('valu', 'mfma') and wv & (C.rd | C.wr): req = max(req, 1)
            if C.kind == 'valu':
                if C.dpp and wv & C.rd: req = max(req, 2)
                if C.dpp and ('x', 'exec') in P.wr: req = max(req, 5)
                if P.mn in TRANS and C.mn not in TRANS and wv & (C.rd | C.wr): req = max(req, 1)
                if P.mn in TRANS and C.mn in TRANS and wv & C.rd: req = max(req, 1)
                if ws & C.rd:
                    req = max(req, 4 if C.mn in ('v_readlane_b32', 'v_writelane_b32') else 2)
                if C.mn in ('v_readlane_b32', 'v_readfirstlane_b32') and wv & C.rd: req = max(req, 1)
                if C.mn.startswith('v_permlane') and wv & C.rd: req = max(req, 2)
                if ('x', 'exec') in P.wr: req = max(req, 4)
            if C.kind == 'mfma':
                if wv & C.rd: req = max(req, 2)
                if ('x', 'exec') in P.wr: req = max(req, 4)
            if C.kind in ('vld', 'vst') and ws & C.rd: req = max(req, 5)
            if C.kind in ('salu', 'smem') and ws & C.rd: req = max(req, 2)
        if P.kind == 'mfma':
            big = 12 if P.passes == 8 else 8
            if C.kind == 'mfma':
                if P.wr & (C.A | C.B): req = max(req, big)
                if P.wr & C.C:
                    if not (P.wr == C.C and P.passes == C.passes): req = max(req, 10 if P.passes == 8 else 6)
                elif P.wr & C.wr: req = max(req, big)
            elif C.kind in ('valu', 'vld', 'vst', 'ds'):
                if P.wr & (C.rd | C.wr): req = max(req, big)
                if C.kind == 'valu' and P.C & C.wr: req = max(req, 7 if P.passes == 8 else 3)
        if P.kind == 'salu':
            if ('x', 'm0') in P.wr and ('x', 'm0') in C.rd: req = max(req, 1)
        if P.kind == 'vst' and P.wide:
            if P.stdata & C.wr: req = max(req, 2)
        return req
    pending = None
    def inject(self, groups, gap):
        self.pending = list(groups); self.gap = gap; self.cnt = gap
    def inject_flush(self):
        p, self.pending = self.pending, None
        for g in (p or []):
            for x in g: self(x)
    def __call__(self, text):
        if self.pending and text.startswith('v_') and not text.startswith('v_read') and not text.startswith('v_cndmask'):
            self.cnt += 1
            if self.cnt >= self.gap:
                g = self.pending.pop(0); p = self.pending; self.pending = None
                for x in g: self(x)
                self.pending = p if p else None; self.cnt = 0
        I = self.parse(text)
        need = 0
        for h in self.hist[-24:]:
            d = self.pos - h.pos - 1
            r = self.required(h, I)
            if r > d: need = max(need, r - d)
        self._nop(need)
        I.pos = self.pos
        self.pos += 1
        if I.mn == 's_nop':
            self.pos += int(text.split()[1])
        self.hist.append(I)
        self.lines.append('    ' + text)
    stamps_on = False
    real = False
    kidx = 0
    def stamp_reset(self): self.nst = 0; self.kidx += 1
    def stamp(self):
        if not self.stamps_on: return
        self('%s s[%d:%d]' % ('s_memrealtime' if self.real else 's_memtime', 60 + 2 * self.nst, 61 + 2 * self.nst)); self.nst += 1
    def stamp_dump(self, wg=0):
        if not self.stamps_on: return
        lab = 'stskip%d' % len(self.lines)
        if not self.real:
            self('s_cmp_lg_u32 s2, %d' % wg); self('s_cbranch_scc1 %s' % lab)
        self('s_load_dwordx2 s[92:93], s[0:1], %d' % (96 if self.real else 88))
        self('s_waitcnt vmcnt(0) lgkmcnt(0)')
        self('%s s[%d:%d]' % ('s_memrealtime' if self.real else 's_memtime', 60 + 2 * self.nst, 61 + 2 * self.nst)); self.nst += 1
        self('s_waitcnt lgkmcnt(0)')
        if self.real:
            self('s_add_u32 s92, s92, 0x%x' % (0x8000000 + self.kidx * 0x10000)); self('s_addc_u32 s93, s93, 0')
            self('s_mov_b32 s94, 0x10000'); self('s_lshl_b32 s97, s2, 6')
        else:
            self('s_mov_b32 s94, 256'); self('s_mov_b32 s97, 0')
        self('s_mov_b32 s95, 0x00020000')
        self('s_mov_b64 exec, 1'); self('v_mov_b32 v251, 0')
        for i in range(self.nst):
            if self.real: self('v_mov_b32 v250, s%d' % (60 + 2 * i))
            else:
                self('s_sub_u32 s96, s%d, s60' % (60 + 2 * i)); self('v_mov_b32 v250, s96')
            self('buffer_store_dword v250, v251, s[92:95], s97 offen offset:%d' % (4 * i))
        self.label(lab)
    def text(self): return '\n'.join(self.lines) + '\n'
```

```python
import sys, struct
import os; sys.path.insert(0, os.path.dirname(os.path.dirname(os.path.abspath(__file__))))
from asmlib import Asm
def v(i, n=1): return 'v%d' % i if n == 1 else 'v[%d:%d]' % (i, i + n - 1)
def s(i, n=1): return 's%d' % i if n == 1 else 's[%d:%d]' % (i, i + n - 1)
def fh(x): return '0x%08x' % struct.unpack('<I', struct.pack('<f', x))[0]
class St:
    def __init__(self, a, on=True): self.a = a; self.n = 0; self.on = on
    def __call__(self):
        if not self.on: return
        self.a('s_memrealtime s[%d:%d]' % (70 + 2 * self.n, 71 + 2 * self.n)); self.n += 1
    def raw(self, sreg):
        if not self.on: return
        self.a('s_mov_b32 s%d, %s' % (70 + 2 * self.n, sreg)); self.n += 1
    def dump(self, n=None, sv=2, wg='s2', wave='s16'):
        if not self.on: return
        a = self.a; n = self.n if n is None else n
        a('s_load_dwordx2 s[64:65], s[0:1], 96')
        a('s_waitcnt lgkmcnt(0)')
        a('s_add_u32 s64, s64, 0x8000000'); a('s_addc_u32 s65, s65, 0'); a('s_mov_b32 s66, 0x100000'); a('s_mov_b32 s67, 0x00020000')
        a('s_lshl_b32 s68, %s, 10' % wg); a('s_lshl_b32 s69, %s, 6' % wave); a('s_add_u32 s68, s68, s69')
        a('s_mov_b64 exec, 1'); a('v_mov_b32 %s, 0' % v(sv))
        for i in range(n):
            a('v_mov_b32 %s, s%d' % (v(sv + 1), 70 + 2 * i))
            a('buffer_store_dword %s, %s, s[64:67], s68 offen offset:%d' % (v(sv + 1), v(sv), 4 * i))
def wrap(a, name, grid, block, lds, nv, groups='', ns=102):
    hdr = '; @launch kernel=%s grid=(%d,1,1) block=(%d,1,1) lds=%d\n' % (name, grid, block, lds)
    if groups: hdr += '; @groups %s\n' % groups
    hdr += '.amdgcn_target "amdgcn-amd-amdhsa--gfx950"\n.text\n.globl %s\n.p2align 8\n.type %s,@function\n%s:\n' % (name, name, name)
    acc = (nv + 3) // 4 * 4
    d = '\n'.join(['.section .rodata,"a"', '.p2align 6', '.amdhsa_kernel %s' % name, '  .amdhsa_next_free_vgpr %d' % nv,
        '  .amdhsa_next_free_sgpr %d' % ns, '  .amdhsa_accum_offset %d' % acc, '  .amdhsa_group_segment_fixed_size 0',
        '  .amdhsa_kernarg_size 104', '  .amdhsa_user_sgpr_count 2', '  .amdhsa_user_sgpr_kernarg_segment_ptr 1',
        '  .amdhsa_system_sgpr_workgroup_id_x 1', '.end_amdhsa_kernel', ''])
    return hdr + a.text() + d
```

```python
import struct, sys
import os; _d = os.path.dirname(os.path.abspath(__file__)); sys.path.insert(0, _d); sys.path.insert(0, _d + '/mb')
from asmlib import Asm
from mblib import St
NAME = 'sequential_preLN__spectral_fnet__moe_arch_mod__prompt'
def fh(x): return '0x%08x' % struct.unpack('<I', struct.pack('<f', x))[0]
OPT = set(a for a in sys.argv[1:] if a.startswith('--'))
def optv(name, d):
    for o in OPT:
        if o.startswith('--%s=' % name): return int(o.split('=')[1])
    return d
STAMPS = '--stamps' in OPT
def v(i, n=1): return 'v%d' % i if n == 1 else 'v[%d:%d]' % (i, i + n - 1)
def s(i, n=1): return 's%d' % i if n == 1 else 's[%d:%d]' % (i, i + n - 1)
DPPF = 'row_mask:0xf bank_mask:0xf'
X1 = 'quad_perm:[1,0,3,2] ' + DPPF
def rbf(a, r): a('v_cvt_pk_bf16_f32 %s, 0, %s' % (v(r), v(r)))
def kr(r): return (r & 3) + 8 * (r >> 2)
PS = 16384 + 128
WOFF = 0x1000; YOFF = 0x210000; KOFF = 0x420000; KS = 2048 + 128; COFF = 0x440000; XOFF = 0x481000; POFF = 0x490000; PPS = 4096 + 128
WSB = 0x510000
RS = 2064
CT = 43520; SB = CT + 18432; AB = SB + 18432; CPS = 8192 + 64; PR = AB + 2 * CPS; WR = PR + 2048; TRASH = WR + 2048
SP = 131072; HN = SP + 24576; MSG = HN + 2048; OWN = MSG + 64; ACT = OWN + 256
MAXPOLL = 0x10000
a = Asm(); st = St(a, STAMPS)
stubs = []
def poll_retry(name, cnt=58):
    a('s_cbranch_vccnz %s_rt' % name)
    a.lines.append('%s_ok:' % name)
    stubs.append((name, cnt))
def emit_stubs():
    for name, cnt in stubs:
        a.lines.append('%s_rt:' % name)
        a('s_add_u32 %s, %s, 1' % (s(cnt), s(cnt))); a('s_cmp_lt_u32 %s, 0x%x' % (s(cnt), MAXPOLL))
        a('s_cbranch_scc1 %s' % name); a('s_branch %s_ok' % name)
def angles(mulreg, basereg, ks, tmp):
    for i, k in enumerate(ks):
        if k == 0: a('v_mov_b32 %s, %s' % (v(tmp + i), v(basereg)))
        else: a('v_fmamk_f32 %s, %s, %s, %s' % (v(tmp + i), v(mulreg), fh(float(k)), v(basereg)))
def trig(fn, t, n):
    for i in range(n): a('v_%s_f32 %s, %s' % (fn, v(t + i), v(t + i)))
def pack(dst, t, n, kind='f16'):
    for p in range(n // 2): a('v_cvt_pk_%s_f32 %s, %s, %s' % (kind, v(dst + p), v(t + 2 * p), v(t + 2 * p + 1)))
def tags():
    a('s_add_u32 s40, s40, 1')
    for i in range(4):
        a('s_bfe_u32 %s, s40, 0x%x' % (s(44 + i), (2 << 16) | (4 * i))); a('s_bfe_u32 s41, s40, 0x%x' % ((2 << 16) | (4 * i + 2)))
        a('s_lshl_b32 s41, s41, 16'); a('s_or_b32 %s, %s, s41' % (s(44 + i), s(44 + i)))
        a('s_bfe_u32 %s, s40, 0x%x' % (s(48 + i), (8 << 16) | (8 * i)))
def srd(d, nbytes): a('s_mov_b32 %s, 0x%x' % (s(d + 2), nbytes)); a('s_mov_b32 %s, 0x00020000' % s(d + 3))
def keys_argmax(K, gidx, name):
    a('v_xor_b32 %s, s40, %s' % (v(K + 8), v(K + 3))); a('v_xor_b32 %s, s40, %s' % (v(K + 9), v(K + 7)))
    a('v_max_u32 %s, %s, %s' % (v(K + 10), v(K), v(K + 4)))
    a('v_or_b32 %s, %s, %s' % (v(K + 8), v(K + 8), v(K + 9)))
    a('v_cmp_ne_u32 vcc, 0, %s' % v(K + 8))
    poll_retry(name)
    for pat in ['quad_perm:[1,0,3,2] ' + DPPF, 'quad_perm:[2,3,0,1] ' + DPPF, 'row_half_mirror ' + DPPF,
                'row_mirror ' + DPPF, 'row_bcast:15 row_mask:0xa bank_mask:0xf', 'row_bcast:31 row_mask:0xc bank_mask:0xf']:
        a('v_max_u32_dpp %s, %s, %s %s' % (v(K + 10), v(K + 10), v(K + 10), pat))
    a('v_readlane_b32 s36, %s, 63' % v(K + 10))

def gen():
    a.raw('.globl fz_kernel'); a.raw('.p2align 8'); a.raw('.type fz_kernel,@function'); a.lines.append('fz_kernel:')
    st()
    if STAMPS:
        for i in range(1, 16): a('s_mov_b32 s%d, -1' % (70 + 2 * i))
    a('s_load_dwordx2 s[4:5], s[0:1], 96')
    a('s_cmp_gt_u32 s2, 240'); a('s_cbranch_scc1 fz_end')
    a('v_lshrrev_b32 v2, 6, v0'); a('v_and_b32 v1, 63, v0')
    a('s_mov_b32 s58, 0')
    a('v_readfirstlane_b32 s3, v2')
    srd(4, WSB)
    a('s_sub_u32 s20, s2, 128'); a('s_cmp_lt_u32 s20, 112'); a('s_cbranch_scc1 ffn')
    F1, TC, TS, C2, S2, B3C, B3S, CQ = 16, 24, 32, 40, 48, 56, 64, 72
    XA, XB, XAC, XBC, H, T, TP, ST = 88, 96, 104, 120, 136, 144, 152, 160
    XD, WV = 168, 200
    vSW, vSR, vWST, vHL, vA0, vA1, vAR, vY0, vY1, vYL, vM, vT, vXR, vXM, vE0, vM0, vYE, vZM = 216, 217, 221, 222, 223, 224, 225, 226, 227, 228, 229, 230, 231, 232, 233, 234, 236, 238
    vL16, vSG = 239, 240
    a('s_load_dwordx2 s[8:9], s[0:1], 0'); a('s_load_dwordx2 s[12:13], s[0:1], 80'); a('s_load_dwordx2 s[16:17], s[0:1], 48')
    a('s_min_u32 s20, s2, 128')
    a('s_lshr_b32 s21, s20, 3'); a('s_add_u32 s21, s21, 1'); a('s_and_b32 s22, s20, 7')
    a('s_sub_u32 s23, s20, 124'); a('s_cmp_ge_u32 s20, 124'); a('s_cselect_b32 s21, 0, s21'); a('s_cselect_b32 s22, s23, s22')
    a('s_lshr_b32 s23, s3, 2'); a('s_and_b32 s24, s3, 3')
    a('s_lshl_b32 s25, s22, 6'); a('s_add_u32 s25, s25, s21')
    a('s_lshl_b32 s26, s23, 5'); a('s_add_u32 s26, s26, s25')
    a('s_lshl_b32 s27, s24, 9'); a('s_add_u32 s28, s26, s27')
    a('s_sub_u32 s27, 2048, s27'); a('s_sub_u32 s27, s27, s26')
    a('s_lshl_b32 s29, s24, 1'); a('s_add_u32 s29, s29, s23'); a('s_sub_u32 s30, 15, s29')
    a('s_cmp_lt_u32 s24, 2'); a('s_cselect_b32 s27, s28, s27'); a('s_cselect_b32 s31, s29, s30'); a('s_cselect_b32 s30, s30, s29')
    a('s_sub_u32 s28, 2048, s27'); a('s_and_b32 s28, s28, 2047')
    a('s_cmp_eq_u32 s20, 124'); a('s_cbranch_scc1 fz_spec')
    a.lines.append('fz_specback:')
    a('s_lshl_b32 s27, s27, 11'); a('s_lshl_b32 s28, s28, 11')
    a('s_mul_i32 s31, s31, %d' % RS); a('s_mul_i32 s30, s30, %d' % RS)
    a('v_lshlrev_b32 %s, 4, v1' % v(vL16))
    srd(8, 2048 * 2048)
    a('s_waitcnt lgkmcnt(0)')
    st()
    a('s_cmp_eq_u32 s20, 124'); a('s_cbranch_scc1 fz_spec2')
    a.lines.append('fz_spec2back:')
    a('s_mov_b32 m0, s31')
    a('buffer_load_dwordx4 %s, s[8:11], s27 offen lds' % v(vL16)); a('buffer_load_dwordx4 %s, s[8:11], s27 offen offset:1024 lds' % v(vL16))
    a('s_mov_b32 m0, s30')
    a('s_load_dword s40, s[4:5], 0')
    a('buffer_load_dwordx4 %s, s[8:11], s28 offen lds' % v(vL16)); a('buffer_load_dwordx4 %s, s[8:11], s28 offen offset:1024 lds' % v(vL16))
    a('v_lshlrev_b32 v2, 2, v0'); a('v_mov_b32 v3, -1'); a('s_lshl_b32 s32, s20, 11'); a('s_add_u32 s32, s32, 0x%x' % COFF)
    srd(16, 2048); srd(12, 2048 * 2048)
    a('s_lshl_b32 s33, s3, 10'); a('s_min_u32 s34, s33, 2048'); a('s_add_u32 s34, s34, %d' % WR); a('s_mov_b32 m0, s34')
    a('buffer_store_dword v3, v2, s[4:7], s32 offen sc1')
    a('buffer_load_dwordx4 %s, s[16:19], s33 offen lds' % v(vL16))
    a('v_and_b32 v2, 31, v1'); a('v_lshrrev_b32 v3, 5, v1'); a('v_and_b32 v4, 15, v1'); a('v_lshrrev_b32 v5, 4, v1')
    a('v_add_u32 v6, %d, %s' % (CT, v(vL16)))
    TT = XAC
    def put(base, n):
        for q in range(n // 4): a('ds_write_b128 v6, %s offset:%d' % (v(base + 4 * q, 4), 1024 * ((base - F1) // 4 + q)))
    def sigf(dst, t):
        a('v_lshrrev_b32 %s, 1, v2' % v(t)); a('v_and_b32 %s, 9, %s' % (v(dst), v(t)))
        a('v_and_b32 %s, 2, %s' % (v(t + 1), v(t))); a('v_lshl_or_b32 %s, %s, 1, %s' % (v(dst), v(t + 1), v(dst)))
        a('v_bfe_u32 %s, %s, 2, 1' % (v(t + 1), v(t))); a('v_lshl_or_b32 %s, %s, 1, %s' % (v(dst), v(t + 1), v(dst)))
    def cq_job(tau, fns):
        a('v_and_b32 v8, 3, v4'); a('v_lshrrev_b32 v9, 2, v4'); a('v_lshl_add_u32 v8, v8, 3, v9'); a('v_add_u32 v8, %d, v8' % (4 * tau))
        a('v_cvt_f32_u32 v8, v8'); a('v_mul_f32 v8, %s, v8' % fh(1 / 32)); a('v_cvt_f32_u32 v9, v5'); a('v_mul_f32 v9, 4.0, v9'); a('v_mul_f32 v9, v8, v9')
        for fn in fns:
            angles(8, 9, [0, 1, 2, 3, 16, 17, 18, 19], TT); trig(fn, TT, 8)
            d = CQ + 8 * tau + (4 if fn == 'sin' else 0); pack(d, TT, 8); put(d, 4)
    for jb in range(1, 8): a('s_cmp_eq_u32 s3, %d' % jb); a('s_cbranch_scc1 fz_j%d' % jb)
    sigf(8, 10); a('v_and_b32 v9, 1, v2'); a('v_cmp_eq_u32 vcc, 1, v2')
    a('v_cndmask_b32 v8, v8, 16, vcc'); a('v_cndmask_b32 v9, v9, 0, vcc')
    a('v_cvt_f32_u32 v8, v8'); a('v_cvt_f32_u32 v9, v9'); a('v_cvt_f32_u32 v10, v3')
    a('v_mul_f32 v8, %s, v8' % fh(1 / 32)); a('v_mul_f32 v9, %s, v9' % fh(0.25)); a('v_mul_f32 v10, %s, v10' % fh(8.0)); a('v_fma_f32 v9, v8, v10, v9')
    angles(8, 9, list(range(8)) + list(range(16, 24)), TT); trig('cos', TT, 16); pack(F1, TT, 16, 'bf16'); put(F1, 8)
    a('s_branch fz_jend')
    for jb, fn, dst in ((1, 'cos', TC), (2, 'sin', TS)):
        a.label('fz_j%d' % jb)
        sigf(8, 10); a('v_cvt_f32_u32 v8, v8'); a('v_mul_f32 v8, %s, v8' % fh(1 / 1024))
        if fn == 'sin': a('v_lshlrev_b32 v9, 31, v2'); a('v_xor_b32 v8, v9, v8')
        a('v_cvt_f32_u32 v9, v3'); a('v_mul_f32 v9, 4.0, v9'); a('v_mul_f32 v9, v8, v9')
        if fn == 'cos':
            a('v_cmp_eq_u32 vcc, 1, v2'); a('v_mov_b32 v10, %s' % fh(0.25)); a('v_cndmask_b32 v9, v9, v10, vcc')
        angles(8, 9, [kr(r) for r in range(16)], TT); trig(fn, TT, 16); pack(dst, TT, 16); put(dst, 8)
        a('s_branch fz_jend')
    for jb, fn, dst in ((3, 'cos', C2), (4, 'sin', S2)):
        a.label('fz_j%d' % jb)
        a('v_cvt_f32_u32 v8, v2'); a('v_mul_f32 v8, %s, v8' % fh(1 / 32)); a('v_cvt_f32_u32 v9, v3'); a('v_mul_f32 v9, 4.0, v9'); a('v_mul_f32 v9, v8, v9')
        angles(8, 9, [kr(r) for r in range(16)], TT); trig(fn, TT, 16); pack(dst, TT, 16); put(dst, 8)
        a('s_branch fz_jend')
    for jb, ph, dst in ((5, 0.0, B3C), (6, 0.25, B3S)):
        a.label('fz_j%d' % jb)
        a('v_lshl_add_u32 v8, v4, 1, 1'); a('v_cvt_f32_u32 v8, v8'); a('v_mul_f32 v8, %s, v8' % fh(1 / 64))
        a('v_cvt_f32_u32 v9, v3'); a('v_mul_f32 v9, 4.0, v9'); a('v_mul_f32 v9, v8, v9')
        if ph: a('v_add_f32 v9, %s, v9' % fh(ph))
        a('v_and_b32 v10, 1, v5'); a('v_cmp_eq_u32 vcc, 1, v10'); a('v_mov_b32 v10, %s' % fh(0.25))
        a('v_cndmask_b32 v8, v8, 0, vcc'); a('v_cndmask_b32 v9, v9, v10, vcc')
        angles(8, 9, [kr(r) for r in range(16)], TT); trig('cos', TT, 16); pack(dst, TT, 16); put(dst, 8)
        cq_job(1, ['cos' if jb == 5 else 'sin'])
        a('s_branch fz_jend')
    a.label('fz_j7')
    cq_job(0, ['cos', 'sin'])
    a.label('fz_jend')
    a('v_lshlrev_b32 v7, 9, v3'); a('v_bfe_u32 v10, v1, 2, 2'); a('v_lshl_add_u32 v7, v10, 6, v7')
    a('v_and_b32 v10, 1, v5'); a('v_lshl_add_u32 v7, v10, 5, v7'); a('v_and_b32 v10, 3, v1'); a('v_lshl_add_u32 v7, v10, 3, v7'); a('v_add_u32 v7, s31, v7')
    a('v_lshlrev_b32 v8, 9, v3'); a('v_lshl_add_u32 v8, v2, 1, v8'); a('v_sub_u32 v9, 2048, v8'); a('v_and_b32 v9, 2047, v9'); a('v_add_u32 v9, s30, v9')
    a('s_add_u32 s32, s30, %d' % (2048 - 64 * 23)); a('v_sub_u32 v8, s32, v8')
    a('v_cmp_eq_u32 vcc, 0, v2'); a('v_mov_b32 v10, %s' % fh(-32.0)); a('v_cndmask_b32 %s, 0, v10, vcc' % v(vM0))
    a('v_mov_b32 %s, %s' % (v(vM0 + 1), fh(1e-5))); a('v_mov_b32 v242, 0xffff0000')
    a('v_lshlrev_b32 %s, 31, v1' % v(vSG)); a('v_lshrrev_b32 v10, 16, %s' % v(vSG)); a('v_or_b32 %s, %s, v10' % (v(vSG), v(vSG)))
    a('v_mov_b32 %s, 0xfffcfffc' % v(vM))
    a('s_lshr_b32 s32, s24, 1'); a('s_lshl_b32 s33, s23, 1'); a('s_add_u32 s32, s32, s33'); a('s_lshl_b32 s32, s32, 5')
    a('s_mul_i32 s33, s3, 2304'); a('s_add_u32 s32, s32, s33'); a('s_add_u32 s32, s32, %d' % SB)
    a('v_add_u32 v10, v1, v3'); a('v_lshlrev_b32 v10, 4, v10'); a('v_add_u32 %s, s32, v10' % v(vSW))
    a('v_bfe_u32 v10, v0, 3, 1'); a('v_mul_u32_u24 v10, 33, v10'); a('v_lshrrev_b32 v11, 5, v0'); a('v_add_u32 v10, v10, v11'); a('v_lshlrev_b32 v10, 4, v10')
    a('v_bfe_u32 v11, v0, 4, 1'); a('v_lshl_add_u32 v10, v11, 3, v10'); a('v_bfe_u32 v11, v0, 2, 1'); a('v_lshl_add_u32 v10, v11, 2, v10')
    a('v_add_u32 v10, %d, v10' % SB)
    a('v_and_b32 v11, 3, v1'); a('v_lshrrev_b32 v12, 1, v11'); a('v_xor_b32 v11, v11, v12'); a('v_and_b32 v11, 1, v11')
    a('v_mul_u32_u24 v11, %d, v11' % (4 * 2304 + 64)); a('v_add_u32 v10, v10, v11')
    a('v_cmp_eq_u32 vcc, 1, v12')
    for k in range(4):
        pm = 1152 if k >= 2 else 0
        o0 = k * 2304 + pm + (32 if k >= 2 else 0); o1 = (3 - k) * 2304 + pm + (32 if (3 - k) >= 2 else 0)
        a('v_mov_b32 v11, %d' % o0); a('v_mov_b32 v12, %d' % o1); a('v_cndmask_b32 v11, v11, v12, vcc'); a('v_add_u32 %s, v10, v11' % v(vSR + k))
    a('v_lshlrev_b32 %s, 4, v0' % v(vWST))
    a('s_min_u32 s32, s20, 124'); a('s_cmp_eq_u32 s20, 128'); a('s_cselect_b32 s33, s32, s20')
    a('s_mul_i32 s52, s33, %d' % PS); a('s_cselect_b32 s33, 48, 0'); a('s_add_u32 s52, s52, s33'); a('s_add_u32 s52, s52, 0x%x' % WOFF)
    a('s_mov_b64 s[54:55], -1'); a('s_cmp_eq_u32 s20, 124'); a('s_cselect_b32 s54, 0x77777777, s54')
    a('s_cmp_eq_u32 s20, 128'); a('s_cselect_b32 s54, 0x11111111, s54'); a('s_mov_b32 s55, s54')
    a('s_waitcnt lgkmcnt(0)'); a('s_barrier')
    for q in range(14): a('ds_read_b128 %s, v6 offset:%d' % (v(F1 + 4 * q, 4), 1024 * q))
    tags()
    a('s_mov_b32 s42, 0x3f803f80')
    for i in range(4): a('v_mov_b32 %s, 0' % v(ST + i))
    st()
    a('s_waitcnt vmcnt(2) lgkmcnt(0)')
    st()
    for jx in range(2):
        for hh in range(2): a('ds_read_b64_tr_b16 %s, v7 offset:%d' % (v(XA + 4 * jx + 2 * hh, 2), 1024 * jx + 256 * hh))
    for jx in range(2):
        for i in range(8):
            op = 'ds_read_u16_d16_hi' if i & 1 else 'ds_read_u16_d16'
            dst = (H if i & 1 else XB) + 4 * jx + (i >> 1)
            if jx == 0 and i == 0: a('%s %s, v9' % (op, v(dst)))
            else: a('%s %s, v8 offset:%d' % (op, v(dst), 64 * (23 - 16 * jx - i)))
        if jx == 0: a('s_waitcnt lgkmcnt(8)')
        if jx == 0:
            for j2 in range(2): a('v_mfma_f32_32x32x16_bf16 %s, %s, %s, %s' % (v(XAC, 16), v(XA + 4 * j2, 4), v(F1 + 4 * j2, 4), v(XAC, 16) if j2 else '0'))
    for i in range(8):
        a('v_dot2_f32_bf16 %s, %s, s42, %s' % (v(ST), v(XA + i), v(ST))); a('v_dot2_f32_bf16 %s, %s, %s, %s' % (v(ST + 1), v(XA + i), v(XA + i), v(ST + 1)))
    a('s_waitcnt lgkmcnt(0)')
    for i in range(8): a('v_or_b32 %s, %s, %s' % (v(XB + i), v(XB + i), v(H + i)))
    for j2 in range(2): a('v_mfma_f32_32x32x16_bf16 %s, %s, %s, %s' % (v(XBC, 16), v(XB + 4 * j2, 4), v(F1 + 4 * j2, 4), v(XBC, 16) if j2 else '0'))
    for i in range(8):
        a('v_dot2_f32_bf16 %s, %s, s42, %s' % (v(ST + 2), v(XB + i), v(ST + 2))); a('v_dot2_f32_bf16 %s, %s, %s, %s' % (v(ST + 3), v(XB + i), v(XB + i), v(ST + 3)))
    for pat in ['quad_perm:[1,0,3,2] ' + DPPF, 'quad_perm:[2,3,0,1] ' + DPPF, 'row_half_mirror ' + DPPF,
                'row_mirror ' + DPPF, 'row_bcast:15 row_mask:0xa bank_mask:0xf', 'row_bcast:31 row_mask:0xc bank_mask:0xf']:
        for r in range(4): a('v_add_f32_dpp %s, %s, %s %s' % (v(ST + r), v(ST + r), v(ST + r), pat))
    a('s_mov_b32 s43, %s' % fh(1 / 1024))
    for k in (0, 2): a('v_mul_f32 %s, %s, %s' % (v(ST + k), fh(1 / 1024), v(ST + k)))
    for k in (0, 2): a('v_fma_f32 %s, %s, s43, %s' % (v(ST + k + 1), v(ST + k + 1), v(vM0 + 1)))
    for k in (0, 2): a('v_fma_f32 %s, -%s, %s, %s' % (v(ST + k + 1), v(ST + k), v(ST + k), v(ST + k + 1)))
    for k in (0, 2): a('v_rsq_f32 %s, %s' % (v(ST + k + 1), v(ST + k + 1)))
    a('v_mul_f32 %s, %s, %s' % (v(ST), v(ST), v(ST + 1))); a('v_fmac_f32 %s, %s, %s' % (v(ST), v(ST + 2), v(ST + 3)))
    a('v_readlane_b32 s32, %s, 63' % v(ST + 1)); a('v_readlane_b32 s34, %s, 63' % v(ST + 3)); a('v_readlane_b32 s36, %s, 63' % v(ST))
    a('v_mul_f32 %s, s36, %s' % (v(ST + 4), v(vM0)))
    for i in range(8): a('v_pk_fma_f32 %s, %s, s[32:33], %s op_sel_hi:[1,0,0]' % (v(XAC + 2 * i, 2), v(XAC + 2 * i, 2), v(ST + 4, 2)))
    for i in range(8): a('v_pk_fma_f32 %s, %s, s[34:35], %s op_sel_hi:[1,0,1]' % (v(XAC + 2 * i, 2), v(XBC + 2 * i, 2), v(XAC + 2 * i, 2)))
    pack(H, XAC, 16)
    for i in range(8): a('v_mov_b32_dpp %s, %s %s' % (v(TP + i), v(H + i), X1))
    D3C, D3S = XBC, XBC + 4
    for i in range(8): a('v_pk_mul_f16 %s, %s, %s' % (v(T + i), v(H + i), v(TC + i)))
    for j2 in range(2):
        a('v_mfma_f32_16x16x32_f16 %s, %s, %s, %s' % (v(D3C, 4), v(H + 4 * j2, 4), v(B3C + 4 * j2, 4), v(D3C, 4) if j2 else '0'))
        for i in range(4): a('v_pk_fma_f16 %s, %s, %s, %s' % (v(T + 4 * j2 + i), v(TP + 4 * j2 + i), v(TS + 4 * j2 + i), v(T + 4 * j2 + i)))
    a('v_mfma_f32_32x32x16_f16 %s, %s, %s, 0' % (v(XAC, 16), v(T, 4), v(C2, 4)))
    for i in range(4): a('v_xor_b32_dpp %s, %s, %s %s' % (v(TP + i), v(T + i), v(vSG), X1))
    a('v_mfma_f32_32x32x16_f16 %s, %s, %s, %s' % (v(XAC, 16), v(T + 4, 4), v(C2 + 4, 4), v(XAC, 16)))
    for i in range(4, 8): a('v_xor_b32_dpp %s, %s, %s %s' % (v(TP + i), v(T + i), v(vSG), X1))
    for j2 in range(2): a('v_mfma_f32_32x32x16_f16 %s, %s, %s, %s' % (v(XAC, 16), v(TP + 4 * j2, 4), v(S2 + 4 * j2, 4), v(XAC, 16)))
    for j2 in range(2): a('v_mfma_f32_16x16x32_f16 %s, %s, %s, %s' % (v(D3S, 4), v(H + 4 * j2, 4), v(B3S + 4 * j2, 4), v(D3S, 4) if j2 else '0'))
    a('s_mov_b64 vcc, 0xffff')
    for p in (7, 6, 5, 4, 3, 2, 1): a('v_cvt_pk_f16_f32 %s, %s, %s' % (v(H + p), v(XAC + 2 * p), v(XAC + 2 * p + 1)))
    a('v_cndmask_b32 %s, %s, %s, vcc' % (v(XAC), v(XAC), v(D3C + 1))); a('v_cndmask_b32 %s, %s, %s, vcc' % (v(XAC + 1), v(XAC + 1), v(D3S + 1)))
    for p in (3, 2, 1, 0):
        if p == 0: a('v_cvt_pk_f16_f32 %s, %s, %s' % (v(H), v(XAC), v(XAC + 1)))
        a('v_pk_add_f16 %s, %s, %s op_sel:[0,1] op_sel_hi:[1,0] neg_lo:[0,1]' % (v(T + p), v(H + 2 * p), v(H + 2 * p + 1)))
        a('v_pk_add_f16 %s, %s, %s op_sel:[0,1] op_sel_hi:[1,0] neg_hi:[1,0]' % (v(T + 4 + p), v(H + 2 * p), v(H + 2 * p + 1)))
    a('ds_write_b128 %s, %s' % (v(vSW), v(T, 4))); a('ds_write_b128 %s, %s offset:1152' % (v(vSW), v(T + 4, 4)))
    a('s_add_u32 s53, s52, 8192')
    a('s_waitcnt lgkmcnt(0)'); a('s_barrier')
    st()
    Z = XAC
    for rd in range(2):
        for k in range(4): a('ds_read_b32 %s, %s offset:%d' % (v(Z + 4 * rd + k), v(vSR + k), 256 * rd))
    a('s_mov_b64 exec, s[54:55]')
    for rd in range(2):
        z = Z + 4 * rd; u = Z + 8 + 8 * rd; o = u + 4
        a('s_waitcnt lgkmcnt(%d)' % (4 - 4 * rd))
        a('v_pk_add_f16 %s, %s, %s' % (v(u), v(z), v(z + 2))); a('v_pk_add_f16 %s, %s, %s' % (v(u + 2), v(z + 1), v(z + 3)))
        a('v_pk_add_f16 %s, %s, %s neg_lo:[0,1] neg_hi:[0,1]' % (v(u + 1), v(z), v(z + 2))); a('v_pk_add_f16 %s, %s, %s neg_lo:[0,1] neg_hi:[0,1]' % (v(u + 3), v(z + 1), v(z + 3)))
        a('v_pk_add_f16 %s, %s, %s' % (v(o), v(u), v(u + 2))); a('v_pk_add_f16 %s, %s, %s neg_lo:[0,1] neg_hi:[0,1]' % (v(o + 2), v(u), v(u + 2)))
        a('v_pk_add_f16 %s, %s, %s op_sel:[0,1] op_sel_hi:[1,0] neg_hi:[0,1]' % (v(o + 1), v(u + 1), v(u + 3)))
        a('v_pk_add_f16 %s, %s, %s op_sel:[0,1] op_sel_hi:[1,0] neg_lo:[0,1]' % (v(o + 3), v(u + 1), v(u + 3)))
        for k in range(4): a('v_add_u32 %s, 0x20002, %s' % (v(o + k), v(o + k)))
        for k in range(4): a('v_and_or_b32 %s, %s, %s, %s' % (v(o + k), v(o + k), v(vM), s(44 + k)))
        a('buffer_store_dwordx4 %s, %s, s[4:7], %s offen sc1' % (v(o, 4), v(vWST), s(52 + rd)))
    a('s_mov_b64 exec, -1')
    a('s_cmp_eq_u32 s20, 128'); a('s_cbranch_scc1 fz_xend')
    st()
    B1, TC2, TS2 = 16, 20, 24
    for q in range(4): a('ds_read_b128 %s, v6 offset:%d' % (v(CQ + 4 * q, 4), 1024 * (14 + q)))
    a('s_and_b32 s32, s3, 3'); a('s_lshr_b32 s33, s3, 2'); a('s_lshl_b32 s33, s33, 4'); a('s_add_u32 s33, s33, s32')
    a('v_lshrrev_b32 v8, 2, v4'); a('v_lshlrev_b32 v8, 2, v8'); a('v_bfe_u32 v9, v4, 1, 1'); a('v_lshl_add_u32 v8, v9, 5, v8'); a('v_add_u32 v8, s33, v8')
    a('v_cvt_f32_u32 v8, v8'); a('v_and_b32 v9, 1, v1'); a('v_cvt_f32_u32 v9, v9'); a('v_cvt_f32_u32 v10, v5'); a('v_mul_f32 v10, 4.0, v10')
    a('v_mul_f32 v11, %s, v8' % fh(1 / 64)); a('v_mul_f32 v9, %s, v9' % fh(0.25)); a('v_fma_f32 v9, v11, v10, v9')
    TT = XAC
    angles(11, 9, [0, 0, 1, 1, 2, 2, 3, 3], TT)
    a('v_mul_f32 v11, %s, v8' % fh(1 / 2048)); a('v_lshlrev_b32 v12, 31, v1'); a('v_xor_b32 v11, v12, v11'); a('v_mul_f32 v9, v11, v10')
    angles(11, 9, [0, 1, 2, 3, 16, 17, 18, 19], TT + 8)
    for i in range(8): a('v_%s_f32 %s, %s' % ('sin' if i & 1 else 'cos', v(TT + i), v(TT + i)))
    for i in range(8): a('v_sin_f32 %s, %s' % (v(TT + 16 + i), v(TT + 8 + i)))
    trig('cos', TT + 8, 8)
    a('s_mov_b32 s32, %s' % fh(1 / 16))
    for i in range(12): a('v_pk_mul_f32 %s, %s, s[32:33] op_sel_hi:[1,0]' % (v(TT + 2 * i, 2), v(TT + 2 * i, 2)))
    pack(B1, TT, 24)
    a('v_lshrrev_b32 v8, 3, v1'); a('v_mul_u32_u24 %s, %d, v8' % (v(vHL), PS)); a('v_and_b32 v9, 7, v1'); a('v_lshl_add_u32 %s, v9, 4, %s' % (v(vHL), v(vHL)))
    a('s_mul_i32 s52, s3, %d' % (16 * PS)); a('s_lshl_b32 s32, s20, 7'); a('s_add_u32 s52, s52, s32'); a('s_add_u32 s52, s52, 0x%x' % WOFF); a('s_add_u32 s53, s52, %d' % (8 * PS))
    a('s_lshl_b32 s32, s3, 4')
    for u, dst in ((0, vA0), (1, vA1)):
        a('v_add_u32 v9, s32, v8') if u == 0 else a('v_add_u32 v9, 8, v9')
        a('v_lshrrev_b32 v10, 3, v9'); a('v_add_u32 v10, 1, v10'); a('v_and_b32 v11, 7, v9'); a('v_lshl_add_u32 v10, v11, 6, v10')
        a('v_subrev_u32 v11, 124, v9'); a('v_lshlrev_b32 v11, 6, v11'); a('v_cmp_lt_u32 vcc, 123, v9'); a('v_cndmask_b32 v10, v10, v11, vcc')
        a('v_and_b32 v11, 3, v1'); a('v_lshrrev_b32 v12, 1, v11'); a('v_xor_b32 v11, v11, v12'); a('v_and_b32 v11, 1, v11'); a('v_lshl_add_u32 v10, v11, 5, v10')
        a('v_sub_u32 v11, 512, v10'); a('v_cmp_eq_u32 vcc, 1, v12'); a('v_cndmask_b32 v10, v10, v11, vcc')
        a('v_mov_b32 v11, 256'); a('v_cmp_eq_u32 vcc, 512, v10'); a('v_cndmask_b32 v10, v10, v11, vcc')
        a('v_bfe_u32 v11, v10, 4, 1'); a('v_lshlrev_b32 v11, 10, v11'); a('v_lshrrev_b32 v12, 7, v10'); a('v_lshl_add_u32 v11, v12, 8, v11')
        a('v_and_b32 v12, 15, v10'); a('v_lshl_add_u32 v11, v12, 4, v11'); a('v_bfe_u32 v12, v10, 5, 2'); a('v_lshl_add_u32 v11, v12, 2, v11')
        a('v_bfe_u32 v12, v1, 2, 1'); a('v_mul_u32_u24 v12, %d, v12' % CPS); a('v_add_u32 %s, v11, v12' % v(dst))
        a('v_add_u32 %s, %d, %s' % (v(dst), AB, v(dst)))
    a('s_and_b32 s32, s3, 3'); a('s_lshl_b32 s32, s32, 11'); a('s_add_u32 s32, s32, %d' % AB); a('v_add_u32 %s, s32, %s' % (v(vAR), v(vL16)))
    a('v_lshlrev_b32 v8, 2, v5'); a('v_add_u32 v8, s33, v8')
    a('v_sub_u32 v9, 32, v8'); a('v_min_u32 v9, v8, v9')
    a('v_and_b32 v10, 15, v8'); a('v_cmp_eq_u32 s[32:33], 0, v10')
    a('v_cmp_lt_u32 s[34:35], 16, v8')
    a('v_subrev_u32 v10, 1, v9'); a('v_lshlrev_b32 v10, 3, v10'); a('v_mov_b32 v11, 124'); a('v_cmp_eq_u32 vcc, 0, v8'); a('v_cndmask_b32 v10, v10, v11, vcc')
    a('v_and_b32 v11, 3, v1'); a('v_lshlrev_b32 v11, 4, v11'); a('v_lshl_add_u32 v10, v10, 7, v11')
    a('v_lshrrev_b32 v11, 2, v4')
    for tau, dst in ((0, vY0), (1, vY1)):
        if tau: a('s_or_b64 s[34:35], s[34:35], s[32:33]')
        a('v_add_u32 v12, %d, v11' % (4 * tau)); a('v_lshlrev_b32 v12, 7, v12'); a('v_sub_u32 v13, %d, v12' % (7 * 128 + 64))
        a('v_cndmask_b32 v12, v12, v13, s[34:35]'); a('v_add_u32 %s, v10, v12' % v(dst))
    a('s_mul_i32 s56, s20, %d' % PS); a('s_add_u32 s56, s56, 0x%x' % YOFF)
    a('v_mov_b32 v14, 0x30003')
    a('s_waitcnt vmcnt(0)')
    st()
    R = XAC
    a.label('fz_h1')
    a('buffer_load_dwordx4 %s, %s, s[4:7], s52 offen sc1' % (v(R, 4), v(vHL))); a('buffer_load_dwordx4 %s, %s, s[4:7], s53 offen sc1' % (v(R + 4, 4), v(vHL)))
    a('s_waitcnt vmcnt(1)')
    for k in range(4): a('v_xor_b32 %s, %s, %s' % (v(R + k), s(44 + k), v(R + k)))
    a('v_or3_b32 %s, %s, %s, %s' % (v(R + 8), v(R), v(R + 1), v(R + 2)))
    a('s_waitcnt vmcnt(0)')
    for k in range(4): a('v_xor_b32 %s, %s, %s' % (v(R + 4 + k), s(44 + k), v(R + 4 + k)))
    a('v_or3_b32 %s, %s, %s, %s' % (v(R + 8), v(R + 8), v(R + 3), v(R + 4))); a('v_or3_b32 %s, %s, %s, %s' % (v(R + 9), v(R + 5), v(R + 6), v(R + 7)))
    a('v_bitop3_b32 %s, %s, %s, v14 bitop3:0xa8' % (v(R + 8), v(R + 8), v(R + 9)))
    a('v_cmp_ne_u32 vcc, 0, %s' % v(R + 8))
    poll_retry('fz_h1')
    for u, ad in ((0, vA0), (1, vA1)):
        for k in range(4): a('ds_write_b32 %s, %s offset:%d' % (v(ad), v(R + 4 * u + k), 2048 * k))
    a('s_waitcnt lgkmcnt(0)'); a('s_barrier')
    st()
    A2, V2, H2, T2, TP2, D2 = 104, 120, 136, 144, 152, 104
    for cp in range(2):
        for hf in range(2): a('ds_read_b128 %s, %s offset:%d' % (v(A2 + 8 * cp + 4 * hf, 4), v(vAR), CPS * cp + 1024 * hf))
    for q in range(4):
        a('s_waitcnt lgkmcnt(%d)' % (3 - q))
        a('v_mfma_f32_16x16x32_f16 %s, %s, %s, 0' % (v(V2 + 4 * q, 4), v(A2 + 4 * q, 4), v(B1, 4)))
    for cp in range(2):
        pack(H2 + 4 * cp, V2 + 8 * cp, 8)
    for cp in range(2):
        h, t, tp = H2 + 4 * cp, T2 + 4 * cp, TP2 + 4 * cp
        for i in range(4): a('v_pk_mul_f16 %s, %s, %s' % (v(t + i), v(h + i), v(TC2 + i)))
        for i in range(4): a('v_mov_b32_dpp %s, %s %s' % (v(tp + i), v(h + i), X1))
        for i in range(4): a('v_pk_fma_f16 %s, %s, %s, %s' % (v(t + i), v(tp + i), v(TS2 + i), v(t + i)))
        for tau in range(2): a('v_mfma_f32_16x16x32_f16 %s, %s, %s, 0' % (v(D2 + 8 * cp + 4 * tau, 4), v(t, 4), v(CQ + 8 * tau, 4)))
        for i in range(4): a('v_xor_b32_dpp %s, %s, %s %s' % (v(tp + i), v(t + i), v(vSG), X1))
        for tau in range(2): a('v_mfma_f32_16x16x32_f16 %s, %s, %s, %s' % (v(D2 + 8 * cp + 4 * tau, 4), v(tp, 4), v(CQ + 8 * tau + 4, 4), v(D2 + 8 * cp + 4 * tau, 4)))
    O2 = V2
    for tau in range(2):
        for cp in range(2):
            for b in range(2): a('v_cvt_pk_f16_f32 %s, %s, %s' % (v(O2 + 4 * tau + 2 * b + cp), v(D2 + 8 * cp + 4 * tau + 2 * b), v(D2 + 8 * cp + 4 * tau + 2 * b + 1)))
        for k in range(4): a('v_add_u32 %s, 0x20002, %s' % (v(O2 + 4 * tau + k), v(O2 + 4 * tau + k)))
        for k in range(4): a('v_and_or_b32 %s, %s, %s, %s' % (v(O2 + 4 * tau + k), v(O2 + 4 * tau + k), v(vM), s(44 + k)))
        a('buffer_store_dwordx4 %s, %s, s[4:7], s56 offen sc1' % (v(O2 + 4 * tau, 4), v(vY0 + tau)))
    st()
    a('v_sub_u32 v8, 15, v4'); a('v_min_u32 v8, v4, v8')
    a('v_and_b32 v9, 1, v8'); a('v_lshlrev_b32 v9, 5, v9'); a('v_lshrrev_b32 v10, 1, v8'); a('v_lshl_add_u32 v9, v10, 9, v9'); a('v_add_u32 v9, s25, v9')
    a('v_sub_u32 v10, 2048, v9'); a('v_cmp_lt_u32 s[34:35], 7, v4'); a('v_cndmask_b32 %s, v9, v10, s[34:35]' % v(vT))
    a('v_mov_b32 v9, v4'); a('v_mov_b32 v10, s20')
    a('s_mov_b64 s[38:39], 0')
    a('s_cmp_lg_u32 s21, 0'); a('s_cbranch_scc0 fz_spec3')
    a.lines.append('fz_spec3back:')
    a('v_lshlrev_b32 v10, 7, v10'); a('v_lshl_add_u32 v10, v9, 3, v10'); a('v_mul_u32_u24 v11, %d, v5' % (4 * PS)); a('v_add_u32 %s, v10, v11' % v(vYL))
    a('v_and_b32 v9, 1, v9'); a('v_cmp_eq_u32 vcc, 1, v9')
    a('v_mov_b32 v9, s44'); a('v_mov_b32 v10, s46'); a('v_cndmask_b32 %s, v9, v10, vcc' % v(vYE))
    a('v_mov_b32 v9, s45'); a('v_mov_b32 v10, s47'); a('v_cndmask_b32 %s, v9, v10, vcc' % v(vYE + 1))
    a('s_mul_i32 s52, s3, %d' % (16 * PS)); a('s_add_u32 s52, s52, 0x%x' % YOFF)
    for jx in range(1, 4): a('s_add_u32 %s, s52, %d' % (s(52 + jx), jx * PS))
    a('s_lshl_b32 s32, s3, 2'); a('v_add_u32 v8, s32, v5')
    a('v_lshlrev_b32 v9, 6, v8')
    a('v_cmp_gt_u32 vcc, 16, v8'); a('v_cndmask_b32 v10, 0, 32, vcc'); a('v_add_u32 v10, v9, v10')
    a('v_sub_u32 v11, 2048, v10'); a('v_cmp_eq_u32 vcc, 16, v8'); a('v_cndmask_b32 v11, v11, 0, vcc')
    a('v_mov_b32 v12, 0xffff0000'); a('v_cndmask_b32 %s, -1, v12, vcc' % v(vZM))
    a('v_sub_u32 v12, %d, v9' % (2048 - 30))
    a('v_mul_u32_u24 v13, %d, v4' % RS)
    a('v_add_u32 %s, v13, v9' % v(vXR)); a('v_add_u32 %s, v13, v12' % v(vXM)); a('v_add_u32 %s, v13, v10' % v(vE0)); a('v_add_u32 v241, v13, v11')
    vM0m = 241
    XP = 104
    a('ds_read_b128 %s, %s' % (v(XP, 4), v(vXR))); a('ds_read_b128 %s, %s offset:16' % (v(XP + 4, 4), v(vXR)))
    a('ds_read_u16_d16_hi %s, %s' % (v(XD + 16), v(vM0m)))
    for e in range(1, 16): a('ds_read_u16_d16_hi %s, %s offset:%d' % (v(XD + 16 + e), v(vXM), 2 * (15 - e)))
    a('ds_read_u16_d16_hi %s, %s' % (v(XD), v(vE0)))
    for r in (9, 10, 11, 12): a('v_add_u32 %s, %d, %s' % (v(r), WR, v(r)))
    a('s_mov_b32 s36, 0xffff0000')
    a('s_waitcnt lgkmcnt(0)')
    a('ds_read_b128 %s, v9' % v(WV, 4)); a('ds_read_b128 %s, v9 offset:16' % v(WV + 4, 4))
    a('ds_read_u16_d16 %s, v11' % v(WV + 8))
    for e in range(1, 16): a('ds_read_u16_d16%s %s, v12 offset:%d' % ('_hi' if e & 1 else '', v((XP + 8 if e & 1 else WV + 8) + (e >> 1)), 2 * (15 - e)))
    a('ds_read_u16_d16 v13, v10')
    for k in range(8):
        if k: a('v_lshlrev_b32 %s, 16, %s' % (v(XD + 2 * k), v(XP + k)))
        a('v_and_b32 %s, s36, %s' % (v(XD + 2 * k + 1), v(XP + k)))
    a('v_cmp_eq_u32 vcc, 1, v4'); a('v_mov_b32 v9, s42'); a('v_cndmask_b32 v9, 0, v9, vcc')
    for k in range(4): a('v_mov_b32 %s, s42' % v(XP + k))
    a('v_cmp_eq_u32 vcc, 0, v4')
    a('s_waitcnt lgkmcnt(0)')
    a('v_and_or_b32 %s, %s, s36, v13' % (v(WV), v(WV)))
    for k in range(8): a('v_or_b32 %s, %s, %s' % (v(WV + 8 + k), v(WV + 8 + k), v(XP + 8 + k)))
    for k in range(16): a('v_cndmask_b32 %s, v9, %s, vcc' % (v(WV + k), v(WV + k)))
    for q in range(4): a('v_mfma_f32_16x16x32_bf16 %s, %s, %s, %s' % (v(XP + 4, 4), v(WV + 4 * q, 4), v(XP, 4), v(XP + 4, 4) if q else '0'))
    a('s_lshl_b32 s32, s3, 8'); a('s_add_u32 s32, s32, %d' % PR)
    a('v_lshlrev_b32 v9, 4, v4'); a('v_add_u32 v10, s32, v9'); a('v_add_u32 v11, %d, %s' % (TRASH, v(vL16)))
    a('v_cmp_gt_u32 vcc, 16, v1'); a('v_cndmask_b32 v2, v11, v10, vcc')
    a('v_lshrrev_b32 v12, 2, v4'); a('v_cmp_eq_u32 vcc, v12, v5'); a('v_cndmask_b32 v3, v11, v10, vcc')
    a('v_lshrrev_b32 v12, 5, v1'); a('v_lshl_add_u32 v6, v12, 10, v9'); a('v_add_u32 v6, %d, v6' % PR)
    a('ds_write_b32 v2, %s offset:12' % v(XP + 4))
    a('v_and_b32 v9, 1, v1'); a('v_cmp_eq_u32 s[32:33], 1, v9'); a('v_and_b32 v9, 2, v1'); a('v_cmp_eq_u32 s[34:35], 2, v9')
    a('s_lshl_b32 s37, s3, 2'); a('v_add_u32 v7, s37, v5'); a('v_mul_u32_u24 v7, %d, v7' % KS)
    a('s_lshl_b32 s26, s20, 4'); a('s_add_u32 s26, s26, 0x%x' % KOFF)
    a('v_lshlrev_b32 v8, 4, v5'); a('s_lshl_b32 s27, s20, 11'); a('s_lshl_b32 s37, s3, 8'); a('s_add_u32 s27, s27, s37'); a('s_add_u32 s27, s27, 0x%x' % COFF)
    a('v_sub_u32 v15, 2047, %s' % v(vT))
    a('s_mov_b32 s36, %s' % fh(128.0))
    a('s_mov_b32 s58, 0')
    a('s_waitcnt vmcnt(0)')
    st()
    YD, YM, HP, Q1, Q2 = 104, 112, 120, 136, 140
    a.label('fz_h2')
    for jx in range(4): a('buffer_load_dwordx2 %s, %s, s[4:7], %s offen sc1' % (v(YD + 2 * jx, 2), v(vYL), s(52 + jx)))
    for jx in range(4):
        a('s_waitcnt vmcnt(%d)' % (3 - jx))
        for k in range(2): a('v_xor_b32 %s, %s, %s' % (v(YD + 2 * jx + k), v(vYE + k), v(YD + 2 * jx + k)))
        if jx == 0: a('v_or_b32 v9, %s, %s' % (v(YD), v(YD + 1)))
        else: a('v_or3_b32 v9, v9, %s, %s' % (v(YD + 2 * jx), v(YD + 2 * jx + 1)))
    a('v_and_b32 v9, v14, v9')
    a('v_cmp_ne_u32 vcc, 0, v9')
    poll_retry('fz_h2')
    st()
    a('s_mov_b64 vcc, s[38:39]')
    for e in range(16): a('v_fma_mix_f32 %s, %s, s36, %s op_sel:[%d,0,0] op_sel_hi:[1,0,0]' % (v(XD + e), v(YD + (e >> 1)), v(XD + e), e & 1))
    for k in range(8): a('v_cndmask_b32_dpp %s, %s, %s, vcc row_mirror %s' % (v(YM + k), v(YD + k), v(YD + k), DPPF))
    pack(HP, XD, 16, 'bf16')
    a('v_and_b32 %s, %s, %s' % (v(YM), v(vZM), v(YM)))
    for q in range(2):
        a('v_mfma_f32_16x16x32_bf16 %s, %s, %s, %s' % (v(Q1, 4), v(HP + 4 * q, 4), v(HP + 4 * q, 4), v(Q1, 4) if q else '0'))
        a('v_mfma_f32_16x16x32_bf16 %s, %s, %s, %s' % (v(Q2, 4), v(WV + 4 * q, 4), v(HP + 4 * q, 4), v(Q2, 4) if q else '0'))
    for e in range(16): a('v_fma_mix_f32 %s, %s, s36, %s op_sel:[%d,0,0] op_sel_hi:[1,0,0]' % (v(XD + 16 + e), v(YM + (e >> 1)), v(XD + 16 + e), e & 1))
    pack(HP + 8, XD + 16, 16, 'bf16')
    for q in range(2, 4):
        a('v_mfma_f32_16x16x32_bf16 %s, %s, %s, %s' % (v(Q1, 4), v(HP + 4 * q, 4), v(HP + 4 * q, 4), v(Q1, 4)))
        a('v_mfma_f32_16x16x32_bf16 %s, %s, %s, %s' % (v(Q2, 4), v(WV + 4 * q, 4), v(HP + 4 * q, 4), v(Q2, 4)))
    a('v_cndmask_b32 v9, %s, %s, s[32:33]' % (v(Q1), v(Q1 + 1))); a('v_cndmask_b32 v10, %s, %s, s[32:33]' % (v(Q1 + 2), v(Q1 + 3)))
    a('ds_write_b64 v2, %s' % v(Q2, 2))
    a('v_cndmask_b32 v9, v9, v10, s[34:35]')
    a('ds_write_b32 v3, v9 offset:8')
    a('s_waitcnt lgkmcnt(0)'); a('s_barrier')
    P = 144
    for q in range(4): a('ds_read_b128 %s, v6 offset:%d' % (v(P + 4 * q, 4), 256 * q))
    a('s_waitcnt lgkmcnt(2)')
    for h in range(2): a('v_pk_add_f32 %s, %s, %s' % (v(P + 2 * h, 2), v(P + 2 * h, 2), v(P + 4 + 2 * h, 2)))
    a('s_waitcnt lgkmcnt(0)')
    for h in range(2): a('v_pk_add_f32 %s, %s, %s' % (v(P + 8 + 2 * h, 2), v(P + 8 + 2 * h, 2), v(P + 12 + 2 * h, 2)))
    for h in range(2): a('v_pk_add_f32 %s, %s, %s' % (v(P + 2 * h, 2), v(P + 2 * h, 2), v(P + 8 + 2 * h, 2)))
    for k in range(4): a('v_mov_b32 %s, %s' % (v(P + 4 + k), v(P + k)))
    for k in range(4): a('v_permlane32_swap_b32 %s, %s' % (v(P + k), v(P + 4 + k)))
    for h in range(2): a('v_pk_add_f32 %s, %s, %s' % (v(P + 2 * h, 2), v(P + 2 * h, 2), v(P + 4 + 2 * h, 2)))
    KR = 152
    a('v_mul_f32 %s, %s, %s' % (v(P + 1), fh(-1 / 1024), v(P + 1)))
    a('v_mul_f32 %s, %s, %s' % (v(P + 2), fh(1 / 1024), v(P + 2)))
    a('v_fma_f32 %s, -%s, %s, %s' % (v(P + 2), v(P + 1), v(P + 1), v(P + 2)))
    a('v_cvt_pk_bf16_f32 %s, 0, %s' % (v(KR + 1), v(P + 1)))
    rbf(a, P + 2); a('v_add_f32 %s, %s, %s' % (v(P + 2), fh(1e-5), v(P + 2))); rbf(a, P + 2)
    a('v_sqrt_f32 %s, %s' % (v(P + 2), v(P + 2)))
    a('v_fmac_f32 %s, %s, %s' % (v(P), v(KR + 1), v(P + 3)))
    rbf(a, P + 2); a('v_rcp_f32 %s, %s' % (v(KR + 2), v(P + 2)))
    a('v_mov_b32 %s, s40' % v(KR + 3))
    a('v_mul_f32 %s, %s, %s' % (v(P), v(P), v(KR + 2))); rbf(a, P)
    a('v_ashrrev_i32 %s, 31, %s' % (v(P + 1), v(P))); a('v_or_b32 %s, 0x80000000, %s' % (v(P + 1), v(P + 1)))
    a('v_bitop3_b32 %s, %s, %s, %s bitop3:0x28' % (v(KR), v(P), v(P + 1), v(242)))
    a('v_or_b32 %s, %s, v15' % (v(KR), v(KR)))
    a('v_max_u32_dpp %s, %s, %s row_ror:1 %s' % (v(P), v(KR), v(KR), DPPF))
    for k in (2, 4, 8): a('v_max_u32_dpp %s, %s, %s row_ror:%d %s' % (v(P), v(P), v(P), k, DPPF))
    a('v_cmp_eq_u32 vcc, %s, %s' % (v(P), v(KR)))
    a('s_mov_b64 exec, vcc')
    a('buffer_store_dwordx4 %s, v7, s[4:7], s26 offen sc1' % v(KR, 4))
    for q in range(4): a('buffer_store_dwordx4 %s, v8, s[4:7], s27 offen offset:%d sc1' % (v(HP + 4 * q, 4), 64 * q))
    a('s_mov_b64 exec, -1')
    st()
    a('s_ff1_i32_b64 s37, vcc')
    a('v_add_f32 %s, 1.0, %s' % (v(P), v(KR + 2))); a('v_mul_f32 %s, %s, %s' % (v(P + 2), v(KR + 1), v(KR + 2)))
    for k in range(16): a('v_pk_fma_f32 %s, %s, %s, %s op_sel_hi:[1,0,0]' % (v(XD + 2 * k, 2), v(XD + 2 * k, 2), v(P, 2), v(P + 2, 2)))
    OP = 104
    pack(OP, XD, 32, 'bf16')
    a('ds_write_b128 %s, %s' % (v(vXR), v(OP, 4))); a('ds_write_b128 %s, %s offset:16' % (v(vXR), v(OP + 4, 4)))
    a('s_waitcnt lgkmcnt(0)'); a('s_barrier')
    a('ds_write_b16 %s, %s' % (v(vE0), v(OP))); a('ds_write_b16 %s, %s' % (v(vM0m), v(OP + 8)))
    for e in range(1, 16): a('ds_write_b16%s %s, %s offset:%d' % ('_d16_hi' if e & 1 else '', v(vXM), v(OP + 8 + (e >> 1)), 2 * (15 - e)))
    a('s_lshl_b32 s32, s3, 1'); a('s_add_u32 s33, s32, 1')
    a('v_readlane_b32 s34, %s, s32' % v(vT)); a('v_readlane_b32 s35, %s, s33' % v(vT))
    a('s_mul_i32 s38, s3, %d' % (2 * RS)); a('v_add_u32 v9, s38, %s' % v(vL16))
    a('s_lshl_b32 s34, s34, 11'); a('s_lshl_b32 s35, s35, 11')
    a('s_waitcnt lgkmcnt(0)'); a('s_barrier')
    for q in range(4): a('ds_read_b128 %s, v9 offset:%d' % (v(OP + 4 * q, 4), RS * (q >> 1) + 1024 * (q & 1)))
    OUTF = '' if '--outplain' in OPT else ' nt'
    a('s_waitcnt lgkmcnt(0)')
    for r in range(2):
        a('s_cmp_eq_u32 s37, %s' % s(32 + r)); a('s_cbranch_scc1 fz_sk%d' % r)
        for q in range(2): a('buffer_store_dwordx4 %s, %s, s[12:15], %s offen offset:%d%s' % (v(OP + 8 * r + 4 * q, 4), v(vL16), s(34 + r), 1024 * q, OUTF))
        a.lines.append('fz_sk%d:' % r)
    a('s_lshr_b32 s38, s37, 1'); a('s_cmp_lg_u32 s38, s3'); a('s_cbranch_scc1 fz_xend')
    st()
    a('s_and_b32 s38, s20, 31'); a('s_mul_i32 s38, s38, %d' % KS); a('s_add_u32 s38, s38, 0x%x' % KOFF)
    a('s_lshr_b32 s52, s20, 4'); a('s_lshl_b32 s52, s52, 7'); a('s_and_b32 s53, s20, 3'); a('s_lshl_b32 s53, s53, 5'); a('s_add_u32 s52, s52, s53')
    a('s_bfe_u32 s53, s20, 0x20002'); a('s_lshl_b32 s53, s53, 2'); a('s_add_u32 s52, s52, s53')
    a('v_and_b32 v2, 1, v1'); a('v_lshl_add_u32 v2, v2, 4, v5'); a('v_add_u32 v2, s52, v2')
    a('v_and_b32 v3, 31, v2'); a('v_lshrrev_b32 v6, 5, v2')
    a('v_cmp_gt_u32 vcc, 16, v6')
    a('v_cmp_lt_u32 s[52:53], 16, v3'); a('v_cmp_eq_u32 s[54:55], 0, v3'); a('s_and_b64 s[54:55], s[54:55], vcc'); a('s_or_b64 s[52:53], s[52:53], s[54:55]')
    a('v_cmp_eq_u32 s[54:55], 16, v3'); a('s_andn2_b64 s[54:55], s[54:55], vcc'); a('s_or_b64 s[52:53], s[52:53], s[54:55]')
    a('v_sub_u32 v7, 1024, v2'); a('v_cndmask_b32 v7, v2, v7, s[52:53]')
    a('v_mov_b32 v8, 512'); a('v_cmp_eq_u32 vcc, 1024, v7'); a('v_cndmask_b32 v7, v7, v8, vcc')
    a('v_lshrrev_b32 v8, 5, v7'); a('v_and_b32 v7, 15, v7')
    a('v_lshrrev_b32 v9, 2, v8'); a('v_lshlrev_b32 v9, 8, v9'); a('v_and_b32 v8, 3, v8'); a('v_lshl_add_u32 v9, v8, 4, v9')
    a('v_lshrrev_b32 v8, 3, v7'); a('v_lshl_add_u32 v9, v8, 6, v9'); a('v_and_b32 v7, 7, v7'); a('v_lshl_add_u32 v9, v7, 1, v9')
    a('v_cndmask_b32 v7, 0, 1, s[52:53]'); a('v_lshl_add_u32 v9, v7, 7, v9')
    a('v_lshlrev_b32 v2, 1, v2')
    a('v_lshrrev_b32 v3, 1, v1'); a('v_mul_u32_u24 v3, %d, v3' % PPS); a('v_and_b32 v6, 1, v1'); a('v_lshl_add_u32 v3, v6, 4, v3')
    a('v_mov_b32 v6, 0x7fffffff'); a('v_cmp_gt_u32 vcc, 32, v1'); a('v_cndmask_b32 v6, v6, v3, vcc')
    for k in range(4): a('v_mov_b32 v7, %s' % s(48 + k)); a('v_cndmask_b32 %s, 0, v7, vcc' % v(16 + k))
    a('s_lshl_b32 s52, s20, 5'); a('s_add_u32 s52, s52, 0x%x' % POFF)
    for u in range(1, 4): a('s_add_u32 %s, s52, %d' % (s(52 + u), 32 * u * PPS))
    K = 24
    a('s_mov_b32 s58, 0')
    a.label('fz_k2')
    a('buffer_load_dwordx4 %s, %s, s[4:7], s38 offen sc1' % (v(K, 4), v(vL16))); a('buffer_load_dwordx4 %s, %s, s[4:7], s38 offen offset:1024 sc1' % (v(K + 4, 4), v(vL16)))
    a('s_waitcnt vmcnt(0)')
    keys_argmax(K, None, 'fz_k2')
    a('v_cmp_eq_u32 vcc, s36, %s' % v(K)); a('v_cmp_eq_u32 s[56:57], s36, %s' % v(K + 4))
    a('v_cndmask_b32 %s, %s, %s, s[56:57]' % (v(K + 1), v(K + 1), v(K + 5))); a('v_cndmask_b32 %s, %s, %s, s[56:57]' % (v(K + 2), v(K + 2), v(K + 6)))
    a('s_cmp_lg_u64 vcc, 0'); a('s_cselect_b32 s39, 0, 64'); a('s_or_b64 vcc, vcc, s[56:57]'); a('s_ff1_i32_b64 s41, vcc')
    a('v_readlane_b32 s42, %s, s41' % v(K + 1)); a('v_readlane_b32 s43, %s, s41' % v(K + 2))
    a('s_add_u32 s39, s39, s41')
    a('s_cmp_eq_u32 s39, s20'); a('s_cbranch_scc1 fz_win')
    a('s_bitcmp1_b32 s37, 0'); a('s_cbranch_scc1 fz_d1')
    for q in range(2): a('buffer_store_dwordx4 %s, %s, s[12:15], s34 offen offset:%d%s' % (v(OP + 4 * q, 4), v(vL16), 1024 * q, OUTF))
    a('s_branch fz_win')
    a.lines.append('fz_d1:')
    for q in range(2): a('buffer_store_dwordx4 %s, %s, s[12:15], s35 offen offset:%d%s' % (v(OP + 8 + 4 * q, 4), v(vL16), 1024 * q, OUTF))
    a.lines.append('fz_win:')
    a('s_lshl_b32 s39, s39, 11'); a('s_add_u32 s39, s39, 0x%x' % COFF)
    a('s_mov_b32 s58, 0'); a('s_mov_b32 s41, 0xffff0000')
    a.label('fz_c2')
    a('buffer_load_short_d16_hi v10, v9, s[4:7], s39 offen sc1')
    a('s_waitcnt vmcnt(0)')
    a('v_cmp_eq_u32 vcc, s41, v10')
    poll_retry('fz_c2')
    a('v_add_f32 v11, s42, v10'); rbf(a, 11); a('v_mul_f32 v11, s43, v11'); rbf(a, 11)
    a('s_ashr_i32 s39, s36, 31'); a('s_not_b32 s39, s39'); a('s_or_b32 s39, s39, 0x80000000'); a('s_xor_b32 s39, s36, s39'); a('s_and_b32 s39, s39, 0xffff0000')
    a('v_mov_b32 v12, s39'); a('v_mul_f32 v12, %s, v12' % fh(-1.4426950408889634))
    a('v_exp_f32 v12, v12'); a('v_add_f32 v12, 1.0, v12'); a('v_rcp_f32 v12, v12'); rbf(a, 12)
    a('s_and_b32 s39, s36, 0xffff'); a('s_sub_u32 s39, 2047, s39'); a('s_lshl_b32 s39, s39, 11')
    PQ = 40
    a('v_mov_b32 v13, 0xff')
    st()
    a('s_mov_b32 s58, 0'); a('s_and_b32 s41, s20, 63'); a('s_mul_i32 s41, s41, %d' % PPS); a('s_add_u32 s41, s41, s52'); a('v_mov_b32 v7, 0')
    a.label('fz_p5')
    a('buffer_load_dword v8, v7, s[4:7], s41 offen sc1')
    a('s_waitcnt vmcnt(0)')
    a('v_and_b32 v8, 0xff, v8'); a('v_cmp_ne_u32 vcc, s48, v8')
    poll_retry('fz_p5')
    a('s_mov_b32 s58, 0')
    st()
    a.label('fz_h5')
    for u in range(4): a('buffer_load_dwordx4 %s, %s, s[4:7], %s offen sc1' % (v(PQ + 4 * u, 4), 'v6' if u == 3 else 'v3', s(52 + u)))
    for u in range(4):
        a('s_waitcnt vmcnt(%d)' % (3 - u))
        for k in range(4): a('v_xor_b32 %s, %s, %s' % (v(PQ + 4 * u + k), v(16 + k) if u == 3 else s(48 + k), v(PQ + 4 * u + k)))
        a('v_or3_b32 v8, %s, %s, %s' % (v(PQ + 4 * u), v(PQ + 4 * u + 1), 'v8' if u else '0'))
        a('v_or3_b32 v8, %s, %s, v8' % (v(PQ + 4 * u + 2), v(PQ + 4 * u + 3)))
    a('v_and_b32 v8, 0xff, v8'); a('v_cmp_ne_u32 vcc, 0, v8')
    poll_retry('fz_h5')
    for (d, e) in ((0, 4), (8, 12), (0, 8)):
        for h in range(2): a('v_pk_add_f32 %s, %s, %s' % (v(PQ + d + 2 * h, 2), v(PQ + d + 2 * h, 2), v(PQ + e + 2 * h, 2)))
    for i in range(2): a('v_permlane32_swap_b32 %s, %s' % (v(PQ + i), v(PQ + 2 + i)))
    a('v_pk_add_f32 %s, %s, %s' % (v(PQ, 2), v(PQ, 2), v(PQ + 2, 2)))
    a('v_permlane16_swap_b32 %s, %s' % (v(PQ), v(PQ + 1)))
    a('v_add_f32 %s, %s, %s' % (v(PQ), v(PQ), v(PQ + 1)))
    a('v_add_f32_dpp %s, %s, %s quad_perm:[2,3,0,1] %s' % (v(PQ), v(PQ), v(PQ), DPPF))
    a('v_add_f32_dpp %s, %s, %s row_ror:4 %s' % (v(PQ), v(PQ), v(PQ), DPPF))
    a('v_add_f32_dpp %s, %s, %s row_ror:8 %s' % (v(PQ), v(PQ), v(PQ), DPPF))
    rbf(a, PQ); a('v_mul_f32 %s, %s, v12' % (v(PQ), v(PQ))); rbf(a, PQ)
    a('v_add_f32 %s, %s, v11' % (v(PQ), v(PQ))); rbf(a, PQ)
    a('v_add_f32 %s, %s, v10' % (v(PQ), v(PQ))); rbf(a, PQ)
    a('s_mov_b32 exec_lo, 0x00030003'); a('s_mov_b32 exec_hi, 0x00030003')
    a('buffer_store_short_d16_hi %s, v2, s[12:15], s39 offen' % v(PQ))
    a('s_cmp_lg_u32 s20, 0'); a('s_cbranch_scc1 fz_xend')
    a('s_mov_b64 exec, 1'); a('v_mov_b32 v8, s40')
    a('buffer_store_dword v8, v7, s[4:7], 0 offen')
    a.lines.append('fz_xend:')
    st(); nfft = st.n
    st.dump(n=13, sv=250, wave='s3')
    a.lines.append('fz_end:')
    a('s_endpgm')
    a.lines.append('fz_spec:')
    a('s_cmp_eq_u32 s3, 0'); a('s_cselect_b32 s30, 16, s30')
    a('s_cmp_eq_u32 s3, 2'); a('s_cselect_b32 s31, 17, s31'); a('s_cselect_b32 s30, 18, s30')
    a('s_cmp_eq_u32 s3, 3'); a('s_cselect_b32 s31, 19, s31'); a('s_cselect_b32 s30, 20, s30')
    a('s_branch fz_specback')
    a.lines.append('fz_spec2:')
    for wv, lst in ((0, [(1024, 15)]), (2, [(256, 4), (1792, 11)]), (3, [(768, 6), (1280, 9)])):
        a('s_cmp_lg_u32 s3, %d' % wv); a('s_cbranch_scc1 fz_s2n%d' % wv)
        for row, sl in lst:
            a('s_mov_b32 m0, %d' % (sl * RS)); a('s_mov_b32 s32, %d' % (row * 2048))
            a('buffer_load_dwordx4 %s, s[8:11], s32 offen lds' % v(vL16)); a('buffer_load_dwordx4 %s, s[8:11], s32 offen offset:1024 lds' % v(vL16))
        a.lines.append('fz_s2n%d:' % wv)
    a('s_branch fz_spec2back')
    a.lines.append('fz_spec3:')
    a('v_xor_b32 v11, 1, v4'); a('v_cndmask_b32 v9, v9, v11, s[34:35]')
    a('v_and_b32 v11, 1, v4'); a('v_cndmask_b32 v11, 0, v11, s[34:35]'); a('v_sub_u32 v10, v10, v11')
    a('s_cmp_lg_u32 s22, 0'); a('s_cbranch_scc1 fz_spec3back')
    for i, tt, pp, po in ((15, 1024, 124, 4), (13, 1536, 124, 6), (4, 256, 127, 8), (11, 1792, 127, 14), (6, 768, 127, 10), (9, 1280, 127, 12)):
        a('v_cmp_eq_u32 vcc, %d, v4' % i); a('v_mov_b32 v11, %d' % tt); a('v_mov_b32 v12, %d' % pp)
        a('v_cndmask_b32 %s, %s, v11, vcc' % (v(vT), v(vT))); a('v_cndmask_b32 v10, v10, v12, vcc'); a('v_cndmask_b32 v9, v9, %d, vcc' % po)
    a('s_mov_b32 s38, 0x80018001'); a('s_mov_b32 s39, 0x80018001')
    a.flush(); a('s_branch fz_spec3back')
    a.label('ffn')
    st.n = 1
    WF, WD, BH, ACC, K = 32, 96, 128, 192, 200
    a('s_load_dwordx2 s[8:9], s[0:1], 56'); a('s_load_dwordx2 s[12:13], s[0:1], 64'); a('s_load_dwordx2 s[16:17], s[0:1], 72')
    a('s_and_b32 s21, s20, 7'); a('s_mul_i32 s21, s21, 14'); a('s_lshr_b32 s20, s20, 3'); a('s_add_u32 s20, s20, s21')
    a('s_and_b32 s21, s20, 1'); a('s_lshr_b32 s22, s20, 1')
    a('v_lshrrev_b32 v2, 3, v1'); a('v_and_b32 v3, 7, v1'); a('v_and_b32 v4, 2, v2'); a('v_xor_b32 v3, v4, v3')
    a('v_mul_u32_u24 v4, 7168, v2'); a('v_lshl_add_u32 v4, v3, 4, v4'); a('v_xor_b32 v5, 64, v4')
    a('s_lshl_b32 s23, s21, 9'); a('s_lshl_b32 s24, s3, 6'); a('s_add_u32 s23, s23, s24'); a('s_mul_i32 s23, s23, 7168'); a('s_lshl_b32 s24, s22, 7'); a('s_add_u32 s23, s23, s24')
    a('s_lshl_b32 s24, s3, 13')
    a('v_lshrrev_b32 v2, 4, v1'); a('v_and_b32 v3, 15, v1'); a('v_lshlrev_b32 v6, 1, v2'); a('v_xor_b32 v6, v6, v3'); a('v_lshlrev_b32 v6, 4, v6'); a('v_lshl_add_u32 v6, v2, 11, v6'); a('v_xor_b32 v7, 128, v6')
    a('s_lshl_b32 s25, s20, 16'); a('s_lshl_b32 s26, s3, 8'); a('s_add_u32 s25, s25, s26')
    a('s_mul_i32 s26, s3, 3072'); a('s_add_u32 s26, s26, %d' % SP); a('s_mul_i32 s27, s3, 5120')
    srd(8, 0x700000); srd(12, 0x700000); srd(16, 0x700000)
    SNT = ' nt' if '--snt' in OPT else ''
    a('s_waitcnt lgkmcnt(0)')
    st()
    for m, sr in ((0, 8), (1, 12)):
        for p in range(8):
            a('s_add_u32 s28, s24, %d' % (65536 * m + 1024 * p)); a('s_mov_b32 m0, s28'); a('s_add_u32 s29, s23, %d' % (p * 8 * 7168))
            a('buffer_load_dwordx4 %s, %s, s29 offen%s lds' % ('v5' if p & 1 else 'v4', s(sr, 4), SNT))
    def wd(p):
        a('s_add_u32 s28, %s, %d' % ('s26' if p < 3 else 's27', 1024 * (p if p < 3 else p - 3))); a('s_mov_b32 m0, s28'); a('s_add_u32 s29, s25, %d' % (p * 8192))
        a('buffer_load_dwordx4 %s, s[16:19], s29 offen%s lds' % ('v7' if p & 2 else 'v6', SNT))
    for p in range(3): wd(p)
    a('s_load_dword s40, s[4:5], 0')
    a('v_bfe_u32 v9, v1, 2, 2'); a('v_lshl_add_u32 v8, v2, 3, v9'); a('v_lshlrev_b32 v8, 7, v8')
    a('s_and_b32 s28, s3, 3'); a('s_lshl_b32 s28, s28, 1'); a('v_bfe_u32 v10, v1, 1, 1'); a('v_add_u32 v10, s28, v10')
    a('v_and_b32 v11, 2, v9'); a('v_xor_b32 v10, v11, v10'); a('v_and_b32 v11, 1, v2'); a('v_lshlrev_b32 v11, 2, v11'); a('v_xor_b32 v10, v11, v10')
    a('v_lshl_add_u32 v8, v10, 4, v8'); a('v_and_b32 v10, 1, v1'); a('v_lshl_add_u32 v8, v10, 3, v8')
    a('s_lshr_b32 s28, s3, 2'); a('s_lshl_b32 s28, s28, 16'); a('v_add_u32 v8, s28, v8')
    a('v_and_b32 v10, 1, v2'); a('v_lshl_add_u32 v10, v10, 2, v9'); a('v_lshlrev_b32 v10, 5, v10'); a('v_lshl_add_u32 v10, v9, 8, v10')
    a('v_and_b32 v11, 3, v1'); a('v_lshl_add_u32 v10, v11, 3, v10')
    a('s_sub_u32 s28, s27, 3072')
    for hh in range(2):
        a('v_lshl_add_u32 v11, v2, 1, %d' % hh); a('v_cmp_gt_u32 vcc, 3, v11'); a('v_mov_b32 v14, s28'); a('v_mov_b32 v15, s26'); a('v_cndmask_b32 v14, v14, v15, vcc')
        a('v_lshl_add_u32 v14, v11, 10, v14'); a('v_add_u32 %s, v14, v10' % v(12 + hh))
    a('v_bfe_u32 v9, v0, 2, 2'); a('v_lshrrev_b32 v10, 6, v0'); a('v_lshl_add_u32 v9, v10, 2, v9')
    a('v_bfe_u32 v10, v0, 4, 1'); a('v_and_b32 v11, 3, v0'); a('v_lshlrev_b32 v11, 1, v11'); a('v_lshl_add_u32 v10, v10, 3, v11')
    a('v_lshl_add_u32 v11, v9, 5, v10'); a('v_add_u32 v17, 1, v11')
    a('v_cmp_eq_u32 vcc, 0, v10'); a('v_cmp_gt_u32 s[28:29], 16, v9'); a('s_and_b64 vcc, vcc, s[28:29]'); a('v_cndmask_b32 v14, 0, 16, vcc'); a('v_add_u32 v16, v11, v14')
    a('v_bfe_u32 v10, v0, 5, 1'); a('v_cmp_eq_u32 s[28:29], 1, v10')
    a('v_sub_u32 v14, 1024, v16'); a('v_cmp_eq_u32 vcc, 512, v16'); a('v_cndmask_b32 v14, v14, 0, vcc'); a('v_cndmask_b32 v16, v16, v14, s[28:29]')
    a('v_sub_u32 v14, 1024, v17'); a('v_cndmask_b32 v17, v17, v14, s[28:29]')
    for r in (16, 17): a('v_lshlrev_b32 %s, 1, %s' % (v(r), v(r))); a('v_add_u32 %s, %d, %s' % (v(r), HN, v(r)))
    a('v_lshlrev_b32 v18, 2, v0'); a('v_add_u32 v18, 0x%x, v18' % COFF)
    a('s_lshl_b32 s28, s21, 10'); a('s_add_u32 s28, s28, %d' % HN); a('v_lshlrev_b32 v19, 4, v2'); a('v_add_u32 v10, %d, v19' % ACT); a('v_add_u32 v19, s28, v19')
    for T_ in range(8): a('v_cmp_eq_u32 vcc, %d, v3' % T_); a('v_cndmask_b32 v11, 64, 0, vcc'); a('v_add_u32 %s, v10, v11' % v(20 + T_))
    a('v_mov_b32 v10, %d' % (ACT + 64)); a('v_lshl_add_u32 v10, v3, 2, v10'); a('v_mov_b32 v11, 0'); a('ds_write_b32 v10, v11')
    a('v_mov_b32 v28, %d' % MSG)
    a('v_lshlrev_b32 v29, 4, v1')
    a('s_lshr_b32 s28, s3, 2'); a('s_lshl_b32 s28, s28, 1'); a('s_and_b32 s29, s3, 1'); a('s_add_u32 s28, s28, s29'); a('s_lshl_b32 s28, s28, 6')
    a('v_lshlrev_b32 v30, 4, v2'); a('v_add_u32 v30, s28, v30'); a('v_add_u32 v31, %d, v30' % OWN)
    a('s_xor_b32 s30, s20, 1'); a('s_lshl_b32 s30, s30, 8'); a('s_add_u32 s30, s30, 0x%x' % XOFF)
    a('s_lshl_b32 s31, s20, 8'); a('s_add_u32 s31, s31, 0x%x' % XOFF)
    a('s_bfe_u32 s32, s3, 0x10001')
    a('s_mul_i32 s33, s20, %d' % PPS); a('s_lshl_b32 s28, s3, 9'); a('s_add_u32 s33, s33, s28'); a('s_add_u32 s33, s33, 0x%x' % POFF)
    a('v_lshlrev_b32 v10, 7, v2'); a('v_lshl_add_u32 %s, v3, 4, v10' % v(196))
    a('v_mov_b32 %s, 0xffffff00' % v(197))
    a('s_waitcnt lgkmcnt(0)')
    tags()
    a('s_and_b32 s34, s20, 31'); a('s_mul_i32 s34, s34, %d' % KS); a('s_add_u32 s34, s34, 0x%x' % KOFF)
    a('s_waitcnt vmcnt(11)'); a('s_barrier')
    st()
    def trw():
        for k in range(16):
            for hh in range(2): a('ds_read_b64_tr_b16 %s, v8 offset:%d' % (v(WF + 4 * k + 2 * hh, 2), 4096 * k + 512 * hh))
            if k % 4 == 3: a('s_waitcnt lgkmcnt(0)')
    a('s_cmp_gt_u32 s3, 3'); a('s_cbranch_scc1 ffn_a')
    trw()
    a.label('ffn_a')
    a('s_barrier')
    for p in range(3, 8): wd(p)
    a('s_waitcnt vmcnt(8)'); a('s_barrier')
    st()
    a('s_cmp_lt_u32 s3, 4'); a('s_cbranch_scc1 ffn_b')
    trw()
    a.label('ffn_b')
    a('s_waitcnt vmcnt(0)')
    st()
    for T_ in range(8):
        a('v_xor_b32 v10, %d, v12' % (32 * T_)); a('v_xor_b32 v11, %d, v13' % (32 * T_))
        a('ds_read_b64_tr_b16 %s, v10' % v(WD + 4 * T_, 2)); a('ds_read_b64_tr_b16 %s, v11' % v(WD + 4 * T_ + 2, 2))
    a('s_waitcnt lgkmcnt(0)')
    a('s_cmp_lg_u32 s3, 0'); a('s_cbranch_scc1 ffn_w3')
    a('s_lshl_b32 s28, s20, 4'); a('s_add_u32 s28, s28, s34'); a('v_mov_b32 v10, 12')
    a.label('ffn_p3')
    a('buffer_load_dword v11, v10, s[4:7], s28 offen sc1')
    a('s_waitcnt vmcnt(0)')
    a('v_cmp_ne_u32 vcc, s40, v11')
    poll_retry('ffn_p3')
    a('s_mov_b32 s58, 0')
    st()
    a.label('ffn_k3')
    a('buffer_load_dwordx4 %s, v29, s[4:7], s34 offen sc1' % v(K, 4)); a('buffer_load_dwordx4 %s, v29, s[4:7], s34 offen offset:1024 sc1' % v(K + 4, 4))
    a('s_waitcnt vmcnt(0)')
    keys_argmax(K, None, 'ffn_k3')
    a('v_lshlrev_b32 %s, 11, v1' % v(K + 3)); a('v_add_u32 %s, %d, %s' % (v(K + 7), 64 << 11, v(K + 3)))
    a('v_cmp_eq_u32 vcc, s36, %s' % v(K)); a('v_cmp_eq_u32 s[28:29], s36, %s' % v(K + 4))
    for k in range(1, 4): a('v_cndmask_b32 %s, %s, %s, s[28:29]' % (v(K + k), v(K + k), v(K + 4 + k)))
    a('s_or_b64 exec, vcc, s[28:29]')
    a('ds_write_b128 v28, %s' % v(K, 4))
    a('s_mov_b64 exec, -1')
    a('s_waitcnt lgkmcnt(0)')
    a.label('ffn_w3')
    a('s_barrier')
    st.n = 6; st()
    a('ds_read_b128 %s, v28' % v(K, 4))
    a('s_mov_b32 s58, 0'); a('s_mov_b32 s28, 0xffff0000')
    a('s_waitcnt lgkmcnt(0)')
    a('v_add_u32 v10, %s, v18' % v(K + 3))
    a.label('ffn_c3')
    a('buffer_load_dword v11, v10, s[4:7], 0 offen sc1')
    a('s_waitcnt vmcnt(0)')
    a('v_lshlrev_b32 v14, 16, v11'); a('v_and_b32 v15, s28, v11')
    a('v_cmp_eq_u32 vcc, -1, v11')
    poll_retry('ffn_c3')
    for r in (14, 15): a('v_add_f32 %s, %s, %s' % (v(r), v(r), v(K + 1)))
    for r in (14, 15): rbf(a, r)
    for r in (14, 15): a('v_mul_f32 %s, %s, %s' % (v(r), v(r), v(K + 2)))
    a('v_cvt_pk_bf16_f32 v14, v14, v15')
    a('ds_write_b16 v16, v14'); a('ds_write_b16_d16_hi v17, v14')
    a('s_waitcnt lgkmcnt(0)'); a('s_barrier')
    st()
    for k in range(16):
        a('ds_read_b128 %s, v19 offset:%d' % (v(BH + 4 * k, 4), 64 * k))
        if k >= 6:
            kk = k - 6
            a('s_waitcnt lgkmcnt(6)')
            a('v_mfma_f32_16x16x32_bf16 %s, %s, %s, %s' % (v(ACC, 4), v(WF + 4 * kk, 4), v(BH + 4 * kk, 4), v(ACC, 4) if kk else '0'))
    for kk in range(10, 16):
        a('s_waitcnt lgkmcnt(%d)' % (15 - kk))
        a('v_mfma_f32_16x16x32_bf16 %s, %s, %s, %s' % (v(ACC, 4), v(WF + 4 * kk, 4), v(BH + 4 * kk, 4), v(ACC, 4)))
    a('s_mov_b32 exec_lo, 0x00010001'); a('s_mov_b32 exec_hi, 0x00010001')
    a('s_cmp_eq_u32 s32, s21'); a('s_cbranch_scc1 ffn_own')
    for k in range(4): a('v_and_or_b32 %s, %s, %s, %s' % (v(ACC + k), v(ACC + k), v(197), s(48 + k)))
    a('buffer_store_dwordx4 %s, v30, s[4:7], s30 offen sc1' % v(ACC, 4))
    a('s_branch ffn_x')
    a.label('ffn_own')
    a('ds_write_b128 v31, %s' % v(ACC, 4))
    a('s_waitcnt lgkmcnt(0)')
    a.lines.append('ffn_x:')
    a('s_mov_b64 exec, -1')
    a('s_barrier')
    st()
    a('s_lshl_b32 s28, s21, 1'); a('s_cmp_lg_u32 s3, s28'); a('s_cbranch_scc1 ffn_w4')
    a('v_lshlrev_b32 v10, 2, v1'); a('v_add_u32 v11, %d, v10' % OWN); a('ds_read_b32 v15, v11')
    a('v_and_b32 v11, 3, v1'); a('v_lshlrev_b32 v11, 3, v11')
    a('v_mov_b32 v9, s40'); a('v_lshrrev_b32 v11, v11, v9'); a('v_and_b32 v11, 0xff, v11')
    a('v_lshrrev_b32 v9, 1, v10'); a('v_add_u32 v9, %d, v9' % ACT)
    a('s_mov_b32 s58, 0')
    a.label('ffn_h4')
    a('buffer_load_dword v14, v10, s[4:7], s31 offen sc1')
    a('s_waitcnt vmcnt(0) lgkmcnt(0)')
    a('v_xor_b32 v14, v11, v14'); a('v_and_b32 %s, 0xff, v14' % v(K)); a('v_add_f32 v14, v14, v15')
    a('v_cmp_ne_u32 vcc, 0, %s' % v(K))
    poll_retry('ffn_h4')
    rbf(a, 14)
    a('v_mul_f32 v15, %s, v14' % fh(-1.4426950408889634)); a('v_mov_b32 %s, v14' % v(K))
    a('v_exp_f32 v15, v15')
    a('v_add_f32 v15, 1.0, v15'); a('v_permlane32_swap_b32 %s, %s' % (v(K), v(K + 1))); a('v_rcp_f32 v15, v15')
    a('v_mul_f32 v14, v14, v15'); rbf(a, 14)
    a('s_mov_b32 exec_hi, 0')
    a('v_mul_f32 v14, v14, %s' % v(K + 1)); rbf(a, 14)
    a('ds_write_b16_d16_hi v9, v14')
    a('s_mov_b64 exec, -1')
    a('s_waitcnt lgkmcnt(0)')
    a.label('ffn_w4')
    a('s_barrier')
    st()
    for T_ in range(8): a('ds_read_b128 %s, %s' % (v(BH + 4 * T_, 4), v(20 + T_)))
    for T_ in range(8):
        a('s_waitcnt lgkmcnt(%d)' % (7 - T_))
        a('v_mfma_f32_16x16x32_bf16 %s, %s, %s, %s' % (v(ACC, 4), v(WD + 4 * T_, 4), v(BH + 4 * T_, 4), v(ACC, 4) if T_ else '0'))
    a('s_mov_b32 exec_lo, 0x00ff00ff'); a('s_mov_b32 exec_hi, 0x00ff00ff')
    for k in range(4): a('v_and_or_b32 %s, %s, %s, %s' % (v(ACC + k), v(ACC + k), v(197), s(48 + k)))
    a('buffer_store_dwordx4 %s, %s, s[4:7], s33 offen sc1' % (v(ACC, 4), v(196)))
    st()
    st.dump(sv=250, wave='s3')
    a('s_endpgm')
    emit_stubs()

def main(path):
    ref = open('/code/%s.s.ref' % NAME).read().splitlines()
    for l in ref:
        if l.startswith('; Override'): break
        a.raw(l)
    a.raw('; @launch kernel=fz_kernel grid=(256,1,1) block=(512,1,1) lds=163840')
    if STAMPS: a.raw('; @groups fft=0-127,ffn=128-239')
    a.raw('.amdgcn_target "amdgcn-amd-amdhsa--gfx950"'); a.raw('.text')
    gen()
    a.raw('.section .rodata,"a"')
    a.raw('\n'.join(['.p2align 6', '.amdhsa_kernel fz_kernel', '  .amdhsa_next_free_vgpr 256', '  .amdhsa_next_free_sgpr 102',
        '  .amdhsa_accum_offset 256', '  .amdhsa_group_segment_fixed_size 0', '  .amdhsa_kernarg_size 104', '  .amdhsa_user_sgpr_count 2',
        '  .amdhsa_user_sgpr_kernarg_segment_ptr 1', '  .amdhsa_system_sgpr_workgroup_id_x 1', '.end_amdhsa_kernel', '']))
    open(path, 'w').write(a.text())
    print('wrote', path, 'lines', len(a.lines), 'nops', a.nops)
if __name__ == '__main__':
    ps = [x for x in sys.argv[1:] if x.endswith('.s')]
    main(ps[0] if ps else '/code/%s.s' % NAME)
```

```python
import sys, struct
import os; sys.path.insert(0, os.path.dirname(os.path.dirname(os.path.abspath(__file__))))
from asmlib import Asm
def v(i, n=1): return 'v%d' % i if n == 1 else 'v[%d:%d]' % (i, i + n - 1)
def s(i, n=1): return 's%d' % i if n == 1 else 's[%d:%d]' % (i, i + n - 1)
def fh(x): return '0x%08x' % struct.unpack('<I', struct.pack('<f', x))[0]
class St:
    def __init__(self, a, on=True): self.a = a; self.n = 0; self.on = on
    def __call__(self):
        if not self.on: return
        self.a('s_memrealtime s[%d:%d]' % (70 + 2 * self.n, 71 + 2 * self.n)); self.n += 1
    def raw(self, sreg):
        if not self.on: return
        self.a('s_mov_b32 s%d, %s' % (70 + 2 * self.n, sreg)); self.n += 1
    def dump(self, n=None, sv=2, wg='s2', wave='s16'):
        if not self.on: return
        a = self.a; n = self.n if n is None else n
        a('s_load_dwordx2 s[8:9], s[0:1], 96')
        a('s_waitcnt vmcnt(0) lgkmcnt(0)') if getattr(self, 'vw', False) else a('s_waitcnt lgkmcnt(0)')
        a('s_add_u32 s8, s8, 0x8000000'); a('s_addc_u32 s9, s9, 0'); a('s_mov_b32 s10, 0x100000'); a('s_mov_b32 s11, 0x00020000')
        a('s_lshl_b32 s68, %s, 10' % wg); a('s_lshl_b32 s69, %s, 6' % wave); a('s_add_u32 s68, s68, s69')
        a('s_mov_b64 exec, 1'); a('v_mov_b32 %s, 0' % v(sv))
        for i in range(n):
            a('v_mov_b32 %s, s%d' % (v(sv + 1), 70 + 2 * i))
            a('buffer_store_dword %s, %s, s[8:11], s68 offen offset:%d' % (v(sv + 1), v(sv), 4 * i))
def wrap(a, name, grid, block, lds, nv, groups='', ns=102):
    hdr = '; @launch kernel=%s grid=(%d,1,1) block=(%d,1,1) lds=%d\n' % (name, grid, block, lds)
    if groups: hdr += '; @groups %s\n' % groups
    hdr += '.amdgcn_target "amdgcn-amd-amdhsa--gfx950"\n.text\n.globl %s\n.p2align 8\n.type %s,@function\n%s:\n' % (name, name, name)
    acc = (nv + 3) // 4 * 4
    d = '\n'.join(['.section .rodata,"a"', '.p2align 6', '.amdhsa_kernel %s' % name, '  .amdhsa_next_free_vgpr %d' % nv,
        '  .amdhsa_next_free_sgpr %d' % ns, '  .amdhsa_accum_offset %d' % acc, '  .amdhsa_group_segment_fixed_size 0',
        '  .amdhsa_kernarg_size 104', '  .amdhsa_user_sgpr_count 2', '  .amdhsa_user_sgpr_kernarg_segment_ptr 1',
        '  .amdhsa_system_sgpr_workgroup_id_x 1', '.end_amdhsa_kernel', ''])
    return hdr + a.text() + d
```

```python
import struct, sys
import os; _d = os.path.dirname(os.path.abspath(__file__)); sys.path.insert(0, _d); sys.path.insert(0, _d + '/mb')
from asmlib import Asm
from mblib import St
NAME = 'sequential_preLN__spectral_fnet__moe_arch_mod__prompt'
def fh(x): return '0x%08x' % struct.unpack('<I', struct.pack('<f', x))[0]
OPT = set(a for a in sys.argv[1:] if a.startswith('--'))
def optv(name, d):
    for o in OPT:
        if o.startswith('--%s=' % name): return int(o.split('=')[1])
    return d
STAMPS = '--stamps' in OPT
def v(i, n=1): return 'v%d' % i if n == 1 else 'v[%d:%d]' % (i, i + n - 1)
def s(i, n=1): return 's%d' % i if n == 1 else 's[%d:%d]' % (i, i + n - 1)
DPPF = 'row_mask:0xf bank_mask:0xf'
X1 = 'quad_perm:[1,0,3,2] ' + DPPF
def rbf(a, r): a('v_cvt_pk_bf16_f32 %s, 0, %s' % (v(r), v(r)))
def kr(r): return (r & 3) + 8 * (r >> 2)
PS = 16384 + 128
WOFF = 0x1000; YOFF = 0x210000; KOFF = 0x420000; KS = 2048 + 128; COFF = 0x448000; XOFF = 0x488000; POFF = 0x4c8000; PPS = 4096 + 128
DOFF = 0x548000; WSB = 0x568000
RS = 2064
CT = 24 * RS; SB = CT + 18432; AB = SB + 18432; CPS = 8192 + 64; PR = AB + 2 * CPS; WR = PR + 2048; TRASH = WR + 2048; ACT = TRASH + 1024; SYNC = CT - 16
GT = 81920; SP = 65536; HN = GT + 65536; MSG = HN + 2048; RAW = MSG + 64
MAXPOLL = 0x10000
SPID = 66; POFS = (124 - SPID) & 127
class Asm2(Asm):
    def __call__(self, text):
        if text.startswith('v_cndmask_b32 '): text = 'v_cndmask_b32_e64 ' + text[14:]
        Asm.__call__(self, text)
a = Asm2()
class St2(St):
    def __call__(self):
        if '--early' in OPT and 5 < self.n < 15: self.n += 1; return
        St.__call__(self)
st = St2(a, STAMPS)
def est(i):
    if '--early' in OPT and STAMPS: a('s_memrealtime s[%d:%d]' % (70 + 2 * i, 71 + 2 * i))
stubs = []
def poll_retry(name, cnt=58):
    a('s_cbranch_vccnz %s_rt' % name)
    a.lines.append('%s_ok:' % name)
    stubs.append((name, cnt))
prog = []
def prog_poll(name, n, issue, check, after=None):
    for u in range(n):
        a.lines.append('%s_c%d:' % (name, u))
        a('s_waitcnt vmcnt(%d)' % (n - 1 - u))
        check(u)
        a('s_cbranch_vccnz %s_r%d' % (name, u))
        a.lines.append('%s_o%d:' % (name, u))
        if after: after(u)
    prog.append((name, n, issue))
def emit_stubs():
    for name, n, issue in prog:
        for u in range(n):
            a.lines.append('%s_r%d:' % (name, u))
            a('s_add_u32 s58, s58, 1'); a('s_cmp_gt_u32 s58, 0x%x' % MAXPOLL); a('s_cbranch_scc1 %s_o%d' % (name, u))
            for k in range(u, n): issue(k)
            a('s_branch %s_c%d' % (name, u))
    for name, cnt in stubs:
        a.lines.append('%s_rt:' % name)
        a('s_add_u32 %s, %s, 1' % (s(cnt), s(cnt))); a('s_cmp_lt_u32 %s, 0x%x' % (s(cnt), MAXPOLL))
        a('s_cbranch_scc1 %s' % name); a('s_branch %s_ok' % name)
def angles(mulreg, basereg, ks, tmp):
    for i, k in enumerate(ks):
        if k == 0: a('v_mov_b32 %s, %s' % (v(tmp + i), v(basereg)))
        else: a('v_fmamk_f32 %s, %s, %s, %s' % (v(tmp + i), v(mulreg), fh(float(k)), v(basereg)))
def trig(fn, t, n):
    for i in range(n): a('v_%s_f32 %s, %s' % (fn, v(t + i), v(t + i)))
def pack(dst, t, n, kind='f16'):
    for p in range(n // 2): a('v_cvt_pk_%s_f32 %s, %s, %s' % (kind, v(dst + p), v(t + 2 * p), v(t + 2 * p + 1)))
def tags():
    a('v_readfirstlane_b32 s40, v250')
    a('s_add_u32 s40, s40, 1'); a('s_and_b32 s38, s40, 3'); a('s_and_b32 s39, s40, 15')
    for i in range(4):
        a('s_bfe_u32 s41, s40, 0x%x' % ((2 << 16) | (2 * i + 2))); a('s_lshl_b32 s41, s41, 16'); a('s_or_b32 %s, s38, s41' % s(44 + i))
        a('s_bfe_u32 s41, s40, 0x%x' % ((4 << 16) | (4 * i + 4))); a('s_lshl_b32 s41, s41, 4'); a('s_or_b32 %s, s39, s41' % s(48 + i))
def srd(d, nbytes): a('s_mov_b32 %s, 0x%x' % (s(d + 2), nbytes)); a('s_mov_b32 %s, 0x00020000' % s(d + 3))
def blk(dst, tmp):
    a('s_add_u32 %s, s2, 4' % s(tmp)); a('s_and_b32 %s, %s, 7' % (s(tmp), s(tmp))); a('s_bfe_u32 %s, s2, 0x10006' % s(tmp + 1))
    a('s_lshl_b32 %s, %s, 1' % (s(dst), s(tmp))); a('s_add_u32 %s, %s, %s' % (s(dst), s(dst), s(tmp + 1)))
    a('s_cmp_lg_u32 %s, 0' % s(tmp + 1)); a('s_cselect_b32 %s, 8, %s' % (s(tmp + 1), s(tmp))); a('s_add_u32 %s, %s, 6' % (s(tmp + 1), s(tmp + 1)))
    a('s_cmp_lt_u32 %s, 6' % s(tmp)); a('s_cselect_b32 %s, %s, %s' % (s(dst), s(dst), s(tmp + 1)))
def keys_argmax(K, gidx, name):
    a('v_xor_b32 %s, s40, %s' % (v(K + 8), v(K + 3))); a('v_xor_b32 %s, s40, %s' % (v(K + 9), v(K + 7)))
    a('v_max_u32 %s, %s, %s' % (v(K + 10), v(K), v(K + 4)))
    a('v_or_b32 %s, %s, %s' % (v(K + 8), v(K + 8), v(K + 9)))
    a('v_cmp_ne_u32 vcc, 0, %s' % v(K + 8))
    poll_retry(name)
    for pat in ['quad_perm:[1,0,3,2] ' + DPPF, 'quad_perm:[2,3,0,1] ' + DPPF, 'row_half_mirror ' + DPPF,
                'row_mirror ' + DPPF, 'row_bcast:15 row_mask:0xa bank_mask:0xf', 'row_bcast:31 row_mask:0xc bank_mask:0xf']:
        a('v_max_u32_dpp %s, %s, %s %s' % (v(K + 10), v(K + 10), v(K + 10), pat))
    a('v_readlane_b32 s36, %s, 63' % v(K + 10))

def gen():
    BP = optv('bp', 1)
    KP = optv('kp', 0); DB = optv('db', 3)
    PFC = optv('pfc', 2); WE = optv('we', 2); WF1 = '--wf0' not in OPT; OLATE = '--olate' in OPT; GATE = optv('gate', 0)
    TOUCH = optv('touch', 0); LOCAL = '--nolocal' not in OPT
    NE = optv('ne', 0); LATEX = '--earlyx' not in OPT
    a.raw('.globl fz_kernel'); a.raw('.p2align 8'); a.raw('.type fz_kernel,@function'); a.lines.append('fz_kernel:')
    st()
    if STAMPS:
        for i in range(1, 16): a('s_mov_b32 s%d, -1' % (70 + 2 * i))
    F1, TC, TS, C2, S2, B3C, B3S, CQ = 16, 24, 32, 40, 48, 56, 64, 72
    XA, XB, XAC, XBC, H, T, TP, ST = 88, 96, 104, 120, 136, 144, 152, 160
    XD, WV, WD = 28, 200, 168
    vSW, vSR, vWST, vHL, vA0, vA1, vAR, vY0, vY1, vYL, vM, vT, vXR, vXM, vE0, vM0, vYE, vZM = 216, 217, 221, 222, 223, 224, 225, 226, 227, 228, 229, 230, 231, 232, 233, 234, 236, 238
    vL16, vSG, vM0m, vPW, vPD, vPR, vKA, vCA, vTK, vMT, vE = 239, 240, 241, 243, 244, 245, 246, 247, 248, 249, 252
    a('s_load_dwordx2 s[4:5], s[0:1], 96'); a('s_load_dwordx2 s[8:9], s[0:1], 0'); a('s_load_dwordx2 s[64:65], s[0:1], 72')
    a('s_cmp_gt_u32 s2, 255'); a('s_cbranch_scc1 fz_end')
    a('v_lshrrev_b32 v2, 6, v0'); a('v_and_b32 v1, 63, v0')
    a('s_lshr_b32 s59, s2, 7')
    a('v_readfirstlane_b32 s3, v2')
    if PFC:
        a('s_and_b32 s20, s2, 127'); a('s_cmp_lt_u32 s20, %d' % (8 * PFC)); a('s_cselect_b32 s20, s3, 0'); a('s_cmp_lt_u32 s20, 4'); a('s_cbranch_scc1 fz_pfcback')
        a('s_getpc_b64 s[20:21]')
        a.lines.append('fz_pcb:')
        a('s_sub_u32 s20, s20, fz_pcb-fz_kernel'); a('s_subb_u32 s21, s21, 0')
        a('v_and_b32 v3, 255, v0'); a('v_lshlrev_b32 v3, 7, v3'); a('v_min_u32 v3, fz_codeend-fz_kernel-4, v3')
        a('v_mov_b32 v5, s21'); a('v_add_co_u32 v4, vcc, s20, v3'); a('v_addc_co_u32 v5, vcc, 0, v5, vcc')
        a('global_load_dword v251, v[4:5], off')
        a.lines.append('fz_pfcback:')
    a('s_cmp_lg_u32 s59, 0'); a('s_cbranch_scc1 fz_ldh')
    a('s_load_dwordx2 s[12:13], s[0:1], 80'); a('s_load_dwordx2 s[16:17], s[0:1], 48')
    a.lines.append('fz_ldback:')
    a('s_add_u32 s20, s2, %d' % POFS); a('s_and_b32 s20, s20, 127')
    a('s_lshr_b32 s21, s20, 3'); a('s_add_u32 s21, s21, 1'); a('s_and_b32 s22, s20, 7')
    a('s_sub_u32 s23, s20, 124'); a('s_cmp_ge_u32 s20, 124'); a('s_cselect_b32 s21, 0, s21'); a('s_cselect_b32 s22, s23, s22')
    a('s_lshr_b32 s57, s3, 2'); a('s_or_b32 s23, s57, s59'); a('s_and_b32 s24, s3, 3')
    a('s_lshl_b32 s25, s22, 6'); a('s_add_u32 s25, s25, s21')
    a('s_lshl_b32 s26, s23, 5'); a('s_add_u32 s26, s26, s25')
    a('s_lshl_b32 s27, s24, 9'); a('s_add_u32 s28, s26, s27')
    a('s_sub_u32 s27, 2048, s27'); a('s_sub_u32 s27, s27, s26')
    a('s_lshl_b32 s29, s24, 1'); a('s_add_u32 s29, s29, s23'); a('s_sub_u32 s30, 15, s29')
    a('s_cmp_lt_u32 s24, 2'); a('s_cselect_b32 s27, s28, s27'); a('s_cselect_b32 s31, s29, s30'); a('s_cselect_b32 s30, s30, s29')
    a('s_sub_u32 s28, 2048, s27'); a('s_and_b32 s28, s28, 2047')
    a('s_lshl_b32 s27, s27, 11'); a('s_lshl_b32 s28, s28, 11')
    a('s_mul_i32 s31, s31, %d' % RS); a('s_mul_i32 s30, s30, %d' % RS)
    a('v_lshlrev_b32 %s, 4, v1' % v(vL16))
    srd(8, 2048 * 2048); srd(4, WSB); srd(64, 0x700000)
    a('s_and_b32 s32, s57, s59')
    blk(63, 36); a('s_lshl_b32 s63, s63, 3'); a('s_bfe_u32 s37, s2, 0x30003'); a('s_add_u32 s63, s63, s37')
    a('v_and_b32 v10, 15, v1'); a('v_lshlrev_b32 v10, 4, v10'); a('v_lshrrev_b32 v14, 4, v1'); a('v_lshl_add_u32 v14, v14, 11, v10')
    a('s_lshl_b32 s62, s63, 16'); a('s_and_b32 s37, s3, 3'); a('s_lshl_b32 s37, s37, 9'); a('s_add_u32 s62, s62, s37')
    WQ = [160 + 4 * i for i in range(10)] + [60, 64, 68, 88, 92, 96]
    def wdload(q0=0, q1=8):
        for q in range(q0, q0 if '--xnowd' in OPT else q1):
            for h in range(2): a('buffer_load_dwordx4 %s, v14, s[64:67], s62 offen offset:%d%s' % (v(WQ[2 * q + h], 4), 256 * h, '' if '--wpl' in OPT else ' nt'))
            if q < 7: a('s_add_u32 s62, s62, 8192')
    a('s_mov_b32 s58, 0')
    a('s_waitcnt lgkmcnt(0)')
    st()
    a('s_cmp_eq_u32 s2, %d' % SPID); a('s_cbranch_scc1 fz_spec')
    a.lines.append('fz_specback:')
    def xload():
        a('s_mov_b32 m0, s31'); a('s_nop 0')
        a('buffer_load_dwordx4 %s, s[8:11], s27 offen lds' % v(vL16)); a('buffer_load_dwordx4 %s, s[8:11], s27 offen offset:1024 lds' % v(vL16))
        a('s_mov_b32 m0, s30'); a('s_nop 0')
        a('buffer_load_dwordx4 %s, s[8:11], s28 offen lds' % v(vL16)); a('buffer_load_dwordx4 %s, s[8:11], s28 offen offset:1024 lds' % v(vL16))
    def extras():
        a('v_lshlrev_b32 v13, 3, v0'); a('v_mov_b32 v10, -1'); a('v_mov_b32 v11, -1'); a('s_lshl_b32 s32, s20, 11'); a('s_add_u32 s32, s32, 0x%x' % (COFF - 2048))
        srd(16, 2048)
        a('s_lshl_b32 s33, s24, 10'); a('s_min_u32 s34, s33, 2048'); a('s_add_u32 s34, s34, %d' % WR); a('s_mov_b32 m0, s34')
        a('buffer_store_dwordx2 v[10:11], v13, s[4:7], s32 offen sc1')
        a('buffer_load_dwordx4 %s, s[16:19], s33 offen lds' % v(vL16))
    def latex(): xload(); extras()
    a('s_cmp_lg_u32 %s, 0' % ('s57' if LATEX else 's32')); a('s_cbranch_scc1 fz_nox')
    xload()
    a.lines.append('fz_nox:')
    a('buffer_load_dword v250, off, s[4:7], 0')
    if WE:
        a('s_andn2_b32 s32, s57, s59'); a('s_cbranch_scc0 fz_nowe')
        wdload(0, WE)
        a.lines.append('fz_nowe:')
    if not LATEX:
        a('s_andn2_b32 s32, s3, 3'); a('s_cmp_gt_u32 s32, s59'); a('s_cselect_b32 s32, 1, 0'); a('s_andn2_b32 s32, s32, s59'); a('s_cbranch_scc0 fz_noclr')
        extras()
        a.lines.append('fz_noclr:')
    est(6)
    if BP: a('s_cmp_eq_u32 s57, 0'); a('s_cbranch_scc1 fz_np'); a('s_setprio 1'); a.lines.append('fz_np:')
    a('v_and_b32 v2, 31, v1'); a('v_lshrrev_b32 v3, 5, v1'); a('v_and_b32 v4, 15, v1'); a('v_lshrrev_b32 v5, 4, v1')
    a('v_add_u32 v6, %d, %s' % (CT, v(vL16)))
    TT = XAC
    JT = 128
    def cq_job():
        a('s_and_b32 s32, s3, 1'); a('s_lshl_b32 s33, s32, 2'); a('s_lshl_b32 s32, s32, 11')
        a('v_and_b32 v8, 3, v4'); a('v_lshrrev_b32 v9, 2, v4'); a('v_lshl_add_u32 v8, v8, 3, v9'); a('v_add_u32 v8, s33, v8')
        a('v_cvt_f32_u32 v8, v8'); a('v_mul_f32 v8, %s, v8' % fh(1 / 32)); a('v_cvt_f32_u32 v9, v5'); a('v_mul_f32 v9, 4.0, v9'); a('v_mul_f32 v9, v8, v9')
        angles(8, 9, [0, 1, 2, 3, 16, 17, 18, 19], TT)
        for i in range(8): a('v_sin_f32 %s, %s' % (v(TT + 8 + i), v(TT + i)))
        trig('cos', TT, 8)
        for i in range(16): a('v_mul_f32 %s, %s, %s' % (v(TT + i), fh(1 / 16), v(TT + i)))
        pack(JT, TT, 16); a('v_add_u32 v8, s32, v6')
        for q in range(2): a('ds_write_b128 v8, %s offset:%d' % (v(JT + 4 * q, 4), 1024 * (14 + q)))
    a('v_lshrrev_b32 v10, 1, v2'); a('v_and_b32 v8, 9, v10'); a('v_and_b32 v11, 2, v10'); a('v_lshl_or_b32 v8, v11, 1, v8')
    a('v_bfe_u32 v11, v10, 2, 1'); a('v_lshl_or_b32 v8, v11, 1, v8')
    a('v_and_b32 v12, 1, v5'); a('v_cmp_eq_u32 vcc, 1, v12'); a('v_lshl_add_u32 v9, v4, 1, 1'); a('v_cndmask_b32 v9, v9, 0, vcc')
    a('s_cmp_lt_u32 s3, 5'); a('s_cselect_b64 s[32:33], -1, 0')
    a('s_cmp_lt_u32 s3, 3'); a('s_cselect_b64 s[34:35], -1, 0')
    a('v_cndmask_b32 v9, v9, v2, s[32:33]'); a('v_cndmask_b32 v8, v9, v8, s[34:35]')
    a('s_mov_b32 s36, %s' % fh(1 / 32)); a('s_cmp_gt_u32 s3, 4'); a('s_cselect_b32 s36, %s, s36' % fh(1 / 64))
    a('s_sub_u32 s37, s3, 1'); a('s_cmp_lt_u32 s37, 2'); a('s_cselect_b32 s36, %s, s36' % fh(1 / 1024))
    a('s_cmp_eq_u32 s3, 0'); a('s_cselect_b32 s32, 16, 0'); a('s_cselect_b32 s33, %s, 0' % fh(0.25)); a('s_cselect_b32 s34, 4.0, %s' % fh(8.0)); a('s_cselect_b32 s35, %s, 4.0' % fh(8.0))
    a('v_cmp_eq_u32 vcc, 1, v2'); a('v_mov_b32 v10, s32'); a('v_cndmask_b32 v10, 0, v10, vcc'); a('v_add_u32 v8, v8, v10')
    a('v_cvt_f32_u32 v8, v8'); a('v_mul_f32 v8, s36, v8')
    a('s_cmp_eq_u32 s3, 2'); a('s_cselect_b32 s32, 0x80000000, 0'); a('v_lshlrev_b32 v10, 31, v2'); a('v_and_b32 v10, s32, v10'); a('v_xor_b32 v8, v10, v8')
    a('v_and_b32 v10, 1, v2'); a('v_cvt_f32_u32 v10, v10'); a('v_mul_f32 v10, s33, v10')
    a('s_cmp_eq_u32 s3, 1'); a('s_cselect_b32 s33, %s, 0' % fh(0.25)); a('v_mov_b32 v11, s33'); a('v_cndmask_b32 v10, v10, v11, vcc')
    a('s_cmp_eq_u32 s3, 5'); a('s_cselect_b32 s33, %s, 0' % fh(0.25)); a('v_cvt_f32_u32 v12, v12'); a('v_fma_f32 v10, v12, s33, v10')
    a('s_cmp_eq_u32 s3, 6'); a('s_cselect_b32 s33, %s, 0' % fh(0.25))
    a('s_cmp_eq_u32 s3, 2'); a('s_cselect_b32 s33, %s, s33' % fh(-0.25)); a('s_cmp_eq_u32 s3, 4'); a('s_cselect_b32 s33, %s, s33' % fh(-0.25))
    a('v_add_f32 v10, s33, v10'); a('v_cvt_f32_u32 v11, v3'); a('v_mul_f32 v11, s35, v11'); a('v_fma_f32 v9, v8, v11, v10')
    a('v_mul_f32 v10, s34, v8'); a('v_mul_f32 v11, %s, v8' % fh(16.0))
    angles(8, 9, [0, 1, 2, 3], TT)
    for i in range(4): a('v_add_f32 %s, %s, v10' % (v(TT + 4 + i), v(TT + i)))
    for i in range(8): a('v_add_f32 %s, %s, v11' % (v(TT + 8 + i), v(TT + i)))
    est(7)
    trig('cos', TT, 16)
    a('s_lshl_b32 s32, s3, 11'); a('v_add_u32 v8, s32, v6')
    a('s_cmp_eq_u32 s3, 0'); a('s_cbranch_scc1 fz_jb')
    pack(JT, TT, 16)
    a.lines.append('fz_jend:')
    for q in range(2): a('ds_write_b128 v8, %s offset:%d' % (v(JT + 4 * q, 4), 1024 * q))
    B1, TC2, TS2 = 16, 20, 24
    vA = [vA0, vA1, 100, 101]
    def sync_add(val):
        a('v_mov_b32 v10, %d' % val); a('s_mov_b64 exec, 1'); a('ds_add_u32 v15, v10'); a('s_mov_b64 exec, -1')
    def SETA():
        a('s_and_b32 s32, s3, 3'); a('s_lshr_b32 s33, s3, 2'); a('s_lshl_b32 s33, s33, 4'); a('s_add_u32 s33, s33, s32')
        a('v_and_b32 v8, 12, v4'); a('v_bfe_u32 v9, v4, 1, 1'); a('v_lshl_add_u32 v8, v9, 5, v8'); a('v_add_u32 v8, s33, v8')
        a('v_cvt_f32_u32 v8, v8'); a('v_and_b32 v12, 1, v1'); a('v_cvt_f32_u32 v9, v12'); a('v_lshlrev_b32 v13, 2, v5'); a('v_cvt_f32_u32 v10, v13')
        a('v_mul_f32 v11, %s, v8' % fh(1 / 64)); a('v_mul_f32 v9, %s, v9' % fh(0.25)); a('v_fma_f32 v9, v11, v10, v9')
        TT = XAC
        angles(11, 9, [0, 1, 2, 3], TT + 24)
        a('v_mul_f32 v11, %s, v8' % fh(1 / 2048)); a('v_lshlrev_b32 v9, 31, v1'); a('v_xor_b32 v11, v9, v11'); a('v_mul_f32 v9, v11, v10')
        angles(11, 9, [0, 1, 2, 3, 16, 17, 18, 19], TT + 8)
        for i in range(8): a('v_%s_f32 %s, %s' % ('sin' if i & 1 else 'cos', v(TT + i), v(TT + 24 + (i >> 1))))
        for i in range(8): a('v_sin_f32 %s, %s' % (v(TT + 16 + i), v(TT + 8 + i)))
        trig('cos', TT + 8, 8)
        pack(B1, TT, 24)
        a('v_lshrrev_b32 v8, 3, v1'); a('v_mul_u32_u24 %s, %d, v8' % (v(vHL), PS)); a('v_and_b32 v9, 7, v1'); a('v_lshl_add_u32 %s, v9, 4, %s' % (v(vHL), v(vHL)))
        a('s_mul_i32 s60, s3, %d' % (32 * PS)); a('s_lshl_b32 s32, s20, 7'); a('s_add_u32 s60, s60, s32'); a('s_add_u32 s60, s60, 0x%x' % WOFF); a('s_add_u32 s61, s60, %d' % (8 * PS)); a('s_add_u32 s16, s60, %d' % (16 * PS)); a('s_add_u32 s17, s60, %d' % (24 * PS))
        a('v_lshlrev_b32 v8, 1, v8'); a('v_bfe_u32 v9, v1, 2, 1'); a('v_add_u32 v8, v8, v9'); a('s_lshl_b32 s32, s3, 2'); a('s_add_u32 s32, s32, 1')
        a('v_lshl_add_u32 v8, v8, 5, s32')
        a('v_cmp_eq_u32 vcc, 1, v12')
        a('v_bfe_u32 v9, v1, 1, 1'); a('v_mul_u32_u24 v9, %d, v9' % CPS); a('v_add_u32 v9, %d, v9' % AB)
        a('s_cmp_eq_u32 s3, 3'); a('s_cselect_b32 s32, 272, 0')
        for u, dst in enumerate(vA):
            if u == 3: a('v_mul_u32_u24 v10, s32, v3'); a('v_sub_u32 v8, v8, v10')
            if u: a('v_add_u32 v8, 1, v8')
            a('v_sub_u32 v10, 512, v8'); a('v_cndmask_b32 v10, v8, v10, vcc')
            if u == 3: a('v_lshrrev_b32 v11, 1, v10'); a('v_and_b32 v11, 256, v11'); a('v_sub_u32 v10, v10, v11')
            a('v_and_b32 v11, 16, v10'); a('v_lshl_add_u32 v11, v11, 6, v9'); a('v_lshrrev_b32 v12, 7, v10'); a('v_lshl_add_u32 v11, v12, 8, v11')
            a('v_and_b32 v12, 15, v10'); a('v_lshl_add_u32 v11, v12, 4, v11'); a('v_bfe_u32 v12, v10, 5, 2'); a('v_lshl_add_u32 %s, v12, 2, v11' % v(dst))
        a('s_and_b32 s32, s3, 3'); a('s_lshl_b32 s32, s32, 11'); a('s_add_u32 s32, s32, %d' % AB); a('v_add_u32 %s, s32, %s' % (v(vAR), v(vL16)))
        a('v_add_u32 v8, s33, v13')
        a('v_sub_u32 v9, 32, v8'); a('v_min_u32 v9, v8, v9')
        a('v_and_b32 v10, 15, v8'); a('v_cmp_eq_u32 s[32:33], 0, v10')
        a('v_cmp_lt_u32 s[34:35], 16, v8')
        a('v_lshlrev_b32 v10, 10, v9'); a('v_subrev_u32 v10, 1024, v10'); a('v_mov_b32 v11, %d' % (124 * 128)); a('v_cmp_eq_u32 vcc, 0, v8'); a('v_cndmask_b32 v10, v10, v11, vcc')
        a('v_and_b32 v11, 3, v1'); a('v_lshl_add_u32 v10, v11, 4, v10')
        a('v_lshrrev_b32 v11, 2, v4'); a('v_lshlrev_b32 v12, 7, v11')
        for tau, dst in ((0, vY0), (1, vY1)):
            if tau: a('s_or_b64 s[34:35], s[34:35], s[32:33]'); a('v_add_u32 v12, 512, v12')
            a('v_sub_u32 v13, %d, v12' % (7 * 128 + 64))
            a('v_cndmask_b32 v13, v12, v13, s[34:35]'); a('v_add_u32 %s, v10, v13' % v(dst))
        a('s_mul_i32 s56, s20, %d' % PS); a('s_add_u32 s56, s56, 0x%x' % YOFF)
        a('v_mov_b32 %s, 0x30003' % v(vMT))
        for k in range(4): a('v_mov_b32 %s, %s' % (v(vE + k), s(44 + k)))
        a('s_waitcnt lgkmcnt(0)')
    def SETB(sfx):
        a('v_sub_u32 v8, 15, v4'); a('v_min_u32 v8, v4, v8')
        a('v_and_b32 v9, 1, v8'); a('v_lshlrev_b32 v9, 5, v9'); a('v_lshrrev_b32 v10, 1, v8'); a('v_lshl_add_u32 v9, v10, 9, v9'); a('v_add_u32 v9, s25, v9')
        a('v_sub_u32 v10, 2048, v9'); a('v_cmp_lt_u32 s[34:35], 7, v4'); a('v_cndmask_b32 %s, v9, v10, s[34:35]' % v(vT))
        a('v_mov_b32 v9, v4'); a('v_mov_b32 v10, s20')
        a('s_cmp_lg_u32 s21, 0'); a('s_cbranch_scc0 fz_spec3%s' % sfx)
        a.lines.append('fz_spec3back%s:' % sfx)
        a('v_lshlrev_b32 v10, 7, v10'); a('v_lshl_add_u32 v10, v9, 3, v10'); a('v_mul_u32_u24 v11, %d, v5' % (4 * PS)); a('v_add_u32 %s, v10, v11' % v(vYL))
        a('v_and_b32 v9, 1, v9'); a('v_cmp_eq_u32 vcc, 1, v9')
        a('v_mov_b32 v9, s44'); a('v_mov_b32 v10, s46'); a('v_cndmask_b32 %s, v9, v10, vcc' % v(vYE))
        a('v_mov_b32 v9, s45'); a('v_mov_b32 v10, s47'); a('v_cndmask_b32 %s, v9, v10, vcc' % v(vYE + 1))
        a('s_lshl_b32 s32, s3, 2'); a('v_add_u32 v8, s32, v5')
        a('v_lshlrev_b32 v9, 6, v8')
        a('v_cmp_gt_u32 vcc, 16, v8'); a('v_cndmask_b32 v10, 0, 32, vcc'); a('v_add_u32 v10, v9, v10')
        a('v_sub_u32 v11, 2048, v10'); a('v_cmp_eq_u32 vcc, 16, v8'); a('v_cndmask_b32 v11, v11, 0, vcc')
        a('v_mov_b32 v12, 0xffff0000'); a('v_cndmask_b32 %s, -1, v12, vcc' % v(vZM))
        a('v_sub_u32 v12, %d, v9' % (2048 - 30))
        a('v_mul_u32_u24 v13, %d, v4' % RS)
        a('v_add_u32 %s, v13, v9' % v(vXR)); a('v_add_u32 %s, v13, v12' % v(vXM)); a('v_add_u32 %s, v13, v10' % v(vE0)); a('v_add_u32 v241, v13, v11')
        a('s_lshl_b32 s32, s3, 8'); a('s_add_u32 s32, s32, %d' % PR)
        a('v_lshlrev_b32 v9, 4, v4'); a('v_add_u32 v10, s32, v9'); a('v_add_u32 v11, %d, %s' % (TRASH, v(vL16)))
        a('v_cmp_gt_u32 vcc, 16, v1'); a('v_cndmask_b32 %s, v11, v10, vcc' % v(vPW))
        a('v_lshrrev_b32 v12, 2, v4'); a('v_cmp_eq_u32 vcc, v12, v5'); a('v_cndmask_b32 %s, v11, v10, vcc' % v(vPD))
        a('v_lshrrev_b32 v12, 5, v1'); a('v_lshl_add_u32 v10, v12, 10, v9'); a('v_add_u32 %s, %d, v10' % (v(vPR), PR))
        a('v_and_b32 v9, 1, v1'); a('v_cmp_eq_u32 s[28:29], 1, v9'); a('v_and_b32 v9, 2, v1'); a('v_cmp_eq_u32 s[30:31], 2, v9')
        a('s_lshl_b32 s37, s3, 2'); a('v_add_u32 v9, s37, v5'); a('v_mul_u32_u24 %s, %d, v9' % (v(vKA), KS))
        a('s_lshl_b32 s26, s20, 4'); a('s_add_u32 s26, s26, 0x%x' % KOFF)
        a('v_lshlrev_b32 %s, 4, v5' % v(vCA)); a('s_lshl_b32 s27, s20, 11'); a('s_lshl_b32 s37, s3, 8'); a('s_add_u32 s27, s27, s37'); a('s_add_u32 s27, s27, 0x%x' % COFF)
        a('v_sub_u32 %s, 2047, %s' % (v(vTK), v(vT)))
        srd(12, 2048 * 2048)
        a('s_mul_i32 s52, s3, %d' % (16 * PS)); a('s_add_u32 s52, s52, 0x%x' % YOFF)
        for jx in range(1, 4): a('s_add_u32 %s, s52, %d' % (s(52 + jx), jx * PS))
        a('s_mov_b32 s23, s63')
        a('s_getreg_b32 s24, hwreg(HW_REG_XCC_ID)'); a('s_and_b32 s24, s24, 15')
        a('v_lshlrev_b32 v10, 4, v0'); a('v_min_u32 v10, 4336, v10'); a('v_add_u32 v10, %d, v10' % ACT)
        for k in range(4): a('v_mov_b32 %s, 0' % v(XAC + k))
        a('ds_write_b128 v10, %s' % v(XAC, 4))
    def SET2():
        XP = 116
        a('ds_read_b128 %s, %s' % (v(XP, 4), v(vXR))); a('ds_read_b128 %s, %s offset:16' % (v(XP + 4, 4), v(vXR)))
        a('ds_read_u16_d16_hi %s, %s' % (v(XD + 16), v(vM0m)))
        for e in range(1, 16): a('ds_read_u16_d16_hi %s, %s offset:%d' % (v(XD + 16 + e), v(vXM), 2 * (15 - e)))
        a('ds_read_u16_d16_hi %s, %s' % (v(XD), v(vE0)))
        a('v_mul_u32_u24 v13, %d, v4' % RS); a('v_subrev_u32 v13, %d, v13' % WR)
        for r, src in ((9, vXR), (10, vE0), (11, vM0m), (12, vXM)): a('v_sub_u32 %s, %s, v13' % (v(r), v(src)))
        a('s_mov_b32 s36, 0xffff0000')
        a('s_waitcnt lgkmcnt(0)')
        a('ds_read_b128 %s, v9' % v(WV, 4)); a('ds_read_b128 %s, v9 offset:16' % v(WV + 4, 4))
        a('ds_read_u16_d16 %s, v11' % v(WV + 8))
        for e in range(1, 16): a('ds_read_u16_d16%s %s, v12 offset:%d' % ('_hi' if e & 1 else '', v((XP + 8 if e & 1 else WV + 8) + (e >> 1)), 2 * (15 - e)))
        a('ds_read_u16_d16 v13, v10')
        for k in range(8):
            if k: a('v_lshlrev_b32 %s, 16, %s' % (v(XD + 2 * k), v(XP + k)))
            a('v_and_b32 %s, s36, %s' % (v(XD + 2 * k + 1), v(XP + k)))
        a('v_cmp_eq_u32 vcc, 1, v4'); a('v_mov_b32 v9, s42'); a('v_cndmask_b32 v9, 0, v9, vcc')
        for k in range(4): a('v_mov_b32 %s, s42' % v(XP + k))
        a('v_cmp_eq_u32 vcc, 0, v4')
        a('s_waitcnt lgkmcnt(0)')
        a('v_and_or_b32 %s, %s, s36, v13' % (v(WV), v(WV)))
        for k in range(8): a('v_or_b32 %s, %s, %s' % (v(WV + 8 + k), v(WV + 8 + k), v(XP + 8 + k)))
        for k in range(16): a('v_cndmask_b32 %s, v9, %s, vcc' % (v(WV + k), v(WV + k)))
        for q in range(4): a('v_mfma_f32_16x16x32_bf16 %s, %s, %s, %s' % (v(XP + 4, 4), v(WV + 4 * q, 4), v(XP, 4), v(XP + 4, 4) if q else '0'))
        a('ds_write_b32 %s, %s offset:12' % (v(vPW), v(XP + 4)))
    a('v_mov_b32 v15, %d' % SYNC); a('v_mov_b32 v10, 0'); a('ds_write_b32 v15, v10')
    est(8)
    a('s_waitcnt lgkmcnt(0)')
    a('s_barrier')
    est(10)
    a('v_lshlrev_b32 %s, 31, v1' % v(vSG)); a('v_lshrrev_b32 v10, 16, %s' % v(vSG)); a('v_or_b32 %s, %s, v10' % (v(vSG), v(vSG)))
    a('v_mov_b32 %s, 0xfffcfffc' % v(vM))
    a('v_mov_b32 v242, 0xffff0000'); a('s_mov_b32 s42, 0x3f803f80')
    a('s_cmp_lg_u32 s57, 0'); a('s_cbranch_scc1 fz_nc1')
    for q in range(14): a('ds_read_b128 %s, v6 offset:%d' % (v(F1 + 4 * q, 4), 1024 * q))
    a('v_lshlrev_b32 v7, 9, v3'); a('v_bfe_u32 v10, v1, 2, 2'); a('v_lshl_add_u32 v7, v10, 6, v7')
    a('v_and_b32 v10, 1, v5'); a('v_lshl_add_u32 v7, v10, 5, v7'); a('v_and_b32 v10, 3, v1'); a('v_lshl_add_u32 v7, v10, 3, v7'); a('v_add_u32 v7, s31, v7')
    a('v_lshlrev_b32 v8, 9, v3'); a('v_lshl_add_u32 v8, v2, 1, v8'); a('v_sub_u32 v9, 2048, v8'); a('v_and_b32 v9, 2047, v9'); a('v_add_u32 v9, s30, v9')
    a('s_add_u32 s32, s30, %d' % (2048 - 64 * 23)); a('v_sub_u32 v8, s32, v8')
    a('v_cmp_eq_u32 vcc, 0, v2'); a('v_cndmask_b32 %s, 0, -2.0, vcc' % v(vM0))
    a('v_mov_b32 %s, %s' % (v(vM0 + 1), fh(256e-5)))
    a('s_lshr_b32 s32, s24, 1'); a('s_lshl_b32 s32, s32, 6'); a('s_mul_i32 s33, s3, 2304'); a('s_add_u32 s32, s32, s33'); a('s_add_u32 s32, s32, %d' % SB)
    a('v_lshl_add_u32 v10, v3, 1, v1'); a('v_lshlrev_b32 v10, 4, v10'); a('v_add_u32 %s, s32, v10' % v(vSW))
    a('v_bfe_u32 v10, v0, 2, 1'); a('v_mul_u32_u24 v10, 34, v10'); a('v_lshrrev_b32 v11, 4, v0'); a('v_add_u32 v10, v10, v11'); a('v_lshlrev_b32 v10, 4, v10')
    a('v_bfe_u32 v11, v0, 3, 1'); a('v_lshl_add_u32 v10, v11, 3, v10'); a('v_bfe_u32 v11, v0, 1, 1'); a('v_lshl_add_u32 v10, v11, 2, v10')
    a('v_and_b32 v12, 1, v0')
    a('s_mov_b32 s33, %d' % (4 * 2304)); a('s_cmp_eq_u32 s2, %d' % SPID)
    for k in range(4):
        pm = 1152 if k >= 2 else 0
        o0 = k * 2304 + pm + (64 if k >= 2 else 0); o1 = (3 - k) * 2304 + pm + (64 if (3 - k) >= 2 else 0)
        a('s_cselect_b32 s32, s33, 0x%x' % ((o1 - o0) & 0xffffffff))
        a('v_mul_lo_u32 v11, v12, s32'); a('v_add_u32 %s, v10, v11' % v(vSR + k)); a('v_add_u32 %s, %d, %s' % (v(vSR + k), SB + o0, v(vSR + k)))
    a('v_lshrrev_b32 v10, 2, v0'); a('v_and_b32 v11, 3, v0'); a('v_lshlrev_b32 v11, 4, v11'); a('v_lshl_add_u32 %s, v10, 7, v11' % v(vWST))
    a('s_mul_i32 s52, s20, %d' % PS); a('s_lshl_b32 s33, s59, 6'); a('s_add_u32 s52, s52, s33'); a('s_add_u32 s52, s52, 0x%x' % WOFF)
    a('s_add_u32 s53, s52, 8192')
    def tags2():
        tags()
        a('s_mov_b32 s38, 0x404'); a('s_cmp_eq_u32 s2, %d' % SPID); a('s_cselect_b32 s39, 8, 4'); a('s_cselect_b32 s38, 8, s38')
    est(9)
    for i in range(4): a('v_mov_b32 %s, 0' % v(ST + i))
    a('s_setprio 3')
    st()
    if '--early' in OPT: a('s_waitcnt lgkmcnt(0)'); est(11)
    a('s_waitcnt vmcnt(0) lgkmcnt(0)')
    st()
    for jx in range(2):
        for hh in range(2): a('ds_read_b64_tr_b16 %s, v7 offset:%d' % (v(XA + 4 * jx + 2 * hh, 2), 1024 * jx + 256 * hh))
    for jx in range(2):
        for i in range(8):
            op = 'ds_read_u16_d16_hi' if i & 1 else 'ds_read_u16_d16'
            dst = (H if i & 1 else XB) + 4 * jx + (i >> 1)
            if jx == 0 and i == 0: a('%s %s, v9' % (op, v(dst)))
            else: a('%s %s, v8 offset:%d' % (op, v(dst), 64 * (23 - 16 * jx - i)))
        if jx == 0: tags2(); a('s_waitcnt lgkmcnt(8)')
        if jx == 0:
            for j2 in range(2): a('v_mfma_f32_32x32x16_bf16 %s, %s, %s, %s' % (v(XAC, 16), v(XA + 4 * j2, 4), v(F1 + 4 * j2, 4), v(XAC, 16) if j2 else '0'))
    for i in range(8):
        a('v_dot2_f32_bf16 %s, %s, s42, %s' % (v(ST), v(XA + i), v(ST))); a('v_dot2_f32_bf16 %s, %s, %s, %s' % (v(ST + 1), v(XA + i), v(XA + i), v(ST + 1)))
    a('s_waitcnt lgkmcnt(0)')
    for i in range(8): a('v_or_b32 %s, %s, %s' % (v(XB + i), v(XB + i), v(H + i)))
    for j2 in range(2): a('v_mfma_f32_32x32x16_bf16 %s, %s, %s, %s' % (v(XBC, 16), v(XB + 4 * j2, 4), v(F1 + 4 * j2, 4), v(XBC, 16) if j2 else '0'))
    for i in range(8):
        a('v_dot2_f32_bf16 %s, %s, s42, %s' % (v(ST + 2), v(XB + i), v(ST + 2))); a('v_dot2_f32_bf16 %s, %s, %s, %s' % (v(ST + 3), v(XB + i), v(XB + i), v(ST + 3)))
    est(12)
    a('v_permlane32_swap_b32 %s, %s' % (v(ST), v(ST + 2))); a('v_permlane32_swap_b32 %s, %s' % (v(ST + 1), v(ST + 3)))
    a('v_add_f32 %s, %s, %s' % (v(ST), v(ST), v(ST + 2))); a('v_add_f32 %s, %s, %s' % (v(ST + 1), v(ST + 1), v(ST + 3)))
    a('v_permlane16_swap_b32 %s, %s' % (v(ST), v(ST + 1)))
    a('v_add_f32 %s, %s, %s' % (v(ST), v(ST), v(ST + 1)))
    for pat in ['quad_perm:[1,0,3,2]', 'quad_perm:[2,3,0,1]', 'row_half_mirror', 'row_mirror']:
        a('v_add_f32_dpp %s, %s, %s %s %s' % (v(ST), v(ST), v(ST), pat, DPPF))
    a('s_mov_b32 s43, %s' % fh(256 / 1024))
    a('v_mov_b32 %s, %s' % (v(ST + 1), v(ST)))
    a('v_permlane16_swap_b32 %s, %s' % (v(ST), v(ST + 1)))
    a('v_mul_f32 %s, %s, %s' % (v(ST), fh(16 / 1024), v(ST)))
    a('v_fma_f32 %s, %s, s43, %s' % (v(ST + 1), v(ST + 1), v(vM0 + 1)))
    a('v_fma_f32 %s, -%s, %s, %s' % (v(ST + 1), v(ST), v(ST), v(ST + 1)))
    a('v_rsq_f32 %s, %s' % (v(ST + 1), v(ST + 1)))
    a('v_mul_f32 %s, %s, %s' % (v(ST), v(ST), v(ST + 1)))
    a('v_readlane_b32 s32, %s, 0' % v(ST + 1)); a('v_readlane_b32 s34, %s, 32' % v(ST + 1)); a('v_readlane_b32 s36, %s, 0' % v(ST)); a('v_readlane_b32 s37, %s, 32' % v(ST))
    a('v_mul_f32 %s, s36, %s' % (v(ST + 4), v(vM0))); a('v_fmac_f32 %s, s37, %s' % (v(ST + 4), v(vM0)))
    for i in range(8): a('v_pk_fma_f32 %s, %s, s[32:33], %s op_sel_hi:[1,0,0]' % (v(XAC + 2 * i, 2), v(XAC + 2 * i, 2), v(ST + 4, 2)))
    for i in range(8): a('v_pk_fma_f32 %s, %s, s[34:35], %s op_sel_hi:[1,0,1]' % (v(XAC + 2 * i, 2), v(XBC + 2 * i, 2), v(XAC + 2 * i, 2)))
    est(13)
    pack(H, XAC, 16)
    for i in range(8): a('v_mov_b32_dpp %s, %s %s' % (v(TP + i), v(H + i), X1))
    D3C, D3S = XBC, XBC + 4
    for i in range(8): a('v_pk_mul_f16 %s, %s, %s' % (v(T + i), v(H + i), v(TC + i)))
    for j2 in range(2):
        a('v_mfma_f32_16x16x32_f16 %s, %s, %s, %s' % (v(D3C, 4), v(H + 4 * j2, 4), v(B3C + 4 * j2, 4), v(D3C, 4) if j2 else '0'))
        for i in range(4): a('v_pk_fma_f16 %s, %s, %s, %s' % (v(T + 4 * j2 + i), v(TP + 4 * j2 + i), v(TS + 4 * j2 + i), v(T + 4 * j2 + i)))
    a('v_mfma_f32_32x32x16_f16 %s, %s, %s, 0' % (v(XAC, 16), v(T, 4), v(C2, 4)))
    for i in range(4): a('v_xor_b32_dpp %s, %s, %s %s' % (v(TP + i), v(T + i), v(vSG), X1))
    a('v_mfma_f32_32x32x16_f16 %s, %s, %s, %s' % (v(XAC, 16), v(T + 4, 4), v(C2 + 4, 4), v(XAC, 16)))
    for i in range(4, 8): a('v_xor_b32_dpp %s, %s, %s %s' % (v(TP + i), v(T + i), v(vSG), X1))
    for j2 in range(2): a('v_mfma_f32_32x32x16_f16 %s, %s, %s, %s' % (v(XAC, 16), v(TP + 4 * j2, 4), v(S2 + 4 * j2, 4), v(XAC, 16)))
    for j2 in range(2): a('v_mfma_f32_16x16x32_f16 %s, %s, %s, %s' % (v(D3S, 4), v(H + 4 * j2, 4), v(B3S + 4 * j2, 4), v(D3S, 4) if j2 else '0'))
    est(14)
    a('s_mov_b64 vcc, 0xffff')
    for p in (7, 6, 5, 4, 3, 2, 1): a('v_cvt_pk_f16_f32 %s, %s, %s' % (v(H + p), v(XAC + 2 * p), v(XAC + 2 * p + 1)))
    a('v_cndmask_b32 %s, %s, %s, vcc' % (v(XAC), v(XAC), v(D3C + 1))); a('v_cndmask_b32 %s, %s, %s, vcc' % (v(XAC + 1), v(XAC + 1), v(D3S + 1)))
    for p in (3, 2, 1, 0):
        if p == 0: a('v_cvt_pk_f16_f32 %s, %s, %s' % (v(H), v(XAC), v(XAC + 1)))
        a('v_pk_add_f16 %s, %s, %s op_sel:[0,1] op_sel_hi:[1,0] neg_lo:[0,1]' % (v(T + p), v(H + 2 * p), v(H + 2 * p + 1)))
        a('v_pk_add_f16 %s, %s, %s op_sel:[0,1] op_sel_hi:[1,0] neg_hi:[1,0]' % (v(T + 4 + p), v(H + 2 * p), v(H + 2 * p + 1)))
    a('ds_write_b128 %s, %s' % (v(vSW), v(T, 4))); a('ds_write_b128 %s, %s offset:1152' % (v(vSW), v(T + 4, 4)))
    a('s_waitcnt lgkmcnt(0)')
    sync_add(1)
    a('s_cmp_gt_u32 s3, 3'); a('s_cbranch_scc1 fz_bsp')
    a.lines.append('fz_sy:')
    a('ds_read_b32 v10, v15')
    a('s_waitcnt lgkmcnt(0)')
    a('v_and_b32 v10, 0xff, v10'); a('v_cmp_ne_u32 vcc, s39, v10')
    a('s_cbranch_vccnz fz_sy')
    st.n = 4; st()
    Z = XAC
    for rd in range(2):
        for k in range(4): a('ds_read_b32 %s, %s offset:%d' % (v(Z + 4 * rd + k), v(vSR + k), 256 * rd))
    for rd in range(2):
        z = Z + 4 * rd; u = Z + 8 + 8 * rd; o = u + 4
        a('s_waitcnt lgkmcnt(%d)' % (4 - 4 * rd))
        a('v_pk_add_f16 %s, %s, %s' % (v(u), v(z), v(z + 2))); a('v_pk_add_f16 %s, %s, %s' % (v(u + 2), v(z + 1), v(z + 3)))
        a('v_pk_add_f16 %s, %s, %s neg_lo:[0,1] neg_hi:[0,1]' % (v(u + 1), v(z), v(z + 2))); a('v_pk_add_f16 %s, %s, %s neg_lo:[0,1] neg_hi:[0,1]' % (v(u + 3), v(z + 1), v(z + 3)))
        a('v_pk_add_f16 %s, %s, %s' % (v(o), v(u), v(u + 2))); a('v_pk_add_f16 %s, %s, %s neg_lo:[0,1] neg_hi:[0,1]' % (v(o + 2), v(u), v(u + 2)))
        a('v_pk_add_f16 %s, %s, %s op_sel:[0,1] op_sel_hi:[1,0] neg_hi:[0,1]' % (v(o + 1), v(u + 1), v(u + 3)))
        a('v_pk_add_f16 %s, %s, %s op_sel:[0,1] op_sel_hi:[1,0] neg_lo:[0,1]' % (v(o + 3), v(u + 1), v(u + 3)))
        for k in range(4): a('v_add_u32 %s, 0x20002, %s' % (v(o + k), v(o + k)))
        for k in range(4): a('v_and_or_b32 %s, %s, %s, %s' % (v(o + k), v(o + k), v(vM), s(44 + k)))
        a('buffer_store_dwordx4 %s, %s, s[4:7], %s offen sc1' % (v(o, 4), v(vWST), s(52 + rd)))
    a('s_cmp_lg_u32 s59, 0'); a('s_cbranch_scc1 ffn')
    st()
    SETA()
    a('s_waitcnt vmcnt(0)')
    st()
    R = XAC
    def h1i(u): a('buffer_load_dwordx4 %s, %s, s[4:7], %s offen sc1' % (v(R + 4 * u, 4), v(vHL), s((60, 61, 16, 17)[u])))
    def h1c(u):
        for k in range(4): a('v_xor_b32 %s, %s, %s' % (v(R + 4 * u + k), v(vE + k), v(R + 4 * u + k)))
        a('v_or3_b32 v10, %s, %s, %s' % (v(R + 4 * u), v(R + 4 * u + 1), v(R + 4 * u + 2)))
        a('v_bitop3_b32 v10, v10, %s, %s bitop3:0xa8' % (v(R + 4 * u + 3), v(vMT)))
        a('v_cmp_ne_u32 vcc, 0, v10')
    def h1a(u):
        for k in range(4): a('ds_write_b32 %s, %s offset:%d' % (v(vA[u]), v(R + 4 * u + k), 2048 * k))
    for u in range(4): h1i(u)
    prog_poll('fz_h1', 4, h1i, h1c, h1a)
    a('s_waitcnt lgkmcnt(0)')
    a('s_setprio 0')
    a.lines.append('fz_hb:')
    a('s_barrier')
    st.n = 7; st()
    A2, V2, H2, T2, TP2, D2 = 104, 120, 136, 144, 152, 104
    for cp in range(2):
        for hf in range(2): a('ds_read_b128 %s, %s offset:%d' % (v(A2 + 8 * cp + 4 * hf, 4), v(vAR), CPS * cp + 1024 * hf))
    for q in range(4): a('ds_read_b128 %s, v6 offset:%d' % (v(CQ + 4 * q, 4), 1024 * (14 + q)))
    for q in range(4):
        a('s_waitcnt lgkmcnt(%d)' % (7 - q))
        a('v_mfma_f32_16x16x32_f16 %s, %s, %s, 0' % (v(V2 + 4 * q, 4), v(A2 + 4 * q, 4), v(B1, 4)))
    a('s_waitcnt lgkmcnt(0)')
    for cp in range(2):
        pack(H2 + 4 * cp, V2 + 8 * cp, 8)
    for cp in range(2):
        h, t, tp = H2 + 4 * cp, T2 + 4 * cp, TP2 + 4 * cp
        for i in range(4): a('v_pk_mul_f16 %s, %s, %s' % (v(t + i), v(h + i), v(TC2 + i)))
        for i in range(4): a('v_mov_b32_dpp %s, %s %s' % (v(tp + i), v(h + i), X1))
        for i in range(4): a('v_pk_fma_f16 %s, %s, %s, %s' % (v(t + i), v(tp + i), v(TS2 + i), v(t + i)))
        for tau in range(2): a('v_mfma_f32_16x16x32_f16 %s, %s, %s, 0' % (v(D2 + 8 * cp + 4 * tau, 4), v(t, 4), v(CQ + 8 * tau, 4)))
        for i in range(4): a('v_xor_b32_dpp %s, %s, %s %s' % (v(tp + i), v(t + i), v(vSG), X1))
        for tau in range(2): a('v_mfma_f32_16x16x32_f16 %s, %s, %s, %s' % (v(D2 + 8 * cp + 4 * tau, 4), v(tp, 4), v(CQ + 8 * tau + 4, 4), v(D2 + 8 * cp + 4 * tau, 4)))
    O2 = V2
    for tau in range(2):
        for cp in range(2):
            for b in range(2): a('v_cvt_pk_f16_f32 %s, %s, %s' % (v(O2 + 4 * tau + 2 * b + cp), v(D2 + 8 * cp + 4 * tau + 2 * b), v(D2 + 8 * cp + 4 * tau + 2 * b + 1)))
        for k in range(4): a('v_add_u32 %s, 0x20002, %s' % (v(O2 + 4 * tau + k), v(O2 + 4 * tau + k)))
        for k in range(4): a('v_and_or_b32 %s, %s, %s, %s' % (v(O2 + 4 * tau + k), v(O2 + 4 * tau + k), v(vM), s(44 + k)))
        a('buffer_store_dwordx4 %s, %s, s[4:7], s56 offen sc1' % (v(O2 + 4 * tau, 4), v(vY0 + tau)))
    st()
    a('s_cmp_lg_u32 s57, 0'); a('s_cbranch_scc1 fz_nc3')
    SETB('a')
    a('s_mov_b32 s58, 0')
    a('s_waitcnt vmcnt(0)')
    st()
    YD, YM, HP, Q1, Q2 = 104, 112, 120, 136, 140
    def h2i(jx): a('buffer_load_dwordx2 %s, %s, s[4:7], %s offen sc1' % (v(YD + 2 * jx, 2), v(vYL), s(52 + jx)))
    def h2load():
        for jx in range(4): h2i(jx)
    h2load()
    SET2()
    a.flush(); a('s_branch fz_h2c')
    a.lines.append('fz_h2:')
    h2load()
    a.lines.append('fz_h2c:')
    a('s_mov_b32 s36, %s' % fh(128.0))
    def h2c(jx):
        for k in range(2): a('v_xor_b32 %s, %s, %s' % (v(YD + 2 * jx + k), v(vYE + k), v(YD + 2 * jx + k)))
        a('v_bitop3_b32 v9, %s, %s, %s bitop3:0xa8' % (v(YD + 2 * jx), v(YD + 2 * jx + 1), v(vMT)))
        a('v_cmp_ne_u32 vcc, 0, v9')
    def h2a(jx):
        if jx == 3: st()
        for e in range(4 * jx, 4 * jx + 4): a('v_fma_mix_f32 %s, %s, s36, %s op_sel:[%d,0,0] op_sel_hi:[1,0,0]' % (v(XD + e), v(YD + (e >> 1)), v(XD + e), e & 1))
        for k in range(2 * jx, 2 * jx + 2): a('v_mov_b32_dpp %s, %s row_mirror %s' % (v(YM + k), v(YD + k), DPPF))
    prog_poll('fz_h2', 4, h2i, h2c, h2a)
    a('s_cmp_eq_u32 s2, %d' % SPID); a('s_cbranch_scc1 fz_spec4')
    a.lines.append('fz_spec4back:')
    pack(HP, XD, 16, 'bf16')
    a('v_and_b32 %s, %s, %s' % (v(YM), v(vZM), v(YM)))
    for q in range(2):
        a('v_mfma_f32_16x16x32_bf16 %s, %s, %s, %s' % (v(Q1, 4), v(HP + 4 * q, 4), v(HP + 4 * q, 4), v(Q1, 4) if q else '0'))
        a('v_mfma_f32_16x16x32_bf16 %s, %s, %s, %s' % (v(Q2, 4), v(WV + 4 * q, 4), v(HP + 4 * q, 4), v(Q2, 4) if q else '0'))
    for e in range(16): a('v_fma_mix_f32 %s, %s, s36, %s op_sel:[%d,0,0] op_sel_hi:[1,0,0]' % (v(XD + 16 + e), v(YM + (e >> 1)), v(XD + 16 + e), e & 1))
    pack(HP + 8, XD + 16, 16, 'bf16')
    for q in range(2, 4):
        a('v_mfma_f32_16x16x32_bf16 %s, %s, %s, %s' % (v(Q1, 4), v(HP + 4 * q, 4), v(HP + 4 * q, 4), v(Q1, 4)))
        a('v_mfma_f32_16x16x32_bf16 %s, %s, %s, %s' % (v(Q2, 4), v(WV + 4 * q, 4), v(HP + 4 * q, 4), v(Q2, 4)))
    a('v_cndmask_b32 v9, %s, %s, s[28:29]' % (v(Q1), v(Q1 + 1))); a('v_cndmask_b32 v10, %s, %s, s[28:29]' % (v(Q1 + 2), v(Q1 + 3)))
    a('ds_write_b64 %s, %s' % (v(vPW), v(Q2, 2)))
    a('v_cndmask_b32 v9, v9, v10, s[30:31]')
    a('ds_write_b32 %s, v9 offset:8' % v(vPD))
    a('s_cmp_gt_u32 s3, 3'); a('s_cbranch_scc1 fz_lp'); a('s_setprio 2')
    a.lines.append('fz_lp:')
    a('s_waitcnt lgkmcnt(0)'); a('s_barrier')
    P = 144
    for q in range(4): a('ds_read_b128 %s, %s offset:%d' % (v(P + 4 * q, 4), v(vPR), 256 * q))
    a('s_waitcnt lgkmcnt(2)')
    for h in range(2): a('v_pk_add_f32 %s, %s, %s' % (v(P + 2 * h, 2), v(P + 2 * h, 2), v(P + 4 + 2 * h, 2)))
    a('s_waitcnt lgkmcnt(0)')
    for h in range(2): a('v_pk_add_f32 %s, %s, %s' % (v(P + 8 + 2 * h, 2), v(P + 8 + 2 * h, 2), v(P + 12 + 2 * h, 2)))
    for h in range(2): a('v_pk_add_f32 %s, %s, %s' % (v(P + 2 * h, 2), v(P + 2 * h, 2), v(P + 8 + 2 * h, 2)))
    for k in range(4): a('v_mov_b32 %s, %s' % (v(P + 4 + k), v(P + k)))
    for k in range(4): a('v_permlane32_swap_b32 %s, %s' % (v(P + k), v(P + 4 + k)))
    for h in range(2): a('v_pk_add_f32 %s, %s, %s' % (v(P + 2 * h, 2), v(P + 2 * h, 2), v(P + 4 + 2 * h, 2)))
    KR = 152
    a('v_mul_f32 %s, %s, %s' % (v(P + 1), fh(-1 / 1024), v(P + 1)))
    a('v_mul_f32 %s, %s, %s' % (v(P + 2), fh(1 / 1024), v(P + 2)))
    a('v_fma_f32 %s, -%s, %s, %s' % (v(P + 2), v(P + 1), v(P + 1), v(P + 2)))
    a('v_cvt_pk_bf16_f32 %s, 0, %s' % (v(KR + 1), v(P + 1)))
    rbf(a, P + 2); a('v_add_f32 %s, %s, %s' % (v(P + 2), fh(1e-5), v(P + 2))); rbf(a, P + 2)
    a('v_sqrt_f32 %s, %s' % (v(P + 2), v(P + 2)))
    a('v_fmac_f32 %s, %s, %s' % (v(P), v(KR + 1), v(P + 3)))
    rbf(a, P + 2); a('v_rcp_f32 %s, %s' % (v(KR + 2), v(P + 2)))
    a('v_mov_b32 %s, s40' % v(KR + 3))
    a('v_mul_f32 %s, %s, %s' % (v(P), v(P), v(KR + 2))); rbf(a, P)
    a('v_ashrrev_i32 %s, 31, %s' % (v(P + 1), v(P))); a('v_or_b32 %s, 0x80000000, %s' % (v(P + 1), v(P + 1)))
    a('v_bitop3_b32 %s, %s, %s, %s bitop3:0x28' % (v(KR), v(P), v(P + 1), v(242)))
    a('v_or_b32 %s, %s, %s' % (v(KR), v(KR), v(vTK)))
    a('v_max_u32_dpp %s, %s, %s row_ror:1 %s' % (v(P), v(KR), v(KR), DPPF))
    for k in (2, 4, 8): a('v_max_u32_dpp %s, %s, %s row_ror:%d %s' % (v(P), v(P), v(P), k, DPPF))
    a('v_cmp_eq_u32 vcc, %s, %s' % (v(P), v(KR)))
    a('v_or_b32 %s, s24, %s' % (v(KR + 1), v(KR + 1)))
    a('s_mov_b64 exec, vcc')
    a('buffer_store_dwordx4 %s, %s, s[4:7], s26 offen sc1' % (v(KR, 4), v(vKA)))
    if DB & 2: a('s_add_u32 s26, s26, %d' % (32 * KS)); a('buffer_store_dwordx4 %s, %s, s[4:7], s26 offen sc1' % (v(KR, 4), v(vKA)))
    for q in range(4): a('buffer_store_dwordx4 %s, %s, s[4:7], s27 offen offset:%d sc1' % (v(HP + 4 * q, 4), v(vCA), 64 * q))
    a('s_mov_b64 exec, -1')
    st()
    a('s_setprio 0')
    a('s_ff1_i32_b64 s37, vcc')
    a('v_add_f32 %s, 1.0, %s' % (v(P), v(KR + 2))); a('v_and_b32 %s, v242, %s' % (v(P + 2), v(KR + 1))); a('v_mul_f32 %s, %s, %s' % (v(P + 2), v(P + 2), v(KR + 2)))
    for k in range(16): a('v_pk_fma_f32 %s, %s, %s, %s op_sel_hi:[1,0,0]' % (v(XD + 2 * k, 2), v(XD + 2 * k, 2), v(P, 2), v(P + 2, 2)))
    OP = 104
    pack(OP, XD, 32, 'bf16')
    a('ds_write_b128 %s, %s' % (v(vXR), v(OP, 4))); a('ds_write_b128 %s, %s offset:16' % (v(vXR), v(OP + 4, 4)))
    a('s_waitcnt lgkmcnt(0)'); a('s_barrier')
    a('ds_write_b16 %s, %s' % (v(vE0), v(OP))); a('ds_write_b16 %s, %s' % (v(vM0m), v(OP + 8)))
    for e in range(1, 16): a('ds_write_b16%s %s, %s offset:%d' % ('_d16_hi' if e & 1 else '', v(vXM), v(OP + 8 + (e >> 1)), 2 * (15 - e)))
    a('s_lshl_b32 s32, s3, 1'); a('s_add_u32 s33, s32, 1')
    a('v_readlane_b32 s34, %s, s32' % v(vT)); a('v_readlane_b32 s35, %s, s33' % v(vT))
    a('s_mul_i32 s38, s3, %d' % (2 * RS)); a('v_add_u32 v9, s38, %s' % v(vL16))
    a('s_lshl_b32 s34, s34, 11'); a('s_lshl_b32 s35, s35, 11')
    a('s_waitcnt lgkmcnt(0)'); a('s_barrier')
    for q in range(4): a('ds_read_b128 %s, v9 offset:%d' % (v(OP + 4 * q, 4), RS * (q >> 1) + 1024 * (q & 1)))
    OUTF = '' if '--outplain' in OPT else (' nt' if '--outnt' in OPT else ' sc1')
    a('s_lshr_b32 s59, s37, 1'); a('s_xor_b32 s18, s59, 1'); a('s_and_b32 s18, s18, 3')
    if '--wdearly' not in OPT:
        if OLATE:
            a('s_cmp_eq_u32 s59, s3'); a('s_cselect_b32 s38, 112, s23'); a('s_cmp_lt_u32 s38, 112'); a('s_cbranch_scc1 fz_sk1')
        else:
            a('s_cmp_lt_u32 s23, 112'); a('s_cselect_b32 s38, s18, 8'); a('s_cmp_eq_u32 s38, s3'); a('s_cbranch_scc1 fz_sk1')
    a('s_waitcnt lgkmcnt(0)')
    for r in range(2):
        a('s_cmp_eq_u32 s37, %s' % s(32 + r)); a('s_cbranch_scc1 fz_sk%d' % r)
        for q in range(0 if '--xnoout' in OPT else 2): a('buffer_store_dwordx4 %s, %s, s[12:15], %s offen offset:%d%s' % (v(OP + 8 * r + 4 * q, 4), v(vL16), s(34 + r), 1024 * q, OUTF))
        a.lines.append('fz_sk%d:' % r)
    a('v_and_b32 v15, 7, v4'); a('v_mul_u32_u24 v15, 544, v15'); a('v_lshl_add_u32 v15, v5, 4, v15'); a('v_add_u32 v15, %d, v15' % ACT)
    a('s_mul_i32 s63, s23, %d' % PPS); a('s_and_b32 s38, s3, 3'); a('s_lshl_b32 s38, s38, 10'); a('s_add_u32 s63, s63, s38'); a('s_add_u32 s63, s63, 0x%x' % POFF)
    a('s_lshl_b32 s38, s20, 10'); a('s_add_u32 s38, s38, 0x%x' % DOFF); a('s_cmp_lt_u32 s3, 4'); a('s_cselect_b32 s63, s38, s63')
    a('v_mov_b32 v14, 0xffffff00')
    a('s_cmp_eq_u32 s18, s3'); a('s_cbranch_scc1 fz_act')
    a('s_cmp_lg_u32 s59, s3'); a('s_cbranch_scc1 fz_f2')
    st()
    a('s_and_b32 s38, s20, 15'); a('s_add_u32 s38, s38, 16'); a('s_mul_i32 s38, s38, %d' % KS); a('s_add_u32 s38, s38, 0x%x' % KOFF)
    a('s_lshr_b32 s52, s20, 4'); a('s_lshl_b32 s52, s52, 7'); a('s_and_b32 s53, s20, 7'); a('s_lshl_b32 s53, s53, 4'); a('s_add_u32 s52, s52, s53')
    a('s_bfe_u32 s53, s20, 0x10003'); a('s_lshl_b32 s53, s53, 2'); a('s_add_u32 s52, s52, s53')
    a('v_and_b32 v2, 1, v1'); a('v_lshl_add_u32 v2, v2, 3, v5'); a('v_add_u32 v2, s52, v2')
    a('v_and_b32 v3, 31, v2'); a('v_lshrrev_b32 v6, 5, v2')
    a('v_cmp_gt_u32 vcc, 16, v6')
    a('v_cmp_lt_u32 s[52:53], 16, v3'); a('v_cmp_eq_u32 s[54:55], 0, v3'); a('s_and_b64 s[54:55], s[54:55], vcc'); a('s_or_b64 s[52:53], s[52:53], s[54:55]')
    a('v_cmp_eq_u32 s[54:55], 16, v3'); a('s_andn2_b64 s[54:55], s[54:55], vcc'); a('s_or_b64 s[52:53], s[52:53], s[54:55]')
    a('v_sub_u32 v7, 1024, v2'); a('v_cndmask_b32 v7, v2, v7, s[52:53]')
    a('v_mov_b32 v8, 512'); a('v_cmp_eq_u32 vcc, 1024, v7'); a('v_cndmask_b32 v7, v7, v8, vcc')
    a('v_lshrrev_b32 v8, 5, v7'); a('v_and_b32 v7, 15, v7')
    a('v_lshrrev_b32 v9, 2, v8'); a('v_lshlrev_b32 v9, 8, v9'); a('v_and_b32 v8, 3, v8'); a('v_lshl_add_u32 v9, v8, 4, v9')
    a('v_lshrrev_b32 v8, 3, v7'); a('v_lshl_add_u32 v9, v8, 6, v9'); a('v_and_b32 v7, 7, v7'); a('v_lshl_add_u32 v9, v7, 1, v9')
    a('v_cndmask_b32 v7, 0, 1, s[52:53]'); a('v_lshl_add_u32 v9, v7, 7, v9')
    a('v_lshlrev_b32 v2, 1, v2')
    a('v_lshrrev_b32 v3, 1, v1'); a('v_mul_u32_u24 v3, %d, v3' % PPS); a('v_and_b32 v6, 1, v1'); a('v_lshl_add_u32 v3, v6, 4, v3')
    a('v_mov_b32 v6, 0x7fffffff'); a('v_cmp_gt_u32 vcc, 32, v1'); a('v_cndmask_b32 v6, v6, v3, vcc')
    for k in range(4): a('v_mov_b32 v7, %s' % s(48 + k)); a('v_cndmask_b32 %s, 0, v7, vcc' % v(16 + k))
    a('s_lshl_b32 s52, s20, 5'); a('s_add_u32 s52, s52, 0x%x' % POFF)
    for u in range(1, 4): a('s_add_u32 %s, s52, %d' % (s(52 + u), 32 * u * PPS))
    K = 24
    a('s_mov_b32 s58, 0')
    a.label('fz_k2')
    a('buffer_load_dwordx4 %s, %s, s[4:7], s38 offen sc1' % (v(K, 4), v(vL16))); a('buffer_load_dwordx4 %s, %s, s[4:7], s38 offen offset:1024 sc1' % (v(K + 4, 4), v(vL16)))
    a('s_waitcnt vmcnt(0)')
    keys_argmax(K, None, 'fz_k2')
    a('v_cmp_eq_u32 vcc, s36, %s' % v(K)); a('v_cmp_eq_u32 s[56:57], s36, %s' % v(K + 4))
    a('v_cndmask_b32 %s, %s, %s, s[56:57]' % (v(K + 1), v(K + 1), v(K + 5))); a('v_cndmask_b32 %s, %s, %s, s[56:57]' % (v(K + 2), v(K + 2), v(K + 6)))
    a('s_cmp_lg_u64 vcc, 0'); a('s_cselect_b32 s39, 0, 64'); a('s_or_b64 vcc, vcc, s[56:57]'); a('s_ff1_i32_b64 s41, vcc')
    a('v_readlane_b32 s42, %s, s41' % v(K + 1)); a('v_readlane_b32 s43, %s, s41' % v(K + 2))
    a('s_add_u32 s39, s39, s41'); a('s_and_b32 s42, s42, 0xffff0000')
    a('s_cmp_eq_u32 s39, s20'); a('s_cbranch_scc1 fz_win')
    a('s_bitcmp1_b32 s37, 0'); a('s_cbranch_scc1 fz_d1')
    for q in range(2): a('buffer_store_dwordx4 %s, %s, s[12:15], s34 offen offset:%d%s' % (v(OP + 4 * q, 4), v(vL16), 1024 * q, OUTF))
    a('s_branch fz_win')
    a.lines.append('fz_d1:')
    for q in range(2): a('buffer_store_dwordx4 %s, %s, s[12:15], s35 offen offset:%d%s' % (v(OP + 8 + 4 * q, 4), v(vL16), 1024 * q, OUTF))
    a.lines.append('fz_win:')
    a('s_lshl_b32 s39, s39, 11'); a('s_add_u32 s39, s39, 0x%x' % COFF)
    a('s_mov_b32 s58, 0'); a('s_mov_b32 s41, 0xffff0000')
    a.label('fz_c2')
    a('buffer_load_short_d16_hi v10, v9, s[4:7], s39 offen sc1')
    a('s_waitcnt vmcnt(0)')
    a('v_cmp_eq_u32 vcc, s41, v10')
    poll_retry('fz_c2')
    a('v_add_f32 v11, s42, v10'); rbf(a, 11); a('v_mul_f32 v11, s43, v11'); rbf(a, 11)
    a('s_ashr_i32 s39, s36, 31'); a('s_not_b32 s39, s39'); a('s_or_b32 s39, s39, 0x80000000'); a('s_xor_b32 s39, s36, s39'); a('s_and_b32 s39, s39, 0xffff0000')
    a('v_mov_b32 v12, s39'); a('v_mul_f32 v12, %s, v12' % fh(-1.4426950408889634))
    a('v_exp_f32 v12, v12'); a('v_add_f32 v12, 1.0, v12'); a('v_rcp_f32 v12, v12'); rbf(a, 12)
    a('s_and_b32 s39, s36, 0xffff'); a('s_sub_u32 s39, 2047, s39'); a('s_lshl_b32 s39, s39, 11')
    PQ = 40
    a('v_mov_b32 v13, 0xff')
    a.lines.append('fz_f2:')
    st.n = 13; st()
    a('s_cmp_gt_u32 s23, 111'); a('s_cbranch_scc1 fz_nof2')
    a('s_barrier')
    a('s_cmp_eq_u32 s59, s3'); a('s_cselect_b32 s19, 4, s3'); a('s_cmp_lt_u32 s19, 4'); a('s_cbranch_scc1 fz_f2d')
    BH, ACC = 120, 152
    for q in range(8): a('ds_read_b128 %s, v15 offset:%d' % (v(BH + 4 * q, 4), 64 * q))
    for q in range(8):
        a('s_waitcnt lgkmcnt(%d)' % (7 - q))
        for h in range(2): a('v_mfma_f32_16x16x32_bf16 %s, %s, %s, %s' % (v(ACC + 4 * h, 4), v(BH + 4 * q, 4), v(WQ[2 * q + h], 4), v(ACC + 4 * h, 4) if q else '0'))
    a('s_mov_b32 exec_hi, 0')
    for h in range(2):
        for k in range(4): a('v_and_or_b32 %s, %s, v14, %s' % (v(ACC + 4 * h + k), v(ACC + 4 * h + k), s(48 + k)))
        a('buffer_store_dwordx4 %s, %s, s[4:7], s63 offen offset:%d sc1' % (v(ACC + 4 * h, 4), v(vL16), 512 * h))
    a.lines.append('fz_f2d:')
    a('s_mov_b32 exec_hi, -1')
    if OLATE: a('s_cmp_lg_u32 s59, s3'); a('s_cbranch_scc1 fz_late')
    else: a('s_cmp_eq_u32 s18, s3'); a('s_cbranch_scc1 fz_late')
    a('s_cmp_lg_u32 s59, s3'); a('s_cbranch_scc1 fz_xend')
    a('v_mov_b32 v7, 0')
    a('s_waitcnt vmcnt(0)')
    a('s_branch fz_p5_ok')
    a.label('fz_nof2')
    a('s_cmp_lg_u32 s59, s3'); a('s_cbranch_scc1 fz_xend')
    a('s_mov_b32 s58, 0'); a('s_and_b32 s41, s20, 63'); a('s_mul_i32 s41, s41, %d' % PPS); a('s_add_u32 s41, s41, s52'); a('v_mov_b32 v7, 0')
    a.label('fz_p5')
    a('buffer_load_dword v8, v7, s[4:7], s41 offen sc1')
    a('s_waitcnt vmcnt(0)')
    a('v_and_b32 v8, 0xff, v8'); a('v_cmp_ne_u32 vcc, s48, v8')
    poll_retry('fz_p5')
    a('s_mov_b32 s58, 0')
    st()
    def h5i(u): a('buffer_load_dwordx4 %s, %s, s[4:7], %s offen sc1' % (v(PQ + 4 * u, 4), 'v6' if u == 3 else 'v3', s(52 + u)))
    def h5c(u):
        for k in range(4): a('v_xor_b32 %s, %s, %s' % (v(PQ + 4 * u + k), v(16 + k) if u == 3 else s(48 + k), v(PQ + 4 * u + k)))
        a('v_or3_b32 v8, %s, %s, %s' % (v(PQ + 4 * u), v(PQ + 4 * u + 1), v(PQ + 4 * u + 2)))
        a('v_bitop3_b32 v8, v8, %s, v13 bitop3:0xa8' % v(PQ + 4 * u + 3))
        a('v_cmp_ne_u32 vcc, 0, v8')
    def h5a(u):
        if u:
            for h in range(2): a('v_pk_add_f32 %s, %s, %s' % (v(PQ + 2 * h, 2), v(PQ + 2 * h, 2), v(PQ + 4 * u + 2 * h, 2)))
    for u in range(4): h5i(u)
    prog_poll('fz_h5', 4, h5i, h5c, h5a)
    for i in range(2): a('v_permlane32_swap_b32 %s, %s' % (v(PQ + i), v(PQ + 2 + i)))
    a('v_pk_add_f32 %s, %s, %s' % (v(PQ, 2), v(PQ, 2), v(PQ + 2, 2)))
    a('v_permlane16_swap_b32 %s, %s' % (v(PQ), v(PQ + 1)))
    a('v_add_f32 %s, %s, %s' % (v(PQ), v(PQ), v(PQ + 1)))
    a('v_add_f32_dpp %s, %s, %s quad_perm:[2,3,0,1] %s' % (v(PQ), v(PQ), v(PQ), DPPF))
    a('v_add_f32_dpp %s, %s, %s row_ror:4 %s' % (v(PQ), v(PQ), v(PQ), DPPF))
    a('v_add_f32_dpp %s, %s, %s row_ror:8 %s' % (v(PQ), v(PQ), v(PQ), DPPF))
    rbf(a, PQ); a('v_mul_f32 %s, %s, v12' % (v(PQ), v(PQ))); rbf(a, PQ)
    a('v_add_f32 %s, %s, v11' % (v(PQ), v(PQ))); rbf(a, PQ)
    a('v_add_f32 %s, %s, v10' % (v(PQ), v(PQ))); rbf(a, PQ)
    a('s_mov_b32 exec_lo, 0x00030003'); a('s_mov_b32 exec_hi, 0x00030003')
    a('buffer_store_short_d16_hi %s, v2, s[12:15], s39 offen' % v(PQ))
    a('s_cmp_lg_u32 s20, 0'); a('s_cbranch_scc1 fz_xend')
    a('s_mov_b64 exec, 1'); a('v_mov_b32 v8, s40')
    a('buffer_store_dword v8, v7, s[4:7], 0 offen')
    a.lines.append('fz_xend:')
    st.n = 15; st()
    st.dump(n=16, sv=250, wave='s3')
    a.lines.append('fz_end:')
    a('s_endpgm')
    a.lines.append('fz_late:')
    for r in range(2):
        for q in range(2): a('buffer_store_dwordx4 %s, %s, s[12:15], %s offen offset:%d%s' % (v(OP + 8 * r + 4 * q, 4), v(vL16), s(34 + r), 1024 * q, OUTF))
    a('s_branch fz_xend')
    a.lines.append('fz_act:')
    a('s_cmp_gt_u32 s23, 111'); a('s_cbranch_scc1 fz_xend')
    a('v_lshlrev_b32 v2, 2, v1'); a('v_and_b32 v11, 3, v1'); a('v_mov_b32 v3, s48')
    for k in range(1, 4): a('v_cmp_eq_u32 vcc, %d, v11' % k); a('v_mov_b32 v10, %s' % s(48 + k)); a('v_cndmask_b32 v3, v3, v10, vcc')
    a('v_and_b32 v10, 31, v1'); a('v_lshlrev_b32 v6, 4, v10'); a('v_lshrrev_b32 v10, 5, v1'); a('v_mul_u32_u24 v10, %d, v10' % (4 * 546)); a('v_add_u32 v6, v6, v10'); a('v_add_u32 v6, %d, v6' % ACT)
    a('s_lshl_b32 s38, s23, 11'); a('s_add_u32 s38, s38, 0x%x' % XOFF)
    a('s_mov_b32 s58, 0')
    st.n = 12; st()
    a.lines.append('fz_h4:')
    for k in range(8): a('buffer_load_dword %s, v2, s[4:7], s38 offen offset:%d sc1' % (v(16 + k), 256 * k))
    for k in range(0, 8, 2):
        a('s_waitcnt vmcnt(%d)' % (6 - k))
        a('v_xor_b32 %s, v3, %s' % (v(16 + k), v(16 + k))); a('v_xor_b32 %s, v3, %s' % (v(17 + k), v(17 + k)))
        a('v_or3_b32 v10, %s, %s, %s' % (v(16 + k), v(17 + k), 'v10' if k else '0'))
        a('v_add_f32 %s, %s, %s' % (v(16 + k), v(16 + k), v(17 + k)))
        if k & 2: a('v_add_f32 %s, %s, %s' % (v(14 + k), v(14 + k), v(16 + k)))
    a('v_and_b32 v10, 0xff, v10'); a('v_add_f32 v8, v16, v20')
    a('v_cmp_ne_u32 vcc, 0, v10')
    poll_retry('fz_h4')
    rbf(a, 8)
    a('v_mov_b32 v9, v8')
    a('v_permlane32_swap_b32 v8, v9')
    a('v_mul_f32 v10, %s, v8' % fh(-1.4426950408889634))
    a('v_exp_f32 v10, v10')
    a('v_add_f32 v10, 1.0, v10'); a('v_rcp_f32 v10, v10')
    a('v_mul_f32 v8, v8, v10'); rbf(a, 8)
    a('v_mul_f32 v8, v8, v9'); rbf(a, 8)
    for m in range(4): a('ds_write_b16_d16_hi v6, v8 offset:%d' % (546 * m))
    a('s_waitcnt lgkmcnt(0)')
    a('s_branch fz_f2')
    a.lines.append('fz_ldh:')
    a('s_load_dwordx2 s[12:13], s[0:1], 56'); a('s_load_dwordx2 s[16:17], s[0:1], 64')
    srd(12, 0x700000); srd(16, 0x700000)
    a('s_branch fz_ldback')
    a.lines.append('fz_spec:')
    a('s_cmp_gt_u32 s3, 3'); a('s_cbranch_scc1 fz_spec_hi')
    for q, sa, sb in ((0, 0, 16), (2, 15, 17), (3, 18, 19)):
        a('s_cmp_eq_u32 s3, %d' % q); a('s_cselect_b32 s31, %d, s31' % (sa * RS)); a('s_cselect_b32 s30, %d, s30' % (sb * RS))
    a('s_branch fz_specback')
    a.lines.append('fz_spec_hi:')
    xload()
    if LATEX: extras()
    for q, ra, rb, sa, sb in ((0, 256, 1792, 4, 11), (1, 768, 1280, 6, 9), (2, 768, 1280, 20, 21), (3, 256, 1792, 22, 23)):
        a('s_cmp_eq_u32 s24, %d' % q); a('s_cselect_b32 s31, %d, s31' % (sa * RS)); a('s_cselect_b32 s30, %d, s30' % (sb * RS))
        a('s_cselect_b32 s27, %d, s27' % (ra * 2048)); a('s_cselect_b32 s28, %d, s28' % (rb * 2048))
    a('s_mov_b32 s57, 0')
    a('s_branch fz_specback')
    a.lines.append('fz_jb:')
    pack(JT, XAC, 16, 'bf16')
    a('s_branch fz_jend')
    a.lines.append('fz_spec4:')
    a('s_mov_b32 s38, 0x80018001'); a('s_mov_b32 s39, 0x80018001')
    for k in range(8): a('v_cndmask_b32 %s, %s, %s, s[38:39]' % (v(YM + k), v(YM + k), v(YD + k)))
    a('s_branch fz_spec4back')
    a.label('fz_nc1')
    a('s_setprio 0')
    a('s_cmp_lg_u32 s59, 0'); a('s_cbranch_scc1 ffn_b')
    if WF1: wdload(WE, 8)
    latex()
    if not WF1: wdload(WE, 8)
    a('s_waitcnt vmcnt(22)')
    tags2()
    a.lines.append('fz_bsp:')
    a('s_setprio 0'); a('s_mov_b32 s57, 1')
    a('s_cmp_gt_u32 s3, 5'); a('s_cbranch_scc1 fz_nocq')
    cq_job()
    a.lines.append('fz_nocq:')
    SETA()
    SETB('b')
    a('s_cmp_eq_u32 s2, %d' % SPID); a('s_cbranch_scc1 fz_sz')
    a('s_waitcnt vmcnt(%d)' % (0 if WF1 else 16 - 2 * WE))
    sync_add(0x100)
    a.lines.append('fz_sz:')
    a('ds_read_b32 v10, v15')
    a('s_waitcnt lgkmcnt(0)')
    a('v_cmp_ne_u32 vcc, s38, v10')
    a('s_cbranch_vccnz fz_sz')
    st.n = 5; st()
    SET2()
    st()
    a('s_waitcnt lgkmcnt(0)')
    a('s_branch fz_hb')
    a.label('fz_nc3')
    a('s_mov_b32 s58, 0')
    a('s_waitcnt vmcnt(0)')
    st.n = 9; st()
    a('s_branch fz_h2')
    for sfx in 'ab':
        a.lines.append('fz_spec3%s:' % sfx)
        a('v_xor_b32 v11, 1, v4'); a('v_cndmask_b32 v9, v9, v11, s[34:35]')
        a('v_and_b32 v11, 1, v4'); a('v_cndmask_b32 v11, 0, v11, s[34:35]'); a('v_sub_u32 v10, v10, v11')
        a('s_cmp_lg_u32 s22, 0'); a('s_cbranch_scc1 fz_spec3back%s' % sfx)
        for i, tt, pp, po in ((15, 1024, 124, 4), (13, 1536, 124, 6), (4, 256, 127, 8), (11, 1792, 127, 14), (6, 768, 127, 10), (9, 1280, 127, 12)):
            a('v_cmp_eq_u32 vcc, %d, v4' % i); a('v_mov_b32 v11, %d' % tt); a('v_mov_b32 v12, %d' % pp)
            a('v_cndmask_b32 %s, %s, v11, vcc' % (v(vT), v(vT))); a('v_cndmask_b32 v10, v10, v12, vcc'); a('v_cndmask_b32 v9, v9, %d, vcc' % po)
        a.flush(); a('s_branch fz_spec3back%s' % sfx)
    WF, WD, BH, ACC, K = 32, 96, 128, 192, 200
    SNT = '' if '--spl' in OPT else ' nt'
    def ffn_addr():
        a('s_bfe_u32 s21, s2, 0x30003')
        a('v_lshrrev_b32 v2, 5, v1'); a('v_and_b32 v3, 31, v1'); a('v_lshlrev_b32 v4, 1, v2'); a('v_xor_b32 v3, v4, v3')
        a('v_mul_u32_u24 v4, 7168, v2'); a('v_lshl_add_u32 v4, v3, 4, v4')
        for k in range(1, 4): a('v_xor_b32 %s, %d, v4' % (v(4 + k), 64 * k))
        a('s_lshl_b32 s23, s21, 7'); a('s_lshl_b32 s24, s3, 4'); a('s_add_u32 s23, s23, s24'); a('s_mul_i32 s23, s23, 7168'); a('s_lshl_b32 s24, s22, 9'); a('s_add_u32 s23, s23, s24')
        a('s_lshl_b32 s24, s3, 13')
    def gu(m, p):
        a('s_add_u32 s28, s24, %d' % ((0 if m else GT) + 1024 * p)); a('s_mov_b32 m0, s28'); a('s_add_u32 s29, s23, %d' % (p * 2 * 7168))
        if '--xnogu' not in OPT: a('buffer_load_dwordx4 %s, %s, s29 offen%s lds' % (v(4 + (p & 1) + 2 * (p >> 2)), s(16 if m else 12, 4), SNT))
    a.label('ffn_b')
    a('s_waitcnt vmcnt(0)')
    tags()
    a.label('ffn')
    st.n = 5; st()
    blk(22, 36)
    a('s_cmp_gt_u32 s22, 13'); a('s_cbranch_scc1 fz_xend')
    ffn_addr()
    if NE:
        a('s_cmp_lt_u32 s3, 4'); a('s_cbranch_scc1 ffn_g1')
        for p in range(NE): gu(0, p)
        a('s_barrier'); a('s_branch ffn_g2')
        a.lines.append('ffn_g1:')
    a('s_setprio 0'); a('s_barrier')
    for p in range(8):
        if NE and p == NE: a.lines.append('ffn_g2:')
        gu(0, p)
    if NE == 8: a.lines.append('ffn_g2:')
    for p in range(8): gu(1, p)
    a('v_lshrrev_b32 v2, 4, v1'); a('v_and_b32 v3, 15, v1')
    a('v_bfe_u32 v9, v1, 2, 2'); a('v_lshl_add_u32 v8, v2, 3, v9'); a('v_lshlrev_b32 v8, 9, v8')
    a('v_and_b32 v10, 1, v2'); a('v_lshl_add_u32 v10, v10, 2, v9'); a('s_lshl_b32 s28, s3, 1'); a('v_xor_b32 v10, s28, v10')
    a('v_lshl_add_u32 v8, v10, 5, v8'); a('v_and_b32 v10, 3, v1'); a('v_lshl_add_u32 v8, v10, 3, v8')
    a('v_xor_b32 v12, 32, v8'); a('v_add_u32 v13, %d, v8' % GT); a('v_add_u32 v20, %d, v12' % GT)
    a('v_bfe_u32 v9, v0, 2, 2'); a('v_lshrrev_b32 v10, 6, v0'); a('v_lshl_add_u32 v9, v10, 2, v9')
    a('v_bfe_u32 v10, v0, 4, 1'); a('v_and_b32 v11, 3, v0'); a('v_lshlrev_b32 v11, 1, v11'); a('v_lshl_add_u32 v10, v10, 3, v11')
    a('v_lshl_add_u32 v11, v9, 5, v10'); a('v_add_u32 v17, 1, v11')
    a('v_cmp_eq_u32 vcc, 0, v10'); a('v_cmp_gt_u32 s[28:29], 16, v9'); a('s_and_b64 vcc, vcc, s[28:29]'); a('v_cndmask_b32 v14, 0, 16, vcc'); a('v_add_u32 v16, v11, v14')
    a('v_bfe_u32 v10, v0, 5, 1'); a('v_cmp_eq_u32 s[28:29], 1, v10')
    a('v_sub_u32 v14, 1024, v16'); a('v_cmp_eq_u32 vcc, 512, v16'); a('v_cndmask_b32 v14, v14, 0, vcc'); a('v_cndmask_b32 v16, v16, v14, s[28:29]')
    a('v_sub_u32 v14, 1024, v17'); a('v_cndmask_b32 v17, v17, v14, s[28:29]')
    for r in (16, 17): a('v_lshlrev_b32 %s, 1, %s' % (v(r), v(r))); a('v_add_u32 %s, %d, %s' % (v(r), HN, v(r)))
    a('v_lshlrev_b32 v18, 2, v0'); a('v_add_u32 v18, %d, v18' % RAW)
    a('s_lshl_b32 s28, s21, 8'); a('s_add_u32 s28, s28, %d' % HN); a('v_lshlrev_b32 v19, 4, v2'); a('v_add_u32 v19, s28, v19')
    a('v_mov_b32 v28, %d' % MSG)
    a('v_lshlrev_b32 v29, 4, v1')
    a('s_lshl_b32 s30, s22, 3'); a('s_add_u32 s30, s30, s3'); a('s_lshl_b32 s30, s30, 3'); a('s_add_u32 s30, s30, s21'); a('s_lshl_b32 s30, s30, 8'); a('s_add_u32 s30, s30, 0x%x' % XOFF)
    a('v_lshlrev_b32 v30, 4, v2'); a('v_lshl_add_u32 v30, v3, 6, v30')
    for k in range(1, 4): a('v_cmp_eq_u32 %s, %d, v3' % (s(58 + 2 * k, 2), k))
    a('v_add_u32 v21, %d, v29' % RAW)
    a('v_mov_b32 %s, 0xffffff00' % v(197))
    a('s_and_b32 s35, s2, 0x47'); a('s_lshl_b32 s31, s3, 3'); a('s_add_u32 s35, s35, s31'); a('s_add_u32 s35, s35, %d' % POFS); a('s_and_b32 s35, s35, 127')
    a('s_getreg_b32 s33, hwreg(HW_REG_XCC_ID)'); a('s_and_b32 s33, s33, 15')
    a('s_lshr_b32 s31, s35, 5'); a('s_lshl_b32 s31, s31, 2'); a('s_add_u32 s31, s31, %d' % (MSG + 16)); a('v_mov_b32 v22, s31')
    a('s_lshl_b32 s20, s22, 3'); a('s_add_u32 s20, s20, s21')
    a('s_and_b32 s34, s20, 15')
    if DB & 2: a('s_bfe_u32 s28, s20, 0x10004'); a('s_lshl_b32 s28, s28, 5'); a('s_add_u32 s34, s34, s28')
    a('s_mul_i32 s34, s34, %d' % KS); a('s_add_u32 s34, s34, 0x%x' % KOFF)
    a('s_waitcnt vmcnt(0)')
    a('s_barrier')
    st()
    for T_, ad in enumerate((13, 20, 8, 12)):
        for k in range(4):
            for hh in range(2): a('ds_read_b64_tr_b16 %s, %s offset:%d' % (v(WF + 16 * T_ + 4 * k + 2 * hh, 2), v(ad), 16384 * k + 2048 * hh))
        a('s_waitcnt lgkmcnt(0)')
    st()
    a('s_cmp_lg_u32 s3, 0'); a('s_cbranch_scc1 ffn_w3')
    if KP == 0:
        a('s_lshl_b32 s28, s20, 4'); a('s_add_u32 s28, s28, s34'); a('v_mov_b32 v10, %d' % (12 + (16 * KS if DB & 1 else 0)))
        a.label('ffn_p3')
        a('buffer_load_dword v11, v10, s[4:7], s28 offen sc1')
        a('s_waitcnt vmcnt(0)')
        a('v_cmp_ne_u32 vcc, s40, v11')
        poll_retry('ffn_p3')
        a('s_mov_b32 s58, 0')
        st()
        a.label('ffn_k3')
        a('buffer_load_dwordx4 %s, v29, s[4:7], s34 offen sc1' % v(K, 4)); a('buffer_load_dwordx4 %s, v29, s[4:7], s34 offen offset:1024 sc1' % v(K + 4, 4))
        a('s_waitcnt vmcnt(0)')
        keys_argmax(K, None, 'ffn_k3')
    else:
        st()
        KSET = [216 + 8 * i for i in range(KP)]
        def ki(r): a('buffer_load_dwordx4 %s, v29, s[4:7], s34 offen sc1' % v(r, 4)); a('buffer_load_dwordx4 %s, v29, s[4:7], s34 offen offset:1024 sc1' % v(r + 4, 4))
        for r in KSET[:-1]: ki(r)
        a.lines.append('ffn_k3:')
        for i, r in enumerate(KSET):
            ki(KSET[i - 1])
            a('s_waitcnt vmcnt(%d)' % (2 * KP - 2))
            for k in range(8): a('v_mov_b32 %s, %s' % (v(K + k), v(r + k)))
            a('v_max_u32 %s, %s, %s' % (v(K + 10), v(K), v(K + 4)))
            a('v_xor_b32 %s, s40, %s' % (v(K + 8), v(K + 3))); a('v_xor_b32 %s, s40, %s' % (v(K + 9), v(K + 7)))
            for pat in ['quad_perm:[1,0,3,2] ' + DPPF, 'quad_perm:[2,3,0,1] ' + DPPF, 'row_half_mirror ' + DPPF,
                        'row_mirror ' + DPPF, 'row_bcast:15 row_mask:0xa bank_mask:0xf', 'row_bcast:31 row_mask:0xc bank_mask:0xf']:
                a('v_max_u32_dpp %s, %s, %s %s' % (v(K + 10), v(K + 10), v(K + 10), pat))
            a('v_or_b32 %s, %s, %s' % (v(K + 8), v(K + 8), v(K + 9)))
            a('v_readlane_b32 s36, %s, 63' % v(K + 10))
            a('v_cmp_ne_u32 vcc, 0, %s' % v(K + 8))
            a('s_cbranch_vccz ffn_k3_ok')
        a('s_add_u32 s58, s58, 1'); a('s_cmp_lt_u32 s58, 0x%x' % MAXPOLL); a('s_cbranch_scc1 ffn_k3')
        a.label('ffn_k3_ok')
    a('v_cmp_eq_u32 vcc, s36, %s' % v(K)); a('v_cmp_eq_u32 s[28:29], s36, %s' % v(K + 4))
    a('s_cmp_lg_u64 vcc, 0'); a('s_cselect_b32 s39, 0, 64'); a('s_or_b64 vcc, vcc, s[28:29]'); a('s_ff1_i32_b64 s41, vcc')
    a('s_add_u32 s39, s39, s41'); a('s_lshl_b32 s39, s39, 11'); a('s_add_u32 s39, s39, 0x%x' % COFF)
    a('s_mov_b32 s58, 0')
    st()
    CR = BH
    a.lines.append('ffn_c3:')
    a('buffer_load_dwordx4 %s, v29, s[4:7], s39 offen sc1' % v(CR, 4)); a('buffer_load_dwordx4 %s, v29, s[4:7], s39 offen offset:1024 sc1' % v(CR + 4, 4))
    a('v_and_b32 v10, 15, %s' % v(K + 1)); a('v_and_b32 v11, 15, %s' % v(K + 5))
    a('v_cmp_eq_u32 s[24:25], s33, v10'); a('v_cmp_eq_u32 s[26:27], s33, v11')
    for k in range(4): a('v_mov_b32 %s, %s' % (v(K + 12 + k), s(24 + k) if LOCAL else '0'))
    for k in range(1, 3): a('v_cndmask_b32 %s, %s, %s, s[28:29]' % (v(K + 8 + k), v(K + k), v(K + 4 + k)))
    a('v_and_b32 %s, 0xffff0000, %s' % (v(K + 9), v(K + 9)))
    a('s_mov_b64 s[42:43], vcc'); a('s_mov_b64 exec, vcc')
    a('ds_write_b128 v28, %s' % v(K + 8, 4)); a('ds_write_b128 v28, %s offset:16' % v(K + 12, 4))
    a('s_mov_b64 exec, -1')
    a('s_waitcnt vmcnt(1)')
    a('ds_write_b128 v21, %s' % v(CR, 4))
    a('v_max3_u32 v10, %s, %s, %s' % (v(CR), v(CR + 1), v(CR + 2)))
    a('s_waitcnt vmcnt(0)')
    a('ds_write_b128 v21, %s offset:1024' % v(CR + 4, 4))
    a('v_max3_u32 v10, v10, %s, %s' % (v(CR + 3), v(CR + 4))); a('v_max3_u32 v11, %s, %s, %s' % (v(CR + 5), v(CR + 6), v(CR + 7))); a('v_max_u32 v10, v10, v11')
    a('v_cmp_eq_u32 vcc, -1, v10')
    a('s_cbranch_vccnz ffn_c3_rt')
    a.lines.append('ffn_c3_ok:')
    a('s_waitcnt lgkmcnt(0)')
    a.label('ffn_w3')
    a('s_barrier')
    st.n = 10; st()
    a('ds_read_b32 v11, v18'); a('ds_read_b128 %s, v28' % v(K, 4)); a('ds_read_b32 %s, v22' % v(K + 3))
    a('s_mov_b32 s28, 0xffff0000')
    a('s_waitcnt lgkmcnt(2)')
    a('v_lshlrev_b32 v14, 16, v11'); a('v_and_b32 v15, s28, v11')
    a('s_waitcnt lgkmcnt(0)')
    for r in (14, 15): a('v_add_f32 %s, %s, %s' % (v(r), v(r), v(K + 1)))
    for r in (14, 15): rbf(a, r)
    for r in (14, 15): a('v_mul_f32 %s, %s, %s' % (v(r), v(r), v(K + 2)))
    a('v_cvt_pk_bf16_f32 v14, v14, v15')
    a('ds_write_b16 v16, v14'); a('ds_write_b16_d16_hi v17, v14')
    a('v_readfirstlane_b32 s24, %s' % v(K + 3))
    a('s_waitcnt lgkmcnt(0)'); a('s_barrier')
    st()
    for k in range(4): a('ds_read_b128 %s, v19 offset:%d' % (v(BH + 4 * k, 4), 64 * k))
    AC = 144
    for k in range(4):
        a('s_waitcnt lgkmcnt(%d)' % (3 - k))
        for T_ in range(4): a('v_mfma_f32_16x16x32_bf16 %s, %s, %s, %s' % (v((AC + 4 * T_) if T_ else ACC, 4), v(WF + 16 * T_ + 4 * k, 4), v(BH + 4 * k, 4), v((AC + 4 * T_) if T_ else ACC, 4) if k else '0'))
    for T_ in range(1, 4):
        for k in range(4): a('v_cndmask_b32 %s, %s, %s, %s' % (v(ACC + k), v(ACC + k), v(AC + 4 * T_ + k), s(58 + 2 * T_, 2)))
    a('s_mov_b32 exec_lo, 0x000f000f'); a('s_mov_b32 exec_hi, 0x000f000f')
    for k in range(4): a('v_and_or_b32 %s, %s, %s, %s' % (v(ACC + k), v(ACC + k), v(197), s(48 + k)))
    a('s_bitcmp1_b32 s24, s35'); a('s_cbranch_scc0 ffn_rem')
    a('buffer_store_dwordx4 %s, v30, s[4:7], s30 offen' % v(ACC, 4))
    a.lines.append('ffn_fin:')
    st()
    st.dump(sv=250, wave='s3')
    a('s_endpgm')
    a.lines.append('ffn_rem:')
    a('buffer_store_dwordx4 %s, v30, s[4:7], s30 offen sc1' % v(ACC, 4))
    a('s_branch ffn_fin')
    a.lines.append('ffn_c3_rt:')
    a('s_mov_b64 vcc, s[42:43]'); a('s_add_u32 s58, s58, 1'); a('s_cmp_lt_u32 s58, 0x%x' % MAXPOLL); a('s_cbranch_scc1 ffn_c3'); a('s_branch ffn_c3_ok')
    emit_stubs()
    a.lines.append('fz_codeend:')

def main(path):
    ref = open('/code/%s.s.ref' % NAME).read().splitlines()
    for l in ref:
        if l.startswith('; Override'): break
        a.raw(l)
    a.raw('; @launch kernel=fz_kernel grid=(256,1,1) block=(512,1,1) lds=163840')
    if STAMPS: a.raw('; @groups fftA=0-127:0-3,fftB=0-127:4-7,ffn=128-255:0-0')
    a.raw('.amdgcn_target "amdgcn-amd-amdhsa--gfx950"'); a.raw('.text')
    gen()
    a.raw('.section .rodata,"a"')
    a.raw('\n'.join(['.p2align 6', '.amdhsa_kernel fz_kernel', '  .amdhsa_next_free_vgpr 256', '  .amdhsa_next_free_sgpr 102',
        '  .amdhsa_accum_offset 256', '  .amdhsa_group_segment_fixed_size 0', '  .amdhsa_kernarg_size 104', '  .amdhsa_user_sgpr_count 2',
        '  .amdhsa_user_sgpr_kernarg_segment_ptr 1', '  .amdhsa_system_sgpr_workgroup_id_x 1', '.end_amdhsa_kernel', '']))
    open(path, 'w').write(a.text())
    print('wrote', path, 'lines', len(a.lines), 'nops', a.nops)
if __name__ == '__main__':
    ps = [x for x in sys.argv[1:] if x.endswith('.s')]
    main(ps[0] if ps else '/code/%s.s' % NAME)
```

```python
import struct, sys
import os; _d = os.path.dirname(os.path.abspath(__file__)); sys.path.insert(0, _d); sys.path.insert(0, _d + '/mb')
from asmlib import Asm
from mblib import St
NAME = 'sequential_preLN__spectral_fnet__moe_arch_mod__prompt'
def fh(x): return '0x%08x' % struct.unpack('<I', struct.pack('<f', x))[0]
OPT = set(a for a in sys.argv[1:] if a.startswith('--'))
def optv(name, d):
    for o in OPT:
        if o.startswith('--%s=' % name): return int(o.split('=')[1])
    return d
STAMPS = '--stamps' in OPT
def v(i, n=1): return 'v%d' % i if n == 1 else 'v[%d:%d]' % (i, i + n - 1)
def s(i, n=1): return 's%d' % i if n == 1 else 's[%d:%d]' % (i, i + n - 1)
DPPF = 'row_mask:0xf bank_mask:0xf'
X1 = 'quad_perm:[1,0,3,2] ' + DPPF
def rbf(a, r): a('v_cvt_pk_bf16_f32 %s, 0, %s' % (v(r), v(r)))
def kr(r): return (r & 3) + 8 * (r >> 2)
PS = 16384 + 128
WOFF = 0x1000; YOFF = 0x210000; KOFF = 0x420000; KS = 2048 + 128; COFF = 0x440000; XOFF = 0x481000; POFF = 0x4c0000; PPS = 4096 + 128
WSB = 0x540000
RS = 2064
CT = 24 * RS; SB = CT + 18432; AB = SB + 18432; CPS = 8192 + 64; PR = AB + 2 * CPS; WR = PR + 2048; TRASH = WR + 2048; ACT = TRASH + 1024
GT = 81920; SP = 65536; HN = GT + 65536; MSG = HN + 2048; RAW = MSG + 64
MAXPOLL = 0x10000
class Asm2(Asm):
    def __call__(self, text):
        if text.startswith('v_cndmask_b32 '): text = 'v_cndmask_b32_e64 ' + text[14:]
        Asm.__call__(self, text)
a = Asm2(); st = St(a, STAMPS)
stubs = []
def poll_retry(name, cnt=58):
    a('s_cbranch_vccnz %s_rt' % name)
    a.lines.append('%s_ok:' % name)
    stubs.append((name, cnt))
def emit_stubs():
    for name, cnt in stubs:
        a.lines.append('%s_rt:' % name)
        a('s_add_u32 %s, %s, 1' % (s(cnt), s(cnt))); a('s_cmp_lt_u32 %s, 0x%x' % (s(cnt), MAXPOLL))
        a('s_cbranch_scc1 %s' % name); a('s_branch %s_ok' % name)
def angles(mulreg, basereg, ks, tmp):
    for i, k in enumerate(ks):
        if k == 0: a('v_mov_b32 %s, %s' % (v(tmp + i), v(basereg)))
        else: a('v_fmamk_f32 %s, %s, %s, %s' % (v(tmp + i), v(mulreg), fh(float(k)), v(basereg)))
def trig(fn, t, n):
    for i in range(n): a('v_%s_f32 %s, %s' % (fn, v(t + i), v(t + i)))
def pack(dst, t, n, kind='f16'):
    for p in range(n // 2): a('v_cvt_pk_%s_f32 %s, %s, %s' % (kind, v(dst + p), v(t + 2 * p), v(t + 2 * p + 1)))
def tags():
    a('s_add_u32 s40, s40, 1'); a('s_and_b32 s38, s40, 3'); a('s_and_b32 s39, s40, 15')
    for i in range(4):
        a('s_bfe_u32 s41, s40, 0x%x' % ((2 << 16) | (2 * i + 2))); a('s_lshl_b32 s41, s41, 16'); a('s_or_b32 %s, s38, s41' % s(44 + i))
        a('s_bfe_u32 s41, s40, 0x%x' % ((4 << 16) | (4 * i + 4))); a('s_lshl_b32 s41, s41, 4'); a('s_or_b32 %s, s39, s41' % s(48 + i))
def srd(d, nbytes): a('s_mov_b32 %s, 0x%x' % (s(d + 2), nbytes)); a('s_mov_b32 %s, 0x00020000' % s(d + 3))
def blk(dst, tmp):
    a('s_add_u32 %s, s2, 4' % s(tmp)); a('s_and_b32 %s, %s, 7' % (s(tmp), s(tmp))); a('s_bfe_u32 %s, s2, 0x10006' % s(tmp + 1))
    a('s_lshl_b32 %s, %s, 1' % (s(dst), s(tmp))); a('s_add_u32 %s, %s, %s' % (s(dst), s(dst), s(tmp + 1)))
    a('s_cmp_lg_u32 %s, 0' % s(tmp + 1)); a('s_cselect_b32 %s, 8, %s' % (s(tmp + 1), s(tmp))); a('s_add_u32 %s, %s, 6' % (s(tmp + 1), s(tmp + 1)))
    a('s_cmp_lt_u32 %s, 6' % s(tmp)); a('s_cselect_b32 %s, %s, %s' % (s(dst), s(dst), s(tmp + 1)))
def keys_argmax(K, gidx, name):
    a('v_xor_b32 %s, s40, %s' % (v(K + 8), v(K + 3))); a('v_xor_b32 %s, s40, %s' % (v(K + 9), v(K + 7)))
    a('v_max_u32 %s, %s, %s' % (v(K + 10), v(K), v(K + 4)))
    a('v_or_b32 %s, %s, %s' % (v(K + 8), v(K + 8), v(K + 9)))
    a('v_cmp_ne_u32 vcc, 0, %s' % v(K + 8))
    poll_retry(name)
    for pat in ['quad_perm:[1,0,3,2] ' + DPPF, 'quad_perm:[2,3,0,1] ' + DPPF, 'row_half_mirror ' + DPPF,
                'row_mirror ' + DPPF, 'row_bcast:15 row_mask:0xa bank_mask:0xf', 'row_bcast:31 row_mask:0xc bank_mask:0xf']:
        a('v_max_u32_dpp %s, %s, %s %s' % (v(K + 10), v(K + 10), v(K + 10), pat))
    a('v_readlane_b32 s36, %s, 63' % v(K + 10))

def gen():
    PFC = optv('pfc', 2)
    TOUCH = optv('touch', 0); LOCAL = '--nolocal' not in OPT
    NE = optv('ne', 0); LATEX = '--earlyx' not in OPT
    a.raw('.globl fz_kernel'); a.raw('.p2align 8'); a.raw('.type fz_kernel,@function'); a.lines.append('fz_kernel:')
    st()
    if STAMPS:
        for i in range(1, 16): a('s_mov_b32 s%d, -1' % (70 + 2 * i))
    F1, TC, TS, C2, S2, B3C, B3S, CQ = 16, 24, 32, 40, 48, 56, 64, 72
    XA, XB, XAC, XBC, H, T, TP, ST = 88, 96, 104, 120, 136, 144, 152, 160
    XD, WV = 168, 200
    vSW, vSR, vWST, vHL, vA0, vA1, vAR, vY0, vY1, vYL, vM, vT, vXR, vXM, vE0, vM0, vYE, vZM = 216, 217, 221, 222, 223, 224, 225, 226, 227, 228, 229, 230, 231, 232, 233, 234, 236, 238
    vL16, vSG, vM0m, vPW, vPD, vPR, vKA, vCA, vTK, vMT, vE = 239, 240, 241, 243, 244, 245, 246, 247, 248, 249, 252
    a('s_load_dwordx2 s[4:5], s[0:1], 96'); a('s_load_dwordx2 s[8:9], s[0:1], 0')
    a('s_cmp_gt_u32 s2, 255'); a('s_cbranch_scc1 fz_end')
    a('v_lshrrev_b32 v2, 6, v0'); a('v_and_b32 v1, 63, v0')
    a('s_lshr_b32 s59, s2, 7')
    a('v_readfirstlane_b32 s3, v2')
    if PFC:
        a('s_and_b32 s20, s2, 127'); a('s_cmp_lt_u32 s20, %d' % (8 * PFC)); a('s_cselect_b32 s20, s3, 0'); a('s_cmp_lt_u32 s20, 4'); a('s_cbranch_scc1 fz_pfcback')
        a('s_getpc_b64 s[20:21]')
        a.lines.append('fz_pcb:')
        a('s_sub_u32 s20, s20, fz_pcb-fz_kernel'); a('s_subb_u32 s21, s21, 0')
        a('v_and_b32 v3, 255, v0'); a('v_lshlrev_b32 v3, 7, v3'); a('v_min_u32 v3, fz_codeend-fz_kernel-4, v3')
        a('v_mov_b32 v5, s21'); a('v_add_co_u32 v4, vcc, s20, v3'); a('v_addc_co_u32 v5, vcc, 0, v5, vcc')
        a('global_load_dword v15, v[4:5], off')
        a.lines.append('fz_pfcback:')
    a('s_cmp_lg_u32 s59, 0'); a('s_cbranch_scc1 fz_ldh')
    a('s_load_dwordx2 s[12:13], s[0:1], 80'); a('s_load_dwordx2 s[16:17], s[0:1], 48'); a('s_load_dwordx2 s[64:65], s[0:1], 72')
    a.lines.append('fz_ldback:')
    a('s_add_u32 s20, s2, 124'); a('s_and_b32 s20, s20, 127')
    a('s_lshr_b32 s21, s20, 3'); a('s_add_u32 s21, s21, 1'); a('s_and_b32 s22, s20, 7')
    a('s_sub_u32 s23, s20, 124'); a('s_cmp_ge_u32 s20, 124'); a('s_cselect_b32 s21, 0, s21'); a('s_cselect_b32 s22, s23, s22')
    a('s_lshr_b32 s57, s3, 2'); a('s_or_b32 s23, s57, s59'); a('s_and_b32 s24, s3, 3')
    a('s_lshl_b32 s25, s22, 6'); a('s_add_u32 s25, s25, s21')
    a('s_lshl_b32 s26, s23, 5'); a('s_add_u32 s26, s26, s25')
    a('s_lshl_b32 s27, s24, 9'); a('s_add_u32 s28, s26, s27')
    a('s_sub_u32 s27, 2048, s27'); a('s_sub_u32 s27, s27, s26')
    a('s_lshl_b32 s29, s24, 1'); a('s_add_u32 s29, s29, s23'); a('s_sub_u32 s30, 15, s29')
    a('s_cmp_lt_u32 s24, 2'); a('s_cselect_b32 s27, s28, s27'); a('s_cselect_b32 s31, s29, s30'); a('s_cselect_b32 s30, s30, s29')
    a('s_sub_u32 s28, 2048, s27'); a('s_and_b32 s28, s28, 2047')
    a('s_lshl_b32 s27, s27, 11'); a('s_lshl_b32 s28, s28, 11')
    a('s_mul_i32 s31, s31, %d' % RS); a('s_mul_i32 s30, s30, %d' % RS)
    a('v_lshlrev_b32 %s, 4, v1' % v(vL16))
    srd(8, 2048 * 2048); srd(4, WSB)
    a('s_and_b32 s32, s57, s59')
    a('s_mov_b32 s58, 0')
    a('s_waitcnt lgkmcnt(0)')
    st()
    a('s_cmp_eq_u32 s2, 0'); a('s_cbranch_scc1 fz_spec')
    a.lines.append('fz_specback:')
    def xload():
        a('s_mov_b32 m0, s31'); a('s_nop 0')
        a('buffer_load_dwordx4 %s, s[8:11], s27 offen lds' % v(vL16)); a('buffer_load_dwordx4 %s, s[8:11], s27 offen offset:1024 lds' % v(vL16))
        a('s_mov_b32 m0, s30'); a('s_nop 0')
        a('buffer_load_dwordx4 %s, s[8:11], s28 offen lds' % v(vL16)); a('buffer_load_dwordx4 %s, s[8:11], s28 offen offset:1024 lds' % v(vL16))
    def extras():
        a('v_lshlrev_b32 v14, 3, v0'); a('v_mov_b32 v10, -1'); a('v_mov_b32 v11, -1'); a('s_lshl_b32 s32, s20, 11'); a('s_add_u32 s32, s32, 0x%x' % (COFF - 2048))
        srd(16, 2048)
        a('s_lshl_b32 s33, s24, 10'); a('s_min_u32 s34, s33, 2048'); a('s_add_u32 s34, s34, %d' % WR); a('s_mov_b32 m0, s34')
        a('buffer_store_dwordx2 v[10:11], v14, s[4:7], s32 offen sc1')
        a('buffer_load_dwordx4 %s, s[16:19], s33 offen lds' % v(vL16))
    def latex(): xload(); extras()
    a('s_cmp_lg_u32 %s, 0' % ('s57' if LATEX else 's32')); a('s_cbranch_scc1 fz_nox')
    xload()
    a.lines.append('fz_nox:')
    a('s_load_dword s40, s[4:5], 0')
    if not LATEX:
        a('s_andn2_b32 s32, s3, 3'); a('s_cmp_gt_u32 s32, s59'); a('s_cselect_b32 s32, 1, 0'); a('s_andn2_b32 s32, s32, s59'); a('s_cbranch_scc0 fz_noclr')
        extras()
        a.lines.append('fz_noclr:')
    a('v_and_b32 v2, 31, v1'); a('v_lshrrev_b32 v3, 5, v1'); a('v_and_b32 v4, 15, v1'); a('v_lshrrev_b32 v5, 4, v1')
    a('v_add_u32 v6, %d, %s' % (CT, v(vL16)))
    TT = XAC
    def put(base, n):
        for q in range(n // 4): a('ds_write_b128 v6, %s offset:%d' % (v(base + 4 * q, 4), 1024 * ((base - F1) // 4 + q)))
    def sigf(dst, t):
        a('v_lshrrev_b32 %s, 1, v2' % v(t)); a('v_and_b32 %s, 9, %s' % (v(dst), v(t)))
        a('v_and_b32 %s, 2, %s' % (v(t + 1), v(t))); a('v_lshl_or_b32 %s, %s, 1, %s' % (v(dst), v(t + 1), v(dst)))
        a('v_bfe_u32 %s, %s, 2, 1' % (v(t + 1), v(t))); a('v_lshl_or_b32 %s, %s, 1, %s' % (v(dst), v(t + 1), v(dst)))
    def cq_job(tau, fns):
        a('v_and_b32 v8, 3, v4'); a('v_lshrrev_b32 v9, 2, v4'); a('v_lshl_add_u32 v8, v8, 3, v9'); a('v_add_u32 v8, %d, v8' % (4 * tau))
        a('v_cvt_f32_u32 v8, v8'); a('v_mul_f32 v8, %s, v8' % fh(1 / 32)); a('v_cvt_f32_u32 v9, v5'); a('v_mul_f32 v9, 4.0, v9'); a('v_mul_f32 v9, v8, v9')
        for fn in fns:
            angles(8, 9, [0, 1, 2, 3, 16, 17, 18, 19], TT); trig(fn, TT, 8)
            for i in range(8): a('v_mul_f32 %s, %s, %s' % (v(TT + i), fh(1 / 16), v(TT + i)))
            d = CQ + 8 * tau + (4 if fn == 'sin' else 0); pack(d, TT, 8); put(d, 4)
    for jb in range(1, 8): a('s_cmp_eq_u32 s3, %d' % jb); a('s_cbranch_scc1 fz_j%d' % jb)
    sigf(8, 10); a('v_and_b32 v9, 1, v2'); a('v_cmp_eq_u32 vcc, 1, v2')
    a('v_cndmask_b32 v8, v8, 16, vcc'); a('v_cndmask_b32 v9, v9, 0, vcc')
    a('v_cvt_f32_u32 v8, v8'); a('v_cvt_f32_u32 v9, v9'); a('v_cvt_f32_u32 v10, v3')
    a('v_mul_f32 v8, %s, v8' % fh(1 / 32)); a('v_mul_f32 v9, %s, v9' % fh(0.25)); a('v_mul_f32 v10, %s, v10' % fh(8.0)); a('v_fma_f32 v9, v8, v10, v9')
    angles(8, 9, list(range(8)) + list(range(16, 24)), TT); trig('cos', TT, 16); pack(F1, TT, 16, 'bf16'); put(F1, 8)
    a('s_branch fz_jend')
    for jb, fn, dst in ((1, 'cos', TC), (2, 'sin', TS)):
        a.label('fz_j%d' % jb)
        sigf(8, 10); a('v_cvt_f32_u32 v8, v8'); a('v_mul_f32 v8, %s, v8' % fh(1 / 1024))
        if fn == 'sin': a('v_lshlrev_b32 v9, 31, v2'); a('v_xor_b32 v8, v9, v8')
        a('v_cvt_f32_u32 v9, v3'); a('v_mul_f32 v9, 4.0, v9'); a('v_mul_f32 v9, v8, v9')
        if fn == 'cos':
            a('v_cmp_eq_u32 vcc, 1, v2'); a('v_mov_b32 v10, %s' % fh(0.25)); a('v_cndmask_b32 v9, v9, v10, vcc')
        angles(8, 9, [kr(r) for r in range(16)], TT); trig(fn, TT, 16); pack(dst, TT, 16); put(dst, 8)
        a('s_branch fz_jend')
    for jb, fn, dst in ((3, 'cos', C2), (4, 'sin', S2)):
        a.label('fz_j%d' % jb)
        a('v_cvt_f32_u32 v8, v2'); a('v_mul_f32 v8, %s, v8' % fh(1 / 32)); a('v_cvt_f32_u32 v9, v3'); a('v_mul_f32 v9, 4.0, v9'); a('v_mul_f32 v9, v8, v9')
        angles(8, 9, [kr(r) for r in range(16)], TT); trig(fn, TT, 16); pack(dst, TT, 16); put(dst, 8)
        a('s_branch fz_jend')
    for jb, ph, dst in ((5, 0.0, B3C), (6, 0.25, B3S)):
        a.label('fz_j%d' % jb)
        a('v_lshl_add_u32 v8, v4, 1, 1'); a('v_cvt_f32_u32 v8, v8'); a('v_mul_f32 v8, %s, v8' % fh(1 / 64))
        a('v_cvt_f32_u32 v9, v3'); a('v_mul_f32 v9, 4.0, v9'); a('v_mul_f32 v9, v8, v9')
        if ph: a('v_add_f32 v9, %s, v9' % fh(ph))
        a('v_and_b32 v10, 1, v5'); a('v_cmp_eq_u32 vcc, 1, v10'); a('v_mov_b32 v10, %s' % fh(0.25))
        a('v_cndmask_b32 v8, v8, 0, vcc'); a('v_cndmask_b32 v9, v9, v10, vcc')
        angles(8, 9, [kr(r) for r in range(16)], TT); trig('cos', TT, 16); pack(dst, TT, 16); put(dst, 8)
        cq_job(1, ['cos' if jb == 5 else 'sin'])
        a('s_branch fz_jend')
    a.label('fz_j7')
    cq_job(0, ['cos', 'sin'])
    a.label('fz_jend')
    B1, TC2, TS2 = 16, 20, 24
    def SETA():
        for q in range(4): a('ds_read_b128 %s, v6 offset:%d' % (v(CQ + 4 * q, 4), 1024 * (14 + q)))
        a('s_and_b32 s32, s3, 3'); a('s_lshr_b32 s33, s3, 2'); a('s_lshl_b32 s33, s33, 4'); a('s_add_u32 s33, s33, s32')
        a('v_and_b32 v8, 12, v4'); a('v_bfe_u32 v9, v4, 1, 1'); a('v_lshl_add_u32 v8, v9, 5, v8'); a('v_add_u32 v8, s33, v8')
        a('v_cvt_f32_u32 v8, v8'); a('v_and_b32 v12, 1, v1'); a('v_cvt_f32_u32 v9, v12'); a('v_lshlrev_b32 v13, 2, v5'); a('v_cvt_f32_u32 v10, v13')
        a('v_mul_f32 v11, %s, v8' % fh(1 / 64)); a('v_mul_f32 v9, %s, v9' % fh(0.25)); a('v_fma_f32 v9, v11, v10, v9')
        TT = XAC
        angles(11, 9, [0, 1, 2, 3], TT + 24)
        a('v_mul_f32 v11, %s, v8' % fh(1 / 2048)); a('v_lshlrev_b32 v9, 31, v1'); a('v_xor_b32 v11, v9, v11'); a('v_mul_f32 v9, v11, v10')
        angles(11, 9, [0, 1, 2, 3, 16, 17, 18, 19], TT + 8)
        for i in range(8): a('v_%s_f32 %s, %s' % ('sin' if i & 1 else 'cos', v(TT + i), v(TT + 24 + (i >> 1))))
        for i in range(8): a('v_sin_f32 %s, %s' % (v(TT + 16 + i), v(TT + 8 + i)))
        trig('cos', TT + 8, 8)
        pack(B1, TT, 24)
        a('v_lshrrev_b32 v8, 3, v1'); a('v_mul_u32_u24 %s, %d, v8' % (v(vHL), PS)); a('v_and_b32 v9, 7, v1'); a('v_lshl_add_u32 %s, v9, 4, %s' % (v(vHL), v(vHL)))
        a('s_mul_i32 s60, s3, %d' % (16 * PS)); a('s_lshl_b32 s32, s20, 7'); a('s_add_u32 s60, s60, s32'); a('s_add_u32 s60, s60, 0x%x' % WOFF); a('s_add_u32 s61, s60, %d' % (8 * PS))
        a('v_lshlrev_b32 v8, 1, v8'); a('v_bfe_u32 v9, v1, 2, 1'); a('v_add_u32 v8, v8, v9'); a('s_lshl_b32 s32, s3, 1'); a('s_add_u32 s32, s32, 1')
        a('v_lshl_add_u32 v8, v8, 5, s32')
        a('v_cmp_eq_u32 vcc, 1, v12')
        a('v_bfe_u32 v9, v1, 1, 1'); a('v_mul_u32_u24 v9, %d, v9' % CPS); a('v_add_u32 v9, %d, v9' % AB)
        a('s_cmp_eq_u32 s3, 7'); a('s_cselect_b32 s32, 272, 0')
        for u, dst in ((0, vA0), (1, vA1)):
            if u: a('v_mul_u32_u24 v10, s32, v3'); a('v_sub_u32 v8, v8, v10'); a('v_add_u32 v8, 1, v8')
            a('v_sub_u32 v10, 512, v8'); a('v_cndmask_b32 v10, v8, v10, vcc')
            if u: a('v_lshrrev_b32 v11, 1, v10'); a('v_and_b32 v11, 256, v11'); a('v_sub_u32 v10, v10, v11')
            a('v_and_b32 v11, 16, v10'); a('v_lshl_add_u32 v11, v11, 6, v9'); a('v_lshrrev_b32 v12, 7, v10'); a('v_lshl_add_u32 v11, v12, 8, v11')
            a('v_and_b32 v12, 15, v10'); a('v_lshl_add_u32 v11, v12, 4, v11'); a('v_bfe_u32 v12, v10, 5, 2'); a('v_lshl_add_u32 %s, v12, 2, v11' % v(dst))
        a('s_and_b32 s32, s3, 3'); a('s_lshl_b32 s32, s32, 11'); a('s_add_u32 s32, s32, %d' % AB); a('v_add_u32 %s, s32, %s' % (v(vAR), v(vL16)))
        a('v_add_u32 v8, s33, v13')
        a('v_sub_u32 v9, 32, v8'); a('v_min_u32 v9, v8, v9')
        a('v_and_b32 v10, 15, v8'); a('v_cmp_eq_u32 s[32:33], 0, v10')
        a('v_cmp_lt_u32 s[34:35], 16, v8')
        a('v_lshlrev_b32 v10, 10, v9'); a('v_subrev_u32 v10, 1024, v10'); a('v_mov_b32 v11, %d' % (124 * 128)); a('v_cmp_eq_u32 vcc, 0, v8'); a('v_cndmask_b32 v10, v10, v11, vcc')
        a('v_and_b32 v11, 3, v1'); a('v_lshl_add_u32 v10, v11, 4, v10')
        a('v_lshrrev_b32 v11, 2, v4'); a('v_lshlrev_b32 v12, 7, v11')
        for tau, dst in ((0, vY0), (1, vY1)):
            if tau: a('s_or_b64 s[34:35], s[34:35], s[32:33]'); a('v_add_u32 v12, 512, v12')
            a('v_sub_u32 v13, %d, v12' % (7 * 128 + 64))
            a('v_cndmask_b32 v13, v12, v13, s[34:35]'); a('v_add_u32 %s, v10, v13' % v(dst))
        a('s_mul_i32 s56, s20, %d' % PS); a('s_add_u32 s56, s56, 0x%x' % YOFF)
        a('v_mov_b32 %s, 0x30003' % v(vMT))
        for k in range(4): a('v_mov_b32 %s, %s' % (v(vE + k), s(44 + k)))
        a('s_waitcnt lgkmcnt(0)')
    def SETB(sfx):
        a('v_sub_u32 v8, 15, v4'); a('v_min_u32 v8, v4, v8')
        a('v_and_b32 v9, 1, v8'); a('v_lshlrev_b32 v9, 5, v9'); a('v_lshrrev_b32 v10, 1, v8'); a('v_lshl_add_u32 v9, v10, 9, v9'); a('v_add_u32 v9, s25, v9')
        a('v_sub_u32 v10, 2048, v9'); a('v_cmp_lt_u32 s[34:35], 7, v4'); a('v_cndmask_b32 %s, v9, v10, s[34:35]' % v(vT))
        a('v_mov_b32 v9, v4'); a('v_mov_b32 v10, s20')
        a('s_cmp_lg_u32 s21, 0'); a('s_cbranch_scc0 fz_spec3%s' % sfx)
        a.lines.append('fz_spec3back%s:' % sfx)
        a('v_lshlrev_b32 v10, 7, v10'); a('v_lshl_add_u32 v10, v9, 3, v10'); a('v_mul_u32_u24 v11, %d, v5' % (4 * PS)); a('v_add_u32 %s, v10, v11' % v(vYL))
        a('v_and_b32 v9, 1, v9'); a('v_cmp_eq_u32 vcc, 1, v9')
        a('v_mov_b32 v9, s44'); a('v_mov_b32 v10, s46'); a('v_cndmask_b32 %s, v9, v10, vcc' % v(vYE))
        a('v_mov_b32 v9, s45'); a('v_mov_b32 v10, s47'); a('v_cndmask_b32 %s, v9, v10, vcc' % v(vYE + 1))
        a('s_lshl_b32 s32, s3, 2'); a('v_add_u32 v8, s32, v5')
        a('v_lshlrev_b32 v9, 6, v8')
        a('v_cmp_gt_u32 vcc, 16, v8'); a('v_cndmask_b32 v10, 0, 32, vcc'); a('v_add_u32 v10, v9, v10')
        a('v_sub_u32 v11, 2048, v10'); a('v_cmp_eq_u32 vcc, 16, v8'); a('v_cndmask_b32 v11, v11, 0, vcc')
        a('v_mov_b32 v12, 0xffff0000'); a('v_cndmask_b32 %s, -1, v12, vcc' % v(vZM))
        a('v_sub_u32 v12, %d, v9' % (2048 - 30))
        a('v_mul_u32_u24 v13, %d, v4' % RS)
        a('v_add_u32 %s, v13, v9' % v(vXR)); a('v_add_u32 %s, v13, v12' % v(vXM)); a('v_add_u32 %s, v13, v10' % v(vE0)); a('v_add_u32 v241, v13, v11')
        a('s_lshl_b32 s32, s3, 8'); a('s_add_u32 s32, s32, %d' % PR)
        a('v_lshlrev_b32 v9, 4, v4'); a('v_add_u32 v10, s32, v9'); a('v_add_u32 v11, %d, %s' % (TRASH, v(vL16)))
        a('v_cmp_gt_u32 vcc, 16, v1'); a('v_cndmask_b32 %s, v11, v10, vcc' % v(vPW))
        a('v_lshrrev_b32 v12, 2, v4'); a('v_cmp_eq_u32 vcc, v12, v5'); a('v_cndmask_b32 %s, v11, v10, vcc' % v(vPD))
        a('v_lshrrev_b32 v12, 5, v1'); a('v_lshl_add_u32 v10, v12, 10, v9'); a('v_add_u32 %s, %d, v10' % (v(vPR), PR))
        a('v_and_b32 v9, 1, v1'); a('v_cmp_eq_u32 s[28:29], 1, v9'); a('v_and_b32 v9, 2, v1'); a('v_cmp_eq_u32 s[30:31], 2, v9')
        a('s_lshl_b32 s37, s3, 2'); a('v_add_u32 v9, s37, v5'); a('v_mul_u32_u24 %s, %d, v9' % (v(vKA), KS))
        a('s_lshl_b32 s26, s20, 4'); a('s_add_u32 s26, s26, 0x%x' % KOFF)
        a('v_lshlrev_b32 %s, 4, v5' % v(vCA)); a('s_lshl_b32 s27, s20, 11'); a('s_lshl_b32 s37, s3, 8'); a('s_add_u32 s27, s27, s37'); a('s_add_u32 s27, s27, 0x%x' % COFF)
        a('v_sub_u32 %s, 2047, %s' % (v(vTK), v(vT)))
        srd(12, 2048 * 2048); srd(64, 0x700000)
        a('s_mul_i32 s52, s3, %d' % (16 * PS)); a('s_add_u32 s52, s52, 0x%x' % YOFF)
        for jx in range(1, 4): a('s_add_u32 %s, s52, %d' % (s(52 + jx), jx * PS))
        blk(23, 36); a('s_lshl_b32 s23, s23, 3'); a('s_bfe_u32 s37, s2, 0x30003'); a('s_add_u32 s23, s23, s37')
        a('s_getreg_b32 s24, hwreg(HW_REG_XCC_ID)'); a('s_and_b32 s24, s24, 15')
        a('v_lshlrev_b32 v10, 4, v0'); a('v_min_u32 v10, 4336, v10'); a('v_add_u32 v10, %d, v10' % ACT)
        for k in range(4): a('v_mov_b32 %s, 0' % v(XAC + k))
        a('ds_write_b128 v10, %s' % v(XAC, 4))
        a('v_lshlrev_b32 v10, 4, v4'); a('v_lshl_add_u32 v14, v5, 11, v10')
        a('s_lshl_b32 s62, s23, 16'); a('s_lshl_b32 s37, s3, 8'); a('s_add_u32 s62, s62, s37')
    def SET2():
        XP = 28
        a('ds_read_b128 %s, %s' % (v(XP, 4), v(vXR))); a('ds_read_b128 %s, %s offset:16' % (v(XP + 4, 4), v(vXR)))
        a('ds_read_u16_d16_hi %s, %s' % (v(XD + 16), v(vM0m)))
        for e in range(1, 16): a('ds_read_u16_d16_hi %s, %s offset:%d' % (v(XD + 16 + e), v(vXM), 2 * (15 - e)))
        a('ds_read_u16_d16_hi %s, %s' % (v(XD), v(vE0)))
        a('v_mul_u32_u24 v13, %d, v4' % RS); a('v_subrev_u32 v13, %d, v13' % WR)
        for r, src in ((9, vXR), (10, vE0), (11, vM0m), (12, vXM)): a('v_sub_u32 %s, %s, v13' % (v(r), v(src)))
        a('s_mov_b32 s36, 0xffff0000')
        a('s_waitcnt lgkmcnt(0)')
        a('ds_read_b128 %s, v9' % v(WV, 4)); a('ds_read_b128 %s, v9 offset:16' % v(WV + 4, 4))
        a('ds_read_u16_d16 %s, v11' % v(WV + 8))
        for e in range(1, 16): a('ds_read_u16_d16%s %s, v12 offset:%d' % ('_hi' if e & 1 else '', v((XP + 8 if e & 1 else WV + 8) + (e >> 1)), 2 * (15 - e)))
        a('ds_read_u16_d16 v13, v10')
        for k in range(8):
            if k: a('v_lshlrev_b32 %s, 16, %s' % (v(XD + 2 * k), v(XP + k)))
            a('v_and_b32 %s, s36, %s' % (v(XD + 2 * k + 1), v(XP + k)))
        a('v_cmp_eq_u32 vcc, 1, v4'); a('v_mov_b32 v9, s42'); a('v_cndmask_b32 v9, 0, v9, vcc')
        for k in range(4): a('v_mov_b32 %s, s42' % v(XP + k))
        a('v_cmp_eq_u32 vcc, 0, v4')
        a('s_waitcnt lgkmcnt(0)')
        a('v_and_or_b32 %s, %s, s36, v13' % (v(WV), v(WV)))
        for k in range(8): a('v_or_b32 %s, %s, %s' % (v(WV + 8 + k), v(WV + 8 + k), v(XP + 8 + k)))
        for k in range(16): a('v_cndmask_b32 %s, v9, %s, vcc' % (v(WV + k), v(WV + k)))
        for q in range(4): a('v_mfma_f32_16x16x32_bf16 %s, %s, %s, %s' % (v(XP + 4, 4), v(WV + 4 * q, 4), v(XP, 4), v(XP + 4, 4) if q else '0'))
        a('ds_write_b32 %s, %s offset:12' % (v(vPW), v(XP + 4)))
    a('v_lshlrev_b32 v7, 9, v3'); a('v_bfe_u32 v10, v1, 2, 2'); a('v_lshl_add_u32 v7, v10, 6, v7')
    a('v_and_b32 v10, 1, v5'); a('v_lshl_add_u32 v7, v10, 5, v7'); a('v_and_b32 v10, 3, v1'); a('v_lshl_add_u32 v7, v10, 3, v7'); a('v_add_u32 v7, s31, v7')
    a('v_lshlrev_b32 v8, 9, v3'); a('v_lshl_add_u32 v8, v2, 1, v8'); a('v_sub_u32 v9, 2048, v8'); a('v_and_b32 v9, 2047, v9'); a('v_add_u32 v9, s30, v9')
    a('s_add_u32 s32, s30, %d' % (2048 - 64 * 23)); a('v_sub_u32 v8, s32, v8')
    a('s_waitcnt lgkmcnt(0)'); a('s_barrier')
    a('s_cmp_lg_u32 s57, 0'); a('s_cbranch_scc1 fz_nc0')
    for q in range(14): a('ds_read_b128 %s, v6 offset:%d' % (v(F1 + 4 * q, 4), 1024 * q))
    a.lines.append('fz_nc0:')
    a('v_cmp_eq_u32 vcc, 0, v2'); a('v_cndmask_b32 %s, 0, -2.0, vcc' % v(vM0))
    a('v_mov_b32 %s, %s' % (v(vM0 + 1), fh(256e-5))); a('v_mov_b32 v242, 0xffff0000')
    a('v_lshlrev_b32 %s, 31, v1' % v(vSG)); a('v_lshrrev_b32 v10, 16, %s' % v(vSG)); a('v_or_b32 %s, %s, v10' % (v(vSG), v(vSG)))
    a('v_mov_b32 %s, 0xfffcfffc' % v(vM))
    a('s_lshr_b32 s32, s24, 1'); a('s_lshl_b32 s32, s32, 6'); a('s_mul_i32 s33, s3, 2304'); a('s_add_u32 s32, s32, s33'); a('s_add_u32 s32, s32, %d' % SB)
    a('v_lshl_add_u32 v10, v3, 1, v1'); a('v_lshlrev_b32 v10, 4, v10'); a('v_add_u32 %s, s32, v10' % v(vSW))
    a('v_bfe_u32 v10, v0, 2, 1'); a('v_mul_u32_u24 v10, 34, v10'); a('v_lshrrev_b32 v11, 4, v0'); a('v_add_u32 v10, v10, v11'); a('v_lshlrev_b32 v10, 4, v10')
    a('v_bfe_u32 v11, v0, 3, 1'); a('v_lshl_add_u32 v10, v11, 3, v10'); a('v_bfe_u32 v11, v0, 1, 1'); a('v_lshl_add_u32 v10, v11, 2, v10')
    a('v_and_b32 v12, 1, v0')
    a('s_mov_b32 s33, %d' % (4 * 2304)); a('s_cmp_eq_u32 s2, 0')
    for k in range(4):
        pm = 1152 if k >= 2 else 0
        o0 = k * 2304 + pm + (64 if k >= 2 else 0); o1 = (3 - k) * 2304 + pm + (64 if (3 - k) >= 2 else 0)
        a('s_cselect_b32 s32, s33, 0x%x' % ((o1 - o0) & 0xffffffff))
        a('v_mul_lo_u32 v11, v12, s32'); a('v_add_u32 %s, v10, v11' % v(vSR + k)); a('v_add_u32 %s, %d, %s' % (v(vSR + k), SB + o0, v(vSR + k)))
    a('v_lshrrev_b32 v10, 2, v0'); a('v_and_b32 v11, 3, v0'); a('v_lshlrev_b32 v11, 4, v11'); a('v_lshl_add_u32 %s, v10, 7, v11' % v(vWST))
    a('s_mul_i32 s52, s20, %d' % PS); a('s_lshl_b32 s33, s59, 6'); a('s_add_u32 s52, s52, s33'); a('s_add_u32 s52, s52, 0x%x' % WOFF)
    tags()
    a('s_mov_b32 s42, 0x3f803f80')
    a('s_cmp_lg_u32 s57, 0'); a('s_cbranch_scc1 fz_nc1')
    for i in range(4): a('v_mov_b32 %s, 0' % v(ST + i))
    a('s_setprio 3')
    st()
    a('s_waitcnt vmcnt(0) lgkmcnt(0)')
    st()
    for jx in range(2):
        for hh in range(2): a('ds_read_b64_tr_b16 %s, v7 offset:%d' % (v(XA + 4 * jx + 2 * hh, 2), 1024 * jx + 256 * hh))
    for jx in range(2):
        for i in range(8):
            op = 'ds_read_u16_d16_hi' if i & 1 else 'ds_read_u16_d16'
            dst = (H if i & 1 else XB) + 4 * jx + (i >> 1)
            if jx == 0 and i == 0: a('%s %s, v9' % (op, v(dst)))
            else: a('%s %s, v8 offset:%d' % (op, v(dst), 64 * (23 - 16 * jx - i)))
        if jx == 0: a('s_waitcnt lgkmcnt(8)')
        if jx == 0:
            for j2 in range(2): a('v_mfma_f32_32x32x16_bf16 %s, %s, %s, %s' % (v(XAC, 16), v(XA + 4 * j2, 4), v(F1 + 4 * j2, 4), v(XAC, 16) if j2 else '0'))
    for i in range(8):
        a('v_dot2_f32_bf16 %s, %s, s42, %s' % (v(ST), v(XA + i), v(ST))); a('v_dot2_f32_bf16 %s, %s, %s, %s' % (v(ST + 1), v(XA + i), v(XA + i), v(ST + 1)))
    a('s_waitcnt lgkmcnt(0)')
    for i in range(8): a('v_or_b32 %s, %s, %s' % (v(XB + i), v(XB + i), v(H + i)))
    for j2 in range(2): a('v_mfma_f32_32x32x16_bf16 %s, %s, %s, %s' % (v(XBC, 16), v(XB + 4 * j2, 4), v(F1 + 4 * j2, 4), v(XBC, 16) if j2 else '0'))
    for i in range(8):
        a('v_dot2_f32_bf16 %s, %s, s42, %s' % (v(ST + 2), v(XB + i), v(ST + 2))); a('v_dot2_f32_bf16 %s, %s, %s, %s' % (v(ST + 3), v(XB + i), v(XB + i), v(ST + 3)))
    a('v_permlane32_swap_b32 %s, %s' % (v(ST), v(ST + 2))); a('v_permlane32_swap_b32 %s, %s' % (v(ST + 1), v(ST + 3)))
    a('v_add_f32 %s, %s, %s' % (v(ST), v(ST), v(ST + 2))); a('v_add_f32 %s, %s, %s' % (v(ST + 1), v(ST + 1), v(ST + 3)))
    a('v_permlane16_swap_b32 %s, %s' % (v(ST), v(ST + 1)))
    a('v_add_f32 %s, %s, %s' % (v(ST), v(ST), v(ST + 1)))
    for pat in ['quad_perm:[1,0,3,2]', 'quad_perm:[2,3,0,1]', 'row_half_mirror', 'row_mirror']:
        a('v_add_f32_dpp %s, %s, %s %s %s' % (v(ST), v(ST), v(ST), pat, DPPF))
    a('s_mov_b32 s43, %s' % fh(256 / 1024))
    a('v_mov_b32 %s, %s' % (v(ST + 1), v(ST)))
    a('v_permlane16_swap_b32 %s, %s' % (v(ST), v(ST + 1)))
    a('v_mul_f32 %s, %s, %s' % (v(ST), fh(16 / 1024), v(ST)))
    a('v_fma_f32 %s, %s, s43, %s' % (v(ST + 1), v(ST + 1), v(vM0 + 1)))
    a('v_fma_f32 %s, -%s, %s, %s' % (v(ST + 1), v(ST), v(ST), v(ST + 1)))
    a('v_rsq_f32 %s, %s' % (v(ST + 1), v(ST + 1)))
    a('v_mul_f32 %s, %s, %s' % (v(ST), v(ST), v(ST + 1)))
    a('v_readlane_b32 s32, %s, 0' % v(ST + 1)); a('v_readlane_b32 s34, %s, 32' % v(ST + 1)); a('v_readlane_b32 s36, %s, 0' % v(ST)); a('v_readlane_b32 s37, %s, 32' % v(ST))
    a('v_mul_f32 %s, s36, %s' % (v(ST + 4), v(vM0))); a('v_fmac_f32 %s, s37, %s' % (v(ST + 4), v(vM0)))
    for i in range(8): a('v_pk_fma_f32 %s, %s, s[32:33], %s op_sel_hi:[1,0,0]' % (v(XAC + 2 * i, 2), v(XAC + 2 * i, 2), v(ST + 4, 2)))
    for i in range(8): a('v_pk_fma_f32 %s, %s, s[34:35], %s op_sel_hi:[1,0,1]' % (v(XAC + 2 * i, 2), v(XBC + 2 * i, 2), v(XAC + 2 * i, 2)))
    pack(H, XAC, 16)
    for i in range(8): a('v_mov_b32_dpp %s, %s %s' % (v(TP + i), v(H + i), X1))
    D3C, D3S = XBC, XBC + 4
    for i in range(8): a('v_pk_mul_f16 %s, %s, %s' % (v(T + i), v(H + i), v(TC + i)))
    for j2 in range(2):
        a('v_mfma_f32_16x16x32_f16 %s, %s, %s, %s' % (v(D3C, 4), v(H + 4 * j2, 4), v(B3C + 4 * j2, 4), v(D3C, 4) if j2 else '0'))
        for i in range(4): a('v_pk_fma_f16 %s, %s, %s, %s' % (v(T + 4 * j2 + i), v(TP + 4 * j2 + i), v(TS + 4 * j2 + i), v(T + 4 * j2 + i)))
    a('v_mfma_f32_32x32x16_f16 %s, %s, %s, 0' % (v(XAC, 16), v(T, 4), v(C2, 4)))
    for i in range(4): a('v_xor_b32_dpp %s, %s, %s %s' % (v(TP + i), v(T + i), v(vSG), X1))
    a('v_mfma_f32_32x32x16_f16 %s, %s, %s, %s' % (v(XAC, 16), v(T + 4, 4), v(C2 + 4, 4), v(XAC, 16)))
    for i in range(4, 8): a('v_xor_b32_dpp %s, %s, %s %s' % (v(TP + i), v(T + i), v(vSG), X1))
    for j2 in range(2): a('v_mfma_f32_32x32x16_f16 %s, %s, %s, %s' % (v(XAC, 16), v(TP + 4 * j2, 4), v(S2 + 4 * j2, 4), v(XAC, 16)))
    for j2 in range(2): a('v_mfma_f32_16x16x32_f16 %s, %s, %s, %s' % (v(D3S, 4), v(H + 4 * j2, 4), v(B3S + 4 * j2, 4), v(D3S, 4) if j2 else '0'))
    a('s_mov_b64 vcc, 0xffff')
    for p in (7, 6, 5, 4, 3, 2, 1): a('v_cvt_pk_f16_f32 %s, %s, %s' % (v(H + p), v(XAC + 2 * p), v(XAC + 2 * p + 1)))
    a('v_cndmask_b32 %s, %s, %s, vcc' % (v(XAC), v(XAC), v(D3C + 1))); a('v_cndmask_b32 %s, %s, %s, vcc' % (v(XAC + 1), v(XAC + 1), v(D3S + 1)))
    for p in (3, 2, 1, 0):
        if p == 0: a('v_cvt_pk_f16_f32 %s, %s, %s' % (v(H), v(XAC), v(XAC + 1)))
        a('v_pk_add_f16 %s, %s, %s op_sel:[0,1] op_sel_hi:[1,0] neg_lo:[0,1]' % (v(T + p), v(H + 2 * p), v(H + 2 * p + 1)))
        a('v_pk_add_f16 %s, %s, %s op_sel:[0,1] op_sel_hi:[1,0] neg_hi:[1,0]' % (v(T + 4 + p), v(H + 2 * p), v(H + 2 * p + 1)))
    a('ds_write_b128 %s, %s' % (v(vSW), v(T, 4))); a('ds_write_b128 %s, %s offset:1152' % (v(vSW), v(T + 4, 4)))
    a('s_setprio 0')
    a('s_waitcnt lgkmcnt(0)')
    a.lines.append('fz_b1:')
    a('s_barrier')
    st.n = 4; st()
    Z = XAC
    for k in range(4): a('ds_read_b32 %s, %s' % (v(Z + k), v(vSR + k)))
    z = Z; u = Z + 8; o = u + 4
    a('s_waitcnt lgkmcnt(1)')
    a('v_pk_add_f16 %s, %s, %s' % (v(u), v(z), v(z + 2))); a('v_pk_add_f16 %s, %s, %s neg_lo:[0,1] neg_hi:[0,1]' % (v(u + 1), v(z), v(z + 2)))
    a('s_waitcnt lgkmcnt(0)')
    a('v_pk_add_f16 %s, %s, %s' % (v(u + 2), v(z + 1), v(z + 3))); a('v_pk_add_f16 %s, %s, %s neg_lo:[0,1] neg_hi:[0,1]' % (v(u + 3), v(z + 1), v(z + 3)))
    a('v_pk_add_f16 %s, %s, %s' % (v(o), v(u), v(u + 2))); a('v_pk_add_f16 %s, %s, %s neg_lo:[0,1] neg_hi:[0,1]' % (v(o + 2), v(u), v(u + 2)))
    a('v_pk_add_f16 %s, %s, %s op_sel:[0,1] op_sel_hi:[1,0] neg_hi:[0,1]' % (v(o + 1), v(u + 1), v(u + 3)))
    a('v_pk_add_f16 %s, %s, %s op_sel:[0,1] op_sel_hi:[1,0] neg_lo:[0,1]' % (v(o + 3), v(u + 1), v(u + 3)))
    for k in range(4): a('v_add_u32 %s, 0x20002, %s' % (v(o + k), v(o + k)))
    for k in range(4): a('v_and_or_b32 %s, %s, %s, %s' % (v(o + k), v(o + k), v(vM), s(44 + k)))
    a('buffer_store_dwordx4 %s, %s, s[4:7], s52 offen sc1' % (v(o, 4), v(vWST)))
    a('s_cmp_lg_u32 s59, 0'); a('s_cbranch_scc1 ffn')
    st()
    a('s_cmp_lg_u32 s57, 0'); a('s_cbranch_scc1 fz_nc2')
    SETA()
    a('s_waitcnt vmcnt(0)')
    st()
    R = XAC
    def h1load():
        a('buffer_load_dwordx4 %s, %s, s[4:7], s60 offen sc1' % (v(R, 4), v(vHL))); a('buffer_load_dwordx4 %s, %s, s[4:7], s61 offen sc1' % (v(R + 4, 4), v(vHL)))
    a.lines.append('fz_h1:')
    h1load()
    a.lines.append('fz_h1c:')
    a('s_waitcnt vmcnt(1)')
    for k in range(4): a('v_xor_b32 %s, %s, %s' % (v(R + k), v(vE + k), v(R + k)))
    a('v_or3_b32 %s, %s, %s, %s' % (v(R + 8), v(R), v(R + 1), v(R + 2)))
    a('s_waitcnt vmcnt(0)')
    for k in range(4): a('v_xor_b32 %s, %s, %s' % (v(R + 4 + k), v(vE + k), v(R + 4 + k)))
    a('v_or3_b32 %s, %s, %s, %s' % (v(R + 8), v(R + 8), v(R + 3), v(R + 4))); a('v_or3_b32 %s, %s, %s, %s' % (v(R + 9), v(R + 5), v(R + 6), v(R + 7)))
    a('v_bitop3_b32 %s, %s, %s, %s bitop3:0xa8' % (v(R + 8), v(R + 8), v(R + 9), v(vMT)))
    a('v_cmp_ne_u32 vcc, 0, %s' % v(R + 8))
    poll_retry('fz_h1')
    for u, ad in ((0, vA0), (1, vA1)):
        for k in range(4): a('ds_write_b32 %s, %s offset:%d' % (v(ad), v(R + 4 * u + k), 2048 * k))
    a('s_waitcnt lgkmcnt(0)'); a('s_barrier')
    st()
    A2, V2, H2, T2, TP2, D2 = 104, 120, 136, 144, 152, 104
    for cp in range(2):
        for hf in range(2): a('ds_read_b128 %s, %s offset:%d' % (v(A2 + 8 * cp + 4 * hf, 4), v(vAR), CPS * cp + 1024 * hf))
    for q in range(4):
        a('s_waitcnt lgkmcnt(%d)' % (3 - q))
        a('v_mfma_f32_16x16x32_f16 %s, %s, %s, 0' % (v(V2 + 4 * q, 4), v(A2 + 4 * q, 4), v(B1, 4)))
    for cp in range(2):
        pack(H2 + 4 * cp, V2 + 8 * cp, 8)
    for cp in range(2):
        h, t, tp = H2 + 4 * cp, T2 + 4 * cp, TP2 + 4 * cp
        for i in range(4): a('v_pk_mul_f16 %s, %s, %s' % (v(t + i), v(h + i), v(TC2 + i)))
        for i in range(4): a('v_mov_b32_dpp %s, %s %s' % (v(tp + i), v(h + i), X1))
        for i in range(4): a('v_pk_fma_f16 %s, %s, %s, %s' % (v(t + i), v(tp + i), v(TS2 + i), v(t + i)))
        for tau in range(2): a('v_mfma_f32_16x16x32_f16 %s, %s, %s, 0' % (v(D2 + 8 * cp + 4 * tau, 4), v(t, 4), v(CQ + 8 * tau, 4)))
        for i in range(4): a('v_xor_b32_dpp %s, %s, %s %s' % (v(tp + i), v(t + i), v(vSG), X1))
        for tau in range(2): a('v_mfma_f32_16x16x32_f16 %s, %s, %s, %s' % (v(D2 + 8 * cp + 4 * tau, 4), v(tp, 4), v(CQ + 8 * tau + 4, 4), v(D2 + 8 * cp + 4 * tau, 4)))
    O2 = V2
    for tau in range(2):
        for cp in range(2):
            for b in range(2): a('v_cvt_pk_f16_f32 %s, %s, %s' % (v(O2 + 4 * tau + 2 * b + cp), v(D2 + 8 * cp + 4 * tau + 2 * b), v(D2 + 8 * cp + 4 * tau + 2 * b + 1)))
        for k in range(4): a('v_add_u32 %s, 0x20002, %s' % (v(O2 + 4 * tau + k), v(O2 + 4 * tau + k)))
        for k in range(4): a('v_and_or_b32 %s, %s, %s, %s' % (v(O2 + 4 * tau + k), v(O2 + 4 * tau + k), v(vM), s(44 + k)))
        a('buffer_store_dwordx4 %s, %s, s[4:7], s56 offen sc1' % (v(O2 + 4 * tau, 4), v(vY0 + tau)))
    st()
    a('s_cmp_lg_u32 s57, 0'); a('s_cbranch_scc1 fz_nc3')
    SETB('a')
    a('s_mov_b32 s58, 0')
    a('s_waitcnt vmcnt(0)')
    st()
    YD, YM, HP, Q1, Q2 = 104, 112, 120, 136, 140
    def h2load():
        for jx in range(4): a('buffer_load_dwordx2 %s, %s, s[4:7], %s offen sc1' % (v(YD + 2 * jx, 2), v(vYL), s(52 + jx)))
    h2load()
    SET2()
    a.flush(); a('s_branch fz_h2c')
    a.lines.append('fz_h2:')
    h2load()
    a.lines.append('fz_h2c:')
    a('s_mov_b32 s36, %s' % fh(128.0))
    for jx in range(4):
        a('s_waitcnt vmcnt(%d)' % (3 - jx))
        for k in range(2): a('v_xor_b32 %s, %s, %s' % (v(YD + 2 * jx + k), v(vYE + k), v(YD + 2 * jx + k)))
        if jx == 0: a('v_or_b32 v9, %s, %s' % (v(YD), v(YD + 1)))
        else: a('v_or3_b32 v9, v9, %s, %s' % (v(YD + 2 * jx), v(YD + 2 * jx + 1)))
    a('v_and_b32 v9, %s, v9' % v(vMT))
    a('v_cmp_ne_u32 vcc, 0, v9')
    poll_retry('fz_h2')
    st()
    for e in range(16): a('v_fma_mix_f32 %s, %s, s36, %s op_sel:[%d,0,0] op_sel_hi:[1,0,0]' % (v(XD + e), v(YD + (e >> 1)), v(XD + e), e & 1))
    for k in range(8): a('v_mov_b32_dpp %s, %s row_mirror %s' % (v(YM + k), v(YD + k), DPPF))
    a('s_cmp_eq_u32 s2, 0'); a('s_cbranch_scc1 fz_spec4')
    a.lines.append('fz_spec4back:')
    pack(HP, XD, 16, 'bf16')
    a('v_and_b32 %s, %s, %s' % (v(YM), v(vZM), v(YM)))
    for q in range(2):
        a('v_mfma_f32_16x16x32_bf16 %s, %s, %s, %s' % (v(Q1, 4), v(HP + 4 * q, 4), v(HP + 4 * q, 4), v(Q1, 4) if q else '0'))
        a('v_mfma_f32_16x16x32_bf16 %s, %s, %s, %s' % (v(Q2, 4), v(WV + 4 * q, 4), v(HP + 4 * q, 4), v(Q2, 4) if q else '0'))
    for e in range(16): a('v_fma_mix_f32 %s, %s, s36, %s op_sel:[%d,0,0] op_sel_hi:[1,0,0]' % (v(XD + 16 + e), v(YM + (e >> 1)), v(XD + 16 + e), e & 1))
    pack(HP + 8, XD + 16, 16, 'bf16')
    for q in range(2, 4):
        a('v_mfma_f32_16x16x32_bf16 %s, %s, %s, %s' % (v(Q1, 4), v(HP + 4 * q, 4), v(HP + 4 * q, 4), v(Q1, 4)))
        a('v_mfma_f32_16x16x32_bf16 %s, %s, %s, %s' % (v(Q2, 4), v(WV + 4 * q, 4), v(HP + 4 * q, 4), v(Q2, 4)))
    a('v_cndmask_b32 v9, %s, %s, s[28:29]' % (v(Q1), v(Q1 + 1))); a('v_cndmask_b32 v10, %s, %s, s[28:29]' % (v(Q1 + 2), v(Q1 + 3)))
    a('ds_write_b64 %s, %s' % (v(vPW), v(Q2, 2)))
    a('v_cndmask_b32 v9, v9, v10, s[30:31]')
    a('ds_write_b32 %s, v9 offset:8' % v(vPD))
    a('s_cmp_gt_u32 s3, 3'); a('s_cbranch_scc1 fz_lp'); a('s_setprio 2')
    a.lines.append('fz_lp:')
    a('s_waitcnt lgkmcnt(0)'); a('s_barrier')
    P = 144
    for q in range(4): a('ds_read_b128 %s, %s offset:%d' % (v(P + 4 * q, 4), v(vPR), 256 * q))
    a('s_waitcnt lgkmcnt(2)')
    for h in range(2): a('v_pk_add_f32 %s, %s, %s' % (v(P + 2 * h, 2), v(P + 2 * h, 2), v(P + 4 + 2 * h, 2)))
    a('s_waitcnt lgkmcnt(0)')
    for h in range(2): a('v_pk_add_f32 %s, %s, %s' % (v(P + 8 + 2 * h, 2), v(P + 8 + 2 * h, 2), v(P + 12 + 2 * h, 2)))
    for h in range(2): a('v_pk_add_f32 %s, %s, %s' % (v(P + 2 * h, 2), v(P + 2 * h, 2), v(P + 8 + 2 * h, 2)))
    for k in range(4): a('v_mov_b32 %s, %s' % (v(P + 4 + k), v(P + k)))
    for k in range(4): a('v_permlane32_swap_b32 %s, %s' % (v(P + k), v(P + 4 + k)))
    for h in range(2): a('v_pk_add_f32 %s, %s, %s' % (v(P + 2 * h, 2), v(P + 2 * h, 2), v(P + 4 + 2 * h, 2)))
    KR = 152
    a('v_mul_f32 %s, %s, %s' % (v(P + 1), fh(-1 / 1024), v(P + 1)))
    a('v_mul_f32 %s, %s, %s' % (v(P + 2), fh(1 / 1024), v(P + 2)))
    a('v_fma_f32 %s, -%s, %s, %s' % (v(P + 2), v(P + 1), v(P + 1), v(P + 2)))
    a('v_cvt_pk_bf16_f32 %s, 0, %s' % (v(KR + 1), v(P + 1)))
    rbf(a, P + 2); a('v_add_f32 %s, %s, %s' % (v(P + 2), fh(1e-5), v(P + 2))); rbf(a, P + 2)
    a('v_sqrt_f32 %s, %s' % (v(P + 2), v(P + 2)))
    a('v_fmac_f32 %s, %s, %s' % (v(P), v(KR + 1), v(P + 3)))
    rbf(a, P + 2); a('v_rcp_f32 %s, %s' % (v(KR + 2), v(P + 2)))
    a('v_mov_b32 %s, s40' % v(KR + 3))
    a('v_mul_f32 %s, %s, %s' % (v(P), v(P), v(KR + 2))); rbf(a, P)
    a('v_ashrrev_i32 %s, 31, %s' % (v(P + 1), v(P))); a('v_or_b32 %s, 0x80000000, %s' % (v(P + 1), v(P + 1)))
    a('v_bitop3_b32 %s, %s, %s, %s bitop3:0x28' % (v(KR), v(P), v(P + 1), v(242)))
    a('v_or_b32 %s, %s, %s' % (v(KR), v(KR), v(vTK)))
    a('v_max_u32_dpp %s, %s, %s row_ror:1 %s' % (v(P), v(KR), v(KR), DPPF))
    for k in (2, 4, 8): a('v_max_u32_dpp %s, %s, %s row_ror:%d %s' % (v(P), v(P), v(P), k, DPPF))
    a('v_cmp_eq_u32 vcc, %s, %s' % (v(P), v(KR)))
    a('v_or_b32 %s, s24, %s' % (v(KR + 1), v(KR + 1)))
    a('s_mov_b64 exec, vcc')
    a('buffer_store_dwordx4 %s, %s, s[4:7], s26 offen sc1' % (v(KR, 4), v(vKA)))
    for q in range(4): a('buffer_store_dwordx4 %s, %s, s[4:7], s27 offen offset:%d sc1' % (v(HP + 4 * q, 4), v(vCA), 64 * q))
    a('s_mov_b64 exec, -1')
    st()
    a('s_setprio 0')
    WD = 56
    WNT = ' nt' if '--wnt' in OPT else ''
    def wdload():
        for q in range(0 if '--xnowd' in OPT else 8):
            a('buffer_load_dwordx4 %s, v14, s[64:67], s62 offen%s' % (v(WD + 4 * q, 4), WNT))
            if q < 7: a('s_add_u32 s62, s62, 8192')
    if '--wdearly' in OPT: wdload()
    a('s_ff1_i32_b64 s37, vcc')
    a('v_add_f32 %s, 1.0, %s' % (v(P), v(KR + 2))); a('v_and_b32 %s, v242, %s' % (v(P + 2), v(KR + 1))); a('v_mul_f32 %s, %s, %s' % (v(P + 2), v(P + 2), v(KR + 2)))
    for k in range(16): a('v_pk_fma_f32 %s, %s, %s, %s op_sel_hi:[1,0,0]' % (v(XD + 2 * k, 2), v(XD + 2 * k, 2), v(P, 2), v(P + 2, 2)))
    OP = 104
    pack(OP, XD, 32, 'bf16')
    a('ds_write_b128 %s, %s' % (v(vXR), v(OP, 4))); a('ds_write_b128 %s, %s offset:16' % (v(vXR), v(OP + 4, 4)))
    a('s_waitcnt lgkmcnt(0)'); a('s_barrier')
    if '--wdearly' not in OPT: wdload()
    a('ds_write_b16 %s, %s' % (v(vE0), v(OP))); a('ds_write_b16 %s, %s' % (v(vM0m), v(OP + 8)))
    for e in range(1, 16): a('ds_write_b16%s %s, %s offset:%d' % ('_d16_hi' if e & 1 else '', v(vXM), v(OP + 8 + (e >> 1)), 2 * (15 - e)))
    a('s_lshl_b32 s32, s3, 1'); a('s_add_u32 s33, s32, 1')
    a('v_readlane_b32 s34, %s, s32' % v(vT)); a('v_readlane_b32 s35, %s, s33' % v(vT))
    a('s_mul_i32 s38, s3, %d' % (2 * RS)); a('v_add_u32 v9, s38, %s' % v(vL16))
    a('s_lshl_b32 s34, s34, 11'); a('s_lshl_b32 s35, s35, 11')
    a('s_waitcnt lgkmcnt(0)'); a('s_barrier')
    for q in range(4): a('ds_read_b128 %s, v9 offset:%d' % (v(OP + 4 * q, 4), RS * (q >> 1) + 1024 * (q & 1)))
    OUTF = '' if '--outplain' in OPT else (' nt' if '--outnt' in OPT else ' sc1')
    a('s_lshr_b32 s59, s37, 1'); a('s_xor_b32 s18, s59, 4')
    if '--wdearly' not in OPT:
        a('s_cmp_lt_u32 s23, 112'); a('s_cselect_b32 s38, s18, 8'); a('s_cmp_eq_u32 s38, s3'); a('s_cbranch_scc1 fz_sk1')
    a('s_waitcnt lgkmcnt(0)')
    for r in range(2):
        a('s_cmp_eq_u32 s37, %s' % s(32 + r)); a('s_cbranch_scc1 fz_sk%d' % r)
        for q in range(0 if '--xnoout' in OPT else 2): a('buffer_store_dwordx4 %s, %s, s[12:15], %s offen offset:%d%s' % (v(OP + 8 * r + 4 * q, 4), v(vL16), s(34 + r), 1024 * q, OUTF))
        a.lines.append('fz_sk%d:' % r)
    a('v_and_b32 v15, 7, v4'); a('v_mul_u32_u24 v15, 544, v15'); a('v_lshl_add_u32 v15, v5, 4, v15'); a('v_add_u32 v15, %d, v15' % ACT)
    a('s_mul_i32 s63, s23, %d' % PPS); a('s_lshl_b32 s38, s3, 9'); a('s_add_u32 s63, s63, s38'); a('s_add_u32 s63, s63, 0x%x' % POFF)
    a('v_mov_b32 v14, 0xffffff00')
    a('s_cmp_eq_u32 s18, s3'); a('s_cbranch_scc1 fz_act')
    a('s_cmp_lg_u32 s59, s3'); a('s_cbranch_scc1 fz_f2')
    st()
    a('s_and_b32 s38, s20, 15'); a('s_add_u32 s38, s38, 16'); a('s_mul_i32 s38, s38, %d' % KS); a('s_add_u32 s38, s38, 0x%x' % KOFF)
    a('s_lshr_b32 s52, s20, 4'); a('s_lshl_b32 s52, s52, 7'); a('s_and_b32 s53, s20, 7'); a('s_lshl_b32 s53, s53, 4'); a('s_add_u32 s52, s52, s53')
    a('s_bfe_u32 s53, s20, 0x10003'); a('s_lshl_b32 s53, s53, 2'); a('s_add_u32 s52, s52, s53')
    a('v_and_b32 v2, 1, v1'); a('v_lshl_add_u32 v2, v2, 3, v5'); a('v_add_u32 v2, s52, v2')
    a('v_and_b32 v3, 31, v2'); a('v_lshrrev_b32 v6, 5, v2')
    a('v_cmp_gt_u32 vcc, 16, v6')
    a('v_cmp_lt_u32 s[52:53], 16, v3'); a('v_cmp_eq_u32 s[54:55], 0, v3'); a('s_and_b64 s[54:55], s[54:55], vcc'); a('s_or_b64 s[52:53], s[52:53], s[54:55]')
    a('v_cmp_eq_u32 s[54:55], 16, v3'); a('s_andn2_b64 s[54:55], s[54:55], vcc'); a('s_or_b64 s[52:53], s[52:53], s[54:55]')
    a('v_sub_u32 v7, 1024, v2'); a('v_cndmask_b32 v7, v2, v7, s[52:53]')
    a('v_mov_b32 v8, 512'); a('v_cmp_eq_u32 vcc, 1024, v7'); a('v_cndmask_b32 v7, v7, v8, vcc')
    a('v_lshrrev_b32 v8, 5, v7'); a('v_and_b32 v7, 15, v7')
    a('v_lshrrev_b32 v9, 2, v8'); a('v_lshlrev_b32 v9, 8, v9'); a('v_and_b32 v8, 3, v8'); a('v_lshl_add_u32 v9, v8, 4, v9')
    a('v_lshrrev_b32 v8, 3, v7'); a('v_lshl_add_u32 v9, v8, 6, v9'); a('v_and_b32 v7, 7, v7'); a('v_lshl_add_u32 v9, v7, 1, v9')
    a('v_cndmask_b32 v7, 0, 1, s[52:53]'); a('v_lshl_add_u32 v9, v7, 7, v9')
    a('v_lshlrev_b32 v2, 1, v2')
    a('v_lshrrev_b32 v3, 1, v1'); a('v_mul_u32_u24 v3, %d, v3' % PPS); a('v_and_b32 v6, 1, v1'); a('v_lshl_add_u32 v3, v6, 4, v3')
    a('v_mov_b32 v6, 0x7fffffff'); a('v_cmp_gt_u32 vcc, 32, v1'); a('v_cndmask_b32 v6, v6, v3, vcc')
    for k in range(4): a('v_mov_b32 v7, %s' % s(48 + k)); a('v_cndmask_b32 %s, 0, v7, vcc' % v(16 + k))
    a('s_lshl_b32 s52, s20, 5'); a('s_add_u32 s52, s52, 0x%x' % POFF)
    for u in range(1, 4): a('s_add_u32 %s, s52, %d' % (s(52 + u), 32 * u * PPS))
    K = 24
    a('s_mov_b32 s58, 0')
    a.label('fz_k2')
    a('buffer_load_dwordx4 %s, %s, s[4:7], s38 offen sc1' % (v(K, 4), v(vL16))); a('buffer_load_dwordx4 %s, %s, s[4:7], s38 offen offset:1024 sc1' % (v(K + 4, 4), v(vL16)))
    a('s_waitcnt vmcnt(0)')
    keys_argmax(K, None, 'fz_k2')
    a('v_cmp_eq_u32 vcc, s36, %s' % v(K)); a('v_cmp_eq_u32 s[56:57], s36, %s' % v(K + 4))
    a('v_cndmask_b32 %s, %s, %s, s[56:57]' % (v(K + 1), v(K + 1), v(K + 5))); a('v_cndmask_b32 %s, %s, %s, s[56:57]' % (v(K + 2), v(K + 2), v(K + 6)))
    a('s_cmp_lg_u64 vcc, 0'); a('s_cselect_b32 s39, 0, 64'); a('s_or_b64 vcc, vcc, s[56:57]'); a('s_ff1_i32_b64 s41, vcc')
    a('v_readlane_b32 s42, %s, s41' % v(K + 1)); a('v_readlane_b32 s43, %s, s41' % v(K + 2))
    a('s_add_u32 s39, s39, s41'); a('s_and_b32 s42, s42, 0xffff0000')
    a('s_cmp_eq_u32 s39, s20'); a('s_cbranch_scc1 fz_win')
    a('s_bitcmp1_b32 s37, 0'); a('s_cbranch_scc1 fz_d1')
    for q in range(2): a('buffer_store_dwordx4 %s, %s, s[12:15], s34 offen offset:%d%s' % (v(OP + 4 * q, 4), v(vL16), 1024 * q, OUTF))
    a('s_branch fz_win')
    a.lines.append('fz_d1:')
    for q in range(2): a('buffer_store_dwordx4 %s, %s, s[12:15], s35 offen offset:%d%s' % (v(OP + 8 + 4 * q, 4), v(vL16), 1024 * q, OUTF))
    a.lines.append('fz_win:')
    a('s_lshl_b32 s39, s39, 11'); a('s_add_u32 s39, s39, 0x%x' % COFF)
    a('s_mov_b32 s58, 0'); a('s_mov_b32 s41, 0xffff0000')
    a.label('fz_c2')
    a('buffer_load_short_d16_hi v10, v9, s[4:7], s39 offen sc1')
    a('s_waitcnt vmcnt(0)')
    a('v_cmp_eq_u32 vcc, s41, v10')
    poll_retry('fz_c2')
    a('v_add_f32 v11, s42, v10'); rbf(a, 11); a('v_mul_f32 v11, s43, v11'); rbf(a, 11)
    a('s_ashr_i32 s39, s36, 31'); a('s_not_b32 s39, s39'); a('s_or_b32 s39, s39, 0x80000000'); a('s_xor_b32 s39, s36, s39'); a('s_and_b32 s39, s39, 0xffff0000')
    a('v_mov_b32 v12, s39'); a('v_mul_f32 v12, %s, v12' % fh(-1.4426950408889634))
    a('v_exp_f32 v12, v12'); a('v_add_f32 v12, 1.0, v12'); a('v_rcp_f32 v12, v12'); rbf(a, 12)
    a('s_and_b32 s39, s36, 0xffff'); a('s_sub_u32 s39, 2047, s39'); a('s_lshl_b32 s39, s39, 11')
    PQ = 40
    a.lines.append('fz_f2:')
    st.n = 13; st()
    a('s_cmp_gt_u32 s23, 111'); a('s_cbranch_scc1 fz_nof2')
    a('s_barrier')
    BH, ACC = 120, 152
    for q in range(8): a('ds_read_b128 %s, v15 offset:%d' % (v(BH + 4 * q, 4), 64 * q))
    a('s_waitcnt vmcnt(0)')
    for q in range(8):
        a('s_waitcnt lgkmcnt(%d)' % (7 - q))
        a('v_mfma_f32_16x16x32_bf16 %s, %s, %s, %s' % (v(ACC, 4), v(BH + 4 * q, 4), v(WD + 4 * q, 4), v(ACC, 4) if q else '0'))
    a('s_mov_b32 exec_hi, 0')
    for k in range(4): a('v_and_or_b32 %s, %s, v14, %s' % (v(ACC + k), v(ACC + k), s(48 + k)))
    a('buffer_store_dwordx4 %s, %s, s[4:7], s63 offen sc1' % (v(ACC, 4), v(vL16)))
    a('s_mov_b32 exec_hi, -1')
    if '--wdearly' not in OPT: a('s_cmp_eq_u32 s18, s3'); a('s_cbranch_scc1 fz_late')
    a('s_cmp_lg_u32 s59, s3'); a('s_cbranch_scc1 fz_xend')
    a('v_mov_b32 v7, 0')
    a('s_waitcnt vmcnt(0)')
    a('s_branch fz_p5_ok')
    a.label('fz_nof2')
    a('s_cmp_lg_u32 s59, s3'); a('s_cbranch_scc1 fz_xend')
    a('s_mov_b32 s58, 0'); a('s_and_b32 s41, s20, 63'); a('s_mul_i32 s41, s41, %d' % PPS); a('s_add_u32 s41, s41, s52'); a('v_mov_b32 v7, 0')
    a.label('fz_p5')
    a('buffer_load_dword v8, v7, s[4:7], s41 offen sc1')
    a('s_waitcnt vmcnt(0)')
    a('v_and_b32 v8, 0xff, v8'); a('v_cmp_ne_u32 vcc, s48, v8')
    poll_retry('fz_p5')
    a('s_mov_b32 s58, 0')
    st()
    a.label('fz_h5')
    for u in range(4): a('buffer_load_dwordx4 %s, %s, s[4:7], %s offen sc1' % (v(PQ + 4 * u, 4), 'v6' if u == 3 else 'v3', s(52 + u)))
    for u in range(4):
        a('s_waitcnt vmcnt(%d)' % (3 - u))
        for k in range(4): a('v_xor_b32 %s, %s, %s' % (v(PQ + 4 * u + k), v(16 + k) if u == 3 else s(48 + k), v(PQ + 4 * u + k)))
        a('v_or3_b32 v8, %s, %s, %s' % (v(PQ + 4 * u), v(PQ + 4 * u + 1), 'v8' if u else '0'))
        a('v_or3_b32 v8, %s, %s, v8' % (v(PQ + 4 * u + 2), v(PQ + 4 * u + 3)))
    a('v_and_b32 v8, 0xff, v8'); a('v_cmp_ne_u32 vcc, 0, v8')
    poll_retry('fz_h5')
    for (d, e) in ((0, 4), (8, 12), (0, 8)):
        for h in range(2): a('v_pk_add_f32 %s, %s, %s' % (v(PQ + d + 2 * h, 2), v(PQ + d + 2 * h, 2), v(PQ + e + 2 * h, 2)))
    for i in range(2): a('v_permlane32_swap_b32 %s, %s' % (v(PQ + i), v(PQ + 2 + i)))
    a('v_pk_add_f32 %s, %s, %s' % (v(PQ, 2), v(PQ, 2), v(PQ + 2, 2)))
    a('v_permlane16_swap_b32 %s, %s' % (v(PQ), v(PQ + 1)))
    a('v_add_f32 %s, %s, %s' % (v(PQ), v(PQ), v(PQ + 1)))
    a('v_add_f32_dpp %s, %s, %s quad_perm:[2,3,0,1] %s' % (v(PQ), v(PQ), v(PQ), DPPF))
    a('v_add_f32_dpp %s, %s, %s row_ror:4 %s' % (v(PQ), v(PQ), v(PQ), DPPF))
    a('v_add_f32_dpp %s, %s, %s row_ror:8 %s' % (v(PQ), v(PQ), v(PQ), DPPF))
    rbf(a, PQ); a('v_mul_f32 %s, %s, v12' % (v(PQ), v(PQ))); rbf(a, PQ)
    a('v_add_f32 %s, %s, v11' % (v(PQ), v(PQ))); rbf(a, PQ)
    a('v_add_f32 %s, %s, v10' % (v(PQ), v(PQ))); rbf(a, PQ)
    a('s_mov_b32 exec_lo, 0x00030003'); a('s_mov_b32 exec_hi, 0x00030003')
    a('buffer_store_short_d16_hi %s, v2, s[12:15], s39 offen' % v(PQ))
    a('s_cmp_lg_u32 s20, 0'); a('s_cbranch_scc1 fz_xend')
    a('s_mov_b64 exec, 1'); a('v_mov_b32 v8, s40')
    a('buffer_store_dword v8, v7, s[4:7], 0 offen')
    a.lines.append('fz_xend:')
    st.n = 15; st()
    st.dump(n=16, sv=250, wave='s3')
    a.lines.append('fz_end:')
    a('s_endpgm')
    a.lines.append('fz_late:')
    for r in range(2):
        for q in range(2): a('buffer_store_dwordx4 %s, %s, s[12:15], %s offen offset:%d%s' % (v(OP + 8 * r + 4 * q, 4), v(vL16), s(34 + r), 1024 * q, OUTF))
    a('s_branch fz_xend')
    a.lines.append('fz_act:')
    a('s_cmp_gt_u32 s23, 111'); a('s_cbranch_scc1 fz_xend')
    a('v_lshlrev_b32 v2, 2, v1'); a('v_and_b32 v11, 3, v1'); a('v_mov_b32 v3, s48')
    for k in range(1, 4): a('v_cmp_eq_u32 vcc, %d, v11' % k); a('v_mov_b32 v10, %s' % s(48 + k)); a('v_cndmask_b32 v3, v3, v10, vcc')
    a('v_and_b32 v10, 31, v1'); a('v_lshlrev_b32 v6, 4, v10'); a('v_lshrrev_b32 v10, 5, v1'); a('v_mul_u32_u24 v10, %d, v10' % (4 * 546)); a('v_add_u32 v6, v6, v10'); a('v_add_u32 v6, %d, v6' % ACT)
    a('s_lshl_b32 s38, s23, 11'); a('s_add_u32 s38, s38, 0x%x' % XOFF)
    a('s_mov_b32 s58, 0')
    st.n = 12; st()
    a.lines.append('fz_h4:')
    for k in range(8): a('buffer_load_dword %s, v2, s[4:7], s38 offen offset:%d sc1' % (v(16 + k), 256 * k))
    for k in range(0, 8, 2):
        a('s_waitcnt vmcnt(%d)' % (6 - k))
        a('v_xor_b32 %s, v3, %s' % (v(16 + k), v(16 + k))); a('v_xor_b32 %s, v3, %s' % (v(17 + k), v(17 + k)))
        a('v_or3_b32 v10, %s, %s, %s' % (v(16 + k), v(17 + k), 'v10' if k else '0'))
        a('v_add_f32 %s, %s, %s' % (v(16 + k), v(16 + k), v(17 + k)))
        if k & 2: a('v_add_f32 %s, %s, %s' % (v(14 + k), v(14 + k), v(16 + k)))
    a('v_and_b32 v10, 0xff, v10'); a('v_add_f32 v8, v16, v20')
    a('v_cmp_ne_u32 vcc, 0, v10')
    poll_retry('fz_h4')
    rbf(a, 8)
    a('v_mov_b32 v9, v8')
    a('v_permlane32_swap_b32 v8, v9')
    a('v_mul_f32 v10, %s, v8' % fh(-1.4426950408889634))
    a('v_exp_f32 v10, v10')
    a('v_add_f32 v10, 1.0, v10'); a('v_rcp_f32 v10, v10')
    a('v_mul_f32 v8, v8, v10'); rbf(a, 8)
    a('v_mul_f32 v8, v8, v9'); rbf(a, 8)
    for m in range(4): a('ds_write_b16_d16_hi v6, v8 offset:%d' % (546 * m))
    a('s_waitcnt lgkmcnt(0)')
    a('s_branch fz_f2')
    a.lines.append('fz_ldh:')
    a('s_load_dwordx2 s[12:13], s[0:1], 56'); a('s_load_dwordx2 s[16:17], s[0:1], 64')
    srd(12, 0x700000); srd(16, 0x700000)
    a('s_branch fz_ldback')
    a.lines.append('fz_spec:')
    a('s_cmp_gt_u32 s3, 3'); a('s_cbranch_scc1 fz_spec_hi')
    for q, sa, sb in ((0, 0, 16), (2, 15, 17), (3, 18, 19)):
        a('s_cmp_eq_u32 s3, %d' % q); a('s_cselect_b32 s31, %d, s31' % (sa * RS)); a('s_cselect_b32 s30, %d, s30' % (sb * RS))
    a('s_branch fz_specback')
    a.lines.append('fz_spec_hi:')
    xload()
    if LATEX: extras()
    for q, ra, rb, sa, sb in ((0, 256, 1792, 4, 11), (1, 768, 1280, 6, 9), (2, 768, 1280, 20, 21), (3, 256, 1792, 22, 23)):
        a('s_cmp_eq_u32 s24, %d' % q); a('s_cselect_b32 s31, %d, s31' % (sa * RS)); a('s_cselect_b32 s30, %d, s30' % (sb * RS))
        a('s_cselect_b32 s27, %d, s27' % (ra * 2048)); a('s_cselect_b32 s28, %d, s28' % (rb * 2048))
    a('s_mov_b32 s57, 0')
    a('s_branch fz_specback')
    a.lines.append('fz_spec4:')
    a('s_mov_b32 s38, 0x80018001'); a('s_mov_b32 s39, 0x80018001')
    for k in range(8): a('v_cndmask_b32 %s, %s, %s, s[38:39]' % (v(YM + k), v(YM + k), v(YD + k)))
    a('s_branch fz_spec4back')
    a.label('fz_nc1')
    a('s_cmp_lg_u32 s59, 0'); a('s_cbranch_scc1 ffn_early')
    if LATEX: latex()
    SETA()
    a('s_waitcnt vmcnt(0)')
    a('s_branch fz_b1')
    a.label('fz_nc2')
    SETB('b')
    a('s_waitcnt vmcnt(0)')
    st.n = 6; st()
    h1load()
    SET2()
    a.flush(); a('s_branch fz_h1c')
    a.label('fz_nc3')
    a('s_mov_b32 s58, 0')
    a('s_waitcnt vmcnt(0)')
    st.n = 9; st()
    a('s_branch fz_h2')
    for sfx in 'ab':
        a.lines.append('fz_spec3%s:' % sfx)
        a('v_xor_b32 v11, 1, v4'); a('v_cndmask_b32 v9, v9, v11, s[34:35]')
        a('v_and_b32 v11, 1, v4'); a('v_cndmask_b32 v11, 0, v11, s[34:35]'); a('v_sub_u32 v10, v10, v11')
        a('s_cmp_lg_u32 s22, 0'); a('s_cbranch_scc1 fz_spec3back%s' % sfx)
        for i, tt, pp, po in ((15, 1024, 124, 4), (13, 1536, 124, 6), (4, 256, 127, 8), (11, 1792, 127, 14), (6, 768, 127, 10), (9, 1280, 127, 12)):
            a('v_cmp_eq_u32 vcc, %d, v4' % i); a('v_mov_b32 v11, %d' % tt); a('v_mov_b32 v12, %d' % pp)
            a('v_cndmask_b32 %s, %s, v11, vcc' % (v(vT), v(vT))); a('v_cndmask_b32 v10, v10, v12, vcc'); a('v_cndmask_b32 v9, v9, %d, vcc' % po)
        a.flush(); a('s_branch fz_spec3back%s' % sfx)
    WF, WD, BH, ACC, K = 32, 96, 128, 192, 200
    SNT = '' if '--spl' in OPT else ' nt'
    def ffn_addr():
        a('s_bfe_u32 s21, s2, 0x30003')
        a('v_lshrrev_b32 v2, 5, v1'); a('v_and_b32 v3, 31, v1'); a('v_lshlrev_b32 v4, 1, v2'); a('v_xor_b32 v3, v4, v3')
        a('v_mul_u32_u24 v4, 7168, v2'); a('v_lshl_add_u32 v4, v3, 4, v4')
        for k in range(1, 4): a('v_xor_b32 %s, %d, v4' % (v(4 + k), 64 * k))
        a('s_lshl_b32 s23, s21, 7'); a('s_lshl_b32 s24, s3, 4'); a('s_add_u32 s23, s23, s24'); a('s_mul_i32 s23, s23, 7168'); a('s_lshl_b32 s24, s22, 9'); a('s_add_u32 s23, s23, s24')
        a('s_lshl_b32 s24, s3, 13')
    def gu(m, p):
        a('s_add_u32 s28, s24, %d' % ((0 if m else GT) + 1024 * p)); a('s_mov_b32 m0, s28'); a('s_add_u32 s29, s23, %d' % (p * 2 * 7168))
        if '--xnogu' not in OPT: a('buffer_load_dwordx4 %s, %s, s29 offen%s lds' % (v(4 + (p & 1) + 2 * (p >> 2)), s(16 if m else 12, 4), SNT))
    a.label('ffn_early')
    if NE:
        blk(22, 20); a('s_cmp_gt_u32 s22, 13'); a('s_cbranch_scc1 fz_b1')
        ffn_addr()
        for p in range(NE): gu(0, p)
    a('s_branch fz_b1')
    a.label('ffn')
    st.n = 5; st()
    blk(22, 20)
    a('s_cmp_gt_u32 s22, 13'); a('s_cbranch_scc1 fz_xend')
    if NE:
        a('s_cmp_gt_u32 s3, 3'); a('s_cbranch_scc1 ffn_g2')
    ffn_addr()
    for p in range(8):
        if NE and p == NE: a.lines.append('ffn_g2:')
        gu(0, p)
    if NE == 8: a.lines.append('ffn_g2:')
    for p in range(8): gu(1, p)
    a('v_lshrrev_b32 v2, 4, v1'); a('v_and_b32 v3, 15, v1')
    a('v_bfe_u32 v9, v1, 2, 2'); a('v_lshl_add_u32 v8, v2, 3, v9'); a('v_lshlrev_b32 v8, 9, v8')
    a('v_and_b32 v10, 1, v2'); a('v_lshl_add_u32 v10, v10, 2, v9'); a('s_lshl_b32 s28, s3, 1'); a('v_xor_b32 v10, s28, v10')
    a('v_lshl_add_u32 v8, v10, 5, v8'); a('v_and_b32 v10, 3, v1'); a('v_lshl_add_u32 v8, v10, 3, v8')
    a('v_xor_b32 v12, 32, v8'); a('v_add_u32 v13, %d, v8' % GT); a('v_add_u32 v20, %d, v12' % GT)
    a('v_bfe_u32 v9, v0, 2, 2'); a('v_lshrrev_b32 v10, 6, v0'); a('v_lshl_add_u32 v9, v10, 2, v9')
    a('v_bfe_u32 v10, v0, 4, 1'); a('v_and_b32 v11, 3, v0'); a('v_lshlrev_b32 v11, 1, v11'); a('v_lshl_add_u32 v10, v10, 3, v11')
    a('v_lshl_add_u32 v11, v9, 5, v10'); a('v_add_u32 v17, 1, v11')
    a('v_cmp_eq_u32 vcc, 0, v10'); a('v_cmp_gt_u32 s[28:29], 16, v9'); a('s_and_b64 vcc, vcc, s[28:29]'); a('v_cndmask_b32 v14, 0, 16, vcc'); a('v_add_u32 v16, v11, v14')
    a('v_bfe_u32 v10, v0, 5, 1'); a('v_cmp_eq_u32 s[28:29], 1, v10')
    a('v_sub_u32 v14, 1024, v16'); a('v_cmp_eq_u32 vcc, 512, v16'); a('v_cndmask_b32 v14, v14, 0, vcc'); a('v_cndmask_b32 v16, v16, v14, s[28:29]')
    a('v_sub_u32 v14, 1024, v17'); a('v_cndmask_b32 v17, v17, v14, s[28:29]')
    for r in (16, 17): a('v_lshlrev_b32 %s, 1, %s' % (v(r), v(r))); a('v_add_u32 %s, %d, %s' % (v(r), HN, v(r)))
    a('v_lshlrev_b32 v18, 2, v0'); a('v_add_u32 v18, %d, v18' % RAW)
    a('s_lshl_b32 s28, s21, 8'); a('s_add_u32 s28, s28, %d' % HN); a('v_lshlrev_b32 v19, 4, v2'); a('v_add_u32 v19, s28, v19')
    a('v_mov_b32 v28, %d' % MSG)
    a('v_lshlrev_b32 v29, 4, v1')
    a('s_lshl_b32 s30, s22, 3'); a('s_add_u32 s30, s30, s3'); a('s_lshl_b32 s30, s30, 3'); a('s_add_u32 s30, s30, s21'); a('s_lshl_b32 s30, s30, 8'); a('s_add_u32 s30, s30, 0x%x' % XOFF)
    a('v_lshlrev_b32 v30, 4, v2'); a('v_lshl_add_u32 v30, v3, 6, v30')
    for k in range(1, 4): a('v_cmp_eq_u32 %s, %d, v3' % (s(58 + 2 * k, 2), k))
    a('v_add_u32 v21, %d, v29' % RAW)
    a('v_mov_b32 %s, 0xffffff00' % v(197))
    a('s_and_b32 s35, s2, 0x47'); a('s_lshl_b32 s31, s3, 3'); a('s_add_u32 s35, s35, s31'); a('s_add_u32 s35, s35, 124'); a('s_and_b32 s35, s35, 127')
    a('s_getreg_b32 s33, hwreg(HW_REG_XCC_ID)'); a('s_and_b32 s33, s33, 15')
    a('s_lshr_b32 s31, s35, 5'); a('s_lshl_b32 s31, s31, 2'); a('s_add_u32 s31, s31, %d' % (MSG + 16)); a('v_mov_b32 v22, s31')
    a('s_lshl_b32 s20, s22, 3'); a('s_add_u32 s20, s20, s21')
    a('s_and_b32 s34, s20, 15'); a('s_mul_i32 s34, s34, %d' % KS); a('s_add_u32 s34, s34, 0x%x' % KOFF)
    a('s_waitcnt vmcnt(0)')
    a('s_barrier')
    st()
    for T_, ad in enumerate((13, 20, 8, 12)):
        for k in range(4):
            for hh in range(2): a('ds_read_b64_tr_b16 %s, %s offset:%d' % (v(WF + 16 * T_ + 4 * k + 2 * hh, 2), v(ad), 16384 * k + 2048 * hh))
        a('s_waitcnt lgkmcnt(0)')
    st()
    a('s_cmp_lg_u32 s3, 0'); a('s_cbranch_scc1 ffn_w3')
    a('s_lshl_b32 s28, s20, 4'); a('s_add_u32 s28, s28, s34'); a('v_mov_b32 v10, 12')
    a.label('ffn_p3')
    a('buffer_load_dword v11, v10, s[4:7], s28 offen sc1')
    a('s_waitcnt vmcnt(0)')
    a('v_cmp_ne_u32 vcc, s40, v11')
    poll_retry('ffn_p3')
    a('s_mov_b32 s58, 0')
    st()
    a.label('ffn_k3')
    a('buffer_load_dwordx4 %s, v29, s[4:7], s34 offen sc1' % v(K, 4)); a('buffer_load_dwordx4 %s, v29, s[4:7], s34 offen offset:1024 sc1' % v(K + 4, 4))
    a('s_waitcnt vmcnt(0)')
    keys_argmax(K, None, 'ffn_k3')
    a('v_cmp_eq_u32 vcc, s36, %s' % v(K)); a('v_cmp_eq_u32 s[28:29], s36, %s' % v(K + 4))
    a('s_cmp_lg_u64 vcc, 0'); a('s_cselect_b32 s39, 0, 64'); a('s_or_b64 vcc, vcc, s[28:29]'); a('s_ff1_i32_b64 s41, vcc')
    a('s_add_u32 s39, s39, s41'); a('s_lshl_b32 s39, s39, 11'); a('s_add_u32 s39, s39, 0x%x' % COFF)
    a('s_mov_b32 s58, 0')
    st()
    CR = BH
    a.lines.append('ffn_c3:')
    a('buffer_load_dwordx4 %s, v29, s[4:7], s39 offen sc1' % v(CR, 4)); a('buffer_load_dwordx4 %s, v29, s[4:7], s39 offen offset:1024 sc1' % v(CR + 4, 4))
    a('v_and_b32 v10, 15, %s' % v(K + 1)); a('v_and_b32 v11, 15, %s' % v(K + 5))
    a('v_cmp_eq_u32 s[24:25], s33, v10'); a('v_cmp_eq_u32 s[26:27], s33, v11')
    for k in range(4): a('v_mov_b32 %s, %s' % (v(K + 12 + k), s(24 + k) if LOCAL else '0'))
    for k in range(1, 3): a('v_cndmask_b32 %s, %s, %s, s[28:29]' % (v(K + 8 + k), v(K + k), v(K + 4 + k)))
    a('v_and_b32 %s, 0xffff0000, %s' % (v(K + 9), v(K + 9)))
    a('s_mov_b64 s[42:43], vcc'); a('s_mov_b64 exec, vcc')
    a('ds_write_b128 v28, %s' % v(K + 8, 4)); a('ds_write_b128 v28, %s offset:16' % v(K + 12, 4))
    a('s_mov_b64 exec, -1')
    a('s_waitcnt vmcnt(1)')
    a('ds_write_b128 v21, %s' % v(CR, 4))
    a('v_max3_u32 v10, %s, %s, %s' % (v(CR), v(CR + 1), v(CR + 2)))
    a('s_waitcnt vmcnt(0)')
    a('ds_write_b128 v21, %s offset:1024' % v(CR + 4, 4))
    a('v_max3_u32 v10, v10, %s, %s' % (v(CR + 3), v(CR + 4))); a('v_max3_u32 v11, %s, %s, %s' % (v(CR + 5), v(CR + 6), v(CR + 7))); a('v_max_u32 v10, v10, v11')
    a('v_cmp_eq_u32 vcc, -1, v10')
    a('s_cbranch_vccnz ffn_c3_rt')
    a.lines.append('ffn_c3_ok:')
    a('s_waitcnt lgkmcnt(0)')
    a.label('ffn_w3')
    a('s_barrier')
    st.n = 10; st()
    a('ds_read_b32 v11, v18'); a('ds_read_b128 %s, v28' % v(K, 4)); a('ds_read_b32 %s, v22' % v(K + 3))
    a('s_mov_b32 s28, 0xffff0000')
    a('s_waitcnt lgkmcnt(2)')
    a('v_lshlrev_b32 v14, 16, v11'); a('v_and_b32 v15, s28, v11')
    a('s_waitcnt lgkmcnt(0)')
    for r in (14, 15): a('v_add_f32 %s, %s, %s' % (v(r), v(r), v(K + 1)))
    for r in (14, 15): rbf(a, r)
    for r in (14, 15): a('v_mul_f32 %s, %s, %s' % (v(r), v(r), v(K + 2)))
    a('v_cvt_pk_bf16_f32 v14, v14, v15')
    a('ds_write_b16 v16, v14'); a('ds_write_b16_d16_hi v17, v14')
    a('v_readfirstlane_b32 s24, %s' % v(K + 3))
    a('s_waitcnt lgkmcnt(0)'); a('s_barrier')
    st()
    for k in range(4): a('ds_read_b128 %s, v19 offset:%d' % (v(BH + 4 * k, 4), 64 * k))
    AC = 144
    for k in range(4):
        a('s_waitcnt lgkmcnt(%d)' % (3 - k))
        for T_ in range(4): a('v_mfma_f32_16x16x32_bf16 %s, %s, %s, %s' % (v((AC + 4 * T_) if T_ else ACC, 4), v(WF + 16 * T_ + 4 * k, 4), v(BH + 4 * k, 4), v((AC + 4 * T_) if T_ else ACC, 4) if k else '0'))
    for T_ in range(1, 4):
        for k in range(4): a('v_cndmask_b32 %s, %s, %s, %s' % (v(ACC + k), v(ACC + k), v(AC + 4 * T_ + k), s(58 + 2 * T_, 2)))
    a('s_mov_b32 exec_lo, 0x000f000f'); a('s_mov_b32 exec_hi, 0x000f000f')
    for k in range(4): a('v_and_or_b32 %s, %s, %s, %s' % (v(ACC + k), v(ACC + k), v(197), s(48 + k)))
    a('s_bitcmp1_b32 s24, s35'); a('s_cbranch_scc0 ffn_rem')
    a('buffer_store_dwordx4 %s, v30, s[4:7], s30 offen' % v(ACC, 4))
    a.lines.append('ffn_fin:')
    st()
    st.dump(sv=250, wave='s3')
    a('s_endpgm')
    a.lines.append('ffn_rem:')
    a('buffer_store_dwordx4 %s, v30, s[4:7], s30 offen sc1' % v(ACC, 4))
    a('s_branch ffn_fin')
    a.lines.append('ffn_c3_rt:')
    a('s_mov_b64 vcc, s[42:43]'); a('s_add_u32 s58, s58, 1'); a('s_cmp_lt_u32 s58, 0x%x' % MAXPOLL); a('s_cbranch_scc1 ffn_c3'); a('s_branch ffn_c3_ok')
    emit_stubs()
    a.lines.append('fz_codeend:')

def main(path):
    ref = open('/code/%s.s.ref' % NAME).read().splitlines()
    for l in ref:
        if l.startswith('; Override'): break
        a.raw(l)
    a.raw('; @launch kernel=fz_kernel grid=(256,1,1) block=(512,1,1) lds=163840')
    if STAMPS: a.raw('; @groups fftA=0-127:0-3,fftB=0-127:4-7,ffn=128-255:0-0')
    a.raw('.amdgcn_target "amdgcn-amd-amdhsa--gfx950"'); a.raw('.text')
    gen()
    a.raw('.section .rodata,"a"')
    a.raw('\n'.join(['.p2align 6', '.amdhsa_kernel fz_kernel', '  .amdhsa_next_free_vgpr 256', '  .amdhsa_next_free_sgpr 102',
        '  .amdhsa_accum_offset 256', '  .amdhsa_group_segment_fixed_size 0', '  .amdhsa_kernarg_size 104', '  .amdhsa_user_sgpr_count 2',
        '  .amdhsa_user_sgpr_kernarg_segment_ptr 1', '  .amdhsa_system_sgpr_workgroup_id_x 1', '.end_amdhsa_kernel', '']))
    open(path, 'w').write(a.text())
    print('wrote', path, 'lines', len(a.lines), 'nops', a.nops)
if __name__ == '__main__':
    ps = [x for x in sys.argv[1:] if x.endswith('.s')]
    main(ps[0] if ps else '/code/%s.s' % NAME)
```

```python
import struct, sys
import os; _d = os.path.dirname(os.path.abspath(__file__)); sys.path.insert(0, _d); sys.path.insert(0, _d + '/mb')
from asmlib import Asm
from mblib import St
NAME = 'sequential_preLN__spectral_fnet__moe_arch_mod__prompt'
def fh(x): return '0x%08x' % struct.unpack('<I', struct.pack('<f', x))[0]
OPT = set(a for a in sys.argv[1:] if a.startswith('--'))
def optv(name, d):
    for o in OPT:
        if o.startswith('--%s=' % name): return int(o.split('=')[1])
    return d
STAMPS = '--stamps' in OPT
def v(i, n=1): return 'v%d' % i if n == 1 else 'v[%d:%d]' % (i, i + n - 1)
def s(i, n=1): return 's%d' % i if n == 1 else 's[%d:%d]' % (i, i + n - 1)
DPPF = 'row_mask:0xf bank_mask:0xf'
X1 = 'quad_perm:[1,0,3,2] ' + DPPF
def rbf(a, r): a('v_cvt_pk_bf16_f32 %s, 0, %s' % (v(r), v(r)))
def kr(r): return (r & 3) + 8 * (r >> 2)
PS = 16384 + 128
WOFF = 0x1000; YOFF = 0x210000; KRL = optv('krl', 4); KOFF = 0x580000; KS = (128 << KRL) + 128; COFF = 0x448000; XOFF = 0x488000; POFF = 0x4c8000; PPS = 4096 + 128; PIS = 3584 + 128
DOFF = 0x548000; FIOFF = 0x558000; WSB = 0x690000
RS = 2064
CT = 24 * RS; SB = CT + 18432; AB = SB + 18432; CPS = 8192 + 64; PR = AB + 2 * CPS; WR = PR + 2048; TRASH = WR + 2048; ACT = TRASH + 1024; SYNC = CT - 16
GT = 81920; SP = 65536; HN = GT + 65536; MSG = HN + 2048; RAW = MSG + 64
MAXPOLL = 0x10000
SPID = optv('spid', 66); POFS = (124 - SPID) & 127
class Asm2(Asm):
    def __call__(self, text):
        if text.startswith('v_cndmask_b32 '): text = 'v_cndmask_b32_e64 ' + text[14:]
        Asm.__call__(self, text)
a = Asm2()
class St2(St):
    def __call__(self):
        if '--early' in OPT and 5 < self.n < 15: self.n += 1; return
        St.__call__(self)
st = St2(a, STAMPS)
def est(i):
    if '--early' in OPT and STAMPS: a('s_memrealtime s[%d:%d]' % (70 + 2 * i, 71 + 2 * i))
stubs = []
def poll_retry(name, cnt=58):
    a('s_cbranch_vccnz %s_rt' % name)
    a.lines.append('%s_ok:' % name)
    stubs.append((name, cnt))
prog = []
def prog_poll(name, n, issue, check, after=None):
    for u in range(n):
        a.lines.append('%s_c%d:' % (name, u))
        a('s_waitcnt vmcnt(%d)' % (n - 1 - u))
        check(u)
        a('s_cbranch_vccnz %s_r%d' % (name, u))
        a.lines.append('%s_o%d:' % (name, u))
        if after: after(u)
    prog.append((name, n, issue))
def emit_stubs():
    for name, n, issue in prog:
        for u in range(n):
            a.lines.append('%s_r%d:' % (name, u))
            a('s_add_u32 s58, s58, 1'); a('s_cmp_gt_u32 s58, 0x%x' % MAXPOLL); a('s_cbranch_scc1 %s_o%d' % (name, u))
            for k in range(u, n): issue(k)
            a('s_branch %s_c%d' % (name, u))
    for name, cnt in stubs:
        a.lines.append('%s_rt:' % name)
        a('s_add_u32 %s, %s, 1' % (s(cnt), s(cnt))); a('s_cmp_lt_u32 %s, 0x%x' % (s(cnt), MAXPOLL))
        a('s_cbranch_scc1 %s' % name); a('s_branch %s_ok' % name)
def angles(mulreg, basereg, ks, tmp):
    for i, k in enumerate(ks):
        if k == 0: a('v_mov_b32 %s, %s' % (v(tmp + i), v(basereg)))
        else: a('v_fmamk_f32 %s, %s, %s, %s' % (v(tmp + i), v(mulreg), fh(float(k)), v(basereg)))
def trig(fn, t, n):
    for i in range(n): a('v_%s_f32 %s, %s' % (fn, v(t + i), v(t + i)))
def pack(dst, t, n, kind='f16'):
    for p in range(n // 2): a('v_cvt_pk_%s_f32 %s, %s, %s' % (kind, v(dst + p), v(t + 2 * p), v(t + 2 * p + 1)))
def tags():
    a('v_readfirstlane_b32 s40, v250')
    a('s_add_u32 s40, s40, 1'); a('s_and_b32 s38, s40, 3'); a('s_and_b32 s39, s40, 15')
    for i in range(4):
        a('s_bfe_u32 s41, s40, 0x%x' % ((2 << 16) | (2 * i + 2))); a('s_lshl_b32 s41, s41, 16'); a('s_or_b32 %s, s38, s41' % s(44 + i))
        a('s_bfe_u32 s41, s40, 0x%x' % ((4 << 16) | (4 * i + 4))); a('s_lshl_b32 s41, s41, 4'); a('s_or_b32 %s, s39, s41' % s(48 + i))
def srd(d, nbytes): a('s_mov_b32 %s, 0x%x' % (s(d + 2), nbytes)); a('s_mov_b32 %s, 0x00020000' % s(d + 3))
def blk(dst, tmp):
    if optv('bm', 0):
        e = optv('bm', 0) - 1
        a('s_add_u32 %s, s2, %d' % (s(tmp), 7 - e)); a('s_and_b32 %s, %s, 7' % (s(tmp), s(tmp))); a('s_bfe_u32 %s, s2, 0x10006' % s(tmp + 1))
        a('s_lshl_b32 %s, %s, 1' % (s(dst), s(tmp))); a('s_add_u32 %s, %s, %s' % (s(dst), s(dst), s(tmp + 1))); a('s_min_u32 %s, %s, 14' % (s(dst), s(dst)))
        return
    a('s_add_u32 %s, s2, 4' % s(tmp)); a('s_and_b32 %s, %s, 7' % (s(tmp), s(tmp))); a('s_bfe_u32 %s, s2, 0x10006' % s(tmp + 1))
    a('s_lshl_b32 %s, %s, 1' % (s(dst), s(tmp))); a('s_add_u32 %s, %s, %s' % (s(dst), s(dst), s(tmp + 1)))
    a('s_cmp_lg_u32 %s, 0' % s(tmp + 1)); a('s_cselect_b32 %s, 8, %s' % (s(tmp + 1), s(tmp))); a('s_add_u32 %s, %s, 6' % (s(tmp + 1), s(tmp + 1)))
    a('s_cmp_lt_u32 %s, 6' % s(tmp)); a('s_cselect_b32 %s, %s, %s' % (s(dst), s(dst), s(tmp + 1)))
def keys_argmax(K, gidx, name):
    a('v_xor_b32 %s, s40, %s' % (v(K + 8), v(K + 3))); a('v_xor_b32 %s, s40, %s' % (v(K + 9), v(K + 7)))
    a('v_max_u32 %s, %s, %s' % (v(K + 10), v(K), v(K + 4)))
    a('v_or_b32 %s, %s, %s' % (v(K + 8), v(K + 8), v(K + 9)))
    a('v_cmp_ne_u32 vcc, 0, %s' % v(K + 8))
    poll_retry(name)
    for pat in ['quad_perm:[1,0,3,2] ' + DPPF, 'quad_perm:[2,3,0,1] ' + DPPF, 'row_half_mirror ' + DPPF,
                'row_mirror ' + DPPF, 'row_bcast:15 row_mask:0xa bank_mask:0xf', 'row_bcast:31 row_mask:0xc bank_mask:0xf']:
        a('v_max_u32_dpp %s, %s, %s %s' % (v(K + 10), v(K + 10), v(K + 10), pat))
    a('v_readlane_b32 s36, %s, 63' % v(K + 10))

def gen():
    PIN = optv('pin', 1); DTH = optv('dth', 0); SPEC = optv('spec', 1); EP = optv('ep', 0); TWO = optv('two', 0); L2P = optv('l2p', 0); DEC = optv('dec', 0)
    APP = optv('app', 0); WL = optv('wl', 0)
    BP = optv('bp', 1); THR = optv('thr', 0); THR2 = optv('thr2', 0)
    KP = optv('kp', 0); DB = optv('db', 3)
    PFC = optv('pfc', 1); WSP = optv('wsp', 2600); WE = WSP // 1000; W2 = WE + WSP // 100 % 10; W3 = W2 + WSP // 10 % 10; assert W3 + WSP % 10 == 8; OLATE = '--olate' in OPT; GATE = optv('gate', 0)
    TOUCH = optv('touch', 0); LOCAL = '--nolocal' not in OPT
    NE = optv('ne', 0); LATEX = '--earlyx' not in OPT
    a.raw('.globl fz_kernel'); a.raw('.p2align 8'); a.raw('.type fz_kernel,@function'); a.lines.append('fz_kernel:')
    st()
    if STAMPS:
        for i in range(1, 16): a('s_mov_b32 s%d, -1' % (70 + 2 * i))
    F1, TC, TS, C2, S2, B3C, B3S, CQ = 16, 24, 32, 40, 48, 56, 64, 72
    XA, XB, XAC, XBC, H, T, TP, ST = 88, 96, 104, 120, 136, 144, 152, 160
    XD, WV, WD = 28, 200, 168
    vSW, vSR, vWST, vHL, vA0, vA1, vAR, vY0, vY1, vYL, vM, vT, vXR, vXM, vE0, vM0, vYE, vZM = 216, 217, 221, 222, 223, 224, 225, 226, 227, 228, 229, 230, 231, 232, 233, 234, 236, 238
    vL16, vSG, vM0m, vPW, vPD, vPR, vKA, vCA, vTK, vMT, vE = 239, 240, 241, 243, 244, 245, 246, 247, 248, 249, 252
    a('s_load_dwordx2 s[4:5], s[0:1], 96'); a('s_load_dwordx2 s[8:9], s[0:1], 0'); a('s_load_dwordx2 s[64:65], s[0:1], 72')
    a('s_cmp_gt_u32 s2, 255'); a('s_cbranch_scc1 fz_end')
    a('v_lshrrev_b32 v2, 6, v0'); a('v_and_b32 v1, 63, v0')
    a('s_lshr_b32 s59, s2, 7')
    a('v_readfirstlane_b32 s3, v2')
    if PFC:
        a('s_and_b32 s20, s2, %d' % (255 if '--pfh0' in OPT else 127)); a('s_cmp_lt_u32 s20, %d' % (8 * PFC)); a('s_cselect_b32 s20, s3, 0'); a('s_cmp_lt_u32 s20, 4'); a('s_cbranch_scc1 fz_pfcback')
        a('s_getpc_b64 s[20:21]')
        a.lines.append('fz_pcb:')
        a('s_sub_u32 s20, s20, fz_pcb-fz_kernel'); a('s_subb_u32 s21, s21, 0')
        a('v_and_b32 v3, 255, v0'); a('v_lshlrev_b32 v3, 7, v3'); a('v_min_u32 v3, fz_codeend-fz_kernel-4, v3')
        a('v_mov_b32 v5, s21'); a('v_add_co_u32 v4, vcc, s20, v3'); a('v_addc_co_u32 v5, vcc, 0, v5, vcc')
        a('global_load_dword v251, v[4:5], off')
        a.lines.append('fz_pfcback:')
    a('s_cmp_lg_u32 s59, 0'); a('s_cbranch_scc1 fz_ldh')
    a('s_load_dwordx2 s[12:13], s[0:1], 80'); a('s_load_dwordx2 s[16:17], s[0:1], 48')
    a.lines.append('fz_ldback:')
    a('s_add_u32 s20, s2, %d' % POFS); a('s_and_b32 s20, s20, 127')
    a('s_lshr_b32 s21, s20, 3'); a('s_add_u32 s21, s21, 1'); a('s_and_b32 s22, s20, 7')
    a('s_sub_u32 s23, s20, 124'); a('s_cmp_ge_u32 s20, 124'); a('s_cselect_b32 s21, 0, s21'); a('s_cselect_b32 s22, s23, s22')
    a('s_lshr_b32 s57, s3, 2'); a('s_or_b32 s23, s57, s59'); a('s_and_b32 s24, s3, 3')
    a('s_lshl_b32 s25, s22, 6'); a('s_add_u32 s25, s25, s21')
    a('s_lshl_b32 s26, s23, 5'); a('s_add_u32 s26, s26, s25')
    a('s_lshl_b32 s27, s24, 9'); a('s_add_u32 s28, s26, s27')
    a('s_sub_u32 s27, 2048, s27'); a('s_sub_u32 s27, s27, s26')
    a('s_lshl_b32 s29, s24, 1'); a('s_add_u32 s29, s29, s23'); a('s_sub_u32 s30, 15, s29')
    a('s_cmp_lt_u32 s24, 2'); a('s_cselect_b32 s27, s28, s27'); a('s_cselect_b32 s31, s29, s30'); a('s_cselect_b32 s30, s30, s29')
    a('s_sub_u32 s28, 2048, s27'); a('s_and_b32 s28, s28, 2047')
    a('s_lshl_b32 s27, s27, 11'); a('s_lshl_b32 s28, s28, 11')
    a('s_mul_i32 s31, s31, %d' % RS); a('s_mul_i32 s30, s30, %d' % RS)
    a('v_lshlrev_b32 %s, 4, v1' % v(vL16))
    srd(8, 2048 * 2048); srd(4, WSB); srd(64, 0x700000)
    a('s_and_b32 s32, s57, s59')
    blk(63, 36); a('s_lshl_b32 s63, s63, 3'); a('s_bfe_u32 s37, s2, 0x30003'); a('s_add_u32 s63, s63, s37')
    a('v_and_b32 v10, 15, v1'); a('v_lshlrev_b32 v10, 4, v10'); a('v_lshrrev_b32 v14, 4, v1'); a('v_lshl_add_u32 v14, v14, 11, v10')
    a('s_lshl_b32 s62, s63, 16'); a('s_and_b32 s37, s3, 3'); a('s_lshl_b32 s37, s37, 9'); a('s_add_u32 s62, s62, s37')
    WQ = [160 + 4 * i for i in range(10)] + [60, 64, 68, 88, 92, 96]
    def wdload(q0=0, q1=8):
        for q in range(q0, q0 if '--xnowd' in OPT else q1):
            for h in range(2): a('buffer_load_dwordx4 %s, v14, s[64:67], s62 offen offset:%d%s' % (v(WQ[2 * q + h], 4), 256 * h, '' if '--wpl' in OPT else ' nt'))
            if q < 7: a('s_add_u32 s62, s62, 8192')
    a('s_mov_b32 s58, 0')
    a('s_waitcnt lgkmcnt(0)')
    st()
    a('s_cmp_eq_u32 s2, %d' % SPID); a('s_cbranch_scc1 fz_spec')
    a.lines.append('fz_specback:')
    def xload():
        a('s_mov_b32 m0, s31'); a('s_nop 0')
        a('buffer_load_dwordx4 %s, s[8:11], s27 offen lds' % v(vL16)); a('buffer_load_dwordx4 %s, s[8:11], s27 offen offset:1024 lds' % v(vL16))
        a('s_mov_b32 m0, s30'); a('s_nop 0')
        a('buffer_load_dwordx4 %s, s[8:11], s28 offen lds' % v(vL16)); a('buffer_load_dwordx4 %s, s[8:11], s28 offen offset:1024 lds' % v(vL16))
    def extras():
        a('v_lshlrev_b32 v13, 3, v0'); a('v_mov_b32 v10, -1'); a('v_mov_b32 v11, -1'); a('s_lshl_b32 s32, s20, 11'); a('s_add_u32 s32, s32, 0x%x' % (COFF - 2048))
        srd(16, 2048)
        a('s_lshl_b32 s33, s24, 10'); a('s_min_u32 s34, s33, 2048'); a('s_add_u32 s34, s34, %d' % WR); a('s_mov_b32 m0, s34')
        a('buffer_store_dwordx2 v[10:11], v13, s[4:7], s32 offen sc1')
        a('buffer_load_dwordx4 %s, s[16:19], s33 offen lds' % v(vL16))
    def latex(): xload(); extras()
    a('s_cmp_lg_u32 %s, 0' % ('s57' if LATEX else 's32')); a('s_cbranch_scc1 fz_nox')
    xload()
    a.lines.append('fz_nox:')
    a('buffer_load_dword v250, off, s[4:7], 0')
    if WE:
        a('s_andn2_b32 s32, s57, s59'); a('s_cbranch_scc0 fz_nowe')
        wdload(0, WE)
        a.lines.append('fz_nowe:')
    if not LATEX:
        a('s_andn2_b32 s32, s3, 3'); a('s_cmp_gt_u32 s32, s59'); a('s_cselect_b32 s32, 1, 0'); a('s_andn2_b32 s32, s32, s59'); a('s_cbranch_scc0 fz_noclr')
        extras()
        a.lines.append('fz_noclr:')
    est(6)
    if BP: a('s_cmp_eq_u32 s57, 0'); a('s_cbranch_scc1 fz_np'); a('s_setprio 1'); a.lines.append('fz_np:')
    a('v_and_b32 v2, 31, v1'); a('v_lshrrev_b32 v3, 5, v1'); a('v_and_b32 v4, 15, v1'); a('v_lshrrev_b32 v5, 4, v1')
    a('v_add_u32 v6, %d, %s' % (CT, v(vL16)))
    TT = XAC
    JT = 128
    def cq_job():
        a('s_and_b32 s32, s3, 1'); a('s_lshl_b32 s33, s32, 2'); a('s_lshl_b32 s32, s32, 11')
        a('v_and_b32 v8, 3, v4'); a('v_lshrrev_b32 v9, 2, v4'); a('v_lshl_add_u32 v8, v8, 3, v9'); a('v_add_u32 v8, s33, v8')
        a('v_cvt_f32_u32 v8, v8'); a('v_mul_f32 v8, %s, v8' % fh(1 / 32)); a('v_cvt_f32_u32 v9, v5'); a('v_mul_f32 v9, 4.0, v9'); a('v_mul_f32 v9, v8, v9')
        angles(8, 9, [0, 1, 2, 3, 16, 17, 18, 19], TT)
        for i in range(8): a('v_sin_f32 %s, %s' % (v(TT + 8 + i), v(TT + i)))
        trig('cos', TT, 8)
        for i in range(16): a('v_mul_f32 %s, %s, %s' % (v(TT + i), fh(1 / 16), v(TT + i)))
        pack(JT, TT, 16); a('v_add_u32 v8, s32, v6')
        for q in range(2): a('ds_write_b128 v8, %s offset:%d' % (v(JT + 4 * q, 4), 1024 * (14 + q)))
    a('v_lshrrev_b32 v10, 1, v2'); a('v_and_b32 v8, 9, v10'); a('v_and_b32 v11, 2, v10'); a('v_lshl_or_b32 v8, v11, 1, v8')
    a('v_bfe_u32 v11, v10, 2, 1'); a('v_lshl_or_b32 v8, v11, 1, v8')
    a('v_and_b32 v12, 1, v5'); a('v_cmp_eq_u32 vcc, 1, v12'); a('v_lshl_add_u32 v9, v4, 1, 1'); a('v_cndmask_b32 v9, v9, 0, vcc')
    a('s_cmp_lt_u32 s3, 5'); a('s_cselect_b64 s[32:33], -1, 0')
    a('s_cmp_lt_u32 s3, 3'); a('s_cselect_b64 s[34:35], -1, 0')
    a('v_cndmask_b32 v9, v9, v2, s[32:33]'); a('v_cndmask_b32 v8, v9, v8, s[34:35]')
    a('s_mov_b32 s36, %s' % fh(1 / 32)); a('s_cmp_gt_u32 s3, 4'); a('s_cselect_b32 s36, %s, s36' % fh(1 / 64))
    a('s_sub_u32 s37, s3, 1'); a('s_cmp_lt_u32 s37, 2'); a('s_cselect_b32 s36, %s, s36' % fh(1 / 1024))
    a('s_cmp_eq_u32 s3, 0'); a('s_cselect_b32 s32, 16, 0'); a('s_cselect_b32 s33, %s, 0' % fh(0.25)); a('s_cselect_b32 s34, 4.0, %s' % fh(8.0)); a('s_cselect_b32 s35, %s, 4.0' % fh(8.0))
    a('v_cmp_eq_u32 vcc, 1, v2'); a('v_mov_b32 v10, s32'); a('v_cndmask_b32 v10, 0, v10, vcc'); a('v_add_u32 v8, v8, v10')
    a('v_cvt_f32_u32 v8, v8'); a('v_mul_f32 v8, s36, v8')
    a('s_cmp_eq_u32 s3, 2'); a('s_cselect_b32 s32, 0x80000000, 0'); a('v_lshlrev_b32 v10, 31, v2'); a('v_and_b32 v10, s32, v10'); a('v_xor_b32 v8, v10, v8')
    a('v_and_b32 v10, 1, v2'); a('v_cvt_f32_u32 v10, v10'); a('v_mul_f32 v10, s33, v10')
    a('s_cmp_eq_u32 s3, 1'); a('s_cselect_b32 s33, %s, 0' % fh(0.25)); a('v_mov_b32 v11, s33'); a('v_cndmask_b32 v10, v10, v11, vcc')
    a('s_cmp_eq_u32 s3, 5'); a('s_cselect_b32 s33, %s, 0' % fh(0.25)); a('v_cvt_f32_u32 v12, v12'); a('v_fma_f32 v10, v12, s33, v10')
    a('s_cmp_eq_u32 s3, 6'); a('s_cselect_b32 s33, %s, 0' % fh(0.25))
    a('s_cmp_eq_u32 s3, 2'); a('s_cselect_b32 s33, %s, s33' % fh(-0.25)); a('s_cmp_eq_u32 s3, 4'); a('s_cselect_b32 s33, %s, s33' % fh(-0.25))
    a('v_add_f32 v10, s33, v10'); a('v_cvt_f32_u32 v11, v3'); a('v_mul_f32 v11, s35, v11'); a('v_fma_f32 v9, v8, v11, v10')
    a('v_mul_f32 v10, s34, v8'); a('v_mul_f32 v11, %s, v8' % fh(16.0))
    angles(8, 9, [0, 1, 2, 3], TT)
    for i in range(4): a('v_add_f32 %s, %s, v10' % (v(TT + 4 + i), v(TT + i)))
    for i in range(8): a('v_add_f32 %s, %s, v11' % (v(TT + 8 + i), v(TT + i)))
    est(7)
    trig('cos', TT, 16)
    a('s_lshl_b32 s32, s3, 11'); a('v_add_u32 v8, s32, v6')
    a('s_cmp_eq_u32 s3, 0'); a('s_cbranch_scc1 fz_jb')
    pack(JT, TT, 16)
    a.lines.append('fz_jend:')
    for q in range(2): a('ds_write_b128 v8, %s offset:%d' % (v(JT + 4 * q, 4), 1024 * q))
    B1, TC2, TS2 = 16, 20, 24
    vA = [vA0, vA1, 100, 101]
    def sync_add(val):
        a('v_mov_b32 v10, %d' % val); a('s_mov_b64 exec, 1'); a('ds_add_u32 v15, v10'); a('s_mov_b64 exec, -1')
    def SETA():
        a('s_and_b32 s32, s3, 3'); a('s_lshr_b32 s33, s3, 2'); a('s_lshl_b32 s33, s33, 4'); a('s_add_u32 s33, s33, s32')
        a('v_and_b32 v8, 12, v4'); a('v_bfe_u32 v9, v4, 1, 1'); a('v_lshl_add_u32 v8, v9, 5, v8'); a('v_add_u32 v8, s33, v8')
        a('v_cvt_f32_u32 v8, v8'); a('v_and_b32 v12, 1, v1'); a('v_cvt_f32_u32 v9, v12'); a('v_lshlrev_b32 v13, 2, v5'); a('v_cvt_f32_u32 v10, v13')
        a('v_mul_f32 v11, %s, v8' % fh(1 / 64)); a('v_mul_f32 v9, %s, v9' % fh(0.25)); a('v_fma_f32 v9, v11, v10, v9')
        TT = XAC
        angles(11, 9, [0, 1, 2, 3], TT + 24)
        a('v_mul_f32 v11, %s, v8' % fh(1 / 2048)); a('v_lshlrev_b32 v9, 31, v1'); a('v_xor_b32 v11, v9, v11'); a('v_mul_f32 v9, v11, v10')
        angles(11, 9, [0, 1, 2, 3, 16, 17, 18, 19], TT + 8)
        for i in range(8): a('v_%s_f32 %s, %s' % ('sin' if i & 1 else 'cos', v(TT + i), v(TT + 24 + (i >> 1))))
        for i in range(8): a('v_sin_f32 %s, %s' % (v(TT + 16 + i), v(TT + 8 + i)))
        trig('cos', TT + 8, 8)
        pack(B1, TT, 24)
        a('v_lshrrev_b32 v8, 3, v1'); a('v_mul_u32_u24 %s, %d, v8' % (v(vHL), PS)); a('v_and_b32 v9, 7, v1'); a('v_lshl_add_u32 %s, v9, 4, %s' % (v(vHL), v(vHL)))
        a('s_mul_i32 s60, s3, %d' % (32 * PS)); a('s_lshl_b32 s32, s20, 7'); a('s_add_u32 s60, s60, s32'); a('s_add_u32 s60, s60, 0x%x' % WOFF); a('s_add_u32 s61, s60, %d' % (8 * PS)); a('s_add_u32 s16, s60, %d' % (16 * PS)); a('s_add_u32 s17, s60, %d' % (24 * PS))
        a('v_lshlrev_b32 v8, 1, v8'); a('v_bfe_u32 v9, v1, 2, 1'); a('v_add_u32 v8, v8, v9'); a('s_lshl_b32 s32, s3, 2'); a('s_add_u32 s32, s32, 1')
        a('v_lshl_add_u32 v8, v8, 5, s32')
        a('v_cmp_eq_u32 vcc, 1, v12')
        a('v_bfe_u32 v9, v1, 1, 1'); a('v_mul_u32_u24 v9, %d, v9' % CPS); a('v_add_u32 v9, %d, v9' % AB)
        a('s_cmp_eq_u32 s3, 3'); a('s_cselect_b32 s32, 272, 0')
        for u, dst in enumerate(vA):
            if u == 3: a('v_mul_u32_u24 v10, s32, v3'); a('v_sub_u32 v8, v8, v10')
            if u: a('v_add_u32 v8, 1, v8')
            a('v_sub_u32 v10, 512, v8'); a('v_cndmask_b32 v10, v8, v10, vcc')
            if u == 3: a('v_lshrrev_b32 v11, 1, v10'); a('v_and_b32 v11, 256, v11'); a('v_sub_u32 v10, v10, v11')
            a('v_and_b32 v11, 16, v10'); a('v_lshl_add_u32 v11, v11, 6, v9'); a('v_lshrrev_b32 v12, 7, v10'); a('v_lshl_add_u32 v11, v12, 8, v11')
            a('v_and_b32 v12, 15, v10'); a('v_lshl_add_u32 v11, v12, 4, v11'); a('v_bfe_u32 v12, v10, 5, 2'); a('v_lshl_add_u32 %s, v12, 2, v11' % v(dst))
        a('s_and_b32 s32, s3, 3'); a('s_lshl_b32 s32, s32, 11'); a('s_add_u32 s32, s32, %d' % AB); a('v_add_u32 %s, s32, %s' % (v(vAR), v(vL16)))
        a('v_add_u32 v8, s33, v13')
        a('v_sub_u32 v9, 32, v8'); a('v_min_u32 v9, v8, v9')
        a('v_and_b32 v10, 15, v8'); a('v_cmp_eq_u32 s[32:33], 0, v10')
        a('v_cmp_lt_u32 s[34:35], 16, v8')
        a('v_lshlrev_b32 v10, 10, v9'); a('v_subrev_u32 v10, 1024, v10'); a('v_mov_b32 v11, %d' % (124 * 128)); a('v_cmp_eq_u32 vcc, 0, v8'); a('v_cndmask_b32 v10, v10, v11, vcc')
        a('v_and_b32 v11, 3, v1'); a('v_lshl_add_u32 v10, v11, 4, v10')
        a('v_lshrrev_b32 v11, 2, v4'); a('v_lshlrev_b32 v12, 7, v11')
        for tau, dst in ((0, vY0), (1, vY1)):
            if tau: a('s_or_b64 s[34:35], s[34:35], s[32:33]'); a('v_add_u32 v12, 512, v12')
            a('v_sub_u32 v13, %d, v12' % (7 * 128 + 64))
            a('v_cndmask_b32 v13, v12, v13, s[34:35]'); a('v_add_u32 %s, v10, v13' % v(dst))
        a('s_mul_i32 s56, s20, %d' % PS); a('s_add_u32 s56, s56, 0x%x' % YOFF)
        a('v_mov_b32 %s, 0x30003' % v(vMT))
        for k in range(4): a('v_mov_b32 %s, %s' % (v(vE + k), s(44 + k)))
        a('s_waitcnt lgkmcnt(0)')
    def SETB(sfx):
        a('v_sub_u32 v8, 15, v4'); a('v_min_u32 v8, v4, v8')
        a('v_and_b32 v9, 1, v8'); a('v_lshlrev_b32 v9, 5, v9'); a('v_lshrrev_b32 v10, 1, v8'); a('v_lshl_add_u32 v9, v10, 9, v9'); a('v_add_u32 v9, s25, v9')
        a('v_sub_u32 v10, 2048, v9'); a('v_cmp_lt_u32 s[34:35], 7, v4'); a('v_cndmask_b32 %s, v9, v10, s[34:35]' % v(vT))
        a('v_mov_b32 v9, v4'); a('v_mov_b32 v10, s20')
        a('s_cmp_lg_u32 s21, 0'); a('s_cbranch_scc0 fz_spec3%s' % sfx)
        a.lines.append('fz_spec3back%s:' % sfx)
        a('v_lshlrev_b32 v10, 7, v10'); a('v_lshl_add_u32 v10, v9, 3, v10'); a('v_mul_u32_u24 v11, %d, v5' % (4 * PS)); a('v_add_u32 %s, v10, v11' % v(vYL))
        a('v_and_b32 v9, 1, v9'); a('v_cmp_eq_u32 vcc, 1, v9')
        a('v_mov_b32 v9, s44'); a('v_mov_b32 v10, s46'); a('v_cndmask_b32 %s, v9, v10, vcc' % v(vYE))
        a('v_mov_b32 v9, s45'); a('v_mov_b32 v10, s47'); a('v_cndmask_b32 %s, v9, v10, vcc' % v(vYE + 1))
        a('s_lshl_b32 s32, s3, 2'); a('v_add_u32 v8, s32, v5')
        a('v_lshlrev_b32 v9, 6, v8')
        a('v_cmp_gt_u32 vcc, 16, v8'); a('v_cndmask_b32 v10, 0, 32, vcc'); a('v_add_u32 v10, v9, v10')
        a('v_sub_u32 v11, 2048, v10'); a('v_cmp_eq_u32 vcc, 16, v8'); a('v_cndmask_b32 v11, v11, 0, vcc')
        a('v_mov_b32 v12, 0xffff0000'); a('v_cndmask_b32 %s, -1, v12, vcc' % v(vZM))
        a('v_sub_u32 v12, %d, v9' % (2048 - 30))
        a('v_mul_u32_u24 v13, %d, v4' % RS)
        a('v_add_u32 %s, v13, v9' % v(vXR)); a('v_add_u32 %s, v13, v12' % v(vXM)); a('v_add_u32 %s, v13, v10' % v(vE0)); a('v_add_u32 v241, v13, v11')
        a('s_lshl_b32 s32, s3, 8'); a('s_add_u32 s32, s32, %d' % PR)
        a('v_lshlrev_b32 v9, 4, v4'); a('v_add_u32 v10, s32, v9'); a('v_add_u32 v11, %d, %s' % (TRASH, v(vL16)))
        a('v_cmp_gt_u32 vcc, 16, v1'); a('v_cndmask_b32 %s, v11, v10, vcc' % v(vPW))
        a('v_lshrrev_b32 v12, 2, v4'); a('v_cmp_eq_u32 vcc, v12, v5'); a('v_cndmask_b32 %s, v11, v10, vcc' % v(vPD))
        a('v_lshrrev_b32 v12, 5, v1'); a('v_lshl_add_u32 v10, v12, 10, v9'); a('v_add_u32 %s, %d, v10' % (v(vPR), PR))
        a('v_and_b32 v9, 1, v1'); a('v_cmp_eq_u32 s[28:29], 1, v9'); a('v_and_b32 v9, 2, v1'); a('v_cmp_eq_u32 s[30:31], 2, v9')
        a('s_lshl_b32 s37, s3, 2'); a('v_add_u32 v9, s37, v5'); a('v_mul_u32_u24 %s, %d, v9' % (v(vKA), KS))
        a('s_lshl_b32 s26, s20, %d' % KRL); a('s_add_u32 s26, s26, 0x%x' % KOFF)
        a('v_lshlrev_b32 %s, 4, v5' % v(vCA)); a('s_lshl_b32 s27, s20, 11'); a('s_lshl_b32 s37, s3, 8'); a('s_add_u32 s27, s27, s37'); a('s_add_u32 s27, s27, 0x%x' % COFF)
        a('v_sub_u32 %s, 2047, %s' % (v(vTK), v(vT)))
        srd(12, 2048 * 2048)
        a('s_mul_i32 s52, s3, %d' % (16 * PS)); a('s_add_u32 s52, s52, 0x%x' % YOFF)
        for jx in range(1, 4): a('s_add_u32 %s, s52, %d' % (s(52 + jx), jx * PS))
        a('s_mov_b32 s23, s63')
        a('s_getreg_b32 s24, hwreg(HW_REG_XCC_ID)'); a('s_and_b32 s24, s24, 15')
        a('v_lshlrev_b32 v10, 4, v0'); a('v_min_u32 v10, 4336, v10'); a('v_add_u32 v10, %d, v10' % ACT)
        for k in range(4): a('v_mov_b32 %s, 0' % v(XAC + k))
        a('ds_write_b128 v10, %s' % v(XAC, 4))
    def SET2():
        XP = 116
        a('ds_read_b128 %s, %s' % (v(XP, 4), v(vXR))); a('ds_read_b128 %s, %s offset:16' % (v(XP + 4, 4), v(vXR)))
        a('ds_read_u16_d16_hi %s, %s' % (v(XD + 16), v(vM0m)))
        for e in range(1, 16): a('ds_read_u16_d16_hi %s, %s offset:%d' % (v(XD + 16 + e), v(vXM), 2 * (15 - e)))
        a('ds_read_u16_d16_hi %s, %s' % (v(XD), v(vE0)))
        a('v_mul_u32_u24 v13, %d, v4' % RS); a('v_subrev_u32 v13, %d, v13' % WR)
        for r, src in ((9, vXR), (10, vE0), (11, vM0m), (12, vXM)): a('v_sub_u32 %s, %s, v13' % (v(r), v(src)))
        a('s_mov_b32 s36, 0xffff0000')
        a('s_waitcnt lgkmcnt(0)')
        a('ds_read_b128 %s, v9' % v(WV, 4)); a('ds_read_b128 %s, v9 offset:16' % v(WV + 4, 4))
        a('ds_read_u16_d16 %s, v11' % v(WV + 8))
        for e in range(1, 16): a('ds_read_u16_d16%s %s, v12 offset:%d' % ('_hi' if e & 1 else '', v((XP + 8 if e & 1 else WV + 8) + (e >> 1)), 2 * (15 - e)))
        a('ds_read_u16_d16 v13, v10')
        for k in range(8):
            if k: a('v_lshlrev_b32 %s, 16, %s' % (v(XD + 2 * k), v(XP + k)))
            a('v_and_b32 %s, s36, %s' % (v(XD + 2 * k + 1), v(XP + k)))
        a('v_cmp_eq_u32 vcc, 1, v4'); a('v_mov_b32 v9, s42'); a('v_cndmask_b32 v9, 0, v9, vcc')
        for k in range(4): a('v_mov_b32 %s, s42' % v(XP + k))
        a('v_cmp_eq_u32 vcc, 0, v4')
        a('s_waitcnt lgkmcnt(0)')
        a('v_and_or_b32 %s, %s, s36, v13' % (v(WV), v(WV)))
        for k in range(8): a('v_or_b32 %s, %s, %s' % (v(WV + 8 + k), v(WV + 8 + k), v(XP + 8 + k)))
        for k in range(16): a('v_cndmask_b32 %s, v9, %s, vcc' % (v(WV + k), v(WV + k)))
        for q in range(4): a('v_mfma_f32_16x16x32_bf16 %s, %s, %s, %s' % (v(XP + 4, 4), v(WV + 4 * q, 4), v(XP, 4), v(XP + 4, 4) if q else '0'))
        a('ds_write_b32 %s, %s offset:12' % (v(vPW), v(XP + 4)))
    a('v_mov_b32 v15, %d' % SYNC); a('v_mov_b32 v10, 0'); a('ds_write_b32 v15, v10')
    est(8)
    a('s_waitcnt lgkmcnt(0)')
    a('s_barrier')
    est(10)
    a('v_lshlrev_b32 %s, 31, v1' % v(vSG)); a('v_lshrrev_b32 v10, 16, %s' % v(vSG)); a('v_or_b32 %s, %s, v10' % (v(vSG), v(vSG)))
    a('v_mov_b32 %s, 0xfffcfffc' % v(vM))
    a('v_mov_b32 v242, 0xffff0000'); a('s_mov_b32 s42, 0x3f803f80')
    a('s_cmp_lg_u32 s57, 0'); a('s_cbranch_scc1 fz_nc1')
    for q in range(14): a('ds_read_b128 %s, v6 offset:%d' % (v(F1 + 4 * q, 4), 1024 * q))
    a('v_lshlrev_b32 v7, 9, v3'); a('v_bfe_u32 v10, v1, 2, 2'); a('v_lshl_add_u32 v7, v10, 6, v7')
    a('v_and_b32 v10, 1, v5'); a('v_lshl_add_u32 v7, v10, 5, v7'); a('v_and_b32 v10, 3, v1'); a('v_lshl_add_u32 v7, v10, 3, v7'); a('v_add_u32 v7, s31, v7')
    a('v_lshlrev_b32 v8, 9, v3'); a('v_lshl_add_u32 v8, v2, 1, v8'); a('v_sub_u32 v9, 2048, v8'); a('v_and_b32 v9, 2047, v9'); a('v_add_u32 v9, s30, v9')
    a('s_add_u32 s32, s30, %d' % (2048 - 64 * 23)); a('v_sub_u32 v8, s32, v8')
    a('v_cmp_eq_u32 vcc, 0, v2'); a('v_cndmask_b32 %s, 0, -2.0, vcc' % v(vM0))
    a('v_mov_b32 %s, %s' % (v(vM0 + 1), fh(256e-5)))
    a('s_lshr_b32 s32, s24, 1'); a('s_lshl_b32 s32, s32, 6'); a('s_mul_i32 s33, s3, 2304'); a('s_add_u32 s32, s32, s33'); a('s_add_u32 s32, s32, %d' % SB)
    a('v_lshl_add_u32 v10, v3, 1, v1'); a('v_lshlrev_b32 v10, 4, v10'); a('v_add_u32 %s, s32, v10' % v(vSW))
    a('v_bfe_u32 v10, v0, 2, 1'); a('v_mul_u32_u24 v10, 34, v10'); a('v_lshrrev_b32 v11, 4, v0'); a('v_add_u32 v10, v10, v11'); a('v_lshlrev_b32 v10, 4, v10')
    a('v_bfe_u32 v11, v0, 3, 1'); a('v_lshl_add_u32 v10, v11, 3, v10'); a('v_bfe_u32 v11, v0, 1, 1'); a('v_lshl_add_u32 v10, v11, 2, v10')
    a('v_and_b32 v12, 1, v0')
    a('s_mov_b32 s33, %d' % (4 * 2304)); a('s_cmp_eq_u32 s2, %d' % SPID)
    for k in range(4):
        pm = 1152 if k >= 2 else 0
        o0 = k * 2304 + pm + (64 if k >= 2 else 0); o1 = (3 - k) * 2304 + pm + (64 if (3 - k) >= 2 else 0)
        a('s_cselect_b32 s32, s33, 0x%x' % ((o1 - o0) & 0xffffffff))
        a('v_mul_lo_u32 v11, v12, s32'); a('v_add_u32 %s, v10, v11' % v(vSR + k)); a('v_add_u32 %s, %d, %s' % (v(vSR + k), SB + o0, v(vSR + k)))
    a('v_lshrrev_b32 v10, 2, v0'); a('v_and_b32 v11, 3, v0'); a('v_lshlrev_b32 v11, 4, v11'); a('v_lshl_add_u32 %s, v10, 7, v11' % v(vWST))
    a('s_mul_i32 s52, s20, %d' % PS); a('s_lshl_b32 s33, s59, 6'); a('s_add_u32 s52, s52, s33'); a('s_add_u32 s52, s52, 0x%x' % WOFF)
    a('s_add_u32 s53, s52, 8192')
    def tags2():
        tags()
        a('s_mov_b32 s38, 0x404'); a('s_cmp_eq_u32 s2, %d' % SPID); a('s_cselect_b32 s39, 8, 4'); a('s_cselect_b32 s38, 8, s38')
    est(9)
    for i in range(4): a('v_mov_b32 %s, 0' % v(ST + i))
    a('s_setprio 3')
    st()
    if '--early' in OPT: a('s_waitcnt lgkmcnt(0)'); est(11)
    a('s_waitcnt vmcnt(0) lgkmcnt(0)')
    st()
    for jx in range(2):
        for hh in range(2): a('ds_read_b64_tr_b16 %s, v7 offset:%d' % (v(XA + 4 * jx + 2 * hh, 2), 1024 * jx + 256 * hh))
    for jx in range(2):
        for i in range(8):
            op = 'ds_read_u16_d16_hi' if i & 1 else 'ds_read_u16_d16'
            dst = (H if i & 1 else XB) + 4 * jx + (i >> 1)
            if jx == 0 and i == 0: a('%s %s, v9' % (op, v(dst)))
            else: a('%s %s, v8 offset:%d' % (op, v(dst), 64 * (23 - 16 * jx - i)))
        if jx == 0: a('s_waitcnt lgkmcnt(8)')
        if jx == 0:
            for j2 in range(2): a('v_mfma_f32_32x32x16_bf16 %s, %s, %s, %s' % (v(XAC, 16), v(XA + 4 * j2, 4), v(F1 + 4 * j2, 4), v(XAC, 16) if j2 else '0'))
    for i in range(8):
        a('v_dot2_f32_bf16 %s, %s, s42, %s' % (v(ST), v(XA + i), v(ST))); a('v_dot2_f32_bf16 %s, %s, %s, %s' % (v(ST + 1), v(XA + i), v(XA + i), v(ST + 1)))
    a('s_waitcnt lgkmcnt(0)')
    for i in range(8): a('v_or_b32 %s, %s, %s' % (v(XB + i), v(XB + i), v(H + i)))
    for j2 in range(2): a('v_mfma_f32_32x32x16_bf16 %s, %s, %s, %s' % (v(XBC, 16), v(XB + 4 * j2, 4), v(F1 + 4 * j2, 4), v(XBC, 16) if j2 else '0'))
    for i in range(8):
        a('v_dot2_f32_bf16 %s, %s, s42, %s' % (v(ST + 2), v(XB + i), v(ST + 2))); a('v_dot2_f32_bf16 %s, %s, %s, %s' % (v(ST + 3), v(XB + i), v(XB + i), v(ST + 3)))
    est(12)
    a('v_permlane32_swap_b32 %s, %s' % (v(ST), v(ST + 2))); a('v_permlane32_swap_b32 %s, %s' % (v(ST + 1), v(ST + 3)))
    a('v_add_f32 %s, %s, %s' % (v(ST), v(ST), v(ST + 2))); a('v_add_f32 %s, %s, %s' % (v(ST + 1), v(ST + 1), v(ST + 3)))
    a('v_permlane16_swap_b32 %s, %s' % (v(ST), v(ST + 1)))
    a('v_add_f32 %s, %s, %s' % (v(ST), v(ST), v(ST + 1)))
    for pat in ['quad_perm:[1,0,3,2]', 'quad_perm:[2,3,0,1]', 'row_half_mirror', 'row_mirror']:
        a('v_add_f32_dpp %s, %s, %s %s %s' % (v(ST), v(ST), v(ST), pat, DPPF))
    a('s_mov_b32 s43, %s' % fh(256 / 1024))
    a('v_mov_b32 %s, %s' % (v(ST + 1), v(ST)))
    a('v_permlane16_swap_b32 %s, %s' % (v(ST), v(ST + 1)))
    a('v_mul_f32 %s, %s, %s' % (v(ST), fh(16 / 1024), v(ST)))
    a('v_fma_f32 %s, %s, s43, %s' % (v(ST + 1), v(ST + 1), v(vM0 + 1)))
    a('v_fma_f32 %s, -%s, %s, %s' % (v(ST + 1), v(ST), v(ST), v(ST + 1)))
    a('v_rsq_f32 %s, %s' % (v(ST + 1), v(ST + 1)))
    a('v_mul_f32 %s, %s, %s' % (v(ST), v(ST), v(ST + 1)))
    a('v_readlane_b32 s32, %s, 0' % v(ST + 1)); a('v_readlane_b32 s34, %s, 32' % v(ST + 1)); a('v_readlane_b32 s36, %s, 0' % v(ST)); a('v_readlane_b32 s37, %s, 32' % v(ST))
    a('v_mul_f32 %s, s36, %s' % (v(ST + 4), v(vM0))); a('v_fmac_f32 %s, s37, %s' % (v(ST + 4), v(vM0)))
    for i in range(8): a('v_pk_fma_f32 %s, %s, s[32:33], %s op_sel_hi:[1,0,0]' % (v(XAC + 2 * i, 2), v(XAC + 2 * i, 2), v(ST + 4, 2)))
    for i in range(8): a('v_pk_fma_f32 %s, %s, s[34:35], %s op_sel_hi:[1,0,1]' % (v(XAC + 2 * i, 2), v(XBC + 2 * i, 2), v(XAC + 2 * i, 2)))
    est(13)
    pack(H, XAC, 16)
    for i in range(8): a('v_mov_b32_dpp %s, %s %s' % (v(TP + i), v(H + i), X1))
    D3C, D3S = XBC, XBC + 4
    for i in range(8): a('v_pk_mul_f16 %s, %s, %s' % (v(T + i), v(H + i), v(TC + i)))
    for j2 in range(2):
        a('v_mfma_f32_16x16x32_f16 %s, %s, %s, %s' % (v(D3C, 4), v(H + 4 * j2, 4), v(B3C + 4 * j2, 4), v(D3C, 4) if j2 else '0'))
        for i in range(4): a('v_pk_fma_f16 %s, %s, %s, %s' % (v(T + 4 * j2 + i), v(TP + 4 * j2 + i), v(TS + 4 * j2 + i), v(T + 4 * j2 + i)))
    a('v_mfma_f32_32x32x16_f16 %s, %s, %s, 0' % (v(XAC, 16), v(T, 4), v(C2, 4)))
    for i in range(4): a('v_xor_b32_dpp %s, %s, %s %s' % (v(TP + i), v(T + i), v(vSG), X1))
    a('v_mfma_f32_32x32x16_f16 %s, %s, %s, %s' % (v(XAC, 16), v(T + 4, 4), v(C2 + 4, 4), v(XAC, 16)))
    for i in range(4, 8): a('v_xor_b32_dpp %s, %s, %s %s' % (v(TP + i), v(T + i), v(vSG), X1))
    for j2 in range(2): a('v_mfma_f32_32x32x16_f16 %s, %s, %s, %s' % (v(XAC, 16), v(TP + 4 * j2, 4), v(S2 + 4 * j2, 4), v(XAC, 16)))
    for j2 in range(2): a('v_mfma_f32_16x16x32_f16 %s, %s, %s, %s' % (v(D3S, 4), v(H + 4 * j2, 4), v(B3S + 4 * j2, 4), v(D3S, 4) if j2 else '0'))
    est(14)
    tags2()
    a('s_mov_b64 vcc, 0xffff')
    for p in (7, 6, 5, 4, 3, 2, 1): a('v_cvt_pk_f16_f32 %s, %s, %s' % (v(H + p), v(XAC + 2 * p), v(XAC + 2 * p + 1)))
    a('v_cndmask_b32 %s, %s, %s, vcc' % (v(XAC), v(XAC), v(D3C + 1))); a('v_cndmask_b32 %s, %s, %s, vcc' % (v(XAC + 1), v(XAC + 1), v(D3S + 1)))
    for p in (3, 2, 1, 0):
        if p == 0: a('v_cvt_pk_f16_f32 %s, %s, %s' % (v(H), v(XAC), v(XAC + 1)))
        a('v_pk_add_f16 %s, %s, %s op_sel:[0,1] op_sel_hi:[1,0] neg_lo:[0,1]' % (v(T + p), v(H + 2 * p), v(H + 2 * p + 1)))
        a('v_pk_add_f16 %s, %s, %s op_sel:[0,1] op_sel_hi:[1,0] neg_hi:[1,0]' % (v(T + 4 + p), v(H + 2 * p), v(H + 2 * p + 1)))
    a('ds_write_b128 %s, %s' % (v(vSW), v(T, 4))); a('ds_write_b128 %s, %s offset:1152' % (v(vSW), v(T + 4, 4)))
    a('s_waitcnt lgkmcnt(0)')
    sync_add(1)
    a('s_cmp_gt_u32 s3, 3'); a('s_cbranch_scc1 fz_bsp0')
    a.lines.append('fz_sy:')
    a('ds_read_b32 v10, v15')
    a('s_waitcnt lgkmcnt(0)')
    a('v_and_b32 v10, 0xff, v10'); a('v_cmp_ne_u32 vcc, s39, v10')
    a('s_cbranch_vccnz fz_sy')
    st.n = 4; st()
    Z = XAC
    for rd in range(2):
        for k in range(4): a('ds_read_b32 %s, %s offset:%d' % (v(Z + 4 * rd + k), v(vSR + k), 256 * rd))
    for rd in range(2):
        z = Z + 4 * rd; u = Z + 8 + 8 * rd; o = u + 4
        a('s_waitcnt lgkmcnt(%d)' % (4 - 4 * rd))
        a('v_pk_add_f16 %s, %s, %s' % (v(u), v(z), v(z + 2))); a('v_pk_add_f16 %s, %s, %s' % (v(u + 2), v(z + 1), v(z + 3)))
        a('v_pk_add_f16 %s, %s, %s neg_lo:[0,1] neg_hi:[0,1]' % (v(u + 1), v(z), v(z + 2))); a('v_pk_add_f16 %s, %s, %s neg_lo:[0,1] neg_hi:[0,1]' % (v(u + 3), v(z + 1), v(z + 3)))
        a('v_pk_add_f16 %s, %s, %s' % (v(o), v(u), v(u + 2))); a('v_pk_add_f16 %s, %s, %s neg_lo:[0,1] neg_hi:[0,1]' % (v(o + 2), v(u), v(u + 2)))
        a('v_pk_add_f16 %s, %s, %s op_sel:[0,1] op_sel_hi:[1,0] neg_hi:[0,1]' % (v(o + 1), v(u + 1), v(u + 3)))
        a('v_pk_add_f16 %s, %s, %s op_sel:[0,1] op_sel_hi:[1,0] neg_lo:[0,1]' % (v(o + 3), v(u + 1), v(u + 3)))
        for k in range(4): a('v_add_u32 %s, 0x20002, %s' % (v(o + k), v(o + k)))
        for k in range(4): a('v_and_or_b32 %s, %s, %s, %s' % (v(o + k), v(o + k), v(vM), s(44 + k)))
        a('buffer_store_dwordx4 %s, %s, s[4:7], %s offen sc1' % (v(o, 4), v(vWST), s(52 + rd)))
    a('s_cmp_lg_u32 s59, 0'); a('s_cbranch_scc1 ffn')
    st()
    SETA()
    a('s_waitcnt vmcnt(0)')
    st()
    R = XAC
    def h1i(u): a('buffer_load_dwordx4 %s, %s, s[4:7], %s offen sc1' % (v(R + 4 * u, 4), v(vHL), s((60, 61, 16, 17)[u])))
    def h1c(u):
        for k in range(4): a('v_xor_b32 %s, %s, %s' % (v(R + 4 * u + k), v(vE + k), v(R + 4 * u + k)))
        a('v_or3_b32 v10, %s, %s, %s' % (v(R + 4 * u), v(R + 4 * u + 1), v(R + 4 * u + 2)))
        a('v_bitop3_b32 v10, v10, %s, %s bitop3:0xa8' % (v(R + 4 * u + 3), v(vMT)))
        a('v_cmp_ne_u32 vcc, 0, v10')
    def h1a(u):
        for k in range(4): a('ds_write_b32 %s, %s offset:%d' % (v(vA[u]), v(R + 4 * u + k), 2048 * k))
    if EP:
        a('s_bitcmp1_b32 s2, 2'); a('s_cbranch_scc1 fz_p1_ok')
        a('s_add_u32 s32, s60, %d' % ((((EP - 1) + POFS) & 7) * PS + 64 * (EP > 8))); a('v_mov_b32 v9, 0')
        a.lines.append('fz_p1:')
        a('buffer_load_dword v10, v9, s[4:7], s32 offen sc1')
        a('s_waitcnt vmcnt(0)')
        a('v_xor_b32 v10, %s, v10' % v(vE)); a('v_and_b32 v10, %s, v10' % v(vMT)); a('v_cmp_ne_u32 vcc, 0, v10')
        poll_retry('fz_p1')
        a('s_mov_b32 s58, 0')
    for u in range(4): h1i(u)
    prog_poll('fz_h1', 4, h1i, h1c, h1a)
    a('s_waitcnt lgkmcnt(0)')
    a('s_setprio 0')
    a.lines.append('fz_hb:')
    a('s_barrier')
    st.n = 7; st()
    A2, V2, H2, T2, TP2, D2 = 104, 120, 136, 144, 152, 104
    for cp in range(2):
        for hf in range(2): a('ds_read_b128 %s, %s offset:%d' % (v(A2 + 8 * cp + 4 * hf, 4), v(vAR), CPS * cp + 1024 * hf))
    for q in range(4): a('ds_read_b128 %s, v6 offset:%d' % (v(CQ + 4 * q, 4), 1024 * (14 + q)))
    for q in range(4):
        a('s_waitcnt lgkmcnt(%d)' % (7 - q))
        a('v_mfma_f32_16x16x32_f16 %s, %s, %s, 0' % (v(V2 + 4 * q, 4), v(A2 + 4 * q, 4), v(B1, 4)))
    a('s_waitcnt lgkmcnt(0)')
    for cp in range(2):
        pack(H2 + 4 * cp, V2 + 8 * cp, 8)
    for cp in range(2):
        h, t, tp = H2 + 4 * cp, T2 + 4 * cp, TP2 + 4 * cp
        for i in range(4): a('v_pk_mul_f16 %s, %s, %s' % (v(t + i), v(h + i), v(TC2 + i)))
        for i in range(4): a('v_mov_b32_dpp %s, %s %s' % (v(tp + i), v(h + i), X1))
        for i in range(4): a('v_pk_fma_f16 %s, %s, %s, %s' % (v(t + i), v(tp + i), v(TS2 + i), v(t + i)))
        for tau in range(2): a('v_mfma_f32_16x16x32_f16 %s, %s, %s, 0' % (v(D2 + 8 * cp + 4 * tau, 4), v(t, 4), v(CQ + 8 * tau, 4)))
        for i in range(4): a('v_xor_b32_dpp %s, %s, %s %s' % (v(tp + i), v(t + i), v(vSG), X1))
        for tau in range(2): a('v_mfma_f32_16x16x32_f16 %s, %s, %s, %s' % (v(D2 + 8 * cp + 4 * tau, 4), v(tp, 4), v(CQ + 8 * tau + 4, 4), v(D2 + 8 * cp + 4 * tau, 4)))
    O2 = V2
    for tau in range(2):
        for cp in range(2):
            for b in range(2): a('v_cvt_pk_f16_f32 %s, %s, %s' % (v(O2 + 4 * tau + 2 * b + cp), v(D2 + 8 * cp + 4 * tau + 2 * b), v(D2 + 8 * cp + 4 * tau + 2 * b + 1)))
        for k in range(4): a('v_add_u32 %s, 0x20002, %s' % (v(O2 + 4 * tau + k), v(O2 + 4 * tau + k)))
        for k in range(4): a('v_and_or_b32 %s, %s, %s, %s' % (v(O2 + 4 * tau + k), v(O2 + 4 * tau + k), v(vM), s(44 + k)))
        a('buffer_store_dwordx4 %s, %s, s[4:7], s56 offen sc1' % (v(O2 + 4 * tau, 4), v(vY0 + tau)))
    st()
    a('s_cmp_lg_u32 s57, 0'); a('s_cbranch_scc1 fz_nc3')
    SETB('a')
    a('s_mov_b32 s58, 0')
    a('s_waitcnt vmcnt(0)')
    st()
    YD, YM, HP, Q1, Q2 = 104, 112, 120, 136, 140
    def h2i(jx): a('buffer_load_dwordx2 %s, %s, s[4:7], %s offen sc1' % (v(YD + 2 * jx, 2), v(vYL), s(52 + jx)))
    def h2load():
        for jx in range(4): h2i(jx)
    h2load()
    SET2()
    a.flush(); a('s_branch fz_h2c')
    a.lines.append('fz_h2:')
    h2load()
    a.lines.append('fz_h2c:')
    a('s_mov_b32 s36, %s' % fh(128.0))
    def h2c(jx):
        for k in range(2): a('v_xor_b32 %s, %s, %s' % (v(YD + 2 * jx + k), v(vYE + k), v(YD + 2 * jx + k)))
        a('v_bitop3_b32 v9, %s, %s, %s bitop3:0xa8' % (v(YD + 2 * jx), v(YD + 2 * jx + 1), v(vMT)))
        a('v_cmp_ne_u32 vcc, 0, v9')
    def h2a(jx):
        if jx == 3: st()
        for e in range(4 * jx, 4 * jx + 4): a('v_fma_mix_f32 %s, %s, s36, %s op_sel:[%d,0,0] op_sel_hi:[1,0,0]' % (v(XD + e), v(YD + (e >> 1)), v(XD + e), e & 1))
        for k in range(2 * jx, 2 * jx + 2): a('v_mov_b32_dpp %s, %s row_mirror %s' % (v(YM + k), v(YD + k), DPPF))
    prog_poll('fz_h2', 4, h2i, h2c, h2a)
    a('s_cmp_eq_u32 s2, %d' % SPID); a('s_cbranch_scc1 fz_spec4')
    a.lines.append('fz_spec4back:')
    pack(HP, XD, 16, 'bf16')
    a('v_and_b32 %s, %s, %s' % (v(YM), v(vZM), v(YM)))
    for q in range(2):
        a('v_mfma_f32_16x16x32_bf16 %s, %s, %s, %s' % (v(Q1, 4), v(HP + 4 * q, 4), v(HP + 4 * q, 4), v(Q1, 4) if q else '0'))
        a('v_mfma_f32_16x16x32_bf16 %s, %s, %s, %s' % (v(Q2, 4), v(WV + 4 * q, 4), v(HP + 4 * q, 4), v(Q2, 4) if q else '0'))
    for e in range(16): a('v_fma_mix_f32 %s, %s, s36, %s op_sel:[%d,0,0] op_sel_hi:[1,0,0]' % (v(XD + 16 + e), v(YM + (e >> 1)), v(XD + 16 + e), e & 1))
    pack(HP + 8, XD + 16, 16, 'bf16')
    for q in range(2, 4):
        a('v_mfma_f32_16x16x32_bf16 %s, %s, %s, %s' % (v(Q1, 4), v(HP + 4 * q, 4), v(HP + 4 * q, 4), v(Q1, 4)))
        a('v_mfma_f32_16x16x32_bf16 %s, %s, %s, %s' % (v(Q2, 4), v(WV + 4 * q, 4), v(HP + 4 * q, 4), v(Q2, 4)))
    a('v_cndmask_b32 v9, %s, %s, s[28:29]' % (v(Q1), v(Q1 + 1))); a('v_cndmask_b32 v10, %s, %s, s[28:29]' % (v(Q1 + 2), v(Q1 + 3)))
    a('ds_write_b64 %s, %s' % (v(vPW), v(Q2, 2)))
    a('v_cndmask_b32 v9, v9, v10, s[30:31]')
    a('ds_write_b32 %s, v9 offset:8' % v(vPD))
    a('s_cmp_gt_u32 s3, 3'); a('s_cbranch_scc1 fz_lp'); a('s_setprio 2')
    a.lines.append('fz_lp:')
    a('s_waitcnt lgkmcnt(0)'); a('s_barrier')
    P = 144
    for q in range(4): a('ds_read_b128 %s, %s offset:%d' % (v(P + 4 * q, 4), v(vPR), 256 * q))
    a('s_waitcnt lgkmcnt(2)')
    for h in range(2): a('v_pk_add_f32 %s, %s, %s' % (v(P + 2 * h, 2), v(P + 2 * h, 2), v(P + 4 + 2 * h, 2)))
    a('s_waitcnt lgkmcnt(0)')
    for h in range(2): a('v_pk_add_f32 %s, %s, %s' % (v(P + 8 + 2 * h, 2), v(P + 8 + 2 * h, 2), v(P + 12 + 2 * h, 2)))
    for h in range(2): a('v_pk_add_f32 %s, %s, %s' % (v(P + 2 * h, 2), v(P + 2 * h, 2), v(P + 8 + 2 * h, 2)))
    for k in range(4): a('v_mov_b32 %s, %s' % (v(P + 4 + k), v(P + k)))
    for k in range(4): a('v_permlane32_swap_b32 %s, %s' % (v(P + k), v(P + 4 + k)))
    for h in range(2): a('v_pk_add_f32 %s, %s, %s' % (v(P + 2 * h, 2), v(P + 2 * h, 2), v(P + 4 + 2 * h, 2)))
    KR = 152
    a('v_mul_f32 %s, %s, %s' % (v(P + 1), fh(-1 / 1024), v(P + 1)))
    a('v_mul_f32 %s, %s, %s' % (v(P + 2), fh(1 / 1024), v(P + 2)))
    a('v_fma_f32 %s, -%s, %s, %s' % (v(P + 2), v(P + 1), v(P + 1), v(P + 2)))
    a('v_cvt_pk_bf16_f32 %s, 0, %s' % (v(KR + 1), v(P + 1)))
    rbf(a, P + 2); a('v_add_f32 %s, %s, %s' % (v(P + 2), fh(1e-5), v(P + 2))); rbf(a, P + 2)
    a('v_sqrt_f32 %s, %s' % (v(P + 2), v(P + 2)))
    a('v_fmac_f32 %s, %s, %s' % (v(P), v(KR + 1), v(P + 3)))
    rbf(a, P + 2); a('v_rcp_f32 %s, %s' % (v(KR + 2), v(P + 2)))
    a('v_mov_b32 %s, s40' % v(KR + 3))
    a('v_mul_f32 %s, %s, %s' % (v(P), v(P), v(KR + 2))); rbf(a, P)
    a('v_ashrrev_i32 %s, 31, %s' % (v(P + 1), v(P))); a('v_or_b32 %s, 0x80000000, %s' % (v(P + 1), v(P + 1)))
    a('v_bitop3_b32 %s, %s, %s, %s bitop3:0x28' % (v(KR), v(P), v(P + 1), v(242)))
    a('v_or_b32 %s, %s, %s' % (v(KR), v(KR), v(vTK)))
    a('v_max_u32_dpp %s, %s, %s row_ror:1 %s' % (v(P), v(KR), v(KR), DPPF))
    for k in (2, 4, 8): a('v_max_u32_dpp %s, %s, %s row_ror:%d %s' % (v(P), v(P), v(P), k, DPPF))
    a('v_cmp_eq_u32 vcc, %s, %s' % (v(P), v(KR)))
    a('v_or_b32 %s, s24, %s' % (v(KR + 1), v(KR + 1)))
    a('s_mov_b64 exec, vcc')
    a('buffer_store_dwordx4 %s, %s, s[4:7], s26 offen sc1' % (v(KR, 4), v(vKA)))
    if DB & 2:
        if DB & 4: a('s_cmp_gt_u32 s3, 3'); a('s_cbranch_scc1 fz_nk2')
        a('s_add_u32 s26, s26, %d' % (32 * KS)); a('buffer_store_dwordx4 %s, %s, s[4:7], s26 offen sc1' % (v(KR, 4), v(vKA)))
        if DB & 4: a.lines.append('fz_nk2:')
    for q in range(4): a('buffer_store_dwordx4 %s, %s, s[4:7], s27 offen offset:%d sc1' % (v(HP + 4 * q, 4), v(vCA), 64 * q))
    a('s_mov_b64 exec, -1')
    st()
    a('s_setprio 0')
    a('s_ff1_i32_b64 s37, vcc')
    a('v_add_f32 %s, 1.0, %s' % (v(P), v(KR + 2))); a('v_and_b32 %s, v242, %s' % (v(P + 2), v(KR + 1))); a('v_mul_f32 %s, %s, %s' % (v(P + 2), v(P + 2), v(KR + 2)))
    for k in range(16): a('v_pk_fma_f32 %s, %s, %s, %s op_sel_hi:[1,0,0]' % (v(XD + 2 * k, 2), v(XD + 2 * k, 2), v(P, 2), v(P + 2, 2)))
    OP = 104
    pack(OP, XD, 32, 'bf16')
    a('ds_write_b128 %s, %s' % (v(vXR), v(OP, 4))); a('ds_write_b128 %s, %s offset:16' % (v(vXR), v(OP + 4, 4)))
    a('s_waitcnt lgkmcnt(0)'); a('s_barrier')
    if W3 < 8 or WL:
        a('s_cmp_lt_u32 s3, 4'); a('s_cbranch_scc1 fz_now4')
        if WL: a('s_bitcmp0_b32 s2, 2'); a('s_cbranch_scc1 fz_now4')
        wdload(8 - WL if WL else W3, 8)
        a.lines.append('fz_now4:')
    a('ds_write_b16 %s, %s' % (v(vE0), v(OP))); a('ds_write_b16 %s, %s' % (v(vM0m), v(OP + 8)))
    for e in range(1, 16): a('ds_write_b16%s %s, %s offset:%d' % ('_d16_hi' if e & 1 else '', v(vXM), v(OP + 8 + (e >> 1)), 2 * (15 - e)))
    a('s_lshl_b32 s32, s3, 1'); a('s_add_u32 s33, s32, 1')
    a('v_readlane_b32 s34, %s, s32' % v(vT)); a('v_readlane_b32 s35, %s, s33' % v(vT))
    a('s_mul_i32 s38, s3, %d' % (2 * RS)); a('v_add_u32 v9, s38, %s' % v(vL16))
    a('s_lshl_b32 s34, s34, 11'); a('s_lshl_b32 s35, s35, 11')
    a('s_waitcnt lgkmcnt(0)'); a('s_barrier')
    for q in range(4): a('ds_read_b128 %s, v9 offset:%d' % (v(OP + 4 * q, 4), RS * (q >> 1) + 1024 * (q & 1)))
    OUTF = '' if '--outplain' in OPT else (' nt' if '--outnt' in OPT else ' sc1')
    a('s_lshr_b32 s59, s37, 1'); a('s_xor_b32 s18, s59, 1'); a('s_and_b32 s18, s18, 3')
    if '--wdearly' not in OPT:
        if OLATE:
            a('s_cmp_eq_u32 s59, s3'); a('s_cselect_b32 s38, 112, s23'); a('s_cmp_lt_u32 s38, 112'); a('s_cbranch_scc1 fz_sk1')
        else:
            a('s_cmp_lt_u32 s23, 112'); a('s_cselect_b32 s38, s18, 8'); a('s_cmp_eq_u32 s38, s3'); a('s_cbranch_scc1 fz_sk1')
    a('s_waitcnt lgkmcnt(0)')
    for r in range(2):
        a('s_cmp_eq_u32 s37, %s' % s(32 + r)); a('s_cbranch_scc1 fz_sk%d' % r)
        for q in range(0 if '--xnoout' in OPT else 2): a('buffer_store_dwordx4 %s, %s, s[12:15], %s offen offset:%d%s' % (v(OP + 8 * r + 4 * q, 4), v(vL16), s(34 + r), 1024 * q, OUTF))
        a.lines.append('fz_sk%d:' % r)
    a('v_and_b32 v15, 7, v4'); a('v_mul_u32_u24 v15, 544, v15'); a('v_lshl_add_u32 v15, v5, 4, v15'); a('v_add_u32 v15, %d, v15' % ACT)
    if TWO:
        a('s_and_b32 s60, s2, 7'); a('s_lshr_b32 s61, s2, 3')
        a('s_cmp_lt_u32 s3, 4'); a('s_cselect_b32 s63, 8, s60'); a('s_lshl_b32 s63, s63, 2'); a('s_and_b32 s38, s3, 3'); a('s_add_u32 s63, s63, s38')
        a('s_lshl_b32 s63, s63, 6'); a('s_add_u32 s63, s63, s61'); a('s_lshl_b32 s63, s63, 8'); a('s_add_u32 s63, s63, 0x%x' % POFF)
        a('v_lshlrev_b32 v13, 4, v4'); a('v_lshl_add_u32 v102, v5, 12, v13'); a('v_add_u32 v103, 8192, v102'); a('v_mov_b32 v101, %d' % (ACT + 4352))
    elif PIN:
        a('s_lshl_b32 s63, s23, 5'); a('s_and_b32 s38, s3, 3'); a('s_mul_i32 s38, s38, %d' % (32 * PIS)); a('s_add_u32 s63, s63, s38'); a('s_add_u32 s63, s63, 0x%x' % POFF)
        a('v_lshrrev_b32 v13, 1, v1'); a('v_mul_u32_u24 v13, %d, v13' % PIS); a('v_and_b32 v14, 1, v1'); a('v_lshl_add_u32 v102, v14, 4, v13'); a('v_add_u32 v103, %d, v102' % (16 * PIS))
    else:
        a('s_mul_i32 s63, s23, %d' % PPS); a('s_and_b32 s38, s3, 3'); a('s_lshl_b32 s38, s38, 10'); a('s_add_u32 s63, s63, s38'); a('s_add_u32 s63, s63, 0x%x' % POFF)
    if not TWO: a('s_lshl_b32 s38, s20, %d' % (5 if PIN else 10)); a('s_add_u32 s38, s38, 0x%x' % DOFF); a('s_cmp_lt_u32 s3, 4'); a('s_cselect_b32 s63, s38, s63')
    a('v_mov_b32 v14, 0xffffff00')
    a('s_cmp_eq_u32 s18, s3'); a('s_cbranch_scc1 fz_act')
    a('s_cmp_lg_u32 s59, s3'); a('s_cbranch_scc1 fz_f2')
    st()
    a('s_and_b32 s38, s20, 15'); a('s_add_u32 s38, s38, 16'); a('s_mul_i32 s38, s38, %d' % KS); a('s_add_u32 s38, s38, 0x%x' % KOFF)
    if TWO:
        a('s_lshr_b32 s52, s61, 1'); a('s_lshl_b32 s52, s52, 3'); a('s_add_u32 s52, s52, s60'); a('s_lshl_b32 s52, s52, 2'); a('s_and_b32 s53, s61, 1'); a('s_add_u32 s52, s52, s53'); a('s_lshl_b32 s52, s52, 2')
        a('v_bfe_u32 v2, v1, 2, 1'); a('v_and_b32 v3, 3, v1'); a('v_lshl_add_u32 v2, v2, 3, v3'); a('v_add_u32 v2, s52, v2')
    else:
        a('s_lshr_b32 s52, s20, 4'); a('s_lshl_b32 s52, s52, 7'); a('s_and_b32 s53, s20, 7'); a('s_lshl_b32 s53, s53, 4'); a('s_add_u32 s52, s52, s53')
        a('s_bfe_u32 s53, s20, 0x10003'); a('s_lshl_b32 s53, s53, 2'); a('s_add_u32 s52, s52, s53')
        a('v_and_b32 v2, 1, v1'); a('v_lshl_add_u32 v2, v2, 3, v5'); a('v_add_u32 v2, s52, v2')
    a('v_and_b32 v3, 31, v2'); a('v_lshrrev_b32 v6, 5, v2')
    a('v_cmp_gt_u32 vcc, 16, v6')
    a('v_cmp_lt_u32 s[52:53], 16, v3'); a('v_cmp_eq_u32 s[54:55], 0, v3'); a('s_and_b64 s[54:55], s[54:55], vcc'); a('s_or_b64 s[52:53], s[52:53], s[54:55]')
    a('v_cmp_eq_u32 s[54:55], 16, v3'); a('s_andn2_b64 s[54:55], s[54:55], vcc'); a('s_or_b64 s[52:53], s[52:53], s[54:55]')
    a('v_sub_u32 v7, 1024, v2'); a('v_cndmask_b32 v7, v2, v7, s[52:53]')
    a('v_mov_b32 v8, 512'); a('v_cmp_eq_u32 vcc, 1024, v7'); a('v_cndmask_b32 v7, v7, v8, vcc')
    a('v_lshrrev_b32 v8, 5, v7'); a('v_and_b32 v7, 15, v7')
    a('v_lshrrev_b32 v9, 2, v8'); a('v_lshlrev_b32 v9, 8, v9'); a('v_and_b32 v8, 3, v8'); a('v_lshl_add_u32 v9, v8, 4, v9')
    a('v_lshrrev_b32 v8, 3, v7'); a('v_lshl_add_u32 v9, v8, 6, v9'); a('v_and_b32 v7, 7, v7'); a('v_lshl_add_u32 v9, v7, 1, v9')
    a('v_cndmask_b32 v7, 0, 1, s[52:53]'); a('v_lshl_add_u32 v9, v7, 7, v9')
    a('v_lshlrev_b32 v2, 1, v2')
    if TWO:
        a('s_lshl_b32 s52, s60, 4'); a('s_add_u32 s52, s52, s61'); a('s_lshl_b32 s52, s52, 12'); a('s_add_u32 s52, s52, 0x%x' % POFF)
        a('s_add_u32 s53, s2, 4'); a('s_and_b32 s53, s53, 7'); a('s_cmp_lt_u32 s53, 6'); a('s_cselect_b32 s53, s52, 0x7fff0000')
        for k in range(4): a('s_cselect_b32 %s, %s, 0' % (s(8 + k), s(48 + k)))
        a('s_lshl_b32 s54, s61, 11'); a('s_add_u32 s54, s54, 0x%x' % FIOFF); a('s_lshl_b32 s55, s60, 8'); a('s_add_u32 s55, s55, s54'); a('s_lshl_b32 s62, s60, 5'); a('s_add_u32 s54, s54, s62')
        a('v_lshrrev_b32 v3, 1, v4'); a('v_lshlrev_b32 v3, 8, v3'); a('v_and_b32 v6, 1, v4'); a('v_lshl_add_u32 v3, v6, 4, v3')
        a('v_lshlrev_b32 v6, 2, v1'); a('v_and_b32 v7, 3, v1'); a('v_mov_b32 v16, s48')
        for k in range(1, 4): a('v_cmp_eq_u32 vcc, %d, v7' % k); a('v_mov_b32 v8, %s' % s(48 + k)); a('v_cndmask_b32 v16, v16, v8, vcc')
    else:
        a('v_lshrrev_b32 v3, 1, v1'); a('v_mul_u32_u24 v3, %d, v3' % (32 if PIN else PPS)); a('v_and_b32 v6, 1, v1'); a('v_lshl_add_u32 v3, v6, 4, v3')
        a('v_mov_b32 v6, 0x7fffffff'); a('v_cmp_gt_u32 vcc, 32, v1'); a('v_cndmask_b32 v6, v6, v3, vcc')
        for k in range(4): a('v_mov_b32 v7, %s' % s(48 + k)); a('v_cndmask_b32 %s, 0, v7, vcc' % v(16 + k))
        a('s_mul_i32 s52, s20, %d' % (PIS if PIN else 32)); a('s_add_u32 s52, s52, 0x%x' % POFF)
        for u in range(1, 4): a('s_add_u32 %s, s52, %d' % (s(52 + u), 32 * u * (32 if PIN else PPS)))
    K = 24
    a('v_lshlrev_b32 v20, %d, v1' % KRL); a('v_add_u32 v21, %d, v20' % (64 << KRL))
    a('s_mov_b32 s58, 0')
    a.label('fz_k2')
    a('buffer_load_dwordx4 %s, v20, s[4:7], s38 offen sc1' % v(K, 4)); a('buffer_load_dwordx4 %s, v21, s[4:7], s38 offen sc1' % v(K + 4, 4))
    a('s_waitcnt vmcnt(0)')
    keys_argmax(K, None, 'fz_k2')
    if TWO:
        a('v_and_b32 v7, 15, %s' % v(K + 1)); a('v_and_b32 v8, 15, %s' % v(K + 5)); a('v_cmp_eq_u32 vcc, s24, v7'); a('v_cmp_eq_u32 s[56:57], s24, v8')
        a('s_and_b64 vcc, vcc, s[56:57]'); a('s_and_b32 s39, vcc_lo, vcc_hi'); a('s_and_b32 s41, s20, 7'); a('s_lshr_b32 s39, s39, s41'); a('s_and_b32 s39, s39, 0x01010101')
        a('s_cmp_eq_u32 s39, 0x01010101'); a('s_cselect_b32 s39, %d, 0' % (1 if LOCAL else 0)); a('v_mov_b32 v7, s39'); a('ds_write_b32 v101, v7')
    a('v_cmp_eq_u32 vcc, s36, %s' % v(K)); a('v_cmp_eq_u32 s[56:57], s36, %s' % v(K + 4))
    a('v_cndmask_b32 %s, %s, %s, s[56:57]' % (v(K + 1), v(K + 1), v(K + 5))); a('v_cndmask_b32 %s, %s, %s, s[56:57]' % (v(K + 2), v(K + 2), v(K + 6)))
    a('s_cmp_lg_u64 vcc, 0'); a('s_cselect_b32 s39, 0, 64'); a('s_or_b64 vcc, vcc, s[56:57]'); a('s_ff1_i32_b64 s41, vcc')
    a('v_readlane_b32 s42, %s, s41' % v(K + 1)); a('v_readlane_b32 s43, %s, s41' % v(K + 2))
    a('s_add_u32 s39, s39, s41'); a('s_and_b32 s42, s42, 0xffff0000')
    a('s_cmp_eq_u32 s39, s20'); a('s_cbranch_scc1 fz_win')
    a('s_bitcmp1_b32 s37, 0'); a('s_cbranch_scc1 fz_d1')
    for q in range(2): a('buffer_store_dwordx4 %s, %s, s[12:15], s34 offen offset:%d%s' % (v(OP + 4 * q, 4), v(vL16), 1024 * q, OUTF))
    a('s_branch fz_win')
    a.lines.append('fz_d1:')
    for q in range(2): a('buffer_store_dwordx4 %s, %s, s[12:15], s35 offen offset:%d%s' % (v(OP + 8 + 4 * q, 4), v(vL16), 1024 * q, OUTF))
    a.lines.append('fz_win:')
    a('s_lshl_b32 s39, s39, 11'); a('s_add_u32 s39, s39, 0x%x' % COFF)
    a('s_mov_b32 s58, 0'); a('s_mov_b32 s41, 0xffff0000')
    a.label('fz_c2')
    a('buffer_load_short_d16_hi v10, v9, s[4:7], s39 offen sc1')
    a('s_waitcnt vmcnt(0)')
    a('v_cmp_eq_u32 vcc, s41, v10')
    poll_retry('fz_c2')
    a('v_add_f32 v11, s42, v10'); rbf(a, 11); a('v_mul_f32 v11, s43, v11'); rbf(a, 11)
    a('s_ashr_i32 s39, s36, 31'); a('s_not_b32 s39, s39'); a('s_or_b32 s39, s39, 0x80000000'); a('s_xor_b32 s39, s36, s39'); a('s_and_b32 s39, s39, 0xffff0000')
    a('v_mov_b32 v12, s39'); a('v_mul_f32 v12, %s, v12' % fh(-1.4426950408889634))
    a('v_exp_f32 v12, v12'); a('v_add_f32 v12, 1.0, v12'); a('v_rcp_f32 v12, v12'); rbf(a, 12)
    a('s_and_b32 s39, s36, 0xffff'); a('s_sub_u32 s39, 2047, s39'); a('s_lshl_b32 s39, s39, 11')
    PQ = 40
    a('v_mov_b32 v13, 0xff')
    a('s_waitcnt lgkmcnt(0)')
    a.lines.append('fz_f2:')
    st.n = 13; st()
    a('s_cmp_gt_u32 s23, 111'); a('s_cbranch_scc1 fz_nof2')
    a('s_barrier')
    a('s_cmp_eq_u32 s59, s3'); a('s_cselect_b32 s19, 4, s3'); a('s_cmp_lt_u32 s19, 4'); a('s_cbranch_scc1 fz_f2d')
    BH, ACC = 120, 152
    if TWO: a('ds_read_b32 v100, v101')
    for q in range(8): a('ds_read_b128 %s, v15 offset:%d' % (v(BH + 4 * q, 4), 64 * q))
    if W3 < 8 or WL: a('s_waitcnt vmcnt(2)')
    for q in range(8):
        a('s_waitcnt lgkmcnt(%d)' % (7 - q))
        for h in range(2): a('v_mfma_f32_16x16x32_bf16 %s, %s, %s, %s' % (v(ACC + 4 * h, 4), v(BH + 4 * q, 4), v(WQ[2 * q + h], 4), v(ACC + 4 * h, 4) if q else '0'))
    if TWO: a('v_readfirstlane_b32 s19, v100')
    a('s_mov_b32 exec_hi, 0')
    if TWO:
        for k in range(8): a('v_and_or_b32 %s, %s, v14, %s' % (v(ACC + k), v(ACC + k), s(48 + (k & 3))))
        a('s_cmp_eq_u32 s19, 0'); a('s_cbranch_scc1 fz_prem')
        for h in range(2): a('buffer_store_dwordx4 %s, %s, s[4:7], s63 offen' % (v(ACC + 4 * h, 4), v(102 + h)))
    else:
        for h in range(2):
            for k in range(4): a('v_and_or_b32 %s, %s, v14, %s' % (v(ACC + 4 * h + k), v(ACC + 4 * h + k), s(48 + k)))
            if PIN: a('buffer_store_dwordx4 %s, %s, s[4:7], s63 offen sc1' % (v(ACC + 4 * h, 4), v(102 + h)))
            else: a('buffer_store_dwordx4 %s, %s, s[4:7], s63 offen offset:%d sc1' % (v(ACC + 4 * h, 4), v(vL16), 512 * h))
    a.lines.append('fz_f2d:')
    a('s_mov_b32 exec_hi, -1')
    if OLATE: a('s_cmp_lg_u32 s59, s3'); a('s_cbranch_scc1 fz_late')
    else: a('s_cmp_eq_u32 s18, s3'); a('s_cbranch_scc1 fz_late')
    a('s_cmp_lg_u32 s59, s3'); a('s_cbranch_scc1 fz_xend')
    a('v_mov_b32 v7, 0')
    a('s_waitcnt vmcnt(0)')
    a('s_branch fz_p5_ok')
    a.label('fz_nof2')
    a('s_cmp_lg_u32 s59, s3'); a('s_cbranch_scc1 fz_xend')
    a('s_mov_b32 s58, 0'); a('s_and_b32 s41, s20, %d' % (7 if TWO else 63)); a('s_mul_i32 s41, s41, %d' % (256 if TWO else 32 if PIN else PPS)); a('s_add_u32 s41, s41, s52'); a('v_mov_b32 v7, 0')
    a.label('fz_p5')
    a('buffer_load_dword v8, v7, s[4:7], s41 offen sc1')
    a('s_waitcnt vmcnt(0)')
    a('v_and_b32 v8, 0xff, v8'); a('v_cmp_ne_u32 vcc, s48, v8')
    poll_retry('fz_p5')
    a('s_mov_b32 s58, 0')
    st()
    def h5i(u):
        if TWO: a('buffer_load_dwordx4 %s, %s, s[4:7], %s offen offset:%d sc1' % (v(PQ + 4 * u, 4), v(vL16), s(52 + (u >> 1)), 1024 * u))
        else: a('buffer_load_dwordx4 %s, %s, s[4:7], %s offen sc1' % (v(PQ + 4 * u, 4), 'v6' if u == 3 else 'v3', s(52 + u)))
    def h5c(u):
        for k in range(4): a('v_xor_b32 %s, %s, %s' % (v(PQ + 4 * u + k), (s(8 + k) if u >= 2 else s(48 + k)) if TWO else v(16 + k) if u == 3 else s(48 + k), v(PQ + 4 * u + k)))
        a('v_or3_b32 v8, %s, %s, %s' % (v(PQ + 4 * u), v(PQ + 4 * u + 1), v(PQ + 4 * u + 2)))
        a('v_bitop3_b32 v8, v8, %s, v13 bitop3:0xa8' % v(PQ + 4 * u + 3))
        a('v_cmp_ne_u32 vcc, 0, v8')
    def h5a(u):
        if u:
            for h in range(2): a('v_pk_add_f32 %s, %s, %s' % (v(PQ + 2 * h, 2), v(PQ + 2 * h, 2), v(PQ + 4 * u + 2 * h, 2)))
    for u in range(4): h5i(u)
    prog_poll('fz_h5', 4, h5i, h5c, h5a)
    if TWO:
        for sw in ('32', '16'):
            for k in range(4): a('v_mov_b32 %s, %s' % (v(PQ + 4 + k), v(PQ + k)))
            for k in range(4): a('v_permlane%s_swap_b32 %s, %s' % (sw, v(PQ + k), v(PQ + 4 + k)))
            for h in range(2): a('v_pk_add_f32 %s, %s, %s' % (v(PQ + 2 * h, 2), v(PQ + 2 * h, 2), v(PQ + 4 + 2 * h, 2)))
        for k in range(4): a('v_and_or_b32 %s, %s, v14, %s' % (v(PQ + k), v(PQ + k), s(48 + k)))
        a('s_mov_b64 exec, 0xffff')
        a('buffer_store_dwordx4 %s, v3, s[4:7], s54 offen sc1' % v(PQ, 4))
        a('s_mov_b64 exec, -1'); a('s_mov_b32 s58, 0')
        a('s_waitcnt vmcnt(0)')
        a.lines.append('fz_h6:')
        a('buffer_load_dword %s, v6, s[4:7], s55 offen sc1' % v(PQ + 8))
        a('s_waitcnt vmcnt(0)')
        a('v_xor_b32 %s, v16, %s' % (v(PQ), v(PQ + 8))); a('v_and_b32 v8, 0xff, %s' % v(PQ)); a('v_cmp_ne_u32 vcc, 0, v8')
        poll_retry('fz_h6')
        a('v_add_f32_dpp %s, %s, %s row_ror:8 %s' % (v(PQ), v(PQ), v(PQ), DPPF))
        for sw in ('32', '16'):
            a('v_mov_b32 %s, %s' % (v(PQ + 1), v(PQ))); a('v_permlane%s_swap_b32 %s, %s' % (sw, v(PQ), v(PQ + 1))); a('v_add_f32 %s, %s, %s' % (v(PQ), v(PQ), v(PQ + 1)))
    else:
        for i in range(2): a('v_permlane32_swap_b32 %s, %s' % (v(PQ + i), v(PQ + 2 + i)))
        a('v_pk_add_f32 %s, %s, %s' % (v(PQ, 2), v(PQ, 2), v(PQ + 2, 2)))
        a('v_permlane16_swap_b32 %s, %s' % (v(PQ), v(PQ + 1)))
        a('v_add_f32 %s, %s, %s' % (v(PQ), v(PQ), v(PQ + 1)))
        a('v_add_f32_dpp %s, %s, %s quad_perm:[2,3,0,1] %s' % (v(PQ), v(PQ), v(PQ), DPPF))
        a('v_add_f32_dpp %s, %s, %s row_ror:4 %s' % (v(PQ), v(PQ), v(PQ), DPPF))
        a('v_add_f32_dpp %s, %s, %s row_ror:8 %s' % (v(PQ), v(PQ), v(PQ), DPPF))
    rbf(a, PQ); a('v_mul_f32 %s, %s, v12' % (v(PQ), v(PQ))); rbf(a, PQ)
    a('v_add_f32 %s, %s, v11' % (v(PQ), v(PQ))); rbf(a, PQ)
    a('v_add_f32 %s, %s, v10' % (v(PQ), v(PQ))); rbf(a, PQ)
    if TWO: a('s_mov_b64 exec, 0xff')
    else: a('s_mov_b32 exec_lo, 0x00030003'); a('s_mov_b32 exec_hi, 0x00030003')
    a('buffer_store_short_d16_hi %s, v2, s[12:15], s39 offen' % v(PQ))
    a('s_cmp_lg_u32 s20, 0'); a('s_cbranch_scc1 fz_xend')
    a('s_mov_b64 exec, 1'); a('v_mov_b32 v8, s40')
    a('buffer_store_dword v8, v7, s[4:7], 0 offen')
    a.lines.append('fz_xend:')
    st.n = 15; st()
    st.dump(n=16, sv=250, wave='s3')
    a.lines.append('fz_end:')
    a('s_endpgm')
    a.lines.append('fz_late:')
    for r in range(2):
        for q in range(2): a('buffer_store_dwordx4 %s, %s, s[12:15], %s offen offset:%d%s' % (v(OP + 8 * r + 4 * q, 4), v(vL16), s(34 + r), 1024 * q, OUTF))
    a('s_branch fz_xend')
    a.lines.append('fz_act:')
    a('s_cmp_gt_u32 s23, 111'); a('s_cbranch_scc1 fz_xend')
    a('v_lshlrev_b32 v2, 2, v1'); a('v_and_b32 v11, 3, v1'); a('v_mov_b32 v3, s48')
    for k in range(1, 4): a('v_cmp_eq_u32 vcc, %d, v11' % k); a('v_mov_b32 v10, %s' % s(48 + k)); a('v_cndmask_b32 v3, v3, v10, vcc')
    a('v_and_b32 v10, 31, v1'); a('v_lshlrev_b32 v6, 4, v10'); a('v_lshrrev_b32 v10, 5, v1'); a('v_mul_u32_u24 v10, %d, v10' % (4 * 546)); a('v_add_u32 v6, v6, v10'); a('v_add_u32 v6, %d, v6' % ACT)
    a('s_lshl_b32 s38, s23, 11'); a('s_add_u32 s38, s38, 0x%x' % XOFF)
    a('s_mov_b32 s58, 0')
    st.n = 12; st()
    if APP:
        a.lines.append('fz_p4:')
        a('buffer_load_dword v8, v2, s[4:7], s38 offen offset:%d sc1' % (256 * (APP - 1)))
        a('s_waitcnt vmcnt(0)')
        a('v_xor_b32 v8, v3, v8'); a('v_and_b32 v8, 0xff, v8'); a('v_cmp_ne_u32 vcc, 0, v8')
        poll_retry('fz_p4')
        a('s_mov_b32 s58, 0')
    a.lines.append('fz_h4:')
    for k in range(8): a('buffer_load_dword %s, v2, s[4:7], s38 offen offset:%d sc1' % (v(16 + k), 256 * k))
    for k in range(0, 8, 2):
        a('s_waitcnt vmcnt(%d)' % (6 - k))
        a('v_xor_b32 %s, v3, %s' % (v(16 + k), v(16 + k))); a('v_xor_b32 %s, v3, %s' % (v(17 + k), v(17 + k)))
        a('v_or3_b32 v10, %s, %s, %s' % (v(16 + k), v(17 + k), 'v10' if k else '0'))
        a('v_add_f32 %s, %s, %s' % (v(16 + k), v(16 + k), v(17 + k)))
        if k & 2: a('v_add_f32 %s, %s, %s' % (v(14 + k), v(14 + k), v(16 + k)))
    a('v_and_b32 v10, 0xff, v10'); a('v_add_f32 v8, v16, v20')
    a('v_cmp_ne_u32 vcc, 0, v10')
    poll_retry('fz_h4')
    rbf(a, 8)
    a('v_mov_b32 v9, v8')
    a('v_permlane32_swap_b32 v8, v9')
    a('v_mul_f32 v10, %s, v8' % fh(-1.4426950408889634))
    a('v_exp_f32 v10, v10')
    a('v_add_f32 v10, 1.0, v10'); a('v_rcp_f32 v10, v10')
    a('v_mul_f32 v8, v8, v10'); rbf(a, 8)
    a('v_mul_f32 v8, v8, v9'); rbf(a, 8)
    for m in range(4): a('ds_write_b16_d16_hi v6, v8 offset:%d' % (546 * m))
    a('s_waitcnt lgkmcnt(0)')
    a('s_branch fz_f2')
    a.lines.append('fz_ldh:')
    a('s_load_dwordx2 s[12:13], s[0:1], 56'); a('s_load_dwordx2 s[16:17], s[0:1], 64')
    srd(12, 0x700000); srd(16, 0x700000)
    a('s_branch fz_ldback')
    a.lines.append('fz_spec:')
    a('s_cmp_gt_u32 s3, 3'); a('s_cbranch_scc1 fz_spec_hi')
    for q, sa, sb in ((0, 0, 16), (2, 15, 17), (3, 18, 19)):
        a('s_cmp_eq_u32 s3, %d' % q); a('s_cselect_b32 s31, %d, s31' % (sa * RS)); a('s_cselect_b32 s30, %d, s30' % (sb * RS))
    a('s_branch fz_specback')
    a.lines.append('fz_spec_hi:')
    xload()
    if LATEX: extras()
    for q, ra, rb, sa, sb in ((0, 256, 1792, 4, 11), (1, 768, 1280, 6, 9), (2, 768, 1280, 20, 21), (3, 256, 1792, 22, 23)):
        a('s_cmp_eq_u32 s24, %d' % q); a('s_cselect_b32 s31, %d, s31' % (sa * RS)); a('s_cselect_b32 s30, %d, s30' % (sb * RS))
        a('s_cselect_b32 s27, %d, s27' % (ra * 2048)); a('s_cselect_b32 s28, %d, s28' % (rb * 2048))
    a('s_mov_b32 s57, 0')
    a('s_branch fz_specback')
    a.lines.append('fz_jb:')
    pack(JT, XAC, 16, 'bf16')
    a('s_branch fz_jend')
    if TWO:
        a.lines.append('fz_prem:')
        for h in range(2): a('buffer_store_dwordx4 %s, %s, s[4:7], s63 offen sc1' % (v(152 + 4 * h, 4), v(102 + h)))
        a('s_branch fz_f2d')
    a.lines.append('fz_bsp0:')
    wdload(0, 8 - WL if (WL and SPID & 4) else W3)
    a('s_branch fz_bsp')
    a.lines.append('fz_spec4:')
    a('s_mov_b32 s38, 0x80018001'); a('s_mov_b32 s39, 0x80018001')
    for k in range(8): a('v_cndmask_b32 %s, %s, %s, s[38:39]' % (v(YM + k), v(YM + k), v(YD + k)))
    a('s_branch fz_spec4back')
    a.label('fz_nc1')
    a('s_setprio 0')
    a('s_cmp_lg_u32 s59, 0'); a('s_cbranch_scc1 ffn_b')
    if WL:
        wdload(WE, 8 - WL)
        a('s_bitcmp1_b32 s2, 2'); a('s_cbranch_scc1 fz_wl1')
        wdload(8 - WL, 8)
        a.lines.append('fz_wl1:')
        latex()
        a('s_waitcnt vmcnt(%d)' % (2 * (8 - WL) + 6))
    else:
        wdload(WE, W2)
        latex()
        a('s_waitcnt vmcnt(%d)' % (2 * W2 + 6))
    tags2()
    a.lines.append('fz_bsp:')
    a('s_setprio 0'); a('s_mov_b32 s57, 1')
    a('s_cmp_gt_u32 s3, 5'); a('s_cbranch_scc1 fz_nocq')
    cq_job()
    a.lines.append('fz_nocq:')
    SETA()
    SETB('b')
    a('s_cmp_eq_u32 s2, %d' % SPID); a('s_cbranch_scc1 fz_sz')
    a('s_waitcnt vmcnt(0)')
    sync_add(0x100)
    a.lines.append('fz_sz:')
    a('ds_read_b32 v10, v15')
    a('s_waitcnt lgkmcnt(0)')
    a('v_cmp_ne_u32 vcc, s38, v10')
    a('s_cbranch_vccnz fz_sz')
    st.n = 5; st()
    SET2()
    wdload(W2, W3)
    st()
    a('s_waitcnt lgkmcnt(0)')
    a('s_branch fz_hb')
    a.label('fz_nc3')
    a('s_mov_b32 s58, 0')
    a('s_waitcnt vmcnt(0)')
    st.n = 9; st()
    a('s_branch fz_h2')
    for sfx in 'ab':
        a.lines.append('fz_spec3%s:' % sfx)
        a('v_xor_b32 v11, 1, v4'); a('v_cndmask_b32 v9, v9, v11, s[34:35]')
        a('v_and_b32 v11, 1, v4'); a('v_cndmask_b32 v11, 0, v11, s[34:35]'); a('v_sub_u32 v10, v10, v11')
        a('s_cmp_lg_u32 s22, 0'); a('s_cbranch_scc1 fz_spec3back%s' % sfx)
        for i, tt, pp, po in ((15, 1024, 124, 4), (13, 1536, 124, 6), (4, 256, 127, 8), (11, 1792, 127, 14), (6, 768, 127, 10), (9, 1280, 127, 12)):
            a('v_cmp_eq_u32 vcc, %d, v4' % i); a('v_mov_b32 v11, %d' % tt); a('v_mov_b32 v12, %d' % pp)
            a('v_cndmask_b32 %s, %s, v11, vcc' % (v(vT), v(vT))); a('v_cndmask_b32 v10, v10, v12, vcc'); a('v_cndmask_b32 v9, v9, %d, vcc' % po)
        a.flush(); a('s_branch fz_spec3back%s' % sfx)
    WF, WD, BH, ACC, K = 32, 96, 128, 192, 200
    SNT = '' if '--spl' in OPT else ' nt'
    def ffn_addr():
        a('s_bfe_u32 s21, s2, 0x30003')
        a('v_lshrrev_b32 v2, 5, v1'); a('v_and_b32 v3, 31, v1'); a('v_lshlrev_b32 v4, 1, v2'); a('v_xor_b32 v3, v4, v3')
        a('v_mul_u32_u24 v4, 7168, v2'); a('v_lshl_add_u32 v4, v3, 4, v4')
        for k in range(1, 4): a('v_xor_b32 %s, %d, v4' % (v(4 + k), 64 * k))
        a('s_lshl_b32 s23, s21, 7'); a('s_lshl_b32 s24, s3, 4'); a('s_add_u32 s23, s23, s24'); a('s_mul_i32 s23, s23, 7168'); a('s_lshl_b32 s24, s22, 9'); a('s_add_u32 s23, s23, s24')
        a('s_lshl_b32 s24, s3, 13')
    def gu(m, p):
        a('s_add_u32 s28, s24, %d' % ((0 if m else GT) + 1024 * p)); a('s_mov_b32 m0, s28'); a('s_add_u32 s29, s23, %d' % (p * 2 * 7168))
        if '--xnogu' not in OPT: a('buffer_load_dwordx4 %s, %s, s29 offen%s lds' % (v(4 + (p & 1) + 2 * (p >> 2)), s(16 if m else 12, 4), SNT))
    a.label('ffn_b')
    if not NE:
        a('s_waitcnt vmcnt(0)')
        tags()
    a.label('ffn')
    st.n = 5; st()
    blk(22, 36)
    a('s_cmp_gt_u32 s22, 13'); a('s_cbranch_scc1 fz_xend')
    ffn_addr()
    a('v_mov_b32 v31, %d' % (MSG + 48)); a('v_mov_b32 v10, 0'); a('ds_write_b32 v31, v10'); a('s_waitcnt lgkmcnt(0)')
    if NE:
        a('s_cmp_lt_u32 s3, 4'); a('s_cbranch_scc1 ffn_g1')
        for p in range(NE): gu(0, p)
        a('s_waitcnt vmcnt(%d)' % NE)
        tags()
        a('s_barrier'); a('s_branch ffn_g2')
        a.lines.append('ffn_g1:')
    a('s_setprio 0'); a('s_barrier')
    if GATE:
        a('s_lshl_b32 s26, s3, 3'); a('s_add_u32 s26, s26, %d' % (GATE - 1)); a('s_mul_i32 s26, s26, %d' % PS); a('s_add_u32 s26, s26, 0x%x' % WOFF); a('s_and_b32 s27, s2, 127'); a('s_lshl_b32 s27, s27, 7'); a('s_add_u32 s26, s26, s27')
        a('v_mov_b32 v9, 0'); a('s_mov_b32 s27, 0x30003')
        a('s_waitcnt vmcnt(0)')
        a.lines.append('ffn_gp:')
        a('buffer_load_dword v10, v9, s[4:7], s26 offen sc1')
        a('s_waitcnt vmcnt(0)')
        a('v_xor_b32 v10, s44, v10'); a('v_and_b32 v10, s27, v10'); a('v_cmp_ne_u32 vcc, 0, v10')
        poll_retry('ffn_gp')
        a('s_mov_b32 s58, 0')
    if '--ackfirst' in OPT: a('s_waitcnt vmcnt(0)'); a('s_barrier')
    for p in range(8):
        if NE and p == NE: a.lines.append('ffn_g2:')
        gu(0, p)
        if THR: a('s_waitcnt vmcnt(%d)' % (THR - 1))
    if NE == 8: a.lines.append('ffn_g2:')
    def l2p():
        a('s_lshl_b32 s28, s22, 3'); a('s_add_u32 s28, s28, s21'); a('s_lshl_b32 s28, s28, 16'); a('v_lshlrev_b32 v9, 7, v0')
        a('buffer_load_dword v248, v9, s[64:67], s28 offen')
    if L2P == 1: l2p()
    for p in range(8):
        gu(1, p)
        if THR2: a('s_waitcnt vmcnt(%d)' % (THR2 - 1))
    if L2P == 2: l2p()
    a('v_lshrrev_b32 v2, 4, v1'); a('v_and_b32 v3, 15, v1')
    a('v_bfe_u32 v9, v1, 2, 2'); a('v_lshl_add_u32 v8, v2, 3, v9'); a('v_lshlrev_b32 v8, 9, v8')
    a('v_and_b32 v10, 1, v2'); a('v_lshl_add_u32 v10, v10, 2, v9'); a('s_lshl_b32 s28, s3, 1'); a('v_xor_b32 v10, s28, v10')
    a('v_lshl_add_u32 v8, v10, 5, v8'); a('v_and_b32 v10, 3, v1'); a('v_lshl_add_u32 v8, v10, 3, v8')
    a('v_xor_b32 v12, 32, v8'); a('v_add_u32 v13, %d, v8' % GT); a('v_add_u32 v20, %d, v12' % GT)
    a('v_bfe_u32 v9, v0, 2, 2'); a('v_lshrrev_b32 v10, 6, v0'); a('v_lshl_add_u32 v9, v10, 2, v9')
    a('v_bfe_u32 v10, v0, 4, 1'); a('v_and_b32 v11, 3, v0'); a('v_lshlrev_b32 v11, 1, v11'); a('v_lshl_add_u32 v10, v10, 3, v11')
    a('v_lshl_add_u32 v11, v9, 5, v10'); a('v_add_u32 v17, 1, v11')
    a('v_cmp_eq_u32 vcc, 0, v10'); a('v_cmp_gt_u32 s[28:29], 16, v9'); a('s_and_b64 vcc, vcc, s[28:29]'); a('v_cndmask_b32 v14, 0, 16, vcc'); a('v_add_u32 v16, v11, v14')
    a('v_bfe_u32 v10, v0, 5, 1'); a('v_cmp_eq_u32 s[28:29], 1, v10')
    a('v_sub_u32 v14, 1024, v16'); a('v_cmp_eq_u32 vcc, 512, v16'); a('v_cndmask_b32 v14, v14, 0, vcc'); a('v_cndmask_b32 v16, v16, v14, s[28:29]')
    a('v_sub_u32 v14, 1024, v17'); a('v_cndmask_b32 v17, v17, v14, s[28:29]')
    for r in (16, 17): a('v_lshlrev_b32 %s, 1, %s' % (v(r), v(r))); a('v_add_u32 %s, %d, %s' % (v(r), HN, v(r)))
    a('v_lshlrev_b32 v18, 2, v0'); a('v_add_u32 v18, %d, v18' % RAW)
    a('s_lshl_b32 s28, s21, 8'); a('s_add_u32 s28, s28, %d' % HN); a('v_lshlrev_b32 v19, 4, v2'); a('v_add_u32 v19, s28, v19')
    a('v_mov_b32 v28, %d' % MSG)
    a('v_lshlrev_b32 v29, 4, v1')
    a('s_lshl_b32 s30, s22, 3'); a('s_add_u32 s30, s30, s3'); a('s_lshl_b32 s30, s30, 3'); a('s_add_u32 s30, s30, s21'); a('s_lshl_b32 s30, s30, 8'); a('s_add_u32 s30, s30, 0x%x' % XOFF)
    a('v_lshlrev_b32 v30, 4, v2'); a('v_lshl_add_u32 v30, v3, 6, v30')
    for k in range(1, 4): a('v_cmp_eq_u32 %s, %d, v3' % (s(58 + 2 * k, 2), k))
    a('v_add_u32 v21, %d, v29' % RAW)
    a('v_mov_b32 %s, 0xffffff00' % v(197))
    a('s_and_b32 s35, s2, 0x47'); a('s_lshl_b32 s31, s3, 3'); a('s_add_u32 s35, s35, s31'); a('s_add_u32 s35, s35, %d' % POFS); a('s_and_b32 s35, s35, 127')
    a('s_getreg_b32 s33, hwreg(HW_REG_XCC_ID)'); a('s_and_b32 s33, s33, 15')
    a('s_lshr_b32 s31, s35, 5'); a('s_lshl_b32 s31, s31, 2'); a('s_add_u32 s31, s31, %d' % (MSG + 16)); a('v_mov_b32 v22, s31')
    a('s_lshl_b32 s20, s22, 3'); a('s_add_u32 s20, s20, s21')
    a('s_and_b32 s34, s20, 15')
    if DB & 2: a('s_bfe_u32 s28, s20, 0x10004'); a('s_lshl_b32 s28, s28, 5'); a('s_add_u32 s34, s34, s28')
    a('s_mul_i32 s34, s34, %d' % KS); a('s_add_u32 s34, s34, 0x%x' % KOFF)
    def trw():
        for T_, ad in enumerate((13, 20, 8, 12)):
            for k in range(4):
                for hh in range(2): a('ds_read_b64_tr_b16 %s, %s offset:%d' % (v(WF + 16 * T_ + 4 * k + 2 * hh, 2), v(ad), 16384 * k + 2048 * hh))
            a('s_waitcnt lgkmcnt(0)')
    a('s_waitcnt vmcnt(%d)' % (1 if L2P == 2 else 0))
    if DEC:
        a('v_mov_b32 v10, 1'); a('s_mov_b64 exec, 1'); a('ds_add_u32 v31, v10'); a('s_mov_b64 exec, -1')
        a('s_mov_b32 s23, 0')
        a('s_cmp_eq_u32 s3, 0'); a('s_cbranch_scc1 ffn_z0')
        a.lines.append('ffn_sl:')
        a('ds_read_b32 v10, v31'); a('s_waitcnt lgkmcnt(0)'); a('v_cmp_ne_u32 vcc, 8, v10'); a('s_cbranch_vccnz ffn_sl')
        st()
        trw()
        st()
        a('s_cmp_lg_u32 s3, 0'); a('s_cbranch_scc1 ffn_w3')
        a('s_cmp_eq_u32 s23, 2'); a('s_cbranch_scc1 ffn_w3')
        a('s_mov_b32 s23, 1')
        a.lines.append('ffn_z0:')
    else:
        a('s_barrier')
        st()
        trw()
        st()
        a('s_cmp_lg_u32 s3, 0'); a('s_cbranch_scc1 ffn_w3')
    if KP == 0:
        a('v_lshlrev_b32 v23, %d, v1' % KRL); a('v_add_u32 v24, %d, v23' % (64 << KRL)); a('s_lshl_b32 s28, s20, %d' % KRL); a('s_add_u32 s28, s28, s34'); a('v_mov_b32 v10, %d' % (12 + (16 * KS if DB & 1 else 0)))
        if DTH:
            a('v_mul_u32_u24 v11, %d, v1' % (3 << KRL if False else 2 << KRL)); a('v_bfe_u32 v9, v1, 2, 1'); a('v_lshl_add_u32 v11, v9, %d, v11' % KRL); a('v_add_u32 v10, v10, v11'); a('s_mov_b32 s28, s34')
            a.lines.append('ffn_q3:')
            a('buffer_load_dword v11, v10, s[4:7], s28 offen sc1')
            a('s_add_u32 s58, s58, 1')
            a('s_waitcnt vmcnt(0)')
            a('v_cmp_eq_u32 vcc, s40, v11')
            a('s_cmp_gt_u32 s58, 0x%x' % MAXPOLL); a('s_cbranch_scc1 ffn_p3_ok')
            a('s_bcnt1_i32_b64 s29, vcc'); a('s_cmp_lt_u32 s29, %d' % DTH); a('s_cbranch_scc1 ffn_q3'); a('s_branch ffn_p3_ok')
        a.label('ffn_p3')
        a('buffer_load_dword v11, v10, s[4:7], s28 offen sc1')
        if DEC: a('ds_read_b32 v9, v31')
        a('s_waitcnt vmcnt(0) lgkmcnt(0)')
        a('v_cmp_ne_u32 vcc, s40, v11')
        if DEC:
            a('s_cbranch_vccnz ffn_p3_x')
            a.lines.append('ffn_p3_ok:')
        else: poll_retry('ffn_p3')
        a('s_mov_b32 s58, 0'); a('s_mov_b32 s54, -1')
        st()
        a.label('ffn_k3')
        a('buffer_load_dwordx4 %s, v23, s[4:7], s34 offen sc1' % v(K, 4)); a('buffer_load_dwordx4 %s, v24, s[4:7], s34 offen sc1' % v(K + 4, 4))
        a('s_waitcnt vmcnt(0)')
        if SPEC:
            a('v_cmp_eq_u32 s[24:25], s40, %s' % v(K + 3)); a('v_cmp_eq_u32 s[26:27], s40, %s' % v(K + 7))
            a('v_cndmask_b32 %s, 0, %s, s[24:25]' % (v(K), v(K))); a('v_cndmask_b32 %s, 0, %s, s[26:27]' % (v(K + 4), v(K + 4)))
            a('v_max_u32 %s, %s, %s' % (v(K + 10), v(K), v(K + 4)))
            for pat in ['quad_perm:[1,0,3,2] ' + DPPF, 'quad_perm:[2,3,0,1] ' + DPPF, 'row_half_mirror ' + DPPF,
                        'row_mirror ' + DPPF, 'row_bcast:15 row_mask:0xa bank_mask:0xf', 'row_bcast:31 row_mask:0xc bank_mask:0xf']:
                a('v_max_u32_dpp %s, %s, %s %s' % (v(K + 10), v(K + 10), v(K + 10), pat))
            a('s_and_b64 s[52:53], s[24:25], s[26:27]')
            a('v_readlane_b32 s36, %s, 63' % v(K + 10))
        else: keys_argmax(K, None, 'ffn_k3')
    else:
        st()
        KSET = [216 + 8 * i for i in range(KP)]
        def ki(r): a('buffer_load_dwordx4 %s, v29, s[4:7], s34 offen sc1' % v(r, 4)); a('buffer_load_dwordx4 %s, v29, s[4:7], s34 offen offset:1024 sc1' % v(r + 4, 4))
        for r in KSET[:-1]: ki(r)
        a.lines.append('ffn_k3:')
        for i, r in enumerate(KSET):
            ki(KSET[i - 1])
            a('s_waitcnt vmcnt(%d)' % (2 * KP - 2))
            for k in range(8): a('v_mov_b32 %s, %s' % (v(K + k), v(r + k)))
            a('v_max_u32 %s, %s, %s' % (v(K + 10), v(K), v(K + 4)))
            a('v_xor_b32 %s, s40, %s' % (v(K + 8), v(K + 3))); a('v_xor_b32 %s, s40, %s' % (v(K + 9), v(K + 7)))
            for pat in ['quad_perm:[1,0,3,2] ' + DPPF, 'quad_perm:[2,3,0,1] ' + DPPF, 'row_half_mirror ' + DPPF,
                        'row_mirror ' + DPPF, 'row_bcast:15 row_mask:0xa bank_mask:0xf', 'row_bcast:31 row_mask:0xc bank_mask:0xf']:
                a('v_max_u32_dpp %s, %s, %s %s' % (v(K + 10), v(K + 10), v(K + 10), pat))
            a('v_or_b32 %s, %s, %s' % (v(K + 8), v(K + 8), v(K + 9)))
            a('v_readlane_b32 s36, %s, 63' % v(K + 10))
            a('v_cmp_ne_u32 vcc, 0, %s' % v(K + 8))
            a('s_cbranch_vccz ffn_k3_ok')
        a('s_add_u32 s58, s58, 1'); a('s_cmp_lt_u32 s58, 0x%x' % MAXPOLL); a('s_cbranch_scc1 ffn_k3')
        a.label('ffn_k3_ok')
    a('v_cmp_eq_u32 vcc, s36, %s' % v(K)); a('v_cmp_eq_u32 s[28:29], s36, %s' % v(K + 4))
    a('s_cmp_lg_u64 vcc, 0'); a('s_cselect_b32 s39, 0, 64'); a('s_or_b64 vcc, vcc, s[28:29]'); a('s_ff1_i32_b64 s41, vcc')
    a('s_add_u32 s39, s39, s41'); a('s_lshl_b32 s39, s39, 11'); a('s_add_u32 s39, s39, 0x%x' % COFF)
    CR = BH
    if SPEC:
        a('s_cmp_eq_u32 s39, s54'); a('s_cbranch_scc1 ffn_c3h')
        a('buffer_load_dwordx4 %s, v29, s[4:7], s39 offen sc1' % v(CR, 4)); a('buffer_load_dwordx4 %s, v29, s[4:7], s39 offen offset:1024 sc1' % v(CR + 4, 4))
        a.lines.append('ffn_c3h:')
        a('s_cmp_lg_u64 s[52:53], -1'); a('s_cbranch_scc1 ffn_k3_rt')
        a.lines.append('ffn_k3_ok:')
        a('s_mov_b32 s58, 0')
        st()
    else:
        a('s_mov_b32 s58, 0')
        st()
        a.lines.append('ffn_c3:')
        a('buffer_load_dwordx4 %s, v29, s[4:7], s39 offen sc1' % v(CR, 4)); a('buffer_load_dwordx4 %s, v29, s[4:7], s39 offen offset:1024 sc1' % v(CR + 4, 4))
    a.lines.append('ffn_c3d:')
    a('v_and_b32 v10, 15, %s' % v(K + 1)); a('v_and_b32 v11, 15, %s' % v(K + 5))
    a('v_cmp_eq_u32 s[24:25], s33, v10'); a('v_cmp_eq_u32 s[26:27], s33, v11')
    for k in range(4): a('v_mov_b32 %s, %s' % (v(K + 12 + k), s(24 + k) if LOCAL else '0'))
    for k in range(1, 3): a('v_cndmask_b32 %s, %s, %s, s[28:29]' % (v(K + 8 + k), v(K + k), v(K + 4 + k)))
    a('v_and_b32 %s, 0xffff0000, %s' % (v(K + 9), v(K + 9)))
    a('s_mov_b64 s[42:43], vcc'); a('s_mov_b64 exec, vcc')
    a('ds_write_b128 v28, %s' % v(K + 8, 4)); a('ds_write_b128 v28, %s offset:16' % v(K + 12, 4))
    a('s_mov_b64 exec, -1')
    a('s_waitcnt vmcnt(1)')
    a('ds_write_b128 v21, %s' % v(CR, 4))
    a('v_max3_u32 v10, %s, %s, %s' % (v(CR), v(CR + 1), v(CR + 2)))
    a('s_waitcnt vmcnt(0)')
    a('ds_write_b128 v21, %s offset:1024' % v(CR + 4, 4))
    a('v_max3_u32 v10, v10, %s, %s' % (v(CR + 3), v(CR + 4))); a('v_max3_u32 v11, %s, %s, %s' % (v(CR + 5), v(CR + 6), v(CR + 7))); a('v_max_u32 v10, v10, v11')
    a('v_cmp_eq_u32 vcc, -1, v10')
    a('s_cbranch_vccnz ffn_c3_rt')
    a.lines.append('ffn_c3_ok:')
    a('s_waitcnt lgkmcnt(0)')
    if DEC:
        a('s_cmp_eq_u32 s23, 0'); a('s_mov_b32 s23, 2'); a('s_cbranch_scc1 ffn_sl')
    a.label('ffn_w3')
    a('s_barrier')
    st.n = 10; st()
    a('ds_read_b32 v11, v18'); a('ds_read_b128 %s, v28' % v(K, 4)); a('ds_read_b32 %s, v22' % v(K + 3))
    a('s_mov_b32 s28, 0xffff0000')
    a('s_waitcnt lgkmcnt(2)')
    a('v_lshlrev_b32 v14, 16, v11'); a('v_and_b32 v15, s28, v11')
    a('s_waitcnt lgkmcnt(0)')
    for r in (14, 15): a('v_add_f32 %s, %s, %s' % (v(r), v(r), v(K + 1)))
    for r in (14, 15): rbf(a, r)
    for r in (14, 15): a('v_mul_f32 %s, %s, %s' % (v(r), v(r), v(K + 2)))
    a('v_cvt_pk_bf16_f32 v14, v14, v15')
    a('ds_write_b16 v16, v14'); a('ds_write_b16_d16_hi v17, v14')
    a('v_readfirstlane_b32 s24, %s' % v(K + 3))
    a('s_waitcnt lgkmcnt(0)'); a('s_barrier')
    st()
    for k in range(4): a('ds_read_b128 %s, v19 offset:%d' % (v(BH + 4 * k, 4), 64 * k))
    AC = 144
    for k in range(4):
        a('s_waitcnt lgkmcnt(%d)' % (3 - k))
        for T_ in range(4): a('v_mfma_f32_16x16x32_bf16 %s, %s, %s, %s' % (v((AC + 4 * T_) if T_ else ACC, 4), v(WF + 16 * T_ + 4 * k, 4), v(BH + 4 * k, 4), v((AC + 4 * T_) if T_ else ACC, 4) if k else '0'))
    for T_ in range(1, 4):
        for k in range(4): a('v_cndmask_b32 %s, %s, %s, %s' % (v(ACC + k), v(ACC + k), v(AC + 4 * T_ + k), s(58 + 2 * T_, 2)))
    a('s_mov_b32 exec_lo, 0x000f000f'); a('s_mov_b32 exec_hi, 0x000f000f')
    for k in range(4): a('v_and_or_b32 %s, %s, %s, %s' % (v(ACC + k), v(ACC + k), v(197), s(48 + k)))
    a('s_bitcmp1_b32 s24, s35'); a('s_cbranch_scc0 ffn_rem')
    a('buffer_store_dwordx4 %s, v30, s[4:7], s30 offen' % v(ACC, 4))
    a.lines.append('ffn_fin:')
    st()
    st.dump(sv=250, wave='s3')
    a('s_endpgm')
    a.lines.append('ffn_rem:')
    a('buffer_store_dwordx4 %s, v30, s[4:7], s30 offen sc1' % v(ACC, 4))
    a('s_branch ffn_fin')
    if DEC:
        a.lines.append('ffn_p3_x:')
        a('s_add_u32 s58, s58, 1'); a('s_cmp_gt_u32 s58, 0x%x' % MAXPOLL); a('s_cbranch_scc1 ffn_p3_ok')
        a('s_cmp_lg_u32 s23, 0'); a('s_cbranch_scc1 ffn_p3')
        a('v_cmp_eq_u32 vcc, 8, v9'); a('s_cbranch_vccnz ffn_sl'); a('s_branch ffn_p3')
    a.lines.append('ffn_c3_rt:')
    if SPEC:
        a('s_mov_b64 vcc, s[42:43]'); a('s_add_u32 s58, s58, 1'); a('s_cmp_gt_u32 s58, 0x%x' % MAXPOLL); a('s_cbranch_scc1 ffn_c3_ok')
        a('buffer_load_dwordx4 %s, v29, s[4:7], s39 offen sc1' % v(CR, 4)); a('buffer_load_dwordx4 %s, v29, s[4:7], s39 offen offset:1024 sc1' % v(CR + 4, 4))
        a('s_branch ffn_c3d')
        a.lines.append('ffn_k3_rt:')
        a('s_cmp_lg_u32 s36, 0'); a('s_cselect_b32 s54, s39, -1')
        a('s_add_u32 s58, s58, 1'); a('s_cmp_lt_u32 s58, 0x%x' % MAXPOLL); a('s_cbranch_scc1 ffn_k3'); a('s_branch ffn_k3_ok')
    else:
        a('s_mov_b64 vcc, s[42:43]'); a('s_add_u32 s58, s58, 1'); a('s_cmp_lt_u32 s58, 0x%x' % MAXPOLL); a('s_cbranch_scc1 ffn_c3'); a('s_branch ffn_c3_ok')
    emit_stubs()
    a.lines.append('fz_codeend:')

def main(path):
    ref = open('/code/%s.s.ref' % NAME).read().splitlines()
    for l in ref:
        if l.startswith('; Override'): break
        a.raw(l)
    a.raw('; @launch kernel=fz_kernel grid=(256,1,1) block=(512,1,1) lds=163840')
    if STAMPS: a.raw('; @groups fftA=0-127:0-3,fftB=0-127:4-7,ffn=128-255:0-0')
    a.raw('.amdgcn_target "amdgcn-amd-amdhsa--gfx950"'); a.raw('.text')
    gen()
    a.raw('.section .rodata,"a"')
    a.raw('\n'.join(['.p2align 6', '.amdhsa_kernel fz_kernel', '  .amdhsa_next_free_vgpr 256', '  .amdhsa_next_free_sgpr 102',
        '  .amdhsa_accum_offset 256', '  .amdhsa_group_segment_fixed_size 0', '  .amdhsa_kernarg_size 104', '  .amdhsa_user_sgpr_count 2',
        '  .amdhsa_user_sgpr_kernarg_segment_ptr 1', '  .amdhsa_system_sgpr_workgroup_id_x 1', '.end_amdhsa_kernel', '']))
    open(path, 'w').write(a.text())
    print('wrote', path, 'lines', len(a.lines), 'nops', a.nops)
if __name__ == '__main__':
    ps = [x for x in sys.argv[1:] if x.endswith('.s')]
    main(ps[0] if ps else '/code/%s.s' % NAME)
```

```python
import struct, sys
import os; _d = os.path.dirname(os.path.abspath(__file__)); sys.path.insert(0, _d); sys.path.insert(0, _d + '/mb')
from asmlib import Asm
from mblib import St
NAME = 'sequential_preLN__spectral_fnet__moe_arch_mod__prompt'
def fh(x): return '0x%08x' % struct.unpack('<I', struct.pack('<f', x))[0]
OPT = set(a for a in sys.argv[1:] if a.startswith('--'))
def optv(name, d):
    for o in OPT:
        if o.startswith('--%s=' % name): return int(o.split('=')[1])
    return d
STAMPS = '--stamps' in OPT
def v(i, n=1): return 'v%d' % i if n == 1 else 'v[%d:%d]' % (i, i + n - 1)
def s(i, n=1): return 's%d' % i if n == 1 else 's[%d:%d]' % (i, i + n - 1)
DPPF = 'row_mask:0xf bank_mask:0xf'
X1 = 'quad_perm:[1,0,3,2] ' + DPPF
def rbf(a, r): a('v_cvt_pk_bf16_f32 %s, 0, %s' % (v(r), v(r)))
def kr(r): return (r & 3) + 8 * (r >> 2)
PS = 16384 + 128
WOFF = 0x1000; YOFF = 0x210000; KRL = optv('krl', 4); KOFF = 0x580000; KS = (128 << KRL) + 128; COFF = 0x448000; XOFF = 0x488000; POFF = 0x4c8000; PPS = 4096 + 128; PIS = 3584 + 128
DOFF = 0x548000; FIOFF = 0x558000; WSB = 0x690000
RS = 2064
CT = 24 * RS; SB = CT + 18432; AB = SB + 18432; CPS = 8192 + 64; PR = AB + 2 * CPS; WR = PR + 2048; TRASH = WR + 2048; ACT = TRASH + 1024; SYNC = CT - 16
GT = 81920; SP = 65536; HN = GT + 65536; MSG = HN + 2048; RAW = MSG + 64
MAXPOLL = 0x10000
SPID = optv('spid', 66); POFS = (124 - SPID) & 127
class Asm2(Asm):
    def __call__(self, text):
        if text.startswith('v_cndmask_b32 '): text = 'v_cndmask_b32_e64 ' + text[14:]
        Asm.__call__(self, text)
a = Asm2()
class St2(St):
    def __call__(self):
        if '--early' in OPT and 5 < self.n < 15: self.n += 1; return
        St.__call__(self)
st = St2(a, STAMPS)
def est(i):
    if '--early' in OPT and STAMPS: a('s_memrealtime s[%d:%d]' % (70 + 2 * i, 71 + 2 * i))
stubs = []
def poll_retry(name, cnt=58):
    a('s_cbranch_vccnz %s_rt' % name)
    a.lines.append('%s_ok:' % name)
    stubs.append((name, cnt))
prog = []
def prog_poll(name, n, issue, check, after=None):
    for u in range(n):
        a.lines.append('%s_c%d:' % (name, u))
        a('s_waitcnt vmcnt(%d)' % (n - 1 - u))
        check(u)
        a('s_cbranch_vccnz %s_r%d' % (name, u))
        a.lines.append('%s_o%d:' % (name, u))
        if after: after(u)
    prog.append((name, n, issue))
def emit_stubs():
    for name, n, issue in prog:
        for u in range(n):
            a.lines.append('%s_r%d:' % (name, u))
            a('s_add_u32 s58, s58, 1'); a('s_cmp_gt_u32 s58, 0x%x' % MAXPOLL); a('s_cbranch_scc1 %s_o%d' % (name, u))
            for k in range(u, n): issue(k)
            a('s_branch %s_c%d' % (name, u))
    for name, cnt in stubs:
        a.lines.append('%s_rt:' % name)
        a('s_add_u32 %s, %s, 1' % (s(cnt), s(cnt))); a('s_cmp_lt_u32 %s, 0x%x' % (s(cnt), MAXPOLL))
        a('s_cbranch_scc1 %s' % name); a('s_branch %s_ok' % name)
def angles(mulreg, basereg, ks, tmp):
    for i, k in enumerate(ks):
        if k == 0: a('v_mov_b32 %s, %s' % (v(tmp + i), v(basereg)))
        else: a('v_fmamk_f32 %s, %s, %s, %s' % (v(tmp + i), v(mulreg), fh(float(k)), v(basereg)))
def trig(fn, t, n):
    for i in range(n): a('v_%s_f32 %s, %s' % (fn, v(t + i), v(t + i)))
def pack(dst, t, n, kind='f16'):
    for p in range(n // 2): a('v_cvt_pk_%s_f32 %s, %s, %s' % (kind, v(dst + p), v(t + 2 * p), v(t + 2 * p + 1)))
def tags():
    a('v_readfirstlane_b32 s40, v250')
    a('s_add_u32 s40, s40, 1'); a('s_and_b32 s38, s40, 3'); a('s_and_b32 s39, s40, 15')
    for i in range(4):
        a('s_bfe_u32 s41, s40, 0x%x' % ((2 << 16) | (2 * i + 2))); a('s_lshl_b32 s41, s41, 16'); a('s_or_b32 %s, s38, s41' % s(44 + i))
        a('s_bfe_u32 s41, s40, 0x%x' % ((4 << 16) | (4 * i + 4))); a('s_lshl_b32 s41, s41, 4'); a('s_or_b32 %s, s39, s41' % s(48 + i))
def srd(d, nbytes): a('s_mov_b32 %s, 0x%x' % (s(d + 2), nbytes)); a('s_mov_b32 %s, 0x00020000' % s(d + 3))
def blk(dst, tmp):
    if optv('bm', 0):
        e = optv('bm', 0) - 1
        a('s_add_u32 %s, s2, %d' % (s(tmp), 7 - e)); a('s_and_b32 %s, %s, 7' % (s(tmp), s(tmp))); a('s_bfe_u32 %s, s2, 0x10006' % s(tmp + 1))
        a('s_lshl_b32 %s, %s, 1' % (s(dst), s(tmp))); a('s_add_u32 %s, %s, %s' % (s(dst), s(dst), s(tmp + 1))); a('s_min_u32 %s, %s, 14' % (s(dst), s(dst)))
        return
    a('s_add_u32 %s, s2, 4' % s(tmp)); a('s_and_b32 %s, %s, 7' % (s(tmp), s(tmp))); a('s_bfe_u32 %s, s2, 0x10006' % s(tmp + 1))
    a('s_lshl_b32 %s, %s, 1' % (s(dst), s(tmp))); a('s_add_u32 %s, %s, %s' % (s(dst), s(dst), s(tmp + 1)))
    a('s_cmp_lg_u32 %s, 0' % s(tmp + 1)); a('s_cselect_b32 %s, 8, %s' % (s(tmp + 1), s(tmp))); a('s_add_u32 %s, %s, 6' % (s(tmp + 1), s(tmp + 1)))
    a('s_cmp_lt_u32 %s, 6' % s(tmp)); a('s_cselect_b32 %s, %s, %s' % (s(dst), s(dst), s(tmp + 1)))
def keys_argmax(K, gidx, name):
    a('v_xor_b32 %s, s40, %s' % (v(K + 8), v(K + 3))); a('v_xor_b32 %s, s40, %s' % (v(K + 9), v(K + 7)))
    a('v_max_u32 %s, %s, %s' % (v(K + 10), v(K), v(K + 4)))
    a('v_or_b32 %s, %s, %s' % (v(K + 8), v(K + 8), v(K + 9)))
    a('v_cmp_ne_u32 vcc, 0, %s' % v(K + 8))
    poll_retry(name)
    for pat in ['quad_perm:[1,0,3,2] ' + DPPF, 'quad_perm:[2,3,0,1] ' + DPPF, 'row_half_mirror ' + DPPF,
                'row_mirror ' + DPPF, 'row_bcast:15 row_mask:0xa bank_mask:0xf', 'row_bcast:31 row_mask:0xc bank_mask:0xf']:
        a('v_max_u32_dpp %s, %s, %s %s' % (v(K + 10), v(K + 10), v(K + 10), pat))
    a('v_readlane_b32 s36, %s, 63' % v(K + 10))

def gen():
    PIN = optv('pin', 1); WT = optv('wt', 1); DTH = optv('dth', 0); SPEC = optv('spec', 1); EP = optv('ep', 0); TWO = optv('two', 0); L2P = optv('l2p', 0); DEC = optv('dec', 0)
    APP = optv('app', 0); WL = optv('wl', 0)
    BP = optv('bp', 1); THR = optv('thr', 0); THR2 = optv('thr2', 0)
    KP = optv('kp', 0); DB = optv('db', 3)
    PFC = optv('pfc', 1); WSP = optv('wsp', 2204); WE = WSP // 1000; W2 = WE + WSP // 100 % 10; W3 = W2 + WSP // 10 % 10; assert W3 + WSP % 10 == 8; OLATE = '--olate' in OPT; GATE = optv('gate', 0)
    TOUCH = optv('touch', 0); LOCAL = '--nolocal' not in OPT
    NE = optv('ne', 0); LATEX = '--earlyx' not in OPT
    a.raw('.globl fz_kernel'); a.raw('.p2align 8'); a.raw('.type fz_kernel,@function'); a.lines.append('fz_kernel:')
    st()
    if STAMPS:
        for i in range(1, 16): a('s_mov_b32 s%d, -1' % (70 + 2 * i))
    F1, TC, TS, C2, S2, B3C, B3S, CQ = 16, 24, 32, 40, 48, 56, 64, 72
    XA, XB, XAC, XBC, H, T, TP, ST = 88, 96, 104, 120, 136, 144, 152, 160
    XD, WV, WD = 28, 200, 168
    vSW, vSR, vWST, vHL, vA0, vA1, vAR, vY0, vY1, vYL, vM, vT, vXR, vXM, vE0, vM0, vYE, vZM = 216, 217, 221, 222, 223, 224, 225, 226, 227, 228, 229, 230, 231, 232, 233, 234, 236, 238
    vL16, vSG, vM0m, vPW, vPD, vPR, vKA, vCA, vTK, vMT, vE = 239, 240, 241, 243, 244, 245, 246, 247, 248, 249, 252
    a('s_load_dwordx2 s[4:5], s[0:1], 96'); a('s_load_dwordx2 s[8:9], s[0:1], 0'); a('s_load_dwordx2 s[64:65], s[0:1], 72')
    a('s_cmp_gt_u32 s2, 255'); a('s_cbranch_scc1 fz_end')
    a('v_lshrrev_b32 v2, 6, v0'); a('v_and_b32 v1, 63, v0')
    a('s_lshr_b32 s59, s2, 7')
    a('v_readfirstlane_b32 s3, v2')
    if PFC:
        a('s_and_b32 s20, s2, %d' % (255 if '--pfh0' in OPT else 127)); a('s_cmp_lt_u32 s20, %d' % (8 * PFC)); a('s_cselect_b32 s20, s3, 0'); a('s_cmp_lt_u32 s20, 4'); a('s_cbranch_scc1 fz_pfcback')
        a('s_getpc_b64 s[20:21]')
        a.lines.append('fz_pcb:')
        a('s_sub_u32 s20, s20, fz_pcb-fz_kernel'); a('s_subb_u32 s21, s21, 0')
        a('v_and_b32 v3, 255, v0'); a('v_lshlrev_b32 v3, 7, v3'); a('v_min_u32 v3, fz_codeend-fz_kernel-4, v3')
        a('v_mov_b32 v5, s21'); a('v_add_co_u32 v4, vcc, s20, v3'); a('v_addc_co_u32 v5, vcc, 0, v5, vcc')
        a('global_load_dword v251, v[4:5], off')
        a.lines.append('fz_pfcback:')
    a('s_cmp_lg_u32 s59, 0'); a('s_cbranch_scc1 fz_ldh')
    a('s_load_dwordx2 s[12:13], s[0:1], 80'); a('s_load_dwordx2 s[16:17], s[0:1], 48')
    a.lines.append('fz_ldback:')
    a('s_add_u32 s20, s2, %d' % POFS); a('s_and_b32 s20, s20, 127')
    a('s_lshr_b32 s21, s20, 3'); a('s_add_u32 s21, s21, 1'); a('s_and_b32 s22, s20, 7')
    a('s_sub_u32 s23, s20, 124'); a('s_cmp_ge_u32 s20, 124'); a('s_cselect_b32 s21, 0, s21'); a('s_cselect_b32 s22, s23, s22')
    a('s_lshr_b32 s57, s3, 2'); a('s_or_b32 s23, s57, s59'); a('s_and_b32 s24, s3, 3')
    a('s_lshl_b32 s25, s22, 6'); a('s_add_u32 s25, s25, s21')
    a('s_lshl_b32 s26, s23, 5'); a('s_add_u32 s26, s26, s25')
    a('s_lshl_b32 s27, s24, 9'); a('s_add_u32 s28, s26, s27')
    a('s_sub_u32 s27, 2048, s27'); a('s_sub_u32 s27, s27, s26')
    a('s_lshl_b32 s29, s24, 1'); a('s_add_u32 s29, s29, s23'); a('s_sub_u32 s30, 15, s29')
    a('s_cmp_lt_u32 s24, 2'); a('s_cselect_b32 s27, s28, s27'); a('s_cselect_b32 s31, s29, s30'); a('s_cselect_b32 s30, s30, s29')
    a('s_sub_u32 s28, 2048, s27'); a('s_and_b32 s28, s28, 2047')
    a('s_lshl_b32 s27, s27, 11'); a('s_lshl_b32 s28, s28, 11')
    a('s_mul_i32 s31, s31, %d' % RS); a('s_mul_i32 s30, s30, %d' % RS)
    a('v_lshlrev_b32 %s, 4, v1' % v(vL16))
    srd(8, 2048 * 2048); srd(4, WSB); srd(64, 0x700000)
    a('s_and_b32 s32, s57, s59')
    blk(63, 36); a('s_lshl_b32 s63, s63, 3'); a('s_bfe_u32 s37, s2, 0x30003'); a('s_add_u32 s63, s63, s37')
    a('v_and_b32 v10, 15, v1'); a('v_lshlrev_b32 v10, 4, v10'); a('v_lshrrev_b32 v14, 4, v1'); a('v_lshl_add_u32 v14, v14, 11, v10')
    a('s_lshl_b32 s62, s63, 16'); a('s_and_b32 s37, s3, 3'); a('s_lshl_b32 s37, s37, 9'); a('s_add_u32 s62, s62, s37')
    WQ = [160 + 4 * i for i in range(10)] + [60, 64, 68, 88, 92, 96]
    def wdload(q0=0, q1=8):
        for q in range(q0, q0 if '--xnowd' in OPT else q1):
            for h in range(2): a('buffer_load_dwordx4 %s, v14, s[64:67], s62 offen offset:%d%s' % (v(WQ[2 * q + h], 4), 256 * h, '' if '--wpl' in OPT else ' nt'))
            if q < 7: a('s_add_u32 s62, s62, 8192')
    a('s_mov_b32 s58, 0')
    a('s_waitcnt lgkmcnt(0)')
    st()
    a('s_cmp_eq_u32 s2, %d' % SPID); a('s_cbranch_scc1 fz_spec')
    a.lines.append('fz_specback:')
    def xload():
        a('s_mov_b32 m0, s31'); a('s_nop 0')
        a('buffer_load_dwordx4 %s, s[8:11], s27 offen lds' % v(vL16)); a('buffer_load_dwordx4 %s, s[8:11], s27 offen offset:1024 lds' % v(vL16))
        a('s_mov_b32 m0, s30'); a('s_nop 0')
        a('buffer_load_dwordx4 %s, s[8:11], s28 offen lds' % v(vL16)); a('buffer_load_dwordx4 %s, s[8:11], s28 offen offset:1024 lds' % v(vL16))
    def extras():
        a('v_lshlrev_b32 v13, 3, v0'); a('v_mov_b32 v10, -1'); a('v_mov_b32 v11, -1'); a('s_lshl_b32 s32, s20, 11'); a('s_add_u32 s32, s32, 0x%x' % (COFF - 2048))
        srd(16, 2048)
        a('s_lshl_b32 s33, s24, 10'); a('s_min_u32 s34, s33, 2048'); a('s_add_u32 s34, s34, %d' % WR); a('s_mov_b32 m0, s34')
        a('buffer_store_dwordx2 v[10:11], v13, s[4:7], s32 offen sc1')
        a('buffer_load_dwordx4 %s, s[16:19], s33 offen lds' % v(vL16))
    def latex(): xload(); extras()
    a('s_cmp_lg_u32 %s, 0' % ('s57' if LATEX else 's32')); a('s_cbranch_scc1 fz_nox')
    xload()
    a.lines.append('fz_nox:')
    a('buffer_load_dword v250, off, s[4:7], 0')
    if WE:
        a('s_andn2_b32 s32, s57, s59'); a('s_cbranch_scc0 fz_nowe')
        wdload(0, WE)
        a.lines.append('fz_nowe:')
    if not LATEX:
        a('s_andn2_b32 s32, s3, 3'); a('s_cmp_gt_u32 s32, s59'); a('s_cselect_b32 s32, 1, 0'); a('s_andn2_b32 s32, s32, s59'); a('s_cbranch_scc0 fz_noclr')
        extras()
        a.lines.append('fz_noclr:')
    est(6)
    if BP: a('s_cmp_eq_u32 s57, 0'); a('s_cbranch_scc1 fz_np'); a('s_setprio 1'); a.lines.append('fz_np:')
    a('v_and_b32 v2, 31, v1'); a('v_lshrrev_b32 v3, 5, v1'); a('v_and_b32 v4, 15, v1'); a('v_lshrrev_b32 v5, 4, v1')
    a('v_add_u32 v6, %d, %s' % (CT, v(vL16)))
    TT = XAC
    JT = 128
    def cq_job():
        a('s_and_b32 s32, s3, 1'); a('s_lshl_b32 s33, s32, 2'); a('s_lshl_b32 s32, s32, 11')
        a('v_and_b32 v8, 3, v4'); a('v_lshrrev_b32 v9, 2, v4'); a('v_lshl_add_u32 v8, v8, 3, v9'); a('v_add_u32 v8, s33, v8')
        a('v_cvt_f32_u32 v8, v8'); a('v_mul_f32 v8, %s, v8' % fh(1 / 32)); a('v_cvt_f32_u32 v9, v5'); a('v_mul_f32 v9, 4.0, v9'); a('v_mul_f32 v9, v8, v9')
        angles(8, 9, [0, 1, 2, 3, 16, 17, 18, 19], TT)
        for i in range(8): a('v_sin_f32 %s, %s' % (v(TT + 8 + i), v(TT + i)))
        trig('cos', TT, 8)
        for i in range(16): a('v_mul_f32 %s, %s, %s' % (v(TT + i), fh(1 / 16), v(TT + i)))
        pack(JT, TT, 16); a('v_add_u32 v8, s32, v6')
        for q in range(2): a('ds_write_b128 v8, %s offset:%d' % (v(JT + 4 * q, 4), 1024 * (14 + q)))
    a('v_lshrrev_b32 v10, 1, v2'); a('v_and_b32 v8, 9, v10'); a('v_and_b32 v11, 2, v10'); a('v_lshl_or_b32 v8, v11, 1, v8')
    a('v_bfe_u32 v11, v10, 2, 1'); a('v_lshl_or_b32 v8, v11, 1, v8')
    a('v_and_b32 v12, 1, v5'); a('v_cmp_eq_u32 vcc, 1, v12'); a('v_lshl_add_u32 v9, v4, 1, 1'); a('v_cndmask_b32 v9, v9, 0, vcc')
    a('s_cmp_lt_u32 s3, 5'); a('s_cselect_b64 s[32:33], -1, 0')
    a('s_cmp_lt_u32 s3, 3'); a('s_cselect_b64 s[34:35], -1, 0')
    a('v_cndmask_b32 v9, v9, v2, s[32:33]'); a('v_cndmask_b32 v8, v9, v8, s[34:35]')
    a('s_mov_b32 s36, %s' % fh(1 / 32)); a('s_cmp_gt_u32 s3, 4'); a('s_cselect_b32 s36, %s, s36' % fh(1 / 64))
    a('s_sub_u32 s37, s3, 1'); a('s_cmp_lt_u32 s37, 2'); a('s_cselect_b32 s36, %s, s36' % fh(1 / 1024))
    a('s_cmp_eq_u32 s3, 0'); a('s_cselect_b32 s32, 16, 0'); a('s_cselect_b32 s33, %s, 0' % fh(0.25)); a('s_cselect_b32 s34, 4.0, %s' % fh(8.0)); a('s_cselect_b32 s35, %s, 4.0' % fh(8.0))
    a('v_cmp_eq_u32 vcc, 1, v2'); a('v_mov_b32 v10, s32'); a('v_cndmask_b32 v10, 0, v10, vcc'); a('v_add_u32 v8, v8, v10')
    a('v_cvt_f32_u32 v8, v8'); a('v_mul_f32 v8, s36, v8')
    a('s_cmp_eq_u32 s3, 2'); a('s_cselect_b32 s32, 0x80000000, 0'); a('v_lshlrev_b32 v10, 31, v2'); a('v_and_b32 v10, s32, v10'); a('v_xor_b32 v8, v10, v8')
    a('v_and_b32 v10, 1, v2'); a('v_cvt_f32_u32 v10, v10'); a('v_mul_f32 v10, s33, v10')
    a('s_cmp_eq_u32 s3, 1'); a('s_cselect_b32 s33, %s, 0' % fh(0.25)); a('v_mov_b32 v11, s33'); a('v_cndmask_b32 v10, v10, v11, vcc')
    a('s_cmp_eq_u32 s3, 5'); a('s_cselect_b32 s33, %s, 0' % fh(0.25)); a('v_cvt_f32_u32 v12, v12'); a('v_fma_f32 v10, v12, s33, v10')
    a('s_cmp_eq_u32 s3, 6'); a('s_cselect_b32 s33, %s, 0' % fh(0.25))
    a('s_cmp_eq_u32 s3, 2'); a('s_cselect_b32 s33, %s, s33' % fh(-0.25)); a('s_cmp_eq_u32 s3, 4'); a('s_cselect_b32 s33, %s, s33' % fh(-0.25))
    a('v_add_f32 v10, s33, v10'); a('v_cvt_f32_u32 v11, v3'); a('v_mul_f32 v11, s35, v11'); a('v_fma_f32 v9, v8, v11, v10')
    a('v_mul_f32 v10, s34, v8'); a('v_mul_f32 v11, %s, v8' % fh(16.0))
    angles(8, 9, [0, 1, 2, 3], TT)
    for i in range(4): a('v_add_f32 %s, %s, v10' % (v(TT + 4 + i), v(TT + i)))
    for i in range(8): a('v_add_f32 %s, %s, v11' % (v(TT + 8 + i), v(TT + i)))
    est(7)
    trig('cos', TT, 16)
    a('s_lshl_b32 s32, s3, 11'); a('v_add_u32 v8, s32, v6')
    a('s_cmp_eq_u32 s3, 0'); a('s_cbranch_scc1 fz_jb')
    pack(JT, TT, 16)
    a.lines.append('fz_jend:')
    for q in range(2): a('ds_write_b128 v8, %s offset:%d' % (v(JT + 4 * q, 4), 1024 * q))
    B1, TC2, TS2 = 16, 20, 24
    vA = [vA0, vA1, 100, 101]
    def sync_add(val):
        a('v_mov_b32 v10, %d' % val); a('s_mov_b64 exec, 1'); a('ds_add_u32 v15, v10'); a('s_mov_b64 exec, -1')
    def SETA():
        a('s_and_b32 s32, s3, 3'); a('s_lshr_b32 s33, s3, 2'); a('s_lshl_b32 s33, s33, 4'); a('s_add_u32 s33, s33, s32')
        a('v_and_b32 v8, 12, v4'); a('v_bfe_u32 v9, v4, 1, 1'); a('v_lshl_add_u32 v8, v9, 5, v8'); a('v_add_u32 v8, s33, v8')
        a('v_cvt_f32_u32 v8, v8'); a('v_and_b32 v12, 1, v1'); a('v_cvt_f32_u32 v9, v12'); a('v_lshlrev_b32 v13, 2, v5'); a('v_cvt_f32_u32 v10, v13')
        a('v_mul_f32 v11, %s, v8' % fh(1 / 64)); a('v_mul_f32 v9, %s, v9' % fh(0.25)); a('v_fma_f32 v9, v11, v10, v9')
        TT = XAC
        angles(11, 9, [0, 1, 2, 3], TT + 24)
        a('v_mul_f32 v11, %s, v8' % fh(1 / 2048)); a('v_lshlrev_b32 v9, 31, v1'); a('v_xor_b32 v11, v9, v11'); a('v_mul_f32 v9, v11, v10')
        angles(11, 9, [0, 1, 2, 3, 16, 17, 18, 19], TT + 8)
        for i in range(8): a('v_%s_f32 %s, %s' % ('sin' if i & 1 else 'cos', v(TT + i), v(TT + 24 + (i >> 1))))
        for i in range(8): a('v_sin_f32 %s, %s' % (v(TT + 16 + i), v(TT + 8 + i)))
        trig('cos', TT + 8, 8)
        pack(B1, TT, 24)
        a('v_lshrrev_b32 v8, 3, v1'); a('v_mul_u32_u24 %s, %d, v8' % (v(vHL), PS)); a('v_and_b32 v9, 7, v1'); a('v_lshl_add_u32 %s, v9, 4, %s' % (v(vHL), v(vHL)))
        a('s_mul_i32 s60, s3, %d' % (32 * PS)); a('s_lshl_b32 s32, s20, 7'); a('s_add_u32 s60, s60, s32'); a('s_add_u32 s60, s60, 0x%x' % WOFF); a('s_add_u32 s61, s60, %d' % (8 * PS)); a('s_add_u32 s16, s60, %d' % (16 * PS)); a('s_add_u32 s17, s60, %d' % (24 * PS))
        a('v_lshlrev_b32 v8, 1, v8'); a('v_bfe_u32 v9, v1, 2, 1'); a('v_add_u32 v8, v8, v9'); a('s_lshl_b32 s32, s3, 2'); a('s_add_u32 s32, s32, 1')
        a('v_lshl_add_u32 v8, v8, 5, s32')
        a('v_cmp_eq_u32 vcc, 1, v12')
        a('v_bfe_u32 v9, v1, 1, 1'); a('v_mul_u32_u24 v9, %d, v9' % CPS); a('v_add_u32 v9, %d, v9' % AB)
        a('s_cmp_eq_u32 s3, 3'); a('s_cselect_b32 s32, 272, 0')
        for u, dst in enumerate(vA):
            if u == 3: a('v_mul_u32_u24 v10, s32, v3'); a('v_sub_u32 v8, v8, v10')
            if u: a('v_add_u32 v8, 1, v8')
            a('v_sub_u32 v10, 512, v8'); a('v_cndmask_b32 v10, v8, v10, vcc')
            if u == 3: a('v_lshrrev_b32 v11, 1, v10'); a('v_and_b32 v11, 256, v11'); a('v_sub_u32 v10, v10, v11')
            a('v_and_b32 v11, 16, v10'); a('v_lshl_add_u32 v11, v11, 6, v9'); a('v_lshrrev_b32 v12, 7, v10'); a('v_lshl_add_u32 v11, v12, 8, v11')
            a('v_and_b32 v12, 15, v10'); a('v_lshl_add_u32 v11, v12, 4, v11'); a('v_bfe_u32 v12, v10, 5, 2'); a('v_lshl_add_u32 %s, v12, 2, v11' % v(dst))
        a('s_and_b32 s32, s3, 3'); a('s_lshl_b32 s32, s32, 11'); a('s_add_u32 s32, s32, %d' % AB); a('v_add_u32 %s, s32, %s' % (v(vAR), v(vL16)))
        a('v_add_u32 v8, s33, v13')
        a('v_sub_u32 v9, 32, v8'); a('v_min_u32 v9, v8, v9')
        a('v_and_b32 v10, 15, v8'); a('v_cmp_eq_u32 s[32:33], 0, v10')
        a('v_cmp_lt_u32 s[34:35], 16, v8')
        a('v_lshlrev_b32 v10, 10, v9'); a('v_subrev_u32 v10, 1024, v10'); a('v_mov_b32 v11, %d' % (124 * 128)); a('v_cmp_eq_u32 vcc, 0, v8'); a('v_cndmask_b32 v10, v10, v11, vcc')
        a('v_and_b32 v11, 3, v1'); a('v_lshl_add_u32 v10, v11, 4, v10')
        a('v_lshrrev_b32 v11, 2, v4'); a('v_lshlrev_b32 v12, 7, v11')
        for tau, dst in ((0, vY0), (1, vY1)):
            if tau: a('s_or_b64 s[34:35], s[34:35], s[32:33]'); a('v_add_u32 v12, 512, v12')
            a('v_sub_u32 v13, %d, v12' % (7 * 128 + 64))
            a('v_cndmask_b32 v13, v12, v13, s[34:35]'); a('v_add_u32 %s, v10, v13' % v(dst))
        a('s_mul_i32 s56, s20, %d' % PS); a('s_add_u32 s56, s56, 0x%x' % YOFF)
        a('v_mov_b32 %s, 0x30003' % v(vMT))
        for k in range(4): a('v_mov_b32 %s, %s' % (v(vE + k), s(44 + k)))
        a('s_waitcnt lgkmcnt(0)')
    def SETB(sfx):
        a('v_sub_u32 v8, 15, v4'); a('v_min_u32 v8, v4, v8')
        a('v_and_b32 v9, 1, v8'); a('v_lshlrev_b32 v9, 5, v9'); a('v_lshrrev_b32 v10, 1, v8'); a('v_lshl_add_u32 v9, v10, 9, v9'); a('v_add_u32 v9, s25, v9')
        a('v_sub_u32 v10, 2048, v9'); a('v_cmp_lt_u32 s[34:35], 7, v4'); a('v_cndmask_b32 %s, v9, v10, s[34:35]' % v(vT))
        a('v_mov_b32 v9, v4'); a('v_mov_b32 v10, s20')
        a('s_cmp_lg_u32 s21, 0'); a('s_cbranch_scc0 fz_spec3%s' % sfx)
        a.lines.append('fz_spec3back%s:' % sfx)
        a('v_lshlrev_b32 v10, 7, v10'); a('v_lshl_add_u32 v10, v9, 3, v10'); a('v_mul_u32_u24 v11, %d, v5' % (4 * PS)); a('v_add_u32 %s, v10, v11' % v(vYL))
        a('v_and_b32 v9, 1, v9'); a('v_cmp_eq_u32 vcc, 1, v9')
        a('v_mov_b32 v9, s44'); a('v_mov_b32 v10, s46'); a('v_cndmask_b32 %s, v9, v10, vcc' % v(vYE))
        a('v_mov_b32 v9, s45'); a('v_mov_b32 v10, s47'); a('v_cndmask_b32 %s, v9, v10, vcc' % v(vYE + 1))
        a('s_lshl_b32 s32, s3, 2'); a('v_add_u32 v8, s32, v5')
        a('v_lshlrev_b32 v9, 6, v8')
        a('v_cmp_gt_u32 vcc, 16, v8'); a('v_cndmask_b32 v10, 0, 32, vcc'); a('v_add_u32 v10, v9, v10')
        a('v_sub_u32 v11, 2048, v10'); a('v_cmp_eq_u32 vcc, 16, v8'); a('v_cndmask_b32 v11, v11, 0, vcc')
        a('v_mov_b32 v12, 0xffff0000'); a('v_cndmask_b32 %s, -1, v12, vcc' % v(vZM))
        a('v_sub_u32 v12, %d, v9' % (2048 - 30))
        a('v_mul_u32_u24 v13, %d, v4' % RS)
        a('v_add_u32 %s, v13, v9' % v(vXR)); a('v_add_u32 %s, v13, v12' % v(vXM)); a('v_add_u32 %s, v13, v10' % v(vE0)); a('v_add_u32 v241, v13, v11')
        a('s_lshl_b32 s32, s3, 8'); a('s_add_u32 s32, s32, %d' % PR)
        a('v_lshlrev_b32 v9, 4, v4'); a('v_add_u32 v10, s32, v9'); a('v_add_u32 v11, %d, %s' % (TRASH, v(vL16)))
        a('v_cmp_gt_u32 vcc, 16, v1'); a('v_cndmask_b32 %s, v11, v10, vcc' % v(vPW))
        a('v_lshrrev_b32 v12, 2, v4'); a('v_cmp_eq_u32 vcc, v12, v5'); a('v_cndmask_b32 %s, v11, v10, vcc' % v(vPD))
        a('v_lshrrev_b32 v12, 5, v1'); a('v_lshl_add_u32 v10, v12, 10, v9'); a('v_add_u32 %s, %d, v10' % (v(vPR), PR))
        a('v_and_b32 v9, 1, v1'); a('v_cmp_eq_u32 s[28:29], 1, v9'); a('v_and_b32 v9, 2, v1'); a('v_cmp_eq_u32 s[30:31], 2, v9')
        a('s_lshl_b32 s37, s3, 2'); a('v_add_u32 v9, s37, v5'); a('v_mul_u32_u24 %s, %d, v9' % (v(vKA), KS))
        a('s_lshl_b32 s26, s20, %d' % KRL); a('s_add_u32 s26, s26, 0x%x' % KOFF)
        a('v_lshlrev_b32 %s, 4, v5' % v(vCA)); a('s_lshl_b32 s27, s20, 11'); a('s_lshl_b32 s37, s3, 8'); a('s_add_u32 s27, s27, s37'); a('s_add_u32 s27, s27, 0x%x' % COFF)
        a('v_sub_u32 %s, 2047, %s' % (v(vTK), v(vT)))
        srd(12, 2048 * 2048)
        a('s_mul_i32 s52, s3, %d' % (16 * PS)); a('s_add_u32 s52, s52, 0x%x' % YOFF)
        for jx in range(1, 4): a('s_add_u32 %s, s52, %d' % (s(52 + jx), jx * PS))
        a('s_mov_b32 s23, s63')
        a('s_getreg_b32 s24, hwreg(HW_REG_XCC_ID)'); a('s_and_b32 s24, s24, 15')
        a('v_lshlrev_b32 v10, 4, v0'); a('v_min_u32 v10, 4336, v10'); a('v_add_u32 v10, %d, v10' % ACT)
        for k in range(4): a('v_mov_b32 %s, 0' % v(XAC + k))
        a('ds_write_b128 v10, %s' % v(XAC, 4))
    def SET2():
        XP = 116
        a('ds_read_b128 %s, %s' % (v(XP, 4), v(vXR))); a('ds_read_b128 %s, %s offset:16' % (v(XP + 4, 4), v(vXR)))
        a('ds_read_u16_d16_hi %s, %s' % (v(XD + 16), v(vM0m)))
        for e in range(1, 16): a('ds_read_u16_d16_hi %s, %s offset:%d' % (v(XD + 16 + e), v(vXM), 2 * (15 - e)))
        a('ds_read_u16_d16_hi %s, %s' % (v(XD), v(vE0)))
        a('v_mul_u32_u24 v13, %d, v4' % RS); a('v_subrev_u32 v13, %d, v13' % WR)
        for r, src in ((9, vXR), (10, vE0), (11, vM0m), (12, vXM)): a('v_sub_u32 %s, %s, v13' % (v(r), v(src)))
        a('s_mov_b32 s36, 0xffff0000')
        a('s_waitcnt lgkmcnt(0)')
        a('ds_read_b128 %s, v9' % v(WV, 4)); a('ds_read_b128 %s, v9 offset:16' % v(WV + 4, 4))
        a('ds_read_u16_d16 %s, v11' % v(WV + 8))
        for e in range(1, 16): a('ds_read_u16_d16%s %s, v12 offset:%d' % ('_hi' if e & 1 else '', v((XP + 8 if e & 1 else WV + 8) + (e >> 1)), 2 * (15 - e)))
        a('ds_read_u16_d16 v13, v10')
        for k in range(8):
            if k: a('v_lshlrev_b32 %s, 16, %s' % (v(XD + 2 * k), v(XP + k)))
            a('v_and_b32 %s, s36, %s' % (v(XD + 2 * k + 1), v(XP + k)))
        a('v_cmp_eq_u32 vcc, 1, v4'); a('v_mov_b32 v9, s42'); a('v_cndmask_b32 v9, 0, v9, vcc')
        for k in range(4): a('v_mov_b32 %s, s42' % v(XP + k))
        a('v_cmp_eq_u32 vcc, 0, v4')
        a('s_waitcnt lgkmcnt(0)')
        a('v_and_or_b32 %s, %s, s36, v13' % (v(WV), v(WV)))
        for k in range(8): a('v_or_b32 %s, %s, %s' % (v(WV + 8 + k), v(WV + 8 + k), v(XP + 8 + k)))
        for k in range(16): a('v_cndmask_b32 %s, v9, %s, vcc' % (v(WV + k), v(WV + k)))
        for q in range(4): a('v_mfma_f32_16x16x32_bf16 %s, %s, %s, %s' % (v(XP + 4, 4), v(WV + 4 * q, 4), v(XP, 4), v(XP + 4, 4) if q else '0'))
        a('ds_write_b32 %s, %s offset:12' % (v(vPW), v(XP + 4)))
    a('v_mov_b32 v15, %d' % SYNC); a('v_mov_b32 v10, 0'); a('ds_write_b32 v15, v10')
    est(8)
    a('s_waitcnt lgkmcnt(0)')
    a('s_barrier')
    est(10)
    a('v_lshlrev_b32 %s, 31, v1' % v(vSG)); a('v_lshrrev_b32 v10, 16, %s' % v(vSG)); a('v_or_b32 %s, %s, v10' % (v(vSG), v(vSG)))
    a('v_mov_b32 %s, 0xfffcfffc' % v(vM))
    a('v_mov_b32 v242, 0xffff0000'); a('s_mov_b32 s42, 0x3f803f80')
    a('s_cmp_lg_u32 s57, 0'); a('s_cbranch_scc1 fz_nc1')
    for q in range(14): a('ds_read_b128 %s, v6 offset:%d' % (v(F1 + 4 * q, 4), 1024 * q))
    a('v_lshlrev_b32 v7, 9, v3'); a('v_bfe_u32 v10, v1, 2, 2'); a('v_lshl_add_u32 v7, v10, 6, v7')
    a('v_and_b32 v10, 1, v5'); a('v_lshl_add_u32 v7, v10, 5, v7'); a('v_and_b32 v10, 3, v1'); a('v_lshl_add_u32 v7, v10, 3, v7'); a('v_add_u32 v7, s31, v7')
    a('v_lshlrev_b32 v8, 9, v3'); a('v_lshl_add_u32 v8, v2, 1, v8'); a('v_sub_u32 v9, 2048, v8'); a('v_and_b32 v9, 2047, v9'); a('v_add_u32 v9, s30, v9')
    a('s_add_u32 s32, s30, %d' % (2048 - 64 * 23)); a('v_sub_u32 v8, s32, v8')
    a('v_cmp_eq_u32 vcc, 0, v2'); a('v_cndmask_b32 %s, 0, -2.0, vcc' % v(vM0))
    a('v_mov_b32 %s, %s' % (v(vM0 + 1), fh(256e-5)))
    a('s_lshr_b32 s32, s24, 1'); a('s_lshl_b32 s32, s32, 6'); a('s_mul_i32 s33, s3, 2304'); a('s_add_u32 s32, s32, s33'); a('s_add_u32 s32, s32, %d' % SB)
    a('v_lshl_add_u32 v10, v3, 1, v1'); a('v_lshlrev_b32 v10, 4, v10'); a('v_add_u32 %s, s32, v10' % v(vSW))
    a('v_bfe_u32 v10, v0, 2, 1'); a('v_mul_u32_u24 v10, 34, v10'); a('v_lshrrev_b32 v11, 4, v0'); a('v_add_u32 v10, v10, v11'); a('v_lshlrev_b32 v10, 4, v10')
    a('v_bfe_u32 v11, v0, 3, 1'); a('v_lshl_add_u32 v10, v11, 3, v10'); a('v_bfe_u32 v11, v0, 1, 1'); a('v_lshl_add_u32 v10, v11, 2, v10')
    a('v_and_b32 v12, 1, v0')
    a('s_mov_b32 s33, %d' % (4 * 2304)); a('s_cmp_eq_u32 s2, %d' % SPID)
    for k in range(4):
        pm = 1152 if k >= 2 else 0
        o0 = k * 2304 + pm + (64 if k >= 2 else 0); o1 = (3 - k) * 2304 + pm + (64 if (3 - k) >= 2 else 0)
        a('s_cselect_b32 s32, s33, 0x%x' % ((o1 - o0) & 0xffffffff))
        a('v_mul_lo_u32 v11, v12, s32'); a('v_add_u32 %s, v10, v11' % v(vSR + k)); a('v_add_u32 %s, %d, %s' % (v(vSR + k), SB + o0, v(vSR + k)))
    a('v_lshrrev_b32 v10, 2, v0'); a('v_and_b32 v11, 3, v0'); a('v_lshlrev_b32 v11, 4, v11'); a('v_lshl_add_u32 %s, v10, 7, v11' % v(vWST))
    a('s_mul_i32 s52, s20, %d' % PS); a('s_lshl_b32 s33, s59, 6'); a('s_add_u32 s52, s52, s33'); a('s_add_u32 s52, s52, 0x%x' % WOFF)
    a('s_add_u32 s53, s52, 8192')
    def tags2():
        tags()
        a('s_mov_b32 s38, 0x404'); a('s_cmp_eq_u32 s2, %d' % SPID); a('s_cselect_b32 s39, 8, 4'); a('s_cselect_b32 s38, 8, s38')
    est(9)
    for i in range(4): a('v_mov_b32 %s, 0' % v(ST + i))
    a('s_setprio 3')
    st()
    if '--early' in OPT: a('s_waitcnt lgkmcnt(0)'); est(11)
    a('s_waitcnt vmcnt(0) lgkmcnt(0)')
    st()
    for jx in range(2):
        for hh in range(2): a('ds_read_b64_tr_b16 %s, v7 offset:%d' % (v(XA + 4 * jx + 2 * hh, 2), 1024 * jx + 256 * hh))
    for jx in range(2):
        for i in range(8):
            op = 'ds_read_u16_d16_hi' if i & 1 else 'ds_read_u16_d16'
            dst = (H if i & 1 else XB) + 4 * jx + (i >> 1)
            if jx == 0 and i == 0: a('%s %s, v9' % (op, v(dst)))
            else: a('%s %s, v8 offset:%d' % (op, v(dst), 64 * (23 - 16 * jx - i)))
        if jx == 0: a('s_waitcnt lgkmcnt(8)')
        if jx == 0:
            for j2 in range(2): a('v_mfma_f32_32x32x16_bf16 %s, %s, %s, %s' % (v(XAC, 16), v(XA + 4 * j2, 4), v(F1 + 4 * j2, 4), v(XAC, 16) if j2 else '0'))
    for i in range(8):
        a('v_dot2_f32_bf16 %s, %s, s42, %s' % (v(ST), v(XA + i), v(ST))); a('v_dot2_f32_bf16 %s, %s, %s, %s' % (v(ST + 1), v(XA + i), v(XA + i), v(ST + 1)))
    a('s_waitcnt lgkmcnt(0)')
    for i in range(8): a('v_or_b32 %s, %s, %s' % (v(XB + i), v(XB + i), v(H + i)))
    for j2 in range(2): a('v_mfma_f32_32x32x16_bf16 %s, %s, %s, %s' % (v(XBC, 16), v(XB + 4 * j2, 4), v(F1 + 4 * j2, 4), v(XBC, 16) if j2 else '0'))
    for i in range(8):
        a('v_dot2_f32_bf16 %s, %s, s42, %s' % (v(ST + 2), v(XB + i), v(ST + 2))); a('v_dot2_f32_bf16 %s, %s, %s, %s' % (v(ST + 3), v(XB + i), v(XB + i), v(ST + 3)))
    est(12)
    a('v_permlane32_swap_b32 %s, %s' % (v(ST), v(ST + 2))); a('v_permlane32_swap_b32 %s, %s' % (v(ST + 1), v(ST + 3)))
    a('v_add_f32 %s, %s, %s' % (v(ST), v(ST), v(ST + 2))); a('v_add_f32 %s, %s, %s' % (v(ST + 1), v(ST + 1), v(ST + 3)))
    a('v_permlane16_swap_b32 %s, %s' % (v(ST), v(ST + 1)))
    a('v_add_f32 %s, %s, %s' % (v(ST), v(ST), v(ST + 1)))
    for pat in ['quad_perm:[1,0,3,2]', 'quad_perm:[2,3,0,1]', 'row_half_mirror', 'row_mirror']:
        a('v_add_f32_dpp %s, %s, %s %s %s' % (v(ST), v(ST), v(ST), pat, DPPF))
    a('s_mov_b32 s43, %s' % fh(256 / 1024))
    a('v_mov_b32 %s, %s' % (v(ST + 1), v(ST)))
    a('v_permlane16_swap_b32 %s, %s' % (v(ST), v(ST + 1)))
    a('v_mul_f32 %s, %s, %s' % (v(ST), fh(16 / 1024), v(ST)))
    a('v_fma_f32 %s, %s, s43, %s' % (v(ST + 1), v(ST + 1), v(vM0 + 1)))
    a('v_fma_f32 %s, -%s, %s, %s' % (v(ST + 1), v(ST), v(ST), v(ST + 1)))
    a('v_rsq_f32 %s, %s' % (v(ST + 1), v(ST + 1)))
    a('v_mul_f32 %s, %s, %s' % (v(ST), v(ST), v(ST + 1)))
    a('v_readlane_b32 s32, %s, 0' % v(ST + 1)); a('v_readlane_b32 s34, %s, 32' % v(ST + 1)); a('v_readlane_b32 s36, %s, 0' % v(ST)); a('v_readlane_b32 s37, %s, 32' % v(ST))
    a('v_mul_f32 %s, s36, %s' % (v(ST + 4), v(vM0))); a('v_fmac_f32 %s, s37, %s' % (v(ST + 4), v(vM0)))
    for i in range(8): a('v_pk_fma_f32 %s, %s, s[32:33], %s op_sel_hi:[1,0,0]' % (v(XAC + 2 * i, 2), v(XAC + 2 * i, 2), v(ST + 4, 2)))
    for i in range(8): a('v_pk_fma_f32 %s, %s, s[34:35], %s op_sel_hi:[1,0,1]' % (v(XAC + 2 * i, 2), v(XBC + 2 * i, 2), v(XAC + 2 * i, 2)))
    est(13)
    pack(H, XAC, 16)
    for i in range(8): a('v_mov_b32_dpp %s, %s %s' % (v(TP + i), v(H + i), X1))
    D3C, D3S = XBC, XBC + 4
    for i in range(8): a('v_pk_mul_f16 %s, %s, %s' % (v(T + i), v(H + i), v(TC + i)))
    for j2 in range(2):
        a('v_mfma_f32_16x16x32_f16 %s, %s, %s, %s' % (v(D3C, 4), v(H + 4 * j2, 4), v(B3C + 4 * j2, 4), v(D3C, 4) if j2 else '0'))
        for i in range(4): a('v_pk_fma_f16 %s, %s, %s, %s' % (v(T + 4 * j2 + i), v(TP + 4 * j2 + i), v(TS + 4 * j2 + i), v(T + 4 * j2 + i)))
    a('v_mfma_f32_32x32x16_f16 %s, %s, %s, 0' % (v(XAC, 16), v(T, 4), v(C2, 4)))
    for i in range(4): a('v_xor_b32_dpp %s, %s, %s %s' % (v(TP + i), v(T + i), v(vSG), X1))
    a('v_mfma_f32_32x32x16_f16 %s, %s, %s, %s' % (v(XAC, 16), v(T + 4, 4), v(C2 + 4, 4), v(XAC, 16)))
    for i in range(4, 8): a('v_xor_b32_dpp %s, %s, %s %s' % (v(TP + i), v(T + i), v(vSG), X1))
    for j2 in range(2): a('v_mfma_f32_32x32x16_f16 %s, %s, %s, %s' % (v(XAC, 16), v(TP + 4 * j2, 4), v(S2 + 4 * j2, 4), v(XAC, 16)))
    for j2 in range(2): a('v_mfma_f32_16x16x32_f16 %s, %s, %s, %s' % (v(D3S, 4), v(H + 4 * j2, 4), v(B3S + 4 * j2, 4), v(D3S, 4) if j2 else '0'))
    est(14)
    tags2()
    a('s_mov_b64 vcc, 0xffff')
    for p in (7, 6, 5, 4, 3, 2, 1): a('v_cvt_pk_f16_f32 %s, %s, %s' % (v(H + p), v(XAC + 2 * p), v(XAC + 2 * p + 1)))
    a('v_cndmask_b32 %s, %s, %s, vcc' % (v(XAC), v(XAC), v(D3C + 1))); a('v_cndmask_b32 %s, %s, %s, vcc' % (v(XAC + 1), v(XAC + 1), v(D3S + 1)))
    for p in (3, 2, 1, 0):
        if p == 0: a('v_cvt_pk_f16_f32 %s, %s, %s' % (v(H), v(XAC), v(XAC + 1)))
        a('v_pk_add_f16 %s, %s, %s op_sel:[0,1] op_sel_hi:[1,0] neg_lo:[0,1]' % (v(T + p), v(H + 2 * p), v(H + 2 * p + 1)))
        a('v_pk_add_f16 %s, %s, %s op_sel:[0,1] op_sel_hi:[1,0] neg_hi:[1,0]' % (v(T + 4 + p), v(H + 2 * p), v(H + 2 * p + 1)))
    a('ds_write_b128 %s, %s' % (v(vSW), v(T, 4))); a('ds_write_b128 %s, %s offset:1152' % (v(vSW), v(T + 4, 4)))
    a('s_waitcnt lgkmcnt(0)')
    sync_add(1)
    a('s_cmp_gt_u32 s3, 3'); a('s_cbranch_scc1 fz_bsp0')
    a.lines.append('fz_sy:')
    a('ds_read_b32 v10, v15')
    a('s_waitcnt lgkmcnt(0)')
    a('v_and_b32 v10, 0xff, v10'); a('v_cmp_ne_u32 vcc, s39, v10')
    a('s_cbranch_vccnz fz_sy')
    st.n = 4; st()
    Z = XAC
    for rd in range(2):
        for k in range(4): a('ds_read_b32 %s, %s offset:%d' % (v(Z + 4 * rd + k), v(vSR + k), 256 * rd))
    for rd in range(2):
        z = Z + 4 * rd; u = Z + 8 + 8 * rd; o = u + 4
        a('s_waitcnt lgkmcnt(%d)' % (4 - 4 * rd))
        a('v_pk_add_f16 %s, %s, %s' % (v(u), v(z), v(z + 2))); a('v_pk_add_f16 %s, %s, %s' % (v(u + 2), v(z + 1), v(z + 3)))
        a('v_pk_add_f16 %s, %s, %s neg_lo:[0,1] neg_hi:[0,1]' % (v(u + 1), v(z), v(z + 2))); a('v_pk_add_f16 %s, %s, %s neg_lo:[0,1] neg_hi:[0,1]' % (v(u + 3), v(z + 1), v(z + 3)))
        a('v_pk_add_f16 %s, %s, %s' % (v(o), v(u), v(u + 2))); a('v_pk_add_f16 %s, %s, %s neg_lo:[0,1] neg_hi:[0,1]' % (v(o + 2), v(u), v(u + 2)))
        a('v_pk_add_f16 %s, %s, %s op_sel:[0,1] op_sel_hi:[1,0] neg_hi:[0,1]' % (v(o + 1), v(u + 1), v(u + 3)))
        a('v_pk_add_f16 %s, %s, %s op_sel:[0,1] op_sel_hi:[1,0] neg_lo:[0,1]' % (v(o + 3), v(u + 1), v(u + 3)))
        for k in range(4): a('v_add_u32 %s, 0x20002, %s' % (v(o + k), v(o + k)))
        for k in range(4): a('v_and_or_b32 %s, %s, %s, %s' % (v(o + k), v(o + k), v(vM), s(44 + k)))
        a('buffer_store_dwordx4 %s, %s, s[4:7], %s offen sc1' % (v(o, 4), v(vWST), s(52 + rd)))
    a('s_cmp_lg_u32 s59, 0'); a('s_cbranch_scc1 ffn')
    st()
    SETA()
    a('s_waitcnt vmcnt(0)')
    st()
    R = XAC
    def h1i(u): a('buffer_load_dwordx4 %s, %s, s[4:7], %s offen sc1' % (v(R + 4 * u, 4), v(vHL), s((60, 61, 16, 17)[u])))
    def h1c(u):
        for k in range(4): a('v_xor_b32 %s, %s, %s' % (v(R + 4 * u + k), v(vE + k), v(R + 4 * u + k)))
        a('v_or3_b32 v10, %s, %s, %s' % (v(R + 4 * u), v(R + 4 * u + 1), v(R + 4 * u + 2)))
        a('v_bitop3_b32 v10, v10, %s, %s bitop3:0xa8' % (v(R + 4 * u + 3), v(vMT)))
        a('v_cmp_ne_u32 vcc, 0, v10')
    def h1a(u):
        for k in range(4): a('ds_write_b32 %s, %s offset:%d' % (v(vA[u]), v(R + 4 * u + k), 2048 * k))
    if EP:
        a('s_bitcmp1_b32 s2, 2'); a('s_cbranch_scc1 fz_p1_ok')
        a('s_add_u32 s32, s60, %d' % ((((EP - 1) + POFS) & 7) * PS + 64 * (EP > 8))); a('v_mov_b32 v9, 0')
        a.lines.append('fz_p1:')
        a('buffer_load_dword v10, v9, s[4:7], s32 offen sc1')
        a('s_waitcnt vmcnt(0)')
        a('v_xor_b32 v10, %s, v10' % v(vE)); a('v_and_b32 v10, %s, v10' % v(vMT)); a('v_cmp_ne_u32 vcc, 0, v10')
        poll_retry('fz_p1')
        a('s_mov_b32 s58, 0')
    for u in range(4): h1i(u)
    prog_poll('fz_h1', 4, h1i, h1c, h1a)
    a('s_waitcnt lgkmcnt(0)')
    a('s_setprio 0')
    a.lines.append('fz_hb:')
    a('s_barrier')
    st.n = 7; st()
    A2, V2, H2, T2, TP2, D2 = 104, 120, 136, 144, 152, 104
    for cp in range(2):
        for hf in range(2): a('ds_read_b128 %s, %s offset:%d' % (v(A2 + 8 * cp + 4 * hf, 4), v(vAR), CPS * cp + 1024 * hf))
    for q in range(4): a('ds_read_b128 %s, v6 offset:%d' % (v(CQ + 4 * q, 4), 1024 * (14 + q)))
    for q in range(4):
        a('s_waitcnt lgkmcnt(%d)' % (7 - q))
        a('v_mfma_f32_16x16x32_f16 %s, %s, %s, 0' % (v(V2 + 4 * q, 4), v(A2 + 4 * q, 4), v(B1, 4)))
    a('s_waitcnt lgkmcnt(0)')
    for cp in range(2):
        pack(H2 + 4 * cp, V2 + 8 * cp, 8)
    for cp in range(2):
        h, t, tp = H2 + 4 * cp, T2 + 4 * cp, TP2 + 4 * cp
        for i in range(4): a('v_pk_mul_f16 %s, %s, %s' % (v(t + i), v(h + i), v(TC2 + i)))
        for i in range(4): a('v_mov_b32_dpp %s, %s %s' % (v(tp + i), v(h + i), X1))
        for i in range(4): a('v_pk_fma_f16 %s, %s, %s, %s' % (v(t + i), v(tp + i), v(TS2 + i), v(t + i)))
        for tau in range(2): a('v_mfma_f32_16x16x32_f16 %s, %s, %s, 0' % (v(D2 + 8 * cp + 4 * tau, 4), v(t, 4), v(CQ + 8 * tau, 4)))
        for i in range(4): a('v_xor_b32_dpp %s, %s, %s %s' % (v(tp + i), v(t + i), v(vSG), X1))
        for tau in range(2): a('v_mfma_f32_16x16x32_f16 %s, %s, %s, %s' % (v(D2 + 8 * cp + 4 * tau, 4), v(tp, 4), v(CQ + 8 * tau + 4, 4), v(D2 + 8 * cp + 4 * tau, 4)))
    O2 = V2
    for tau in range(2):
        for cp in range(2):
            for b in range(2): a('v_cvt_pk_f16_f32 %s, %s, %s' % (v(O2 + 4 * tau + 2 * b + cp), v(D2 + 8 * cp + 4 * tau + 2 * b), v(D2 + 8 * cp + 4 * tau + 2 * b + 1)))
        for k in range(4): a('v_add_u32 %s, 0x20002, %s' % (v(O2 + 4 * tau + k), v(O2 + 4 * tau + k)))
        for k in range(4): a('v_and_or_b32 %s, %s, %s, %s' % (v(O2 + 4 * tau + k), v(O2 + 4 * tau + k), v(vM), s(44 + k)))
        a('buffer_store_dwordx4 %s, %s, s[4:7], s56 offen sc1' % (v(O2 + 4 * tau, 4), v(vY0 + tau)))
    st()
    a('s_cmp_lg_u32 s57, 0'); a('s_cbranch_scc1 fz_nc3')
    SETB('a')
    a('s_mov_b32 s58, 0')
    a('s_waitcnt vmcnt(0)')
    st()
    YD, YM, HP, Q1, Q2 = 104, 112, 120, 136, 140
    def h2i(jx): a('buffer_load_dwordx2 %s, %s, s[4:7], %s offen sc1' % (v(YD + 2 * jx, 2), v(vYL), s(52 + jx)))
    def h2load():
        for jx in range(4): h2i(jx)
    h2load()
    SET2()
    a.flush(); a('s_branch fz_h2c')
    a.lines.append('fz_h2:')
    h2load()
    a.lines.append('fz_h2c:')
    a('s_mov_b32 s36, %s' % fh(128.0))
    def h2c(jx):
        for k in range(2): a('v_xor_b32 %s, %s, %s' % (v(YD + 2 * jx + k), v(vYE + k), v(YD + 2 * jx + k)))
        a('v_bitop3_b32 v9, %s, %s, %s bitop3:0xa8' % (v(YD + 2 * jx), v(YD + 2 * jx + 1), v(vMT)))
        a('v_cmp_ne_u32 vcc, 0, v9')
    def h2a(jx):
        if jx == 3: st()
        for e in range(4 * jx, 4 * jx + 4): a('v_fma_mix_f32 %s, %s, s36, %s op_sel:[%d,0,0] op_sel_hi:[1,0,0]' % (v(XD + e), v(YD + (e >> 1)), v(XD + e), e & 1))
        for k in range(2 * jx, 2 * jx + 2): a('v_mov_b32_dpp %s, %s row_mirror %s' % (v(YM + k), v(YD + k), DPPF))
    prog_poll('fz_h2', 4, h2i, h2c, h2a)
    a('s_cmp_eq_u32 s2, %d' % SPID); a('s_cbranch_scc1 fz_spec4')
    a.lines.append('fz_spec4back:')
    pack(HP, XD, 16, 'bf16')
    a('v_and_b32 %s, %s, %s' % (v(YM), v(vZM), v(YM)))
    for q in range(2):
        a('v_mfma_f32_16x16x32_bf16 %s, %s, %s, %s' % (v(Q1, 4), v(HP + 4 * q, 4), v(HP + 4 * q, 4), v(Q1, 4) if q else '0'))
        a('v_mfma_f32_16x16x32_bf16 %s, %s, %s, %s' % (v(Q2, 4), v(WV + 4 * q, 4), v(HP + 4 * q, 4), v(Q2, 4) if q else '0'))
    for e in range(16): a('v_fma_mix_f32 %s, %s, s36, %s op_sel:[%d,0,0] op_sel_hi:[1,0,0]' % (v(XD + 16 + e), v(YM + (e >> 1)), v(XD + 16 + e), e & 1))
    pack(HP + 8, XD + 16, 16, 'bf16')
    for q in range(2, 4):
        a('v_mfma_f32_16x16x32_bf16 %s, %s, %s, %s' % (v(Q1, 4), v(HP + 4 * q, 4), v(HP + 4 * q, 4), v(Q1, 4)))
        a('v_mfma_f32_16x16x32_bf16 %s, %s, %s, %s' % (v(Q2, 4), v(WV + 4 * q, 4), v(HP + 4 * q, 4), v(Q2, 4)))
    a('v_cndmask_b32 v9, %s, %s, s[28:29]' % (v(Q1), v(Q1 + 1))); a('v_cndmask_b32 v10, %s, %s, s[28:29]' % (v(Q1 + 2), v(Q1 + 3)))
    a('ds_write_b64 %s, %s' % (v(vPW), v(Q2, 2)))
    a('v_cndmask_b32 v9, v9, v10, s[30:31]')
    a('ds_write_b32 %s, v9 offset:8' % v(vPD))
    a('s_cmp_gt_u32 s3, 3'); a('s_cbranch_scc1 fz_lp'); a('s_setprio 2')
    a.lines.append('fz_lp:')
    a('s_waitcnt lgkmcnt(0)'); a('s_barrier')
    P = 144
    for q in range(4): a('ds_read_b128 %s, %s offset:%d' % (v(P + 4 * q, 4), v(vPR), 256 * q))
    a('s_waitcnt lgkmcnt(2)')
    for h in range(2): a('v_pk_add_f32 %s, %s, %s' % (v(P + 2 * h, 2), v(P + 2 * h, 2), v(P + 4 + 2 * h, 2)))
    a('s_waitcnt lgkmcnt(0)')
    for h in range(2): a('v_pk_add_f32 %s, %s, %s' % (v(P + 8 + 2 * h, 2), v(P + 8 + 2 * h, 2), v(P + 12 + 2 * h, 2)))
    for h in range(2): a('v_pk_add_f32 %s, %s, %s' % (v(P + 2 * h, 2), v(P + 2 * h, 2), v(P + 8 + 2 * h, 2)))
    for k in range(4): a('v_mov_b32 %s, %s' % (v(P + 4 + k), v(P + k)))
    for k in range(4): a('v_permlane32_swap_b32 %s, %s' % (v(P + k), v(P + 4 + k)))
    for h in range(2): a('v_pk_add_f32 %s, %s, %s' % (v(P + 2 * h, 2), v(P + 2 * h, 2), v(P + 4 + 2 * h, 2)))
    KR = 152
    a('v_mul_f32 %s, %s, %s' % (v(P + 1), fh(-1 / 1024), v(P + 1)))
    a('v_mul_f32 %s, %s, %s' % (v(P + 2), fh(1 / 1024), v(P + 2)))
    a('v_fma_f32 %s, -%s, %s, %s' % (v(P + 2), v(P + 1), v(P + 1), v(P + 2)))
    a('v_cvt_pk_bf16_f32 %s, 0, %s' % (v(KR + 1), v(P + 1)))
    rbf(a, P + 2); a('v_add_f32 %s, %s, %s' % (v(P + 2), fh(1e-5), v(P + 2))); rbf(a, P + 2)
    a('v_sqrt_f32 %s, %s' % (v(P + 2), v(P + 2)))
    a('v_fmac_f32 %s, %s, %s' % (v(P), v(KR + 1), v(P + 3)))
    rbf(a, P + 2); a('v_rcp_f32 %s, %s' % (v(KR + 2), v(P + 2)))
    a('v_mov_b32 %s, s40' % v(KR + 3))
    a('v_mul_f32 %s, %s, %s' % (v(P), v(P), v(KR + 2))); rbf(a, P)
    a('v_ashrrev_i32 %s, 31, %s' % (v(P + 1), v(P))); a('v_or_b32 %s, 0x80000000, %s' % (v(P + 1), v(P + 1)))
    a('v_bitop3_b32 %s, %s, %s, %s bitop3:0x28' % (v(KR), v(P), v(P + 1), v(242)))
    a('v_or_b32 %s, %s, %s' % (v(KR), v(KR), v(vTK)))
    a('v_max_u32_dpp %s, %s, %s row_ror:1 %s' % (v(P), v(KR), v(KR), DPPF))
    for k in (2, 4, 8): a('v_max_u32_dpp %s, %s, %s row_ror:%d %s' % (v(P), v(P), v(P), k, DPPF))
    a('v_cmp_eq_u32 vcc, %s, %s' % (v(P), v(KR)))
    a('v_or_b32 %s, s24, %s' % (v(KR + 1), v(KR + 1)))
    a('s_mov_b64 exec, vcc')
    a('buffer_store_dwordx4 %s, %s, s[4:7], s26 offen sc1' % (v(KR, 4), v(vKA)))
    if DB & 2:
        if DB & 4: a('s_cmp_gt_u32 s3, 3'); a('s_cbranch_scc1 fz_nk2')
        a('s_add_u32 s26, s26, %d' % (32 * KS)); a('buffer_store_dwordx4 %s, %s, s[4:7], s26 offen sc1' % (v(KR, 4), v(vKA)))
        if DB & 4: a.lines.append('fz_nk2:')
    for q in range(4): a('buffer_store_dwordx4 %s, %s, s[4:7], s27 offen offset:%d sc1' % (v(HP + 4 * q, 4), v(vCA), 64 * q))
    a('s_mov_b64 exec, -1')
    st()
    a('s_setprio 0')
    a('s_ff1_i32_b64 s37, vcc')
    a('v_add_f32 %s, 1.0, %s' % (v(P), v(KR + 2))); a('v_and_b32 %s, v242, %s' % (v(P + 2), v(KR + 1))); a('v_mul_f32 %s, %s, %s' % (v(P + 2), v(P + 2), v(KR + 2)))
    for k in range(16): a('v_pk_fma_f32 %s, %s, %s, %s op_sel_hi:[1,0,0]' % (v(XD + 2 * k, 2), v(XD + 2 * k, 2), v(P, 2), v(P + 2, 2)))
    OP = 104
    pack(OP, XD, 32, 'bf16')
    a('ds_write_b128 %s, %s' % (v(vXR), v(OP, 4))); a('ds_write_b128 %s, %s offset:16' % (v(vXR), v(OP + 4, 4)))
    a('s_waitcnt lgkmcnt(0)'); a('s_barrier')
    def wtail():
        if W3 < 8 or WL:
            a('s_cmp_lt_u32 s3, 4'); a('s_cbranch_scc1 fz_now4')
            if WL: a('s_bitcmp0_b32 s2, 2'); a('s_cbranch_scc1 fz_now4')
            wdload(8 - WL if WL else W3, 8)
            a.lines.append('fz_now4:')
    if WT == 1: wtail()
    a('ds_write_b16 %s, %s' % (v(vE0), v(OP))); a('ds_write_b16 %s, %s' % (v(vM0m), v(OP + 8)))
    for e in range(1, 16): a('ds_write_b16%s %s, %s offset:%d' % ('_d16_hi' if e & 1 else '', v(vXM), v(OP + 8 + (e >> 1)), 2 * (15 - e)))
    a('s_lshl_b32 s32, s3, 1'); a('s_add_u32 s33, s32, 1')
    a('v_readlane_b32 s34, %s, s32' % v(vT)); a('v_readlane_b32 s35, %s, s33' % v(vT))
    a('s_mul_i32 s38, s3, %d' % (2 * RS)); a('v_add_u32 v9, s38, %s' % v(vL16))
    a('s_lshl_b32 s34, s34, 11'); a('s_lshl_b32 s35, s35, 11')
    a('s_waitcnt lgkmcnt(0)'); a('s_barrier')
    for q in range(4): a('ds_read_b128 %s, v9 offset:%d' % (v(OP + 4 * q, 4), RS * (q >> 1) + 1024 * (q & 1)))
    if WT == 2: wtail()
    OUTF = '' if '--outplain' in OPT else (' nt' if '--outnt' in OPT else ' sc1')
    a('s_lshr_b32 s59, s37, 1'); a('s_xor_b32 s18, s59, 1'); a('s_and_b32 s18, s18, 3')
    if '--wdearly' not in OPT:
        if OLATE:
            a('s_cmp_eq_u32 s59, s3'); a('s_cselect_b32 s38, 112, s23'); a('s_cmp_lt_u32 s38, 112'); a('s_cbranch_scc1 fz_sk1')
        else:
            a('s_cmp_lt_u32 s23, 112'); a('s_cselect_b32 s38, s18, 8'); a('s_cmp_eq_u32 s38, s3'); a('s_cbranch_scc1 fz_sk1')
    a('s_waitcnt lgkmcnt(0)')
    for r in range(2):
        a('s_cmp_eq_u32 s37, %s' % s(32 + r)); a('s_cbranch_scc1 fz_sk%d' % r)
        for q in range(0 if '--xnoout' in OPT else 2): a('buffer_store_dwordx4 %s, %s, s[12:15], %s offen offset:%d%s' % (v(OP + 8 * r + 4 * q, 4), v(vL16), s(34 + r), 1024 * q, OUTF))
        a.lines.append('fz_sk%d:' % r)
    a('v_and_b32 v15, 7, v4'); a('v_mul_u32_u24 v15, 544, v15'); a('v_lshl_add_u32 v15, v5, 4, v15'); a('v_add_u32 v15, %d, v15' % ACT)
    if TWO:
        a('s_and_b32 s60, s2, 7'); a('s_lshr_b32 s61, s2, 3')
        a('s_cmp_lt_u32 s3, 4'); a('s_cselect_b32 s63, 8, s60'); a('s_lshl_b32 s63, s63, 2'); a('s_and_b32 s38, s3, 3'); a('s_add_u32 s63, s63, s38')
        a('s_lshl_b32 s63, s63, 6'); a('s_add_u32 s63, s63, s61'); a('s_lshl_b32 s63, s63, 8'); a('s_add_u32 s63, s63, 0x%x' % POFF)
        a('v_lshlrev_b32 v13, 4, v4'); a('v_lshl_add_u32 v102, v5, 12, v13'); a('v_add_u32 v103, 8192, v102'); a('v_mov_b32 v101, %d' % (ACT + 4352))
    elif PIN:
        a('s_lshl_b32 s63, s23, 5'); a('s_and_b32 s38, s3, 3'); a('s_mul_i32 s38, s38, %d' % (32 * PIS)); a('s_add_u32 s63, s63, s38'); a('s_add_u32 s63, s63, 0x%x' % POFF)
        a('v_lshrrev_b32 v13, 1, v1'); a('v_mul_u32_u24 v13, %d, v13' % PIS); a('v_and_b32 v14, 1, v1'); a('v_lshl_add_u32 v102, v14, 4, v13'); a('v_add_u32 v103, %d, v102' % (16 * PIS))
    else:
        a('s_mul_i32 s63, s23, %d' % PPS); a('s_and_b32 s38, s3, 3'); a('s_lshl_b32 s38, s38, 10'); a('s_add_u32 s63, s63, s38'); a('s_add_u32 s63, s63, 0x%x' % POFF)
    if not TWO: a('s_lshl_b32 s38, s20, %d' % (5 if PIN else 10)); a('s_add_u32 s38, s38, 0x%x' % DOFF); a('s_cmp_lt_u32 s3, 4'); a('s_cselect_b32 s63, s38, s63')
    a('v_mov_b32 v14, 0xffffff00')
    a('s_cmp_eq_u32 s18, s3'); a('s_cbranch_scc1 fz_act')
    a('s_cmp_lg_u32 s59, s3'); a('s_cbranch_scc1 fz_f2')
    st()
    a('s_and_b32 s38, s20, 15'); a('s_add_u32 s38, s38, 16'); a('s_mul_i32 s38, s38, %d' % KS); a('s_add_u32 s38, s38, 0x%x' % KOFF)
    if TWO:
        a('s_lshr_b32 s52, s61, 1'); a('s_lshl_b32 s52, s52, 3'); a('s_add_u32 s52, s52, s60'); a('s_lshl_b32 s52, s52, 2'); a('s_and_b32 s53, s61, 1'); a('s_add_u32 s52, s52, s53'); a('s_lshl_b32 s52, s52, 2')
        a('v_bfe_u32 v2, v1, 2, 1'); a('v_and_b32 v3, 3, v1'); a('v_lshl_add_u32 v2, v2, 3, v3'); a('v_add_u32 v2, s52, v2')
    else:
        a('s_lshr_b32 s52, s20, 4'); a('s_lshl_b32 s52, s52, 7'); a('s_and_b32 s53, s20, 7'); a('s_lshl_b32 s53, s53, 4'); a('s_add_u32 s52, s52, s53')
        a('s_bfe_u32 s53, s20, 0x10003'); a('s_lshl_b32 s53, s53, 2'); a('s_add_u32 s52, s52, s53')
        a('v_and_b32 v2, 1, v1'); a('v_lshl_add_u32 v2, v2, 3, v5'); a('v_add_u32 v2, s52, v2')
    a('v_and_b32 v3, 31, v2'); a('v_lshrrev_b32 v6, 5, v2')
    a('v_cmp_gt_u32 vcc, 16, v6')
    a('v_cmp_lt_u32 s[52:53], 16, v3'); a('v_cmp_eq_u32 s[54:55], 0, v3'); a('s_and_b64 s[54:55], s[54:55], vcc'); a('s_or_b64 s[52:53], s[52:53], s[54:55]')
    a('v_cmp_eq_u32 s[54:55], 16, v3'); a('s_andn2_b64 s[54:55], s[54:55], vcc'); a('s_or_b64 s[52:53], s[52:53], s[54:55]')
    a('v_sub_u32 v7, 1024, v2'); a('v_cndmask_b32 v7, v2, v7, s[52:53]')
    a('v_mov_b32 v8, 512'); a('v_cmp_eq_u32 vcc, 1024, v7'); a('v_cndmask_b32 v7, v7, v8, vcc')
    a('v_lshrrev_b32 v8, 5, v7'); a('v_and_b32 v7, 15, v7')
    a('v_lshrrev_b32 v9, 2, v8'); a('v_lshlrev_b32 v9, 8, v9'); a('v_and_b32 v8, 3, v8'); a('v_lshl_add_u32 v9, v8, 4, v9')
    a('v_lshrrev_b32 v8, 3, v7'); a('v_lshl_add_u32 v9, v8, 6, v9'); a('v_and_b32 v7, 7, v7'); a('v_lshl_add_u32 v9, v7, 1, v9')
    a('v_cndmask_b32 v7, 0, 1, s[52:53]'); a('v_lshl_add_u32 v9, v7, 7, v9')
    a('v_lshlrev_b32 v2, 1, v2')
    if TWO:
        a('s_lshl_b32 s52, s60, 4'); a('s_add_u32 s52, s52, s61'); a('s_lshl_b32 s52, s52, 12'); a('s_add_u32 s52, s52, 0x%x' % POFF)
        a('s_add_u32 s53, s2, 4'); a('s_and_b32 s53, s53, 7'); a('s_cmp_lt_u32 s53, 6'); a('s_cselect_b32 s53, s52, 0x7fff0000')
        for k in range(4): a('s_cselect_b32 %s, %s, 0' % (s(8 + k), s(48 + k)))
        a('s_lshl_b32 s54, s61, 11'); a('s_add_u32 s54, s54, 0x%x' % FIOFF); a('s_lshl_b32 s55, s60, 8'); a('s_add_u32 s55, s55, s54'); a('s_lshl_b32 s62, s60, 5'); a('s_add_u32 s54, s54, s62')
        a('v_lshrrev_b32 v3, 1, v4'); a('v_lshlrev_b32 v3, 8, v3'); a('v_and_b32 v6, 1, v4'); a('v_lshl_add_u32 v3, v6, 4, v3')
        a('v_lshlrev_b32 v6, 2, v1'); a('v_and_b32 v7, 3, v1'); a('v_mov_b32 v16, s48')
        for k in range(1, 4): a('v_cmp_eq_u32 vcc, %d, v7' % k); a('v_mov_b32 v8, %s' % s(48 + k)); a('v_cndmask_b32 v16, v16, v8, vcc')
    else:
        a('v_lshrrev_b32 v3, 1, v1'); a('v_mul_u32_u24 v3, %d, v3' % (32 if PIN else PPS)); a('v_and_b32 v6, 1, v1'); a('v_lshl_add_u32 v3, v6, 4, v3')
        a('v_mov_b32 v6, 0x7fffffff'); a('v_cmp_gt_u32 vcc, 32, v1'); a('v_cndmask_b32 v6, v6, v3, vcc')
        for k in range(4): a('v_mov_b32 v7, %s' % s(48 + k)); a('v_cndmask_b32 %s, 0, v7, vcc' % v(16 + k))
        a('s_mul_i32 s52, s20, %d' % (PIS if PIN else 32)); a('s_add_u32 s52, s52, 0x%x' % POFF)
        for u in range(1, 4): a('s_add_u32 %s, s52, %d' % (s(52 + u), 32 * u * (32 if PIN else PPS)))
    K = 24
    a('v_lshlrev_b32 v20, %d, v1' % KRL); a('v_add_u32 v21, %d, v20' % (64 << KRL))
    a('s_mov_b32 s58, 0')
    a.label('fz_k2')
    a('buffer_load_dwordx4 %s, v20, s[4:7], s38 offen sc1' % v(K, 4)); a('buffer_load_dwordx4 %s, v21, s[4:7], s38 offen sc1' % v(K + 4, 4))
    a('s_waitcnt vmcnt(0)')
    keys_argmax(K, None, 'fz_k2')
    if TWO:
        a('v_and_b32 v7, 15, %s' % v(K + 1)); a('v_and_b32 v8, 15, %s' % v(K + 5)); a('v_cmp_eq_u32 vcc, s24, v7'); a('v_cmp_eq_u32 s[56:57], s24, v8')
        a('s_and_b64 vcc, vcc, s[56:57]'); a('s_and_b32 s39, vcc_lo, vcc_hi'); a('s_and_b32 s41, s20, 7'); a('s_lshr_b32 s39, s39, s41'); a('s_and_b32 s39, s39, 0x01010101')
        a('s_cmp_eq_u32 s39, 0x01010101'); a('s_cselect_b32 s39, %d, 0' % (1 if LOCAL else 0)); a('v_mov_b32 v7, s39'); a('ds_write_b32 v101, v7')
    a('v_cmp_eq_u32 vcc, s36, %s' % v(K)); a('v_cmp_eq_u32 s[56:57], s36, %s' % v(K + 4))
    a('v_cndmask_b32 %s, %s, %s, s[56:57]' % (v(K + 1), v(K + 1), v(K + 5))); a('v_cndmask_b32 %s, %s, %s, s[56:57]' % (v(K + 2), v(K + 2), v(K + 6)))
    a('s_cmp_lg_u64 vcc, 0'); a('s_cselect_b32 s39, 0, 64'); a('s_or_b64 vcc, vcc, s[56:57]'); a('s_ff1_i32_b64 s41, vcc')
    a('v_readlane_b32 s42, %s, s41' % v(K + 1)); a('v_readlane_b32 s43, %s, s41' % v(K + 2))
    a('s_add_u32 s39, s39, s41'); a('s_and_b32 s42, s42, 0xffff0000')
    a('s_cmp_eq_u32 s39, s20'); a('s_cbranch_scc1 fz_win')
    a('s_bitcmp1_b32 s37, 0'); a('s_cbranch_scc1 fz_d1')
    for q in range(2): a('buffer_store_dwordx4 %s, %s, s[12:15], s34 offen offset:%d%s' % (v(OP + 4 * q, 4), v(vL16), 1024 * q, OUTF))
    a('s_branch fz_win')
    a.lines.append('fz_d1:')
    for q in range(2): a('buffer_store_dwordx4 %s, %s, s[12:15], s35 offen offset:%d%s' % (v(OP + 8 + 4 * q, 4), v(vL16), 1024 * q, OUTF))
    a.lines.append('fz_win:')
    a('s_lshl_b32 s39, s39, 11'); a('s_add_u32 s39, s39, 0x%x' % COFF)
    a('s_mov_b32 s58, 0'); a('s_mov_b32 s41, 0xffff0000')
    a.label('fz_c2')
    a('buffer_load_short_d16_hi v10, v9, s[4:7], s39 offen sc1')
    a('s_waitcnt vmcnt(0)')
    a('v_cmp_eq_u32 vcc, s41, v10')
    poll_retry('fz_c2')
    a('v_add_f32 v11, s42, v10'); rbf(a, 11); a('v_mul_f32 v11, s43, v11'); rbf(a, 11)
    a('s_ashr_i32 s39, s36, 31'); a('s_not_b32 s39, s39'); a('s_or_b32 s39, s39, 0x80000000'); a('s_xor_b32 s39, s36, s39'); a('s_and_b32 s39, s39, 0xffff0000')
    a('v_mov_b32 v12, s39'); a('v_mul_f32 v12, %s, v12' % fh(-1.4426950408889634))
    a('v_exp_f32 v12, v12'); a('v_add_f32 v12, 1.0, v12'); a('v_rcp_f32 v12, v12'); rbf(a, 12)
    a('s_and_b32 s39, s36, 0xffff'); a('s_sub_u32 s39, 2047, s39'); a('s_lshl_b32 s39, s39, 11')
    PQ = 40
    a('v_mov_b32 v13, 0xff')
    a('s_waitcnt lgkmcnt(0)')
    a.lines.append('fz_f2:')
    st.n = 13; st()
    a('s_cmp_gt_u32 s23, 111'); a('s_cbranch_scc1 fz_nof2')
    a('s_barrier')
    a('s_cmp_eq_u32 s59, s3'); a('s_cselect_b32 s19, 4, s3'); a('s_cmp_lt_u32 s19, 4'); a('s_cbranch_scc1 fz_f2d')
    BH, ACC = 120, 152
    if TWO: a('ds_read_b32 v100, v101')
    for q in range(8): a('ds_read_b128 %s, v15 offset:%d' % (v(BH + 4 * q, 4), 64 * q))
    if W3 < 8 or WL: a('s_waitcnt vmcnt(2)')
    for q in range(8):
        a('s_waitcnt lgkmcnt(%d)' % (7 - q))
        for h in range(2): a('v_mfma_f32_16x16x32_bf16 %s, %s, %s, %s' % (v(ACC + 4 * h, 4), v(BH + 4 * q, 4), v(WQ[2 * q + h], 4), v(ACC + 4 * h, 4) if q else '0'))
    if TWO: a('v_readfirstlane_b32 s19, v100')
    a('s_mov_b32 exec_hi, 0')
    if TWO:
        for k in range(8): a('v_and_or_b32 %s, %s, v14, %s' % (v(ACC + k), v(ACC + k), s(48 + (k & 3))))
        a('s_cmp_eq_u32 s19, 0'); a('s_cbranch_scc1 fz_prem')
        for h in range(2): a('buffer_store_dwordx4 %s, %s, s[4:7], s63 offen' % (v(ACC + 4 * h, 4), v(102 + h)))
    else:
        for h in range(2):
            for k in range(4): a('v_and_or_b32 %s, %s, v14, %s' % (v(ACC + 4 * h + k), v(ACC + 4 * h + k), s(48 + k)))
            if PIN: a('buffer_store_dwordx4 %s, %s, s[4:7], s63 offen sc1' % (v(ACC + 4 * h, 4), v(102 + h)))
            else: a('buffer_store_dwordx4 %s, %s, s[4:7], s63 offen offset:%d sc1' % (v(ACC + 4 * h, 4), v(vL16), 512 * h))
    a.lines.append('fz_f2d:')
    a('s_mov_b32 exec_hi, -1')
    if OLATE: a('s_cmp_lg_u32 s59, s3'); a('s_cbranch_scc1 fz_late')
    else: a('s_cmp_eq_u32 s18, s3'); a('s_cbranch_scc1 fz_late')
    a('s_cmp_lg_u32 s59, s3'); a('s_cbranch_scc1 fz_xend')
    a('v_mov_b32 v7, 0')
    a('s_waitcnt vmcnt(0)')
    a('s_branch fz_p5_ok')
    a.label('fz_nof2')
    a('s_cmp_lg_u32 s59, s3'); a('s_cbranch_scc1 fz_xend')
    a('s_mov_b32 s58, 0'); a('s_and_b32 s41, s20, %d' % (7 if TWO else 63)); a('s_mul_i32 s41, s41, %d' % (256 if TWO else 32 if PIN else PPS)); a('s_add_u32 s41, s41, s52'); a('v_mov_b32 v7, 0')
    a.label('fz_p5')
    a('buffer_load_dword v8, v7, s[4:7], s41 offen sc1')
    a('s_waitcnt vmcnt(0)')
    a('v_and_b32 v8, 0xff, v8'); a('v_cmp_ne_u32 vcc, s48, v8')
    poll_retry('fz_p5')
    a('s_mov_b32 s58, 0')
    st()
    def h5i(u):
        if TWO: a('buffer_load_dwordx4 %s, %s, s[4:7], %s offen offset:%d sc1' % (v(PQ + 4 * u, 4), v(vL16), s(52 + (u >> 1)), 1024 * u))
        else: a('buffer_load_dwordx4 %s, %s, s[4:7], %s offen sc1' % (v(PQ + 4 * u, 4), 'v6' if u == 3 else 'v3', s(52 + u)))
    def h5c(u):
        for k in range(4): a('v_xor_b32 %s, %s, %s' % (v(PQ + 4 * u + k), (s(8 + k) if u >= 2 else s(48 + k)) if TWO else v(16 + k) if u == 3 else s(48 + k), v(PQ + 4 * u + k)))
        a('v_or3_b32 v8, %s, %s, %s' % (v(PQ + 4 * u), v(PQ + 4 * u + 1), v(PQ + 4 * u + 2)))
        a('v_bitop3_b32 v8, v8, %s, v13 bitop3:0xa8' % v(PQ + 4 * u + 3))
        a('v_cmp_ne_u32 vcc, 0, v8')
    def h5a(u):
        if u:
            for h in range(2): a('v_pk_add_f32 %s, %s, %s' % (v(PQ + 2 * h, 2), v(PQ + 2 * h, 2), v(PQ + 4 * u + 2 * h, 2)))
    for u in range(4): h5i(u)
    prog_poll('fz_h5', 4, h5i, h5c, h5a)
    if TWO:
        for sw in ('32', '16'):
            for k in range(4): a('v_mov_b32 %s, %s' % (v(PQ + 4 + k), v(PQ + k)))
            for k in range(4): a('v_permlane%s_swap_b32 %s, %s' % (sw, v(PQ + k), v(PQ + 4 + k)))
            for h in range(2): a('v_pk_add_f32 %s, %s, %s' % (v(PQ + 2 * h, 2), v(PQ + 2 * h, 2), v(PQ + 4 + 2 * h, 2)))
        for k in range(4): a('v_and_or_b32 %s, %s, v14, %s' % (v(PQ + k), v(PQ + k), s(48 + k)))
        a('s_mov_b64 exec, 0xffff')
        a('buffer_store_dwordx4 %s, v3, s[4:7], s54 offen sc1' % v(PQ, 4))
        a('s_mov_b64 exec, -1'); a('s_mov_b32 s58, 0')
        a('s_waitcnt vmcnt(0)')
        a.lines.append('fz_h6:')
        a('buffer_load_dword %s, v6, s[4:7], s55 offen sc1' % v(PQ + 8))
        a('s_waitcnt vmcnt(0)')
        a('v_xor_b32 %s, v16, %s' % (v(PQ), v(PQ + 8))); a('v_and_b32 v8, 0xff, %s' % v(PQ)); a('v_cmp_ne_u32 vcc, 0, v8')
        poll_retry('fz_h6')
        a('v_add_f32_dpp %s, %s, %s row_ror:8 %s' % (v(PQ), v(PQ), v(PQ), DPPF))
        for sw in ('32', '16'):
            a('v_mov_b32 %s, %s' % (v(PQ + 1), v(PQ))); a('v_permlane%s_swap_b32 %s, %s' % (sw, v(PQ), v(PQ + 1))); a('v_add_f32 %s, %s, %s' % (v(PQ), v(PQ), v(PQ + 1)))
    else:
        for i in range(2): a('v_permlane32_swap_b32 %s, %s' % (v(PQ + i), v(PQ + 2 + i)))
        a('v_pk_add_f32 %s, %s, %s' % (v(PQ, 2), v(PQ, 2), v(PQ + 2, 2)))
        a('v_permlane16_swap_b32 %s, %s' % (v(PQ), v(PQ + 1)))
        a('v_add_f32 %s, %s, %s' % (v(PQ), v(PQ), v(PQ + 1)))
        a('v_add_f32_dpp %s, %s, %s quad_perm:[2,3,0,1] %s' % (v(PQ), v(PQ), v(PQ), DPPF))
        a('v_add_f32_dpp %s, %s, %s row_ror:4 %s' % (v(PQ), v(PQ), v(PQ), DPPF))
        a('v_add_f32_dpp %s, %s, %s row_ror:8 %s' % (v(PQ), v(PQ), v(PQ), DPPF))
    rbf(a, PQ); a('v_mul_f32 %s, %s, v12' % (v(PQ), v(PQ))); rbf(a, PQ)
    a('v_add_f32 %s, %s, v11' % (v(PQ), v(PQ))); rbf(a, PQ)
    a('v_add_f32 %s, %s, v10' % (v(PQ), v(PQ))); rbf(a, PQ)
    if TWO: a('s_mov_b64 exec, 0xff')
    else: a('s_mov_b32 exec_lo, 0x00030003'); a('s_mov_b32 exec_hi, 0x00030003')
    a('buffer_store_short_d16_hi %s, v2, s[12:15], s39 offen' % v(PQ))
    a('s_cmp_lg_u32 s20, 0'); a('s_cbranch_scc1 fz_xend')
    a('s_mov_b64 exec, 1'); a('v_mov_b32 v8, s40')
    a('buffer_store_dword v8, v7, s[4:7], 0 offen')
    a.lines.append('fz_xend:')
    st.n = 15; st()
    st.dump(n=16, sv=250, wave='s3')
    a.lines.append('fz_end:')
    a('s_endpgm')
    a.lines.append('fz_late:')
    for r in range(2):
        for q in range(2): a('buffer_store_dwordx4 %s, %s, s[12:15], %s offen offset:%d%s' % (v(OP + 8 * r + 4 * q, 4), v(vL16), s(34 + r), 1024 * q, OUTF))
    a('s_branch fz_xend')
    a.lines.append('fz_act:')
    a('s_cmp_gt_u32 s23, 111'); a('s_cbranch_scc1 fz_xend')
    a('v_lshlrev_b32 v2, 2, v1'); a('v_and_b32 v11, 3, v1'); a('v_mov_b32 v3, s48')
    for k in range(1, 4): a('v_cmp_eq_u32 vcc, %d, v11' % k); a('v_mov_b32 v10, %s' % s(48 + k)); a('v_cndmask_b32 v3, v3, v10, vcc')
    a('v_and_b32 v10, 31, v1'); a('v_lshlrev_b32 v6, 4, v10'); a('v_lshrrev_b32 v10, 5, v1'); a('v_mul_u32_u24 v10, %d, v10' % (4 * 546)); a('v_add_u32 v6, v6, v10'); a('v_add_u32 v6, %d, v6' % ACT)
    a('s_lshl_b32 s38, s23, 11'); a('s_add_u32 s38, s38, 0x%x' % XOFF)
    a('s_mov_b32 s58, 0')
    st.n = 12; st()
    if APP:
        a.lines.append('fz_p4:')
        a('buffer_load_dword v8, v2, s[4:7], s38 offen offset:%d sc1' % (256 * (APP - 1)))
        a('s_waitcnt vmcnt(0)')
        a('v_xor_b32 v8, v3, v8'); a('v_and_b32 v8, 0xff, v8'); a('v_cmp_ne_u32 vcc, 0, v8')
        poll_retry('fz_p4')
        a('s_mov_b32 s58, 0')
    a.lines.append('fz_h4:')
    for k in range(8): a('buffer_load_dword %s, v2, s[4:7], s38 offen offset:%d sc1' % (v(16 + k), 256 * k))
    for k in range(0, 8, 2):
        a('s_waitcnt vmcnt(%d)' % (6 - k))
        a('v_xor_b32 %s, v3, %s' % (v(16 + k), v(16 + k))); a('v_xor_b32 %s, v3, %s' % (v(17 + k), v(17 + k)))
        a('v_or3_b32 v10, %s, %s, %s' % (v(16 + k), v(17 + k), 'v10' if k else '0'))
        a('v_add_f32 %s, %s, %s' % (v(16 + k), v(16 + k), v(17 + k)))
        if k & 2: a('v_add_f32 %s, %s, %s' % (v(14 + k), v(14 + k), v(16 + k)))
    a('v_and_b32 v10, 0xff, v10'); a('v_add_f32 v8, v16, v20')
    a('v_cmp_ne_u32 vcc, 0, v10')
    poll_retry('fz_h4')
    rbf(a, 8)
    a('v_mov_b32 v9, v8')
    a('v_permlane32_swap_b32 v8, v9')
    a('v_mul_f32 v10, %s, v8' % fh(-1.4426950408889634))
    a('v_exp_f32 v10, v10')
    a('v_add_f32 v10, 1.0, v10'); a('v_rcp_f32 v10, v10')
    a('v_mul_f32 v8, v8, v10'); rbf(a, 8)
    a('v_mul_f32 v8, v8, v9'); rbf(a, 8)
    for m in range(4): a('ds_write_b16_d16_hi v6, v8 offset:%d' % (546 * m))
    a('s_waitcnt lgkmcnt(0)')
    a('s_branch fz_f2')
    a.lines.append('fz_ldh:')
    a('s_load_dwordx2 s[12:13], s[0:1], 56'); a('s_load_dwordx2 s[16:17], s[0:1], 64')
    srd(12, 0x700000); srd(16, 0x700000)
    a('s_branch fz_ldback')
    a.lines.append('fz_spec:')
    a('s_cmp_gt_u32 s3, 3'); a('s_cbranch_scc1 fz_spec_hi')
    for q, sa, sb in ((0, 0, 16), (2, 15, 17), (3, 18, 19)):
        a('s_cmp_eq_u32 s3, %d' % q); a('s_cselect_b32 s31, %d, s31' % (sa * RS)); a('s_cselect_b32 s30, %d, s30' % (sb * RS))
    a('s_branch fz_specback')
    a.lines.append('fz_spec_hi:')
    xload()
    if LATEX: extras()
    for q, ra, rb, sa, sb in ((0, 256, 1792, 4, 11), (1, 768, 1280, 6, 9), (2, 768, 1280, 20, 21), (3, 256, 1792, 22, 23)):
        a('s_cmp_eq_u32 s24, %d' % q); a('s_cselect_b32 s31, %d, s31' % (sa * RS)); a('s_cselect_b32 s30, %d, s30' % (sb * RS))
        a('s_cselect_b32 s27, %d, s27' % (ra * 2048)); a('s_cselect_b32 s28, %d, s28' % (rb * 2048))
    a('s_mov_b32 s57, 0')
    a('s_branch fz_specback')
    a.lines.append('fz_jb:')
    pack(JT, XAC, 16, 'bf16')
    a('s_branch fz_jend')
    if TWO:
        a.lines.append('fz_prem:')
        for h in range(2): a('buffer_store_dwordx4 %s, %s, s[4:7], s63 offen sc1' % (v(152 + 4 * h, 4), v(102 + h)))
        a('s_branch fz_f2d')
    a.lines.append('fz_bsp0:')
    wdload(0, 8 - WL if (WL and SPID & 4) else W3)
    a('s_branch fz_bsp')
    a.lines.append('fz_spec4:')
    a('s_mov_b32 s38, 0x80018001'); a('s_mov_b32 s39, 0x80018001')
    for k in range(8): a('v_cndmask_b32 %s, %s, %s, s[38:39]' % (v(YM + k), v(YM + k), v(YD + k)))
    a('s_branch fz_spec4back')
    a.label('fz_nc1')
    a('s_setprio 0')
    a('s_cmp_lg_u32 s59, 0'); a('s_cbranch_scc1 ffn_b')
    if WL:
        wdload(WE, 8 - WL)
        a('s_bitcmp1_b32 s2, 2'); a('s_cbranch_scc1 fz_wl1')
        wdload(8 - WL, 8)
        a.lines.append('fz_wl1:')
        latex()
        a('s_waitcnt vmcnt(%d)' % (2 * (8 - WL) + 6))
    else:
        wdload(WE, W2)
        latex()
        a('s_waitcnt vmcnt(%d)' % (2 * W2 + 6))
    tags2()
    a.lines.append('fz_bsp:')
    a('s_setprio 0'); a('s_mov_b32 s57, 1')
    a('s_cmp_gt_u32 s3, 5'); a('s_cbranch_scc1 fz_nocq')
    cq_job()
    a.lines.append('fz_nocq:')
    SETA()
    SETB('b')
    a('s_cmp_eq_u32 s2, %d' % SPID); a('s_cbranch_scc1 fz_sz')
    a('s_waitcnt vmcnt(0)')
    sync_add(0x100)
    a.lines.append('fz_sz:')
    a('ds_read_b32 v10, v15')
    a('s_waitcnt lgkmcnt(0)')
    a('v_cmp_ne_u32 vcc, s38, v10')
    a('s_cbranch_vccnz fz_sz')
    st.n = 5; st()
    SET2()
    wdload(W2, W3)
    st()
    a('s_waitcnt lgkmcnt(0)')
    a('s_branch fz_hb')
    a.label('fz_nc3')
    a('s_mov_b32 s58, 0')
    a('s_waitcnt vmcnt(0)')
    st.n = 9; st()
    a('s_branch fz_h2')
    for sfx in 'ab':
        a.lines.append('fz_spec3%s:' % sfx)
        a('v_xor_b32 v11, 1, v4'); a('v_cndmask_b32 v9, v9, v11, s[34:35]')
        a('v_and_b32 v11, 1, v4'); a('v_cndmask_b32 v11, 0, v11, s[34:35]'); a('v_sub_u32 v10, v10, v11')
        a('s_cmp_lg_u32 s22, 0'); a('s_cbranch_scc1 fz_spec3back%s' % sfx)
        for i, tt, pp, po in ((15, 1024, 124, 4), (13, 1536, 124, 6), (4, 256, 127, 8), (11, 1792, 127, 14), (6, 768, 127, 10), (9, 1280, 127, 12)):
            a('v_cmp_eq_u32 vcc, %d, v4' % i); a('v_mov_b32 v11, %d' % tt); a('v_mov_b32 v12, %d' % pp)
            a('v_cndmask_b32 %s, %s, v11, vcc' % (v(vT), v(vT))); a('v_cndmask_b32 v10, v10, v12, vcc'); a('v_cndmask_b32 v9, v9, %d, vcc' % po)
        a.flush(); a('s_branch fz_spec3back%s' % sfx)
    WF, WD, BH, ACC, K = 32, 96, 128, 192, 200
    SNT = '' if '--spl' in OPT else ' nt'
    def ffn_addr():
        a('s_bfe_u32 s21, s2, 0x30003')
        a('v_lshrrev_b32 v2, 5, v1'); a('v_and_b32 v3, 31, v1'); a('v_lshlrev_b32 v4, 1, v2'); a('v_xor_b32 v3, v4, v3')
        a('v_mul_u32_u24 v4, 7168, v2'); a('v_lshl_add_u32 v4, v3, 4, v4')
        for k in range(1, 4): a('v_xor_b32 %s, %d, v4' % (v(4 + k), 64 * k))
        a('s_lshl_b32 s23, s21, 7'); a('s_lshl_b32 s24, s3, 4'); a('s_add_u32 s23, s23, s24'); a('s_mul_i32 s23, s23, 7168'); a('s_lshl_b32 s24, s22, 9'); a('s_add_u32 s23, s23, s24')
        a('s_lshl_b32 s24, s3, 13')
    def gu(m, p):
        a('s_add_u32 s28, s24, %d' % ((0 if m else GT) + 1024 * p)); a('s_mov_b32 m0, s28'); a('s_add_u32 s29, s23, %d' % (p * 2 * 7168))
        if '--xnogu' not in OPT: a('buffer_load_dwordx4 %s, %s, s29 offen%s lds' % (v(4 + (p & 1) + 2 * (p >> 2)), s(16 if m else 12, 4), SNT))
    a.label('ffn_b')
    if not NE:
        a('s_waitcnt vmcnt(0)')
        tags()
    a.label('ffn')
    st.n = 5; st()
    blk(22, 36)
    a('s_cmp_gt_u32 s22, 13'); a('s_cbranch_scc1 fz_xend')
    ffn_addr()
    a('v_mov_b32 v31, %d' % (MSG + 48)); a('v_mov_b32 v10, 0'); a('ds_write_b32 v31, v10'); a('s_waitcnt lgkmcnt(0)')
    if NE:
        a('s_cmp_lt_u32 s3, 4'); a('s_cbranch_scc1 ffn_g1')
        for p in range(NE): gu(0, p)
        a('s_waitcnt vmcnt(%d)' % NE)
        tags()
        a('s_barrier'); a('s_branch ffn_g2')
        a.lines.append('ffn_g1:')
    a('s_setprio 0'); a('s_barrier')
    if GATE:
        a('s_lshl_b32 s26, s3, 3'); a('s_add_u32 s26, s26, %d' % (GATE - 1)); a('s_mul_i32 s26, s26, %d' % PS); a('s_add_u32 s26, s26, 0x%x' % WOFF); a('s_and_b32 s27, s2, 127'); a('s_lshl_b32 s27, s27, 7'); a('s_add_u32 s26, s26, s27')
        a('v_mov_b32 v9, 0'); a('s_mov_b32 s27, 0x30003')
        a('s_waitcnt vmcnt(0)')
        a.lines.append('ffn_gp:')
        a('buffer_load_dword v10, v9, s[4:7], s26 offen sc1')
        a('s_waitcnt vmcnt(0)')
        a('v_xor_b32 v10, s44, v10'); a('v_and_b32 v10, s27, v10'); a('v_cmp_ne_u32 vcc, 0, v10')
        poll_retry('ffn_gp')
        a('s_mov_b32 s58, 0')
    if '--ackfirst' in OPT: a('s_waitcnt vmcnt(0)'); a('s_barrier')
    for p in range(8):
        if NE and p == NE: a.lines.append('ffn_g2:')
        gu(0, p)
        if THR: a('s_waitcnt vmcnt(%d)' % (THR - 1))
    if NE == 8: a.lines.append('ffn_g2:')
    def l2p():
        a('s_lshl_b32 s28, s22, 3'); a('s_add_u32 s28, s28, s21'); a('s_lshl_b32 s28, s28, 16'); a('v_lshlrev_b32 v9, 7, v0')
        a('buffer_load_dword v248, v9, s[64:67], s28 offen')
    if L2P == 1: l2p()
    for p in range(8):
        gu(1, p)
        if THR2: a('s_waitcnt vmcnt(%d)' % (THR2 - 1))
    if L2P == 2: l2p()
    a('v_lshrrev_b32 v2, 4, v1'); a('v_and_b32 v3, 15, v1')
    a('v_bfe_u32 v9, v1, 2, 2'); a('v_lshl_add_u32 v8, v2, 3, v9'); a('v_lshlrev_b32 v8, 9, v8')
    a('v_and_b32 v10, 1, v2'); a('v_lshl_add_u32 v10, v10, 2, v9'); a('s_lshl_b32 s28, s3, 1'); a('v_xor_b32 v10, s28, v10')
    a('v_lshl_add_u32 v8, v10, 5, v8'); a('v_and_b32 v10, 3, v1'); a('v_lshl_add_u32 v8, v10, 3, v8')
    a('v_xor_b32 v12, 32, v8'); a('v_add_u32 v13, %d, v8' % GT); a('v_add_u32 v20, %d, v12' % GT)
    a('v_bfe_u32 v9, v0, 2, 2'); a('v_lshrrev_b32 v10, 6, v0'); a('v_lshl_add_u32 v9, v10, 2, v9')
    a('v_bfe_u32 v10, v0, 4, 1'); a('v_and_b32 v11, 3, v0'); a('v_lshlrev_b32 v11, 1, v11'); a('v_lshl_add_u32 v10, v10, 3, v11')
    a('v_lshl_add_u32 v11, v9, 5, v10'); a('v_add_u32 v17, 1, v11')
    a('v_cmp_eq_u32 vcc, 0, v10'); a('v_cmp_gt_u32 s[28:29], 16, v9'); a('s_and_b64 vcc, vcc, s[28:29]'); a('v_cndmask_b32 v14, 0, 16, vcc'); a('v_add_u32 v16, v11, v14')
    a('v_bfe_u32 v10, v0, 5, 1'); a('v_cmp_eq_u32 s[28:29], 1, v10')
    a('v_sub_u32 v14, 1024, v16'); a('v_cmp_eq_u32 vcc, 512, v16'); a('v_cndmask_b32 v14, v14, 0, vcc'); a('v_cndmask_b32 v16, v16, v14, s[28:29]')
    a('v_sub_u32 v14, 1024, v17'); a('v_cndmask_b32 v17, v17, v14, s[28:29]')
    for r in (16, 17): a('v_lshlrev_b32 %s, 1, %s' % (v(r), v(r))); a('v_add_u32 %s, %d, %s' % (v(r), HN, v(r)))
    a('v_lshlrev_b32 v18, 2, v0'); a('v_add_u32 v18, %d, v18' % RAW)
    a('s_lshl_b32 s28, s21, 8'); a('s_add_u32 s28, s28, %d' % HN); a('v_lshlrev_b32 v19, 4, v2'); a('v_add_u32 v19, s28, v19')
    a('v_mov_b32 v28, %d' % MSG)
    a('v_lshlrev_b32 v29, 4, v1')
    a('s_lshl_b32 s30, s22, 3'); a('s_add_u32 s30, s30, s3'); a('s_lshl_b32 s30, s30, 3'); a('s_add_u32 s30, s30, s21'); a('s_lshl_b32 s30, s30, 8'); a('s_add_u32 s30, s30, 0x%x' % XOFF)
    a('v_lshlrev_b32 v30, 4, v2'); a('v_lshl_add_u32 v30, v3, 6, v30')
    for k in range(1, 4): a('v_cmp_eq_u32 %s, %d, v3' % (s(58 + 2 * k, 2), k))
    a('v_add_u32 v21, %d, v29' % RAW)
    a('v_mov_b32 %s, 0xffffff00' % v(197))
    a('s_and_b32 s35, s2, 0x47'); a('s_lshl_b32 s31, s3, 3'); a('s_add_u32 s35, s35, s31'); a('s_add_u32 s35, s35, %d' % POFS); a('s_and_b32 s35, s35, 127')
    a('s_getreg_b32 s33, hwreg(HW_REG_XCC_ID)'); a('s_and_b32 s33, s33, 15')
    a('s_lshr_b32 s31, s35, 5'); a('s_lshl_b32 s31, s31, 2'); a('s_add_u32 s31, s31, %d' % (MSG + 16)); a('v_mov_b32 v22, s31')
    a('s_lshl_b32 s20, s22, 3'); a('s_add_u32 s20, s20, s21')
    a('s_and_b32 s34, s20, 15')
    if DB & 2: a('s_bfe_u32 s28, s20, 0x10004'); a('s_lshl_b32 s28, s28, 5'); a('s_add_u32 s34, s34, s28')
    a('s_mul_i32 s34, s34, %d' % KS); a('s_add_u32 s34, s34, 0x%x' % KOFF)
    def trw():
        for T_, ad in enumerate((13, 20, 8, 12)):
            for k in range(4):
                for hh in range(2): a('ds_read_b64_tr_b16 %s, %s offset:%d' % (v(WF + 16 * T_ + 4 * k + 2 * hh, 2), v(ad), 16384 * k + 2048 * hh))
            a('s_waitcnt lgkmcnt(0)')
    a('s_waitcnt vmcnt(%d)' % (1 if L2P == 2 else 0))
    if DEC:
        a('v_mov_b32 v10, 1'); a('s_mov_b64 exec, 1'); a('ds_add_u32 v31, v10'); a('s_mov_b64 exec, -1')
        a('s_mov_b32 s23, 0')
        a('s_cmp_eq_u32 s3, 0'); a('s_cbranch_scc1 ffn_z0')
        a.lines.append('ffn_sl:')
        a('ds_read_b32 v10, v31'); a('s_waitcnt lgkmcnt(0)'); a('v_cmp_ne_u32 vcc, 8, v10'); a('s_cbranch_vccnz ffn_sl')
        st()
        trw()
        st()
        a('s_cmp_lg_u32 s3, 0'); a('s_cbranch_scc1 ffn_w3')
        a('s_cmp_eq_u32 s23, 2'); a('s_cbranch_scc1 ffn_w3')
        a('s_mov_b32 s23, 1')
        a.lines.append('ffn_z0:')
    else:
        a('s_barrier')
        st()
        trw()
        st()
        a('s_cmp_lg_u32 s3, 0'); a('s_cbranch_scc1 ffn_w3')
    if KP == 0:
        a('v_lshlrev_b32 v23, %d, v1' % KRL); a('v_add_u32 v24, %d, v23' % (64 << KRL)); a('s_lshl_b32 s28, s20, %d' % KRL); a('s_add_u32 s28, s28, s34'); a('v_mov_b32 v10, %d' % (12 + (16 * KS if DB & 1 else 0)))
        if DTH:
            a('v_mul_u32_u24 v11, %d, v1' % (3 << KRL if False else 2 << KRL)); a('v_bfe_u32 v9, v1, 2, 1'); a('v_lshl_add_u32 v11, v9, %d, v11' % KRL); a('v_add_u32 v10, v10, v11'); a('s_mov_b32 s28, s34')
            a.lines.append('ffn_q3:')
            a('buffer_load_dword v11, v10, s[4:7], s28 offen sc1')
            a('s_add_u32 s58, s58, 1')
            a('s_waitcnt vmcnt(0)')
            a('v_cmp_eq_u32 vcc, s40, v11')
            a('s_cmp_gt_u32 s58, 0x%x' % MAXPOLL); a('s_cbranch_scc1 ffn_p3_ok')
            a('s_bcnt1_i32_b64 s29, vcc'); a('s_cmp_lt_u32 s29, %d' % DTH); a('s_cbranch_scc1 ffn_q3'); a('s_branch ffn_p3_ok')
        a.label('ffn_p3')
        a('buffer_load_dword v11, v10, s[4:7], s28 offen sc1')
        if DEC: a('ds_read_b32 v9, v31')
        a('s_waitcnt vmcnt(0) lgkmcnt(0)')
        a('v_cmp_ne_u32 vcc, s40, v11')
        if DEC:
            a('s_cbranch_vccnz ffn_p3_x')
            a.lines.append('ffn_p3_ok:')
        else: poll_retry('ffn_p3')
        a('s_mov_b32 s58, 0'); a('s_mov_b32 s54, -1')
        st()
        a.label('ffn_k3')
        a('buffer_load_dwordx4 %s, v23, s[4:7], s34 offen sc1' % v(K, 4)); a('buffer_load_dwordx4 %s, v24, s[4:7], s34 offen sc1' % v(K + 4, 4))
        a('s_waitcnt vmcnt(0)')
        if SPEC:
            a('v_cmp_eq_u32 s[24:25], s40, %s' % v(K + 3)); a('v_cmp_eq_u32 s[26:27], s40, %s' % v(K + 7))
            a('v_cndmask_b32 %s, 0, %s, s[24:25]' % (v(K), v(K))); a('v_cndmask_b32 %s, 0, %s, s[26:27]' % (v(K + 4), v(K + 4)))
            a('v_max_u32 %s, %s, %s' % (v(K + 10), v(K), v(K + 4)))
            for pat in ['quad_perm:[1,0,3,2] ' + DPPF, 'quad_perm:[2,3,0,1] ' + DPPF, 'row_half_mirror ' + DPPF,
                        'row_mirror ' + DPPF, 'row_bcast:15 row_mask:0xa bank_mask:0xf', 'row_bcast:31 row_mask:0xc bank_mask:0xf']:
                a('v_max_u32_dpp %s, %s, %s %s' % (v(K + 10), v(K + 10), v(K + 10), pat))
            a('s_and_b64 s[52:53], s[24:25], s[26:27]')
            a('v_readlane_b32 s36, %s, 63' % v(K + 10))
        else: keys_argmax(K, None, 'ffn_k3')
    else:
        st()
        KSET = [216 + 8 * i for i in range(KP)]
        def ki(r): a('buffer_load_dwordx4 %s, v29, s[4:7], s34 offen sc1' % v(r, 4)); a('buffer_load_dwordx4 %s, v29, s[4:7], s34 offen offset:1024 sc1' % v(r + 4, 4))
        for r in KSET[:-1]: ki(r)
        a.lines.append('ffn_k3:')
        for i, r in enumerate(KSET):
            ki(KSET[i - 1])
            a('s_waitcnt vmcnt(%d)' % (2 * KP - 2))
            for k in range(8): a('v_mov_b32 %s, %s' % (v(K + k), v(r + k)))
            a('v_max_u32 %s, %s, %s' % (v(K + 10), v(K), v(K + 4)))
            a('v_xor_b32 %s, s40, %s' % (v(K + 8), v(K + 3))); a('v_xor_b32 %s, s40, %s' % (v(K + 9), v(K + 7)))
            for pat in ['quad_perm:[1,0,3,2] ' + DPPF, 'quad_perm:[2,3,0,1] ' + DPPF, 'row_half_mirror ' + DPPF,
                        'row_mirror ' + DPPF, 'row_bcast:15 row_mask:0xa bank_mask:0xf', 'row_bcast:31 row_mask:0xc bank_mask:0xf']:
                a('v_max_u32_dpp %s, %s, %s %s' % (v(K + 10), v(K + 10), v(K + 10), pat))
            a('v_or_b32 %s, %s, %s' % (v(K + 8), v(K + 8), v(K + 9)))
            a('v_readlane_b32 s36, %s, 63' % v(K + 10))
            a('v_cmp_ne_u32 vcc, 0, %s' % v(K + 8))
            a('s_cbranch_vccz ffn_k3_ok')
        a('s_add_u32 s58, s58, 1'); a('s_cmp_lt_u32 s58, 0x%x' % MAXPOLL); a('s_cbranch_scc1 ffn_k3')
        a.label('ffn_k3_ok')
    a('v_cmp_eq_u32 vcc, s36, %s' % v(K)); a('v_cmp_eq_u32 s[28:29], s36, %s' % v(K + 4))
    a('s_cmp_lg_u64 vcc, 0'); a('s_cselect_b32 s39, 0, 64'); a('s_or_b64 vcc, vcc, s[28:29]'); a('s_ff1_i32_b64 s41, vcc')
    a('s_add_u32 s39, s39, s41'); a('s_lshl_b32 s39, s39, 11'); a('s_add_u32 s39, s39, 0x%x' % COFF)
    CR = BH
    if SPEC:
        a('s_cmp_eq_u32 s39, s54'); a('s_cbranch_scc1 ffn_c3h')
        a('buffer_load_dwordx4 %s, v29, s[4:7], s39 offen sc1' % v(CR, 4)); a('buffer_load_dwordx4 %s, v29, s[4:7], s39 offen offset:1024 sc1' % v(CR + 4, 4))
        a.lines.append('ffn_c3h:')
        a('s_cmp_lg_u64 s[52:53], -1'); a('s_cbranch_scc1 ffn_k3_rt')
        a.lines.append('ffn_k3_ok:')
        a('s_mov_b32 s58, 0')
        st()
    else:
        a('s_mov_b32 s58, 0')
        st()
        a.lines.append('ffn_c3:')
        a('buffer_load_dwordx4 %s, v29, s[4:7], s39 offen sc1' % v(CR, 4)); a('buffer_load_dwordx4 %s, v29, s[4:7], s39 offen offset:1024 sc1' % v(CR + 4, 4))
    a.lines.append('ffn_c3d:')
    a('v_and_b32 v10, 15, %s' % v(K + 1)); a('v_and_b32 v11, 15, %s' % v(K + 5))
    a('v_cmp_eq_u32 s[24:25], s33, v10'); a('v_cmp_eq_u32 s[26:27], s33, v11')
    for k in range(4): a('v_mov_b32 %s, %s' % (v(K + 12 + k), s(24 + k) if LOCAL else '0'))
    for k in range(1, 3): a('v_cndmask_b32 %s, %s, %s, s[28:29]' % (v(K + 8 + k), v(K + k), v(K + 4 + k)))
    a('v_and_b32 %s, 0xffff0000, %s' % (v(K + 9), v(K + 9)))
    a('s_mov_b64 s[42:43], vcc'); a('s_mov_b64 exec, vcc')
    a('ds_write_b128 v28, %s' % v(K + 8, 4)); a('ds_write_b128 v28, %s offset:16' % v(K + 12, 4))
    a('s_mov_b64 exec, -1')
    a('s_waitcnt vmcnt(1)')
    a('ds_write_b128 v21, %s' % v(CR, 4))
    a('v_max3_u32 v10, %s, %s, %s' % (v(CR), v(CR + 1), v(CR + 2)))
    a('s_waitcnt vmcnt(0)')
    a('ds_write_b128 v21, %s offset:1024' % v(CR + 4, 4))
    a('v_max3_u32 v10, v10, %s, %s' % (v(CR + 3), v(CR + 4))); a('v_max3_u32 v11, %s, %s, %s' % (v(CR + 5), v(CR + 6), v(CR + 7))); a('v_max_u32 v10, v10, v11')
    a('v_cmp_eq_u32 vcc, -1, v10')
    a('s_cbranch_vccnz ffn_c3_rt')
    a.lines.append('ffn_c3_ok:')
    a('s_waitcnt lgkmcnt(0)')
    if DEC:
        a('s_cmp_eq_u32 s23, 0'); a('s_mov_b32 s23, 2'); a('s_cbranch_scc1 ffn_sl')
    a.label('ffn_w3')
    a('s_barrier')
    st.n = 10; st()
    a('ds_read_b32 v11, v18'); a('ds_read_b128 %s, v28' % v(K, 4)); a('ds_read_b32 %s, v22' % v(K + 3))
    a('s_mov_b32 s28, 0xffff0000')
    a('s_waitcnt lgkmcnt(2)')
    a('v_lshlrev_b32 v14, 16, v11'); a('v_and_b32 v15, s28, v11')
    a('s_waitcnt lgkmcnt(0)')
    for r in (14, 15): a('v_add_f32 %s, %s, %s' % (v(r), v(r), v(K + 1)))
    for r in (14, 15): rbf(a, r)
    for r in (14, 15): a('v_mul_f32 %s, %s, %s' % (v(r), v(r), v(K + 2)))
    a('v_cvt_pk_bf16_f32 v14, v14, v15')
    a('ds_write_b16 v16, v14'); a('ds_write_b16_d16_hi v17, v14')
    a('v_readfirstlane_b32 s24, %s' % v(K + 3))
    a('s_waitcnt lgkmcnt(0)'); a('s_barrier')
    st()
    for k in range(4): a('ds_read_b128 %s, v19 offset:%d' % (v(BH + 4 * k, 4), 64 * k))
    AC = 144
    for k in range(4):
        a('s_waitcnt lgkmcnt(%d)' % (3 - k))
        for T_ in range(4): a('v_mfma_f32_16x16x32_bf16 %s, %s, %s, %s' % (v((AC + 4 * T_) if T_ else ACC, 4), v(WF + 16 * T_ + 4 * k, 4), v(BH + 4 * k, 4), v((AC + 4 * T_) if T_ else ACC, 4) if k else '0'))
    for T_ in range(1, 4):
        for k in range(4): a('v_cndmask_b32 %s, %s, %s, %s' % (v(ACC + k), v(ACC + k), v(AC + 4 * T_ + k), s(58 + 2 * T_, 2)))
    a('s_mov_b32 exec_lo, 0x000f000f'); a('s_mov_b32 exec_hi, 0x000f000f')
    for k in range(4): a('v_and_or_b32 %s, %s, %s, %s' % (v(ACC + k), v(ACC + k), v(197), s(48 + k)))
    a('s_bitcmp1_b32 s24, s35'); a('s_cbranch_scc0 ffn_rem')
    a('buffer_store_dwordx4 %s, v30, s[4:7], s30 offen' % v(ACC, 4))
    a.lines.append('ffn_fin:')
    st()
    st.dump(sv=250, wave='s3')
    a('s_endpgm')
    a.lines.append('ffn_rem:')
    a('buffer_store_dwordx4 %s, v30, s[4:7], s30 offen sc1' % v(ACC, 4))
    a('s_branch ffn_fin')
    if DEC:
        a.lines.append('ffn_p3_x:')
        a('s_add_u32 s58, s58, 1'); a('s_cmp_gt_u32 s58, 0x%x' % MAXPOLL); a('s_cbranch_scc1 ffn_p3_ok')
        a('s_cmp_lg_u32 s23, 0'); a('s_cbranch_scc1 ffn_p3')
        a('v_cmp_eq_u32 vcc, 8, v9'); a('s_cbranch_vccnz ffn_sl'); a('s_branch ffn_p3')
    a.lines.append('ffn_c3_rt:')
    if SPEC:
        a('s_mov_b64 vcc, s[42:43]'); a('s_add_u32 s58, s58, 1'); a('s_cmp_gt_u32 s58, 0x%x' % MAXPOLL); a('s_cbranch_scc1 ffn_c3_ok')
        a('buffer_load_dwordx4 %s, v29, s[4:7], s39 offen sc1' % v(CR, 4)); a('buffer_load_dwordx4 %s, v29, s[4:7], s39 offen offset:1024 sc1' % v(CR + 4, 4))
        a('s_branch ffn_c3d')
        a.lines.append('ffn_k3_rt:')
        a('s_cmp_lg_u32 s36, 0'); a('s_cselect_b32 s54, s39, -1')
        a('s_add_u32 s58, s58, 1'); a('s_cmp_lt_u32 s58, 0x%x' % MAXPOLL); a('s_cbranch_scc1 ffn_k3'); a('s_branch ffn_k3_ok')
    else:
        a('s_mov_b64 vcc, s[42:43]'); a('s_add_u32 s58, s58, 1'); a('s_cmp_lt_u32 s58, 0x%x' % MAXPOLL); a('s_cbranch_scc1 ffn_c3'); a('s_branch ffn_c3_ok')
    emit_stubs()
    a.lines.append('fz_codeend:')

def main(path):
    ref = open('/code/%s.s.ref' % NAME).read().splitlines()
    for l in ref:
        if l.startswith('; Override'): break
        a.raw(l)
    a.raw('; @launch kernel=fz_kernel grid=(256,1,1) block=(512,1,1) lds=163840')
    if STAMPS: a.raw('; @groups fftA=0-127:0-3,fftB=0-127:4-7,ffn=128-255:0-0')
    a.raw('.amdgcn_target "amdgcn-amd-amdhsa--gfx950"'); a.raw('.text')
    gen()
    a.raw('.section .rodata,"a"')
    a.raw('\n'.join(['.p2align 6', '.amdhsa_kernel fz_kernel', '  .amdhsa_next_free_vgpr 256', '  .amdhsa_next_free_sgpr 102',
        '  .amdhsa_accum_offset 256', '  .amdhsa_group_segment_fixed_size 0', '  .amdhsa_kernarg_size 104', '  .amdhsa_user_sgpr_count 2',
        '  .amdhsa_user_sgpr_kernarg_segment_ptr 1', '  .amdhsa_system_sgpr_workgroup_id_x 1', '.end_amdhsa_kernel', '']))
    open(path, 'w').write(a.text())
    print('wrote', path, 'lines', len(a.lines), 'nops', a.nops)
if __name__ == '__main__':
    ps = [x for x in sys.argv[1:] if x.endswith('.s')]
    main(ps[0] if ps else '/code/%s.s' % NAME)
```

```python
import struct, sys
import os; _d = os.path.dirname(os.path.abspath(__file__)); sys.path.insert(0, _d); sys.path.insert(0, _d + '/mb')
from asmlib import Asm
from mblib import St
NAME = 'sequential_preLN__spectral_fnet__moe_arch_mod__prompt'
def fh(x): return '0x%08x' % struct.unpack('<I', struct.pack('<f', x))[0]
OPT = set(a for a in sys.argv[1:] if a.startswith('--'))
def optv(name, d):
    for o in OPT:
        if o.startswith('--%s=' % name): return int(o.split('=')[1])
    return d
STAMPS = '--stamps' in OPT
def v(i, n=1): return 'v%d' % i if n == 1 else 'v[%d:%d]' % (i, i + n - 1)
def s(i, n=1): return 's%d' % i if n == 1 else 's[%d:%d]' % (i, i + n - 1)
DPPF = 'row_mask:0xf bank_mask:0xf'
X1 = 'quad_perm:[1,0,3,2] ' + DPPF
def rbf(a, r): a('v_cvt_pk_bf16_f32 %s, 0, %s' % (v(r), v(r)))
def kr(r): return (r & 3) + 8 * (r >> 2)
PS = 16384 + 128
WOFF = 0x1000; YOFF = 0x210000; KRL = optv('krl', 4); KOFF = 0x580000; KS = (128 << KRL) + 128; COFF = 0x448000; XOFF = 0x488000; POFF = 0x4c8000; PPS = 4096 + 128; PIS = 3584 + 128
DOFF = 0x548000; FIOFF = 0x558000; WSB = 0x690000
RS = 2064
CT = 24 * RS; SB = CT + 18432; AB = SB + 18432; CPS = 8192 + 64; PR = AB + 2 * CPS; WR = PR + 2048; TRASH = WR + 2048; ACT = TRASH + 1024; SYNC = CT - 16
GT = 81920; SP = 65536; HN = GT + 65536; MSG = HN + 2048; RAW = MSG + 64
MAXPOLL = 0x10000
SPID = optv('spid', 66); POFS = (124 - SPID) & 127
class Asm2(Asm):
    def __call__(self, text):
        if text.startswith('v_cndmask_b32 '): text = 'v_cndmask_b32_e64 ' + text[14:]
        Asm.__call__(self, text)
a = Asm2()
class St2(St):
    def __call__(self):
        if '--early' in OPT and 5 < self.n < 15: self.n += 1; return
        if '--cnt' in OPT and 0 < self.n < 4: self.n += 1; return
        St.__call__(self)
st = St2(a, STAMPS)
def est(i):
    if '--early' in OPT and STAMPS: a('s_memrealtime s[%d:%d]' % (70 + 2 * i, 71 + 2 * i))
stubs = []
def poll_retry(name, cnt=58):
    a('s_cbranch_vccnz %s_rt' % name)
    a.lines.append('%s_ok:' % name)
    stubs.append((name, cnt))
prog = []
def prog_poll(name, n, issue, check, after=None):
    for u in range(n):
        a.lines.append('%s_c%d:' % (name, u))
        a('s_waitcnt vmcnt(%d)' % (n - 1 - u))
        check(u)
        a('s_cbranch_vccnz %s_r%d' % (name, u))
        a.lines.append('%s_o%d:' % (name, u))
        if after: after(u)
    prog.append((name, n, issue))
def emit_stubs():
    for name, n, issue in prog:
        for u in range(n):
            a.lines.append('%s_r%d:' % (name, u))
            a('s_add_u32 s58, s58, 1'); a('s_cmp_gt_u32 s58, 0x%x' % MAXPOLL); a('s_cbranch_scc1 %s_o%d' % (name, u))
            if '--cnt' in OPT and name in ('fz_h1', 'fz_h2', 'fz_h5'): r = {'fz_h1': 72, 'fz_h2': 74, 'fz_h5': 76}[name]; a('s_add_u32 s%d, s%d, %d' % (r, r, n - u))
            for k in range(u, n): issue(k)
            a('s_branch %s_c%d' % (name, u))
    for name, cnt in stubs:
        a.lines.append('%s_rt:' % name)
        a('s_add_u32 %s, %s, 1' % (s(cnt), s(cnt))); a('s_cmp_lt_u32 %s, 0x%x' % (s(cnt), MAXPOLL))
        a('s_cbranch_scc1 %s' % name); a('s_branch %s_ok' % name)
def angles(mulreg, basereg, ks, tmp):
    for i, k in enumerate(ks):
        if k == 0: a('v_mov_b32 %s, %s' % (v(tmp + i), v(basereg)))
        else: a('v_fmamk_f32 %s, %s, %s, %s' % (v(tmp + i), v(mulreg), fh(float(k)), v(basereg)))
def trig(fn, t, n):
    for i in range(n): a('v_%s_f32 %s, %s' % (fn, v(t + i), v(t + i)))
def pack(dst, t, n, kind='f16'):
    for p in range(n // 2): a('v_cvt_pk_%s_f32 %s, %s, %s' % (kind, v(dst + p), v(t + 2 * p), v(t + 2 * p + 1)))
def tags():
    a('v_readfirstlane_b32 s40, v250')
    a('s_add_u32 s40, s40, 1'); a('s_and_b32 s38, s40, 3'); a('s_and_b32 s39, s40, 15')
    for i in range(4):
        a('s_bfe_u32 s41, s40, 0x%x' % ((2 << 16) | (2 * i + 2))); a('s_lshl_b32 s41, s41, 16'); a('s_or_b32 %s, s38, s41' % s(44 + i))
        a('s_bfe_u32 s41, s40, 0x%x' % ((4 << 16) | (4 * i + 4))); a('s_lshl_b32 s41, s41, 4'); a('s_or_b32 %s, s39, s41' % s(48 + i))
def srd(d, nbytes): a('s_mov_b32 %s, 0x%x' % (s(d + 2), nbytes)); a('s_mov_b32 %s, 0x00020000' % s(d + 3))
def blk(dst, tmp):
    if optv('bm', 0):
        e = optv('bm', 0) - 1
        a('s_add_u32 %s, s2, %d' % (s(tmp), 7 - e)); a('s_and_b32 %s, %s, 7' % (s(tmp), s(tmp))); a('s_bfe_u32 %s, s2, 0x10006' % s(tmp + 1))
        a('s_lshl_b32 %s, %s, 1' % (s(dst), s(tmp))); a('s_add_u32 %s, %s, %s' % (s(dst), s(dst), s(tmp + 1))); a('s_min_u32 %s, %s, 14' % (s(dst), s(dst)))
        return
    a('s_add_u32 %s, s2, 4' % s(tmp)); a('s_and_b32 %s, %s, 7' % (s(tmp), s(tmp))); a('s_bfe_u32 %s, s2, 0x10006' % s(tmp + 1))
    a('s_lshl_b32 %s, %s, 1' % (s(dst), s(tmp))); a('s_add_u32 %s, %s, %s' % (s(dst), s(dst), s(tmp + 1)))
    a('s_cmp_lg_u32 %s, 0' % s(tmp + 1)); a('s_cselect_b32 %s, 8, %s' % (s(tmp + 1), s(tmp))); a('s_add_u32 %s, %s, 6' % (s(tmp + 1), s(tmp + 1)))
    a('s_cmp_lt_u32 %s, 6' % s(tmp)); a('s_cselect_b32 %s, %s, %s' % (s(dst), s(dst), s(tmp + 1)))
def keys_argmax(K, gidx, name):
    a('v_xor_b32 %s, s40, %s' % (v(K + 8), v(K + 3))); a('v_xor_b32 %s, s40, %s' % (v(K + 9), v(K + 7)))
    a('v_max_u32 %s, %s, %s' % (v(K + 10), v(K), v(K + 4)))
    a('v_or_b32 %s, %s, %s' % (v(K + 8), v(K + 8), v(K + 9)))
    a('v_cmp_ne_u32 vcc, 0, %s' % v(K + 8))
    poll_retry(name)
    for pat in ['quad_perm:[1,0,3,2] ' + DPPF, 'quad_perm:[2,3,0,1] ' + DPPF, 'row_half_mirror ' + DPPF,
                'row_mirror ' + DPPF, 'row_bcast:15 row_mask:0xa bank_mask:0xf', 'row_bcast:31 row_mask:0xc bank_mask:0xf']:
        a('v_max_u32_dpp %s, %s, %s %s' % (v(K + 10), v(K + 10), v(K + 10), pat))
    a('v_readlane_b32 s36, %s, 63' % v(K + 10))

def gen():
    PIN = optv('pin', 1); WLIN = optv('wlin', 0); YLIN = optv('ylin', 0); WT = optv('wt', 1); DTH = optv('dth', 0); SPEC = optv('spec', 0); EP2 = optv('ep2', 0); EP = optv('ep', 5); TWO = optv('two', 0); L2P = optv('l2p', 0); DEC = optv('dec', 0)
    APP = optv('app', 0); WL = optv('wl', 0)
    BP = optv('bp', 1); THR = optv('thr', 0); THR2 = optv('thr2', 0)
    KP = optv('kp', 0); DB = optv('db', 3)
    PFC = optv('pfc', 1); WSP = optv('wsp', 2204); WE = WSP // 1000; W2 = WE + WSP // 100 % 10; W3 = W2 + WSP // 10 % 10; assert W3 + WSP % 10 == 8; OLATE = '--olate' in OPT; GATE = optv('gate', 0)
    TOUCH = optv('touch', 0); LOCAL = '--nolocal' not in OPT
    NE = optv('ne', 0); LATEX = '--earlyx' not in OPT
    a.raw('.globl fz_kernel'); a.raw('.p2align 8'); a.raw('.type fz_kernel,@function'); a.lines.append('fz_kernel:')
    st()
    if STAMPS:
        for i in range(1, 16): a('s_mov_b32 s%d, %d' % (70 + 2 * i, 0 if ('--cnt' in OPT and i < 4) else -1))
    F1, TC, TS, C2, S2, B3C, B3S, CQ = 16, 24, 32, 40, 48, 56, 64, 72
    XA, XB, XAC, XBC, H, T, TP, ST = 88, 96, 104, 120, 136, 144, 152, 160
    XD, WV, WD = 28, 200, 168
    vSW, vSR, vWST, vHL, vA0, vA1, vAR, vY0, vY1, vYL, vM, vT, vXR, vXM, vE0, vM0, vYE, vZM = 216, 217, 221, 222, 223, 224, 225, 226, 227, 228, 229, 230, 231, 232, 233, 234, 236, 238
    vL16, vSG, vM0m, vPW, vPD, vPR, vKA, vCA, vTK, vMT, vE = 239, 240, 241, 243, 244, 245, 246, 247, 248, 249, 252
    a('s_load_dwordx2 s[4:5], s[0:1], 96'); a('s_load_dwordx2 s[8:9], s[0:1], 0'); a('s_load_dwordx2 s[64:65], s[0:1], 72')
    a('s_cmp_gt_u32 s2, 255'); a('s_cbranch_scc1 fz_end')
    a('v_lshrrev_b32 v2, 6, v0'); a('v_and_b32 v1, 63, v0')
    a('s_lshr_b32 s59, s2, 7')
    a('v_readfirstlane_b32 s3, v2')
    if PFC:
        a('s_and_b32 s20, s2, %d' % (255 if '--pfh0' in OPT else 127)); a('s_cmp_lt_u32 s20, %d' % (8 * PFC)); a('s_cselect_b32 s20, s3, 0'); a('s_cmp_lt_u32 s20, 4'); a('s_cbranch_scc1 fz_pfcback')
        a('s_getpc_b64 s[20:21]')
        a.lines.append('fz_pcb:')
        a('s_sub_u32 s20, s20, fz_pcb-fz_kernel'); a('s_subb_u32 s21, s21, 0')
        a('v_and_b32 v3, 255, v0'); a('v_lshlrev_b32 v3, 7, v3'); a('v_min_u32 v3, fz_codeend-fz_kernel-4, v3')
        a('v_mov_b32 v5, s21'); a('v_add_co_u32 v4, vcc, s20, v3'); a('v_addc_co_u32 v5, vcc, 0, v5, vcc')
        a('global_load_dword v251, v[4:5], off')
        a.lines.append('fz_pfcback:')
    a('s_cmp_lg_u32 s59, 0'); a('s_cbranch_scc1 fz_ldh')
    a('s_load_dwordx2 s[12:13], s[0:1], 80'); a('s_load_dwordx2 s[16:17], s[0:1], 48')
    a.lines.append('fz_ldback:')
    a('s_add_u32 s20, s2, %d' % POFS); a('s_and_b32 s20, s20, 127')
    a('s_lshr_b32 s21, s20, 3'); a('s_add_u32 s21, s21, 1'); a('s_and_b32 s22, s20, 7')
    a('s_sub_u32 s23, s20, 124'); a('s_cmp_ge_u32 s20, 124'); a('s_cselect_b32 s21, 0, s21'); a('s_cselect_b32 s22, s23, s22')
    a('s_lshr_b32 s57, s3, 2'); a('s_or_b32 s23, s57, s59'); a('s_and_b32 s24, s3, 3')
    a('s_lshl_b32 s25, s22, 6'); a('s_add_u32 s25, s25, s21')
    a('s_lshl_b32 s26, s23, 5'); a('s_add_u32 s26, s26, s25')
    a('s_lshl_b32 s27, s24, 9'); a('s_add_u32 s28, s26, s27')
    a('s_sub_u32 s27, 2048, s27'); a('s_sub_u32 s27, s27, s26')
    a('s_lshl_b32 s29, s24, 1'); a('s_add_u32 s29, s29, s23'); a('s_sub_u32 s30, 15, s29')
    a('s_cmp_lt_u32 s24, 2'); a('s_cselect_b32 s27, s28, s27'); a('s_cselect_b32 s31, s29, s30'); a('s_cselect_b32 s30, s30, s29')
    a('s_sub_u32 s28, 2048, s27'); a('s_and_b32 s28, s28, 2047')
    a('s_lshl_b32 s27, s27, 11'); a('s_lshl_b32 s28, s28, 11')
    a('s_mul_i32 s31, s31, %d' % RS); a('s_mul_i32 s30, s30, %d' % RS)
    a('v_lshlrev_b32 %s, 4, v1' % v(vL16))
    srd(8, 2048 * 2048); srd(4, WSB); srd(64, 0x700000)
    a('s_and_b32 s32, s57, s59')
    blk(63, 36); a('s_lshl_b32 s63, s63, 3'); a('s_bfe_u32 s37, s2, 0x30003'); a('s_add_u32 s63, s63, s37')
    a('v_and_b32 v10, 15, v1'); a('v_lshlrev_b32 v10, 4, v10'); a('v_lshrrev_b32 v14, 4, v1'); a('v_lshl_add_u32 v14, v14, 11, v10')
    a('s_lshl_b32 s62, s63, 16'); a('s_and_b32 s37, s3, 3'); a('s_lshl_b32 s37, s37, 9'); a('s_add_u32 s62, s62, s37')
    WQ = [160 + 4 * i for i in range(10)] + [60, 64, 68, 88, 92, 96]
    def wdload(q0=0, q1=8):
        for q in range(q0, q0 if '--xnowd' in OPT else q1):
            for h in range(2): a('buffer_load_dwordx4 %s, v14, s[64:67], s62 offen offset:%d%s' % (v(WQ[2 * q + h], 4), 256 * h, '' if '--wpl' in OPT else ' nt'))
            if q < 7: a('s_add_u32 s62, s62, 8192')
    a('s_mov_b32 s58, 0')
    a('s_waitcnt lgkmcnt(0)')
    st()
    a('s_cmp_eq_u32 s2, %d' % SPID); a('s_cbranch_scc1 fz_spec')
    a.lines.append('fz_specback:')
    def xload():
        a('s_mov_b32 m0, s31'); a('s_nop 0')
        a('buffer_load_dwordx4 %s, s[8:11], s27 offen lds' % v(vL16)); a('buffer_load_dwordx4 %s, s[8:11], s27 offen offset:1024 lds' % v(vL16))
        a('s_mov_b32 m0, s30'); a('s_nop 0')
        a('buffer_load_dwordx4 %s, s[8:11], s28 offen lds' % v(vL16)); a('buffer_load_dwordx4 %s, s[8:11], s28 offen offset:1024 lds' % v(vL16))
    def extras():
        a('v_lshlrev_b32 v13, 3, v0'); a('v_mov_b32 v10, -1'); a('v_mov_b32 v11, -1'); a('s_lshl_b32 s32, s20, 11'); a('s_add_u32 s32, s32, 0x%x' % (COFF - 2048))
        srd(16, 2048)
        a('s_lshl_b32 s33, s24, 10'); a('s_min_u32 s34, s33, 2048'); a('s_add_u32 s34, s34, %d' % WR); a('s_mov_b32 m0, s34')
        a('buffer_store_dwordx2 v[10:11], v13, s[4:7], s32 offen sc1')
        a('buffer_load_dwordx4 %s, s[16:19], s33 offen lds' % v(vL16))
    def latex(): xload(); extras()
    a('s_cmp_lg_u32 %s, 0' % ('s57' if LATEX else 's32')); a('s_cbranch_scc1 fz_nox')
    xload()
    a.lines.append('fz_nox:')
    a('buffer_load_dword v250, off, s[4:7], 0')
    if WE:
        a('s_andn2_b32 s32, s57, s59'); a('s_cbranch_scc0 fz_nowe')
        wdload(0, WE)
        a.lines.append('fz_nowe:')
    if not LATEX:
        a('s_andn2_b32 s32, s3, 3'); a('s_cmp_gt_u32 s32, s59'); a('s_cselect_b32 s32, 1, 0'); a('s_andn2_b32 s32, s32, s59'); a('s_cbranch_scc0 fz_noclr')
        extras()
        a.lines.append('fz_noclr:')
    est(6)
    if BP: a('s_cmp_eq_u32 s57, 0'); a('s_cbranch_scc1 fz_np'); a('s_setprio 1'); a.lines.append('fz_np:')
    a('v_and_b32 v2, 31, v1'); a('v_lshrrev_b32 v3, 5, v1'); a('v_and_b32 v4, 15, v1'); a('v_lshrrev_b32 v5, 4, v1')
    a('v_add_u32 v6, %d, %s' % (CT, v(vL16)))
    TT = XAC
    JT = 128
    def cq_job():
        a('s_and_b32 s32, s3, 1'); a('s_lshl_b32 s33, s32, 2'); a('s_lshl_b32 s32, s32, 11')
        a('v_and_b32 v8, 3, v4'); a('v_lshrrev_b32 v9, 2, v4'); a('v_lshl_add_u32 v8, v8, 3, v9'); a('v_add_u32 v8, s33, v8')
        a('v_cvt_f32_u32 v8, v8'); a('v_mul_f32 v8, %s, v8' % fh(1 / 32)); a('v_cvt_f32_u32 v9, v5'); a('v_mul_f32 v9, 4.0, v9'); a('v_mul_f32 v9, v8, v9')
        angles(8, 9, [0, 1, 2, 3, 16, 17, 18, 19], TT)
        for i in range(8): a('v_sin_f32 %s, %s' % (v(TT + 8 + i), v(TT + i)))
        trig('cos', TT, 8)
        for i in range(16): a('v_mul_f32 %s, %s, %s' % (v(TT + i), fh(1 / 16), v(TT + i)))
        pack(JT, TT, 16); a('v_add_u32 v8, s32, v6')
        for q in range(2): a('ds_write_b128 v8, %s offset:%d' % (v(JT + 4 * q, 4), 1024 * (14 + q)))
    a('v_lshrrev_b32 v10, 1, v2'); a('v_and_b32 v8, 9, v10'); a('v_and_b32 v11, 2, v10'); a('v_lshl_or_b32 v8, v11, 1, v8')
    a('v_bfe_u32 v11, v10, 2, 1'); a('v_lshl_or_b32 v8, v11, 1, v8')
    a('v_and_b32 v12, 1, v5'); a('v_cmp_eq_u32 vcc, 1, v12'); a('v_lshl_add_u32 v9, v4, 1, 1'); a('v_cndmask_b32 v9, v9, 0, vcc')
    a('s_cmp_lt_u32 s3, 5'); a('s_cselect_b64 s[32:33], -1, 0')
    a('s_cmp_lt_u32 s3, 3'); a('s_cselect_b64 s[34:35], -1, 0')
    a('v_cndmask_b32 v9, v9, v2, s[32:33]'); a('v_cndmask_b32 v8, v9, v8, s[34:35]')
    a('s_mov_b32 s36, %s' % fh(1 / 32)); a('s_cmp_gt_u32 s3, 4'); a('s_cselect_b32 s36, %s, s36' % fh(1 / 64))
    a('s_sub_u32 s37, s3, 1'); a('s_cmp_lt_u32 s37, 2'); a('s_cselect_b32 s36, %s, s36' % fh(1 / 1024))
    a('s_cmp_eq_u32 s3, 0'); a('s_cselect_b32 s32, 16, 0'); a('s_cselect_b32 s33, %s, 0' % fh(0.25)); a('s_cselect_b32 s34, 4.0, %s' % fh(8.0)); a('s_cselect_b32 s35, %s, 4.0' % fh(8.0))
    a('v_cmp_eq_u32 vcc, 1, v2'); a('v_mov_b32 v10, s32'); a('v_cndmask_b32 v10, 0, v10, vcc'); a('v_add_u32 v8, v8, v10')
    a('v_cvt_f32_u32 v8, v8'); a('v_mul_f32 v8, s36, v8')
    a('s_cmp_eq_u32 s3, 2'); a('s_cselect_b32 s32, 0x80000000, 0'); a('v_lshlrev_b32 v10, 31, v2'); a('v_and_b32 v10, s32, v10'); a('v_xor_b32 v8, v10, v8')
    a('v_and_b32 v10, 1, v2'); a('v_cvt_f32_u32 v10, v10'); a('v_mul_f32 v10, s33, v10')
    a('s_cmp_eq_u32 s3, 1'); a('s_cselect_b32 s33, %s, 0' % fh(0.25)); a('v_mov_b32 v11, s33'); a('v_cndmask_b32 v10, v10, v11, vcc')
    a('s_cmp_eq_u32 s3, 5'); a('s_cselect_b32 s33, %s, 0' % fh(0.25)); a('v_cvt_f32_u32 v12, v12'); a('v_fma_f32 v10, v12, s33, v10')
    a('s_cmp_eq_u32 s3, 6'); a('s_cselect_b32 s33, %s, 0' % fh(0.25))
    a('s_cmp_eq_u32 s3, 2'); a('s_cselect_b32 s33, %s, s33' % fh(-0.25)); a('s_cmp_eq_u32 s3, 4'); a('s_cselect_b32 s33, %s, s33' % fh(-0.25))
    a('v_add_f32 v10, s33, v10'); a('v_cvt_f32_u32 v11, v3'); a('v_mul_f32 v11, s35, v11'); a('v_fma_f32 v9, v8, v11, v10')
    a('v_mul_f32 v10, s34, v8'); a('v_mul_f32 v11, %s, v8' % fh(16.0))
    angles(8, 9, [0, 1, 2, 3], TT)
    for i in range(4): a('v_add_f32 %s, %s, v10' % (v(TT + 4 + i), v(TT + i)))
    for i in range(8): a('v_add_f32 %s, %s, v11' % (v(TT + 8 + i), v(TT + i)))
    est(7)
    trig('cos', TT, 16)
    a('s_lshl_b32 s32, s3, 11'); a('v_add_u32 v8, s32, v6')
    a('s_cmp_eq_u32 s3, 0'); a('s_cbranch_scc1 fz_jb')
    pack(JT, TT, 16)
    a.lines.append('fz_jend:')
    for q in range(2): a('ds_write_b128 v8, %s offset:%d' % (v(JT + 4 * q, 4), 1024 * q))
    B1, TC2, TS2 = 16, 20, 24
    vA = [vA0, vA1, 100, 101]
    def sync_add(val):
        a('v_mov_b32 v10, %d' % val); a('s_mov_b64 exec, 1'); a('ds_add_u32 v15, v10'); a('s_mov_b64 exec, -1')
    def SETA():
        a('s_and_b32 s32, s3, 3'); a('s_lshr_b32 s33, s3, 2'); a('s_lshl_b32 s33, s33, 4'); a('s_add_u32 s33, s33, s32')
        a('v_and_b32 v8, 12, v4'); a('v_bfe_u32 v9, v4, 1, 1'); a('v_lshl_add_u32 v8, v9, 5, v8'); a('v_add_u32 v8, s33, v8')
        a('v_cvt_f32_u32 v8, v8'); a('v_and_b32 v12, 1, v1'); a('v_cvt_f32_u32 v9, v12'); a('v_lshlrev_b32 v13, 2, v5'); a('v_cvt_f32_u32 v10, v13')
        a('v_mul_f32 v11, %s, v8' % fh(1 / 64)); a('v_mul_f32 v9, %s, v9' % fh(0.25)); a('v_fma_f32 v9, v11, v10, v9')
        TT = XAC
        angles(11, 9, [0, 1, 2, 3], TT + 24)
        a('v_mul_f32 v11, %s, v8' % fh(1 / 2048)); a('v_lshlrev_b32 v9, 31, v1'); a('v_xor_b32 v11, v9, v11'); a('v_mul_f32 v9, v11, v10')
        angles(11, 9, [0, 1, 2, 3, 16, 17, 18, 19], TT + 8)
        for i in range(8): a('v_%s_f32 %s, %s' % ('sin' if i & 1 else 'cos', v(TT + i), v(TT + 24 + (i >> 1))))
        for i in range(8): a('v_sin_f32 %s, %s' % (v(TT + 16 + i), v(TT + 8 + i)))
        trig('cos', TT + 8, 8)
        pack(B1, TT, 24)
        a('v_lshrrev_b32 v8, 3, v1'); a('v_mul_u32_u24 %s, %d, v8' % (v(vHL), PS)); a('v_and_b32 v9, %d, v1' % (3 if WLIN else 7)); a('v_lshl_add_u32 %s, v9, 4, %s' % (v(vHL), v(vHL)))
        if WLIN: a('v_bfe_u32 v9, v1, 2, 1'); a('v_lshl_add_u32 %s, v9, 13, %s' % (v(vHL), v(vHL)))
        a('s_mul_i32 s60, s3, %d' % (32 * PS)); a('s_lshl_b32 s32, s20, %d' % (6 if WLIN else 7)); a('s_add_u32 s60, s60, s32'); a('s_add_u32 s60, s60, 0x%x' % WOFF); a('s_add_u32 s61, s60, %d' % (8 * PS)); a('s_add_u32 s16, s60, %d' % (16 * PS)); a('s_add_u32 s17, s60, %d' % (24 * PS))
        a('v_lshlrev_b32 v8, 1, v8'); a('v_bfe_u32 v9, v1, 2, 1'); a('v_add_u32 v8, v8, v9'); a('s_lshl_b32 s32, s3, 2'); a('s_add_u32 s32, s32, 1')
        a('v_lshl_add_u32 v8, v8, 5, s32')
        a('v_cmp_eq_u32 vcc, 1, v12')
        a('v_bfe_u32 v9, v1, 1, 1'); a('v_mul_u32_u24 v9, %d, v9' % CPS); a('v_add_u32 v9, %d, v9' % AB)
        a('s_cmp_eq_u32 s3, 3'); a('s_cselect_b32 s32, 272, 0')
        for u, dst in enumerate(vA):
            if u == 3: a('v_mul_u32_u24 v10, s32, v3'); a('v_sub_u32 v8, v8, v10')
            if u: a('v_add_u32 v8, 1, v8')
            a('v_sub_u32 v10, 512, v8'); a('v_cndmask_b32 v10, v8, v10, vcc')
            if u == 3: a('v_lshrrev_b32 v11, 1, v10'); a('v_and_b32 v11, 256, v11'); a('v_sub_u32 v10, v10, v11')
            a('v_and_b32 v11, 16, v10'); a('v_lshl_add_u32 v11, v11, 6, v9'); a('v_lshrrev_b32 v12, 7, v10'); a('v_lshl_add_u32 v11, v12, 8, v11')
            a('v_and_b32 v12, 15, v10'); a('v_lshl_add_u32 v11, v12, 4, v11'); a('v_bfe_u32 v12, v10, 5, 2'); a('v_lshl_add_u32 %s, v12, 2, v11' % v(dst))
        a('s_and_b32 s32, s3, 3'); a('s_lshl_b32 s32, s32, 11'); a('s_add_u32 s32, s32, %d' % AB); a('v_add_u32 %s, s32, %s' % (v(vAR), v(vL16)))
        if not YLIN:
            a('v_add_u32 v8, s33, v13')
            a('v_sub_u32 v9, 32, v8'); a('v_min_u32 v9, v8, v9')
            a('v_and_b32 v10, 15, v8'); a('v_cmp_eq_u32 s[32:33], 0, v10')
            a('v_cmp_lt_u32 s[34:35], 16, v8')
            a('v_lshlrev_b32 v10, 10, v9'); a('v_subrev_u32 v10, 1024, v10'); a('v_mov_b32 v11, %d' % (124 * 128)); a('v_cmp_eq_u32 vcc, 0, v8'); a('v_cndmask_b32 v10, v10, v11, vcc')
            a('v_and_b32 v11, 3, v1'); a('v_lshl_add_u32 v10, v11, 4, v10')
            a('v_lshrrev_b32 v11, 2, v4'); a('v_lshlrev_b32 v12, 7, v11')
            for tau, dst in ((0, vY0), (1, vY1)):
                if tau: a('s_or_b64 s[34:35], s[34:35], s[32:33]'); a('v_add_u32 v12, 512, v12')
                a('v_sub_u32 v13, %d, v12' % (7 * 128 + 64))
                a('v_cndmask_b32 v13, v12, v13, s[34:35]'); a('v_add_u32 %s, v10, v13' % v(dst))
        a('s_mul_i32 s56, s20, %d' % PS); a('s_add_u32 s56, s56, 0x%x' % YOFF)
        if YLIN: a('s_lshl_b32 s32, s3, 11'); a('s_add_u32 s56, s56, s32')
        a('v_mov_b32 %s, 0x30003' % v(vMT))
        for k in range(4): a('v_mov_b32 %s, %s' % (v(vE + k), s(44 + k)))
        a('s_waitcnt lgkmcnt(0)')
    def SETB(sfx):
        a('v_sub_u32 v8, 15, v4'); a('v_min_u32 v8, v4, v8')
        a('v_and_b32 v9, 1, v8'); a('v_lshlrev_b32 v9, 5, v9'); a('v_lshrrev_b32 v10, 1, v8'); a('v_lshl_add_u32 v9, v10, 9, v9'); a('v_add_u32 v9, s25, v9')
        a('v_sub_u32 v10, 2048, v9'); a('v_cmp_lt_u32 s[34:35], 7, v4'); a('v_cndmask_b32 %s, v9, v10, s[34:35]' % v(vT))
        a('v_mov_b32 v9, v4'); a('v_mov_b32 v10, s20')
        a('s_cmp_lg_u32 s21, 0'); a('s_cbranch_scc0 fz_spec3%s' % sfx)
        a.lines.append('fz_spec3back%s:' % sfx)
        if YLIN:
            a('v_mul_u32_u24 v11, %d, v5' % (4 * PS)); a('v_and_b32 v10, 0xc0, %s' % v(vT)); a('v_add_u32 v11, v11, v10')
            for pos, wid, dst in ((0, 2, 11), (4, 1, 13), (8, 1, 10), (2, 2, 8), (9, 2, 4)):
                a('v_bfe_u32 v10, %s, %d, %d' % (v(vT), pos, wid)); a('v_lshl_add_u32 v11, v10, %d, v11' % dst)
            a('v_bfe_u32 v9, %s, 5, 1' % v(vT)); a('v_lshl_add_u32 %s, v9, 3, v11' % v(vYL))
        else:
            a('v_lshlrev_b32 v10, 7, v10'); a('v_lshl_add_u32 v10, v9, 3, v10'); a('v_mul_u32_u24 v11, %d, v5' % (4 * PS)); a('v_add_u32 %s, v10, v11' % v(vYL))
        a('v_and_b32 v9, 1, v9'); a('v_cmp_eq_u32 vcc, 1, v9')
        a('v_mov_b32 v9, s44'); a('v_mov_b32 v10, s46'); a('v_cndmask_b32 %s, v9, v10, vcc' % v(vYE))
        a('v_mov_b32 v9, s45'); a('v_mov_b32 v10, s47'); a('v_cndmask_b32 %s, v9, v10, vcc' % v(vYE + 1))
        a('s_lshl_b32 s32, s3, 2'); a('v_add_u32 v8, s32, v5')
        a('v_lshlrev_b32 v9, 6, v8')
        a('v_cmp_gt_u32 vcc, 16, v8'); a('v_cndmask_b32 v10, 0, 32, vcc'); a('v_add_u32 v10, v9, v10')
        a('v_sub_u32 v11, 2048, v10'); a('v_cmp_eq_u32 vcc, 16, v8'); a('v_cndmask_b32 v11, v11, 0, vcc')
        a('v_mov_b32 v12, 0xffff0000'); a('v_cndmask_b32 %s, -1, v12, vcc' % v(vZM))
        a('v_sub_u32 v12, %d, v9' % (2048 - 30))
        a('v_mul_u32_u24 v13, %d, v4' % RS)
        a('v_add_u32 %s, v13, v9' % v(vXR)); a('v_add_u32 %s, v13, v12' % v(vXM)); a('v_add_u32 %s, v13, v10' % v(vE0)); a('v_add_u32 v241, v13, v11')
        a('s_lshl_b32 s32, s3, 8'); a('s_add_u32 s32, s32, %d' % PR)
        a('v_lshlrev_b32 v9, 4, v4'); a('v_add_u32 v10, s32, v9'); a('v_add_u32 v11, %d, %s' % (TRASH, v(vL16)))
        a('v_cmp_gt_u32 vcc, 16, v1'); a('v_cndmask_b32 %s, v11, v10, vcc' % v(vPW))
        a('v_lshrrev_b32 v12, 2, v4'); a('v_cmp_eq_u32 vcc, v12, v5'); a('v_cndmask_b32 %s, v11, v10, vcc' % v(vPD))
        a('v_lshrrev_b32 v12, 5, v1'); a('v_lshl_add_u32 v10, v12, 10, v9'); a('v_add_u32 %s, %d, v10' % (v(vPR), PR))
        a('v_and_b32 v9, 1, v1'); a('v_cmp_eq_u32 s[28:29], 1, v9'); a('v_and_b32 v9, 2, v1'); a('v_cmp_eq_u32 s[30:31], 2, v9')
        a('s_lshl_b32 s37, s3, 2'); a('v_add_u32 v9, s37, v5'); a('v_mul_u32_u24 %s, %d, v9' % (v(vKA), KS))
        a('s_lshl_b32 s26, s20, %d' % KRL); a('s_add_u32 s26, s26, 0x%x' % KOFF)
        a('v_lshlrev_b32 %s, 4, v5' % v(vCA)); a('s_lshl_b32 s27, s20, 11'); a('s_lshl_b32 s37, s3, 8'); a('s_add_u32 s27, s27, s37'); a('s_add_u32 s27, s27, 0x%x' % COFF)
        a('v_sub_u32 %s, 2047, %s' % (v(vTK), v(vT)))
        srd(12, 2048 * 2048)
        a('s_mul_i32 s52, s3, %d' % (16 * PS)); a('s_add_u32 s52, s52, 0x%x' % YOFF)
        for jx in range(1, 4): a('s_add_u32 %s, s52, %d' % (s(52 + jx), jx * PS))
        a('s_mov_b32 s23, s63')
        a('s_getreg_b32 s24, hwreg(HW_REG_XCC_ID)'); a('s_and_b32 s24, s24, 15')
        a('v_lshlrev_b32 v10, 4, v0'); a('v_min_u32 v10, 4336, v10'); a('v_add_u32 v10, %d, v10' % ACT)
        for k in range(4): a('v_mov_b32 %s, 0' % v(XAC + k))
        a('ds_write_b128 v10, %s' % v(XAC, 4))
    def SET2():
        XP = 116
        a('ds_read_b128 %s, %s' % (v(XP, 4), v(vXR))); a('ds_read_b128 %s, %s offset:16' % (v(XP + 4, 4), v(vXR)))
        a('ds_read_u16_d16_hi %s, %s' % (v(XD + 16), v(vM0m)))
        for e in range(1, 16): a('ds_read_u16_d16_hi %s, %s offset:%d' % (v(XD + 16 + e), v(vXM), 2 * (15 - e)))
        a('ds_read_u16_d16_hi %s, %s' % (v(XD), v(vE0)))
        a('v_mul_u32_u24 v13, %d, v4' % RS); a('v_subrev_u32 v13, %d, v13' % WR)
        for r, src in ((9, vXR), (10, vE0), (11, vM0m), (12, vXM)): a('v_sub_u32 %s, %s, v13' % (v(r), v(src)))
        a('s_mov_b32 s36, 0xffff0000')
        a('s_waitcnt lgkmcnt(0)')
        a('ds_read_b128 %s, v9' % v(WV, 4)); a('ds_read_b128 %s, v9 offset:16' % v(WV + 4, 4))
        a('ds_read_u16_d16 %s, v11' % v(WV + 8))
        for e in range(1, 16): a('ds_read_u16_d16%s %s, v12 offset:%d' % ('_hi' if e & 1 else '', v((XP + 8 if e & 1 else WV + 8) + (e >> 1)), 2 * (15 - e)))
        a('ds_read_u16_d16 v13, v10')
        for k in range(8):
            if k: a('v_lshlrev_b32 %s, 16, %s' % (v(XD + 2 * k), v(XP + k)))
            a('v_and_b32 %s, s36, %s' % (v(XD + 2 * k + 1), v(XP + k)))
        a('v_cmp_eq_u32 vcc, 1, v4'); a('v_mov_b32 v9, s42'); a('v_cndmask_b32 v9, 0, v9, vcc')
        for k in range(4): a('v_mov_b32 %s, s42' % v(XP + k))
        a('v_cmp_eq_u32 vcc, 0, v4')
        a('s_waitcnt lgkmcnt(0)')
        a('v_and_or_b32 %s, %s, s36, v13' % (v(WV), v(WV)))
        for k in range(8): a('v_or_b32 %s, %s, %s' % (v(WV + 8 + k), v(WV + 8 + k), v(XP + 8 + k)))
        for k in range(16): a('v_cndmask_b32 %s, v9, %s, vcc' % (v(WV + k), v(WV + k)))
        for q in range(4): a('v_mfma_f32_16x16x32_bf16 %s, %s, %s, %s' % (v(XP + 4, 4), v(WV + 4 * q, 4), v(XP, 4), v(XP + 4, 4) if q else '0'))
        a('ds_write_b32 %s, %s offset:12' % (v(vPW), v(XP + 4)))
    a('v_mov_b32 v15, %d' % SYNC); a('v_mov_b32 v10, 0'); a('ds_write_b32 v15, v10')
    est(8)
    a('s_waitcnt lgkmcnt(0)')
    a('s_barrier')
    est(10)
    a('v_lshlrev_b32 %s, 31, v1' % v(vSG)); a('v_lshrrev_b32 v10, 16, %s' % v(vSG)); a('v_or_b32 %s, %s, v10' % (v(vSG), v(vSG)))
    a('v_mov_b32 %s, 0xfffcfffc' % v(vM))
    a('v_mov_b32 v242, 0xffff0000'); a('s_mov_b32 s42, 0x3f803f80')
    a('s_cmp_lg_u32 s57, 0'); a('s_cbranch_scc1 fz_nc1')
    for q in range(14): a('ds_read_b128 %s, v6 offset:%d' % (v(F1 + 4 * q, 4), 1024 * q))
    a('v_lshlrev_b32 v7, 9, v3'); a('v_bfe_u32 v10, v1, 2, 2'); a('v_lshl_add_u32 v7, v10, 6, v7')
    a('v_and_b32 v10, 1, v5'); a('v_lshl_add_u32 v7, v10, 5, v7'); a('v_and_b32 v10, 3, v1'); a('v_lshl_add_u32 v7, v10, 3, v7'); a('v_add_u32 v7, s31, v7')
    a('v_lshlrev_b32 v8, 9, v3'); a('v_lshl_add_u32 v8, v2, 1, v8'); a('v_sub_u32 v9, 2048, v8'); a('v_and_b32 v9, 2047, v9'); a('v_add_u32 v9, s30, v9')
    a('s_add_u32 s32, s30, %d' % (2048 - 64 * 23)); a('v_sub_u32 v8, s32, v8')
    a('v_cmp_eq_u32 vcc, 0, v2'); a('v_cndmask_b32 %s, 0, -2.0, vcc' % v(vM0))
    a('v_mov_b32 %s, %s' % (v(vM0 + 1), fh(256e-5)))
    a('s_lshr_b32 s32, s24, 1'); a('s_lshl_b32 s32, s32, 6'); a('s_mul_i32 s33, s3, 2304'); a('s_add_u32 s32, s32, s33'); a('s_add_u32 s32, s32, %d' % SB)
    a('v_lshl_add_u32 v10, v3, 1, v1'); a('v_lshlrev_b32 v10, 4, v10'); a('v_add_u32 %s, s32, v10' % v(vSW))
    a('v_bfe_u32 v10, v0, 2, 1'); a('v_mul_u32_u24 v10, 34, v10'); a('v_lshrrev_b32 v11, 4, v0'); a('v_add_u32 v10, v10, v11'); a('v_lshlrev_b32 v10, 4, v10')
    a('v_bfe_u32 v11, v0, 3, 1'); a('v_lshl_add_u32 v10, v11, 3, v10'); a('v_bfe_u32 v11, v0, 1, 1'); a('v_lshl_add_u32 v10, v11, 2, v10')
    a('v_and_b32 v12, 1, v0')
    a('s_mov_b32 s33, %d' % (4 * 2304)); a('s_cmp_eq_u32 s2, %d' % SPID)
    for k in range(4):
        pm = 1152 if k >= 2 else 0
        o0 = k * 2304 + pm + (64 if k >= 2 else 0); o1 = (3 - k) * 2304 + pm + (64 if (3 - k) >= 2 else 0)
        a('s_cselect_b32 s32, s33, 0x%x' % ((o1 - o0) & 0xffffffff))
        a('v_mul_lo_u32 v11, v12, s32'); a('v_add_u32 %s, v10, v11' % v(vSR + k)); a('v_add_u32 %s, %d, %s' % (v(vSR + k), SB + o0, v(vSR + k)))
    if WLIN: a('v_lshlrev_b32 %s, 4, v0' % v(vWST))
    else: a('v_lshrrev_b32 v10, 2, v0'); a('v_and_b32 v11, 3, v0'); a('v_lshlrev_b32 v11, 4, v11'); a('v_lshl_add_u32 %s, v10, 7, v11' % v(vWST))
    a('s_mul_i32 s52, s20, %d' % PS); a('s_lshl_b32 s33, s59, %d' % (13 if WLIN else 6)); a('s_add_u32 s52, s52, s33'); a('s_add_u32 s52, s52, 0x%x' % WOFF)
    a('s_add_u32 s53, s52, %d' % (4096 if WLIN else 8192))
    def tags2():
        tags()
        a('s_mov_b32 s38, 0x404'); a('s_cmp_eq_u32 s2, %d' % SPID); a('s_cselect_b32 s39, 8, 4'); a('s_cselect_b32 s38, 8, s38')
    est(9)
    for i in range(4): a('v_mov_b32 %s, 0' % v(ST + i))
    a('s_setprio 3')
    st()
    if '--early' in OPT: a('s_waitcnt lgkmcnt(0)'); est(11)
    a('s_waitcnt vmcnt(0) lgkmcnt(0)')
    st()
    for jx in range(2):
        for hh in range(2): a('ds_read_b64_tr_b16 %s, v7 offset:%d' % (v(XA + 4 * jx + 2 * hh, 2), 1024 * jx + 256 * hh))
    for jx in range(2):
        for i in range(8):
            op = 'ds_read_u16_d16_hi' if i & 1 else 'ds_read_u16_d16'
            dst = (H if i & 1 else XB) + 4 * jx + (i >> 1)
            if jx == 0 and i == 0: a('%s %s, v9' % (op, v(dst)))
            else: a('%s %s, v8 offset:%d' % (op, v(dst), 64 * (23 - 16 * jx - i)))
        if jx == 0: a('s_waitcnt lgkmcnt(8)')
        if jx == 0:
            for j2 in range(2): a('v_mfma_f32_32x32x16_bf16 %s, %s, %s, %s' % (v(XAC, 16), v(XA + 4 * j2, 4), v(F1 + 4 * j2, 4), v(XAC, 16) if j2 else '0'))
    for i in range(8):
        a('v_dot2_f32_bf16 %s, %s, s42, %s' % (v(ST), v(XA + i), v(ST))); a('v_dot2_f32_bf16 %s, %s, %s, %s' % (v(ST + 1), v(XA + i), v(XA + i), v(ST + 1)))
    a('s_waitcnt lgkmcnt(0)')
    for i in range(8): a('v_or_b32 %s, %s, %s' % (v(XB + i), v(XB + i), v(H + i)))
    for j2 in range(2): a('v_mfma_f32_32x32x16_bf16 %s, %s, %s, %s' % (v(XBC, 16), v(XB + 4 * j2, 4), v(F1 + 4 * j2, 4), v(XBC, 16) if j2 else '0'))
    for i in range(8):
        a('v_dot2_f32_bf16 %s, %s, s42, %s' % (v(ST + 2), v(XB + i), v(ST + 2))); a('v_dot2_f32_bf16 %s, %s, %s, %s' % (v(ST + 3), v(XB + i), v(XB + i), v(ST + 3)))
    est(12)
    a('v_permlane32_swap_b32 %s, %s' % (v(ST), v(ST + 2))); a('v_permlane32_swap_b32 %s, %s' % (v(ST + 1), v(ST + 3)))
    a('v_add_f32 %s, %s, %s' % (v(ST), v(ST), v(ST + 2))); a('v_add_f32 %s, %s, %s' % (v(ST + 1), v(ST + 1), v(ST + 3)))
    a('v_permlane16_swap_b32 %s, %s' % (v(ST), v(ST + 1)))
    a('v_add_f32 %s, %s, %s' % (v(ST), v(ST), v(ST + 1)))
    for pat in ['quad_perm:[1,0,3,2]', 'quad_perm:[2,3,0,1]', 'row_half_mirror', 'row_mirror']:
        a('v_add_f32_dpp %s, %s, %s %s %s' % (v(ST), v(ST), v(ST), pat, DPPF))
    a('s_mov_b32 s43, %s' % fh(256 / 1024))
    a('v_mov_b32 %s, %s' % (v(ST + 1), v(ST)))
    a('v_permlane16_swap_b32 %s, %s' % (v(ST), v(ST + 1)))
    a('v_mul_f32 %s, %s, %s' % (v(ST), fh(16 / 1024), v(ST)))
    a('v_fma_f32 %s, %s, s43, %s' % (v(ST + 1), v(ST + 1), v(vM0 + 1)))
    a('v_fma_f32 %s, -%s, %s, %s' % (v(ST + 1), v(ST), v(ST), v(ST + 1)))
    a('v_rsq_f32 %s, %s' % (v(ST + 1), v(ST + 1)))
    a('v_mul_f32 %s, %s, %s' % (v(ST), v(ST), v(ST + 1)))
    a('v_readlane_b32 s32, %s, 0' % v(ST + 1)); a('v_readlane_b32 s34, %s, 32' % v(ST + 1)); a('v_readlane_b32 s36, %s, 0' % v(ST)); a('v_readlane_b32 s37, %s, 32' % v(ST))
    a('v_mul_f32 %s, s36, %s' % (v(ST + 4), v(vM0))); a('v_fmac_f32 %s, s37, %s' % (v(ST + 4), v(vM0)))
    for i in range(8): a('v_pk_fma_f32 %s, %s, s[32:33], %s op_sel_hi:[1,0,0]' % (v(XAC + 2 * i, 2), v(XAC + 2 * i, 2), v(ST + 4, 2)))
    for i in range(8): a('v_pk_fma_f32 %s, %s, s[34:35], %s op_sel_hi:[1,0,1]' % (v(XAC + 2 * i, 2), v(XBC + 2 * i, 2), v(XAC + 2 * i, 2)))
    est(13)
    pack(H, XAC, 16)
    for i in range(8): a('v_mov_b32_dpp %s, %s %s' % (v(TP + i), v(H + i), X1))
    D3C, D3S = XBC, XBC + 4
    for i in range(8): a('v_pk_mul_f16 %s, %s, %s' % (v(T + i), v(H + i), v(TC + i)))
    for j2 in range(2):
        a('v_mfma_f32_16x16x32_f16 %s, %s, %s, %s' % (v(D3C, 4), v(H + 4 * j2, 4), v(B3C + 4 * j2, 4), v(D3C, 4) if j2 else '0'))
        for i in range(4): a('v_pk_fma_f16 %s, %s, %s, %s' % (v(T + 4 * j2 + i), v(TP + 4 * j2 + i), v(TS + 4 * j2 + i), v(T + 4 * j2 + i)))
    a('v_mfma_f32_32x32x16_f16 %s, %s, %s, 0' % (v(XAC, 16), v(T, 4), v(C2, 4)))
    for i in range(4): a('v_xor_b32_dpp %s, %s, %s %s' % (v(TP + i), v(T + i), v(vSG), X1))
    a('v_mfma_f32_32x32x16_f16 %s, %s, %s, %s' % (v(XAC, 16), v(T + 4, 4), v(C2 + 4, 4), v(XAC, 16)))
    for i in range(4, 8): a('v_xor_b32_dpp %s, %s, %s %s' % (v(TP + i), v(T + i), v(vSG), X1))
    for j2 in range(2): a('v_mfma_f32_32x32x16_f16 %s, %s, %s, %s' % (v(XAC, 16), v(TP + 4 * j2, 4), v(S2 + 4 * j2, 4), v(XAC, 16)))
    for j2 in range(2): a('v_mfma_f32_16x16x32_f16 %s, %s, %s, %s' % (v(D3S, 4), v(H + 4 * j2, 4), v(B3S + 4 * j2, 4), v(D3S, 4) if j2 else '0'))
    est(14)
    tags2()
    a('s_mov_b64 vcc, 0xffff')
    for p in (7, 6, 5, 4, 3, 2, 1): a('v_cvt_pk_f16_f32 %s, %s, %s' % (v(H + p), v(XAC + 2 * p), v(XAC + 2 * p + 1)))
    a('v_cndmask_b32 %s, %s, %s, vcc' % (v(XAC), v(XAC), v(D3C + 1))); a('v_cndmask_b32 %s, %s, %s, vcc' % (v(XAC + 1), v(XAC + 1), v(D3S + 1)))
    for p in (3, 2, 1, 0):
        if p == 0: a('v_cvt_pk_f16_f32 %s, %s, %s' % (v(H), v(XAC), v(XAC + 1)))
        a('v_pk_add_f16 %s, %s, %s op_sel:[0,1] op_sel_hi:[1,0] neg_lo:[0,1]' % (v(T + p), v(H + 2 * p), v(H + 2 * p + 1)))
        a('v_pk_add_f16 %s, %s, %s op_sel:[0,1] op_sel_hi:[1,0] neg_hi:[1,0]' % (v(T + 4 + p), v(H + 2 * p), v(H + 2 * p + 1)))
    a('ds_write_b128 %s, %s' % (v(vSW), v(T, 4))); a('ds_write_b128 %s, %s offset:1152' % (v(vSW), v(T + 4, 4)))
    a('s_waitcnt lgkmcnt(0)')
    sync_add(1)
    a('s_cmp_gt_u32 s3, 3'); a('s_cbranch_scc1 fz_bsp0')
    a.lines.append('fz_sy:')
    a('ds_read_b32 v10, v15')
    a('s_waitcnt lgkmcnt(0)')
    a('v_and_b32 v10, 0xff, v10'); a('v_cmp_ne_u32 vcc, s39, v10')
    a('s_cbranch_vccnz fz_sy')
    st.n = 4; st()
    Z = XAC
    for rd in range(2):
        for k in range(4): a('ds_read_b32 %s, %s offset:%d' % (v(Z + 4 * rd + k), v(vSR + k), 256 * rd))
    for rd in range(2):
        z = Z + 4 * rd; u = Z + 8 + 8 * rd; o = u + 4
        a('s_waitcnt lgkmcnt(%d)' % (4 - 4 * rd))
        a('v_pk_add_f16 %s, %s, %s' % (v(u), v(z), v(z + 2))); a('v_pk_add_f16 %s, %s, %s' % (v(u + 2), v(z + 1), v(z + 3)))
        a('v_pk_add_f16 %s, %s, %s neg_lo:[0,1] neg_hi:[0,1]' % (v(u + 1), v(z), v(z + 2))); a('v_pk_add_f16 %s, %s, %s neg_lo:[0,1] neg_hi:[0,1]' % (v(u + 3), v(z + 1), v(z + 3)))
        a('v_pk_add_f16 %s, %s, %s' % (v(o), v(u), v(u + 2))); a('v_pk_add_f16 %s, %s, %s neg_lo:[0,1] neg_hi:[0,1]' % (v(o + 2), v(u), v(u + 2)))
        a('v_pk_add_f16 %s, %s, %s op_sel:[0,1] op_sel_hi:[1,0] neg_hi:[0,1]' % (v(o + 1), v(u + 1), v(u + 3)))
        a('v_pk_add_f16 %s, %s, %s op_sel:[0,1] op_sel_hi:[1,0] neg_lo:[0,1]' % (v(o + 3), v(u + 1), v(u + 3)))
        for k in range(4): a('v_add_u32 %s, 0x20002, %s' % (v(o + k), v(o + k)))
        for k in range(4): a('v_and_or_b32 %s, %s, %s, %s' % (v(o + k), v(o + k), v(vM), s(44 + k)))
        a('buffer_store_dwordx4 %s, %s, s[4:7], %s offen sc1' % (v(o, 4), v(vWST), s(52 + rd)))
    a('s_cmp_lg_u32 s59, 0'); a('s_cbranch_scc1 ffn')
    st()
    SETA()
    a('s_waitcnt vmcnt(0)')
    st()
    R = XAC
    def h1i(u): a('buffer_load_dwordx4 %s, %s, s[4:7], %s offen sc1' % (v(R + 4 * u, 4), v(vHL), s((60, 61, 16, 17)[u])))
    def h1c(u):
        for k in range(4): a('v_xor_b32 %s, %s, %s' % (v(R + 4 * u + k), v(vE + k), v(R + 4 * u + k)))
        a('v_or3_b32 v10, %s, %s, %s' % (v(R + 4 * u), v(R + 4 * u + 1), v(R + 4 * u + 2)))
        a('v_bitop3_b32 v10, v10, %s, %s bitop3:0xa8' % (v(R + 4 * u + 3), v(vMT)))
        a('v_cmp_ne_u32 vcc, 0, v10')
    def h1a(u):
        for k in range(4): a('ds_write_b32 %s, %s offset:%d' % (v(vA[u]), v(R + 4 * u + k), 2048 * k))
    if EP:
        a('s_bitcmp1_b32 s2, 2'); a('s_cbranch_scc1 fz_p1_ok')
        a('s_add_u32 s32, s60, %d' % ((((EP - 1) + POFS) & 7) * PS + 64 * (EP > 8))); a('v_mov_b32 v9, 0')
        a.lines.append('fz_p1:')
        a('buffer_load_dword v10, v9, s[4:7], s32 offen sc1')
        a('s_waitcnt vmcnt(0)')
        a('v_xor_b32 v10, %s, v10' % v(vE)); a('v_and_b32 v10, %s, v10' % v(vMT)); a('v_cmp_ne_u32 vcc, 0, v10')
        poll_retry('fz_p1')
        a('s_mov_b32 s58, 0')
    for u in range(4): h1i(u)
    prog_poll('fz_h1', 4, h1i, h1c, h1a)
    a('s_waitcnt lgkmcnt(0)')
    a('s_setprio 0')
    a.lines.append('fz_hb:')
    a('s_barrier')
    st.n = 7; st()
    A2, V2, H2, T2, TP2, D2 = 104, 120, 136, 144, 152, 104
    for cp in range(2):
        for hf in range(2): a('ds_read_b128 %s, %s offset:%d' % (v(A2 + 8 * cp + 4 * hf, 4), v(vAR), CPS * cp + 1024 * hf))
    for q in range(4): a('ds_read_b128 %s, v6 offset:%d' % (v(CQ + 4 * q, 4), 1024 * (14 + q)))
    for q in range(4):
        a('s_waitcnt lgkmcnt(%d)' % (7 - q))
        a('v_mfma_f32_16x16x32_f16 %s, %s, %s, 0' % (v(V2 + 4 * q, 4), v(A2 + 4 * q, 4), v(B1, 4)))
    a('s_waitcnt lgkmcnt(0)')
    for cp in range(2):
        pack(H2 + 4 * cp, V2 + 8 * cp, 8)
    for cp in range(2):
        h, t, tp = H2 + 4 * cp, T2 + 4 * cp, TP2 + 4 * cp
        for i in range(4): a('v_pk_mul_f16 %s, %s, %s' % (v(t + i), v(h + i), v(TC2 + i)))
        for i in range(4): a('v_mov_b32_dpp %s, %s %s' % (v(tp + i), v(h + i), X1))
        for i in range(4): a('v_pk_fma_f16 %s, %s, %s, %s' % (v(t + i), v(tp + i), v(TS2 + i), v(t + i)))
        for tau in range(2): a('v_mfma_f32_16x16x32_f16 %s, %s, %s, 0' % (v(D2 + 8 * cp + 4 * tau, 4), v(t, 4), v(CQ + 8 * tau, 4)))
        for i in range(4): a('v_xor_b32_dpp %s, %s, %s %s' % (v(tp + i), v(t + i), v(vSG), X1))
        for tau in range(2): a('v_mfma_f32_16x16x32_f16 %s, %s, %s, %s' % (v(D2 + 8 * cp + 4 * tau, 4), v(tp, 4), v(CQ + 8 * tau + 4, 4), v(D2 + 8 * cp + 4 * tau, 4)))
    O2 = V2
    for tau in range(2):
        for cp in range(2):
            for b in range(2): a('v_cvt_pk_f16_f32 %s, %s, %s' % (v(O2 + 4 * tau + 2 * b + cp), v(D2 + 8 * cp + 4 * tau + 2 * b), v(D2 + 8 * cp + 4 * tau + 2 * b + 1)))
        for k in range(4): a('v_add_u32 %s, 0x20002, %s' % (v(O2 + 4 * tau + k), v(O2 + 4 * tau + k)))
        for k in range(4): a('v_and_or_b32 %s, %s, %s, %s' % (v(O2 + 4 * tau + k), v(O2 + 4 * tau + k), v(vM), s(44 + k)))
        if YLIN: a('buffer_store_dwordx4 %s, %s, s[4:7], s56 offen offset:%d sc1' % (v(O2 + 4 * tau, 4), v(vL16), 1024 * tau))
        else: a('buffer_store_dwordx4 %s, %s, s[4:7], s56 offen sc1' % (v(O2 + 4 * tau, 4), v(vY0 + tau)))
    st()
    a('s_cmp_lg_u32 s57, 0'); a('s_cbranch_scc1 fz_nc3')
    SETB('a')
    a('s_mov_b32 s58, 0')
    a('s_waitcnt vmcnt(0)')
    st()
    YD, YM, HP, Q1, Q2 = 104, 112, 120, 136, 140
    def h2i(jx): a('buffer_load_dwordx2 %s, %s, s[4:7], %s offen sc1' % (v(YD + 2 * jx, 2), v(vYL), s(52 + jx)))
    def h2load():
        for jx in range(4): h2i(jx)
    h2load()
    SET2()
    a.flush(); a('s_branch fz_h2c')
    a.lines.append('fz_h2:')
    h2load()
    a.lines.append('fz_h2c:')
    a('s_mov_b32 s36, %s' % fh(128.0))
    def h2c(jx):
        for k in range(2): a('v_xor_b32 %s, %s, %s' % (v(YD + 2 * jx + k), v(vYE + k), v(YD + 2 * jx + k)))
        a('v_bitop3_b32 v9, %s, %s, %s bitop3:0xa8' % (v(YD + 2 * jx), v(YD + 2 * jx + 1), v(vMT)))
        a('v_cmp_ne_u32 vcc, 0, v9')
    def mix(e, src): a('v_fma_mix_f32 %s, %s, s36, %s op_sel:[%d,0,0] op_sel_hi:[1,0,0]' % (v(XD + e), v(src), v(XD + e), e & 1))
    def smf(q):
        a('v_mfma_f32_16x16x32_bf16 %s, %s, %s, %s' % (v(Q1, 4), v(HP + 4 * q, 4), v(HP + 4 * q, 4), v(Q1, 4) if q else '0'))
        a('v_mfma_f32_16x16x32_bf16 %s, %s, %s, %s' % (v(Q2, 4), v(WV + 4 * q, 4), v(HP + 4 * q, 4), v(Q2, 4) if q else '0'))
    def h2a(jx):
        if jx == 3: st()
        for k in range(2 * jx, 2 * jx + 2): a('v_mov_b32_dpp %s, %s row_mirror %s' % (v(YM + k), v(YD + k), DPPF))
        a('s_cmp_eq_u32 s2, %d' % SPID); a('s_cbranch_scc1 fz_spec4%d' % jx)
        a.lines.append('fz_spec4back%d:' % jx)
        for e in range(4 * jx, 4 * jx + 4): mix(e, YD + (e >> 1))
        if jx == 0: a('v_and_b32 %s, %s, %s' % (v(YM), v(vZM), v(YM)))
        for e in range(4 * jx, 4 * jx + 4): mix(16 + e, YM + (e >> 1))
        pack(HP + 2 * jx, XD + 4 * jx, 4, 'bf16'); pack(HP + 8 + 2 * jx, XD + 16 + 4 * jx, 4, 'bf16')
        if jx & 1: smf(jx >> 1); smf(2 + (jx >> 1))
    prog_poll('fz_h2', 4, h2i, h2c, h2a)
    a('v_cndmask_b32 v9, %s, %s, s[28:29]' % (v(Q1), v(Q1 + 1))); a('v_cndmask_b32 v10, %s, %s, s[28:29]' % (v(Q1 + 2), v(Q1 + 3)))
    a('ds_write_b64 %s, %s' % (v(vPW), v(Q2, 2)))
    a('v_cndmask_b32 v9, v9, v10, s[30:31]')
    a('ds_write_b32 %s, v9 offset:8' % v(vPD))
    a('s_cmp_gt_u32 s3, 3'); a('s_cbranch_scc1 fz_lp'); a('s_setprio 2')
    a.lines.append('fz_lp:')
    a('s_waitcnt lgkmcnt(0)'); a('s_barrier')
    P = 144
    for q in range(4): a('ds_read_b128 %s, %s offset:%d' % (v(P + 4 * q, 4), v(vPR), 256 * q))
    a('s_waitcnt lgkmcnt(2)')
    for h in range(2): a('v_pk_add_f32 %s, %s, %s' % (v(P + 2 * h, 2), v(P + 2 * h, 2), v(P + 4 + 2 * h, 2)))
    a('s_waitcnt lgkmcnt(0)')
    for h in range(2): a('v_pk_add_f32 %s, %s, %s' % (v(P + 8 + 2 * h, 2), v(P + 8 + 2 * h, 2), v(P + 12 + 2 * h, 2)))
    for h in range(2): a('v_pk_add_f32 %s, %s, %s' % (v(P + 2 * h, 2), v(P + 2 * h, 2), v(P + 8 + 2 * h, 2)))
    for k in range(4): a('v_mov_b32 %s, %s' % (v(P + 4 + k), v(P + k)))
    for k in range(4): a('v_permlane32_swap_b32 %s, %s' % (v(P + k), v(P + 4 + k)))
    for h in range(2): a('v_pk_add_f32 %s, %s, %s' % (v(P + 2 * h, 2), v(P + 2 * h, 2), v(P + 4 + 2 * h, 2)))
    KR = 152
    a('v_mul_f32 %s, %s, %s' % (v(P + 1), fh(-1 / 1024), v(P + 1)))
    a('v_mul_f32 %s, %s, %s' % (v(P + 2), fh(1 / 1024), v(P + 2)))
    a('v_fma_f32 %s, -%s, %s, %s' % (v(P + 2), v(P + 1), v(P + 1), v(P + 2)))
    a('v_cvt_pk_bf16_f32 %s, 0, %s' % (v(KR + 1), v(P + 1)))
    rbf(a, P + 2); a('v_add_f32 %s, %s, %s' % (v(P + 2), fh(1e-5), v(P + 2))); rbf(a, P + 2)
    a('v_sqrt_f32 %s, %s' % (v(P + 2), v(P + 2)))
    a('v_fmac_f32 %s, %s, %s' % (v(P), v(KR + 1), v(P + 3)))
    rbf(a, P + 2); a('v_rcp_f32 %s, %s' % (v(KR + 2), v(P + 2)))
    a('v_mov_b32 %s, s40' % v(KR + 3))
    a('v_mul_f32 %s, %s, %s' % (v(P), v(P), v(KR + 2))); rbf(a, P)
    a('v_ashrrev_i32 %s, 31, %s' % (v(P + 1), v(P))); a('v_or_b32 %s, 0x80000000, %s' % (v(P + 1), v(P + 1)))
    a('v_bitop3_b32 %s, %s, %s, %s bitop3:0x28' % (v(KR), v(P), v(P + 1), v(242)))
    a('v_or_b32 %s, %s, %s' % (v(KR), v(KR), v(vTK)))
    a('v_max_u32_dpp %s, %s, %s row_ror:1 %s' % (v(P), v(KR), v(KR), DPPF))
    for k in (2, 4, 8): a('v_max_u32_dpp %s, %s, %s row_ror:%d %s' % (v(P), v(P), v(P), k, DPPF))
    a('v_cmp_eq_u32 vcc, %s, %s' % (v(P), v(KR)))
    a('v_or_b32 %s, s24, %s' % (v(KR + 1), v(KR + 1)))
    a('s_mov_b64 exec, vcc')
    a('buffer_store_dwordx4 %s, %s, s[4:7], s26 offen sc1' % (v(KR, 4), v(vKA)))
    if DB & 2:
        if DB & 4: a('s_cmp_gt_u32 s3, 3'); a('s_cbranch_scc1 fz_nk2')
        a('s_add_u32 s26, s26, %d' % (32 * KS)); a('buffer_store_dwordx4 %s, %s, s[4:7], s26 offen sc1' % (v(KR, 4), v(vKA)))
        if DB & 4: a.lines.append('fz_nk2:')
    for q in range(4): a('buffer_store_dwordx4 %s, %s, s[4:7], s27 offen offset:%d sc1' % (v(HP + 4 * q, 4), v(vCA), 64 * q))
    a('s_mov_b64 exec, -1')
    st()
    a('s_setprio 0')
    a('s_ff1_i32_b64 s37, vcc')
    a('v_add_f32 %s, 1.0, %s' % (v(P), v(KR + 2))); a('v_and_b32 %s, v242, %s' % (v(P + 2), v(KR + 1))); a('v_mul_f32 %s, %s, %s' % (v(P + 2), v(P + 2), v(KR + 2)))
    for k in range(16): a('v_pk_fma_f32 %s, %s, %s, %s op_sel_hi:[1,0,0]' % (v(XD + 2 * k, 2), v(XD + 2 * k, 2), v(P, 2), v(P + 2, 2)))
    OP = 104
    pack(OP, XD, 32, 'bf16')
    a('ds_write_b128 %s, %s' % (v(vXR), v(OP, 4))); a('ds_write_b128 %s, %s offset:16' % (v(vXR), v(OP + 4, 4)))
    a('s_waitcnt lgkmcnt(0)'); a('s_barrier')
    def wtail():
        if W3 < 8 or WL:
            a('s_cmp_lt_u32 s3, 4'); a('s_cbranch_scc1 fz_now4')
            if WL: a('s_bitcmp0_b32 s2, 2'); a('s_cbranch_scc1 fz_now4')
            wdload(8 - WL if WL else W3, 8)
            a.lines.append('fz_now4:')
    if WT == 1: wtail()
    a('ds_write_b16 %s, %s' % (v(vE0), v(OP))); a('ds_write_b16 %s, %s' % (v(vM0m), v(OP + 8)))
    for e in range(1, 16): a('ds_write_b16%s %s, %s offset:%d' % ('_d16_hi' if e & 1 else '', v(vXM), v(OP + 8 + (e >> 1)), 2 * (15 - e)))
    a('s_lshl_b32 s32, s3, 1'); a('s_add_u32 s33, s32, 1')
    a('v_readlane_b32 s34, %s, s32' % v(vT)); a('v_readlane_b32 s35, %s, s33' % v(vT))
    a('s_mul_i32 s38, s3, %d' % (2 * RS)); a('v_add_u32 v9, s38, %s' % v(vL16))
    a('s_lshl_b32 s34, s34, 11'); a('s_lshl_b32 s35, s35, 11')
    a('s_waitcnt lgkmcnt(0)'); a('s_barrier')
    for q in range(4): a('ds_read_b128 %s, v9 offset:%d' % (v(OP + 4 * q, 4), RS * (q >> 1) + 1024 * (q & 1)))
    if WT == 2: wtail()
    OUTF = '' if '--outplain' in OPT else (' nt' if '--outnt' in OPT else ' sc1')
    a('s_lshr_b32 s59, s37, 1'); a('s_xor_b32 s18, s59, 1'); a('s_and_b32 s18, s18, 3')
    if '--wdearly' not in OPT:
        if OLATE:
            a('s_cmp_eq_u32 s59, s3'); a('s_cselect_b32 s38, 112, s23'); a('s_cmp_lt_u32 s38, 112'); a('s_cbranch_scc1 fz_sk1')
        else:
            a('s_cmp_lt_u32 s23, 112'); a('s_cselect_b32 s38, s18, 8'); a('s_cmp_eq_u32 s38, s3'); a('s_cbranch_scc1 fz_sk1')
    a('s_waitcnt lgkmcnt(0)')
    for r in range(2):
        a('s_cmp_eq_u32 s37, %s' % s(32 + r)); a('s_cbranch_scc1 fz_sk%d' % r)
        for q in range(0 if '--xnoout' in OPT else 2): a('buffer_store_dwordx4 %s, %s, s[12:15], %s offen offset:%d%s' % (v(OP + 8 * r + 4 * q, 4), v(vL16), s(34 + r), 1024 * q, OUTF))
        a.lines.append('fz_sk%d:' % r)
    a('v_and_b32 v15, 7, v4'); a('v_mul_u32_u24 v15, 544, v15'); a('v_lshl_add_u32 v15, v5, 4, v15'); a('v_add_u32 v15, %d, v15' % ACT)
    if TWO:
        a('s_and_b32 s60, s2, 7'); a('s_lshr_b32 s61, s2, 3')
        a('s_cmp_lt_u32 s3, 4'); a('s_cselect_b32 s63, 8, s60'); a('s_lshl_b32 s63, s63, 2'); a('s_and_b32 s38, s3, 3'); a('s_add_u32 s63, s63, s38')
        a('s_lshl_b32 s63, s63, 6'); a('s_add_u32 s63, s63, s61'); a('s_lshl_b32 s63, s63, 8'); a('s_add_u32 s63, s63, 0x%x' % POFF)
        a('v_lshlrev_b32 v13, 4, v4'); a('v_lshl_add_u32 v102, v5, 12, v13'); a('v_add_u32 v103, 8192, v102'); a('v_mov_b32 v101, %d' % (ACT + 4352))
    elif PIN:
        a('s_lshl_b32 s63, s23, 5'); a('s_and_b32 s38, s3, 3'); a('s_mul_i32 s38, s38, %d' % (32 * PIS)); a('s_add_u32 s63, s63, s38'); a('s_add_u32 s63, s63, 0x%x' % POFF)
        a('v_lshrrev_b32 v13, 1, v1'); a('v_mul_u32_u24 v13, %d, v13' % PIS); a('v_and_b32 v14, 1, v1'); a('v_lshl_add_u32 v102, v14, 4, v13'); a('v_add_u32 v103, %d, v102' % (16 * PIS))
    else:
        a('s_mul_i32 s63, s23, %d' % PPS); a('s_and_b32 s38, s3, 3'); a('s_lshl_b32 s38, s38, 10'); a('s_add_u32 s63, s63, s38'); a('s_add_u32 s63, s63, 0x%x' % POFF)
    if not TWO: a('s_lshl_b32 s38, s20, %d' % (5 if PIN else 10)); a('s_add_u32 s38, s38, 0x%x' % DOFF); a('s_cmp_lt_u32 s3, 4'); a('s_cselect_b32 s63, s38, s63')
    a('v_mov_b32 v14, 0xffffff00')
    a('s_cmp_eq_u32 s18, s3'); a('s_cbranch_scc1 fz_act')
    a('s_cmp_lg_u32 s59, s3'); a('s_cbranch_scc1 fz_f2')
    st()
    a('s_and_b32 s38, s20, 15'); a('s_add_u32 s38, s38, 16'); a('s_mul_i32 s38, s38, %d' % KS); a('s_add_u32 s38, s38, 0x%x' % KOFF)
    if TWO:
        a('s_lshr_b32 s52, s61, 1'); a('s_lshl_b32 s52, s52, 3'); a('s_add_u32 s52, s52, s60'); a('s_lshl_b32 s52, s52, 2'); a('s_and_b32 s53, s61, 1'); a('s_add_u32 s52, s52, s53'); a('s_lshl_b32 s52, s52, 2')
        a('v_bfe_u32 v2, v1, 2, 1'); a('v_and_b32 v3, 3, v1'); a('v_lshl_add_u32 v2, v2, 3, v3'); a('v_add_u32 v2, s52, v2')
    else:
        a('s_lshr_b32 s52, s20, 4'); a('s_lshl_b32 s52, s52, 7'); a('s_and_b32 s53, s20, 7'); a('s_lshl_b32 s53, s53, 4'); a('s_add_u32 s52, s52, s53')
        a('s_bfe_u32 s53, s20, 0x10003'); a('s_lshl_b32 s53, s53, 2'); a('s_add_u32 s52, s52, s53')
        a('v_and_b32 v2, 1, v1'); a('v_lshl_add_u32 v2, v2, 3, v5'); a('v_add_u32 v2, s52, v2')
    a('v_and_b32 v3, 31, v2'); a('v_lshrrev_b32 v6, 5, v2')
    a('v_cmp_gt_u32 vcc, 16, v6')
    a('v_cmp_lt_u32 s[52:53], 16, v3'); a('v_cmp_eq_u32 s[54:55], 0, v3'); a('s_and_b64 s[54:55], s[54:55], vcc'); a('s_or_b64 s[52:53], s[52:53], s[54:55]')
    a('v_cmp_eq_u32 s[54:55], 16, v3'); a('s_andn2_b64 s[54:55], s[54:55], vcc'); a('s_or_b64 s[52:53], s[52:53], s[54:55]')
    a('v_sub_u32 v7, 1024, v2'); a('v_cndmask_b32 v7, v2, v7, s[52:53]')
    a('v_mov_b32 v8, 512'); a('v_cmp_eq_u32 vcc, 1024, v7'); a('v_cndmask_b32 v7, v7, v8, vcc')
    a('v_lshrrev_b32 v8, 5, v7'); a('v_and_b32 v7, 15, v7')
    a('v_lshrrev_b32 v9, 2, v8'); a('v_lshlrev_b32 v9, 8, v9'); a('v_and_b32 v8, 3, v8'); a('v_lshl_add_u32 v9, v8, 4, v9')
    a('v_lshrrev_b32 v8, 3, v7'); a('v_lshl_add_u32 v9, v8, 6, v9'); a('v_and_b32 v7, 7, v7'); a('v_lshl_add_u32 v9, v7, 1, v9')
    a('v_cndmask_b32 v7, 0, 1, s[52:53]'); a('v_lshl_add_u32 v9, v7, 7, v9')
    a('v_lshlrev_b32 v2, 1, v2')
    if TWO:
        a('s_lshl_b32 s52, s60, 4'); a('s_add_u32 s52, s52, s61'); a('s_lshl_b32 s52, s52, 12'); a('s_add_u32 s52, s52, 0x%x' % POFF)
        a('s_add_u32 s53, s2, 4'); a('s_and_b32 s53, s53, 7'); a('s_cmp_lt_u32 s53, 6'); a('s_cselect_b32 s53, s52, 0x7fff0000')
        for k in range(4): a('s_cselect_b32 %s, %s, 0' % (s(8 + k), s(48 + k)))
        a('s_lshl_b32 s54, s61, 11'); a('s_add_u32 s54, s54, 0x%x' % FIOFF); a('s_lshl_b32 s55, s60, 8'); a('s_add_u32 s55, s55, s54'); a('s_lshl_b32 s62, s60, 5'); a('s_add_u32 s54, s54, s62')
        a('v_lshrrev_b32 v3, 1, v4'); a('v_lshlrev_b32 v3, 8, v3'); a('v_and_b32 v6, 1, v4'); a('v_lshl_add_u32 v3, v6, 4, v3')
        a('v_lshlrev_b32 v6, 2, v1'); a('v_and_b32 v7, 3, v1'); a('v_mov_b32 v16, s48')
        for k in range(1, 4): a('v_cmp_eq_u32 vcc, %d, v7' % k); a('v_mov_b32 v8, %s' % s(48 + k)); a('v_cndmask_b32 v16, v16, v8, vcc')
    else:
        a('v_lshrrev_b32 v3, 1, v1'); a('v_mul_u32_u24 v3, %d, v3' % (32 if PIN else PPS)); a('v_and_b32 v6, 1, v1'); a('v_lshl_add_u32 v3, v6, 4, v3')
        a('v_mov_b32 v6, 0x7fffffff'); a('v_cmp_gt_u32 vcc, 32, v1'); a('v_cndmask_b32 v6, v6, v3, vcc')
        for k in range(4): a('v_mov_b32 v7, %s' % s(48 + k)); a('v_cndmask_b32 %s, 0, v7, vcc' % v(16 + k))
        a('s_mul_i32 s52, s20, %d' % (PIS if PIN else 32)); a('s_add_u32 s52, s52, 0x%x' % POFF)
        for u in range(1, 4): a('s_add_u32 %s, s52, %d' % (s(52 + u), 32 * u * (32 if PIN else PPS)))
    K = 24
    a('v_lshlrev_b32 v20, %d, v1' % KRL); a('v_add_u32 v21, %d, v20' % (64 << KRL))
    a('s_mov_b32 s58, 0')
    a.label('fz_k2')
    a('buffer_load_dwordx4 %s, v20, s[4:7], s38 offen sc1' % v(K, 4)); a('buffer_load_dwordx4 %s, v21, s[4:7], s38 offen sc1' % v(K + 4, 4))
    a('s_waitcnt vmcnt(0)')
    keys_argmax(K, None, 'fz_k2')
    if TWO:
        a('v_and_b32 v7, 15, %s' % v(K + 1)); a('v_and_b32 v8, 15, %s' % v(K + 5)); a('v_cmp_eq_u32 vcc, s24, v7'); a('v_cmp_eq_u32 s[56:57], s24, v8')
        a('s_and_b64 vcc, vcc, s[56:57]'); a('s_and_b32 s39, vcc_lo, vcc_hi'); a('s_and_b32 s41, s20, 7'); a('s_lshr_b32 s39, s39, s41'); a('s_and_b32 s39, s39, 0x01010101')
        a('s_cmp_eq_u32 s39, 0x01010101'); a('s_cselect_b32 s39, %d, 0' % (1 if LOCAL else 0)); a('v_mov_b32 v7, s39'); a('ds_write_b32 v101, v7')
    a('v_cmp_eq_u32 vcc, s36, %s' % v(K)); a('v_cmp_eq_u32 s[56:57], s36, %s' % v(K + 4))
    a('v_cndmask_b32 %s, %s, %s, s[56:57]' % (v(K + 1), v(K + 1), v(K + 5))); a('v_cndmask_b32 %s, %s, %s, s[56:57]' % (v(K + 2), v(K + 2), v(K + 6)))
    a('s_cmp_lg_u64 vcc, 0'); a('s_cselect_b32 s39, 0, 64'); a('s_or_b64 vcc, vcc, s[56:57]'); a('s_ff1_i32_b64 s41, vcc')
    a('v_readlane_b32 s42, %s, s41' % v(K + 1)); a('v_readlane_b32 s43, %s, s41' % v(K + 2))
    a('s_add_u32 s39, s39, s41'); a('s_and_b32 s42, s42, 0xffff0000')
    a('s_cmp_eq_u32 s39, s20'); a('s_cbranch_scc1 fz_win')
    a('s_bitcmp1_b32 s37, 0'); a('s_cbranch_scc1 fz_d1')
    for q in range(2): a('buffer_store_dwordx4 %s, %s, s[12:15], s34 offen offset:%d%s' % (v(OP + 4 * q, 4), v(vL16), 1024 * q, OUTF))
    a('s_branch fz_win')
    a.lines.append('fz_d1:')
    for q in range(2): a('buffer_store_dwordx4 %s, %s, s[12:15], s35 offen offset:%d%s' % (v(OP + 8 + 4 * q, 4), v(vL16), 1024 * q, OUTF))
    a.lines.append('fz_win:')
    a('s_lshl_b32 s39, s39, 11'); a('s_add_u32 s39, s39, 0x%x' % COFF)
    a('s_mov_b32 s58, 0'); a('s_mov_b32 s41, 0xffff0000')
    a.label('fz_c2')
    a('buffer_load_short_d16_hi v10, v9, s[4:7], s39 offen sc1')
    a('s_waitcnt vmcnt(0)')
    a('v_cmp_eq_u32 vcc, s41, v10')
    poll_retry('fz_c2')
    a('v_add_f32 v11, s42, v10'); rbf(a, 11); a('v_mul_f32 v11, s43, v11'); rbf(a, 11)
    a('s_ashr_i32 s39, s36, 31'); a('s_not_b32 s39, s39'); a('s_or_b32 s39, s39, 0x80000000'); a('s_xor_b32 s39, s36, s39'); a('s_and_b32 s39, s39, 0xffff0000')
    a('v_mov_b32 v12, s39'); a('v_mul_f32 v12, %s, v12' % fh(-1.4426950408889634))
    a('v_exp_f32 v12, v12'); a('v_add_f32 v12, 1.0, v12'); a('v_rcp_f32 v12, v12'); rbf(a, 12)
    a('s_and_b32 s39, s36, 0xffff'); a('s_sub_u32 s39, 2047, s39'); a('s_lshl_b32 s39, s39, 11')
    PQ = 40
    a('v_mov_b32 v13, 0xff')
    a('s_waitcnt lgkmcnt(0)')
    a.lines.append('fz_f2:')
    st.n = 13; st()
    a('s_cmp_gt_u32 s23, 111'); a('s_cbranch_scc1 fz_nof2')
    a('s_barrier')
    a('s_cmp_eq_u32 s59, s3'); a('s_cselect_b32 s19, 4, s3'); a('s_cmp_lt_u32 s19, 4'); a('s_cbranch_scc1 fz_f2d')
    BH, ACC = 120, 152
    if TWO: a('ds_read_b32 v100, v101')
    for q in range(8): a('ds_read_b128 %s, v15 offset:%d' % (v(BH + 4 * q, 4), 64 * q))
    if W3 < 8 or WL: a('s_waitcnt vmcnt(2)')
    for q in range(8):
        a('s_waitcnt lgkmcnt(%d)' % (7 - q))
        for h in range(2): a('v_mfma_f32_16x16x32_bf16 %s, %s, %s, %s' % (v(ACC + 4 * h, 4), v(BH + 4 * q, 4), v(WQ[2 * q + h], 4), v(ACC + 4 * h, 4) if q else '0'))
    if TWO: a('v_readfirstlane_b32 s19, v100')
    a('s_mov_b32 exec_hi, 0')
    if TWO:
        for k in range(8): a('v_and_or_b32 %s, %s, v14, %s' % (v(ACC + k), v(ACC + k), s(48 + (k & 3))))
        a('s_cmp_eq_u32 s19, 0'); a('s_cbranch_scc1 fz_prem')
        for h in range(2): a('buffer_store_dwordx4 %s, %s, s[4:7], s63 offen' % (v(ACC + 4 * h, 4), v(102 + h)))
    else:
        for h in range(2):
            for k in range(4): a('v_and_or_b32 %s, %s, v14, %s' % (v(ACC + 4 * h + k), v(ACC + 4 * h + k), s(48 + k)))
            if PIN: a('buffer_store_dwordx4 %s, %s, s[4:7], s63 offen sc1' % (v(ACC + 4 * h, 4), v(102 + h)))
            else: a('buffer_store_dwordx4 %s, %s, s[4:7], s63 offen offset:%d sc1' % (v(ACC + 4 * h, 4), v(vL16), 512 * h))
    a.lines.append('fz_f2d:')
    a('s_mov_b32 exec_hi, -1')
    if OLATE: a('s_cmp_lg_u32 s59, s3'); a('s_cbranch_scc1 fz_late')
    else: a('s_cmp_eq_u32 s18, s3'); a('s_cbranch_scc1 fz_late')
    a('s_cmp_lg_u32 s59, s3'); a('s_cbranch_scc1 fz_xend')
    a('v_mov_b32 v7, 0')
    a('s_waitcnt vmcnt(0)')
    a('s_branch fz_p5_ok')
    a.label('fz_nof2')
    a('s_cmp_lg_u32 s59, s3'); a('s_cbranch_scc1 fz_xend')
    a('s_mov_b32 s58, 0'); a('s_and_b32 s41, s20, %d' % (7 if TWO else 63)); a('s_mul_i32 s41, s41, %d' % (256 if TWO else 32 if PIN else PPS)); a('s_add_u32 s41, s41, s52'); a('v_mov_b32 v7, 0')
    a.label('fz_p5')
    a('buffer_load_dword v8, v7, s[4:7], s41 offen sc1')
    a('s_waitcnt vmcnt(0)')
    a('v_and_b32 v8, 0xff, v8'); a('v_cmp_ne_u32 vcc, s48, v8')
    poll_retry('fz_p5')
    a('s_mov_b32 s58, 0')
    st()
    def h5i(u):
        if TWO: a('buffer_load_dwordx4 %s, %s, s[4:7], %s offen offset:%d sc1' % (v(PQ + 4 * u, 4), v(vL16), s(52 + (u >> 1)), 1024 * u))
        else: a('buffer_load_dwordx4 %s, %s, s[4:7], %s offen sc1' % (v(PQ + 4 * u, 4), 'v6' if u == 3 else 'v3', s(52 + u)))
    def h5c(u):
        for k in range(4): a('v_xor_b32 %s, %s, %s' % (v(PQ + 4 * u + k), (s(8 + k) if u >= 2 else s(48 + k)) if TWO else v(16 + k) if u == 3 else s(48 + k), v(PQ + 4 * u + k)))
        a('v_or3_b32 v8, %s, %s, %s' % (v(PQ + 4 * u), v(PQ + 4 * u + 1), v(PQ + 4 * u + 2)))
        a('v_bitop3_b32 v8, v8, %s, v13 bitop3:0xa8' % v(PQ + 4 * u + 3))
        a('v_cmp_ne_u32 vcc, 0, v8')
    def h5a(u):
        if u:
            for h in range(2): a('v_pk_add_f32 %s, %s, %s' % (v(PQ + 2 * h, 2), v(PQ + 2 * h, 2), v(PQ + 4 * u + 2 * h, 2)))
    for u in range(4): h5i(u)
    prog_poll('fz_h5', 4, h5i, h5c, h5a)
    if TWO:
        for sw in ('32', '16'):
            for k in range(4): a('v_mov_b32 %s, %s' % (v(PQ + 4 + k), v(PQ + k)))
            for k in range(4): a('v_permlane%s_swap_b32 %s, %s' % (sw, v(PQ + k), v(PQ + 4 + k)))
            for h in range(2): a('v_pk_add_f32 %s, %s, %s' % (v(PQ + 2 * h, 2), v(PQ + 2 * h, 2), v(PQ + 4 + 2 * h, 2)))
        for k in range(4): a('v_and_or_b32 %s, %s, v14, %s' % (v(PQ + k), v(PQ + k), s(48 + k)))
        a('s_mov_b64 exec, 0xffff')
        a('buffer_store_dwordx4 %s, v3, s[4:7], s54 offen sc1' % v(PQ, 4))
        a('s_mov_b64 exec, -1'); a('s_mov_b32 s58, 0')
        a('s_waitcnt vmcnt(0)')
        a.lines.append('fz_h6:')
        a('buffer_load_dword %s, v6, s[4:7], s55 offen sc1' % v(PQ + 8))
        a('s_waitcnt vmcnt(0)')
        a('v_xor_b32 %s, v16, %s' % (v(PQ), v(PQ + 8))); a('v_and_b32 v8, 0xff, %s' % v(PQ)); a('v_cmp_ne_u32 vcc, 0, v8')
        poll_retry('fz_h6')
        a('v_add_f32_dpp %s, %s, %s row_ror:8 %s' % (v(PQ), v(PQ), v(PQ), DPPF))
        for sw in ('32', '16'):
            a('v_mov_b32 %s, %s' % (v(PQ + 1), v(PQ))); a('v_permlane%s_swap_b32 %s, %s' % (sw, v(PQ), v(PQ + 1))); a('v_add_f32 %s, %s, %s' % (v(PQ), v(PQ), v(PQ + 1)))
    else:
        for i in range(2): a('v_permlane32_swap_b32 %s, %s' % (v(PQ + i), v(PQ + 2 + i)))
        a('v_pk_add_f32 %s, %s, %s' % (v(PQ, 2), v(PQ, 2), v(PQ + 2, 2)))
        a('v_permlane16_swap_b32 %s, %s' % (v(PQ), v(PQ + 1)))
        a('v_add_f32 %s, %s, %s' % (v(PQ), v(PQ), v(PQ + 1)))
        a('v_add_f32_dpp %s, %s, %s quad_perm:[2,3,0,1] %s' % (v(PQ), v(PQ), v(PQ), DPPF))
        a('v_add_f32_dpp %s, %s, %s row_ror:4 %s' % (v(PQ), v(PQ), v(PQ), DPPF))
        a('v_add_f32_dpp %s, %s, %s row_ror:8 %s' % (v(PQ), v(PQ), v(PQ), DPPF))
    rbf(a, PQ); a('v_mul_f32 %s, %s, v12' % (v(PQ), v(PQ))); rbf(a, PQ)
    a('v_add_f32 %s, %s, v11' % (v(PQ), v(PQ))); rbf(a, PQ)
    a('v_add_f32 %s, %s, v10' % (v(PQ), v(PQ))); rbf(a, PQ)
    if TWO: a('s_mov_b64 exec, 0xff')
    else: a('s_mov_b32 exec_lo, 0x00030003'); a('s_mov_b32 exec_hi, 0x00030003')
    a('buffer_store_short_d16_hi %s, v2, s[12:15], s39 offen' % v(PQ))
    a('s_cmp_lg_u32 s20, 0'); a('s_cbranch_scc1 fz_xend')
    a('s_mov_b64 exec, 1'); a('v_mov_b32 v8, s40')
    a('buffer_store_dword v8, v7, s[4:7], 0 offen')
    a.lines.append('fz_xend:')
    st.n = 15; st()
    st.dump(n=16, sv=250, wave='s3')
    a.lines.append('fz_end:')
    a('s_endpgm')
    a.lines.append('fz_late:')
    for r in range(2):
        for q in range(2): a('buffer_store_dwordx4 %s, %s, s[12:15], %s offen offset:%d%s' % (v(OP + 8 * r + 4 * q, 4), v(vL16), s(34 + r), 1024 * q, OUTF))
    a('s_branch fz_xend')
    a.lines.append('fz_act:')
    a('s_cmp_gt_u32 s23, 111'); a('s_cbranch_scc1 fz_xend')
    a('v_lshlrev_b32 v2, 2, v1'); a('v_and_b32 v11, 3, v1'); a('v_mov_b32 v3, s48')
    for k in range(1, 4): a('v_cmp_eq_u32 vcc, %d, v11' % k); a('v_mov_b32 v10, %s' % s(48 + k)); a('v_cndmask_b32 v3, v3, v10, vcc')
    a('v_and_b32 v10, 31, v1'); a('v_lshlrev_b32 v6, 4, v10'); a('v_lshrrev_b32 v10, 5, v1'); a('v_mul_u32_u24 v10, %d, v10' % (4 * 546)); a('v_add_u32 v6, v6, v10'); a('v_add_u32 v6, %d, v6' % ACT)
    a('s_lshl_b32 s38, s23, 11'); a('s_add_u32 s38, s38, 0x%x' % XOFF)
    a('s_mov_b32 s58, 0')
    st.n = 12; st()
    if APP:
        a.lines.append('fz_p4:')
        a('buffer_load_dword v8, v2, s[4:7], s38 offen offset:%d sc1' % (256 * (APP - 1)))
        a('s_waitcnt vmcnt(0)')
        a('v_xor_b32 v8, v3, v8'); a('v_and_b32 v8, 0xff, v8'); a('v_cmp_ne_u32 vcc, 0, v8')
        poll_retry('fz_p4')
        a('s_mov_b32 s58, 0')
    a.lines.append('fz_h4:')
    for k in range(8): a('buffer_load_dword %s, v2, s[4:7], s38 offen offset:%d sc1' % (v(16 + k), 256 * k))
    for k in range(0, 8, 2):
        a('s_waitcnt vmcnt(%d)' % (6 - k))
        a('v_xor_b32 %s, v3, %s' % (v(16 + k), v(16 + k))); a('v_xor_b32 %s, v3, %s' % (v(17 + k), v(17 + k)))
        a('v_or3_b32 v10, %s, %s, %s' % (v(16 + k), v(17 + k), 'v10' if k else '0'))
        a('v_add_f32 %s, %s, %s' % (v(16 + k), v(16 + k), v(17 + k)))
        if k & 2: a('v_add_f32 %s, %s, %s' % (v(14 + k), v(14 + k), v(16 + k)))
    a('v_and_b32 v10, 0xff, v10'); a('v_add_f32 v8, v16, v20')
    a('v_cmp_ne_u32 vcc, 0, v10')
    poll_retry('fz_h4')
    rbf(a, 8)
    a('v_mov_b32 v9, v8')
    a('v_permlane32_swap_b32 v8, v9')
    a('v_mul_f32 v10, %s, v8' % fh(-1.4426950408889634))
    a('v_exp_f32 v10, v10')
    a('v_add_f32 v10, 1.0, v10'); a('v_rcp_f32 v10, v10')
    a('v_mul_f32 v8, v8, v10'); rbf(a, 8)
    a('v_mul_f32 v8, v8, v9'); rbf(a, 8)
    for m in range(4): a('ds_write_b16_d16_hi v6, v8 offset:%d' % (546 * m))
    a('s_waitcnt lgkmcnt(0)')
    a('s_branch fz_f2')
    a.lines.append('fz_ldh:')
    a('s_load_dwordx2 s[12:13], s[0:1], 56'); a('s_load_dwordx2 s[16:17], s[0:1], 64')
    srd(12, 0x700000); srd(16, 0x700000)
    a('s_branch fz_ldback')
    a.lines.append('fz_spec:')
    a('s_cmp_gt_u32 s3, 3'); a('s_cbranch_scc1 fz_spec_hi')
    for q, sa, sb in ((0, 0, 16), (2, 15, 17), (3, 18, 19)):
        a('s_cmp_eq_u32 s3, %d' % q); a('s_cselect_b32 s31, %d, s31' % (sa * RS)); a('s_cselect_b32 s30, %d, s30' % (sb * RS))
    a('s_branch fz_specback')
    a.lines.append('fz_spec_hi:')
    xload()
    if LATEX: extras()
    for q, ra, rb, sa, sb in ((0, 256, 1792, 4, 11), (1, 768, 1280, 6, 9), (2, 768, 1280, 20, 21), (3, 256, 1792, 22, 23)):
        a('s_cmp_eq_u32 s24, %d' % q); a('s_cselect_b32 s31, %d, s31' % (sa * RS)); a('s_cselect_b32 s30, %d, s30' % (sb * RS))
        a('s_cselect_b32 s27, %d, s27' % (ra * 2048)); a('s_cselect_b32 s28, %d, s28' % (rb * 2048))
    a('s_mov_b32 s57, 0')
    a('s_branch fz_specback')
    a.lines.append('fz_jb:')
    pack(JT, XAC, 16, 'bf16')
    a('s_branch fz_jend')
    if TWO:
        a.lines.append('fz_prem:')
        for h in range(2): a('buffer_store_dwordx4 %s, %s, s[4:7], s63 offen sc1' % (v(152 + 4 * h, 4), v(102 + h)))
        a('s_branch fz_f2d')
    a.lines.append('fz_bsp0:')
    wdload(0, 8 - WL if (WL and SPID & 4) else W3)
    a('s_branch fz_bsp')
    for jx in range(4):
        a.lines.append('fz_spec4%d:' % jx)
        a('s_mov_b32 s38, 0x80018001'); a('s_mov_b32 s39, 0x80018001')
        for k in range(2 * jx, 2 * jx + 2): a('v_cndmask_b32 %s, %s, %s, s[38:39]' % (v(YM + k), v(YM + k), v(YD + k)))
        a('s_branch fz_spec4back%d' % jx)
    a.label('fz_nc1')
    a('s_setprio 0')
    a('s_cmp_lg_u32 s59, 0'); a('s_cbranch_scc1 ffn_b')
    if WL:
        wdload(WE, 8 - WL)
        a('s_bitcmp1_b32 s2, 2'); a('s_cbranch_scc1 fz_wl1')
        wdload(8 - WL, 8)
        a.lines.append('fz_wl1:')
        latex()
        a('s_waitcnt vmcnt(%d)' % (2 * (8 - WL) + 6))
    else:
        wdload(WE, W2)
        latex()
        a('s_waitcnt vmcnt(%d)' % (2 * W2 + 6))
    tags2()
    a.lines.append('fz_bsp:')
    a('s_setprio 0'); a('s_mov_b32 s57, 1')
    a('s_cmp_gt_u32 s3, 5'); a('s_cbranch_scc1 fz_nocq')
    cq_job()
    a.lines.append('fz_nocq:')
    SETA()
    SETB('b')
    a('s_cmp_eq_u32 s2, %d' % SPID); a('s_cbranch_scc1 fz_sz')
    a('s_waitcnt vmcnt(0)')
    sync_add(0x100)
    a.lines.append('fz_sz:')
    a('ds_read_b32 v10, v15')
    a('s_waitcnt lgkmcnt(0)')
    a('v_cmp_ne_u32 vcc, s38, v10')
    a('s_cbranch_vccnz fz_sz')
    st.n = 5; st()
    SET2()
    wdload(W2, W3)
    st()
    a('s_waitcnt lgkmcnt(0)')
    a('s_branch fz_hb')
    a.label('fz_nc3')
    a('s_mov_b32 s58, 0')
    a('s_waitcnt vmcnt(0)')
    st.n = 9; st()
    if EP2:
        a('s_lshl_b32 s32, s20, 7'); a('s_add_u32 s32, s32, s55'); a('s_add_u32 s32, s32, %d' % (12 * PS + 64)); a('v_mov_b32 v9, 0')
        a.lines.append('fz_p2:')
        a('buffer_load_dword v10, v9, s[4:7], s32 offen sc1')
        a('s_waitcnt vmcnt(0)')
        a('v_xor_b32 v10, %s, v10' % v(vE)); a('v_and_b32 v10, %s, v10' % v(vMT)); a('v_cmp_ne_u32 vcc, 0, v10')
        poll_retry('fz_p2')
        a('s_mov_b32 s58, 0')
    a('s_branch fz_h2')
    for sfx in 'ab':
        a.lines.append('fz_spec3%s:' % sfx)
        a('v_xor_b32 v11, 1, v4'); a('v_cndmask_b32 v9, v9, v11, s[34:35]')
        a('v_and_b32 v11, 1, v4'); a('v_cndmask_b32 v11, 0, v11, s[34:35]'); a('v_sub_u32 v10, v10, v11')
        a('s_cmp_lg_u32 s22, 0'); a('s_cbranch_scc1 fz_spec3back%s' % sfx)
        for i, tt, pp, po in ((15, 1024, 124, 4), (13, 1536, 124, 6), (4, 256, 127, 8), (11, 1792, 127, 14), (6, 768, 127, 10), (9, 1280, 127, 12)):
            a('v_cmp_eq_u32 vcc, %d, v4' % i); a('v_mov_b32 v11, %d' % tt); a('v_mov_b32 v12, %d' % pp)
            a('v_cndmask_b32 %s, %s, v11, vcc' % (v(vT), v(vT))); a('v_cndmask_b32 v10, v10, v12, vcc'); a('v_cndmask_b32 v9, v9, %d, vcc' % po)
        a.flush(); a('s_branch fz_spec3back%s' % sfx)
    WF, WD, BH, ACC, K = 32, 96, 128, 192, 200
    SNT = '' if '--spl' in OPT else ' nt'
    def ffn_addr():
        a('s_bfe_u32 s21, s2, 0x30003')
        a('v_lshrrev_b32 v2, 5, v1'); a('v_and_b32 v3, 31, v1'); a('v_lshlrev_b32 v4, 1, v2'); a('v_xor_b32 v3, v4, v3')
        a('v_mul_u32_u24 v4, 7168, v2'); a('v_lshl_add_u32 v4, v3, 4, v4')
        for k in range(1, 4): a('v_xor_b32 %s, %d, v4' % (v(4 + k), 64 * k))
        a('s_lshl_b32 s23, s21, 7'); a('s_lshl_b32 s24, s3, 4'); a('s_add_u32 s23, s23, s24'); a('s_mul_i32 s23, s23, 7168'); a('s_lshl_b32 s24, s22, 9'); a('s_add_u32 s23, s23, s24')
        a('s_lshl_b32 s24, s3, 13')
    def gu(m, p):
        a('s_add_u32 s28, s24, %d' % ((0 if m else GT) + 1024 * p)); a('s_mov_b32 m0, s28'); a('s_add_u32 s29, s23, %d' % (p * 2 * 7168))
        if '--xnogu' not in OPT: a('buffer_load_dwordx4 %s, %s, s29 offen%s lds' % (v(4 + (p & 1) + 2 * (p >> 2)), s(16 if m else 12, 4), SNT))
    a.label('ffn_b')
    if not NE:
        a('s_waitcnt vmcnt(0)')
        tags()
    a.label('ffn')
    st.n = 5; st()
    blk(22, 36)
    a('s_cmp_gt_u32 s22, 13'); a('s_cbranch_scc1 fz_xend')
    ffn_addr()
    a('v_mov_b32 v31, %d' % (MSG + 48)); a('v_mov_b32 v10, 0'); a('ds_write_b32 v31, v10'); a('s_waitcnt lgkmcnt(0)')
    if NE:
        a('s_cmp_lt_u32 s3, 4'); a('s_cbranch_scc1 ffn_g1')
        for p in range(NE): gu(0, p)
        a('s_waitcnt vmcnt(%d)' % NE)
        tags()
        a('s_barrier'); a('s_branch ffn_g2')
        a.lines.append('ffn_g1:')
    a('s_setprio 0'); a('s_barrier')
    if GATE:
        a('s_lshl_b32 s26, s3, 3'); a('s_add_u32 s26, s26, %d' % (GATE - 1)); a('s_mul_i32 s26, s26, %d' % PS); a('s_add_u32 s26, s26, 0x%x' % WOFF); a('s_and_b32 s27, s2, 127'); a('s_lshl_b32 s27, s27, 7'); a('s_add_u32 s26, s26, s27')
        a('v_mov_b32 v9, 0'); a('s_mov_b32 s27, 0x30003')
        a('s_waitcnt vmcnt(0)')
        a.lines.append('ffn_gp:')
        a('buffer_load_dword v10, v9, s[4:7], s26 offen sc1')
        a('s_waitcnt vmcnt(0)')
        a('v_xor_b32 v10, s44, v10'); a('v_and_b32 v10, s27, v10'); a('v_cmp_ne_u32 vcc, 0, v10')
        poll_retry('ffn_gp')
        a('s_mov_b32 s58, 0')
    if '--ackfirst' in OPT: a('s_waitcnt vmcnt(0)'); a('s_barrier')
    for p in range(8):
        if NE and p == NE: a.lines.append('ffn_g2:')
        gu(0, p)
        if THR: a('s_waitcnt vmcnt(%d)' % (THR - 1))
    if NE == 8: a.lines.append('ffn_g2:')
    def l2p():
        a('s_lshl_b32 s28, s22, 3'); a('s_add_u32 s28, s28, s21'); a('s_lshl_b32 s28, s28, 16'); a('v_lshlrev_b32 v9, 7, v0')
        a('buffer_load_dword v248, v9, s[64:67], s28 offen')
    if L2P == 1: l2p()
    for p in range(8):
        gu(1, p)
        if THR2: a('s_waitcnt vmcnt(%d)' % (THR2 - 1))
    if L2P == 2: l2p()
    a('v_lshrrev_b32 v2, 4, v1'); a('v_and_b32 v3, 15, v1')
    a('v_bfe_u32 v9, v1, 2, 2'); a('v_lshl_add_u32 v8, v2, 3, v9'); a('v_lshlrev_b32 v8, 9, v8')
    a('v_and_b32 v10, 1, v2'); a('v_lshl_add_u32 v10, v10, 2, v9'); a('s_lshl_b32 s28, s3, 1'); a('v_xor_b32 v10, s28, v10')
    a('v_lshl_add_u32 v8, v10, 5, v8'); a('v_and_b32 v10, 3, v1'); a('v_lshl_add_u32 v8, v10, 3, v8')
    a('v_xor_b32 v12, 32, v8'); a('v_add_u32 v13, %d, v8' % GT); a('v_add_u32 v20, %d, v12' % GT)
    a('v_bfe_u32 v9, v0, 2, 2'); a('v_lshrrev_b32 v10, 6, v0'); a('v_lshl_add_u32 v9, v10, 2, v9')
    a('v_bfe_u32 v10, v0, 4, 1'); a('v_and_b32 v11, 3, v0'); a('v_lshlrev_b32 v11, 1, v11'); a('v_lshl_add_u32 v10, v10, 3, v11')
    a('v_lshl_add_u32 v11, v9, 5, v10'); a('v_add_u32 v17, 1, v11')
    a('v_cmp_eq_u32 vcc, 0, v10'); a('v_cmp_gt_u32 s[28:29], 16, v9'); a('s_and_b64 vcc, vcc, s[28:29]'); a('v_cndmask_b32 v14, 0, 16, vcc'); a('v_add_u32 v16, v11, v14')
    a('v_bfe_u32 v10, v0, 5, 1'); a('v_cmp_eq_u32 s[28:29], 1, v10')
    a('v_sub_u32 v14, 1024, v16'); a('v_cmp_eq_u32 vcc, 512, v16'); a('v_cndmask_b32 v14, v14, 0, vcc'); a('v_cndmask_b32 v16, v16, v14, s[28:29]')
    a('v_sub_u32 v14, 1024, v17'); a('v_cndmask_b32 v17, v17, v14, s[28:29]')
    for r in (16, 17): a('v_lshlrev_b32 %s, 1, %s' % (v(r), v(r))); a('v_add_u32 %s, %d, %s' % (v(r), HN, v(r)))
    a('v_lshlrev_b32 v18, 2, v0'); a('v_add_u32 v18, %d, v18' % RAW)
    a('s_lshl_b32 s28, s21, 8'); a('s_add_u32 s28, s28, %d' % HN); a('v_lshlrev_b32 v19, 4, v2'); a('v_add_u32 v19, s28, v19')
    a('v_mov_b32 v28, %d' % MSG)
    a('v_lshlrev_b32 v29, 4, v1')
    a('s_lshl_b32 s30, s22, 3'); a('s_add_u32 s30, s30, s3'); a('s_lshl_b32 s30, s30, 3'); a('s_add_u32 s30, s30, s21'); a('s_lshl_b32 s30, s30, 8'); a('s_add_u32 s30, s30, 0x%x' % XOFF)
    a('v_lshlrev_b32 v30, 4, v2'); a('v_lshl_add_u32 v30, v3, 6, v30')
    for k in range(1, 4): a('v_cmp_eq_u32 %s, %d, v3' % (s(58 + 2 * k, 2), k))
    a('v_add_u32 v21, %d, v29' % RAW)
    a('v_mov_b32 %s, 0xffffff00' % v(197))
    a('s_and_b32 s35, s2, 0x47'); a('s_lshl_b32 s31, s3, 3'); a('s_add_u32 s35, s35, s31'); a('s_add_u32 s35, s35, %d' % POFS); a('s_and_b32 s35, s35, 127')
    a('s_getreg_b32 s33, hwreg(HW_REG_XCC_ID)'); a('s_and_b32 s33, s33, 15')
    a('s_lshr_b32 s31, s35, 5'); a('s_lshl_b32 s31, s31, 2'); a('s_add_u32 s31, s31, %d' % (MSG + 16)); a('v_mov_b32 v22, s31')
    a('s_lshl_b32 s20, s22, 3'); a('s_add_u32 s20, s20, s21')
    a('s_and_b32 s34, s20, 15')
    if DB & 2: a('s_bfe_u32 s28, s20, 0x10004'); a('s_lshl_b32 s28, s28, 5'); a('s_add_u32 s34, s34, s28')
    a('s_mul_i32 s34, s34, %d' % KS); a('s_add_u32 s34, s34, 0x%x' % KOFF)
    def trw():
        for T_, ad in enumerate((13, 20, 8, 12)):
            for k in range(4):
                for hh in range(2): a('ds_read_b64_tr_b16 %s, %s offset:%d' % (v(WF + 16 * T_ + 4 * k + 2 * hh, 2), v(ad), 16384 * k + 2048 * hh))
            a('s_waitcnt lgkmcnt(0)')
    a('s_waitcnt vmcnt(%d)' % (1 if L2P == 2 else 0))
    if DEC:
        a('v_mov_b32 v10, 1'); a('s_mov_b64 exec, 1'); a('ds_add_u32 v31, v10'); a('s_mov_b64 exec, -1')
        a('s_mov_b32 s23, 0')
        a('s_cmp_eq_u32 s3, 0'); a('s_cbranch_scc1 ffn_z0')
        a.lines.append('ffn_sl:')
        a('ds_read_b32 v10, v31'); a('s_waitcnt lgkmcnt(0)'); a('v_cmp_ne_u32 vcc, 8, v10'); a('s_cbranch_vccnz ffn_sl')
        st()
        trw()
        st()
        a('s_cmp_lg_u32 s3, 0'); a('s_cbranch_scc1 ffn_w3')
        a('s_cmp_eq_u32 s23, 2'); a('s_cbranch_scc1 ffn_w3')
        a('s_mov_b32 s23, 1')
        a.lines.append('ffn_z0:')
    else:
        a('s_barrier')
        st()
        trw()
        st()
        a('s_cmp_lg_u32 s3, 0'); a('s_cbranch_scc1 ffn_w3')
    if KP == 0:
        a('v_lshlrev_b32 v23, %d, v1' % KRL); a('v_add_u32 v24, %d, v23' % (64 << KRL)); a('s_lshl_b32 s28, s20, %d' % KRL); a('s_add_u32 s28, s28, s34'); a('v_mov_b32 v10, %d' % (12 + (16 * KS if DB & 1 else 0)))
        if DTH:
            a('v_mul_u32_u24 v11, %d, v1' % (3 << KRL if False else 2 << KRL)); a('v_bfe_u32 v9, v1, 2, 1'); a('v_lshl_add_u32 v11, v9, %d, v11' % KRL); a('v_add_u32 v10, v10, v11'); a('s_mov_b32 s28, s34')
            a.lines.append('ffn_q3:')
            a('buffer_load_dword v11, v10, s[4:7], s28 offen sc1')
            a('s_add_u32 s58, s58, 1')
            a('s_waitcnt vmcnt(0)')
            a('v_cmp_eq_u32 vcc, s40, v11')
            a('s_cmp_gt_u32 s58, 0x%x' % MAXPOLL); a('s_cbranch_scc1 ffn_p3_ok')
            a('s_bcnt1_i32_b64 s29, vcc'); a('s_cmp_lt_u32 s29, %d' % DTH); a('s_cbranch_scc1 ffn_q3'); a('s_branch ffn_p3_ok')
        a.label('ffn_p3')
        a('buffer_load_dword v11, v10, s[4:7], s28 offen sc1')
        if DEC: a('ds_read_b32 v9, v31')
        a('s_waitcnt vmcnt(0) lgkmcnt(0)')
        a('v_cmp_ne_u32 vcc, s40, v11')
        if DEC:
            a('s_cbranch_vccnz ffn_p3_x')
            a.lines.append('ffn_p3_ok:')
        else: poll_retry('ffn_p3')
        a('s_mov_b32 s58, 0'); a('s_mov_b32 s54, -1')
        st()
        a.label('ffn_k3')
        a('buffer_load_dwordx4 %s, v23, s[4:7], s34 offen sc1' % v(K, 4)); a('buffer_load_dwordx4 %s, v24, s[4:7], s34 offen sc1' % v(K + 4, 4))
        a('s_waitcnt vmcnt(0)')
        if SPEC:
            a('v_cmp_eq_u32 s[24:25], s40, %s' % v(K + 3)); a('v_cmp_eq_u32 s[26:27], s40, %s' % v(K + 7))
            a('v_cndmask_b32 %s, 0, %s, s[24:25]' % (v(K), v(K))); a('v_cndmask_b32 %s, 0, %s, s[26:27]' % (v(K + 4), v(K + 4)))
            a('v_max_u32 %s, %s, %s' % (v(K + 10), v(K), v(K + 4)))
            for pat in ['quad_perm:[1,0,3,2] ' + DPPF, 'quad_perm:[2,3,0,1] ' + DPPF, 'row_half_mirror ' + DPPF,
                        'row_mirror ' + DPPF, 'row_bcast:15 row_mask:0xa bank_mask:0xf', 'row_bcast:31 row_mask:0xc bank_mask:0xf']:
                a('v_max_u32_dpp %s, %s, %s %s' % (v(K + 10), v(K + 10), v(K + 10), pat))
            a('s_and_b64 s[52:53], s[24:25], s[26:27]')
            a('v_readlane_b32 s36, %s, 63' % v(K + 10))
        else: keys_argmax(K, None, 'ffn_k3')
    else:
        st()
        KSET = [216 + 8 * i for i in range(KP)]
        def ki(r): a('buffer_load_dwordx4 %s, v29, s[4:7], s34 offen sc1' % v(r, 4)); a('buffer_load_dwordx4 %s, v29, s[4:7], s34 offen offset:1024 sc1' % v(r + 4, 4))
        for r in KSET[:-1]: ki(r)
        a.lines.append('ffn_k3:')
        for i, r in enumerate(KSET):
            ki(KSET[i - 1])
            a('s_waitcnt vmcnt(%d)' % (2 * KP - 2))
            for k in range(8): a('v_mov_b32 %s, %s' % (v(K + k), v(r + k)))
            a('v_max_u32 %s, %s, %s' % (v(K + 10), v(K), v(K + 4)))
            a('v_xor_b32 %s, s40, %s' % (v(K + 8), v(K + 3))); a('v_xor_b32 %s, s40, %s' % (v(K + 9), v(K + 7)))
            for pat in ['quad_perm:[1,0,3,2] ' + DPPF, 'quad_perm:[2,3,0,1] ' + DPPF, 'row_half_mirror ' + DPPF,
                        'row_mirror ' + DPPF, 'row_bcast:15 row_mask:0xa bank_mask:0xf', 'row_bcast:31 row_mask:0xc bank_mask:0xf']:
                a('v_max_u32_dpp %s, %s, %s %s' % (v(K + 10), v(K + 10), v(K + 10), pat))
            a('v_or_b32 %s, %s, %s' % (v(K + 8), v(K + 8), v(K + 9)))
            a('v_readlane_b32 s36, %s, 63' % v(K + 10))
            a('v_cmp_ne_u32 vcc, 0, %s' % v(K + 8))
            a('s_cbranch_vccz ffn_k3_ok')
        a('s_add_u32 s58, s58, 1'); a('s_cmp_lt_u32 s58, 0x%x' % MAXPOLL); a('s_cbranch_scc1 ffn_k3')
        a.label('ffn_k3_ok')
    a('v_cmp_eq_u32 vcc, s36, %s' % v(K)); a('v_cmp_eq_u32 s[28:29], s36, %s' % v(K + 4))
    a('s_cmp_lg_u64 vcc, 0'); a('s_cselect_b32 s39, 0, 64'); a('s_or_b64 vcc, vcc, s[28:29]'); a('s_ff1_i32_b64 s41, vcc')
    a('s_add_u32 s39, s39, s41'); a('s_lshl_b32 s39, s39, 11'); a('s_add_u32 s39, s39, 0x%x' % COFF)
    CR = BH
    if SPEC:
        a('s_cmp_eq_u32 s39, s54'); a('s_cbranch_scc1 ffn_c3h')
        a('buffer_load_dwordx4 %s, v29, s[4:7], s39 offen sc1' % v(CR, 4)); a('buffer_load_dwordx4 %s, v29, s[4:7], s39 offen offset:1024 sc1' % v(CR + 4, 4))
        a.lines.append('ffn_c3h:')
        a('s_cmp_lg_u64 s[52:53], -1'); a('s_cbranch_scc1 ffn_k3_rt')
        a.lines.append('ffn_k3_ok:')
        a('s_mov_b32 s58, 0')
        st()
    else:
        a('s_mov_b32 s58, 0')
        st()
        a.lines.append('ffn_c3:')
        a('buffer_load_dwordx4 %s, v29, s[4:7], s39 offen sc1' % v(CR, 4)); a('buffer_load_dwordx4 %s, v29, s[4:7], s39 offen offset:1024 sc1' % v(CR + 4, 4))
    a.lines.append('ffn_c3d:')
    a('v_and_b32 v10, 15, %s' % v(K + 1)); a('v_and_b32 v11, 15, %s' % v(K + 5))
    a('v_cmp_eq_u32 s[24:25], s33, v10'); a('v_cmp_eq_u32 s[26:27], s33, v11')
    for k in range(4): a('v_mov_b32 %s, %s' % (v(K + 12 + k), s(24 + k) if LOCAL else '0'))
    for k in range(1, 3): a('v_cndmask_b32 %s, %s, %s, s[28:29]' % (v(K + 8 + k), v(K + k), v(K + 4 + k)))
    a('v_and_b32 %s, 0xffff0000, %s' % (v(K + 9), v(K + 9)))
    a('s_mov_b64 s[42:43], vcc'); a('s_mov_b64 exec, vcc')
    a('ds_write_b128 v28, %s' % v(K + 8, 4)); a('ds_write_b128 v28, %s offset:16' % v(K + 12, 4))
    a('s_mov_b64 exec, -1')
    a('s_waitcnt vmcnt(1)')
    a('ds_write_b128 v21, %s' % v(CR, 4))
    a('v_max3_u32 v10, %s, %s, %s' % (v(CR), v(CR + 1), v(CR + 2)))
    a('s_waitcnt vmcnt(0)')
    a('ds_write_b128 v21, %s offset:1024' % v(CR + 4, 4))
    a('v_max3_u32 v10, v10, %s, %s' % (v(CR + 3), v(CR + 4))); a('v_max3_u32 v11, %s, %s, %s' % (v(CR + 5), v(CR + 6), v(CR + 7))); a('v_max_u32 v10, v10, v11')
    a('v_cmp_eq_u32 vcc, -1, v10')
    a('s_cbranch_vccnz ffn_c3_rt')
    a.lines.append('ffn_c3_ok:')
    a('s_waitcnt lgkmcnt(0)')
    if DEC:
        a('s_cmp_eq_u32 s23, 0'); a('s_mov_b32 s23, 2'); a('s_cbranch_scc1 ffn_sl')
    a.label('ffn_w3')
    a('s_barrier')
    st.n = 10; st()
    a('ds_read_b32 v11, v18'); a('ds_read_b128 %s, v28' % v(K, 4)); a('ds_read_b32 %s, v22' % v(K + 3))
    a('s_mov_b32 s28, 0xffff0000')
    a('s_waitcnt lgkmcnt(2)')
    a('v_lshlrev_b32 v14, 16, v11'); a('v_and_b32 v15, s28, v11')
    a('s_waitcnt lgkmcnt(0)')
    for r in (14, 15): a('v_add_f32 %s, %s, %s' % (v(r), v(r), v(K + 1)))
    for r in (14, 15): rbf(a, r)
    for r in (14, 15): a('v_mul_f32 %s, %s, %s' % (v(r), v(r), v(K + 2)))
    a('v_cvt_pk_bf16_f32 v14, v14, v15')
    a('ds_write_b16 v16, v14'); a('ds_write_b16_d16_hi v17, v14')
    a('v_readfirstlane_b32 s24, %s' % v(K + 3))
    a('s_waitcnt lgkmcnt(0)'); a('s_barrier')
    st()
    for k in range(4): a('ds_read_b128 %s, v19 offset:%d' % (v(BH + 4 * k, 4), 64 * k))
    AC = 144
    for k in range(4):
        a('s_waitcnt lgkmcnt(%d)' % (3 - k))
        for T_ in range(4): a('v_mfma_f32_16x16x32_bf16 %s, %s, %s, %s' % (v((AC + 4 * T_) if T_ else ACC, 4), v(WF + 16 * T_ + 4 * k, 4), v(BH + 4 * k, 4), v((AC + 4 * T_) if T_ else ACC, 4) if k else '0'))
    for T_ in range(1, 4):
        for k in range(4): a('v_cndmask_b32 %s, %s, %s, %s' % (v(ACC + k), v(ACC + k), v(AC + 4 * T_ + k), s(58 + 2 * T_, 2)))
    a('s_mov_b32 exec_lo, 0x000f000f'); a('s_mov_b32 exec_hi, 0x000f000f')
    for k in range(4): a('v_and_or_b32 %s, %s, %s, %s' % (v(ACC + k), v(ACC + k), v(197), s(48 + k)))
    a('s_bitcmp1_b32 s24, s35'); a('s_cbranch_scc0 ffn_rem')
    a('buffer_store_dwordx4 %s, v30, s[4:7], s30 offen' % v(ACC, 4))
    a.lines.append('ffn_fin:')
    st()
    st.dump(sv=250, wave='s3')
    a('s_endpgm')
    a.lines.append('ffn_rem:')
    a('buffer_store_dwordx4 %s, v30, s[4:7], s30 offen sc1' % v(ACC, 4))
    a('s_branch ffn_fin')
    if DEC:
        a.lines.append('ffn_p3_x:')
        a('s_add_u32 s58, s58, 1'); a('s_cmp_gt_u32 s58, 0x%x' % MAXPOLL); a('s_cbranch_scc1 ffn_p3_ok')
        a('s_cmp_lg_u32 s23, 0'); a('s_cbranch_scc1 ffn_p3')
        a('v_cmp_eq_u32 vcc, 8, v9'); a('s_cbranch_vccnz ffn_sl'); a('s_branch ffn_p3')
    a.lines.append('ffn_c3_rt:')
    if SPEC:
        a('s_mov_b64 vcc, s[42:43]'); a('s_add_u32 s58, s58, 1'); a('s_cmp_gt_u32 s58, 0x%x' % MAXPOLL); a('s_cbranch_scc1 ffn_c3_ok')
        a('buffer_load_dwordx4 %s, v29, s[4:7], s39 offen sc1' % v(CR, 4)); a('buffer_load_dwordx4 %s, v29, s[4:7], s39 offen offset:1024 sc1' % v(CR + 4, 4))
        a('s_branch ffn_c3d')
        a.lines.append('ffn_k3_rt:')
        a('s_cmp_lg_u32 s36, 0'); a('s_cselect_b32 s54, s39, -1')
        a('s_add_u32 s58, s58, 1'); a('s_cmp_lt_u32 s58, 0x%x' % MAXPOLL); a('s_cbranch_scc1 ffn_k3'); a('s_branch ffn_k3_ok')
    else:
        a('s_mov_b64 vcc, s[42:43]'); a('s_add_u32 s58, s58, 1'); a('s_cmp_lt_u32 s58, 0x%x' % MAXPOLL); a('s_cbranch_scc1 ffn_c3'); a('s_branch ffn_c3_ok')
    emit_stubs()
    a.lines.append('fz_codeend:')

def main(path):
    ref = open('/code/%s.s.ref' % NAME).read().splitlines()
    for l in ref:
        if l.startswith('; Override'): break
        a.raw(l)
    a.raw('; @launch kernel=fz_kernel grid=(256,1,1) block=(512,1,1) lds=163840')
    if STAMPS: a.raw('; @groups fftA=0-127:0-3,fftB=0-127:4-7,ffn=128-255:0-0')
    a.raw('.amdgcn_target "amdgcn-amd-amdhsa--gfx950"'); a.raw('.text')
    gen()
    a.raw('.section .rodata,"a"')
    a.raw('\n'.join(['.p2align 6', '.amdhsa_kernel fz_kernel', '  .amdhsa_next_free_vgpr 256', '  .amdhsa_next_free_sgpr 102',
        '  .amdhsa_accum_offset 256', '  .amdhsa_group_segment_fixed_size 0', '  .amdhsa_kernarg_size 104', '  .amdhsa_user_sgpr_count 2',
        '  .amdhsa_user_sgpr_kernarg_segment_ptr 1', '  .amdhsa_system_sgpr_workgroup_id_x 1', '.end_amdhsa_kernel', '']))
    open(path, 'w').write(a.text())
    print('wrote', path, 'lines', len(a.lines), 'nops', a.nops)
if __name__ == '__main__':
    ps = [x for x in sys.argv[1:] if x.endswith('.s')]
    main(ps[0] if ps else '/code/%s.s' % NAME)
```

```python
import struct, sys
import os; _d = os.path.dirname(os.path.abspath(__file__)); sys.path.insert(0, _d); sys.path.insert(0, _d + '/mb')
from asmlib import Asm
from mblib import St
NAME = 'sequential_preLN__spectral_fnet__moe_arch_mod__prompt'
def fh(x): return '0x%08x' % struct.unpack('<I', struct.pack('<f', x))[0]
OPT = set(a for a in sys.argv[1:] if a.startswith('--'))
def optv(name, d):
    for o in OPT:
        if o.startswith('--%s=' % name): return int(o.split('=')[1])
    return d
STAMPS = '--stamps' in OPT
def v(i, n=1): return 'v%d' % i if n == 1 else 'v[%d:%d]' % (i, i + n - 1)
def s(i, n=1): return 's%d' % i if n == 1 else 's[%d:%d]' % (i, i + n - 1)
DPPF = 'row_mask:0xf bank_mask:0xf'
X1 = 'quad_perm:[1,0,3,2] ' + DPPF
def rbf(a, r): a('v_cvt_pk_bf16_f32 %s, 0, %s' % (v(r), v(r)))
def kr(r): return (r & 3) + 8 * (r >> 2)
PS = 16384 + 128
WOFF = 0x1000; YOFF = 0x210000; KRL = optv('krl', 4); KOFF = 0x580000; KS = (128 << KRL) + 128; COFF = 0x448000; XOFF = 0x488000; POFF = 0x4c8000; PPS = 4096 + 128; PIS = 3584 + 128
DOFF = 0x548000; FIOFF = 0x558000; WSB = 0x690000
RS = 2064
CT = 24 * RS; SB = CT + 18432; AB = SB + 18432; CPS = 8192 + 64; PR = AB + 2 * CPS; WR = PR + 2048; TRASH = WR + 2048; ACT = TRASH + 1024; SYNC = CT - 16
GT = 81920; SP = 65536; HN = GT + 65536; MSG = HN + 2048; RAW = MSG + 64
MAXPOLL = 0x10000
SPID = optv('spid', 66); POFS = (124 - SPID) & 127
class Asm2(Asm):
    def __call__(self, text):
        if text.startswith('v_cndmask_b32 '): text = 'v_cndmask_b32_e64 ' + text[14:]
        Asm.__call__(self, text)
a = Asm2()
class St2(St):
    def __call__(self):
        if '--early' in OPT and 5 < self.n < 15: self.n += 1; return
        if '--cnt' in OPT and 0 < self.n < 4: self.n += 1; return
        St.__call__(self)
st = St2(a, STAMPS)
def est(i):
    if '--early' in OPT and STAMPS: a('s_memrealtime s[%d:%d]' % (70 + 2 * i, 71 + 2 * i))
stubs = []
def poll_retry(name, cnt=58):
    a('s_cbranch_vccnz %s_rt' % name)
    a.lines.append('%s_ok:' % name)
    stubs.append((name, cnt))
prog = []
def prog_poll(name, n, issue, check, after=None):
    for u in range(n):
        a.lines.append('%s_c%d:' % (name, u))
        a('s_waitcnt vmcnt(%d)' % (n - 1 - u))
        check(u)
        a('s_cbranch_vccnz %s_r%d' % (name, u))
        a.lines.append('%s_o%d:' % (name, u))
        if after: after(u)
    prog.append((name, n, issue))
def emit_stubs():
    for name, n, issue in prog:
        for u in range(n):
            a.lines.append('%s_r%d:' % (name, u))
            a('s_add_u32 s58, s58, 1'); a('s_cmp_gt_u32 s58, 0x%x' % MAXPOLL); a('s_cbranch_scc1 %s_o%d' % (name, u))
            if '--cnt' in OPT and name in ('fz_h1', 'fz_h2', 'fz_h5'): r = {'fz_h1': 72, 'fz_h2': 74, 'fz_h5': 76}[name]; a('s_add_u32 s%d, s%d, %d' % (r, r, n - u))
            for k in range(u, n): issue(k)
            a('s_branch %s_c%d' % (name, u))
    for name, cnt in stubs:
        a.lines.append('%s_rt:' % name)
        a('s_add_u32 %s, %s, 1' % (s(cnt), s(cnt))); a('s_cmp_lt_u32 %s, 0x%x' % (s(cnt), MAXPOLL))
        a('s_cbranch_scc1 %s' % name); a('s_branch %s_ok' % name)
def angles(mulreg, basereg, ks, tmp):
    for i, k in enumerate(ks):
        if k == 0: a('v_mov_b32 %s, %s' % (v(tmp + i), v(basereg)))
        else: a('v_fmamk_f32 %s, %s, %s, %s' % (v(tmp + i), v(mulreg), fh(float(k)), v(basereg)))
def trig(fn, t, n):
    for i in range(n): a('v_%s_f32 %s, %s' % (fn, v(t + i), v(t + i)))
def pack(dst, t, n, kind='f16'):
    for p in range(n // 2): a('v_cvt_pk_%s_f32 %s, %s, %s' % (kind, v(dst + p), v(t + 2 * p), v(t + 2 * p + 1)))
def tags():
    a('v_readfirstlane_b32 s40, v250')
    a('s_add_u32 s40, s40, 1'); a('s_and_b32 s38, s40, 3'); a('s_and_b32 s39, s40, 15')
    for i in range(4):
        a('s_bfe_u32 s41, s40, 0x%x' % ((2 << 16) | (2 * i + 2))); a('s_lshl_b32 s41, s41, 16'); a('s_or_b32 %s, s38, s41' % s(44 + i))
        a('s_bfe_u32 s41, s40, 0x%x' % ((4 << 16) | (4 * i + 4))); a('s_lshl_b32 s41, s41, 4'); a('s_or_b32 %s, s39, s41' % s(48 + i))
def srd(d, nbytes): a('s_mov_b32 %s, 0x%x' % (s(d + 2), nbytes)); a('s_mov_b32 %s, 0x00020000' % s(d + 3))
def blk(dst, tmp):
    if optv('bm', 0):
        e = optv('bm', 0) - 1
        a('s_add_u32 %s, s2, %d' % (s(tmp), 7 - e)); a('s_and_b32 %s, %s, 7' % (s(tmp), s(tmp))); a('s_bfe_u32 %s, s2, 0x10006' % s(tmp + 1))
        a('s_lshl_b32 %s, %s, 1' % (s(dst), s(tmp))); a('s_add_u32 %s, %s, %s' % (s(dst), s(dst), s(tmp + 1))); a('s_min_u32 %s, %s, 14' % (s(dst), s(dst)))
        return
    a('s_add_u32 %s, s2, 4' % s(tmp)); a('s_and_b32 %s, %s, 7' % (s(tmp), s(tmp))); a('s_bfe_u32 %s, s2, 0x10006' % s(tmp + 1))
    a('s_lshl_b32 %s, %s, 1' % (s(dst), s(tmp))); a('s_add_u32 %s, %s, %s' % (s(dst), s(dst), s(tmp + 1)))
    a('s_cmp_lg_u32 %s, 0' % s(tmp + 1)); a('s_cselect_b32 %s, 8, %s' % (s(tmp + 1), s(tmp))); a('s_add_u32 %s, %s, 6' % (s(tmp + 1), s(tmp + 1)))
    a('s_cmp_lt_u32 %s, 6' % s(tmp)); a('s_cselect_b32 %s, %s, %s' % (s(dst), s(dst), s(tmp + 1)))
def keys_argmax(K, gidx, name):
    a('v_xor_b32 %s, s40, %s' % (v(K + 8), v(K + 3))); a('v_xor_b32 %s, s40, %s' % (v(K + 9), v(K + 7)))
    a('v_max_u32 %s, %s, %s' % (v(K + 10), v(K), v(K + 4)))
    a('v_or_b32 %s, %s, %s' % (v(K + 8), v(K + 8), v(K + 9)))
    a('v_cmp_ne_u32 vcc, 0, %s' % v(K + 8))
    poll_retry(name)
    for pat in ['quad_perm:[1,0,3,2] ' + DPPF, 'quad_perm:[2,3,0,1] ' + DPPF, 'row_half_mirror ' + DPPF,
                'row_mirror ' + DPPF, 'row_bcast:15 row_mask:0xa bank_mask:0xf', 'row_bcast:31 row_mask:0xc bank_mask:0xf']:
        a('v_max_u32_dpp %s, %s, %s %s' % (v(K + 10), v(K + 10), v(K + 10), pat))
    a('v_readlane_b32 s36, %s, 63' % v(K + 10))

def gen():
    PIN = optv('pin', 1); WLIN = optv('wlin', 0); YLIN = optv('ylin', 0); WT = optv('wt', 1); DTH = optv('dth', 0); SPEC = optv('spec', 0); EP2 = optv('ep2', 0); EP = optv('ep', 5); TWO = optv('two', 0); L2P = optv('l2p', 0); DEC = optv('dec', 0)
    APP = optv('app', 0); WL = optv('wl', 0)
    BP = optv('bp', 1); THR = optv('thr', 0); THR2 = optv('thr2', 0)
    KP = optv('kp', 0); DB = optv('db', 3)
    PFC = optv('pfc', 1); WSP = optv('wsp', 2204); WE = WSP // 1000; W2 = WE + WSP // 100 % 10; W3 = W2 + WSP // 10 % 10; assert W3 + WSP % 10 == 8; OLATE = '--olate' in OPT; GATE = optv('gate', 0)
    TOUCH = optv('touch', 0); LOCAL = '--nolocal' not in OPT
    NE = optv('ne', 0); LATEX = '--earlyx' not in OPT
    a.raw('.globl fz_kernel'); a.raw('.p2align 8'); a.raw('.type fz_kernel,@function'); a.lines.append('fz_kernel:')
    st()
    if STAMPS:
        for i in range(1, 16): a('s_mov_b32 s%d, %d' % (70 + 2 * i, 0 if ('--cnt' in OPT and i < 4) else -1))
    F1, TC, TS, C2, S2, B3C, B3S, CQ = 16, 24, 32, 40, 48, 56, 64, 72
    XA, XB, XAC, XBC, H, T, TP, ST = 88, 96, 104, 120, 136, 144, 152, 160
    XD, WV, WD = 28, 200, 168
    vSW, vSR, vWST, vHL, vA0, vA1, vAR, vY0, vY1, vYL, vM, vT, vXR, vXM, vE0, vM0, vYE, vZM = 216, 217, 221, 222, 223, 224, 225, 226, 227, 228, 229, 230, 231, 232, 233, 234, 236, 238
    vL16, vSG, vM0m, vPW, vPD, vPR, vKA, vCA, vTK, vMT, vE = 239, 240, 241, 243, 244, 245, 246, 247, 248, 249, 252
    a('s_load_dwordx2 s[4:5], s[0:1], 96'); a('s_load_dwordx2 s[8:9], s[0:1], 0'); a('s_load_dwordx2 s[64:65], s[0:1], 72')
    a('s_cmp_gt_u32 s2, 255'); a('s_cbranch_scc1 fz_end')
    a('v_lshrrev_b32 v2, 6, v0'); a('v_and_b32 v1, 63, v0')
    a('s_lshr_b32 s59, s2, 7')
    a('v_readfirstlane_b32 s3, v2')
    if PFC:
        a('s_and_b32 s20, s2, %d' % (255 if '--pfh0' in OPT else 127)); a('s_cmp_lt_u32 s20, %d' % (8 * PFC)); a('s_cselect_b32 s20, s3, 0'); a('s_cmp_lt_u32 s20, 4'); a('s_cbranch_scc1 fz_pfcback')
        a('s_getpc_b64 s[20:21]')
        a.lines.append('fz_pcb:')
        a('s_sub_u32 s20, s20, fz_pcb-fz_kernel'); a('s_subb_u32 s21, s21, 0')
        a('v_and_b32 v3, 255, v0'); a('v_lshlrev_b32 v3, 7, v3'); a('v_min_u32 v3, fz_codeend-fz_kernel-4, v3')
        a('v_mov_b32 v5, s21'); a('v_add_co_u32 v4, vcc, s20, v3'); a('v_addc_co_u32 v5, vcc, 0, v5, vcc')
        a('global_load_dword v251, v[4:5], off')
        a.lines.append('fz_pfcback:')
    a('s_cmp_lg_u32 s59, 0'); a('s_cbranch_scc1 fz_ldh')
    a('s_load_dwordx2 s[12:13], s[0:1], 80'); a('s_load_dwordx2 s[16:17], s[0:1], 48')
    a.lines.append('fz_ldback:')
    a('s_add_u32 s20, s2, %d' % POFS); a('s_and_b32 s20, s20, 127')
    a('s_lshr_b32 s21, s20, 3'); a('s_add_u32 s21, s21, 1'); a('s_and_b32 s22, s20, 7')
    a('s_sub_u32 s23, s20, 124'); a('s_cmp_ge_u32 s20, 124'); a('s_cselect_b32 s21, 0, s21'); a('s_cselect_b32 s22, s23, s22')
    a('s_lshr_b32 s57, s3, 2'); a('s_or_b32 s23, s57, s59'); a('s_and_b32 s24, s3, 3')
    a('s_lshl_b32 s25, s22, 6'); a('s_add_u32 s25, s25, s21')
    a('s_lshl_b32 s26, s23, 5'); a('s_add_u32 s26, s26, s25')
    a('s_lshl_b32 s27, s24, 9'); a('s_add_u32 s28, s26, s27')
    a('s_sub_u32 s27, 2048, s27'); a('s_sub_u32 s27, s27, s26')
    a('s_lshl_b32 s29, s24, 1'); a('s_add_u32 s29, s29, s23'); a('s_sub_u32 s30, 15, s29')
    a('s_cmp_lt_u32 s24, 2'); a('s_cselect_b32 s27, s28, s27'); a('s_cselect_b32 s31, s29, s30'); a('s_cselect_b32 s30, s30, s29')
    a('s_sub_u32 s28, 2048, s27'); a('s_and_b32 s28, s28, 2047')
    a('s_lshl_b32 s27, s27, 11'); a('s_lshl_b32 s28, s28, 11')
    a('s_mul_i32 s31, s31, %d' % RS); a('s_mul_i32 s30, s30, %d' % RS)
    a('v_lshlrev_b32 %s, 4, v1' % v(vL16))
    srd(8, 2048 * 2048); srd(4, WSB); srd(64, 0x700000)
    a('s_and_b32 s32, s57, s59')
    blk(63, 36); a('s_lshl_b32 s63, s63, 3'); a('s_bfe_u32 s37, s2, 0x30003'); a('s_add_u32 s63, s63, s37')
    a('v_and_b32 v10, 15, v1'); a('v_lshlrev_b32 v10, 4, v10'); a('v_lshrrev_b32 v14, 4, v1'); a('v_lshl_add_u32 v14, v14, 11, v10')
    a('s_lshl_b32 s62, s63, 16'); a('s_and_b32 s37, s3, 3'); a('s_lshl_b32 s37, s37, 9'); a('s_add_u32 s62, s62, s37')
    WQ = [160 + 4 * i for i in range(10)] + [60, 64, 68, 88, 92, 96]
    def wdload(q0=0, q1=8):
        for q in range(q0, q0 if '--xnowd' in OPT else q1):
            for h in range(2): a('buffer_load_dwordx4 %s, v14, s[64:67], s62 offen offset:%d%s' % (v(WQ[2 * q + h], 4), 256 * h, '' if '--wpl' in OPT else ' nt'))
            if q < 7: a('s_add_u32 s62, s62, 8192')
    a('s_mov_b32 s58, 0')
    a('s_waitcnt lgkmcnt(0)')
    st()
    a('s_cmp_eq_u32 s2, %d' % SPID); a('s_cbranch_scc1 fz_spec')
    a.lines.append('fz_specback:')
    def xload(f=''):
        a('s_mov_b32 m0, s31'); a('s_nop 0')
        a('buffer_load_dwordx4 %s, s[8:11], s27 offen%s lds' % (v(vL16), f)); a('buffer_load_dwordx4 %s, s[8:11], s27 offen offset:1024%s lds' % (v(vL16), f))
        a('s_mov_b32 m0, s30'); a('s_nop 0')
        a('buffer_load_dwordx4 %s, s[8:11], s28 offen%s lds' % (v(vL16), f)); a('buffer_load_dwordx4 %s, s[8:11], s28 offen offset:1024%s lds' % (v(vL16), f))
    def extras():
        a('v_lshlrev_b32 v13, 3, v0'); a('v_mov_b32 v10, -1'); a('v_mov_b32 v11, -1'); a('s_lshl_b32 s32, s20, 11'); a('s_add_u32 s32, s32, 0x%x' % (COFF - 2048))
        srd(16, 2048)
        a('s_lshl_b32 s33, s24, 10'); a('s_min_u32 s34, s33, 2048'); a('s_add_u32 s34, s34, %d' % WR); a('s_mov_b32 m0, s34')
        a('buffer_store_dwordx2 v[10:11], v13, s[4:7], s32 offen sc1')
        a('buffer_load_dwordx4 %s, s[16:19], s33 offen lds' % v(vL16))
    def latex(): xload(' nt' if optv('xnt', 3) & 2 else ''); extras()
    a('s_cmp_lg_u32 %s, 0' % ('s57' if LATEX else 's32')); a('s_cbranch_scc1 fz_nox')
    xload(' nt' if optv('xnt', 3) & 1 else '')
    a.lines.append('fz_nox:')
    a('buffer_load_dword v250, off, s[4:7], 0')
    if WE:
        a('s_andn2_b32 s32, s57, s59'); a('s_cbranch_scc0 fz_nowe')
        wdload(0, WE)
        a.lines.append('fz_nowe:')
    if not LATEX:
        a('s_andn2_b32 s32, s3, 3'); a('s_cmp_gt_u32 s32, s59'); a('s_cselect_b32 s32, 1, 0'); a('s_andn2_b32 s32, s32, s59'); a('s_cbranch_scc0 fz_noclr')
        extras()
        a.lines.append('fz_noclr:')
    est(6)
    if BP: a('s_cmp_eq_u32 s57, 0'); a('s_cbranch_scc1 fz_np'); a('s_setprio 1'); a.lines.append('fz_np:')
    a('v_and_b32 v2, 31, v1'); a('v_lshrrev_b32 v3, 5, v1'); a('v_and_b32 v4, 15, v1'); a('v_lshrrev_b32 v5, 4, v1')
    a('v_add_u32 v6, %d, %s' % (CT, v(vL16)))
    TT = XAC
    JT = 128
    def cq_job():
        a('s_and_b32 s32, s3, 1'); a('s_lshl_b32 s33, s32, 2'); a('s_lshl_b32 s32, s32, 11')
        a('v_and_b32 v8, 3, v4'); a('v_lshrrev_b32 v9, 2, v4'); a('v_lshl_add_u32 v8, v8, 3, v9'); a('v_add_u32 v8, s33, v8')
        a('v_cvt_f32_u32 v8, v8'); a('v_mul_f32 v8, %s, v8' % fh(1 / 32)); a('v_cvt_f32_u32 v9, v5'); a('v_mul_f32 v9, 4.0, v9'); a('v_mul_f32 v9, v8, v9')
        angles(8, 9, [0, 1, 2, 3, 16, 17, 18, 19], TT)
        for i in range(8): a('v_sin_f32 %s, %s' % (v(TT + 8 + i), v(TT + i)))
        trig('cos', TT, 8)
        for i in range(16): a('v_mul_f32 %s, %s, %s' % (v(TT + i), fh(1 / 16), v(TT + i)))
        pack(JT, TT, 16); a('v_add_u32 v8, s32, v6')
        for q in range(2): a('ds_write_b128 v8, %s offset:%d' % (v(JT + 4 * q, 4), 1024 * (14 + q)))
    a('v_lshrrev_b32 v10, 1, v2'); a('v_and_b32 v8, 9, v10'); a('v_and_b32 v11, 2, v10'); a('v_lshl_or_b32 v8, v11, 1, v8')
    a('v_bfe_u32 v11, v10, 2, 1'); a('v_lshl_or_b32 v8, v11, 1, v8')
    a('v_and_b32 v12, 1, v5'); a('v_cmp_eq_u32 vcc, 1, v12'); a('v_lshl_add_u32 v9, v4, 1, 1'); a('v_cndmask_b32 v9, v9, 0, vcc')
    a('s_cmp_lt_u32 s3, 5'); a('s_cselect_b64 s[32:33], -1, 0')
    a('s_cmp_lt_u32 s3, 3'); a('s_cselect_b64 s[34:35], -1, 0')
    a('v_cndmask_b32 v9, v9, v2, s[32:33]'); a('v_cndmask_b32 v8, v9, v8, s[34:35]')
    a('s_mov_b32 s36, %s' % fh(1 / 32)); a('s_cmp_gt_u32 s3, 4'); a('s_cselect_b32 s36, %s, s36' % fh(1 / 64))
    a('s_sub_u32 s37, s3, 1'); a('s_cmp_lt_u32 s37, 2'); a('s_cselect_b32 s36, %s, s36' % fh(1 / 1024))
    a('s_cmp_eq_u32 s3, 0'); a('s_cselect_b32 s32, 16, 0'); a('s_cselect_b32 s33, %s, 0' % fh(0.25)); a('s_cselect_b32 s34, 4.0, %s' % fh(8.0)); a('s_cselect_b32 s35, %s, 4.0' % fh(8.0))
    a('v_cmp_eq_u32 vcc, 1, v2'); a('v_mov_b32 v10, s32'); a('v_cndmask_b32 v10, 0, v10, vcc'); a('v_add_u32 v8, v8, v10')
    a('v_cvt_f32_u32 v8, v8'); a('v_mul_f32 v8, s36, v8')
    a('s_cmp_eq_u32 s3, 2'); a('s_cselect_b32 s32, 0x80000000, 0'); a('v_lshlrev_b32 v10, 31, v2'); a('v_and_b32 v10, s32, v10'); a('v_xor_b32 v8, v10, v8')
    a('v_and_b32 v10, 1, v2'); a('v_cvt_f32_u32 v10, v10'); a('v_mul_f32 v10, s33, v10')
    a('s_cmp_eq_u32 s3, 1'); a('s_cselect_b32 s33, %s, 0' % fh(0.25)); a('v_mov_b32 v11, s33'); a('v_cndmask_b32 v10, v10, v11, vcc')
    a('s_cmp_eq_u32 s3, 5'); a('s_cselect_b32 s33, %s, 0' % fh(0.25)); a('v_cvt_f32_u32 v12, v12'); a('v_fma_f32 v10, v12, s33, v10')
    a('s_cmp_eq_u32 s3, 6'); a('s_cselect_b32 s33, %s, 0' % fh(0.25))
    a('s_cmp_eq_u32 s3, 2'); a('s_cselect_b32 s33, %s, s33' % fh(-0.25)); a('s_cmp_eq_u32 s3, 4'); a('s_cselect_b32 s33, %s, s33' % fh(-0.25))
    a('v_add_f32 v10, s33, v10'); a('v_cvt_f32_u32 v11, v3'); a('v_mul_f32 v11, s35, v11'); a('v_fma_f32 v9, v8, v11, v10')
    a('v_mul_f32 v10, s34, v8'); a('v_mul_f32 v11, %s, v8' % fh(16.0))
    angles(8, 9, [0, 1, 2, 3], TT)
    for i in range(4): a('v_add_f32 %s, %s, v10' % (v(TT + 4 + i), v(TT + i)))
    for i in range(8): a('v_add_f32 %s, %s, v11' % (v(TT + 8 + i), v(TT + i)))
    est(7)
    trig('cos', TT, 16)
    a('s_lshl_b32 s32, s3, 11'); a('v_add_u32 v8, s32, v6')
    a('s_cmp_eq_u32 s3, 0'); a('s_cbranch_scc1 fz_jb')
    pack(JT, TT, 16)
    a.lines.append('fz_jend:')
    for q in range(2): a('ds_write_b128 v8, %s offset:%d' % (v(JT + 4 * q, 4), 1024 * q))
    B1, TC2, TS2 = 16, 20, 24
    vA = [vA0, vA1, 100, 101]
    def sync_add(val):
        a('v_mov_b32 v10, %d' % val); a('s_mov_b64 exec, 1'); a('ds_add_u32 v15, v10'); a('s_mov_b64 exec, -1')
    def SETA():
        a('s_and_b32 s32, s3, 3'); a('s_lshr_b32 s33, s3, 2'); a('s_lshl_b32 s33, s33, 4'); a('s_add_u32 s33, s33, s32')
        a('v_and_b32 v8, 12, v4'); a('v_bfe_u32 v9, v4, 1, 1'); a('v_lshl_add_u32 v8, v9, 5, v8'); a('v_add_u32 v8, s33, v8')
        a('v_cvt_f32_u32 v8, v8'); a('v_and_b32 v12, 1, v1'); a('v_cvt_f32_u32 v9, v12'); a('v_lshlrev_b32 v13, 2, v5'); a('v_cvt_f32_u32 v10, v13')
        a('v_mul_f32 v11, %s, v8' % fh(1 / 64)); a('v_mul_f32 v9, %s, v9' % fh(0.25)); a('v_fma_f32 v9, v11, v10, v9')
        TT = XAC
        angles(11, 9, [0, 1, 2, 3], TT + 24)
        a('v_mul_f32 v11, %s, v8' % fh(1 / 2048)); a('v_lshlrev_b32 v9, 31, v1'); a('v_xor_b32 v11, v9, v11'); a('v_mul_f32 v9, v11, v10')
        angles(11, 9, [0, 1, 2, 3, 16, 17, 18, 19], TT + 8)
        for i in range(8): a('v_%s_f32 %s, %s' % ('sin' if i & 1 else 'cos', v(TT + i), v(TT + 24 + (i >> 1))))
        for i in range(8): a('v_sin_f32 %s, %s' % (v(TT + 16 + i), v(TT + 8 + i)))
        trig('cos', TT + 8, 8)
        pack(B1, TT, 24)
        a('v_lshrrev_b32 v8, 3, v1'); a('v_mul_u32_u24 %s, %d, v8' % (v(vHL), PS)); a('v_and_b32 v9, %d, v1' % (3 if WLIN else 7)); a('v_lshl_add_u32 %s, v9, 4, %s' % (v(vHL), v(vHL)))
        if WLIN: a('v_bfe_u32 v9, v1, 2, 1'); a('v_lshl_add_u32 %s, v9, 13, %s' % (v(vHL), v(vHL)))
        a('s_mul_i32 s60, s3, %d' % (32 * PS)); a('s_lshl_b32 s32, s20, %d' % (6 if WLIN else 7)); a('s_add_u32 s60, s60, s32'); a('s_add_u32 s60, s60, 0x%x' % WOFF); a('s_add_u32 s61, s60, %d' % (8 * PS)); a('s_add_u32 s16, s60, %d' % (16 * PS)); a('s_add_u32 s17, s60, %d' % (24 * PS))
        a('v_lshlrev_b32 v8, 1, v8'); a('v_bfe_u32 v9, v1, 2, 1'); a('v_add_u32 v8, v8, v9'); a('s_lshl_b32 s32, s3, 2'); a('s_add_u32 s32, s32, 1')
        a('v_lshl_add_u32 v8, v8, 5, s32')
        a('v_cmp_eq_u32 vcc, 1, v12')
        a('v_bfe_u32 v9, v1, 1, 1'); a('v_mul_u32_u24 v9, %d, v9' % CPS); a('v_add_u32 v9, %d, v9' % AB)
        a('s_cmp_eq_u32 s3, 3'); a('s_cselect_b32 s32, 272, 0')
        for u, dst in enumerate(vA):
            if u == 3: a('v_mul_u32_u24 v10, s32, v3'); a('v_sub_u32 v8, v8, v10')
            if u: a('v_add_u32 v8, 1, v8')
            a('v_sub_u32 v10, 512, v8'); a('v_cndmask_b32 v10, v8, v10, vcc')
            if u == 3: a('v_lshrrev_b32 v11, 1, v10'); a('v_and_b32 v11, 256, v11'); a('v_sub_u32 v10, v10, v11')
            a('v_and_b32 v11, 16, v10'); a('v_lshl_add_u32 v11, v11, 6, v9'); a('v_lshrrev_b32 v12, 7, v10'); a('v_lshl_add_u32 v11, v12, 8, v11')
            a('v_and_b32 v12, 15, v10'); a('v_lshl_add_u32 v11, v12, 4, v11'); a('v_bfe_u32 v12, v10, 5, 2'); a('v_lshl_add_u32 %s, v12, 2, v11' % v(dst))
        a('s_and_b32 s32, s3, 3'); a('s_lshl_b32 s32, s32, 11'); a('s_add_u32 s32, s32, %d' % AB); a('v_add_u32 %s, s32, %s' % (v(vAR), v(vL16)))
        if not YLIN:
            a('v_add_u32 v8, s33, v13')
            a('v_sub_u32 v9, 32, v8'); a('v_min_u32 v9, v8, v9')
            a('v_and_b32 v10, 15, v8'); a('v_cmp_eq_u32 s[32:33], 0, v10')
            a('v_cmp_lt_u32 s[34:35], 16, v8')
            a('v_lshlrev_b32 v10, 10, v9'); a('v_subrev_u32 v10, 1024, v10'); a('v_mov_b32 v11, %d' % (124 * 128)); a('v_cmp_eq_u32 vcc, 0, v8'); a('v_cndmask_b32 v10, v10, v11, vcc')
            a('v_and_b32 v11, 3, v1'); a('v_lshl_add_u32 v10, v11, 4, v10')
            a('v_lshrrev_b32 v11, 2, v4'); a('v_lshlrev_b32 v12, 7, v11')
            for tau, dst in ((0, vY0), (1, vY1)):
                if tau: a('s_or_b64 s[34:35], s[34:35], s[32:33]'); a('v_add_u32 v12, 512, v12')
                a('v_sub_u32 v13, %d, v12' % (7 * 128 + 64))
                a('v_cndmask_b32 v13, v12, v13, s[34:35]'); a('v_add_u32 %s, v10, v13' % v(dst))
        a('s_mul_i32 s56, s20, %d' % PS); a('s_add_u32 s56, s56, 0x%x' % YOFF)
        if YLIN: a('s_lshl_b32 s32, s3, 11'); a('s_add_u32 s56, s56, s32')
        a('v_mov_b32 %s, 0x30003' % v(vMT))
        for k in range(4): a('v_mov_b32 %s, %s' % (v(vE + k), s(44 + k)))
        a('s_waitcnt lgkmcnt(0)')
    def SETB(sfx):
        a('v_sub_u32 v8, 15, v4'); a('v_min_u32 v8, v4, v8')
        a('v_and_b32 v9, 1, v8'); a('v_lshlrev_b32 v9, 5, v9'); a('v_lshrrev_b32 v10, 1, v8'); a('v_lshl_add_u32 v9, v10, 9, v9'); a('v_add_u32 v9, s25, v9')
        a('v_sub_u32 v10, 2048, v9'); a('v_cmp_lt_u32 s[34:35], 7, v4'); a('v_cndmask_b32 %s, v9, v10, s[34:35]' % v(vT))
        a('v_mov_b32 v9, v4'); a('v_mov_b32 v10, s20')
        a('s_cmp_lg_u32 s21, 0'); a('s_cbranch_scc0 fz_spec3%s' % sfx)
        a.lines.append('fz_spec3back%s:' % sfx)
        if YLIN:
            a('v_mul_u32_u24 v11, %d, v5' % (4 * PS)); a('v_and_b32 v10, 0xc0, %s' % v(vT)); a('v_add_u32 v11, v11, v10')
            for pos, wid, dst in ((0, 2, 11), (4, 1, 13), (8, 1, 10), (2, 2, 8), (9, 2, 4)):
                a('v_bfe_u32 v10, %s, %d, %d' % (v(vT), pos, wid)); a('v_lshl_add_u32 v11, v10, %d, v11' % dst)
            a('v_bfe_u32 v9, %s, 5, 1' % v(vT)); a('v_lshl_add_u32 %s, v9, 3, v11' % v(vYL))
        else:
            a('v_lshlrev_b32 v10, 7, v10'); a('v_lshl_add_u32 v10, v9, 3, v10'); a('v_mul_u32_u24 v11, %d, v5' % (4 * PS)); a('v_add_u32 %s, v10, v11' % v(vYL))
        a('v_and_b32 v9, 1, v9'); a('v_cmp_eq_u32 vcc, 1, v9')
        a('v_mov_b32 v9, s44'); a('v_mov_b32 v10, s46'); a('v_cndmask_b32 %s, v9, v10, vcc' % v(vYE))
        a('v_mov_b32 v9, s45'); a('v_mov_b32 v10, s47'); a('v_cndmask_b32 %s, v9, v10, vcc' % v(vYE + 1))
        a('s_lshl_b32 s32, s3, 2'); a('v_add_u32 v8, s32, v5')
        a('v_lshlrev_b32 v9, 6, v8')
        a('v_cmp_gt_u32 vcc, 16, v8'); a('v_cndmask_b32 v10, 0, 32, vcc'); a('v_add_u32 v10, v9, v10')
        a('v_sub_u32 v11, 2048, v10'); a('v_cmp_eq_u32 vcc, 16, v8'); a('v_cndmask_b32 v11, v11, 0, vcc')
        a('v_mov_b32 v12, 0xffff0000'); a('v_cndmask_b32 %s, -1, v12, vcc' % v(vZM))
        a('v_sub_u32 v12, %d, v9' % (2048 - 30))
        a('v_mul_u32_u24 v13, %d, v4' % RS)
        a('v_add_u32 %s, v13, v9' % v(vXR)); a('v_add_u32 %s, v13, v12' % v(vXM)); a('v_add_u32 %s, v13, v10' % v(vE0)); a('v_add_u32 v241, v13, v11')
        a('s_lshl_b32 s32, s3, 8'); a('s_add_u32 s32, s32, %d' % PR)
        a('v_lshlrev_b32 v9, 4, v4'); a('v_add_u32 v10, s32, v9'); a('v_add_u32 v11, %d, %s' % (TRASH, v(vL16)))
        a('v_cmp_gt_u32 vcc, 16, v1'); a('v_cndmask_b32 %s, v11, v10, vcc' % v(vPW))
        a('v_lshrrev_b32 v12, 2, v4'); a('v_cmp_eq_u32 vcc, v12, v5'); a('v_cndmask_b32 %s, v11, v10, vcc' % v(vPD))
        a('v_lshrrev_b32 v12, 5, v1'); a('v_lshl_add_u32 v10, v12, 10, v9'); a('v_add_u32 %s, %d, v10' % (v(vPR), PR))
        a('v_and_b32 v9, 1, v1'); a('v_cmp_eq_u32 s[28:29], 1, v9'); a('v_and_b32 v9, 2, v1'); a('v_cmp_eq_u32 s[30:31], 2, v9')
        a('s_lshl_b32 s37, s3, 2'); a('v_add_u32 v9, s37, v5'); a('v_mul_u32_u24 %s, %d, v9' % (v(vKA), KS))
        a('s_lshl_b32 s26, s20, %d' % KRL); a('s_add_u32 s26, s26, 0x%x' % KOFF)
        a('v_lshlrev_b32 %s, 4, v5' % v(vCA)); a('s_lshl_b32 s27, s20, 11'); a('s_lshl_b32 s37, s3, 8'); a('s_add_u32 s27, s27, s37'); a('s_add_u32 s27, s27, 0x%x' % COFF)
        a('v_sub_u32 %s, 2047, %s' % (v(vTK), v(vT)))
        srd(12, 2048 * 2048)
        a('s_mul_i32 s52, s3, %d' % (16 * PS)); a('s_add_u32 s52, s52, 0x%x' % YOFF)
        for jx in range(1, 4): a('s_add_u32 %s, s52, %d' % (s(52 + jx), jx * PS))
        a('s_mov_b32 s23, s63')
        a('s_getreg_b32 s24, hwreg(HW_REG_XCC_ID)'); a('s_and_b32 s24, s24, 15')
        a('v_lshlrev_b32 v10, 4, v0'); a('v_min_u32 v10, 4336, v10'); a('v_add_u32 v10, %d, v10' % ACT)
        for k in range(4): a('v_mov_b32 %s, 0' % v(XAC + k))
        a('ds_write_b128 v10, %s' % v(XAC, 4))
    def SET2():
        XP = 116
        a('ds_read_b128 %s, %s' % (v(XP, 4), v(vXR))); a('ds_read_b128 %s, %s offset:16' % (v(XP + 4, 4), v(vXR)))
        a('ds_read_u16_d16_hi %s, %s' % (v(XD + 16), v(vM0m)))
        for e in range(1, 16): a('ds_read_u16_d16_hi %s, %s offset:%d' % (v(XD + 16 + e), v(vXM), 2 * (15 - e)))
        a('ds_read_u16_d16_hi %s, %s' % (v(XD), v(vE0)))
        a('v_mul_u32_u24 v13, %d, v4' % RS); a('v_subrev_u32 v13, %d, v13' % WR)
        for r, src in ((9, vXR), (10, vE0), (11, vM0m), (12, vXM)): a('v_sub_u32 %s, %s, v13' % (v(r), v(src)))
        a('s_mov_b32 s36, 0xffff0000')
        a('s_waitcnt lgkmcnt(0)')
        a('ds_read_b128 %s, v9' % v(WV, 4)); a('ds_read_b128 %s, v9 offset:16' % v(WV + 4, 4))
        a('ds_read_u16_d16 %s, v11' % v(WV + 8))
        for e in range(1, 16): a('ds_read_u16_d16%s %s, v12 offset:%d' % ('_hi' if e & 1 else '', v((XP + 8 if e & 1 else WV + 8) + (e >> 1)), 2 * (15 - e)))
        a('ds_read_u16_d16 v13, v10')
        for k in range(8):
            if k: a('v_lshlrev_b32 %s, 16, %s' % (v(XD + 2 * k), v(XP + k)))
            a('v_and_b32 %s, s36, %s' % (v(XD + 2 * k + 1), v(XP + k)))
        a('v_cmp_eq_u32 vcc, 1, v4'); a('v_mov_b32 v9, s42'); a('v_cndmask_b32 v9, 0, v9, vcc')
        for k in range(4): a('v_mov_b32 %s, s42' % v(XP + k))
        a('v_cmp_eq_u32 vcc, 0, v4')
        a('s_waitcnt lgkmcnt(0)')
        a('v_and_or_b32 %s, %s, s36, v13' % (v(WV), v(WV)))
        for k in range(8): a('v_or_b32 %s, %s, %s' % (v(WV + 8 + k), v(WV + 8 + k), v(XP + 8 + k)))
        for k in range(16): a('v_cndmask_b32 %s, v9, %s, vcc' % (v(WV + k), v(WV + k)))
        for q in range(4): a('v_mfma_f32_16x16x32_bf16 %s, %s, %s, %s' % (v(XP + 4, 4), v(WV + 4 * q, 4), v(XP, 4), v(XP + 4, 4) if q else '0'))
        a('ds_write_b32 %s, %s offset:12' % (v(vPW), v(XP + 4)))
    a('v_mov_b32 v15, %d' % SYNC); a('v_mov_b32 v10, 0'); a('ds_write_b32 v15, v10')
    est(8)
    a('s_waitcnt lgkmcnt(0)')
    a('s_barrier')
    est(10)
    a('v_lshlrev_b32 %s, 31, v1' % v(vSG)); a('v_lshrrev_b32 v10, 16, %s' % v(vSG)); a('v_or_b32 %s, %s, v10' % (v(vSG), v(vSG)))
    a('v_mov_b32 %s, 0xfffcfffc' % v(vM))
    a('v_mov_b32 v242, 0xffff0000'); a('s_mov_b32 s42, 0x3f803f80')
    a('s_cmp_lg_u32 s57, 0'); a('s_cbranch_scc1 fz_nc1')
    for q in range(14): a('ds_read_b128 %s, v6 offset:%d' % (v(F1 + 4 * q, 4), 1024 * q))
    a('v_lshlrev_b32 v7, 9, v3'); a('v_bfe_u32 v10, v1, 2, 2'); a('v_lshl_add_u32 v7, v10, 6, v7')
    a('v_and_b32 v10, 1, v5'); a('v_lshl_add_u32 v7, v10, 5, v7'); a('v_and_b32 v10, 3, v1'); a('v_lshl_add_u32 v7, v10, 3, v7'); a('v_add_u32 v7, s31, v7')
    a('v_lshlrev_b32 v8, 9, v3'); a('v_lshl_add_u32 v8, v2, 1, v8'); a('v_sub_u32 v9, 2048, v8'); a('v_and_b32 v9, 2047, v9'); a('v_add_u32 v9, s30, v9')
    a('s_add_u32 s32, s30, %d' % (2048 - 64 * 23)); a('v_sub_u32 v8, s32, v8')
    a('v_cmp_eq_u32 vcc, 0, v2'); a('v_cndmask_b32 %s, 0, -2.0, vcc' % v(vM0))
    a('v_mov_b32 %s, %s' % (v(vM0 + 1), fh(256e-5)))
    a('s_lshr_b32 s32, s24, 1'); a('s_lshl_b32 s32, s32, 6'); a('s_mul_i32 s33, s3, 2304'); a('s_add_u32 s32, s32, s33'); a('s_add_u32 s32, s32, %d' % SB)
    a('v_lshl_add_u32 v10, v3, 1, v1'); a('v_lshlrev_b32 v10, 4, v10'); a('v_add_u32 %s, s32, v10' % v(vSW))
    a('v_bfe_u32 v10, v0, 2, 1'); a('v_mul_u32_u24 v10, 34, v10'); a('v_lshrrev_b32 v11, 4, v0'); a('v_add_u32 v10, v10, v11'); a('v_lshlrev_b32 v10, 4, v10')
    a('v_bfe_u32 v11, v0, 3, 1'); a('v_lshl_add_u32 v10, v11, 3, v10'); a('v_bfe_u32 v11, v0, 1, 1'); a('v_lshl_add_u32 v10, v11, 2, v10')
    a('v_and_b32 v12, 1, v0')
    a('s_mov_b32 s33, %d' % (4 * 2304)); a('s_cmp_eq_u32 s2, %d' % SPID)
    for k in range(4):
        pm = 1152 if k >= 2 else 0
        o0 = k * 2304 + pm + (64 if k >= 2 else 0); o1 = (3 - k) * 2304 + pm + (64 if (3 - k) >= 2 else 0)
        a('s_cselect_b32 s32, s33, 0x%x' % ((o1 - o0) & 0xffffffff))
        a('v_mul_lo_u32 v11, v12, s32'); a('v_add_u32 %s, v10, v11' % v(vSR + k)); a('v_add_u32 %s, %d, %s' % (v(vSR + k), SB + o0, v(vSR + k)))
    if WLIN: a('v_lshlrev_b32 %s, 4, v0' % v(vWST))
    else: a('v_lshrrev_b32 v10, 2, v0'); a('v_and_b32 v11, 3, v0'); a('v_lshlrev_b32 v11, 4, v11'); a('v_lshl_add_u32 %s, v10, 7, v11' % v(vWST))
    a('s_mul_i32 s52, s20, %d' % PS); a('s_lshl_b32 s33, s59, %d' % (13 if WLIN else 6)); a('s_add_u32 s52, s52, s33'); a('s_add_u32 s52, s52, 0x%x' % WOFF)
    a('s_add_u32 s53, s52, %d' % (4096 if WLIN else 8192))
    def tags2():
        tags()
        a('s_mov_b32 s38, 0x404'); a('s_cmp_eq_u32 s2, %d' % SPID); a('s_cselect_b32 s39, 8, 4'); a('s_cselect_b32 s38, 8, s38')
    est(9)
    for i in range(4): a('v_mov_b32 %s, 0' % v(ST + i))
    a('s_setprio 3')
    st()
    if '--early' in OPT: a('s_waitcnt lgkmcnt(0)'); est(11)
    a('s_waitcnt vmcnt(0) lgkmcnt(0)')
    st()
    for jx in range(2):
        for hh in range(2): a('ds_read_b64_tr_b16 %s, v7 offset:%d' % (v(XA + 4 * jx + 2 * hh, 2), 1024 * jx + 256 * hh))
    for jx in range(2):
        for i in range(8):
            op = 'ds_read_u16_d16_hi' if i & 1 else 'ds_read_u16_d16'
            dst = (H if i & 1 else XB) + 4 * jx + (i >> 1)
            if jx == 0 and i == 0: a('%s %s, v9' % (op, v(dst)))
            else: a('%s %s, v8 offset:%d' % (op, v(dst), 64 * (23 - 16 * jx - i)))
        if jx == 0: a('s_waitcnt lgkmcnt(8)')
        if jx == 0:
            for j2 in range(2): a('v_mfma_f32_32x32x16_bf16 %s, %s, %s, %s' % (v(XAC, 16), v(XA + 4 * j2, 4), v(F1 + 4 * j2, 4), v(XAC, 16) if j2 else '0'))
    for i in range(8):
        a('v_dot2_f32_bf16 %s, %s, s42, %s' % (v(ST), v(XA + i), v(ST))); a('v_dot2_f32_bf16 %s, %s, %s, %s' % (v(ST + 1), v(XA + i), v(XA + i), v(ST + 1)))
    a('s_waitcnt lgkmcnt(0)')
    for i in range(8): a('v_or_b32 %s, %s, %s' % (v(XB + i), v(XB + i), v(H + i)))
    for j2 in range(2): a('v_mfma_f32_32x32x16_bf16 %s, %s, %s, %s' % (v(XBC, 16), v(XB + 4 * j2, 4), v(F1 + 4 * j2, 4), v(XBC, 16) if j2 else '0'))
    for i in range(8):
        a('v_dot2_f32_bf16 %s, %s, s42, %s' % (v(ST + 2), v(XB + i), v(ST + 2))); a('v_dot2_f32_bf16 %s, %s, %s, %s' % (v(ST + 3), v(XB + i), v(XB + i), v(ST + 3)))
    est(12)
    a('v_permlane32_swap_b32 %s, %s' % (v(ST), v(ST + 2))); a('v_permlane32_swap_b32 %s, %s' % (v(ST + 1), v(ST + 3)))
    a('v_add_f32 %s, %s, %s' % (v(ST), v(ST), v(ST + 2))); a('v_add_f32 %s, %s, %s' % (v(ST + 1), v(ST + 1), v(ST + 3)))
    a('v_permlane16_swap_b32 %s, %s' % (v(ST), v(ST + 1)))
    a('v_add_f32 %s, %s, %s' % (v(ST), v(ST), v(ST + 1)))
    for pat in ['quad_perm:[1,0,3,2]', 'quad_perm:[2,3,0,1]', 'row_half_mirror', 'row_mirror']:
        a('v_add_f32_dpp %s, %s, %s %s %s' % (v(ST), v(ST), v(ST), pat, DPPF))
    a('s_mov_b32 s43, %s' % fh(256 / 1024))
    a('v_mov_b32 %s, %s' % (v(ST + 1), v(ST)))
    a('v_permlane16_swap_b32 %s, %s' % (v(ST), v(ST + 1)))
    a('v_mul_f32 %s, %s, %s' % (v(ST), fh(16 / 1024), v(ST)))
    a('v_fma_f32 %s, %s, s43, %s' % (v(ST + 1), v(ST + 1), v(vM0 + 1)))
    a('v_fma_f32 %s, -%s, %s, %s' % (v(ST + 1), v(ST), v(ST), v(ST + 1)))
    a('v_rsq_f32 %s, %s' % (v(ST + 1), v(ST + 1)))
    a('v_mul_f32 %s, %s, %s' % (v(ST), v(ST), v(ST + 1)))
    a('v_readlane_b32 s32, %s, 0' % v(ST + 1)); a('v_readlane_b32 s34, %s, 32' % v(ST + 1)); a('v_readlane_b32 s36, %s, 0' % v(ST)); a('v_readlane_b32 s37, %s, 32' % v(ST))
    a('v_mul_f32 %s, s36, %s' % (v(ST + 4), v(vM0))); a('v_fmac_f32 %s, s37, %s' % (v(ST + 4), v(vM0)))
    for i in range(8): a('v_pk_fma_f32 %s, %s, s[32:33], %s op_sel_hi:[1,0,0]' % (v(XAC + 2 * i, 2), v(XAC + 2 * i, 2), v(ST + 4, 2)))
    for i in range(8): a('v_pk_fma_f32 %s, %s, s[34:35], %s op_sel_hi:[1,0,1]' % (v(XAC + 2 * i, 2), v(XBC + 2 * i, 2), v(XAC + 2 * i, 2)))
    est(13)
    pack(H, XAC, 16)
    for i in range(8): a('v_mov_b32_dpp %s, %s %s' % (v(TP + i), v(H + i), X1))
    D3C, D3S = XBC, XBC + 4
    for i in range(8): a('v_pk_mul_f16 %s, %s, %s' % (v(T + i), v(H + i), v(TC + i)))
    for j2 in range(2):
        a('v_mfma_f32_16x16x32_f16 %s, %s, %s, %s' % (v(D3C, 4), v(H + 4 * j2, 4), v(B3C + 4 * j2, 4), v(D3C, 4) if j2 else '0'))
        for i in range(4): a('v_pk_fma_f16 %s, %s, %s, %s' % (v(T + 4 * j2 + i), v(TP + 4 * j2 + i), v(TS + 4 * j2 + i), v(T + 4 * j2 + i)))
    a('v_mfma_f32_32x32x16_f16 %s, %s, %s, 0' % (v(XAC, 16), v(T, 4), v(C2, 4)))
    for i in range(4): a('v_xor_b32_dpp %s, %s, %s %s' % (v(TP + i), v(T + i), v(vSG), X1))
    a('v_mfma_f32_32x32x16_f16 %s, %s, %s, %s' % (v(XAC, 16), v(T + 4, 4), v(C2 + 4, 4), v(XAC, 16)))
    for i in range(4, 8): a('v_xor_b32_dpp %s, %s, %s %s' % (v(TP + i), v(T + i), v(vSG), X1))
    for j2 in range(2): a('v_mfma_f32_32x32x16_f16 %s, %s, %s, %s' % (v(XAC, 16), v(TP + 4 * j2, 4), v(S2 + 4 * j2, 4), v(XAC, 16)))
    for j2 in range(2): a('v_mfma_f32_16x16x32_f16 %s, %s, %s, %s' % (v(D3S, 4), v(H + 4 * j2, 4), v(B3S + 4 * j2, 4), v(D3S, 4) if j2 else '0'))
    est(14)
    tags2()
    a('s_mov_b64 vcc, 0xffff')
    for p in (7, 6, 5, 4, 3, 2, 1): a('v_cvt_pk_f16_f32 %s, %s, %s' % (v(H + p), v(XAC + 2 * p), v(XAC + 2 * p + 1)))
    a('v_cndmask_b32 %s, %s, %s, vcc' % (v(XAC), v(XAC), v(D3C + 1))); a('v_cndmask_b32 %s, %s, %s, vcc' % (v(XAC + 1), v(XAC + 1), v(D3S + 1)))
    for p in (3, 2, 1, 0):
        if p == 0: a('v_cvt_pk_f16_f32 %s, %s, %s' % (v(H), v(XAC), v(XAC + 1)))
        a('v_pk_add_f16 %s, %s, %s op_sel:[0,1] op_sel_hi:[1,0] neg_lo:[0,1]' % (v(T + p), v(H + 2 * p), v(H + 2 * p + 1)))
        a('v_pk_add_f16 %s, %s, %s op_sel:[0,1] op_sel_hi:[1,0] neg_hi:[1,0]' % (v(T + 4 + p), v(H + 2 * p), v(H + 2 * p + 1)))
    a('ds_write_b128 %s, %s' % (v(vSW), v(T, 4))); a('ds_write_b128 %s, %s offset:1152' % (v(vSW), v(T + 4, 4)))
    a('s_waitcnt lgkmcnt(0)')
    sync_add(1)
    a('s_cmp_gt_u32 s3, 3'); a('s_cbranch_scc1 fz_bsp0')
    a.lines.append('fz_sy:')
    a('ds_read_b32 v10, v15')
    a('s_waitcnt lgkmcnt(0)')
    a('v_and_b32 v10, 0xff, v10'); a('v_cmp_ne_u32 vcc, s39, v10')
    a('s_cbranch_vccnz fz_sy')
    st.n = 4; st()
    Z = XAC
    for rd in range(2):
        for k in range(4): a('ds_read_b32 %s, %s offset:%d' % (v(Z + 4 * rd + k), v(vSR + k), 256 * rd))
    for rd in range(2):
        z = Z + 4 * rd; u = Z + 8 + 8 * rd; o = u + 4
        a('s_waitcnt lgkmcnt(%d)' % (4 - 4 * rd))
        a('v_pk_add_f16 %s, %s, %s' % (v(u), v(z), v(z + 2))); a('v_pk_add_f16 %s, %s, %s' % (v(u + 2), v(z + 1), v(z + 3)))
        a('v_pk_add_f16 %s, %s, %s neg_lo:[0,1] neg_hi:[0,1]' % (v(u + 1), v(z), v(z + 2))); a('v_pk_add_f16 %s, %s, %s neg_lo:[0,1] neg_hi:[0,1]' % (v(u + 3), v(z + 1), v(z + 3)))
        a('v_pk_add_f16 %s, %s, %s' % (v(o), v(u), v(u + 2))); a('v_pk_add_f16 %s, %s, %s neg_lo:[0,1] neg_hi:[0,1]' % (v(o + 2), v(u), v(u + 2)))
        a('v_pk_add_f16 %s, %s, %s op_sel:[0,1] op_sel_hi:[1,0] neg_hi:[0,1]' % (v(o + 1), v(u + 1), v(u + 3)))
        a('v_pk_add_f16 %s, %s, %s op_sel:[0,1] op_sel_hi:[1,0] neg_lo:[0,1]' % (v(o + 3), v(u + 1), v(u + 3)))
        for k in range(4): a('v_add_u32 %s, 0x20002, %s' % (v(o + k), v(o + k)))
        for k in range(4): a('v_and_or_b32 %s, %s, %s, %s' % (v(o + k), v(o + k), v(vM), s(44 + k)))
        a('buffer_store_dwordx4 %s, %s, s[4:7], %s offen sc1' % (v(o, 4), v(vWST), s(52 + rd)))
    a('s_cmp_lg_u32 s59, 0'); a('s_cbranch_scc1 ffn')
    st()
    SETA()
    a('s_waitcnt vmcnt(0)')
    st()
    R = XAC
    def h1i(u): a('buffer_load_dwordx4 %s, %s, s[4:7], %s offen sc1' % (v(R + 4 * u, 4), v(vHL), s((60, 61, 16, 17)[u])))
    def h1c(u):
        for k in range(4): a('v_xor_b32 %s, %s, %s' % (v(R + 4 * u + k), v(vE + k), v(R + 4 * u + k)))
        a('v_or3_b32 v10, %s, %s, %s' % (v(R + 4 * u), v(R + 4 * u + 1), v(R + 4 * u + 2)))
        a('v_bitop3_b32 v10, v10, %s, %s bitop3:0xa8' % (v(R + 4 * u + 3), v(vMT)))
        a('v_cmp_ne_u32 vcc, 0, v10')
    def h1a(u):
        for k in range(4): a('ds_write_b32 %s, %s offset:%d' % (v(vA[u]), v(R + 4 * u + k), 2048 * k))
    if EP:
        a('s_bitcmp1_b32 s2, 2'); a('s_cbranch_scc1 fz_p1_ok')
        a('s_add_u32 s32, s60, %d' % ((((EP - 1) + POFS) & 7) * PS + 64 * (EP > 8))); a('v_mov_b32 v9, 0')
        a.lines.append('fz_p1:')
        a('buffer_load_dword v10, v9, s[4:7], s32 offen sc1')
        a('s_waitcnt vmcnt(0)')
        a('v_xor_b32 v10, %s, v10' % v(vE)); a('v_and_b32 v10, %s, v10' % v(vMT)); a('v_cmp_ne_u32 vcc, 0, v10')
        poll_retry('fz_p1')
        a('s_mov_b32 s58, 0')
    for u in range(4): h1i(u)
    prog_poll('fz_h1', 4, h1i, h1c, h1a)
    a('s_waitcnt lgkmcnt(0)')
    a('s_setprio 0')
    a.lines.append('fz_hb:')
    a('s_barrier')
    st.n = 7; st()
    A2, V2, H2, T2, TP2, D2 = 104, 120, 136, 144, 152, 104
    for cp in range(2):
        for hf in range(2): a('ds_read_b128 %s, %s offset:%d' % (v(A2 + 8 * cp + 4 * hf, 4), v(vAR), CPS * cp + 1024 * hf))
    for q in range(4): a('ds_read_b128 %s, v6 offset:%d' % (v(CQ + 4 * q, 4), 1024 * (14 + q)))
    for q in range(4):
        a('s_waitcnt lgkmcnt(%d)' % (7 - q))
        a('v_mfma_f32_16x16x32_f16 %s, %s, %s, 0' % (v(V2 + 4 * q, 4), v(A2 + 4 * q, 4), v(B1, 4)))
    a('s_waitcnt lgkmcnt(0)')
    for cp in range(2):
        pack(H2 + 4 * cp, V2 + 8 * cp, 8)
    for cp in range(2):
        h, t, tp = H2 + 4 * cp, T2 + 4 * cp, TP2 + 4 * cp
        for i in range(4): a('v_pk_mul_f16 %s, %s, %s' % (v(t + i), v(h + i), v(TC2 + i)))
        for i in range(4): a('v_mov_b32_dpp %s, %s %s' % (v(tp + i), v(h + i), X1))
        for i in range(4): a('v_pk_fma_f16 %s, %s, %s, %s' % (v(t + i), v(tp + i), v(TS2 + i), v(t + i)))
        for tau in range(2): a('v_mfma_f32_16x16x32_f16 %s, %s, %s, 0' % (v(D2 + 8 * cp + 4 * tau, 4), v(t, 4), v(CQ + 8 * tau, 4)))
        for i in range(4): a('v_xor_b32_dpp %s, %s, %s %s' % (v(tp + i), v(t + i), v(vSG), X1))
        for tau in range(2): a('v_mfma_f32_16x16x32_f16 %s, %s, %s, %s' % (v(D2 + 8 * cp + 4 * tau, 4), v(tp, 4), v(CQ + 8 * tau + 4, 4), v(D2 + 8 * cp + 4 * tau, 4)))
    O2 = V2
    for tau in range(2):
        for cp in range(2):
            for b in range(2): a('v_cvt_pk_f16_f32 %s, %s, %s' % (v(O2 + 4 * tau + 2 * b + cp), v(D2 + 8 * cp + 4 * tau + 2 * b), v(D2 + 8 * cp + 4 * tau + 2 * b + 1)))
        for k in range(4): a('v_add_u32 %s, 0x20002, %s' % (v(O2 + 4 * tau + k), v(O2 + 4 * tau + k)))
        for k in range(4): a('v_and_or_b32 %s, %s, %s, %s' % (v(O2 + 4 * tau + k), v(O2 + 4 * tau + k), v(vM), s(44 + k)))
        if YLIN: a('buffer_store_dwordx4 %s, %s, s[4:7], s56 offen offset:%d sc1' % (v(O2 + 4 * tau, 4), v(vL16), 1024 * tau))
        else: a('buffer_store_dwordx4 %s, %s, s[4:7], s56 offen sc1' % (v(O2 + 4 * tau, 4), v(vY0 + tau)))
    st()
    a('s_cmp_lg_u32 s57, 0'); a('s_cbranch_scc1 fz_nc3')
    SETB('a')
    a('s_mov_b32 s58, 0')
    a('s_waitcnt vmcnt(0)')
    st()
    YD, YM, HP, Q1, Q2 = 104, 112, 120, 136, 140
    def h2i(jx): a('buffer_load_dwordx2 %s, %s, s[4:7], %s offen sc1' % (v(YD + 2 * jx, 2), v(vYL), s(52 + jx)))
    def h2load():
        for jx in range(4): h2i(jx)
    h2load()
    SET2()
    a.flush(); a('s_branch fz_h2c')
    a.lines.append('fz_h2:')
    h2load()
    a.lines.append('fz_h2c:')
    a('s_mov_b32 s36, %s' % fh(128.0))
    def h2c(jx):
        for k in range(2): a('v_xor_b32 %s, %s, %s' % (v(YD + 2 * jx + k), v(vYE + k), v(YD + 2 * jx + k)))
        a('v_bitop3_b32 v9, %s, %s, %s bitop3:0xa8' % (v(YD + 2 * jx), v(YD + 2 * jx + 1), v(vMT)))
        a('v_cmp_ne_u32 vcc, 0, v9')
    def mix(e, src): a('v_fma_mix_f32 %s, %s, s36, %s op_sel:[%d,0,0] op_sel_hi:[1,0,0]' % (v(XD + e), v(src), v(XD + e), e & 1))
    def smf(q):
        a('v_mfma_f32_16x16x32_bf16 %s, %s, %s, %s' % (v(Q1, 4), v(HP + 4 * q, 4), v(HP + 4 * q, 4), v(Q1, 4) if q else '0'))
        a('v_mfma_f32_16x16x32_bf16 %s, %s, %s, %s' % (v(Q2, 4), v(WV + 4 * q, 4), v(HP + 4 * q, 4), v(Q2, 4) if q else '0'))
    def h2a(jx):
        if jx == 3: st()
        for k in range(2 * jx, 2 * jx + 2): a('v_mov_b32_dpp %s, %s row_mirror %s' % (v(YM + k), v(YD + k), DPPF))
        a('s_cmp_eq_u32 s2, %d' % SPID); a('s_cbranch_scc1 fz_spec4%d' % jx)
        a.lines.append('fz_spec4back%d:' % jx)
        for e in range(4 * jx, 4 * jx + 4): mix(e, YD + (e >> 1))
        if jx == 0: a('v_and_b32 %s, %s, %s' % (v(YM), v(vZM), v(YM)))
        for e in range(4 * jx, 4 * jx + 4): mix(16 + e, YM + (e >> 1))
        pack(HP + 2 * jx, XD + 4 * jx, 4, 'bf16'); pack(HP + 8 + 2 * jx, XD + 16 + 4 * jx, 4, 'bf16')
        if jx & 1: smf(jx >> 1); smf(2 + (jx >> 1))
    prog_poll('fz_h2', 4, h2i, h2c, h2a)
    a('v_cndmask_b32 v9, %s, %s, s[28:29]' % (v(Q1), v(Q1 + 1))); a('v_cndmask_b32 v10, %s, %s, s[28:29]' % (v(Q1 + 2), v(Q1 + 3)))
    a('ds_write_b64 %s, %s' % (v(vPW), v(Q2, 2)))
    a('v_cndmask_b32 v9, v9, v10, s[30:31]')
    a('ds_write_b32 %s, v9 offset:8' % v(vPD))
    a('s_cmp_gt_u32 s3, 3'); a('s_cbranch_scc1 fz_lp'); a('s_setprio 2')
    a.lines.append('fz_lp:')
    a('s_waitcnt lgkmcnt(0)'); a('s_barrier')
    P = 144
    for q in range(4): a('ds_read_b128 %s, %s offset:%d' % (v(P + 4 * q, 4), v(vPR), 256 * q))
    a('s_waitcnt lgkmcnt(2)')
    for h in range(2): a('v_pk_add_f32 %s, %s, %s' % (v(P + 2 * h, 2), v(P + 2 * h, 2), v(P + 4 + 2 * h, 2)))
    a('s_waitcnt lgkmcnt(0)')
    for h in range(2): a('v_pk_add_f32 %s, %s, %s' % (v(P + 8 + 2 * h, 2), v(P + 8 + 2 * h, 2), v(P + 12 + 2 * h, 2)))
    for h in range(2): a('v_pk_add_f32 %s, %s, %s' % (v(P + 2 * h, 2), v(P + 2 * h, 2), v(P + 8 + 2 * h, 2)))
    for k in range(4): a('v_mov_b32 %s, %s' % (v(P + 4 + k), v(P + k)))
    for k in range(4): a('v_permlane32_swap_b32 %s, %s' % (v(P + k), v(P + 4 + k)))
    for h in range(2): a('v_pk_add_f32 %s, %s, %s' % (v(P + 2 * h, 2), v(P + 2 * h, 2), v(P + 4 + 2 * h, 2)))
    KR = 152
    a('v_mul_f32 %s, %s, %s' % (v(P + 1), fh(-1 / 1024), v(P + 1)))
    a('v_mul_f32 %s, %s, %s' % (v(P + 2), fh(1 / 1024), v(P + 2)))
    a('v_fma_f32 %s, -%s, %s, %s' % (v(P + 2), v(P + 1), v(P + 1), v(P + 2)))
    a('v_cvt_pk_bf16_f32 %s, 0, %s' % (v(KR + 1), v(P + 1)))
    rbf(a, P + 2); a('v_add_f32 %s, %s, %s' % (v(P + 2), fh(1e-5), v(P + 2))); rbf(a, P + 2)
    a('v_sqrt_f32 %s, %s' % (v(P + 2), v(P + 2)))
    a('v_fmac_f32 %s, %s, %s' % (v(P), v(KR + 1), v(P + 3)))
    rbf(a, P + 2); a('v_rcp_f32 %s, %s' % (v(KR + 2), v(P + 2)))
    a('v_mov_b32 %s, s40' % v(KR + 3))
    a('v_mul_f32 %s, %s, %s' % (v(P), v(P), v(KR + 2))); rbf(a, P)
    a('v_ashrrev_i32 %s, 31, %s' % (v(P + 1), v(P))); a('v_or_b32 %s, 0x80000000, %s' % (v(P + 1), v(P + 1)))
    a('v_bitop3_b32 %s, %s, %s, %s bitop3:0x28' % (v(KR), v(P), v(P + 1), v(242)))
    a('v_or_b32 %s, %s, %s' % (v(KR), v(KR), v(vTK)))
    a('v_max_u32_dpp %s, %s, %s row_ror:1 %s' % (v(P), v(KR), v(KR), DPPF))
    for k in (2, 4, 8): a('v_max_u32_dpp %s, %s, %s row_ror:%d %s' % (v(P), v(P), v(P), k, DPPF))
    a('v_cmp_eq_u32 vcc, %s, %s' % (v(P), v(KR)))
    a('v_or_b32 %s, s24, %s' % (v(KR + 1), v(KR + 1)))
    a('s_mov_b64 exec, vcc')
    a('buffer_store_dwordx4 %s, %s, s[4:7], s26 offen sc1' % (v(KR, 4), v(vKA)))
    if DB & 2:
        if DB & 4: a('s_cmp_gt_u32 s3, 3'); a('s_cbranch_scc1 fz_nk2')
        a('s_add_u32 s26, s26, %d' % (32 * KS)); a('buffer_store_dwordx4 %s, %s, s[4:7], s26 offen sc1' % (v(KR, 4), v(vKA)))
        if DB & 4: a.lines.append('fz_nk2:')
    for q in range(4): a('buffer_store_dwordx4 %s, %s, s[4:7], s27 offen offset:%d sc1' % (v(HP + 4 * q, 4), v(vCA), 64 * q))
    a('s_mov_b64 exec, -1')
    st()
    a('s_setprio 0')
    a('s_ff1_i32_b64 s37, vcc')
    a('v_add_f32 %s, 1.0, %s' % (v(P), v(KR + 2))); a('v_and_b32 %s, v242, %s' % (v(P + 2), v(KR + 1))); a('v_mul_f32 %s, %s, %s' % (v(P + 2), v(P + 2), v(KR + 2)))
    for k in range(16): a('v_pk_fma_f32 %s, %s, %s, %s op_sel_hi:[1,0,0]' % (v(XD + 2 * k, 2), v(XD + 2 * k, 2), v(P, 2), v(P + 2, 2)))
    OP = 104
    pack(OP, XD, 32, 'bf16')
    a('ds_write_b128 %s, %s' % (v(vXR), v(OP, 4))); a('ds_write_b128 %s, %s offset:16' % (v(vXR), v(OP + 4, 4)))
    a('s_waitcnt lgkmcnt(0)'); a('s_barrier')
    def wtail():
        if W3 < 8 or WL:
            a('s_cmp_lt_u32 s3, 4'); a('s_cbranch_scc1 fz_now4')
            if WL: a('s_bitcmp0_b32 s2, 2'); a('s_cbranch_scc1 fz_now4')
            wdload(8 - WL if WL else W3, 8)
            a.lines.append('fz_now4:')
    if WT == 1: wtail()
    a('ds_write_b16 %s, %s' % (v(vE0), v(OP))); a('ds_write_b16 %s, %s' % (v(vM0m), v(OP + 8)))
    for e in range(1, 16): a('ds_write_b16%s %s, %s offset:%d' % ('_d16_hi' if e & 1 else '', v(vXM), v(OP + 8 + (e >> 1)), 2 * (15 - e)))
    a('s_lshl_b32 s32, s3, 1'); a('s_add_u32 s33, s32, 1')
    a('v_readlane_b32 s34, %s, s32' % v(vT)); a('v_readlane_b32 s35, %s, s33' % v(vT))
    a('s_mul_i32 s38, s3, %d' % (2 * RS)); a('v_add_u32 v9, s38, %s' % v(vL16))
    a('s_lshl_b32 s34, s34, 11'); a('s_lshl_b32 s35, s35, 11')
    a('s_waitcnt lgkmcnt(0)'); a('s_barrier')
    for q in range(4): a('ds_read_b128 %s, v9 offset:%d' % (v(OP + 4 * q, 4), RS * (q >> 1) + 1024 * (q & 1)))
    if WT == 2: wtail()
    OUTF = '' if '--outplain' in OPT else (' nt' if '--outnt' in OPT else ' sc1 nt' if '--outsn' in OPT else ' sc1')
    a('s_lshr_b32 s59, s37, 1'); a('s_xor_b32 s18, s59, 1'); a('s_and_b32 s18, s18, 3')
    if '--wdearly' not in OPT:
        if OLATE:
            a('s_cmp_eq_u32 s59, s3'); a('s_cselect_b32 s38, 112, s23'); a('s_cmp_lt_u32 s38, 112'); a('s_cbranch_scc1 fz_sk1')
        else:
            a('s_cmp_lt_u32 s23, 112'); a('s_cselect_b32 s38, s18, 8'); a('s_cmp_eq_u32 s38, s3'); a('s_cbranch_scc1 fz_sk1')
    a('s_waitcnt lgkmcnt(0)')
    for r in range(2):
        a('s_cmp_eq_u32 s37, %s' % s(32 + r)); a('s_cbranch_scc1 fz_sk%d' % r)
        for q in range(0 if '--xnoout' in OPT else 2): a('buffer_store_dwordx4 %s, %s, s[12:15], %s offen offset:%d%s' % (v(OP + 8 * r + 4 * q, 4), v(vL16), s(34 + r), 1024 * q, OUTF))
        a.lines.append('fz_sk%d:' % r)
    a('v_and_b32 v15, 7, v4'); a('v_mul_u32_u24 v15, 544, v15'); a('v_lshl_add_u32 v15, v5, 4, v15'); a('v_add_u32 v15, %d, v15' % ACT)
    if TWO:
        a('s_and_b32 s60, s2, 7'); a('s_lshr_b32 s61, s2, 3')
        a('s_cmp_lt_u32 s3, 4'); a('s_cselect_b32 s63, 8, s60'); a('s_lshl_b32 s63, s63, 2'); a('s_and_b32 s38, s3, 3'); a('s_add_u32 s63, s63, s38')
        a('s_lshl_b32 s63, s63, 6'); a('s_add_u32 s63, s63, s61'); a('s_lshl_b32 s63, s63, 8'); a('s_add_u32 s63, s63, 0x%x' % POFF)
        a('v_lshlrev_b32 v13, 4, v4'); a('v_lshl_add_u32 v102, v5, 12, v13'); a('v_add_u32 v103, 8192, v102'); a('v_mov_b32 v101, %d' % (ACT + 4352))
    elif PIN:
        a('s_lshl_b32 s63, s23, 5'); a('s_and_b32 s38, s3, 3'); a('s_mul_i32 s38, s38, %d' % (32 * PIS)); a('s_add_u32 s63, s63, s38'); a('s_add_u32 s63, s63, 0x%x' % POFF)
        a('v_lshrrev_b32 v13, 1, v1'); a('v_mul_u32_u24 v13, %d, v13' % PIS); a('v_and_b32 v14, 1, v1'); a('v_lshl_add_u32 v102, v14, 4, v13'); a('v_add_u32 v103, %d, v102' % (16 * PIS))
    else:
        a('s_mul_i32 s63, s23, %d' % PPS); a('s_and_b32 s38, s3, 3'); a('s_lshl_b32 s38, s38, 10'); a('s_add_u32 s63, s63, s38'); a('s_add_u32 s63, s63, 0x%x' % POFF)
    if not TWO: a('s_lshl_b32 s38, s20, %d' % (5 if PIN else 10)); a('s_add_u32 s38, s38, 0x%x' % DOFF); a('s_cmp_lt_u32 s3, 4'); a('s_cselect_b32 s63, s38, s63')
    a('v_mov_b32 v14, 0xffffff00')
    a('s_cmp_eq_u32 s18, s3'); a('s_cbranch_scc1 fz_act')
    a('s_cmp_lg_u32 s59, s3'); a('s_cbranch_scc1 fz_f2')
    st()
    a('s_and_b32 s38, s20, 15'); a('s_add_u32 s38, s38, 16'); a('s_mul_i32 s38, s38, %d' % KS); a('s_add_u32 s38, s38, 0x%x' % KOFF)
    if TWO:
        a('s_lshr_b32 s52, s61, 1'); a('s_lshl_b32 s52, s52, 3'); a('s_add_u32 s52, s52, s60'); a('s_lshl_b32 s52, s52, 2'); a('s_and_b32 s53, s61, 1'); a('s_add_u32 s52, s52, s53'); a('s_lshl_b32 s52, s52, 2')
        a('v_bfe_u32 v2, v1, 2, 1'); a('v_and_b32 v3, 3, v1'); a('v_lshl_add_u32 v2, v2, 3, v3'); a('v_add_u32 v2, s52, v2')
    else:
        a('s_lshr_b32 s52, s20, 4'); a('s_lshl_b32 s52, s52, 7'); a('s_and_b32 s53, s20, 7'); a('s_lshl_b32 s53, s53, 4'); a('s_add_u32 s52, s52, s53')
        a('s_bfe_u32 s53, s20, 0x10003'); a('s_lshl_b32 s53, s53, 2'); a('s_add_u32 s52, s52, s53')
        a('v_and_b32 v2, 1, v1'); a('v_lshl_add_u32 v2, v2, 3, v5'); a('v_add_u32 v2, s52, v2')
    a('v_and_b32 v3, 31, v2'); a('v_lshrrev_b32 v6, 5, v2')
    a('v_cmp_gt_u32 vcc, 16, v6')
    a('v_cmp_lt_u32 s[52:53], 16, v3'); a('v_cmp_eq_u32 s[54:55], 0, v3'); a('s_and_b64 s[54:55], s[54:55], vcc'); a('s_or_b64 s[52:53], s[52:53], s[54:55]')
    a('v_cmp_eq_u32 s[54:55], 16, v3'); a('s_andn2_b64 s[54:55], s[54:55], vcc'); a('s_or_b64 s[52:53], s[52:53], s[54:55]')
    a('v_sub_u32 v7, 1024, v2'); a('v_cndmask_b32 v7, v2, v7, s[52:53]')
    a('v_mov_b32 v8, 512'); a('v_cmp_eq_u32 vcc, 1024, v7'); a('v_cndmask_b32 v7, v7, v8, vcc')
    a('v_lshrrev_b32 v8, 5, v7'); a('v_and_b32 v7, 15, v7')
    a('v_lshrrev_b32 v9, 2, v8'); a('v_lshlrev_b32 v9, 8, v9'); a('v_and_b32 v8, 3, v8'); a('v_lshl_add_u32 v9, v8, 4, v9')
    a('v_lshrrev_b32 v8, 3, v7'); a('v_lshl_add_u32 v9, v8, 6, v9'); a('v_and_b32 v7, 7, v7'); a('v_lshl_add_u32 v9, v7, 1, v9')
    a('v_cndmask_b32 v7, 0, 1, s[52:53]'); a('v_lshl_add_u32 v9, v7, 7, v9')
    a('v_lshlrev_b32 v2, 1, v2')
    if TWO:
        a('s_lshl_b32 s52, s60, 4'); a('s_add_u32 s52, s52, s61'); a('s_lshl_b32 s52, s52, 12'); a('s_add_u32 s52, s52, 0x%x' % POFF)
        a('s_add_u32 s53, s2, 4'); a('s_and_b32 s53, s53, 7'); a('s_cmp_lt_u32 s53, 6'); a('s_cselect_b32 s53, s52, 0x7fff0000')
        for k in range(4): a('s_cselect_b32 %s, %s, 0' % (s(8 + k), s(48 + k)))
        a('s_lshl_b32 s54, s61, 11'); a('s_add_u32 s54, s54, 0x%x' % FIOFF); a('s_lshl_b32 s55, s60, 8'); a('s_add_u32 s55, s55, s54'); a('s_lshl_b32 s62, s60, 5'); a('s_add_u32 s54, s54, s62')
        a('v_lshrrev_b32 v3, 1, v4'); a('v_lshlrev_b32 v3, 8, v3'); a('v_and_b32 v6, 1, v4'); a('v_lshl_add_u32 v3, v6, 4, v3')
        a('v_lshlrev_b32 v6, 2, v1'); a('v_and_b32 v7, 3, v1'); a('v_mov_b32 v16, s48')
        for k in range(1, 4): a('v_cmp_eq_u32 vcc, %d, v7' % k); a('v_mov_b32 v8, %s' % s(48 + k)); a('v_cndmask_b32 v16, v16, v8, vcc')
    else:
        a('v_lshrrev_b32 v3, 1, v1'); a('v_mul_u32_u24 v3, %d, v3' % (32 if PIN else PPS)); a('v_and_b32 v6, 1, v1'); a('v_lshl_add_u32 v3, v6, 4, v3')
        a('v_mov_b32 v6, 0x7fffffff'); a('v_cmp_gt_u32 vcc, 32, v1'); a('v_cndmask_b32 v6, v6, v3, vcc')
        for k in range(4): a('v_mov_b32 v7, %s' % s(48 + k)); a('v_cndmask_b32 %s, 0, v7, vcc' % v(16 + k))
        a('s_mul_i32 s52, s20, %d' % (PIS if PIN else 32)); a('s_add_u32 s52, s52, 0x%x' % POFF)
        for u in range(1, 4): a('s_add_u32 %s, s52, %d' % (s(52 + u), 32 * u * (32 if PIN else PPS)))
    K = 24
    a('v_lshlrev_b32 v20, %d, v1' % KRL); a('v_add_u32 v21, %d, v20' % (64 << KRL))
    a('s_mov_b32 s58, 0')
    a.label('fz_k2')
    a('buffer_load_dwordx4 %s, v20, s[4:7], s38 offen sc1' % v(K, 4)); a('buffer_load_dwordx4 %s, v21, s[4:7], s38 offen sc1' % v(K + 4, 4))
    a('s_waitcnt vmcnt(0)')
    keys_argmax(K, None, 'fz_k2')
    if TWO:
        a('v_and_b32 v7, 15, %s' % v(K + 1)); a('v_and_b32 v8, 15, %s' % v(K + 5)); a('v_cmp_eq_u32 vcc, s24, v7'); a('v_cmp_eq_u32 s[56:57], s24, v8')
        a('s_and_b64 vcc, vcc, s[56:57]'); a('s_and_b32 s39, vcc_lo, vcc_hi'); a('s_and_b32 s41, s20, 7'); a('s_lshr_b32 s39, s39, s41'); a('s_and_b32 s39, s39, 0x01010101')
        a('s_cmp_eq_u32 s39, 0x01010101'); a('s_cselect_b32 s39, %d, 0' % (1 if LOCAL else 0)); a('v_mov_b32 v7, s39'); a('ds_write_b32 v101, v7')
    a('v_cmp_eq_u32 vcc, s36, %s' % v(K)); a('v_cmp_eq_u32 s[56:57], s36, %s' % v(K + 4))
    a('v_cndmask_b32 %s, %s, %s, s[56:57]' % (v(K + 1), v(K + 1), v(K + 5))); a('v_cndmask_b32 %s, %s, %s, s[56:57]' % (v(K + 2), v(K + 2), v(K + 6)))
    a('s_cmp_lg_u64 vcc, 0'); a('s_cselect_b32 s39, 0, 64'); a('s_or_b64 vcc, vcc, s[56:57]'); a('s_ff1_i32_b64 s41, vcc')
    a('v_readlane_b32 s42, %s, s41' % v(K + 1)); a('v_readlane_b32 s43, %s, s41' % v(K + 2))
    a('s_add_u32 s39, s39, s41'); a('s_and_b32 s42, s42, 0xffff0000')
    a('s_cmp_eq_u32 s39, s20'); a('s_cbranch_scc1 fz_win')
    a('s_bitcmp1_b32 s37, 0'); a('s_cbranch_scc1 fz_d1')
    for q in range(2): a('buffer_store_dwordx4 %s, %s, s[12:15], s34 offen offset:%d%s' % (v(OP + 4 * q, 4), v(vL16), 1024 * q, OUTF))
    a('s_branch fz_win')
    a.lines.append('fz_d1:')
    for q in range(2): a('buffer_store_dwordx4 %s, %s, s[12:15], s35 offen offset:%d%s' % (v(OP + 8 + 4 * q, 4), v(vL16), 1024 * q, OUTF))
    a.lines.append('fz_win:')
    a('s_lshl_b32 s39, s39, 11'); a('s_add_u32 s39, s39, 0x%x' % COFF)
    a('s_mov_b32 s58, 0'); a('s_mov_b32 s41, 0xffff0000')
    a.label('fz_c2')
    a('buffer_load_short_d16_hi v10, v9, s[4:7], s39 offen sc1')
    a('s_waitcnt vmcnt(0)')
    a('v_cmp_eq_u32 vcc, s41, v10')
    poll_retry('fz_c2')
    a('v_add_f32 v11, s42, v10'); rbf(a, 11); a('v_mul_f32 v11, s43, v11'); rbf(a, 11)
    a('s_ashr_i32 s39, s36, 31'); a('s_not_b32 s39, s39'); a('s_or_b32 s39, s39, 0x80000000'); a('s_xor_b32 s39, s36, s39'); a('s_and_b32 s39, s39, 0xffff0000')
    a('v_mov_b32 v12, s39'); a('v_mul_f32 v12, %s, v12' % fh(-1.4426950408889634))
    a('v_exp_f32 v12, v12'); a('v_add_f32 v12, 1.0, v12'); a('v_rcp_f32 v12, v12'); rbf(a, 12)
    a('s_and_b32 s39, s36, 0xffff'); a('s_sub_u32 s39, 2047, s39'); a('s_lshl_b32 s39, s39, 11')
    PQ = 40
    a('v_mov_b32 v13, 0xff')
    a('s_waitcnt lgkmcnt(0)')
    a.lines.append('fz_f2:')
    st.n = 13; st()
    a('s_cmp_gt_u32 s23, 111'); a('s_cbranch_scc1 fz_nof2')
    a('s_barrier')
    a('s_cmp_eq_u32 s59, s3'); a('s_cselect_b32 s19, 4, s3'); a('s_cmp_lt_u32 s19, 4'); a('s_cbranch_scc1 fz_f2d')
    BH, ACC = 120, 152
    if TWO: a('ds_read_b32 v100, v101')
    for q in range(8): a('ds_read_b128 %s, v15 offset:%d' % (v(BH + 4 * q, 4), 64 * q))
    if W3 < 8 or WL: a('s_waitcnt vmcnt(2)')
    for q in range(8):
        a('s_waitcnt lgkmcnt(%d)' % (7 - q))
        for h in range(2): a('v_mfma_f32_16x16x32_bf16 %s, %s, %s, %s' % (v(ACC + 4 * h, 4), v(BH + 4 * q, 4), v(WQ[2 * q + h], 4), v(ACC + 4 * h, 4) if q else '0'))
    if TWO: a('v_readfirstlane_b32 s19, v100')
    a('s_mov_b32 exec_hi, 0')
    if TWO:
        for k in range(8): a('v_and_or_b32 %s, %s, v14, %s' % (v(ACC + k), v(ACC + k), s(48 + (k & 3))))
        a('s_cmp_eq_u32 s19, 0'); a('s_cbranch_scc1 fz_prem')
        for h in range(2): a('buffer_store_dwordx4 %s, %s, s[4:7], s63 offen' % (v(ACC + 4 * h, 4), v(102 + h)))
    else:
        for h in range(2):
            for k in range(4): a('v_and_or_b32 %s, %s, v14, %s' % (v(ACC + 4 * h + k), v(ACC + 4 * h + k), s(48 + k)))
            if PIN: a('buffer_store_dwordx4 %s, %s, s[4:7], s63 offen sc1' % (v(ACC + 4 * h, 4), v(102 + h)))
            else: a('buffer_store_dwordx4 %s, %s, s[4:7], s63 offen offset:%d sc1' % (v(ACC + 4 * h, 4), v(vL16), 512 * h))
    a.lines.append('fz_f2d:')
    a('s_mov_b32 exec_hi, -1')
    if OLATE: a('s_cmp_lg_u32 s59, s3'); a('s_cbranch_scc1 fz_late')
    else: a('s_cmp_eq_u32 s18, s3'); a('s_cbranch_scc1 fz_late')
    a('s_cmp_lg_u32 s59, s3'); a('s_cbranch_scc1 fz_xend')
    a('v_mov_b32 v7, 0')
    a('s_waitcnt vmcnt(0)')
    a('s_branch fz_p5_ok')
    a.label('fz_nof2')
    a('s_cmp_lg_u32 s59, s3'); a('s_cbranch_scc1 fz_xend')
    a('s_mov_b32 s58, 0'); a('s_and_b32 s41, s20, %d' % (7 if TWO else 63)); a('s_mul_i32 s41, s41, %d' % (256 if TWO else 32 if PIN else PPS)); a('s_add_u32 s41, s41, s52'); a('v_mov_b32 v7, 0')
    a.label('fz_p5')
    a('buffer_load_dword v8, v7, s[4:7], s41 offen sc1')
    a('s_waitcnt vmcnt(0)')
    a('v_and_b32 v8, 0xff, v8'); a('v_cmp_ne_u32 vcc, s48, v8')
    poll_retry('fz_p5')
    a('s_mov_b32 s58, 0')
    st()
    def h5i(u):
        if TWO: a('buffer_load_dwordx4 %s, %s, s[4:7], %s offen offset:%d sc1' % (v(PQ + 4 * u, 4), v(vL16), s(52 + (u >> 1)), 1024 * u))
        else: a('buffer_load_dwordx4 %s, %s, s[4:7], %s offen sc1' % (v(PQ + 4 * u, 4), 'v6' if u == 3 else 'v3', s(52 + u)))
    def h5c(u):
        for k in range(4): a('v_xor_b32 %s, %s, %s' % (v(PQ + 4 * u + k), (s(8 + k) if u >= 2 else s(48 + k)) if TWO else v(16 + k) if u == 3 else s(48 + k), v(PQ + 4 * u + k)))
        a('v_or3_b32 v8, %s, %s, %s' % (v(PQ + 4 * u), v(PQ + 4 * u + 1), v(PQ + 4 * u + 2)))
        a('v_bitop3_b32 v8, v8, %s, v13 bitop3:0xa8' % v(PQ + 4 * u + 3))
        a('v_cmp_ne_u32 vcc, 0, v8')
    def h5a(u):
        if u:
            for h in range(2): a('v_pk_add_f32 %s, %s, %s' % (v(PQ + 2 * h, 2), v(PQ + 2 * h, 2), v(PQ + 4 * u + 2 * h, 2)))
    for u in range(4): h5i(u)
    prog_poll('fz_h5', 4, h5i, h5c, h5a)
    if TWO:
        for sw in ('32', '16'):
            for k in range(4): a('v_mov_b32 %s, %s' % (v(PQ + 4 + k), v(PQ + k)))
            for k in range(4): a('v_permlane%s_swap_b32 %s, %s' % (sw, v(PQ + k), v(PQ + 4 + k)))
            for h in range(2): a('v_pk_add_f32 %s, %s, %s' % (v(PQ + 2 * h, 2), v(PQ + 2 * h, 2), v(PQ + 4 + 2 * h, 2)))
        for k in range(4): a('v_and_or_b32 %s, %s, v14, %s' % (v(PQ + k), v(PQ + k), s(48 + k)))
        a('s_mov_b64 exec, 0xffff')
        a('buffer_store_dwordx4 %s, v3, s[4:7], s54 offen sc1' % v(PQ, 4))
        a('s_mov_b64 exec, -1'); a('s_mov_b32 s58, 0')
        a('s_waitcnt vmcnt(0)')
        a.lines.append('fz_h6:')
        a('buffer_load_dword %s, v6, s[4:7], s55 offen sc1' % v(PQ + 8))
        a('s_waitcnt vmcnt(0)')
        a('v_xor_b32 %s, v16, %s' % (v(PQ), v(PQ + 8))); a('v_and_b32 v8, 0xff, %s' % v(PQ)); a('v_cmp_ne_u32 vcc, 0, v8')
        poll_retry('fz_h6')
        a('v_add_f32_dpp %s, %s, %s row_ror:8 %s' % (v(PQ), v(PQ), v(PQ), DPPF))
        for sw in ('32', '16'):
            a('v_mov_b32 %s, %s' % (v(PQ + 1), v(PQ))); a('v_permlane%s_swap_b32 %s, %s' % (sw, v(PQ), v(PQ + 1))); a('v_add_f32 %s, %s, %s' % (v(PQ), v(PQ), v(PQ + 1)))
    else:
        for i in range(2): a('v_permlane32_swap_b32 %s, %s' % (v(PQ + i), v(PQ + 2 + i)))
        a('v_pk_add_f32 %s, %s, %s' % (v(PQ, 2), v(PQ, 2), v(PQ + 2, 2)))
        a('v_permlane16_swap_b32 %s, %s' % (v(PQ), v(PQ + 1)))
        a('v_add_f32 %s, %s, %s' % (v(PQ), v(PQ), v(PQ + 1)))
        a('v_add_f32_dpp %s, %s, %s quad_perm:[2,3,0,1] %s' % (v(PQ), v(PQ), v(PQ), DPPF))
        a('v_add_f32_dpp %s, %s, %s row_ror:4 %s' % (v(PQ), v(PQ), v(PQ), DPPF))
        a('v_add_f32_dpp %s, %s, %s row_ror:8 %s' % (v(PQ), v(PQ), v(PQ), DPPF))
    rbf(a, PQ); a('v_mul_f32 %s, %s, v12' % (v(PQ), v(PQ))); rbf(a, PQ)
    a('v_add_f32 %s, %s, v11' % (v(PQ), v(PQ))); rbf(a, PQ)
    a('v_add_f32 %s, %s, v10' % (v(PQ), v(PQ))); rbf(a, PQ)
    if TWO: a('s_mov_b64 exec, 0xff')
    else: a('s_mov_b32 exec_lo, 0x00030003'); a('s_mov_b32 exec_hi, 0x00030003')
    a('buffer_store_short_d16_hi %s, v2, s[12:15], s39 offen' % v(PQ))
    a('s_cmp_lg_u32 s20, 0'); a('s_cbranch_scc1 fz_xend')
    a('s_mov_b64 exec, 1'); a('v_mov_b32 v8, s40')
    a('buffer_store_dword v8, v7, s[4:7], 0 offen')
    a.lines.append('fz_xend:')
    st.n = 15; st()
    st.dump(n=16, sv=250, wave='s3')
    a.lines.append('fz_end:')
    a('s_endpgm')
    a.lines.append('fz_late:')
    for r in range(2):
        for q in range(2): a('buffer_store_dwordx4 %s, %s, s[12:15], %s offen offset:%d%s' % (v(OP + 8 * r + 4 * q, 4), v(vL16), s(34 + r), 1024 * q, OUTF))
    a('s_branch fz_xend')
    a.lines.append('fz_act:')
    a('s_cmp_gt_u32 s23, 111'); a('s_cbranch_scc1 fz_xend')
    a('v_lshlrev_b32 v2, 2, v1'); a('v_and_b32 v11, 3, v1'); a('v_mov_b32 v3, s48')
    for k in range(1, 4): a('v_cmp_eq_u32 vcc, %d, v11' % k); a('v_mov_b32 v10, %s' % s(48 + k)); a('v_cndmask_b32 v3, v3, v10, vcc')
    a('v_and_b32 v10, 31, v1'); a('v_lshlrev_b32 v6, 4, v10'); a('v_lshrrev_b32 v10, 5, v1'); a('v_mul_u32_u24 v10, %d, v10' % (4 * 546)); a('v_add_u32 v6, v6, v10'); a('v_add_u32 v6, %d, v6' % ACT)
    a('s_lshl_b32 s38, s23, 11'); a('s_add_u32 s38, s38, 0x%x' % XOFF)
    a('s_mov_b32 s58, 0')
    st.n = 12; st()
    if APP:
        a.lines.append('fz_p4:')
        a('buffer_load_dword v8, v2, s[4:7], s38 offen offset:%d sc1' % (256 * (APP - 1)))
        a('s_waitcnt vmcnt(0)')
        a('v_xor_b32 v8, v3, v8'); a('v_and_b32 v8, 0xff, v8'); a('v_cmp_ne_u32 vcc, 0, v8')
        poll_retry('fz_p4')
        a('s_mov_b32 s58, 0')
    a.lines.append('fz_h4:')
    for k in range(8): a('buffer_load_dword %s, v2, s[4:7], s38 offen offset:%d sc1' % (v(16 + k), 256 * k))
    for k in range(0, 8, 2):
        a('s_waitcnt vmcnt(%d)' % (6 - k))
        a('v_xor_b32 %s, v3, %s' % (v(16 + k), v(16 + k))); a('v_xor_b32 %s, v3, %s' % (v(17 + k), v(17 + k)))
        a('v_or3_b32 v10, %s, %s, %s' % (v(16 + k), v(17 + k), 'v10' if k else '0'))
        a('v_add_f32 %s, %s, %s' % (v(16 + k), v(16 + k), v(17 + k)))
        if k & 2: a('v_add_f32 %s, %s, %s' % (v(14 + k), v(14 + k), v(16 + k)))
    a('v_and_b32 v10, 0xff, v10'); a('v_add_f32 v8, v16, v20')
    a('v_cmp_ne_u32 vcc, 0, v10')
    poll_retry('fz_h4')
    rbf(a, 8)
    a('v_mov_b32 v9, v8')
    a('v_permlane32_swap_b32 v8, v9')
    a('v_mul_f32 v10, %s, v8' % fh(-1.4426950408889634))
    a('v_exp_f32 v10, v10')
    a('v_add_f32 v10, 1.0, v10'); a('v_rcp_f32 v10, v10')
    a('v_mul_f32 v8, v8, v10'); rbf(a, 8)
    a('v_mul_f32 v8, v8, v9'); rbf(a, 8)
    for m in range(4): a('ds_write_b16_d16_hi v6, v8 offset:%d' % (546 * m))
    a('s_waitcnt lgkmcnt(0)')
    a('s_branch fz_f2')
    a.lines.append('fz_ldh:')
    a('s_load_dwordx2 s[12:13], s[0:1], 56'); a('s_load_dwordx2 s[16:17], s[0:1], 64')
    srd(12, 0x700000); srd(16, 0x700000)
    a('s_branch fz_ldback')
    a.lines.append('fz_spec:')
    a('s_cmp_gt_u32 s3, 3'); a('s_cbranch_scc1 fz_spec_hi')
    for q, sa, sb in ((0, 0, 16), (2, 15, 17), (3, 18, 19)):
        a('s_cmp_eq_u32 s3, %d' % q); a('s_cselect_b32 s31, %d, s31' % (sa * RS)); a('s_cselect_b32 s30, %d, s30' % (sb * RS))
    a('s_branch fz_specback')
    a.lines.append('fz_spec_hi:')
    xload()
    if LATEX: extras()
    for q, ra, rb, sa, sb in ((0, 256, 1792, 4, 11), (1, 768, 1280, 6, 9), (2, 768, 1280, 20, 21), (3, 256, 1792, 22, 23)):
        a('s_cmp_eq_u32 s24, %d' % q); a('s_cselect_b32 s31, %d, s31' % (sa * RS)); a('s_cselect_b32 s30, %d, s30' % (sb * RS))
        a('s_cselect_b32 s27, %d, s27' % (ra * 2048)); a('s_cselect_b32 s28, %d, s28' % (rb * 2048))
    a('s_mov_b32 s57, 0')
    a('s_branch fz_specback')
    a.lines.append('fz_jb:')
    pack(JT, XAC, 16, 'bf16')
    a('s_branch fz_jend')
    if TWO:
        a.lines.append('fz_prem:')
        for h in range(2): a('buffer_store_dwordx4 %s, %s, s[4:7], s63 offen sc1' % (v(152 + 4 * h, 4), v(102 + h)))
        a('s_branch fz_f2d')
    a.lines.append('fz_bsp0:')
    wdload(0, 8 - WL if (WL and SPID & 4) else W3)
    a('s_branch fz_bsp')
    for jx in range(4):
        a.lines.append('fz_spec4%d:' % jx)
        a('s_mov_b32 s38, 0x80018001'); a('s_mov_b32 s39, 0x80018001')
        for k in range(2 * jx, 2 * jx + 2): a('v_cndmask_b32 %s, %s, %s, s[38:39]' % (v(YM + k), v(YM + k), v(YD + k)))
        a('s_branch fz_spec4back%d' % jx)
    a.label('fz_nc1')
    a('s_setprio 0')
    a('s_cmp_lg_u32 s59, 0'); a('s_cbranch_scc1 ffn_b')
    if WL:
        wdload(WE, 8 - WL)
        a('s_bitcmp1_b32 s2, 2'); a('s_cbranch_scc1 fz_wl1')
        wdload(8 - WL, 8)
        a.lines.append('fz_wl1:')
        latex()
        a('s_waitcnt vmcnt(%d)' % (2 * (8 - WL) + 6))
    else:
        wdload(WE, W2)
        latex()
        a('s_waitcnt vmcnt(%d)' % (2 * W2 + 6))
    tags2()
    a.lines.append('fz_bsp:')
    a('s_setprio 0'); a('s_mov_b32 s57, 1')
    a('s_cmp_gt_u32 s3, 5'); a('s_cbranch_scc1 fz_nocq')
    cq_job()
    a.lines.append('fz_nocq:')
    SETA()
    SETB('b')
    a('s_cmp_eq_u32 s2, %d' % SPID); a('s_cbranch_scc1 fz_sz')
    a('s_waitcnt vmcnt(0)')
    sync_add(0x100)
    a.lines.append('fz_sz:')
    a('ds_read_b32 v10, v15')
    a('s_waitcnt lgkmcnt(0)')
    a('v_cmp_ne_u32 vcc, s38, v10')
    a('s_cbranch_vccnz fz_sz')
    st.n = 5; st()
    SET2()
    wdload(W2, W3)
    st()
    a('s_waitcnt lgkmcnt(0)')
    a('s_branch fz_hb')
    a.label('fz_nc3')
    a('s_mov_b32 s58, 0')
    a('s_waitcnt vmcnt(0)')
    st.n = 9; st()
    if EP2:
        a('s_lshl_b32 s32, s20, 7'); a('s_add_u32 s32, s32, s55'); a('s_add_u32 s32, s32, %d' % (12 * PS + 64)); a('v_mov_b32 v9, 0')
        a.lines.append('fz_p2:')
        a('buffer_load_dword v10, v9, s[4:7], s32 offen sc1')
        a('s_waitcnt vmcnt(0)')
        a('v_xor_b32 v10, %s, v10' % v(vE)); a('v_and_b32 v10, %s, v10' % v(vMT)); a('v_cmp_ne_u32 vcc, 0, v10')
        poll_retry('fz_p2')
        a('s_mov_b32 s58, 0')
    a('s_branch fz_h2')
    for sfx in 'ab':
        a.lines.append('fz_spec3%s:' % sfx)
        a('v_xor_b32 v11, 1, v4'); a('v_cndmask_b32 v9, v9, v11, s[34:35]')
        a('v_and_b32 v11, 1, v4'); a('v_cndmask_b32 v11, 0, v11, s[34:35]'); a('v_sub_u32 v10, v10, v11')
        a('s_cmp_lg_u32 s22, 0'); a('s_cbranch_scc1 fz_spec3back%s' % sfx)
        for i, tt, pp, po in ((15, 1024, 124, 4), (13, 1536, 124, 6), (4, 256, 127, 8), (11, 1792, 127, 14), (6, 768, 127, 10), (9, 1280, 127, 12)):
            a('v_cmp_eq_u32 vcc, %d, v4' % i); a('v_mov_b32 v11, %d' % tt); a('v_mov_b32 v12, %d' % pp)
            a('v_cndmask_b32 %s, %s, v11, vcc' % (v(vT), v(vT))); a('v_cndmask_b32 v10, v10, v12, vcc'); a('v_cndmask_b32 v9, v9, %d, vcc' % po)
        a.flush(); a('s_branch fz_spec3back%s' % sfx)
    WF, WD, BH, ACC, K = 32, 96, 128, 192, 200
    SNT = '' if '--spl' in OPT else ' nt'
    def ffn_addr():
        a('s_bfe_u32 s21, s2, 0x30003')
        a('v_lshrrev_b32 v2, 5, v1'); a('v_and_b32 v3, 31, v1'); a('v_lshlrev_b32 v4, 1, v2'); a('v_xor_b32 v3, v4, v3')
        a('v_mul_u32_u24 v4, 7168, v2'); a('v_lshl_add_u32 v4, v3, 4, v4')
        for k in range(1, 4): a('v_xor_b32 %s, %d, v4' % (v(4 + k), 64 * k))
        a('s_lshl_b32 s23, s21, 7'); a('s_lshl_b32 s24, s3, 4'); a('s_add_u32 s23, s23, s24'); a('s_mul_i32 s23, s23, 7168'); a('s_lshl_b32 s24, s22, 9'); a('s_add_u32 s23, s23, s24')
        a('s_lshl_b32 s24, s3, 13')
    def gu(m, p):
        a('s_add_u32 s28, s24, %d' % ((0 if m else GT) + 1024 * p)); a('s_mov_b32 m0, s28'); a('s_add_u32 s29, s23, %d' % (p * 2 * 7168))
        if '--xnogu' not in OPT: a('buffer_load_dwordx4 %s, %s, s29 offen%s lds' % (v(4 + (p & 1) + 2 * (p >> 2)), s(16 if m else 12, 4), SNT))
    a.label('ffn_b')
    if not NE:
        a('s_waitcnt vmcnt(0)')
        tags()
    a.label('ffn')
    st.n = 5; st()
    blk(22, 36)
    a('s_cmp_gt_u32 s22, 13'); a('s_cbranch_scc1 fz_xend')
    ffn_addr()
    a('v_mov_b32 v31, %d' % (MSG + 48)); a('v_mov_b32 v10, 0'); a('ds_write_b32 v31, v10'); a('s_waitcnt lgkmcnt(0)')
    if NE:
        a('s_cmp_lt_u32 s3, 4'); a('s_cbranch_scc1 ffn_g1')
        for p in range(NE): gu(0, p)
        a('s_waitcnt vmcnt(%d)' % NE)
        tags()
        a('s_barrier'); a('s_branch ffn_g2')
        a.lines.append('ffn_g1:')
    a('s_setprio 0'); a('s_barrier')
    if GATE:
        a('s_lshl_b32 s26, s3, 3'); a('s_add_u32 s26, s26, %d' % (GATE - 1)); a('s_mul_i32 s26, s26, %d' % PS); a('s_add_u32 s26, s26, 0x%x' % WOFF); a('s_and_b32 s27, s2, 127'); a('s_lshl_b32 s27, s27, 7'); a('s_add_u32 s26, s26, s27')
        a('v_mov_b32 v9, 0'); a('s_mov_b32 s27, 0x30003')
        a('s_waitcnt vmcnt(0)')
        a.lines.append('ffn_gp:')
        a('buffer_load_dword v10, v9, s[4:7], s26 offen sc1')
        a('s_waitcnt vmcnt(0)')
        a('v_xor_b32 v10, s44, v10'); a('v_and_b32 v10, s27, v10'); a('v_cmp_ne_u32 vcc, 0, v10')
        poll_retry('ffn_gp')
        a('s_mov_b32 s58, 0')
    if '--ackfirst' in OPT: a('s_waitcnt vmcnt(0)'); a('s_barrier')
    for p in range(8):
        if NE and p == NE: a.lines.append('ffn_g2:')
        gu(0, p)
        if THR: a('s_waitcnt vmcnt(%d)' % (THR - 1))
    if NE == 8: a.lines.append('ffn_g2:')
    def l2p():
        a('s_lshl_b32 s28, s22, 3'); a('s_add_u32 s28, s28, s21'); a('s_lshl_b32 s28, s28, 16'); a('v_lshlrev_b32 v9, 7, v0')
        a('buffer_load_dword v248, v9, s[64:67], s28 offen')
    if L2P == 1: l2p()
    for p in range(8):
        gu(1, p)
        if THR2: a('s_waitcnt vmcnt(%d)' % (THR2 - 1))
    if L2P == 2: l2p()
    a('v_lshrrev_b32 v2, 4, v1'); a('v_and_b32 v3, 15, v1')
    a('v_bfe_u32 v9, v1, 2, 2'); a('v_lshl_add_u32 v8, v2, 3, v9'); a('v_lshlrev_b32 v8, 9, v8')
    a('v_and_b32 v10, 1, v2'); a('v_lshl_add_u32 v10, v10, 2, v9'); a('s_lshl_b32 s28, s3, 1'); a('v_xor_b32 v10, s28, v10')
    a('v_lshl_add_u32 v8, v10, 5, v8'); a('v_and_b32 v10, 3, v1'); a('v_lshl_add_u32 v8, v10, 3, v8')
    a('v_xor_b32 v12, 32, v8'); a('v_add_u32 v13, %d, v8' % GT); a('v_add_u32 v20, %d, v12' % GT)
    a('v_bfe_u32 v9, v0, 2, 2'); a('v_lshrrev_b32 v10, 6, v0'); a('v_lshl_add_u32 v9, v10, 2, v9')
    a('v_bfe_u32 v10, v0, 4, 1'); a('v_and_b32 v11, 3, v0'); a('v_lshlrev_b32 v11, 1, v11'); a('v_lshl_add_u32 v10, v10, 3, v11')
    a('v_lshl_add_u32 v11, v9, 5, v10'); a('v_add_u32 v17, 1, v11')
    a('v_cmp_eq_u32 vcc, 0, v10'); a('v_cmp_gt_u32 s[28:29], 16, v9'); a('s_and_b64 vcc, vcc, s[28:29]'); a('v_cndmask_b32 v14, 0, 16, vcc'); a('v_add_u32 v16, v11, v14')
    a('v_bfe_u32 v10, v0, 5, 1'); a('v_cmp_eq_u32 s[28:29], 1, v10')
    a('v_sub_u32 v14, 1024, v16'); a('v_cmp_eq_u32 vcc, 512, v16'); a('v_cndmask_b32 v14, v14, 0, vcc'); a('v_cndmask_b32 v16, v16, v14, s[28:29]')
    a('v_sub_u32 v14, 1024, v17'); a('v_cndmask_b32 v17, v17, v14, s[28:29]')
    for r in (16, 17): a('v_lshlrev_b32 %s, 1, %s' % (v(r), v(r))); a('v_add_u32 %s, %d, %s' % (v(r), HN, v(r)))
    a('v_lshlrev_b32 v18, 2, v0'); a('v_add_u32 v18, %d, v18' % RAW)
    a('s_lshl_b32 s28, s21, 8'); a('s_add_u32 s28, s28, %d' % HN); a('v_lshlrev_b32 v19, 4, v2'); a('v_add_u32 v19, s28, v19')
    a('v_mov_b32 v28, %d' % MSG)
    a('v_lshlrev_b32 v29, 4, v1')
    a('s_lshl_b32 s30, s22, 3'); a('s_add_u32 s30, s30, s3'); a('s_lshl_b32 s30, s30, 3'); a('s_add_u32 s30, s30, s21'); a('s_lshl_b32 s30, s30, 8'); a('s_add_u32 s30, s30, 0x%x' % XOFF)
    a('v_lshlrev_b32 v30, 4, v2'); a('v_lshl_add_u32 v30, v3, 6, v30')
    for k in range(1, 4): a('v_cmp_eq_u32 %s, %d, v3' % (s(58 + 2 * k, 2), k))
    a('v_add_u32 v21, %d, v29' % RAW)
    a('v_mov_b32 %s, 0xffffff00' % v(197))
    a('s_and_b32 s35, s2, 0x47'); a('s_lshl_b32 s31, s3, 3'); a('s_add_u32 s35, s35, s31'); a('s_add_u32 s35, s35, %d' % POFS); a('s_and_b32 s35, s35, 127')
    a('s_getreg_b32 s33, hwreg(HW_REG_XCC_ID)'); a('s_and_b32 s33, s33, 15')
    a('s_lshr_b32 s31, s35, 5'); a('s_lshl_b32 s31, s31, 2'); a('s_add_u32 s31, s31, %d' % (MSG + 16)); a('v_mov_b32 v22, s31')
    a('s_lshl_b32 s20, s22, 3'); a('s_add_u32 s20, s20, s21')
    a('s_and_b32 s34, s20, 15')
    if DB & 2: a('s_bfe_u32 s28, s20, 0x10004'); a('s_lshl_b32 s28, s28, 5'); a('s_add_u32 s34, s34, s28')
    a('s_mul_i32 s34, s34, %d' % KS); a('s_add_u32 s34, s34, 0x%x' % KOFF)
    def trw():
        for T_, ad in enumerate((13, 20, 8, 12)):
            for k in range(4):
                for hh in range(2): a('ds_read_b64_tr_b16 %s, %s offset:%d' % (v(WF + 16 * T_ + 4 * k + 2 * hh, 2), v(ad), 16384 * k + 2048 * hh))
            a('s_waitcnt lgkmcnt(0)')
    a('s_waitcnt vmcnt(%d)' % (1 if L2P == 2 else 0))
    if DEC:
        a('v_mov_b32 v10, 1'); a('s_mov_b64 exec, 1'); a('ds_add_u32 v31, v10'); a('s_mov_b64 exec, -1')
        a('s_mov_b32 s23, 0')
        a('s_cmp_eq_u32 s3, 0'); a('s_cbranch_scc1 ffn_z0')
        a.lines.append('ffn_sl:')
        a('ds_read_b32 v10, v31'); a('s_waitcnt lgkmcnt(0)'); a('v_cmp_ne_u32 vcc, 8, v10'); a('s_cbranch_vccnz ffn_sl')
        st()
        trw()
        st()
        a('s_cmp_lg_u32 s3, 0'); a('s_cbranch_scc1 ffn_w3')
        a('s_cmp_eq_u32 s23, 2'); a('s_cbranch_scc1 ffn_w3')
        a('s_mov_b32 s23, 1')
        a.lines.append('ffn_z0:')
    else:
        a('s_barrier')
        st()
        trw()
        st()
        a('s_cmp_lg_u32 s3, 0'); a('s_cbranch_scc1 ffn_w3')
    if KP == 0:
        a('v_lshlrev_b32 v23, %d, v1' % KRL); a('v_add_u32 v24, %d, v23' % (64 << KRL)); a('s_lshl_b32 s28, s20, %d' % KRL); a('s_add_u32 s28, s28, s34'); a('v_mov_b32 v10, %d' % (12 + (16 * KS if DB & 1 else 0)))
        if DTH:
            a('v_mul_u32_u24 v11, %d, v1' % (3 << KRL if False else 2 << KRL)); a('v_bfe_u32 v9, v1, 2, 1'); a('v_lshl_add_u32 v11, v9, %d, v11' % KRL); a('v_add_u32 v10, v10, v11'); a('s_mov_b32 s28, s34')
            a.lines.append('ffn_q3:')
            a('buffer_load_dword v11, v10, s[4:7], s28 offen sc1')
            a('s_add_u32 s58, s58, 1')
            a('s_waitcnt vmcnt(0)')
            a('v_cmp_eq_u32 vcc, s40, v11')
            a('s_cmp_gt_u32 s58, 0x%x' % MAXPOLL); a('s_cbranch_scc1 ffn_p3_ok')
            a('s_bcnt1_i32_b64 s29, vcc'); a('s_cmp_lt_u32 s29, %d' % DTH); a('s_cbranch_scc1 ffn_q3'); a('s_branch ffn_p3_ok')
        a.label('ffn_p3')
        a('buffer_load_dword v11, v10, s[4:7], s28 offen sc1')
        if DEC: a('ds_read_b32 v9, v31')
        a('s_waitcnt vmcnt(0) lgkmcnt(0)')
        a('v_cmp_ne_u32 vcc, s40, v11')
        if DEC:
            a('s_cbranch_vccnz ffn_p3_x')
            a.lines.append('ffn_p3_ok:')
        else: poll_retry('ffn_p3')
        a('s_mov_b32 s58, 0'); a('s_mov_b32 s54, -1')
        st()
        a.label('ffn_k3')
        a('buffer_load_dwordx4 %s, v23, s[4:7], s34 offen sc1' % v(K, 4)); a('buffer_load_dwordx4 %s, v24, s[4:7], s34 offen sc1' % v(K + 4, 4))
        a('s_waitcnt vmcnt(0)')
        if SPEC:
            a('v_cmp_eq_u32 s[24:25], s40, %s' % v(K + 3)); a('v_cmp_eq_u32 s[26:27], s40, %s' % v(K + 7))
            a('v_cndmask_b32 %s, 0, %s, s[24:25]' % (v(K), v(K))); a('v_cndmask_b32 %s, 0, %s, s[26:27]' % (v(K + 4), v(K + 4)))
            a('v_max_u32 %s, %s, %s' % (v(K + 10), v(K), v(K + 4)))
            for pat in ['quad_perm:[1,0,3,2] ' + DPPF, 'quad_perm:[2,3,0,1] ' + DPPF, 'row_half_mirror ' + DPPF,
                        'row_mirror ' + DPPF, 'row_bcast:15 row_mask:0xa bank_mask:0xf', 'row_bcast:31 row_mask:0xc bank_mask:0xf']:
                a('v_max_u32_dpp %s, %s, %s %s' % (v(K + 10), v(K + 10), v(K + 10), pat))
            a('s_and_b64 s[52:53], s[24:25], s[26:27]')
            a('v_readlane_b32 s36, %s, 63' % v(K + 10))
        else: keys_argmax(K, None, 'ffn_k3')
    else:
        st()
        KSET = [216 + 8 * i for i in range(KP)]
        def ki(r): a('buffer_load_dwordx4 %s, v29, s[4:7], s34 offen sc1' % v(r, 4)); a('buffer_load_dwordx4 %s, v29, s[4:7], s34 offen offset:1024 sc1' % v(r + 4, 4))
        for r in KSET[:-1]: ki(r)
        a.lines.append('ffn_k3:')
        for i, r in enumerate(KSET):
            ki(KSET[i - 1])
            a('s_waitcnt vmcnt(%d)' % (2 * KP - 2))
            for k in range(8): a('v_mov_b32 %s, %s' % (v(K + k), v(r + k)))
            a('v_max_u32 %s, %s, %s' % (v(K + 10), v(K), v(K + 4)))
            a('v_xor_b32 %s, s40, %s' % (v(K + 8), v(K + 3))); a('v_xor_b32 %s, s40, %s' % (v(K + 9), v(K + 7)))
            for pat in ['quad_perm:[1,0,3,2] ' + DPPF, 'quad_perm:[2,3,0,1] ' + DPPF, 'row_half_mirror ' + DPPF,
                        'row_mirror ' + DPPF, 'row_bcast:15 row_mask:0xa bank_mask:0xf', 'row_bcast:31 row_mask:0xc bank_mask:0xf']:
                a('v_max_u32_dpp %s, %s, %s %s' % (v(K + 10), v(K + 10), v(K + 10), pat))
            a('v_or_b32 %s, %s, %s' % (v(K + 8), v(K + 8), v(K + 9)))
            a('v_readlane_b32 s36, %s, 63' % v(K + 10))
            a('v_cmp_ne_u32 vcc, 0, %s' % v(K + 8))
            a('s_cbranch_vccz ffn_k3_ok')
        a('s_add_u32 s58, s58, 1'); a('s_cmp_lt_u32 s58, 0x%x' % MAXPOLL); a('s_cbranch_scc1 ffn_k3')
        a.label('ffn_k3_ok')
    a('v_cmp_eq_u32 vcc, s36, %s' % v(K)); a('v_cmp_eq_u32 s[28:29], s36, %s' % v(K + 4))
    a('s_cmp_lg_u64 vcc, 0'); a('s_cselect_b32 s39, 0, 64'); a('s_or_b64 vcc, vcc, s[28:29]'); a('s_ff1_i32_b64 s41, vcc')
    a('s_add_u32 s39, s39, s41'); a('s_lshl_b32 s39, s39, 11'); a('s_add_u32 s39, s39, 0x%x' % COFF)
    CR = BH
    if SPEC:
        a('s_cmp_eq_u32 s39, s54'); a('s_cbranch_scc1 ffn_c3h')
        a('buffer_load_dwordx4 %s, v29, s[4:7], s39 offen sc1' % v(CR, 4)); a('buffer_load_dwordx4 %s, v29, s[4:7], s39 offen offset:1024 sc1' % v(CR + 4, 4))
        a.lines.append('ffn_c3h:')
        a('s_cmp_lg_u64 s[52:53], -1'); a('s_cbranch_scc1 ffn_k3_rt')
        a.lines.append('ffn_k3_ok:')
        a('s_mov_b32 s58, 0')
        st()
    else:
        a('s_mov_b32 s58, 0')
        st()
        a.lines.append('ffn_c3:')
        a('buffer_load_dwordx4 %s, v29, s[4:7], s39 offen sc1' % v(CR, 4)); a('buffer_load_dwordx4 %s, v29, s[4:7], s39 offen offset:1024 sc1' % v(CR + 4, 4))
    a.lines.append('ffn_c3d:')
    a('v_and_b32 v10, 15, %s' % v(K + 1)); a('v_and_b32 v11, 15, %s' % v(K + 5))
    a('v_cmp_eq_u32 s[24:25], s33, v10'); a('v_cmp_eq_u32 s[26:27], s33, v11')
    for k in range(4): a('v_mov_b32 %s, %s' % (v(K + 12 + k), s(24 + k) if LOCAL else '0'))
    for k in range(1, 3): a('v_cndmask_b32 %s, %s, %s, s[28:29]' % (v(K + 8 + k), v(K + k), v(K + 4 + k)))
    a('v_and_b32 %s, 0xffff0000, %s' % (v(K + 9), v(K + 9)))
    a('s_mov_b64 s[42:43], vcc'); a('s_mov_b64 exec, vcc')
    a('ds_write_b128 v28, %s' % v(K + 8, 4)); a('ds_write_b128 v28, %s offset:16' % v(K + 12, 4))
    a('s_mov_b64 exec, -1')
    a('s_waitcnt vmcnt(1)')
    a('ds_write_b128 v21, %s' % v(CR, 4))
    a('v_max3_u32 v10, %s, %s, %s' % (v(CR), v(CR + 1), v(CR + 2)))
    a('s_waitcnt vmcnt(0)')
    a('ds_write_b128 v21, %s offset:1024' % v(CR + 4, 4))
    a('v_max3_u32 v10, v10, %s, %s' % (v(CR + 3), v(CR + 4))); a('v_max3_u32 v11, %s, %s, %s' % (v(CR + 5), v(CR + 6), v(CR + 7))); a('v_max_u32 v10, v10, v11')
    a('v_cmp_eq_u32 vcc, -1, v10')
    a('s_cbranch_vccnz ffn_c3_rt')
    a.lines.append('ffn_c3_ok:')
    a('s_waitcnt lgkmcnt(0)')
    if DEC:
        a('s_cmp_eq_u32 s23, 0'); a('s_mov_b32 s23, 2'); a('s_cbranch_scc1 ffn_sl')
    a.label('ffn_w3')
    a('s_barrier')
    st.n = 10; st()
    a('ds_read_b32 v11, v18'); a('ds_read_b128 %s, v28' % v(K, 4)); a('ds_read_b32 %s, v22' % v(K + 3))
    a('s_mov_b32 s28, 0xffff0000')
    a('s_waitcnt lgkmcnt(2)')
    a('v_lshlrev_b32 v14, 16, v11'); a('v_and_b32 v15, s28, v11')
    a('s_waitcnt lgkmcnt(0)')
    for r in (14, 15): a('v_add_f32 %s, %s, %s' % (v(r), v(r), v(K + 1)))
    for r in (14, 15): rbf(a, r)
    for r in (14, 15): a('v_mul_f32 %s, %s, %s' % (v(r), v(r), v(K + 2)))
    a('v_cvt_pk_bf16_f32 v14, v14, v15')
    a('ds_write_b16 v16, v14'); a('ds_write_b16_d16_hi v17, v14')
    a('v_readfirstlane_b32 s24, %s' % v(K + 3))
    a('s_waitcnt lgkmcnt(0)'); a('s_barrier')
    st()
    for k in range(4): a('ds_read_b128 %s, v19 offset:%d' % (v(BH + 4 * k, 4), 64 * k))
    AC = 144
    for k in range(4):
        a('s_waitcnt lgkmcnt(%d)' % (3 - k))
        for T_ in range(4): a('v_mfma_f32_16x16x32_bf16 %s, %s, %s, %s' % (v((AC + 4 * T_) if T_ else ACC, 4), v(WF + 16 * T_ + 4 * k, 4), v(BH + 4 * k, 4), v((AC + 4 * T_) if T_ else ACC, 4) if k else '0'))
    for T_ in range(1, 4):
        for k in range(4): a('v_cndmask_b32 %s, %s, %s, %s' % (v(ACC + k), v(ACC + k), v(AC + 4 * T_ + k), s(58 + 2 * T_, 2)))
    a('s_mov_b32 exec_lo, 0x000f000f'); a('s_mov_b32 exec_hi, 0x000f000f')
    for k in range(4): a('v_and_or_b32 %s, %s, %s, %s' % (v(ACC + k), v(ACC + k), v(197), s(48 + k)))
    a('s_bitcmp1_b32 s24, s35'); a('s_cbranch_scc0 ffn_rem')
    a('buffer_store_dwordx4 %s, v30, s[4:7], s30 offen' % v(ACC, 4))
    a.lines.append('ffn_fin:')
    st()
    st.dump(sv=250, wave='s3')
    a('s_endpgm')
    a.lines.append('ffn_rem:')
    a('buffer_store_dwordx4 %s, v30, s[4:7], s30 offen sc1' % v(ACC, 4))
    a('s_branch ffn_fin')
    if DEC:
        a.lines.append('ffn_p3_x:')
        a('s_add_u32 s58, s58, 1'); a('s_cmp_gt_u32 s58, 0x%x' % MAXPOLL); a('s_cbranch_scc1 ffn_p3_ok')
        a('s_cmp_lg_u32 s23, 0'); a('s_cbranch_scc1 ffn_p3')
        a('v_cmp_eq_u32 vcc, 8, v9'); a('s_cbranch_vccnz ffn_sl'); a('s_branch ffn_p3')
    a.lines.append('ffn_c3_rt:')
    if SPEC:
        a('s_mov_b64 vcc, s[42:43]'); a('s_add_u32 s58, s58, 1'); a('s_cmp_gt_u32 s58, 0x%x' % MAXPOLL); a('s_cbranch_scc1 ffn_c3_ok')
        a('buffer_load_dwordx4 %s, v29, s[4:7], s39 offen sc1' % v(CR, 4)); a('buffer_load_dwordx4 %s, v29, s[4:7], s39 offen offset:1024 sc1' % v(CR + 4, 4))
        a('s_branch ffn_c3d')
        a.lines.append('ffn_k3_rt:')
        a('s_cmp_lg_u32 s36, 0'); a('s_cselect_b32 s54, s39, -1')
        a('s_add_u32 s58, s58, 1'); a('s_cmp_lt_u32 s58, 0x%x' % MAXPOLL); a('s_cbranch_scc1 ffn_k3'); a('s_branch ffn_k3_ok')
    else:
        a('s_mov_b64 vcc, s[42:43]'); a('s_add_u32 s58, s58, 1'); a('s_cmp_lt_u32 s58, 0x%x' % MAXPOLL); a('s_cbranch_scc1 ffn_c3'); a('s_branch ffn_c3_ok')
    emit_stubs()
    a.lines.append('fz_codeend:')

def main(path):
    ref = open('/code/%s.s.ref' % NAME).read().splitlines()
    for l in ref:
        if l.startswith('; Override'): break
        a.raw(l)
    a.raw('; @launch kernel=fz_kernel grid=(256,1,1) block=(512,1,1) lds=163840')
    if STAMPS: a.raw('; @groups fftA=0-127:0-3,fftB=0-127:4-7,ffn=128-255:0-0')
    a.raw('.amdgcn_target "amdgcn-amd-amdhsa--gfx950"'); a.raw('.text')
    gen()
    a.raw('.section .rodata,"a"')
    a.raw('\n'.join(['.p2align 6', '.amdhsa_kernel fz_kernel', '  .amdhsa_next_free_vgpr 256', '  .amdhsa_next_free_sgpr 102',
        '  .amdhsa_accum_offset 256', '  .amdhsa_group_segment_fixed_size 0', '  .amdhsa_kernarg_size 104', '  .amdhsa_user_sgpr_count 2',
        '  .amdhsa_user_sgpr_kernarg_segment_ptr 1', '  .amdhsa_system_sgpr_workgroup_id_x 1', '.end_amdhsa_kernel', '']))
    open(path, 'w').write(a.text())
    print('wrote', path, 'lines', len(a.lines), 'nops', a.nops)
if __name__ == '__main__':
    ps = [x for x in sys.argv[1:] if x.endswith('.s')]
    main(ps[0] if ps else '/code/%s.s' % NAME)
```

```python
import struct, sys
import os; _d = os.path.dirname(os.path.abspath(__file__)); sys.path.insert(0, _d); sys.path.insert(0, _d + '/mb')
from asmlib import Asm
from mblib import St
NAME = 'sequential_preLN__spectral_fnet__moe_arch_mod__prompt'
def fh(x): return '0x%08x' % struct.unpack('<I', struct.pack('<f', x))[0]
OPT = set(a for a in sys.argv[1:] if a.startswith('--'))
def optv(name, d):
    for o in OPT:
        if o.startswith('--%s=' % name): return int(o.split('=')[1])
    return d
STAMPS = '--stamps' in OPT
def v(i, n=1): return 'v%d' % i if n == 1 else 'v[%d:%d]' % (i, i + n - 1)
def s(i, n=1): return 's%d' % i if n == 1 else 's[%d:%d]' % (i, i + n - 1)
DPPF = 'row_mask:0xf bank_mask:0xf'
X1 = 'quad_perm:[1,0,3,2] ' + DPPF
def rbf(a, r): a('v_cvt_pk_bf16_f32 %s, 0, %s' % (v(r), v(r)))
def kr(r): return (r & 3) + 8 * (r >> 2)
PS = 16384 + 128
WOFF = 0x1000; YOFF = 0x210000; KRL = optv('krl', 4); KOFF = 0x580000; KS = (128 << KRL) + 128; COFF = 0x448000; XOFF = 0x488000; POFF = 0x4c8000; PPS = 4096 + 128; PIS = 3584 + 128
DOFF = 0x548000; FIOFF = 0x558000; DLOFF = 0x560000; WSB = 0x690000
RS = 2064
CT = 24 * RS; SB = CT + 18432; AB = SB + 18432; CPS = 8192 + 64; PR = AB + 2 * CPS; WR = PR + 2048; TRASH = WR + 2048; ACT = TRASH + 1024; SYNC = CT - 16
GT = 81920; SP = 65536; HN = GT + 65536; MSG = HN + 2048; RAW = MSG + 64
MAXPOLL = 0x10000
SPID = optv('spid', 66); POFS = (124 - SPID) & 127
class Asm2(Asm):
    def __call__(self, text):
        if text.startswith('v_cndmask_b32 '): text = 'v_cndmask_b32_e64 ' + text[14:]
        Asm.__call__(self, text)
a = Asm2()
class St2(St):
    def __call__(self):
        if '--early' in OPT and 5 < self.n < 15: self.n += 1; return
        if '--cnt' in OPT and 0 < self.n < 4: self.n += 1; return
        St.__call__(self)
st = St2(a, STAMPS); st.vw = True
def est(i):
    if '--early' in OPT and STAMPS: a('s_memrealtime s[%d:%d]' % (70 + 2 * i, 71 + 2 * i))
stubs = []
def poll_retry(name, cnt=58):
    a('s_cbranch_vccnz %s_rt' % name)
    a.lines.append('%s_ok:' % name)
    stubs.append((name, cnt))
prog = []
def prog_poll(name, n, issue, check, after=None):
    for u in range(n):
        a.lines.append('%s_c%d:' % (name, u))
        a('s_waitcnt vmcnt(%d)' % (n - 1 - u))
        check(u)
        a('s_cbranch_vccnz %s_r%d' % (name, u))
        a.lines.append('%s_o%d:' % (name, u))
        if after: after(u)
    prog.append((name, n, issue))
def emit_stubs():
    for name, n, issue in prog:
        for u in range(n):
            a.lines.append('%s_r%d:' % (name, u))
            a('s_add_u32 s58, s58, 1'); a('s_cmp_gt_u32 s58, 0x%x' % MAXPOLL); a('s_cbranch_scc1 %s_o%d' % (name, u))
            if '--cnt' in OPT and name in ('fz_h1', 'fz_h2', 'fz_h5'): r = {'fz_h1': 72, 'fz_h2': 74, 'fz_h5': 76}[name]; a('s_add_u32 s%d, s%d, %d' % (r, r, n - u))
            for k in range(u, n): issue(k)
            a('s_branch %s_c%d' % (name, u))
    for name, cnt in stubs:
        a.lines.append('%s_rt:' % name)
        a('s_add_u32 %s, %s, 1' % (s(cnt), s(cnt))); a('s_cmp_lt_u32 %s, 0x%x' % (s(cnt), MAXPOLL))
        a('s_cbranch_scc1 %s' % name); a('s_branch %s_ok' % name)
def angles(mulreg, basereg, ks, tmp):
    for i, k in enumerate(ks):
        if k == 0: a('v_mov_b32 %s, %s' % (v(tmp + i), v(basereg)))
        else: a('v_fmamk_f32 %s, %s, %s, %s' % (v(tmp + i), v(mulreg), fh(float(k)), v(basereg)))
def trig(fn, t, n):
    for i in range(n): a('v_%s_f32 %s, %s' % (fn, v(t + i), v(t + i)))
def pack(dst, t, n, kind='f16'):
    for p in range(n // 2): a('v_cvt_pk_%s_f32 %s, %s, %s' % (kind, v(dst + p), v(t + 2 * p), v(t + 2 * p + 1)))
def tags():
    a('v_readfirstlane_b32 s40, v250')
    a('s_add_u32 s40, s40, 1'); a('s_and_b32 s38, s40, 3'); a('s_and_b32 s39, s40, 15')
    for i in range(4):
        a('s_bfe_u32 s41, s40, 0x%x' % ((2 << 16) | (2 * i + 2))); a('s_lshl_b32 s41, s41, 16'); a('s_or_b32 %s, s38, s41' % s(44 + i))
        a('s_bfe_u32 s41, s40, 0x%x' % ((4 << 16) | (4 * i + 4))); a('s_lshl_b32 s41, s41, 4'); a('s_or_b32 %s, s39, s41' % s(48 + i))
def srd(d, nbytes): a('s_mov_b32 %s, 0x%x' % (s(d + 2), nbytes)); a('s_mov_b32 %s, 0x00020000' % s(d + 3))
def blk(dst, tmp):
    if optv('bm', 0):
        e = optv('bm', 0) - 1
        a('s_add_u32 %s, s2, %d' % (s(tmp), 7 - e)); a('s_and_b32 %s, %s, 7' % (s(tmp), s(tmp))); a('s_bfe_u32 %s, s2, 0x10006' % s(tmp + 1))
        a('s_lshl_b32 %s, %s, 1' % (s(dst), s(tmp))); a('s_add_u32 %s, %s, %s' % (s(dst), s(dst), s(tmp + 1))); a('s_min_u32 %s, %s, 14' % (s(dst), s(dst)))
        return
    a('s_add_u32 %s, s2, 4' % s(tmp)); a('s_and_b32 %s, %s, 7' % (s(tmp), s(tmp))); a('s_bfe_u32 %s, s2, 0x10006' % s(tmp + 1))
    a('s_lshl_b32 %s, %s, 1' % (s(dst), s(tmp))); a('s_add_u32 %s, %s, %s' % (s(dst), s(dst), s(tmp + 1)))
    a('s_cmp_lg_u32 %s, 0' % s(tmp + 1)); a('s_cselect_b32 %s, 8, %s' % (s(tmp + 1), s(tmp))); a('s_add_u32 %s, %s, 6' % (s(tmp + 1), s(tmp + 1)))
    a('s_cmp_lt_u32 %s, 6' % s(tmp)); a('s_cselect_b32 %s, %s, %s' % (s(dst), s(dst), s(tmp + 1)))
def cand_off(d, o, t, m):
    a('v_and_b32 %s, 31, %s' % (v(t), v(d))); a('v_lshrrev_b32 %s, 5, %s' % (v(t + 1), v(d)))
    a('v_cmp_gt_u32 vcc, 16, %s' % v(t + 1))
    a('v_cmp_lt_u32 %s, 16, %s' % (s(m, 2), v(t))); a('v_cmp_eq_u32 %s, 0, %s' % (s(m + 2, 2), v(t))); a('s_and_b64 %s, %s, vcc' % (s(m + 2, 2), s(m + 2, 2))); a('s_or_b64 %s, %s, %s' % (s(m, 2), s(m, 2), s(m + 2, 2)))
    a('v_cmp_eq_u32 %s, 16, %s' % (s(m + 2, 2), v(t))); a('s_andn2_b64 %s, %s, vcc' % (s(m + 2, 2), s(m + 2, 2))); a('s_or_b64 %s, %s, %s' % (s(m, 2), s(m, 2), s(m + 2, 2)))
    e, u = v(t + 2), v(t + 3)
    a('v_sub_u32 %s, 1024, %s' % (e, v(d))); a('v_cndmask_b32 %s, %s, %s, %s' % (e, v(d), e, s(m, 2)))
    a('v_mov_b32 %s, 512' % u); a('v_cmp_eq_u32 vcc, 1024, %s' % e); a('v_cndmask_b32 %s, %s, %s, vcc' % (e, e, u))
    a('v_lshrrev_b32 %s, 5, %s' % (u, e)); a('v_and_b32 %s, 15, %s' % (e, e))
    a('v_lshrrev_b32 %s, 2, %s' % (v(o), u)); a('v_lshlrev_b32 %s, 8, %s' % (v(o), v(o))); a('v_and_b32 %s, 3, %s' % (u, u)); a('v_lshl_add_u32 %s, %s, 4, %s' % (v(o), u, v(o)))
    a('v_lshrrev_b32 %s, 3, %s' % (u, e)); a('v_lshl_add_u32 %s, %s, 6, %s' % (v(o), u, v(o))); a('v_and_b32 %s, 7, %s' % (e, e)); a('v_lshl_add_u32 %s, %s, 1, %s' % (v(o), e, v(o)))
    a('v_cndmask_b32 %s, 0, 1, %s' % (e, s(m, 2))); a('v_lshl_add_u32 %s, %s, 7, %s' % (v(o), e, v(o)))
def keys_argmax(K, gidx, name):
    a('v_xor_b32 %s, s40, %s' % (v(K + 8), v(K + 3))); a('v_xor_b32 %s, s40, %s' % (v(K + 9), v(K + 7)))
    a('v_max_u32 %s, %s, %s' % (v(K + 10), v(K), v(K + 4)))
    a('v_or_b32 %s, %s, %s' % (v(K + 8), v(K + 8), v(K + 9)))
    a('v_cmp_ne_u32 vcc, 0, %s' % v(K + 8))
    poll_retry(name)
    for pat in ['quad_perm:[1,0,3,2] ' + DPPF, 'quad_perm:[2,3,0,1] ' + DPPF, 'row_half_mirror ' + DPPF,
                'row_mirror ' + DPPF, 'row_bcast:15 row_mask:0xa bank_mask:0xf', 'row_bcast:31 row_mask:0xc bank_mask:0xf']:
        a('v_max_u32_dpp %s, %s, %s %s' % (v(K + 10), v(K + 10), v(K + 10), pat))
    a('v_readlane_b32 s36, %s, 63' % v(K + 10))

def gen():
    PIN = optv('pin', 1); WLIN = optv('wlin', 0); YLIN = optv('ylin', 0); WT = optv('wt', 1); DTH = optv('dth', 0); SPEC = optv('spec', 0); CL = optv('cl', 1); XB_ = optv('xb', 0); GH = optv('gh', 1); EP2 = optv('ep2', 0); EP = optv('ep', 5); TWO = optv('two', 0); L2P = optv('l2p', 0); DEC = optv('dec', 0)
    APP = optv('app', 0); WL = optv('wl', 0)
    BP = optv('bp', 1); THR = optv('thr', 0); THR2 = optv('thr2', 0)
    KP = optv('kp', 0); DB = optv('db', 3)
    PFC = optv('pfc', 1); WSP = optv('wsp', 2204); WE = WSP // 1000; W2 = WE + WSP // 100 % 10; W3 = W2 + WSP // 10 % 10; assert W3 + WSP % 10 == 8; OLATE = '--olate' in OPT; GATE = optv('gate', 0)
    TOUCH = optv('touch', 0); LOCAL = '--nolocal' not in OPT
    NE = optv('ne', 0); LATEX = '--earlyx' not in OPT
    a.raw('.globl fz_kernel'); a.raw('.p2align 8'); a.raw('.type fz_kernel,@function'); a.lines.append('fz_kernel:')
    st()
    if STAMPS:
        for i in range(1, 16): a('s_mov_b32 s%d, %d' % (70 + 2 * i, 0 if ('--cnt' in OPT and i < 4) else -1))
    F1, TC, TS, C2, S2, B3C, B3S, CQ = 16, 24, 32, 40, 48, 56, 64, 72
    XA, XB, XAC, XBC, H, T, TP, ST = 88, 96, 104, 120, 136, 144, 152, 160
    XD, WV, WD = 28, 200, 168
    vSW, vSR, vWST, vHL, vA0, vA1, vAR, vY0, vY1, vYL, vM, vT, vXR, vXM, vE0, vM0, vYE, vZM = 216, 217, 221, 222, 223, 224, 225, 226, 227, 228, 229, 230, 231, 232, 233, 234, 236, 238
    vL16, vSG, vM0m, vPW, vPD, vPR, vKA, vCA, vTK, vMT, vE = 239, 240, 241, 243, 244, 245, 246, 247, 248, 249, 252
    a('s_load_dwordx2 s[4:5], s[0:1], 96'); a('s_load_dwordx2 s[8:9], s[0:1], 0'); a('s_load_dwordx2 s[64:65], s[0:1], 72')
    a('s_cmp_gt_u32 s2, 255'); a('s_cbranch_scc1 fz_end')
    a('v_lshrrev_b32 v2, 6, v0'); a('v_and_b32 v1, 63, v0')
    a('s_lshr_b32 s59, s2, 7')
    a('v_readfirstlane_b32 s3, v2')
    if PFC:
        a('s_and_b32 s20, s2, %d' % (255 if '--pfh0' in OPT else 127)); a('s_cmp_lt_u32 s20, %d' % (8 * PFC)); a('s_cselect_b32 s20, s3, 0'); a('s_cmp_lt_u32 s20, 4'); a('s_cbranch_scc1 fz_pfcback')
        a('s_getpc_b64 s[20:21]')
        a.lines.append('fz_pcb:')
        a('s_sub_u32 s20, s20, fz_pcb-fz_kernel'); a('s_subb_u32 s21, s21, 0')
        a('v_and_b32 v3, 255, v0'); a('v_lshlrev_b32 v3, 7, v3'); a('v_min_u32 v3, fz_codeend-fz_kernel-4, v3')
        a('v_mov_b32 v5, s21'); a('v_add_co_u32 v4, vcc, s20, v3'); a('v_addc_co_u32 v5, vcc, 0, v5, vcc')
        a('global_load_dword v251, v[4:5], off')
        a.lines.append('fz_pfcback:')
    a('s_cmp_lg_u32 s59, 0'); a('s_cbranch_scc1 fz_ldh')
    a('s_load_dwordx2 s[12:13], s[0:1], 80'); a('s_load_dwordx2 s[16:17], s[0:1], 48')
    a.lines.append('fz_ldback:')
    a('s_add_u32 s20, s2, %d' % POFS); a('s_and_b32 s20, s20, 127')
    a('s_lshr_b32 s21, s20, 3'); a('s_add_u32 s21, s21, 1'); a('s_and_b32 s22, s20, 7')
    a('s_sub_u32 s23, s20, 124'); a('s_cmp_ge_u32 s20, 124'); a('s_cselect_b32 s21, 0, s21'); a('s_cselect_b32 s22, s23, s22')
    a('s_lshr_b32 s57, s3, 2'); a('s_or_b32 s23, s57, s59'); a('s_and_b32 s24, s3, 3')
    a('s_lshl_b32 s25, s22, 6'); a('s_add_u32 s25, s25, s21')
    a('s_lshl_b32 s26, s23, 5'); a('s_add_u32 s26, s26, s25')
    a('s_lshl_b32 s27, s24, 9'); a('s_add_u32 s28, s26, s27')
    a('s_sub_u32 s27, 2048, s27'); a('s_sub_u32 s27, s27, s26')
    a('s_lshl_b32 s29, s24, 1'); a('s_add_u32 s29, s29, s23'); a('s_sub_u32 s30, 15, s29')
    a('s_cmp_lt_u32 s24, 2'); a('s_cselect_b32 s27, s28, s27'); a('s_cselect_b32 s31, s29, s30'); a('s_cselect_b32 s30, s30, s29')
    a('s_sub_u32 s28, 2048, s27'); a('s_and_b32 s28, s28, 2047')
    a('s_lshl_b32 s27, s27, 11'); a('s_lshl_b32 s28, s28, 11')
    a('s_mul_i32 s31, s31, %d' % RS); a('s_mul_i32 s30, s30, %d' % RS)
    a('v_lshlrev_b32 %s, 4, v1' % v(vL16))
    srd(8, 2048 * 2048); srd(4, WSB); srd(64, 0x700000)
    a('s_and_b32 s32, s57, s59')
    blk(63, 36); a('s_lshl_b32 s63, s63, 3'); a('s_bfe_u32 s37, s2, 0x30003'); a('s_add_u32 s63, s63, s37')
    a('v_and_b32 v10, 15, v1'); a('v_lshlrev_b32 v10, 4, v10'); a('v_lshrrev_b32 v14, 4, v1'); a('v_lshl_add_u32 v14, v14, 11, v10')
    a('s_lshl_b32 s62, s63, 16'); a('s_and_b32 s37, s3, 3'); a('s_lshl_b32 s37, s37, 9'); a('s_add_u32 s62, s62, s37')
    WQ = [160 + 4 * i for i in range(10)] + [60, 64, 68, 88, 92, 96]
    def wdload(q0=0, q1=8):
        for q in range(q0, q0 if '--xnowd' in OPT else q1):
            for h in range(2): a('buffer_load_dwordx4 %s, v14, s[64:67], s62 offen offset:%d%s' % (v(WQ[2 * q + h], 4), 256 * h, '' if '--wpl' in OPT else ' nt'))
            if q < 7: a('s_add_u32 s62, s62, 8192')
    a('s_mov_b32 s58, 0')
    a('s_waitcnt lgkmcnt(0)')
    st()
    if optv('wsb', 0): a('s_add_u32 s4, s4, 0x%x' % (optv('wsb', 0) << 20)); a('s_addc_u32 s5, s5, 0')
    a('s_cmp_eq_u32 s2, %d' % SPID); a('s_cbranch_scc1 fz_spec')
    a.lines.append('fz_specback:')
    def xload(f=''):
        a('s_mov_b32 m0, s31'); a('s_nop 0')
        a('buffer_load_dwordx4 %s, s[8:11], s27 offen%s lds' % (v(vL16), f)); a('buffer_load_dwordx4 %s, s[8:11], s27 offen offset:1024%s lds' % (v(vL16), f))
        a('s_mov_b32 m0, s30'); a('s_nop 0')
        a('buffer_load_dwordx4 %s, s[8:11], s28 offen%s lds' % (v(vL16), f)); a('buffer_load_dwordx4 %s, s[8:11], s28 offen offset:1024%s lds' % (v(vL16), f))
    def extras():
        a('v_lshlrev_b32 v13, 3, v0'); a('v_mov_b32 v10, -1'); a('v_mov_b32 v11, -1'); a('s_lshl_b32 s32, s20, 11'); a('s_add_u32 s32, s32, 0x%x' % (COFF - 2048))
        srd(16, 2048)
        a('s_lshl_b32 s33, s24, 10'); a('s_min_u32 s34, s33, 2048'); a('s_add_u32 s34, s34, %d' % WR); a('s_mov_b32 m0, s34')
        a('buffer_store_dwordx2 v[10:11], v13, s[4:7], s32 offen sc1')
        a('buffer_load_dwordx4 %s, s[16:19], s33 offen lds' % v(vL16))
    def latex(): xload(' nt' if optv('xnt', 3) & 2 else ''); extras()
    a('s_cmp_lg_u32 %s, 0' % ('s57' if LATEX else 's32')); a('s_cbranch_scc1 fz_nox')
    xload(' nt' if optv('xnt', 3) & 1 else '')
    a.lines.append('fz_nox:')
    a('buffer_load_dword v250, off, s[4:7], 0')
    if WE:
        a('s_andn2_b32 s32, s57, s59'); a('s_cbranch_scc0 fz_nowe')
        wdload(0, WE)
        a.lines.append('fz_nowe:')
    if not LATEX:
        a('s_andn2_b32 s32, s3, 3'); a('s_cmp_gt_u32 s32, s59'); a('s_cselect_b32 s32, 1, 0'); a('s_andn2_b32 s32, s32, s59'); a('s_cbranch_scc0 fz_noclr')
        extras()
        a.lines.append('fz_noclr:')
    est(6)
    if BP: a('s_cmp_eq_u32 s57, 0'); a('s_cbranch_scc1 fz_np'); a('s_setprio 1'); a.lines.append('fz_np:')
    a('v_and_b32 v2, 31, v1'); a('v_lshrrev_b32 v3, 5, v1'); a('v_and_b32 v4, 15, v1'); a('v_lshrrev_b32 v5, 4, v1')
    a('v_add_u32 v6, %d, %s' % (CT, v(vL16)))
    TT = XAC
    JT = 128
    def cq_job():
        a('s_and_b32 s32, s3, 1'); a('s_lshl_b32 s33, s32, 2'); a('s_lshl_b32 s32, s32, 11')
        a('v_and_b32 v8, 3, v4'); a('v_lshrrev_b32 v9, 2, v4'); a('v_lshl_add_u32 v8, v8, 3, v9'); a('v_add_u32 v8, s33, v8')
        a('v_cvt_f32_u32 v8, v8'); a('v_mul_f32 v8, %s, v8' % fh(1 / 32)); a('v_cvt_f32_u32 v9, v5'); a('v_mul_f32 v9, 4.0, v9'); a('v_mul_f32 v9, v8, v9')
        angles(8, 9, [0, 1, 2, 3, 16, 17, 18, 19], TT)
        for i in range(8): a('v_sin_f32 %s, %s' % (v(TT + 8 + i), v(TT + i)))
        trig('cos', TT, 8)
        for i in range(16): a('v_mul_f32 %s, %s, %s' % (v(TT + i), fh(1 / 16), v(TT + i)))
        pack(JT, TT, 16); a('v_add_u32 v8, s32, v6')
        for q in range(2): a('ds_write_b128 v8, %s offset:%d' % (v(JT + 4 * q, 4), 1024 * (14 + q)))
    a('v_lshrrev_b32 v10, 1, v2'); a('v_and_b32 v8, 9, v10'); a('v_and_b32 v11, 2, v10'); a('v_lshl_or_b32 v8, v11, 1, v8')
    a('v_bfe_u32 v11, v10, 2, 1'); a('v_lshl_or_b32 v8, v11, 1, v8')
    a('v_and_b32 v12, 1, v5'); a('v_cmp_eq_u32 vcc, 1, v12'); a('v_lshl_add_u32 v9, v4, 1, 1'); a('v_cndmask_b32 v9, v9, 0, vcc')
    a('s_cmp_lt_u32 s3, 5'); a('s_cselect_b64 s[32:33], -1, 0')
    a('s_cmp_lt_u32 s3, 3'); a('s_cselect_b64 s[34:35], -1, 0')
    a('v_cndmask_b32 v9, v9, v2, s[32:33]'); a('v_cndmask_b32 v8, v9, v8, s[34:35]')
    a('s_mov_b32 s36, %s' % fh(1 / 32)); a('s_cmp_gt_u32 s3, 4'); a('s_cselect_b32 s36, %s, s36' % fh(1 / 64))
    a('s_sub_u32 s37, s3, 1'); a('s_cmp_lt_u32 s37, 2'); a('s_cselect_b32 s36, %s, s36' % fh(1 / 1024))
    a('s_cmp_eq_u32 s3, 0'); a('s_cselect_b32 s32, 16, 0'); a('s_cselect_b32 s33, %s, 0' % fh(0.25)); a('s_cselect_b32 s34, 4.0, %s' % fh(8.0)); a('s_cselect_b32 s35, %s, 4.0' % fh(8.0))
    a('v_cmp_eq_u32 vcc, 1, v2'); a('v_mov_b32 v10, s32'); a('v_cndmask_b32 v10, 0, v10, vcc'); a('v_add_u32 v8, v8, v10')
    a('v_cvt_f32_u32 v8, v8'); a('v_mul_f32 v8, s36, v8')
    a('s_cmp_eq_u32 s3, 2'); a('s_cselect_b32 s32, 0x80000000, 0'); a('v_lshlrev_b32 v10, 31, v2'); a('v_and_b32 v10, s32, v10'); a('v_xor_b32 v8, v10, v8')
    a('v_and_b32 v10, 1, v2'); a('v_cvt_f32_u32 v10, v10'); a('v_mul_f32 v10, s33, v10')
    a('s_cmp_eq_u32 s3, 1'); a('s_cselect_b32 s33, %s, 0' % fh(0.25)); a('v_mov_b32 v11, s33'); a('v_cndmask_b32 v10, v10, v11, vcc')
    a('s_cmp_eq_u32 s3, 5'); a('s_cselect_b32 s33, %s, 0' % fh(0.25)); a('v_cvt_f32_u32 v12, v12'); a('v_fma_f32 v10, v12, s33, v10')
    a('s_cmp_eq_u32 s3, 6'); a('s_cselect_b32 s33, %s, 0' % fh(0.25))
    a('s_cmp_eq_u32 s3, 2'); a('s_cselect_b32 s33, %s, s33' % fh(-0.25)); a('s_cmp_eq_u32 s3, 4'); a('s_cselect_b32 s33, %s, s33' % fh(-0.25))
    a('v_add_f32 v10, s33, v10'); a('v_cvt_f32_u32 v11, v3'); a('v_mul_f32 v11, s35, v11'); a('v_fma_f32 v9, v8, v11, v10')
    a('v_mul_f32 v10, s34, v8'); a('v_mul_f32 v11, %s, v8' % fh(16.0))
    angles(8, 9, [0, 1, 2, 3], TT)
    for i in range(4): a('v_add_f32 %s, %s, v10' % (v(TT + 4 + i), v(TT + i)))
    for i in range(8): a('v_add_f32 %s, %s, v11' % (v(TT + 8 + i), v(TT + i)))
    est(7)
    trig('cos', TT, 16)
    a('s_lshl_b32 s32, s3, 11'); a('v_add_u32 v8, s32, v6')
    a('s_cmp_eq_u32 s3, 0'); a('s_cbranch_scc1 fz_jb')
    pack(JT, TT, 16)
    a.lines.append('fz_jend:')
    for q in range(2): a('ds_write_b128 v8, %s offset:%d' % (v(JT + 4 * q, 4), 1024 * q))
    B1, TC2, TS2 = 16, 20, 24
    vA = [vA0, vA1, 100, 101]
    def sync_add(val):
        a('v_mov_b32 v10, %d' % val); a('s_mov_b64 exec, 1'); a('ds_add_u32 v15, v10'); a('s_mov_b64 exec, -1')
    def SETA():
        a('s_and_b32 s32, s3, 3'); a('s_lshr_b32 s33, s3, 2'); a('s_lshl_b32 s33, s33, 4'); a('s_add_u32 s33, s33, s32')
        a('v_and_b32 v8, 12, v4'); a('v_bfe_u32 v9, v4, 1, 1'); a('v_lshl_add_u32 v8, v9, 5, v8'); a('v_add_u32 v8, s33, v8')
        a('v_cvt_f32_u32 v8, v8'); a('v_and_b32 v12, 1, v1'); a('v_cvt_f32_u32 v9, v12'); a('v_lshlrev_b32 v13, 2, v5'); a('v_cvt_f32_u32 v10, v13')
        a('v_mul_f32 v11, %s, v8' % fh(1 / 64)); a('v_mul_f32 v9, %s, v9' % fh(0.25)); a('v_fma_f32 v9, v11, v10, v9')
        TT = XAC
        angles(11, 9, [0, 1, 2, 3], TT + 24)
        a('v_mul_f32 v11, %s, v8' % fh(1 / 2048)); a('v_lshlrev_b32 v9, 31, v1'); a('v_xor_b32 v11, v9, v11'); a('v_mul_f32 v9, v11, v10')
        angles(11, 9, [0, 1, 2, 3, 16, 17, 18, 19], TT + 8)
        for i in range(8): a('v_%s_f32 %s, %s' % ('sin' if i & 1 else 'cos', v(TT + i), v(TT + 24 + (i >> 1))))
        for i in range(8): a('v_sin_f32 %s, %s' % (v(TT + 16 + i), v(TT + 8 + i)))
        trig('cos', TT + 8, 8)
        pack(B1, TT, 24)
        a('v_lshrrev_b32 v8, 3, v1'); a('v_mul_u32_u24 %s, %d, v8' % (v(vHL), PS)); a('v_and_b32 v9, %d, v1' % (3 if WLIN else 7)); a('v_lshl_add_u32 %s, v9, 4, %s' % (v(vHL), v(vHL)))
        if WLIN: a('v_bfe_u32 v9, v1, 2, 1'); a('v_lshl_add_u32 %s, v9, 13, %s' % (v(vHL), v(vHL)))
        a('s_mul_i32 s60, s3, %d' % (32 * PS)); a('s_lshl_b32 s32, s20, %d' % (6 if WLIN else 7)); a('s_add_u32 s60, s60, s32'); a('s_add_u32 s60, s60, 0x%x' % WOFF); a('s_add_u32 s61, s60, %d' % (8 * PS)); a('s_add_u32 s16, s60, %d' % (16 * PS)); a('s_add_u32 s17, s60, %d' % (24 * PS))
        a('v_lshlrev_b32 v8, 1, v8'); a('v_bfe_u32 v9, v1, 2, 1'); a('v_add_u32 v8, v8, v9'); a('s_lshl_b32 s32, s3, 2'); a('s_add_u32 s32, s32, 1')
        a('v_lshl_add_u32 v8, v8, 5, s32')
        a('v_cmp_eq_u32 vcc, 1, v12')
        a('v_bfe_u32 v9, v1, 1, 1'); a('v_mul_u32_u24 v9, %d, v9' % CPS); a('v_add_u32 v9, %d, v9' % AB)
        a('s_cmp_eq_u32 s3, 3'); a('s_cselect_b32 s32, 272, 0')
        for u, dst in enumerate(vA):
            if u == 3: a('v_mul_u32_u24 v10, s32, v3'); a('v_sub_u32 v8, v8, v10')
            if u: a('v_add_u32 v8, 1, v8')
            a('v_sub_u32 v10, 512, v8'); a('v_cndmask_b32 v10, v8, v10, vcc')
            if u == 3: a('v_lshrrev_b32 v11, 1, v10'); a('v_and_b32 v11, 256, v11'); a('v_sub_u32 v10, v10, v11')
            a('v_and_b32 v11, 16, v10'); a('v_lshl_add_u32 v11, v11, 6, v9'); a('v_lshrrev_b32 v12, 7, v10'); a('v_lshl_add_u32 v11, v12, 8, v11')
            a('v_and_b32 v12, 15, v10'); a('v_lshl_add_u32 v11, v12, 4, v11'); a('v_bfe_u32 v12, v10, 5, 2'); a('v_lshl_add_u32 %s, v12, 2, v11' % v(dst))
        a('s_and_b32 s32, s3, 3'); a('s_lshl_b32 s32, s32, 11'); a('s_add_u32 s32, s32, %d' % AB); a('v_add_u32 %s, s32, %s' % (v(vAR), v(vL16)))
        if not YLIN:
            a('v_add_u32 v8, s33, v13')
            a('v_sub_u32 v9, 32, v8'); a('v_min_u32 v9, v8, v9')
            a('v_and_b32 v10, 15, v8'); a('v_cmp_eq_u32 s[32:33], 0, v10')
            a('v_cmp_lt_u32 s[34:35], 16, v8')
            a('v_lshlrev_b32 v10, 10, v9'); a('v_subrev_u32 v10, 1024, v10'); a('v_mov_b32 v11, %d' % (124 * 128)); a('v_cmp_eq_u32 vcc, 0, v8'); a('v_cndmask_b32 v10, v10, v11, vcc')
            a('v_and_b32 v11, 3, v1'); a('v_lshl_add_u32 v10, v11, 4, v10')
            a('v_lshrrev_b32 v11, 2, v4'); a('v_lshlrev_b32 v12, 7, v11')
            for tau, dst in ((0, vY0), (1, vY1)):
                if tau: a('s_or_b64 s[34:35], s[34:35], s[32:33]'); a('v_add_u32 v12, 512, v12')
                a('v_sub_u32 v13, %d, v12' % (7 * 128 + 64))
                a('v_cndmask_b32 v13, v12, v13, s[34:35]'); a('v_add_u32 %s, v10, v13' % v(dst))
        a('s_mul_i32 s56, s20, %d' % PS); a('s_add_u32 s56, s56, 0x%x' % YOFF)
        if YLIN: a('s_lshl_b32 s32, s3, 11'); a('s_add_u32 s56, s56, s32')
        a('v_mov_b32 %s, 0x30003' % v(vMT))
        for k in range(4): a('v_mov_b32 %s, %s' % (v(vE + k), s(44 + k)))
        a('s_waitcnt lgkmcnt(0)')
    def SETB(sfx):
        a('v_sub_u32 v8, 15, v4'); a('v_min_u32 v8, v4, v8')
        a('v_and_b32 v9, 1, v8'); a('v_lshlrev_b32 v9, 5, v9'); a('v_lshrrev_b32 v10, 1, v8'); a('v_lshl_add_u32 v9, v10, 9, v9'); a('v_add_u32 v9, s25, v9')
        a('v_sub_u32 v10, 2048, v9'); a('v_cmp_lt_u32 s[34:35], 7, v4'); a('v_cndmask_b32 %s, v9, v10, s[34:35]' % v(vT))
        a('v_mov_b32 v9, v4'); a('v_mov_b32 v10, s20')
        a('s_cmp_lg_u32 s21, 0'); a('s_cbranch_scc0 fz_spec3%s' % sfx)
        a.lines.append('fz_spec3back%s:' % sfx)
        if YLIN:
            a('v_mul_u32_u24 v11, %d, v5' % (4 * PS)); a('v_and_b32 v10, 0xc0, %s' % v(vT)); a('v_add_u32 v11, v11, v10')
            for pos, wid, dst in ((0, 2, 11), (4, 1, 13), (8, 1, 10), (2, 2, 8), (9, 2, 4)):
                a('v_bfe_u32 v10, %s, %d, %d' % (v(vT), pos, wid)); a('v_lshl_add_u32 v11, v10, %d, v11' % dst)
            a('v_bfe_u32 v9, %s, 5, 1' % v(vT)); a('v_lshl_add_u32 %s, v9, 3, v11' % v(vYL))
        else:
            a('v_lshlrev_b32 v10, 7, v10'); a('v_lshl_add_u32 v10, v9, 3, v10'); a('v_mul_u32_u24 v11, %d, v5' % (4 * PS)); a('v_add_u32 %s, v10, v11' % v(vYL))
        a('v_and_b32 v9, 1, v9'); a('v_cmp_eq_u32 vcc, 1, v9')
        a('v_mov_b32 v9, s44'); a('v_mov_b32 v10, s46'); a('v_cndmask_b32 %s, v9, v10, vcc' % v(vYE))
        a('v_mov_b32 v9, s45'); a('v_mov_b32 v10, s47'); a('v_cndmask_b32 %s, v9, v10, vcc' % v(vYE + 1))
        a('s_lshl_b32 s32, s3, 2'); a('v_add_u32 v8, s32, v5')
        a('v_lshlrev_b32 v9, 6, v8')
        a('v_cmp_gt_u32 vcc, 16, v8'); a('v_cndmask_b32 v10, 0, 32, vcc'); a('v_add_u32 v10, v9, v10')
        a('v_sub_u32 v11, 2048, v10'); a('v_cmp_eq_u32 vcc, 16, v8'); a('v_cndmask_b32 v11, v11, 0, vcc')
        a('v_mov_b32 v12, 0xffff0000'); a('v_cndmask_b32 %s, -1, v12, vcc' % v(vZM))
        a('v_sub_u32 v12, %d, v9' % (2048 - 30))
        a('v_mul_u32_u24 v13, %d, v4' % RS)
        a('v_add_u32 %s, v13, v9' % v(vXR)); a('v_add_u32 %s, v13, v12' % v(vXM)); a('v_add_u32 %s, v13, v10' % v(vE0)); a('v_add_u32 v241, v13, v11')
        a('s_lshl_b32 s32, s3, 8'); a('s_add_u32 s32, s32, %d' % PR)
        a('v_lshlrev_b32 v9, 4, v4'); a('v_add_u32 v10, s32, v9'); a('v_add_u32 v11, %d, %s' % (TRASH, v(vL16)))
        a('v_cmp_gt_u32 vcc, 16, v1'); a('v_cndmask_b32 %s, v11, v10, vcc' % v(vPW))
        a('v_lshrrev_b32 v12, 2, v4'); a('v_cmp_eq_u32 vcc, v12, v5'); a('v_cndmask_b32 %s, v11, v10, vcc' % v(vPD))
        a('v_lshrrev_b32 v12, 5, v1'); a('v_lshl_add_u32 v10, v12, 10, v9'); a('v_add_u32 %s, %d, v10' % (v(vPR), PR))
        a('v_and_b32 v9, 1, v1'); a('v_cmp_eq_u32 s[28:29], 1, v9'); a('v_and_b32 v9, 2, v1'); a('v_cmp_eq_u32 s[30:31], 2, v9')
        a('s_lshl_b32 s37, s3, 2'); a('v_add_u32 v9, s37, v5'); a('v_mul_u32_u24 %s, %d, v9' % (v(vKA), KS))
        a('s_lshl_b32 s26, s20, %d' % KRL); a('s_add_u32 s26, s26, 0x%x' % KOFF)
        a('v_lshlrev_b32 %s, 4, v5' % v(vCA)); a('s_lshl_b32 s27, s20, 11'); a('s_lshl_b32 s37, s3, 8'); a('s_add_u32 s27, s27, s37'); a('s_add_u32 s27, s27, 0x%x' % COFF)
        a('v_sub_u32 %s, 2047, %s' % (v(vTK), v(vT)))
        srd(12, 2048 * 2048)
        a('s_mul_i32 s52, s3, %d' % (16 * PS)); a('s_add_u32 s52, s52, 0x%x' % YOFF)
        for jx in range(1, 4): a('s_add_u32 %s, s52, %d' % (s(52 + jx), jx * PS))
        a('s_mov_b32 s23, s63')
        if XB_:
            a('s_cmp_lg_u32 s3, 7'); a('s_cbranch_scc1 fz_nb%s' % sfx)
            a('s_lshl_b32 s37, s23, 7'); a('s_add_u32 s37, s37, 0x%x' % DLOFF); a('s_not_b32 s36, s40'); a('v_mov_b32 v10, s36'); a('v_lshlrev_b32 v11, 2, v2')
            a('buffer_store_dword v10, v11, s[4:7], s37 offen')
            a.lines.append('fz_nb%s:' % sfx)
        a('s_getreg_b32 s24, hwreg(HW_REG_XCC_ID)'); a('s_and_b32 s24, s24, 15')
        a('v_lshlrev_b32 v10, 4, v0'); a('v_min_u32 v10, 4336, v10'); a('v_add_u32 v10, %d, v10' % ACT)
        for k in range(4): a('v_mov_b32 %s, 0' % v(XAC + k))
        a('ds_write_b128 v10, %s' % v(XAC, 4))
    def SET2():
        XP = 116
        a('ds_read_b128 %s, %s' % (v(XP, 4), v(vXR))); a('ds_read_b128 %s, %s offset:16' % (v(XP + 4, 4), v(vXR)))
        a('ds_read_u16_d16_hi %s, %s' % (v(XD + 16), v(vM0m)))
        for e in range(1, 16): a('ds_read_u16_d16_hi %s, %s offset:%d' % (v(XD + 16 + e), v(vXM), 2 * (15 - e)))
        a('ds_read_u16_d16_hi %s, %s' % (v(XD), v(vE0)))
        a('v_mul_u32_u24 v13, %d, v4' % RS); a('v_subrev_u32 v13, %d, v13' % WR)
        for r, src in ((9, vXR), (10, vE0), (11, vM0m), (12, vXM)): a('v_sub_u32 %s, %s, v13' % (v(r), v(src)))
        a('s_mov_b32 s36, 0xffff0000')
        a('s_waitcnt lgkmcnt(0)')
        a('ds_read_b128 %s, v9' % v(WV, 4)); a('ds_read_b128 %s, v9 offset:16' % v(WV + 4, 4))
        a('ds_read_u16_d16 %s, v11' % v(WV + 8))
        for e in range(1, 16): a('ds_read_u16_d16%s %s, v12 offset:%d' % ('_hi' if e & 1 else '', v((XP + 8 if e & 1 else WV + 8) + (e >> 1)), 2 * (15 - e)))
        a('ds_read_u16_d16 v13, v10')
        for k in range(8):
            if k: a('v_lshlrev_b32 %s, 16, %s' % (v(XD + 2 * k), v(XP + k)))
            a('v_and_b32 %s, s36, %s' % (v(XD + 2 * k + 1), v(XP + k)))
        a('v_cmp_eq_u32 vcc, 1, v4'); a('v_mov_b32 v9, s42'); a('v_cndmask_b32 v9, 0, v9, vcc')
        for k in range(4): a('v_mov_b32 %s, s42' % v(XP + k))
        a('v_cmp_eq_u32 vcc, 0, v4')
        a('s_waitcnt lgkmcnt(0)')
        a('v_and_or_b32 %s, %s, s36, v13' % (v(WV), v(WV)))
        for k in range(8): a('v_or_b32 %s, %s, %s' % (v(WV + 8 + k), v(WV + 8 + k), v(XP + 8 + k)))
        for k in range(16): a('v_cndmask_b32 %s, v9, %s, vcc' % (v(WV + k), v(WV + k)))
        for q in range(4): a('v_mfma_f32_16x16x32_bf16 %s, %s, %s, %s' % (v(XP + 4, 4), v(WV + 4 * q, 4), v(XP, 4), v(XP + 4, 4) if q else '0'))
        a('ds_write_b32 %s, %s offset:12' % (v(vPW), v(XP + 4)))
    a('v_mov_b32 v15, %d' % SYNC); a('v_mov_b32 v10, 0'); a('ds_write_b32 v15, v10')
    est(8)
    a('s_waitcnt lgkmcnt(0)')
    a('s_barrier')
    est(10)
    a('v_lshlrev_b32 %s, 31, v1' % v(vSG)); a('v_lshrrev_b32 v10, 16, %s' % v(vSG)); a('v_or_b32 %s, %s, v10' % (v(vSG), v(vSG)))
    a('v_mov_b32 %s, 0xfffcfffc' % v(vM))
    a('v_mov_b32 v242, 0xffff0000'); a('s_mov_b32 s42, 0x3f803f80')
    a('s_cmp_lg_u32 s57, 0'); a('s_cbranch_scc1 fz_nc1')
    for q in range(14): a('ds_read_b128 %s, v6 offset:%d' % (v(F1 + 4 * q, 4), 1024 * q))
    a('v_lshlrev_b32 v7, 9, v3'); a('v_bfe_u32 v10, v1, 2, 2'); a('v_lshl_add_u32 v7, v10, 6, v7')
    a('v_and_b32 v10, 1, v5'); a('v_lshl_add_u32 v7, v10, 5, v7'); a('v_and_b32 v10, 3, v1'); a('v_lshl_add_u32 v7, v10, 3, v7'); a('v_add_u32 v7, s31, v7')
    a('v_lshlrev_b32 v8, 9, v3'); a('v_lshl_add_u32 v8, v2, 1, v8'); a('v_sub_u32 v9, 2048, v8'); a('v_and_b32 v9, 2047, v9'); a('v_add_u32 v9, s30, v9')
    a('s_add_u32 s32, s30, %d' % (2048 - 64 * 23)); a('v_sub_u32 v8, s32, v8')
    a('v_cmp_eq_u32 vcc, 0, v2'); a('v_cndmask_b32 %s, 0, -2.0, vcc' % v(vM0))
    a('v_mov_b32 %s, %s' % (v(vM0 + 1), fh(256e-5)))
    a('s_lshr_b32 s32, s24, 1'); a('s_lshl_b32 s32, s32, 6'); a('s_mul_i32 s33, s3, 2304'); a('s_add_u32 s32, s32, s33'); a('s_add_u32 s32, s32, %d' % SB)
    a('v_lshl_add_u32 v10, v3, 1, v1'); a('v_lshlrev_b32 v10, 4, v10'); a('v_add_u32 %s, s32, v10' % v(vSW))
    a('v_bfe_u32 v10, v0, 2, 1'); a('v_mul_u32_u24 v10, 34, v10'); a('v_lshrrev_b32 v11, 4, v0'); a('v_add_u32 v10, v10, v11'); a('v_lshlrev_b32 v10, 4, v10')
    a('v_bfe_u32 v11, v0, 3, 1'); a('v_lshl_add_u32 v10, v11, 3, v10'); a('v_bfe_u32 v11, v0, 1, 1'); a('v_lshl_add_u32 v10, v11, 2, v10')
    a('v_and_b32 v12, 1, v0')
    a('s_mov_b32 s33, %d' % (4 * 2304)); a('s_cmp_eq_u32 s2, %d' % SPID)
    for k in range(4):
        pm = 1152 if k >= 2 else 0
        o0 = k * 2304 + pm + (64 if k >= 2 else 0); o1 = (3 - k) * 2304 + pm + (64 if (3 - k) >= 2 else 0)
        a('s_cselect_b32 s32, s33, 0x%x' % ((o1 - o0) & 0xffffffff))
        a('v_mul_lo_u32 v11, v12, s32'); a('v_add_u32 %s, v10, v11' % v(vSR + k)); a('v_add_u32 %s, %d, %s' % (v(vSR + k), SB + o0, v(vSR + k)))
    if WLIN: a('v_lshlrev_b32 %s, 4, v0' % v(vWST))
    else: a('v_lshrrev_b32 v10, 2, v0'); a('v_and_b32 v11, 3, v0'); a('v_lshlrev_b32 v11, 4, v11'); a('v_lshl_add_u32 %s, v10, 7, v11' % v(vWST))
    a('s_mul_i32 s52, s20, %d' % PS); a('s_lshl_b32 s33, s59, %d' % (13 if WLIN else 6)); a('s_add_u32 s52, s52, s33'); a('s_add_u32 s52, s52, 0x%x' % WOFF)
    a('s_add_u32 s53, s52, %d' % (4096 if WLIN else 8192))
    def tags2():
        tags()
        a('s_mov_b32 s38, 0x404'); a('s_cmp_eq_u32 s2, %d' % SPID); a('s_cselect_b32 s39, 8, 4'); a('s_cselect_b32 s38, 8, s38')
    est(9)
    for i in range(4): a('v_mov_b32 %s, 0' % v(ST + i))
    a('s_setprio 3')
    st()
    if '--early' in OPT: a('s_waitcnt lgkmcnt(0)'); est(11)
    a('s_waitcnt vmcnt(0) lgkmcnt(0)')
    st()
    for jx in range(2):
        for hh in range(2): a('ds_read_b64_tr_b16 %s, v7 offset:%d' % (v(XA + 4 * jx + 2 * hh, 2), 1024 * jx + 256 * hh))
    for jx in range(2):
        for i in range(8):
            op = 'ds_read_u16_d16_hi' if i & 1 else 'ds_read_u16_d16'
            dst = (H if i & 1 else XB) + 4 * jx + (i >> 1)
            if jx == 0 and i == 0: a('%s %s, v9' % (op, v(dst)))
            else: a('%s %s, v8 offset:%d' % (op, v(dst), 64 * (23 - 16 * jx - i)))
        if jx == 0: a('s_waitcnt lgkmcnt(8)')
        if jx == 0:
            for j2 in range(2): a('v_mfma_f32_32x32x16_bf16 %s, %s, %s, %s' % (v(XAC, 16), v(XA + 4 * j2, 4), v(F1 + 4 * j2, 4), v(XAC, 16) if j2 else '0'))
    for i in range(8):
        a('v_dot2_f32_bf16 %s, %s, s42, %s' % (v(ST), v(XA + i), v(ST))); a('v_dot2_f32_bf16 %s, %s, %s, %s' % (v(ST + 1), v(XA + i), v(XA + i), v(ST + 1)))
    a('s_waitcnt lgkmcnt(0)')
    for i in range(8): a('v_or_b32 %s, %s, %s' % (v(XB + i), v(XB + i), v(H + i)))
    for j2 in range(2): a('v_mfma_f32_32x32x16_bf16 %s, %s, %s, %s' % (v(XBC, 16), v(XB + 4 * j2, 4), v(F1 + 4 * j2, 4), v(XBC, 16) if j2 else '0'))
    for i in range(8):
        a('v_dot2_f32_bf16 %s, %s, s42, %s' % (v(ST + 2), v(XB + i), v(ST + 2))); a('v_dot2_f32_bf16 %s, %s, %s, %s' % (v(ST + 3), v(XB + i), v(XB + i), v(ST + 3)))
    est(12)
    a('v_permlane32_swap_b32 %s, %s' % (v(ST), v(ST + 2))); a('v_permlane32_swap_b32 %s, %s' % (v(ST + 1), v(ST + 3)))
    a('v_add_f32 %s, %s, %s' % (v(ST), v(ST), v(ST + 2))); a('v_add_f32 %s, %s, %s' % (v(ST + 1), v(ST + 1), v(ST + 3)))
    a('v_permlane16_swap_b32 %s, %s' % (v(ST), v(ST + 1)))
    a('v_add_f32 %s, %s, %s' % (v(ST), v(ST), v(ST + 1)))
    for pat in ['quad_perm:[1,0,3,2]', 'quad_perm:[2,3,0,1]', 'row_half_mirror', 'row_mirror']:
        a('v_add_f32_dpp %s, %s, %s %s %s' % (v(ST), v(ST), v(ST), pat, DPPF))
    a('s_mov_b32 s43, %s' % fh(256 / 1024))
    a('v_mov_b32 %s, %s' % (v(ST + 1), v(ST)))
    a('v_permlane16_swap_b32 %s, %s' % (v(ST), v(ST + 1)))
    a('v_mul_f32 %s, %s, %s' % (v(ST), fh(16 / 1024), v(ST)))
    a('v_fma_f32 %s, %s, s43, %s' % (v(ST + 1), v(ST + 1), v(vM0 + 1)))
    a('v_fma_f32 %s, -%s, %s, %s' % (v(ST + 1), v(ST), v(ST), v(ST + 1)))
    a('v_rsq_f32 %s, %s' % (v(ST + 1), v(ST + 1)))
    a('v_mul_f32 %s, %s, %s' % (v(ST), v(ST), v(ST + 1)))
    a('v_readlane_b32 s32, %s, 0' % v(ST + 1)); a('v_readlane_b32 s34, %s, 32' % v(ST + 1)); a('v_readlane_b32 s36, %s, 0' % v(ST)); a('v_readlane_b32 s37, %s, 32' % v(ST))
    a('v_mul_f32 %s, s36, %s' % (v(ST + 4), v(vM0))); a('v_fmac_f32 %s, s37, %s' % (v(ST + 4), v(vM0)))
    for i in range(8): a('v_pk_fma_f32 %s, %s, s[32:33], %s op_sel_hi:[1,0,0]' % (v(XAC + 2 * i, 2), v(XAC + 2 * i, 2), v(ST + 4, 2)))
    for i in range(8): a('v_pk_fma_f32 %s, %s, s[34:35], %s op_sel_hi:[1,0,1]' % (v(XAC + 2 * i, 2), v(XBC + 2 * i, 2), v(XAC + 2 * i, 2)))
    est(13)
    pack(H, XAC, 16)
    for i in range(8): a('v_mov_b32_dpp %s, %s %s' % (v(TP + i), v(H + i), X1))
    D3C, D3S = XBC, XBC + 4
    for i in range(8): a('v_pk_mul_f16 %s, %s, %s' % (v(T + i), v(H + i), v(TC + i)))
    for j2 in range(2):
        a('v_mfma_f32_16x16x32_f16 %s, %s, %s, %s' % (v(D3C, 4), v(H + 4 * j2, 4), v(B3C + 4 * j2, 4), v(D3C, 4) if j2 else '0'))
        for i in range(4): a('v_pk_fma_f16 %s, %s, %s, %s' % (v(T + 4 * j2 + i), v(TP + 4 * j2 + i), v(TS + 4 * j2 + i), v(T + 4 * j2 + i)))
    a('v_mfma_f32_32x32x16_f16 %s, %s, %s, 0' % (v(XAC, 16), v(T, 4), v(C2, 4)))
    for i in range(4): a('v_xor_b32_dpp %s, %s, %s %s' % (v(TP + i), v(T + i), v(vSG), X1))
    a('v_mfma_f32_32x32x16_f16 %s, %s, %s, %s' % (v(XAC, 16), v(T + 4, 4), v(C2 + 4, 4), v(XAC, 16)))
    for i in range(4, 8): a('v_xor_b32_dpp %s, %s, %s %s' % (v(TP + i), v(T + i), v(vSG), X1))
    for j2 in range(2): a('v_mfma_f32_32x32x16_f16 %s, %s, %s, %s' % (v(XAC, 16), v(TP + 4 * j2, 4), v(S2 + 4 * j2, 4), v(XAC, 16)))
    for j2 in range(2): a('v_mfma_f32_16x16x32_f16 %s, %s, %s, %s' % (v(D3S, 4), v(H + 4 * j2, 4), v(B3S + 4 * j2, 4), v(D3S, 4) if j2 else '0'))
    est(14)
    tags2()
    a('s_mov_b64 vcc, 0xffff')
    for p in (7, 6, 5, 4, 3, 2, 1): a('v_cvt_pk_f16_f32 %s, %s, %s' % (v(H + p), v(XAC + 2 * p), v(XAC + 2 * p + 1)))
    a('v_cndmask_b32 %s, %s, %s, vcc' % (v(XAC), v(XAC), v(D3C + 1))); a('v_cndmask_b32 %s, %s, %s, vcc' % (v(XAC + 1), v(XAC + 1), v(D3S + 1)))
    for p in (3, 2, 1, 0):
        if p == 0: a('v_cvt_pk_f16_f32 %s, %s, %s' % (v(H), v(XAC), v(XAC + 1)))
        a('v_pk_add_f16 %s, %s, %s op_sel:[0,1] op_sel_hi:[1,0] neg_lo:[0,1]' % (v(T + p), v(H + 2 * p), v(H + 2 * p + 1)))
        a('v_pk_add_f16 %s, %s, %s op_sel:[0,1] op_sel_hi:[1,0] neg_hi:[1,0]' % (v(T + 4 + p), v(H + 2 * p), v(H + 2 * p + 1)))
    a('ds_write_b128 %s, %s' % (v(vSW), v(T, 4))); a('ds_write_b128 %s, %s offset:1152' % (v(vSW), v(T + 4, 4)))
    a('s_waitcnt lgkmcnt(0)')
    sync_add(1)
    a('s_cmp_gt_u32 s3, 3'); a('s_cbranch_scc1 fz_bsp0')
    a.lines.append('fz_sy:')
    a('ds_read_b32 v10, v15')
    a('s_waitcnt lgkmcnt(0)')
    a('v_and_b32 v10, 0xff, v10'); a('v_cmp_ne_u32 vcc, s39, v10')
    a('s_cbranch_vccnz fz_sy')
    st.n = 4; st()
    Z = XAC
    for rd in range(2):
        for k in range(4): a('ds_read_b32 %s, %s offset:%d' % (v(Z + 4 * rd + k), v(vSR + k), 256 * rd))
    for rd in range(2):
        z = Z + 4 * rd; u = Z + 8 + 8 * rd; o = u + 4
        a('s_waitcnt lgkmcnt(%d)' % (4 - 4 * rd))
        a('v_pk_add_f16 %s, %s, %s' % (v(u), v(z), v(z + 2))); a('v_pk_add_f16 %s, %s, %s' % (v(u + 2), v(z + 1), v(z + 3)))
        a('v_pk_add_f16 %s, %s, %s neg_lo:[0,1] neg_hi:[0,1]' % (v(u + 1), v(z), v(z + 2))); a('v_pk_add_f16 %s, %s, %s neg_lo:[0,1] neg_hi:[0,1]' % (v(u + 3), v(z + 1), v(z + 3)))
        a('v_pk_add_f16 %s, %s, %s' % (v(o), v(u), v(u + 2))); a('v_pk_add_f16 %s, %s, %s neg_lo:[0,1] neg_hi:[0,1]' % (v(o + 2), v(u), v(u + 2)))
        a('v_pk_add_f16 %s, %s, %s op_sel:[0,1] op_sel_hi:[1,0] neg_hi:[0,1]' % (v(o + 1), v(u + 1), v(u + 3)))
        a('v_pk_add_f16 %s, %s, %s op_sel:[0,1] op_sel_hi:[1,0] neg_lo:[0,1]' % (v(o + 3), v(u + 1), v(u + 3)))
        for k in range(4): a('v_add_u32 %s, 0x20002, %s' % (v(o + k), v(o + k)))
        for k in range(4): a('v_and_or_b32 %s, %s, %s, %s' % (v(o + k), v(o + k), v(vM), s(44 + k)))
        a('buffer_store_dwordx4 %s, %s, s[4:7], %s offen sc1' % (v(o, 4), v(vWST), s(52 + rd)))
    a('s_cmp_lg_u32 s59, 0'); a('s_cbranch_scc1 ffn')
    st()
    SETA()
    a('s_waitcnt vmcnt(0)')
    st()
    R = XAC
    def h1i(u): a('buffer_load_dwordx4 %s, %s, s[4:7], %s offen sc1' % (v(R + 4 * u, 4), v(vHL), s((60, 61, 16, 17)[u])))
    def h1c(u):
        for k in range(4): a('v_xor_b32 %s, %s, %s' % (v(R + 4 * u + k), v(vE + k), v(R + 4 * u + k)))
        a('v_or3_b32 v10, %s, %s, %s' % (v(R + 4 * u), v(R + 4 * u + 1), v(R + 4 * u + 2)))
        a('v_bitop3_b32 v10, v10, %s, %s bitop3:0xa8' % (v(R + 4 * u + 3), v(vMT)))
        a('v_cmp_ne_u32 vcc, 0, v10')
    def h1a(u):
        for k in range(4): a('ds_write_b32 %s, %s offset:%d' % (v(vA[u]), v(R + 4 * u + k), 2048 * k))
    if EP:
        a('s_bitcmp1_b32 s2, 2'); a('s_cbranch_scc1 fz_p1_ok')
        a('s_add_u32 s32, s60, %d' % ((((EP - 1) + POFS) & 7) * PS + 64 * (EP > 8))); a('v_mov_b32 v9, 0')
        a.lines.append('fz_p1:')
        a('buffer_load_dword v10, v9, s[4:7], s32 offen sc1')
        a('s_waitcnt vmcnt(0)')
        a('v_xor_b32 v10, %s, v10' % v(vE)); a('v_and_b32 v10, %s, v10' % v(vMT)); a('v_cmp_ne_u32 vcc, 0, v10')
        poll_retry('fz_p1')
        a('s_mov_b32 s58, 0')
    for u in range(4): h1i(u)
    prog_poll('fz_h1', 4, h1i, h1c, h1a)
    a('s_waitcnt lgkmcnt(0)')
    a('s_setprio 0')
    a.lines.append('fz_hb:')
    a('s_barrier')
    st.n = 7; st()
    A2, V2, H2, T2, TP2, D2 = 104, 120, 136, 144, 152, 104
    for cp in range(2):
        for hf in range(2): a('ds_read_b128 %s, %s offset:%d' % (v(A2 + 8 * cp + 4 * hf, 4), v(vAR), CPS * cp + 1024 * hf))
    for q in range(4): a('ds_read_b128 %s, v6 offset:%d' % (v(CQ + 4 * q, 4), 1024 * (14 + q)))
    for q in range(4):
        a('s_waitcnt lgkmcnt(%d)' % (7 - q))
        a('v_mfma_f32_16x16x32_f16 %s, %s, %s, 0' % (v(V2 + 4 * q, 4), v(A2 + 4 * q, 4), v(B1, 4)))
    a('s_waitcnt lgkmcnt(0)')
    for cp in range(2):
        pack(H2 + 4 * cp, V2 + 8 * cp, 8)
    for cp in range(2):
        h, t, tp = H2 + 4 * cp, T2 + 4 * cp, TP2 + 4 * cp
        for i in range(4): a('v_pk_mul_f16 %s, %s, %s' % (v(t + i), v(h + i), v(TC2 + i)))
        for i in range(4): a('v_mov_b32_dpp %s, %s %s' % (v(tp + i), v(h + i), X1))
        for i in range(4): a('v_pk_fma_f16 %s, %s, %s, %s' % (v(t + i), v(tp + i), v(TS2 + i), v(t + i)))
        for tau in range(2): a('v_mfma_f32_16x16x32_f16 %s, %s, %s, 0' % (v(D2 + 8 * cp + 4 * tau, 4), v(t, 4), v(CQ + 8 * tau, 4)))
        for i in range(4): a('v_xor_b32_dpp %s, %s, %s %s' % (v(tp + i), v(t + i), v(vSG), X1))
        for tau in range(2): a('v_mfma_f32_16x16x32_f16 %s, %s, %s, %s' % (v(D2 + 8 * cp + 4 * tau, 4), v(tp, 4), v(CQ + 8 * tau + 4, 4), v(D2 + 8 * cp + 4 * tau, 4)))
    O2 = V2
    for tau in range(2):
        for cp in range(2):
            for b in range(2): a('v_cvt_pk_f16_f32 %s, %s, %s' % (v(O2 + 4 * tau + 2 * b + cp), v(D2 + 8 * cp + 4 * tau + 2 * b), v(D2 + 8 * cp + 4 * tau + 2 * b + 1)))
        for k in range(4): a('v_add_u32 %s, 0x20002, %s' % (v(O2 + 4 * tau + k), v(O2 + 4 * tau + k)))
        for k in range(4): a('v_and_or_b32 %s, %s, %s, %s' % (v(O2 + 4 * tau + k), v(O2 + 4 * tau + k), v(vM), s(44 + k)))
        if YLIN: a('buffer_store_dwordx4 %s, %s, s[4:7], s56 offen offset:%d sc1' % (v(O2 + 4 * tau, 4), v(vL16), 1024 * tau))
        else: a('buffer_store_dwordx4 %s, %s, s[4:7], s56 offen sc1' % (v(O2 + 4 * tau, 4), v(vY0 + tau)))
    st()
    a('s_cmp_lg_u32 s57, 0'); a('s_cbranch_scc1 fz_nc3')
    SETB('a')
    a('s_mov_b32 s58, 0')
    a('s_waitcnt vmcnt(0)')
    st()
    YD, YM, HP, Q1, Q2 = 104, 112, 120, 136, 140
    def h2i(jx): a('buffer_load_dwordx2 %s, %s, s[4:7], %s offen sc1' % (v(YD + 2 * jx, 2), v(vYL), s(52 + jx)))
    def h2load():
        for jx in range(4): h2i(jx)
    h2load()
    SET2()
    a.flush(); a('s_branch fz_h2c')
    a.lines.append('fz_h2:')
    h2load()
    a.lines.append('fz_h2c:')
    a('s_mov_b32 s36, %s' % fh(128.0))
    def h2c(jx):
        for k in range(2): a('v_xor_b32 %s, %s, %s' % (v(YD + 2 * jx + k), v(vYE + k), v(YD + 2 * jx + k)))
        a('v_bitop3_b32 v9, %s, %s, %s bitop3:0xa8' % (v(YD + 2 * jx), v(YD + 2 * jx + 1), v(vMT)))
        a('v_cmp_ne_u32 vcc, 0, v9')
    def mix(e, src): a('v_fma_mix_f32 %s, %s, s36, %s op_sel:[%d,0,0] op_sel_hi:[1,0,0]' % (v(XD + e), v(src), v(XD + e), e & 1))
    def smf(q):
        a('v_mfma_f32_16x16x32_bf16 %s, %s, %s, %s' % (v(Q1, 4), v(HP + 4 * q, 4), v(HP + 4 * q, 4), v(Q1, 4) if q else '0'))
        a('v_mfma_f32_16x16x32_bf16 %s, %s, %s, %s' % (v(Q2, 4), v(WV + 4 * q, 4), v(HP + 4 * q, 4), v(Q2, 4) if q else '0'))
    def h2a(jx):
        if jx == 3: st()
        for k in range(2 * jx, 2 * jx + 2): a('v_mov_b32_dpp %s, %s row_mirror %s' % (v(YM + k), v(YD + k), DPPF))
        a('s_cmp_eq_u32 s2, %d' % SPID); a('s_cbranch_scc1 fz_spec4%d' % jx)
        a.lines.append('fz_spec4back%d:' % jx)
        for e in range(4 * jx, 4 * jx + 4): mix(e, YD + (e >> 1))
        if jx == 0: a('v_and_b32 %s, %s, %s' % (v(YM), v(vZM), v(YM)))
        for e in range(4 * jx, 4 * jx + 4): mix(16 + e, YM + (e >> 1))
        pack(HP + 2 * jx, XD + 4 * jx, 4, 'bf16'); pack(HP + 8 + 2 * jx, XD + 16 + 4 * jx, 4, 'bf16')
        if jx & 1: smf(jx >> 1); smf(2 + (jx >> 1))
    prog_poll('fz_h2', 4, h2i, h2c, h2a)
    a('v_cndmask_b32 v9, %s, %s, s[28:29]' % (v(Q1), v(Q1 + 1))); a('v_cndmask_b32 v10, %s, %s, s[28:29]' % (v(Q1 + 2), v(Q1 + 3)))
    a('ds_write_b64 %s, %s' % (v(vPW), v(Q2, 2)))
    a('v_cndmask_b32 v9, v9, v10, s[30:31]')
    a('ds_write_b32 %s, v9 offset:8' % v(vPD))
    a('s_cmp_gt_u32 s3, 3'); a('s_cbranch_scc1 fz_lp'); a('s_setprio 2')
    a.lines.append('fz_lp:')
    a('s_waitcnt lgkmcnt(0)'); a('s_barrier')
    P = 144
    for q in range(4): a('ds_read_b128 %s, %s offset:%d' % (v(P + 4 * q, 4), v(vPR), 256 * q))
    a('s_waitcnt lgkmcnt(2)')
    for h in range(2): a('v_pk_add_f32 %s, %s, %s' % (v(P + 2 * h, 2), v(P + 2 * h, 2), v(P + 4 + 2 * h, 2)))
    a('s_waitcnt lgkmcnt(0)')
    for h in range(2): a('v_pk_add_f32 %s, %s, %s' % (v(P + 8 + 2 * h, 2), v(P + 8 + 2 * h, 2), v(P + 12 + 2 * h, 2)))
    for h in range(2): a('v_pk_add_f32 %s, %s, %s' % (v(P + 2 * h, 2), v(P + 2 * h, 2), v(P + 8 + 2 * h, 2)))
    for k in range(4): a('v_mov_b32 %s, %s' % (v(P + 4 + k), v(P + k)))
    for k in range(4): a('v_permlane32_swap_b32 %s, %s' % (v(P + k), v(P + 4 + k)))
    for h in range(2): a('v_pk_add_f32 %s, %s, %s' % (v(P + 2 * h, 2), v(P + 2 * h, 2), v(P + 4 + 2 * h, 2)))
    KR = 152
    a('v_mul_f32 %s, %s, %s' % (v(P + 1), fh(-1 / 1024), v(P + 1)))
    a('v_mul_f32 %s, %s, %s' % (v(P + 2), fh(1 / 1024), v(P + 2)))
    a('v_fma_f32 %s, -%s, %s, %s' % (v(P + 2), v(P + 1), v(P + 1), v(P + 2)))
    a('v_cvt_pk_bf16_f32 %s, 0, %s' % (v(KR + 1), v(P + 1)))
    rbf(a, P + 2); a('v_add_f32 %s, %s, %s' % (v(P + 2), fh(1e-5), v(P + 2))); rbf(a, P + 2)
    a('v_sqrt_f32 %s, %s' % (v(P + 2), v(P + 2)))
    a('v_fmac_f32 %s, %s, %s' % (v(P), v(KR + 1), v(P + 3)))
    rbf(a, P + 2); a('v_rcp_f32 %s, %s' % (v(KR + 2), v(P + 2)))
    a('v_mov_b32 %s, s40' % v(KR + 3))
    a('v_mul_f32 %s, %s, %s' % (v(P), v(P), v(KR + 2))); rbf(a, P)
    a('v_ashrrev_i32 %s, 31, %s' % (v(P + 1), v(P))); a('v_or_b32 %s, 0x80000000, %s' % (v(P + 1), v(P + 1)))
    a('v_bitop3_b32 %s, %s, %s, %s bitop3:0x28' % (v(KR), v(P), v(P + 1), v(242)))
    a('v_or_b32 %s, %s, %s' % (v(KR), v(KR), v(vTK)))
    a('v_max_u32_dpp %s, %s, %s row_ror:1 %s' % (v(P), v(KR), v(KR), DPPF))
    for k in (2, 4, 8): a('v_max_u32_dpp %s, %s, %s row_ror:%d %s' % (v(P), v(P), v(P), k, DPPF))
    a('v_cmp_eq_u32 vcc, %s, %s' % (v(P), v(KR)))
    a('v_or_b32 %s, s24, %s' % (v(KR + 1), v(KR + 1)))
    a('s_mov_b64 exec, vcc')
    if DB & 8: a('s_bitcmp1_b32 s3, 1'); a('s_cbranch_scc1 fz_nk1')
    a('buffer_store_dwordx4 %s, %s, s[4:7], s26 offen sc1' % (v(KR, 4), v(vKA)))
    if DB & 8: a.lines.append('fz_nk1:')
    if DB & 2:
        if DB & 4: a('s_cmp_gt_u32 s3, 3'); a('s_cbranch_scc1 fz_nk2')
        a('s_add_u32 s26, s26, %d' % (32 * KS)); a('buffer_store_dwordx4 %s, %s, s[4:7], s26 offen sc1' % (v(KR, 4), v(vKA)))
        if DB & 4: a.lines.append('fz_nk2:')
    for q in range(4): a('buffer_store_dwordx4 %s, %s, s[4:7], s27 offen offset:%d sc1' % (v(HP + 4 * q, 4), v(vCA), 64 * q))
    a('s_mov_b64 exec, -1')
    st()
    a('s_setprio 0')
    a('s_ff1_i32_b64 s37, vcc')
    a('v_add_f32 %s, 1.0, %s' % (v(P), v(KR + 2))); a('v_and_b32 %s, v242, %s' % (v(P + 2), v(KR + 1))); a('v_mul_f32 %s, %s, %s' % (v(P + 2), v(P + 2), v(KR + 2)))
    for k in range(16): a('v_pk_fma_f32 %s, %s, %s, %s op_sel_hi:[1,0,0]' % (v(XD + 2 * k, 2), v(XD + 2 * k, 2), v(P, 2), v(P + 2, 2)))
    OP = 104
    pack(OP, XD, 32, 'bf16')
    a('ds_write_b128 %s, %s' % (v(vXR), v(OP, 4))); a('ds_write_b128 %s, %s offset:16' % (v(vXR), v(OP + 4, 4)))
    a('s_waitcnt lgkmcnt(0)'); a('s_barrier')
    def wtail():
        if W3 < 8 or WL:
            a('s_cmp_lt_u32 s3, 4'); a('s_cbranch_scc1 fz_now4')
            if WL: a('s_bitcmp0_b32 s2, 2'); a('s_cbranch_scc1 fz_now4')
            wdload(8 - WL if WL else W3, 8)
            a.lines.append('fz_now4:')
    if WT == 1: wtail()
    a('ds_write_b16 %s, %s' % (v(vE0), v(OP))); a('ds_write_b16 %s, %s' % (v(vM0m), v(OP + 8)))
    for e in range(1, 16): a('ds_write_b16%s %s, %s offset:%d' % ('_d16_hi' if e & 1 else '', v(vXM), v(OP + 8 + (e >> 1)), 2 * (15 - e)))
    a('s_lshl_b32 s32, s3, 1'); a('s_add_u32 s33, s32, 1')
    a('v_readlane_b32 s34, %s, s32' % v(vT)); a('v_readlane_b32 s35, %s, s33' % v(vT))
    a('s_mul_i32 s38, s3, %d' % (2 * RS)); a('v_add_u32 v9, s38, %s' % v(vL16))
    a('s_lshl_b32 s34, s34, 11'); a('s_lshl_b32 s35, s35, 11')
    a('s_waitcnt lgkmcnt(0)'); a('s_barrier')
    for q in range(4): a('ds_read_b128 %s, v9 offset:%d' % (v(OP + 4 * q, 4), RS * (q >> 1) + 1024 * (q & 1)))
    if WT == 2: wtail()
    OUTF = '' if '--outplain' in OPT else (' nt' if '--outnt' in OPT else ' sc1 nt' if '--outsn' in OPT else ' sc1')
    a('s_lshr_b32 s59, s37, 1'); a('s_xor_b32 s18, s59, 1'); a('s_and_b32 s18, s18, 3')
    if '--wdearly' not in OPT:
        if OLATE:
            a('s_cmp_eq_u32 s59, s3'); a('s_cselect_b32 s38, 112, s23'); a('s_cmp_lt_u32 s38, 112'); a('s_cbranch_scc1 fz_sk1')
        else:
            a('s_cmp_lt_u32 s23, 112'); a('s_cselect_b32 s38, s18, 8'); a('s_cmp_eq_u32 s38, s3'); a('s_cbranch_scc1 fz_sk1')
    if CL: a('s_cmp_eq_u32 s59, s3'); a('s_cbranch_scc1 fz_sk1')
    a('s_waitcnt lgkmcnt(0)')
    for r in range(2):
        a('s_cmp_eq_u32 s37, %s' % s(32 + r)); a('s_cbranch_scc1 fz_sk%d' % r)
        for q in range(0 if '--xnoout' in OPT else 2): a('buffer_store_dwordx4 %s, %s, s[12:15], %s offen offset:%d%s' % (v(OP + 8 * r + 4 * q, 4), v(vL16), s(34 + r), 1024 * q, OUTF))
        a.lines.append('fz_sk%d:' % r)
    a('v_and_b32 v15, 7, v4'); a('v_mul_u32_u24 v15, 544, v15'); a('v_lshl_add_u32 v15, v5, 4, v15'); a('v_add_u32 v15, %d, v15' % ACT)
    if TWO:
        a('s_and_b32 s60, s2, 7'); a('s_lshr_b32 s61, s2, 3')
        a('s_cmp_lt_u32 s3, 4'); a('s_cselect_b32 s63, 8, s60'); a('s_lshl_b32 s63, s63, 2'); a('s_and_b32 s38, s3, 3'); a('s_add_u32 s63, s63, s38')
        a('s_lshl_b32 s63, s63, 6'); a('s_add_u32 s63, s63, s61'); a('s_lshl_b32 s63, s63, 8'); a('s_add_u32 s63, s63, 0x%x' % POFF)
        a('v_lshlrev_b32 v13, 4, v4'); a('v_lshl_add_u32 v102, v5, 12, v13'); a('v_add_u32 v103, 8192, v102'); a('v_mov_b32 v101, %d' % (ACT + 4352))
    elif PIN:
        a('s_lshl_b32 s63, s23, 5'); a('s_and_b32 s38, s3, 3'); a('s_mul_i32 s38, s38, %d' % (32 * PIS)); a('s_add_u32 s63, s63, s38'); a('s_add_u32 s63, s63, 0x%x' % POFF)
        a('v_lshrrev_b32 v13, 1, v1'); a('v_mul_u32_u24 v13, %d, v13' % PIS); a('v_and_b32 v14, 1, v1'); a('v_lshl_add_u32 v102, v14, 4, v13'); a('v_add_u32 v103, %d, v102' % (16 * PIS))
    else:
        a('s_mul_i32 s63, s23, %d' % PPS); a('s_and_b32 s38, s3, 3'); a('s_lshl_b32 s38, s38, 10'); a('s_add_u32 s63, s63, s38'); a('s_add_u32 s63, s63, 0x%x' % POFF)
    if not TWO: a('s_lshl_b32 s38, s20, %d' % (5 if PIN else 10)); a('s_add_u32 s38, s38, 0x%x' % DOFF); a('s_cmp_lt_u32 s3, 4'); a('s_cselect_b32 s63, s38, s63')
    a('v_mov_b32 v14, 0xffffff00')
    a('s_cmp_eq_u32 s18, s3'); a('s_cbranch_scc1 fz_act')
    a('s_cmp_lg_u32 s59, s3'); a('s_cbranch_scc1 fz_f2')
    st()
    a('s_and_b32 s38, s20, %d' % (7 if DB & 8 else 15)); a('s_add_u32 s38, s38, 16'); a('s_mul_i32 s38, s38, %d' % KS); a('s_add_u32 s38, s38, 0x%x' % KOFF)
    if TWO:
        a('s_lshr_b32 s52, s61, 1'); a('s_lshl_b32 s52, s52, 3'); a('s_add_u32 s52, s52, s60'); a('s_lshl_b32 s52, s52, 2'); a('s_and_b32 s53, s61, 1'); a('s_add_u32 s52, s52, s53'); a('s_lshl_b32 s52, s52, 2')
        a('v_bfe_u32 v2, v1, 2, 1'); a('v_and_b32 v3, 3, v1'); a('v_lshl_add_u32 v2, v2, 3, v3'); a('v_add_u32 v2, s52, v2')
    else:
        a('s_lshr_b32 s52, s20, 4'); a('s_lshl_b32 s52, s52, 7'); a('s_and_b32 s53, s20, 7'); a('s_lshl_b32 s53, s53, 4'); a('s_add_u32 s52, s52, s53')
        a('s_bfe_u32 s53, s20, 0x10003'); a('s_lshl_b32 s53, s53, 2'); a('s_add_u32 s52, s52, s53')
        a('v_and_b32 v2, 1, v1'); a('v_lshl_add_u32 v2, v2, 3, v5'); a('v_add_u32 v2, s52, v2')
    a('v_and_b32 v3, 31, v2'); a('v_lshrrev_b32 v6, 5, v2')
    a('v_cmp_gt_u32 vcc, 16, v6')
    a('v_cmp_lt_u32 s[52:53], 16, v3'); a('v_cmp_eq_u32 s[54:55], 0, v3'); a('s_and_b64 s[54:55], s[54:55], vcc'); a('s_or_b64 s[52:53], s[52:53], s[54:55]')
    a('v_cmp_eq_u32 s[54:55], 16, v3'); a('s_andn2_b64 s[54:55], s[54:55], vcc'); a('s_or_b64 s[52:53], s[52:53], s[54:55]')
    a('v_sub_u32 v7, 1024, v2'); a('v_cndmask_b32 v7, v2, v7, s[52:53]')
    a('v_mov_b32 v8, 512'); a('v_cmp_eq_u32 vcc, 1024, v7'); a('v_cndmask_b32 v7, v7, v8, vcc')
    a('v_lshrrev_b32 v8, 5, v7'); a('v_and_b32 v7, 15, v7')
    a('v_lshrrev_b32 v9, 2, v8'); a('v_lshlrev_b32 v9, 8, v9'); a('v_and_b32 v8, 3, v8'); a('v_lshl_add_u32 v9, v8, 4, v9')
    a('v_lshrrev_b32 v8, 3, v7'); a('v_lshl_add_u32 v9, v8, 6, v9'); a('v_and_b32 v7, 7, v7'); a('v_lshl_add_u32 v9, v7, 1, v9')
    a('v_cndmask_b32 v7, 0, 1, s[52:53]'); a('v_lshl_add_u32 v9, v7, 7, v9')
    a('v_lshlrev_b32 v2, 1, v2')
    if TWO:
        a('s_lshl_b32 s52, s60, 4'); a('s_add_u32 s52, s52, s61'); a('s_lshl_b32 s52, s52, 12'); a('s_add_u32 s52, s52, 0x%x' % POFF)
        a('s_add_u32 s53, s2, 4'); a('s_and_b32 s53, s53, 7'); a('s_cmp_lt_u32 s53, 6'); a('s_cselect_b32 s53, s52, 0x7fff0000')
        for k in range(4): a('s_cselect_b32 %s, %s, 0' % (s(8 + k), s(48 + k)))
        a('s_lshl_b32 s54, s61, 11'); a('s_add_u32 s54, s54, 0x%x' % FIOFF); a('s_lshl_b32 s55, s60, 8'); a('s_add_u32 s55, s55, s54'); a('s_lshl_b32 s62, s60, 5'); a('s_add_u32 s54, s54, s62')
        a('v_lshrrev_b32 v3, 1, v4'); a('v_lshlrev_b32 v3, 8, v3'); a('v_and_b32 v6, 1, v4'); a('v_lshl_add_u32 v3, v6, 4, v3')
        a('v_lshlrev_b32 v6, 2, v1'); a('v_and_b32 v7, 3, v1'); a('v_mov_b32 v16, s48')
        for k in range(1, 4): a('v_cmp_eq_u32 vcc, %d, v7' % k); a('v_mov_b32 v8, %s' % s(48 + k)); a('v_cndmask_b32 v16, v16, v8, vcc')
    else:
        a('v_lshrrev_b32 v3, 1, v1'); a('v_mul_u32_u24 v3, %d, v3' % (32 if PIN else PPS)); a('v_and_b32 v6, 1, v1'); a('v_lshl_add_u32 v3, v6, 4, v3')
        a('v_mov_b32 v6, 0x7fffffff'); a('v_cmp_gt_u32 vcc, 32, v1'); a('v_cndmask_b32 v6, v6, v3, vcc')
        for k in range(4): a('v_mov_b32 v7, %s' % s(48 + k)); a('v_cndmask_b32 %s, 0, v7, vcc' % v(16 + k))
        a('s_mul_i32 s52, s20, %d' % (PIS if PIN else 32)); a('s_add_u32 s52, s52, 0x%x' % POFF)
        for u in range(1, 4): a('s_add_u32 %s, s52, %d' % (s(52 + u), 32 * u * (32 if PIN else PPS)))
    K = 24
    a('v_lshlrev_b32 v20, %d, v1' % KRL); a('v_add_u32 v21, %d, v20' % (64 << KRL))
    a('s_mov_b32 s58, 0')
    a.label('fz_k2')
    a('buffer_load_dwordx4 %s, v20, s[4:7], s38 offen sc1' % v(K, 4)); a('buffer_load_dwordx4 %s, v21, s[4:7], s38 offen sc1' % v(K + 4, 4))
    a('s_waitcnt vmcnt(0)')
    keys_argmax(K, None, 'fz_k2')
    if TWO:
        a('v_and_b32 v7, 15, %s' % v(K + 1)); a('v_and_b32 v8, 15, %s' % v(K + 5)); a('v_cmp_eq_u32 vcc, s24, v7'); a('v_cmp_eq_u32 s[56:57], s24, v8')
        a('s_and_b64 vcc, vcc, s[56:57]'); a('s_and_b32 s39, vcc_lo, vcc_hi'); a('s_and_b32 s41, s20, 7'); a('s_lshr_b32 s39, s39, s41'); a('s_and_b32 s39, s39, 0x01010101')
        a('s_cmp_eq_u32 s39, 0x01010101'); a('s_cselect_b32 s39, %d, 0' % (1 if LOCAL else 0)); a('v_mov_b32 v7, s39'); a('ds_write_b32 v101, v7')
    a('v_cmp_eq_u32 vcc, s36, %s' % v(K)); a('v_cmp_eq_u32 s[56:57], s36, %s' % v(K + 4))
    a('v_cndmask_b32 %s, %s, %s, s[56:57]' % (v(K + 1), v(K + 1), v(K + 5))); a('v_cndmask_b32 %s, %s, %s, s[56:57]' % (v(K + 2), v(K + 2), v(K + 6)))
    a('s_cmp_lg_u64 vcc, 0'); a('s_cselect_b32 s39, 0, 64'); a('s_or_b64 vcc, vcc, s[56:57]'); a('s_ff1_i32_b64 s41, vcc')
    a('v_readlane_b32 s42, %s, s41' % v(K + 1)); a('v_readlane_b32 s43, %s, s41' % v(K + 2))
    a('s_add_u32 s39, s39, s41'); a('s_and_b32 s42, s42, 0xffff0000')
    if CL: a('s_cmp_eq_u32 s39, s20'); a('s_cselect_b32 s19, s37, 16')
    else:
        a('s_cmp_eq_u32 s39, s20'); a('s_cbranch_scc1 fz_win')
        a('s_bitcmp1_b32 s37, 0'); a('s_cbranch_scc1 fz_d1')
        for q in range(2): a('buffer_store_dwordx4 %s, %s, s[12:15], s34 offen offset:%d%s' % (v(OP + 4 * q, 4), v(vL16), 1024 * q, OUTF))
        a('s_branch fz_win')
        a.lines.append('fz_d1:')
        for q in range(2): a('buffer_store_dwordx4 %s, %s, s[12:15], s35 offen offset:%d%s' % (v(OP + 8 + 4 * q, 4), v(vL16), 1024 * q, OUTF))
        a.lines.append('fz_win:')
    a('s_lshl_b32 s39, s39, 11'); a('s_add_u32 s39, s39, 0x%x' % COFF)
    a('s_mov_b32 s58, 0'); a('s_mov_b32 s41, 0xffff0000')
    a.label('fz_c2')
    a('buffer_load_short_d16_hi v10, v9, s[4:7], s39 offen sc1')
    a('s_waitcnt vmcnt(0)')
    a('v_cmp_eq_u32 vcc, s41, v10')
    poll_retry('fz_c2')
    if CL:
        for r in range(2):
            a('s_cmp_eq_u32 s19, %s' % s(32 + r)); a('s_cbranch_scc1 fz_sc%d' % r)
            for q in range(2): a('buffer_store_dwordx4 %s, %s, s[12:15], %s offen offset:%d%s' % (v(OP + 8 * r + 4 * q, 4), v(vL16), s(34 + r), 1024 * q, OUTF))
            a.lines.append('fz_sc%d:' % r)
    a('v_add_f32 v11, s42, v10'); rbf(a, 11); a('v_mul_f32 v11, s43, v11'); rbf(a, 11)
    a('s_ashr_i32 s39, s36, 31'); a('s_not_b32 s39, s39'); a('s_or_b32 s39, s39, 0x80000000'); a('s_xor_b32 s39, s36, s39'); a('s_and_b32 s39, s39, 0xffff0000')
    a('v_mov_b32 v12, s39'); a('v_mul_f32 v12, %s, v12' % fh(-1.4426950408889634))
    a('v_exp_f32 v12, v12'); a('v_add_f32 v12, 1.0, v12'); a('v_rcp_f32 v12, v12'); rbf(a, 12)
    a('s_and_b32 s39, s36, 0xffff'); a('s_sub_u32 s39, 2047, s39'); a('s_lshl_b32 s39, s39, 11')
    PQ = 40
    a('v_mov_b32 v13, 0xff')
    a('s_waitcnt lgkmcnt(0)')
    a.lines.append('fz_f2:')
    st.n = 13; st()
    a('s_cmp_gt_u32 s23, 111'); a('s_cbranch_scc1 fz_nof2')
    a('s_barrier')
    a('s_cmp_eq_u32 s59, s3'); a('s_cselect_b32 s19, 4, s3'); a('s_cmp_lt_u32 s19, 4'); a('s_cbranch_scc1 fz_f2d')
    BH, ACC = 120, 152
    if TWO: a('ds_read_b32 v100, v101')
    for q in range(8): a('ds_read_b128 %s, v15 offset:%d' % (v(BH + 4 * q, 4), 64 * q))
    if W3 < 8 or WL: a('s_waitcnt vmcnt(2)')
    for q in range(8):
        a('s_waitcnt lgkmcnt(%d)' % (7 - q))
        for h in range(2): a('v_mfma_f32_16x16x32_bf16 %s, %s, %s, %s' % (v(ACC + 4 * h, 4), v(BH + 4 * q, 4), v(WQ[2 * q + h], 4), v(ACC + 4 * h, 4) if q else '0'))
    if TWO: a('v_readfirstlane_b32 s19, v100')
    a('s_mov_b32 exec_hi, 0')
    if TWO:
        for k in range(8): a('v_and_or_b32 %s, %s, v14, %s' % (v(ACC + k), v(ACC + k), s(48 + (k & 3))))
        a('s_cmp_eq_u32 s19, 0'); a('s_cbranch_scc1 fz_prem')
        for h in range(2): a('buffer_store_dwordx4 %s, %s, s[4:7], s63 offen' % (v(ACC + 4 * h, 4), v(102 + h)))
    else:
        for h in range(2):
            for k in range(4): a('v_and_or_b32 %s, %s, v14, %s' % (v(ACC + 4 * h + k), v(ACC + 4 * h + k), s(48 + k)))
            if PIN: a('buffer_store_dwordx4 %s, %s, s[4:7], s63 offen sc1' % (v(ACC + 4 * h, 4), v(102 + h)))
            else: a('buffer_store_dwordx4 %s, %s, s[4:7], s63 offen offset:%d sc1' % (v(ACC + 4 * h, 4), v(vL16), 512 * h))
    a.lines.append('fz_f2d:')
    a('s_mov_b32 exec_hi, -1')
    if OLATE: a('s_cmp_lg_u32 s59, s3'); a('s_cbranch_scc1 fz_late')
    else: a('s_cmp_eq_u32 s18, s3'); a('s_cbranch_scc1 fz_late')
    a('s_cmp_lg_u32 s59, s3'); a('s_cbranch_scc1 fz_xend')
    a('v_mov_b32 v7, 0')
    a('s_waitcnt vmcnt(0)')
    a('s_branch fz_p5_ok')
    a.label('fz_nof2')
    a('s_cmp_lg_u32 s59, s3'); a('s_cbranch_scc1 fz_xend')
    a('s_mov_b32 s58, 0'); a('s_and_b32 s41, s20, %d' % (7 if TWO else 63)); a('s_mul_i32 s41, s41, %d' % (256 if TWO else 32 if PIN else PPS)); a('s_add_u32 s41, s41, s52'); a('v_mov_b32 v7, 0')
    a.label('fz_p5')
    a('buffer_load_dword v8, v7, s[4:7], s41 offen sc1')
    a('s_waitcnt vmcnt(0)')
    a('v_and_b32 v8, 0xff, v8'); a('v_cmp_ne_u32 vcc, s48, v8')
    poll_retry('fz_p5')
    a('s_mov_b32 s58, 0')
    st()
    def h5i(u):
        if TWO: a('buffer_load_dwordx4 %s, %s, s[4:7], %s offen offset:%d sc1' % (v(PQ + 4 * u, 4), v(vL16), s(52 + (u >> 1)), 1024 * u))
        else: a('buffer_load_dwordx4 %s, %s, s[4:7], %s offen sc1' % (v(PQ + 4 * u, 4), 'v6' if u == 3 else 'v3', s(52 + u)))
    def h5c(u):
        for k in range(4): a('v_xor_b32 %s, %s, %s' % (v(PQ + 4 * u + k), (s(8 + k) if u >= 2 else s(48 + k)) if TWO else v(16 + k) if u == 3 else s(48 + k), v(PQ + 4 * u + k)))
        a('v_or3_b32 v8, %s, %s, %s' % (v(PQ + 4 * u), v(PQ + 4 * u + 1), v(PQ + 4 * u + 2)))
        a('v_bitop3_b32 v8, v8, %s, v13 bitop3:0xa8' % v(PQ + 4 * u + 3))
        a('v_cmp_ne_u32 vcc, 0, v8')
    def h5a(u):
        if u:
            for h in range(2): a('v_pk_add_f32 %s, %s, %s' % (v(PQ + 2 * h, 2), v(PQ + 2 * h, 2), v(PQ + 4 * u + 2 * h, 2)))
    for u in range(4): h5i(u)
    prog_poll('fz_h5', 4, h5i, h5c, h5a)
    if TWO:
        for sw in ('32', '16'):
            for k in range(4): a('v_mov_b32 %s, %s' % (v(PQ + 4 + k), v(PQ + k)))
            for k in range(4): a('v_permlane%s_swap_b32 %s, %s' % (sw, v(PQ + k), v(PQ + 4 + k)))
            for h in range(2): a('v_pk_add_f32 %s, %s, %s' % (v(PQ + 2 * h, 2), v(PQ + 2 * h, 2), v(PQ + 4 + 2 * h, 2)))
        for k in range(4): a('v_and_or_b32 %s, %s, v14, %s' % (v(PQ + k), v(PQ + k), s(48 + k)))
        a('s_mov_b64 exec, 0xffff')
        a('buffer_store_dwordx4 %s, v3, s[4:7], s54 offen sc1' % v(PQ, 4))
        a('s_mov_b64 exec, -1'); a('s_mov_b32 s58, 0')
        a('s_waitcnt vmcnt(0)')
        a.lines.append('fz_h6:')
        a('buffer_load_dword %s, v6, s[4:7], s55 offen sc1' % v(PQ + 8))
        a('s_waitcnt vmcnt(0)')
        a('v_xor_b32 %s, v16, %s' % (v(PQ), v(PQ + 8))); a('v_and_b32 v8, 0xff, %s' % v(PQ)); a('v_cmp_ne_u32 vcc, 0, v8')
        poll_retry('fz_h6')
        a('v_add_f32_dpp %s, %s, %s row_ror:8 %s' % (v(PQ), v(PQ), v(PQ), DPPF))
        for sw in ('32', '16'):
            a('v_mov_b32 %s, %s' % (v(PQ + 1), v(PQ))); a('v_permlane%s_swap_b32 %s, %s' % (sw, v(PQ), v(PQ + 1))); a('v_add_f32 %s, %s, %s' % (v(PQ), v(PQ), v(PQ + 1)))
    else:
        for i in range(2): a('v_permlane32_swap_b32 %s, %s' % (v(PQ + i), v(PQ + 2 + i)))
        a('v_pk_add_f32 %s, %s, %s' % (v(PQ, 2), v(PQ, 2), v(PQ + 2, 2)))
        a('v_permlane16_swap_b32 %s, %s' % (v(PQ), v(PQ + 1)))
        a('v_add_f32 %s, %s, %s' % (v(PQ), v(PQ), v(PQ + 1)))
        a('v_add_f32_dpp %s, %s, %s quad_perm:[2,3,0,1] %s' % (v(PQ), v(PQ), v(PQ), DPPF))
        a('v_add_f32_dpp %s, %s, %s row_ror:4 %s' % (v(PQ), v(PQ), v(PQ), DPPF))
        a('v_add_f32_dpp %s, %s, %s row_ror:8 %s' % (v(PQ), v(PQ), v(PQ), DPPF))
    rbf(a, PQ); a('v_mul_f32 %s, %s, v12' % (v(PQ), v(PQ))); rbf(a, PQ)
    a('v_add_f32 %s, %s, v11' % (v(PQ), v(PQ))); rbf(a, PQ)
    a('v_add_f32 %s, %s, v10' % (v(PQ), v(PQ))); rbf(a, PQ)
    if TWO: a('s_mov_b64 exec, 0xff')
    else: a('s_mov_b32 exec_lo, 0x00030003'); a('s_mov_b32 exec_hi, 0x00030003')
    a('buffer_store_short_d16_hi %s, v2, s[12:15], s39 offen' % v(PQ))
    a('s_cmp_lg_u32 s20, 0'); a('s_cbranch_scc1 fz_xend')
    a('s_mov_b64 exec, 1'); a('v_mov_b32 v8, s40')
    a('buffer_store_dword v8, v7, s[4:7], 0 offen')
    a.lines.append('fz_xend:')
    st.n = 15; st()
    st.dump(n=16, sv=250, wave='s3')
    a.lines.append('fz_end:')
    a('s_endpgm')
    a.lines.append('fz_late:')
    for r in range(2):
        for q in range(2): a('buffer_store_dwordx4 %s, %s, s[12:15], %s offen offset:%d%s' % (v(OP + 8 * r + 4 * q, 4), v(vL16), s(34 + r), 1024 * q, OUTF))
    a('s_branch fz_xend')
    a.lines.append('fz_act:')
    a('s_cmp_gt_u32 s23, 111'); a('s_cbranch_scc1 fz_xend')
    a('v_lshlrev_b32 v2, 2, v1'); a('v_and_b32 v11, 3, v1'); a('v_mov_b32 v3, s48')
    for k in range(1, 4): a('v_cmp_eq_u32 vcc, %d, v11' % k); a('v_mov_b32 v10, %s' % s(48 + k)); a('v_cndmask_b32 v3, v3, v10, vcc')
    a('v_and_b32 v10, 31, v1'); a('v_lshlrev_b32 v6, 4, v10'); a('v_lshrrev_b32 v10, 5, v1'); a('v_mul_u32_u24 v10, %d, v10' % (4 * 546)); a('v_add_u32 v6, v6, v10'); a('v_add_u32 v6, %d, v6' % ACT)
    a('s_lshl_b32 s38, s23, 11'); a('s_add_u32 s38, s38, 0x%x' % XOFF)
    a('s_mov_b32 s58, 0')
    st.n = 12; st()
    if APP:
        a.lines.append('fz_p4:')
        a('buffer_load_dword v8, v2, s[4:7], s38 offen offset:%d sc1' % (256 * (APP - 1)))
        a('s_waitcnt vmcnt(0)')
        a('v_xor_b32 v8, v3, v8'); a('v_and_b32 v8, 0xff, v8'); a('v_cmp_ne_u32 vcc, 0, v8')
        poll_retry('fz_p4')
        a('s_mov_b32 s58, 0')
    if XB_:
        a('s_lshl_b32 s39, s23, 7'); a('s_add_u32 s39, s39, 0x%x' % DLOFF); a('v_and_b32 v7, 28, v2')
        a.lines.append('fz_d4:')
        a('buffer_load_dword v8, v7, s[4:7], s39 offen sc1')
        a('s_add_u32 s58, s58, 1'); a('s_and_b32 s41, s58, 15')
        a('s_waitcnt vmcnt(0)')
        a('v_cmp_ne_u32 vcc, s40, v8')
        a('s_cbranch_scc0 fz_h4'); a('s_cbranch_vccnz fz_d4')
    a.lines.append('fz_h4:')
    for k in range(8): a('buffer_load_dword %s, v2, s[4:7], s38 offen offset:%d sc1' % (v(16 + k), 256 * k))
    for k in range(0, 8, 2):
        a('s_waitcnt vmcnt(%d)' % (6 - k))
        a('v_xor_b32 %s, v3, %s' % (v(16 + k), v(16 + k))); a('v_xor_b32 %s, v3, %s' % (v(17 + k), v(17 + k)))
        a('v_or3_b32 v10, %s, %s, %s' % (v(16 + k), v(17 + k), 'v10' if k else '0'))
        a('v_add_f32 %s, %s, %s' % (v(16 + k), v(16 + k), v(17 + k)))
        if k & 2: a('v_add_f32 %s, %s, %s' % (v(14 + k), v(14 + k), v(16 + k)))
    a('v_and_b32 v10, 0xff, v10'); a('v_add_f32 v8, v16, v20')
    a('v_cmp_ne_u32 vcc, 0, v10')
    if XB_:
        a('s_cmp_gt_u32 s58, 0x%x' % (MAXPOLL * 4)); a('s_cbranch_scc1 fz_h4_ok'); a('s_cbranch_vccnz fz_d4')
        a.lines.append('fz_h4_ok:')
    else: poll_retry('fz_h4')
    rbf(a, 8)
    a('v_mov_b32 v9, v8')
    a('v_permlane32_swap_b32 v8, v9')
    a('v_mul_f32 v10, %s, v8' % fh(-1.4426950408889634))
    a('v_exp_f32 v10, v10')
    a('v_add_f32 v10, 1.0, v10'); a('v_rcp_f32 v10, v10')
    a('v_mul_f32 v8, v8, v10'); rbf(a, 8)
    a('v_mul_f32 v8, v8, v9'); rbf(a, 8)
    for m in range(4): a('ds_write_b16_d16_hi v6, v8 offset:%d' % (546 * m))
    a('s_waitcnt lgkmcnt(0)')
    a('s_branch fz_f2')
    a.lines.append('fz_ldh:')
    a('s_load_dwordx2 s[12:13], s[0:1], 56'); a('s_load_dwordx2 s[16:17], s[0:1], 64')
    srd(12, 0x700000); srd(16, 0x700000)
    a('s_branch fz_ldback')
    a.lines.append('fz_spec:')
    a('s_cmp_gt_u32 s3, 3'); a('s_cbranch_scc1 fz_spec_hi')
    for q, sa, sb in ((0, 0, 16), (2, 15, 17), (3, 18, 19)):
        a('s_cmp_eq_u32 s3, %d' % q); a('s_cselect_b32 s31, %d, s31' % (sa * RS)); a('s_cselect_b32 s30, %d, s30' % (sb * RS))
    a('s_branch fz_specback')
    a.lines.append('fz_spec_hi:')
    xload()
    if LATEX: extras()
    for q, ra, rb, sa, sb in ((0, 256, 1792, 4, 11), (1, 768, 1280, 6, 9), (2, 768, 1280, 20, 21), (3, 256, 1792, 22, 23)):
        a('s_cmp_eq_u32 s24, %d' % q); a('s_cselect_b32 s31, %d, s31' % (sa * RS)); a('s_cselect_b32 s30, %d, s30' % (sb * RS))
        a('s_cselect_b32 s27, %d, s27' % (ra * 2048)); a('s_cselect_b32 s28, %d, s28' % (rb * 2048))
    a('s_mov_b32 s57, 0')
    a('s_branch fz_specback')
    a.lines.append('fz_jb:')
    pack(JT, XAC, 16, 'bf16')
    a('s_branch fz_jend')
    if TWO:
        a.lines.append('fz_prem:')
        for h in range(2): a('buffer_store_dwordx4 %s, %s, s[4:7], s63 offen sc1' % (v(152 + 4 * h, 4), v(102 + h)))
        a('s_branch fz_f2d')
    a.lines.append('fz_bsp0:')
    wdload(0, 8 - WL if (WL and SPID & 4) else W3)
    a('s_branch fz_bsp')
    for jx in range(4):
        a.lines.append('fz_spec4%d:' % jx)
        a('s_mov_b32 s38, 0x80018001'); a('s_mov_b32 s39, 0x80018001')
        for k in range(2 * jx, 2 * jx + 2): a('v_cndmask_b32 %s, %s, %s, s[38:39]' % (v(YM + k), v(YM + k), v(YD + k)))
        a('s_branch fz_spec4back%d' % jx)
    a.label('fz_nc1')
    a('s_setprio 0')
    a('s_cmp_lg_u32 s59, 0'); a('s_cbranch_scc1 ffn_b')
    if WL:
        wdload(WE, 8 - WL)
        a('s_bitcmp1_b32 s2, 2'); a('s_cbranch_scc1 fz_wl1')
        wdload(8 - WL, 8)
        a.lines.append('fz_wl1:')
        latex()
        a('s_waitcnt vmcnt(%d)' % (2 * (8 - WL) + 6))
    else:
        wdload(WE, W2)
        latex()
        a('s_waitcnt vmcnt(%d)' % (2 * W2 + 6))
    tags2()
    a.lines.append('fz_bsp:')
    a('s_setprio 0'); a('s_mov_b32 s57, 1')
    a('s_cmp_gt_u32 s3, 5'); a('s_cbranch_scc1 fz_nocq')
    cq_job()
    a.lines.append('fz_nocq:')
    SETA()
    SETB('b')
    a('s_cmp_eq_u32 s2, %d' % SPID); a('s_cbranch_scc1 fz_sz')
    a('s_waitcnt vmcnt(0)')
    sync_add(0x100)
    a.lines.append('fz_sz:')
    a('ds_read_b32 v10, v15')
    a('s_waitcnt lgkmcnt(0)')
    a('v_cmp_ne_u32 vcc, s38, v10')
    a('s_cbranch_vccnz fz_sz')
    st.n = 5; st()
    SET2()
    wdload(W2, W3)
    st()
    a('s_waitcnt lgkmcnt(0)')
    a('s_branch fz_hb')
    a.label('fz_nc3')
    a('s_mov_b32 s58, 0')
    a('s_waitcnt vmcnt(0)')
    st.n = 9; st()
    if EP2:
        a('s_lshl_b32 s32, s20, 7'); a('s_add_u32 s32, s32, s55'); a('s_add_u32 s32, s32, %d' % (12 * PS + 64)); a('v_mov_b32 v9, 0')
        a.lines.append('fz_p2:')
        a('buffer_load_dword v10, v9, s[4:7], s32 offen sc1')
        a('s_waitcnt vmcnt(0)')
        a('v_xor_b32 v10, %s, v10' % v(vE)); a('v_and_b32 v10, %s, v10' % v(vMT)); a('v_cmp_ne_u32 vcc, 0, v10')
        poll_retry('fz_p2')
        a('s_mov_b32 s58, 0')
    a('s_branch fz_h2')
    for sfx in 'ab':
        a.lines.append('fz_spec3%s:' % sfx)
        a('v_xor_b32 v11, 1, v4'); a('v_cndmask_b32 v9, v9, v11, s[34:35]')
        a('v_and_b32 v11, 1, v4'); a('v_cndmask_b32 v11, 0, v11, s[34:35]'); a('v_sub_u32 v10, v10, v11')
        a('s_cmp_lg_u32 s22, 0'); a('s_cbranch_scc1 fz_spec3back%s' % sfx)
        for i, tt, pp, po in ((15, 1024, 124, 4), (13, 1536, 124, 6), (4, 256, 127, 8), (11, 1792, 127, 14), (6, 768, 127, 10), (9, 1280, 127, 12)):
            a('v_cmp_eq_u32 vcc, %d, v4' % i); a('v_mov_b32 v11, %d' % tt); a('v_mov_b32 v12, %d' % pp)
            a('v_cndmask_b32 %s, %s, v11, vcc' % (v(vT), v(vT))); a('v_cndmask_b32 v10, v10, v12, vcc'); a('v_cndmask_b32 v9, v9, %d, vcc' % po)
        a.flush(); a('s_branch fz_spec3back%s' % sfx)
    WF, WD, BH, ACC, K = 32, 96, 128, 192, 200
    SNT = '' if '--spl' in OPT else ' nt'
    def ffn_addr():
        a('s_bfe_u32 s21, s2, 0x30003')
        a('v_lshrrev_b32 v2, 5, v1'); a('v_and_b32 v3, 31, v1'); a('v_lshlrev_b32 v4, 1, v2'); a('v_xor_b32 v3, v4, v3')
        a('v_mul_u32_u24 v4, 7168, v2'); a('v_lshl_add_u32 v4, v3, 4, v4')
        for k in range(1, 4): a('v_xor_b32 %s, %d, v4' % (v(4 + k), 64 * k))
        a('s_lshl_b32 s23, s21, 7'); a('s_lshl_b32 s24, s3, 4'); a('s_add_u32 s23, s23, s24'); a('s_mul_i32 s23, s23, 7168'); a('s_lshl_b32 s24, s22, 9'); a('s_add_u32 s23, s23, s24')
        a('s_lshl_b32 s24, s3, 13')
    def gu(m, p):
        a('s_add_u32 s28, s24, %d' % ((0 if m else GT) + 1024 * p)); a('s_mov_b32 m0, s28'); a('s_add_u32 s29, s23, %d' % (p * 2 * 7168))
        if '--xnogu' not in OPT: a('buffer_load_dwordx4 %s, %s, s29 offen%s lds' % (v(4 + (p & 1) + 2 * (p >> 2)), s(16 if m else 12, 4), SNT))
    a.label('ffn_b')
    if not NE:
        a('s_waitcnt vmcnt(0)')
        tags()
    a.label('ffn')
    st.n = 5; st()
    blk(22, 36)
    a('s_cmp_gt_u32 s22, 13'); a('s_cbranch_scc1 fz_xend')
    ffn_addr()
    a('v_mov_b32 v31, %d' % (MSG + 48)); a('v_mov_b32 v10, 0'); a('ds_write_b32 v31, v10'); a('s_waitcnt lgkmcnt(0)')
    if NE:
        a('s_cmp_lt_u32 s3, 4'); a('s_cbranch_scc1 ffn_g1')
        for p in range(NE): gu(0, p)
        a('s_waitcnt vmcnt(%d)' % NE)
        tags()
        a('s_barrier'); a('s_branch ffn_g2')
        a.lines.append('ffn_g1:')
    a('s_setprio 0'); a('s_barrier')
    if GATE:
        a('s_lshl_b32 s26, s3, 3'); a('s_add_u32 s26, s26, %d' % (GATE - 1)); a('s_mul_i32 s26, s26, %d' % PS); a('s_add_u32 s26, s26, 0x%x' % WOFF); a('s_and_b32 s27, s2, 127'); a('s_lshl_b32 s27, s27, 7'); a('s_add_u32 s26, s26, s27')
        a('v_mov_b32 v9, 0'); a('s_mov_b32 s27, 0x30003')
        a('s_waitcnt vmcnt(0)')
        a.lines.append('ffn_gp:')
        a('buffer_load_dword v10, v9, s[4:7], s26 offen sc1')
        a('s_waitcnt vmcnt(0)')
        a('v_xor_b32 v10, s44, v10'); a('v_and_b32 v10, s27, v10'); a('v_cmp_ne_u32 vcc, 0, v10')
        poll_retry('ffn_gp')
        a('s_mov_b32 s58, 0')
    if '--ackfirst' in OPT: a('s_waitcnt vmcnt(0)'); a('s_barrier')
    for p in range(8):
        if NE and p == NE: a.lines.append('ffn_g2:')
        gu(0, p)
        if THR: a('s_waitcnt vmcnt(%d)' % (THR - 1))
    if NE == 8: a.lines.append('ffn_g2:')
    def l2p():
        a('s_lshl_b32 s28, s22, 3'); a('s_add_u32 s28, s28, s21'); a('s_lshl_b32 s28, s28, 16'); a('v_lshlrev_b32 v9, 7, v0')
        a('buffer_load_dword v248, v9, s[64:67], s28 offen')
    if L2P == 1: l2p()
    for p in range(8):
        gu(1, p)
        if THR2: a('s_waitcnt vmcnt(%d)' % (THR2 - 1))
    if L2P == 2: l2p()
    a('v_lshrrev_b32 v2, 4, v1'); a('v_and_b32 v3, 15, v1')
    a('v_bfe_u32 v9, v1, 2, 2'); a('v_lshl_add_u32 v8, v2, 3, v9'); a('v_lshlrev_b32 v8, 9, v8')
    a('v_and_b32 v10, 1, v2'); a('v_lshl_add_u32 v10, v10, 2, v9'); a('s_lshl_b32 s28, s3, 1'); a('v_xor_b32 v10, s28, v10')
    a('v_lshl_add_u32 v8, v10, 5, v8'); a('v_and_b32 v10, 3, v1'); a('v_lshl_add_u32 v8, v10, 3, v8')
    a('v_xor_b32 v12, 32, v8'); a('v_add_u32 v13, %d, v8' % GT); a('v_add_u32 v20, %d, v12' % GT)
    if GH:
        a('s_lshl_b32 s28, s21, 7'); a('v_lshl_add_u32 v9, v1, 1, s28'); cand_off(9, 16, 24, 24)
        a('v_add_u32 v9, 1, v9'); cand_off(9, 17, 24, 24)
        a('s_lshl_b32 s28, s21, 8'); a('s_add_u32 s28, s28, %d' % HN); a('v_lshl_add_u32 v18, v1, 2, s28')
    else:
        a('v_bfe_u32 v9, v0, 2, 2'); a('v_lshrrev_b32 v10, 6, v0'); a('v_lshl_add_u32 v9, v10, 2, v9')
        a('v_bfe_u32 v10, v0, 4, 1'); a('v_and_b32 v11, 3, v0'); a('v_lshlrev_b32 v11, 1, v11'); a('v_lshl_add_u32 v10, v10, 3, v11')
        a('v_lshl_add_u32 v11, v9, 5, v10'); a('v_add_u32 v17, 1, v11')
        a('v_cmp_eq_u32 vcc, 0, v10'); a('v_cmp_gt_u32 s[28:29], 16, v9'); a('s_and_b64 vcc, vcc, s[28:29]'); a('v_cndmask_b32 v14, 0, 16, vcc'); a('v_add_u32 v16, v11, v14')
        a('v_bfe_u32 v10, v0, 5, 1'); a('v_cmp_eq_u32 s[28:29], 1, v10')
        a('v_sub_u32 v14, 1024, v16'); a('v_cmp_eq_u32 vcc, 512, v16'); a('v_cndmask_b32 v14, v14, 0, vcc'); a('v_cndmask_b32 v16, v16, v14, s[28:29]')
        a('v_sub_u32 v14, 1024, v17'); a('v_cndmask_b32 v17, v17, v14, s[28:29]')
        for r in (16, 17): a('v_lshlrev_b32 %s, 1, %s' % (v(r), v(r))); a('v_add_u32 %s, %d, %s' % (v(r), HN, v(r)))
        a('v_lshlrev_b32 v18, 2, v0'); a('v_add_u32 v18, %d, v18' % RAW)
    a('s_lshl_b32 s28, s21, 8'); a('s_add_u32 s28, s28, %d' % HN); a('v_lshlrev_b32 v19, 4, v2'); a('v_add_u32 v19, s28, v19')
    a('v_mov_b32 v28, %d' % MSG)
    a('v_lshlrev_b32 v29, 4, v1')
    a('s_lshl_b32 s30, s22, 3'); a('s_add_u32 s30, s30, s3'); a('s_lshl_b32 s30, s30, 3'); a('s_add_u32 s30, s30, s21'); a('s_lshl_b32 s30, s30, 8'); a('s_add_u32 s30, s30, 0x%x' % XOFF)
    a('v_lshlrev_b32 v30, 4, v2'); a('v_lshl_add_u32 v30, v3, 6, v30')
    for k in range(1, 4): a('v_cmp_eq_u32 %s, %d, v3' % (s(58 + 2 * k, 2), k))
    a('v_add_u32 v21, %d, v29' % RAW)
    a('v_mov_b32 %s, 0xffffff00' % v(197))
    a('s_and_b32 s35, s2, 0x47'); a('s_lshl_b32 s31, s3, 3'); a('s_add_u32 s35, s35, s31'); a('s_add_u32 s35, s35, %d' % POFS); a('s_and_b32 s35, s35, 127')
    a('s_getreg_b32 s33, hwreg(HW_REG_XCC_ID)'); a('s_and_b32 s33, s33, 15')
    a('s_lshr_b32 s31, s35, 5'); a('s_lshl_b32 s31, s31, 2'); a('s_add_u32 s31, s31, %d' % (MSG + 16)); a('v_mov_b32 v22, s31')
    a('s_lshl_b32 s20, s22, 3'); a('s_add_u32 s20, s20, s21')
    if XB_:
        a('s_lshl_b32 s31, s22, 3'); a('s_add_u32 s31, s31, s3'); a('s_lshl_b32 s31, s31, 5'); a('s_add_u32 s31, s31, s21'); a('s_lshl_b32 s31, s31, 2'); a('s_add_u32 s31, s31, 0x%x' % DLOFF)
        a('v_mov_b32 v26, s40'); a('v_mov_b32 v27, 0')
    a('s_and_b32 s34, s20, %d' % (7 if DB & 8 else 15))
    if DB & 2 and not DB & 16: a('s_bfe_u32 s28, s20, 0x10004'); a('s_lshl_b32 s28, s28, 5'); a('s_add_u32 s34, s34, s28')
    a('s_mul_i32 s34, s34, %d' % KS); a('s_add_u32 s34, s34, 0x%x' % KOFF)
    def trw():
        for T_, ad in enumerate((13, 20, 8, 12)):
            for k in range(4):
                for hh in range(2): a('ds_read_b64_tr_b16 %s, %s offset:%d' % (v(WF + 16 * T_ + 4 * k + 2 * hh, 2), v(ad), 16384 * k + 2048 * hh))
            a('s_waitcnt lgkmcnt(0)')
    a('s_waitcnt vmcnt(%d)' % (1 if L2P == 2 else 0))
    if DEC:
        a('v_mov_b32 v10, 1'); a('s_mov_b64 exec, 1'); a('ds_add_u32 v31, v10'); a('s_mov_b64 exec, -1')
        a('s_mov_b32 s23, 0')
        a('s_cmp_eq_u32 s3, 0'); a('s_cbranch_scc1 ffn_z0')
        a.lines.append('ffn_sl:')
        a('ds_read_b32 v10, v31'); a('s_waitcnt lgkmcnt(0)'); a('v_cmp_ne_u32 vcc, 8, v10'); a('s_cbranch_vccnz ffn_sl')
        st()
        trw()
        st()
        a('s_cmp_lg_u32 s3, 0'); a('s_cbranch_scc1 ffn_w3')
        a('s_cmp_eq_u32 s23, 2'); a('s_cbranch_scc1 ffn_w3')
        a('s_mov_b32 s23, 1')
        a.lines.append('ffn_z0:')
    else:
        a('s_barrier')
        st()
        trw()
        st()
        a('s_cmp_lg_u32 s3, 0'); a('s_cbranch_scc1 ffn_w3')
    if KP == 0:
        a('v_lshlrev_b32 v23, %d, v1' % KRL); a('v_add_u32 v24, %d, v23' % (64 << KRL)); a('s_lshl_b32 s28, s20, %d' % KRL); a('s_add_u32 s28, s28, s34'); a('v_mov_b32 v10, %d' % (12 + (32 * KS if DB & 16 else 16 * KS if DB & 1 else 0)))
        if DTH:
            a('v_mul_u32_u24 v11, %d, v1' % (3 << KRL if False else 2 << KRL)); a('v_bfe_u32 v9, v1, 2, 1'); a('v_lshl_add_u32 v11, v9, %d, v11' % KRL); a('v_add_u32 v10, v10, v11'); a('s_mov_b32 s28, s34')
            a.lines.append('ffn_q3:')
            a('buffer_load_dword v11, v10, s[4:7], s28 offen sc1')
            a('s_add_u32 s58, s58, 1')
            a('s_waitcnt vmcnt(0)')
            a('v_cmp_eq_u32 vcc, s40, v11')
            a('s_cmp_gt_u32 s58, 0x%x' % MAXPOLL); a('s_cbranch_scc1 ffn_p3_ok')
            a('s_bcnt1_i32_b64 s29, vcc'); a('s_cmp_lt_u32 s29, %d' % DTH); a('s_cbranch_scc1 ffn_q3'); a('s_branch ffn_p3_ok')
        a.label('ffn_p3')
        a('buffer_load_dword v11, v10, s[4:7], s28 offen sc1')
        if DEC: a('ds_read_b32 v9, v31')
        a('s_waitcnt vmcnt(0) lgkmcnt(0)')
        a('v_cmp_ne_u32 vcc, s40, v11')
        if DEC:
            a('s_cbranch_vccnz ffn_p3_x')
            a.lines.append('ffn_p3_ok:')
        else: poll_retry('ffn_p3')
        a('s_mov_b32 s58, 0'); a('s_mov_b32 s54, -1')
        st()
        a.label('ffn_k3')
        a('buffer_load_dwordx4 %s, v23, s[4:7], s34 offen sc1' % v(K, 4)); a('buffer_load_dwordx4 %s, v24, s[4:7], s34 offen sc1' % v(K + 4, 4))
        a('s_waitcnt vmcnt(0)')
        if SPEC:
            a('v_cmp_eq_u32 s[24:25], s40, %s' % v(K + 3)); a('v_cmp_eq_u32 s[26:27], s40, %s' % v(K + 7))
            a('v_cndmask_b32 %s, 0, %s, s[24:25]' % (v(K), v(K))); a('v_cndmask_b32 %s, 0, %s, s[26:27]' % (v(K + 4), v(K + 4)))
            a('v_max_u32 %s, %s, %s' % (v(K + 10), v(K), v(K + 4)))
            for pat in ['quad_perm:[1,0,3,2] ' + DPPF, 'quad_perm:[2,3,0,1] ' + DPPF, 'row_half_mirror ' + DPPF,
                        'row_mirror ' + DPPF, 'row_bcast:15 row_mask:0xa bank_mask:0xf', 'row_bcast:31 row_mask:0xc bank_mask:0xf']:
                a('v_max_u32_dpp %s, %s, %s %s' % (v(K + 10), v(K + 10), v(K + 10), pat))
            a('s_and_b64 s[52:53], s[24:25], s[26:27]')
            a('v_readlane_b32 s36, %s, 63' % v(K + 10))
        else: keys_argmax(K, None, 'ffn_k3')
    else:
        st()
        KSET = [216 + 8 * i for i in range(KP)]
        def ki(r): a('buffer_load_dwordx4 %s, v29, s[4:7], s34 offen sc1' % v(r, 4)); a('buffer_load_dwordx4 %s, v29, s[4:7], s34 offen offset:1024 sc1' % v(r + 4, 4))
        for r in KSET[:-1]: ki(r)
        a.lines.append('ffn_k3:')
        for i, r in enumerate(KSET):
            ki(KSET[i - 1])
            a('s_waitcnt vmcnt(%d)' % (2 * KP - 2))
            for k in range(8): a('v_mov_b32 %s, %s' % (v(K + k), v(r + k)))
            a('v_max_u32 %s, %s, %s' % (v(K + 10), v(K), v(K + 4)))
            a('v_xor_b32 %s, s40, %s' % (v(K + 8), v(K + 3))); a('v_xor_b32 %s, s40, %s' % (v(K + 9), v(K + 7)))
            for pat in ['quad_perm:[1,0,3,2] ' + DPPF, 'quad_perm:[2,3,0,1] ' + DPPF, 'row_half_mirror ' + DPPF,
                        'row_mirror ' + DPPF, 'row_bcast:15 row_mask:0xa bank_mask:0xf', 'row_bcast:31 row_mask:0xc bank_mask:0xf']:
                a('v_max_u32_dpp %s, %s, %s %s' % (v(K + 10), v(K + 10), v(K + 10), pat))
            a('v_or_b32 %s, %s, %s' % (v(K + 8), v(K + 8), v(K + 9)))
            a('v_readlane_b32 s36, %s, 63' % v(K + 10))
            a('v_cmp_ne_u32 vcc, 0, %s' % v(K + 8))
            a('s_cbranch_vccz ffn_k3_ok')
        a('s_add_u32 s58, s58, 1'); a('s_cmp_lt_u32 s58, 0x%x' % MAXPOLL); a('s_cbranch_scc1 ffn_k3')
        a.label('ffn_k3_ok')
    a('v_cmp_eq_u32 vcc, s36, %s' % v(K)); a('v_cmp_eq_u32 s[28:29], s36, %s' % v(K + 4))
    a('s_cmp_lg_u64 vcc, 0'); a('s_cselect_b32 s39, 0, 64'); a('s_or_b64 vcc, vcc, s[28:29]'); a('s_ff1_i32_b64 s41, vcc')
    a('s_add_u32 s39, s39, s41'); a('s_lshl_b32 s39, s39, 11'); a('s_add_u32 s39, s39, 0x%x' % COFF)
    CR = BH
    if SPEC:
        a('s_cmp_eq_u32 s39, s54'); a('s_cbranch_scc1 ffn_c3h')
        a('buffer_load_dwordx4 %s, v29, s[4:7], s39 offen sc1' % v(CR, 4)); a('buffer_load_dwordx4 %s, v29, s[4:7], s39 offen offset:1024 sc1' % v(CR + 4, 4))
        a.lines.append('ffn_c3h:')
        a('s_cmp_lg_u64 s[52:53], -1'); a('s_cbranch_scc1 ffn_k3_rt')
        a.lines.append('ffn_k3_ok:')
        a('s_mov_b32 s58, 0')
        st()
    else:
        a('s_mov_b32 s58, 0')
        st()
        a.lines.append('ffn_c3:')
        if GH: a('buffer_load_short_d16_hi v14, v16, s[4:7], s39 offen sc1'); a('buffer_load_short_d16_hi v15, v17, s[4:7], s39 offen sc1')
        else: a('buffer_load_dwordx4 %s, v29, s[4:7], s39 offen sc1' % v(CR, 4)); a('buffer_load_dwordx4 %s, v29, s[4:7], s39 offen offset:1024 sc1' % v(CR + 4, 4))
    a.lines.append('ffn_c3d:')
    a('v_and_b32 v10, 15, %s' % v(K + 1)); a('v_and_b32 v11, 15, %s' % v(K + 5))
    a('v_cmp_eq_u32 s[24:25], s33, v10'); a('v_cmp_eq_u32 s[26:27], s33, v11')
    for k in range(4): a('v_mov_b32 %s, %s' % (v(K + 12 + k), s(24 + k) if LOCAL else '0'))
    for k in range(1, 3): a('v_cndmask_b32 %s, %s, %s, s[28:29]' % (v(K + 8 + k), v(K + k), v(K + 4 + k)))
    if GH:
        a('ds_write_b128 v28, %s offset:16' % v(K + 12, 4))
        a('v_readlane_b32 s24, %s, s41' % v(K + 9)); a('v_readlane_b32 s25, %s, s41' % v(K + 10)); a('s_mov_b64 s[42:43], vcc')
        a('s_and_b32 s24, s24, 0xffff0000'); a('s_mov_b32 s26, 0xffff0000')
        a('s_waitcnt vmcnt(0)')
        a('v_max_u32 v10, v14, v15')
        for r in (14, 15): a('v_add_f32 %s, s24, %s' % (v(r), v(r)))
        for r in (14, 15): rbf(a, r)
        for r in (14, 15): a('v_mul_f32 %s, s25, %s' % (v(r), v(r)))
        a('v_cvt_pk_bf16_f32 v14, v14, v15')
        a('ds_write_b32 v18, v14')
        a('v_cmp_eq_u32 vcc, s26, v10')
    else:
        a('v_and_b32 %s, 0xffff0000, %s' % (v(K + 9), v(K + 9)))
        a('s_mov_b64 s[42:43], vcc'); a('s_mov_b64 exec, vcc')
        a('ds_write_b128 v28, %s' % v(K + 8, 4)); a('ds_write_b128 v28, %s offset:16' % v(K + 12, 4))
        a('s_mov_b64 exec, -1')
        a('s_waitcnt vmcnt(1)')
        a('ds_write_b128 v21, %s' % v(CR, 4))
        a('v_max3_u32 v10, %s, %s, %s' % (v(CR), v(CR + 1), v(CR + 2)))
        a('s_waitcnt vmcnt(0)')
        a('ds_write_b128 v21, %s offset:1024' % v(CR + 4, 4))
        a('v_max3_u32 v10, v10, %s, %s' % (v(CR + 3), v(CR + 4))); a('v_max3_u32 v11, %s, %s, %s' % (v(CR + 5), v(CR + 6), v(CR + 7))); a('v_max_u32 v10, v10, v11')
        a('v_cmp_eq_u32 vcc, -1, v10')
    a('s_cbranch_vccnz ffn_c3_rt')
    a.lines.append('ffn_c3_ok:')
    a('s_waitcnt lgkmcnt(0)')
    if DEC:
        a('s_cmp_eq_u32 s23, 0'); a('s_mov_b32 s23, 2'); a('s_cbranch_scc1 ffn_sl')
    a.label('ffn_w3')
    a('s_barrier')
    st.n = 10; st()
    if GH:
        st()
        a('ds_read_b32 %s, v22' % v(K + 3))
    else:
        a('ds_read_b32 v11, v18'); a('ds_read_b128 %s, v28' % v(K, 4)); a('ds_read_b32 %s, v22' % v(K + 3))
        a('s_mov_b32 s28, 0xffff0000')
        a('s_waitcnt lgkmcnt(2)')
        a('v_lshlrev_b32 v14, 16, v11'); a('v_and_b32 v15, s28, v11')
        a('s_waitcnt lgkmcnt(0)')
        for r in (14, 15): a('v_add_f32 %s, %s, %s' % (v(r), v(r), v(K + 1)))
        for r in (14, 15): rbf(a, r)
        for r in (14, 15): a('v_mul_f32 %s, %s, %s' % (v(r), v(r), v(K + 2)))
        a('v_cvt_pk_bf16_f32 v14, v14, v15')
        a('ds_write_b16 v16, v14'); a('ds_write_b16_d16_hi v17, v14')
        a('v_readfirstlane_b32 s24, %s' % v(K + 3))
        a('s_waitcnt lgkmcnt(0)'); a('s_barrier')
        st()
    for k in range(4): a('ds_read_b128 %s, v19 offset:%d' % (v(BH + 4 * k, 4), 64 * k))
    AC = 144
    for k in range(4):
        a('s_waitcnt lgkmcnt(%d)' % (3 - k))
        for T_ in range(4): a('v_mfma_f32_16x16x32_bf16 %s, %s, %s, %s' % (v((AC + 4 * T_) if T_ else ACC, 4), v(WF + 16 * T_ + 4 * k, 4), v(BH + 4 * k, 4), v((AC + 4 * T_) if T_ else ACC, 4) if k else '0'))
    if GH: a('v_readfirstlane_b32 s24, %s' % v(K + 3))
    for T_ in range(1, 4):
        for k in range(4): a('v_cndmask_b32 %s, %s, %s, %s' % (v(ACC + k), v(ACC + k), v(AC + 4 * T_ + k), s(58 + 2 * T_, 2)))
    a('s_mov_b32 exec_lo, 0x000f000f'); a('s_mov_b32 exec_hi, 0x000f000f')
    for k in range(4): a('v_and_or_b32 %s, %s, %s, %s' % (v(ACC + k), v(ACC + k), v(197), s(48 + k)))
    a('s_bitcmp1_b32 s24, s35'); a('s_cbranch_scc0 ffn_rem')
    a('buffer_store_dwordx4 %s, v30, s[4:7], s30 offen' % v(ACC, 4))
    if XB_: a('buffer_store_dword v26, v27, s[4:7], s31 offen')
    a.lines.append('ffn_fin:')
    st()
    st.dump(sv=250, wave='s3')
    a('s_endpgm')
    a.lines.append('ffn_rem:')
    a('buffer_store_dwordx4 %s, v30, s[4:7], s30 offen sc1' % v(ACC, 4))
    a('s_branch ffn_fin')
    if DEC:
        a.lines.append('ffn_p3_x:')
        a('s_add_u32 s58, s58, 1'); a('s_cmp_gt_u32 s58, 0x%x' % MAXPOLL); a('s_cbranch_scc1 ffn_p3_ok')
        a('s_cmp_lg_u32 s23, 0'); a('s_cbranch_scc1 ffn_p3')
        a('v_cmp_eq_u32 vcc, 8, v9'); a('s_cbranch_vccnz ffn_sl'); a('s_branch ffn_p3')
    a.lines.append('ffn_c3_rt:')
    if SPEC:
        a('s_mov_b64 vcc, s[42:43]'); a('s_add_u32 s58, s58, 1'); a('s_cmp_gt_u32 s58, 0x%x' % MAXPOLL); a('s_cbranch_scc1 ffn_c3_ok')
        a('buffer_load_dwordx4 %s, v29, s[4:7], s39 offen sc1' % v(CR, 4)); a('buffer_load_dwordx4 %s, v29, s[4:7], s39 offen offset:1024 sc1' % v(CR + 4, 4))
        a('s_branch ffn_c3d')
        a.lines.append('ffn_k3_rt:')
        a('s_cmp_lg_u32 s36, 0'); a('s_cselect_b32 s54, s39, -1')
        a('s_add_u32 s58, s58, 1'); a('s_cmp_lt_u32 s58, 0x%x' % MAXPOLL); a('s_cbranch_scc1 ffn_k3'); a('s_branch ffn_k3_ok')
    else:
        a('s_mov_b64 vcc, s[42:43]'); a('s_add_u32 s58, s58, 1'); a('s_cmp_lt_u32 s58, 0x%x' % MAXPOLL); a('s_cbranch_scc1 ffn_c3'); a('s_branch ffn_c3_ok')
    emit_stubs()
    a.lines.append('fz_codeend:')

def main(path):
    ref = open('/code/%s.s.ref' % NAME).read().splitlines()
    for l in ref:
        if l.startswith('; Override'): break
        a.raw(l)
    a.raw('; @launch kernel=fz_kernel grid=(256,1,1) block=(512,1,1) lds=163840')
    if STAMPS: a.raw('; @groups fftA=0-127:0-3,fftB=0-127:4-7,ffn=128-255:0-0')
    a.raw('.amdgcn_target "amdgcn-amd-amdhsa--gfx950"'); a.raw('.text')
    gen()
    a.raw('.section .rodata,"a"')
    a.raw('\n'.join(['.p2align 6', '.amdhsa_kernel fz_kernel', '  .amdhsa_next_free_vgpr 256', '  .amdhsa_next_free_sgpr 102',
        '  .amdhsa_accum_offset 256', '  .amdhsa_group_segment_fixed_size 0', '  .amdhsa_kernarg_size 104', '  .amdhsa_user_sgpr_count 2',
        '  .amdhsa_user_sgpr_kernarg_segment_ptr 1', '  .amdhsa_system_sgpr_workgroup_id_x 1', '.end_amdhsa_kernel', '']))
    open(path, 'w').write(a.text())
    print('wrote', path, 'lines', len(a.lines), 'nops', a.nops)
if __name__ == '__main__':
    ps = [x for x in sys.argv[1:] if x.endswith('.s')]
    main(ps[0] if ps else '/code/%s.s' % NAME)
```

```python
import struct, sys
import os; _d = os.path.dirname(os.path.abspath(__file__)); sys.path.insert(0, _d); sys.path.insert(0, _d + '/mb')
from asmlib import Asm
from mblib import St
NAME = 'sequential_preLN__spectral_fnet__moe_arch_mod__prompt'
def fh(x): return '0x%08x' % struct.unpack('<I', struct.pack('<f', x))[0]
OPT = set(a for a in sys.argv[1:] if a.startswith('--'))
def optv(name, d):
    for o in OPT:
        if o.startswith('--%s=' % name): return int(o.split('=')[1])
    return d
STAMPS = '--stamps' in OPT
def v(i, n=1): return 'v%d' % i if n == 1 else 'v[%d:%d]' % (i, i + n - 1)
def s(i, n=1): return 's%d' % i if n == 1 else 's[%d:%d]' % (i, i + n - 1)
DPPF = 'row_mask:0xf bank_mask:0xf'
X1 = 'quad_perm:[1,0,3,2] ' + DPPF
def rbf(a, r): a('v_cvt_pk_bf16_f32 %s, 0, %s' % (v(r), v(r)))
def kr(r): return (r & 3) + 8 * (r >> 2)
PS = 16384 + 128
WOFF = 0x1000; YOFF = 0x210000; KRL = optv('krl', 4); KOFF = 0x580000; KS = (128 << KRL) + 128; COFF = 0x448000; XOFF = 0x488000; POFF = 0x4c8000; PPS = 4096 + 128; PIS = 3584 + 128
DOFF = 0x548000; FIOFF = 0x558000; DLOFF = 0x560000; WSB = 0x690000
RS = 2064
CT = 24 * RS; SB = CT + 18432; AB = SB + 18432; CPS = 8192 + 64; PR = AB + 2 * CPS; WR = PR + 2048; TRASH = WR + 2048; ACT = TRASH + 1024; SYNC = CT - 16
GT = 81920; SP = 65536; HN = GT + 65536; MSG = HN + 2048; RAW = MSG + 64
MAXPOLL = 0x10000
SPID = optv('spid', 66); POFS = (124 - SPID) & 127
class Asm2(Asm):
    def __call__(self, text):
        if text.startswith('v_cndmask_b32 '): text = 'v_cndmask_b32_e64 ' + text[14:]
        Asm.__call__(self, text)
a = Asm2()
class St2(St):
    def __call__(self):
        if '--early' in OPT and 5 < self.n < 15: self.n += 1; return
        if '--cnt' in OPT and 0 < self.n < 4: self.n += 1; return
        if '--tail' in OPT and 0 < self.n < 10: self.n += 1; return
        if '--mid' in OPT and (0 < self.n < 5 or 11 < self.n < 15): self.n += 1; return
        St.__call__(self)
st = St2(a, STAMPS); st.vw = True
def mst(i):
    if '--mid' in OPT and STAMPS: a('s_memrealtime s[%d:%d]' % (70 + 2 * i, 71 + 2 * i))
def tst(i):
    if '--tail' in OPT and STAMPS: a('s_memrealtime s[%d:%d]' % (70 + 2 * i, 71 + 2 * i))
def est(i):
    if '--early' in OPT and STAMPS: a('s_memrealtime s[%d:%d]' % (70 + 2 * i, 71 + 2 * i))
stubs = []
def poll_retry(name, cnt=58):
    a('s_cbranch_vccnz %s_rt' % name)
    a.lines.append('%s_ok:' % name)
    stubs.append((name, cnt))
prog = []
def prog_poll(name, n, issue, check, after=None):
    for u in range(n):
        a.lines.append('%s_c%d:' % (name, u))
        a('s_waitcnt vmcnt(%d)' % (n - 1 - u))
        check(u)
        a('s_cbranch_vccnz %s_r%d' % (name, u))
        a.lines.append('%s_o%d:' % (name, u))
        if after: after(u)
    prog.append((name, n, issue))
def emit_stubs():
    for name, n, issue in prog:
        for u in range(n):
            a.lines.append('%s_r%d:' % (name, u))
            a('s_add_u32 s58, s58, 1'); a('s_cmp_gt_u32 s58, 0x%x' % MAXPOLL); a('s_cbranch_scc1 %s_o%d' % (name, u))
            if '--cnt' in OPT and name in ('fz_h1', 'fz_h2', 'fz_h5'): r = {'fz_h1': 72, 'fz_h2': 74, 'fz_h5': 76}[name]; a('s_add_u32 s%d, s%d, %d' % (r, r, n - u))
            for k in range(u, n): issue(k)
            a('s_branch %s_c%d' % (name, u))
    for name, cnt in stubs:
        a.lines.append('%s_rt:' % name)
        a('s_add_u32 %s, %s, 1' % (s(cnt), s(cnt))); a('s_cmp_lt_u32 %s, 0x%x' % (s(cnt), MAXPOLL))
        a('s_cbranch_scc1 %s' % name); a('s_branch %s_ok' % name)
def angles(mulreg, basereg, ks, tmp):
    for i, k in enumerate(ks):
        if k == 0: a('v_mov_b32 %s, %s' % (v(tmp + i), v(basereg)))
        else: a('v_fmamk_f32 %s, %s, %s, %s' % (v(tmp + i), v(mulreg), fh(float(k)), v(basereg)))
def trig(fn, t, n):
    for i in range(n): a('v_%s_f32 %s, %s' % (fn, v(t + i), v(t + i)))
def pack(dst, t, n, kind='f16'):
    for p in range(n // 2): a('v_cvt_pk_%s_f32 %s, %s, %s' % (kind, v(dst + p), v(t + 2 * p), v(t + 2 * p + 1)))
def tags():
    a('v_readfirstlane_b32 s40, v250')
    a('s_add_u32 s40, s40, 1'); a('s_and_b32 s38, s40, 3'); a('s_and_b32 s39, s40, 15')
    for i in range(4):
        a('s_bfe_u32 s41, s40, 0x%x' % ((2 << 16) | (2 * i + 2))); a('s_lshl_b32 s41, s41, 16'); a('s_or_b32 %s, s38, s41' % s(44 + i))
        a('s_bfe_u32 s41, s40, 0x%x' % ((4 << 16) | (4 * i + 4))); a('s_lshl_b32 s41, s41, 4'); a('s_or_b32 %s, s39, s41' % s(48 + i))
def srd(d, nbytes): a('s_mov_b32 %s, 0x%x' % (s(d + 2), nbytes)); a('s_mov_b32 %s, 0x00020000' % s(d + 3))
def blk(dst, tmp):
    if optv('bm', 0):
        e = optv('bm', 0) - 1
        a('s_add_u32 %s, s2, %d' % (s(tmp), 7 - e)); a('s_and_b32 %s, %s, 7' % (s(tmp), s(tmp))); a('s_bfe_u32 %s, s2, 0x10006' % s(tmp + 1))
        a('s_lshl_b32 %s, %s, 1' % (s(dst), s(tmp))); a('s_add_u32 %s, %s, %s' % (s(dst), s(dst), s(tmp + 1))); a('s_min_u32 %s, %s, 14' % (s(dst), s(dst)))
        return
    a('s_add_u32 %s, s2, 4' % s(tmp)); a('s_and_b32 %s, %s, 7' % (s(tmp), s(tmp))); a('s_bfe_u32 %s, s2, 0x10006' % s(tmp + 1))
    a('s_lshl_b32 %s, %s, 1' % (s(dst), s(tmp))); a('s_add_u32 %s, %s, %s' % (s(dst), s(dst), s(tmp + 1)))
    a('s_cmp_lg_u32 %s, 0' % s(tmp + 1)); a('s_cselect_b32 %s, 8, %s' % (s(tmp + 1), s(tmp))); a('s_add_u32 %s, %s, 6' % (s(tmp + 1), s(tmp + 1)))
    a('s_cmp_lt_u32 %s, 6' % s(tmp)); a('s_cselect_b32 %s, %s, %s' % (s(dst), s(dst), s(tmp + 1)))
def cand_off(d, o, t, m):
    a('v_and_b32 %s, 31, %s' % (v(t), v(d))); a('v_lshrrev_b32 %s, 5, %s' % (v(t + 1), v(d)))
    a('v_cmp_gt_u32 vcc, 16, %s' % v(t + 1))
    a('v_cmp_lt_u32 %s, 16, %s' % (s(m, 2), v(t))); a('v_cmp_eq_u32 %s, 0, %s' % (s(m + 2, 2), v(t))); a('s_and_b64 %s, %s, vcc' % (s(m + 2, 2), s(m + 2, 2))); a('s_or_b64 %s, %s, %s' % (s(m, 2), s(m, 2), s(m + 2, 2)))
    a('v_cmp_eq_u32 %s, 16, %s' % (s(m + 2, 2), v(t))); a('s_andn2_b64 %s, %s, vcc' % (s(m + 2, 2), s(m + 2, 2))); a('s_or_b64 %s, %s, %s' % (s(m, 2), s(m, 2), s(m + 2, 2)))
    e, u = v(t + 2), v(t + 3)
    a('v_sub_u32 %s, 1024, %s' % (e, v(d))); a('v_cndmask_b32 %s, %s, %s, %s' % (e, v(d), e, s(m, 2)))
    a('v_mov_b32 %s, 512' % u); a('v_cmp_eq_u32 vcc, 1024, %s' % e); a('v_cndmask_b32 %s, %s, %s, vcc' % (e, e, u))
    a('v_lshrrev_b32 %s, 5, %s' % (u, e)); a('v_and_b32 %s, 15, %s' % (e, e))
    a('v_lshrrev_b32 %s, 2, %s' % (v(o), u)); a('v_lshlrev_b32 %s, 8, %s' % (v(o), v(o))); a('v_and_b32 %s, 3, %s' % (u, u)); a('v_lshl_add_u32 %s, %s, 4, %s' % (v(o), u, v(o)))
    a('v_lshrrev_b32 %s, 3, %s' % (u, e)); a('v_lshl_add_u32 %s, %s, 6, %s' % (v(o), u, v(o))); a('v_and_b32 %s, 7, %s' % (e, e)); a('v_lshl_add_u32 %s, %s, 1, %s' % (v(o), e, v(o)))
    a('v_cndmask_b32 %s, 0, 1, %s' % (e, s(m, 2))); a('v_lshl_add_u32 %s, %s, 7, %s' % (v(o), e, v(o)))
def keys_argmax(K, gidx, name):
    a('v_xor_b32 %s, s40, %s' % (v(K + 8), v(K + 3))); a('v_xor_b32 %s, s40, %s' % (v(K + 9), v(K + 7)))
    a('v_max_u32 %s, %s, %s' % (v(K + 10), v(K), v(K + 4)))
    a('v_or_b32 %s, %s, %s' % (v(K + 8), v(K + 8), v(K + 9)))
    a('v_cmp_ne_u32 vcc, 0, %s' % v(K + 8))
    poll_retry(name)
    for pat in ['quad_perm:[1,0,3,2] ' + DPPF, 'quad_perm:[2,3,0,1] ' + DPPF, 'row_half_mirror ' + DPPF,
                'row_mirror ' + DPPF, 'row_bcast:15 row_mask:0xa bank_mask:0xf', 'row_bcast:31 row_mask:0xc bank_mask:0xf']:
        a('v_max_u32_dpp %s, %s, %s %s' % (v(K + 10), v(K + 10), v(K + 10), pat))
    a('v_readlane_b32 s36, %s, 63' % v(K + 10))

def gen():
    PIN = optv('pin', 1); WLIN = optv('wlin', 0); YLIN = optv('ylin', 0); WT = optv('wt', 1); DTH = optv('dth', 0); SPEC = optv('spec', 0); CL = optv('cl', 1); XB_ = optv('xb', 0); GH = optv('gh', 1); EP2 = optv('ep2', 0); EP = optv('ep', 5); TWO = optv('two', 0); L2P = optv('l2p', 0); DEC = optv('dec', 0)
    APP = optv('app', 0); WL = optv('wl', 0)
    BP = optv('bp', 1); THR = optv('thr', 0); THR2 = optv('thr2', 0)
    KP = optv('kp', 0); DB = optv('db', 3)
    PFC = optv('pfc', 1); WSP = optv('wsp', 2204); WE = WSP // 1000; W2 = WE + WSP // 100 % 10; W3 = W2 + WSP // 10 % 10; assert W3 + WSP % 10 == 8; OLATE = '--olate' in OPT; GATE = optv('gate', 0)
    TOUCH = optv('touch', 0); LOCAL = '--nolocal' not in OPT
    NE = optv('ne', 0); LATEX = '--earlyx' not in OPT
    a.raw('.globl fz_kernel'); a.raw('.p2align 8'); a.raw('.type fz_kernel,@function'); a.lines.append('fz_kernel:')
    st()
    if STAMPS:
        for i in range(1, 16): a('s_mov_b32 s%d, %d' % (70 + 2 * i, 0 if ('--cnt' in OPT and i < 4) else -1))
    F1, TC, TS, C2, S2, B3C, B3S, CQ = 16, 24, 32, 40, 48, 56, 64, 72
    XA, XB, XAC, XBC, H, T, TP, ST = 88, 96, 104, 120, 136, 144, 152, 160
    XD, WV, WD = 28, 200, 168
    vSW, vSR, vWST, vHL, vA0, vA1, vAR, vY0, vY1, vYL, vM, vT, vXR, vXM, vE0, vM0, vYE, vZM = 216, 217, 221, 222, 223, 224, 225, 226, 227, 228, 229, 230, 231, 232, 233, 234, 236, 238
    vL16, vSG, vM0m, vPW, vPD, vPR, vKA, vCA, vTK, vMT, vE = 239, 240, 241, 243, 244, 245, 246, 247, 248, 249, 252
    a('s_load_dwordx2 s[4:5], s[0:1], 96'); a('s_load_dwordx2 s[8:9], s[0:1], 0'); a('s_load_dwordx2 s[64:65], s[0:1], 72')
    a('s_cmp_gt_u32 s2, 255'); a('s_cbranch_scc1 fz_end')
    a('v_lshrrev_b32 v2, 6, v0'); a('v_and_b32 v1, 63, v0')
    a('s_lshr_b32 s59, s2, 7')
    a('v_readfirstlane_b32 s3, v2')
    if PFC:
        a('s_and_b32 s20, s2, %d' % (255 if '--pfh0' in OPT else 127)); a('s_cmp_lt_u32 s20, %d' % (8 * PFC)); a('s_cselect_b32 s20, s3, 0'); a('s_cmp_lt_u32 s20, 4'); a('s_cbranch_scc1 fz_pfcback')
        a('s_getpc_b64 s[20:21]')
        a.lines.append('fz_pcb:')
        a('s_sub_u32 s20, s20, fz_pcb-fz_kernel'); a('s_subb_u32 s21, s21, 0')
        a('v_and_b32 v3, 255, v0'); a('v_lshlrev_b32 v3, 7, v3'); a('v_min_u32 v3, fz_codeend-fz_kernel-4, v3')
        a('v_mov_b32 v5, s21'); a('v_add_co_u32 v4, vcc, s20, v3'); a('v_addc_co_u32 v5, vcc, 0, v5, vcc')
        a('global_load_dword v251, v[4:5], off')
        a.lines.append('fz_pfcback:')
    a('s_cmp_lg_u32 s59, 0'); a('s_cbranch_scc1 fz_ldh')
    a('s_load_dwordx2 s[12:13], s[0:1], 80'); a('s_load_dwordx2 s[16:17], s[0:1], 48')
    a.lines.append('fz_ldback:')
    a('s_add_u32 s20, s2, %d' % POFS); a('s_and_b32 s20, s20, 127')
    a('s_lshr_b32 s21, s20, 3'); a('s_add_u32 s21, s21, 1'); a('s_and_b32 s22, s20, 7')
    a('s_sub_u32 s23, s20, 124'); a('s_cmp_ge_u32 s20, 124'); a('s_cselect_b32 s21, 0, s21'); a('s_cselect_b32 s22, s23, s22')
    a('s_lshr_b32 s57, s3, 2'); a('s_or_b32 s23, s57, s59'); a('s_and_b32 s24, s3, 3')
    a('s_lshl_b32 s25, s22, 6'); a('s_add_u32 s25, s25, s21')
    a('s_lshl_b32 s26, s23, 5'); a('s_add_u32 s26, s26, s25')
    a('s_lshl_b32 s27, s24, 9'); a('s_add_u32 s28, s26, s27')
    a('s_sub_u32 s27, 2048, s27'); a('s_sub_u32 s27, s27, s26')
    a('s_lshl_b32 s29, s24, 1'); a('s_add_u32 s29, s29, s23'); a('s_sub_u32 s30, 15, s29')
    a('s_cmp_lt_u32 s24, 2'); a('s_cselect_b32 s27, s28, s27'); a('s_cselect_b32 s31, s29, s30'); a('s_cselect_b32 s30, s30, s29')
    a('s_sub_u32 s28, 2048, s27'); a('s_and_b32 s28, s28, 2047')
    a('s_lshl_b32 s27, s27, 11'); a('s_lshl_b32 s28, s28, 11')
    a('s_mul_i32 s31, s31, %d' % RS); a('s_mul_i32 s30, s30, %d' % RS)
    a('v_lshlrev_b32 %s, 4, v1' % v(vL16))
    srd(8, 2048 * 2048); srd(4, WSB); srd(64, 0x700000)
    a('s_and_b32 s32, s57, s59')
    blk(63, 36); a('s_lshl_b32 s63, s63, 3'); a('s_bfe_u32 s37, s2, 0x30003'); a('s_add_u32 s63, s63, s37')
    a('v_and_b32 v10, 15, v1'); a('v_lshlrev_b32 v10, 4, v10'); a('v_lshrrev_b32 v14, 4, v1'); a('v_lshl_add_u32 v14, v14, 11, v10')
    a('s_lshl_b32 s62, s63, 16'); a('s_and_b32 s37, s3, 3'); a('s_lshl_b32 s37, s37, 9'); a('s_add_u32 s62, s62, s37')
    WQ = [160 + 4 * i for i in range(10)] + [60, 64, 68, 88, 92, 96]
    def wdload(q0=0, q1=8):
        for q in range(q0, q0 if '--xnowd' in OPT else q1):
            for h in range(2): a('buffer_load_dwordx4 %s, v14, s[64:67], s62 offen offset:%d%s' % (v(WQ[2 * q + h], 4), 256 * h, '' if '--wpl' in OPT else ' nt'))
            if q < 7: a('s_add_u32 s62, s62, 8192')
    a('s_mov_b32 s58, 0')
    a('s_waitcnt lgkmcnt(0)')
    st()
    if optv('wsb', 0): a('s_add_u32 s4, s4, 0x%x' % (optv('wsb', 0) << 20)); a('s_addc_u32 s5, s5, 0')
    a('s_cmp_eq_u32 s2, %d' % SPID); a('s_cbranch_scc1 fz_spec')
    a.lines.append('fz_specback:')
    def xload(f=''):
        a('s_mov_b32 m0, s31'); a('s_nop 0')
        a('buffer_load_dwordx4 %s, s[8:11], s27 offen%s lds' % (v(vL16), f)); a('buffer_load_dwordx4 %s, s[8:11], s27 offen offset:1024%s lds' % (v(vL16), f))
        a('s_mov_b32 m0, s30'); a('s_nop 0')
        a('buffer_load_dwordx4 %s, s[8:11], s28 offen%s lds' % (v(vL16), f)); a('buffer_load_dwordx4 %s, s[8:11], s28 offen offset:1024%s lds' % (v(vL16), f))
    def extras():
        a('v_lshlrev_b32 v13, 3, v0'); a('v_mov_b32 v10, -1'); a('v_mov_b32 v11, -1'); a('s_lshl_b32 s32, s20, 11'); a('s_add_u32 s32, s32, 0x%x' % (COFF - 2048))
        srd(16, 2048)
        a('s_lshl_b32 s33, s24, 10'); a('s_min_u32 s34, s33, 2048'); a('s_add_u32 s34, s34, %d' % WR); a('s_mov_b32 m0, s34')
        a('buffer_store_dwordx2 v[10:11], v13, s[4:7], s32 offen sc1')
        a('buffer_load_dwordx4 %s, s[16:19], s33 offen lds' % v(vL16))
    def latex(): xload(' nt' if optv('xnt', 3) & 2 else ''); extras()
    a('s_cmp_lg_u32 %s, 0' % ('s57' if LATEX else 's32')); a('s_cbranch_scc1 fz_nox')
    xload(' nt' if optv('xnt', 3) & 1 else '')
    a.lines.append('fz_nox:')
    a('buffer_load_dword v250, off, s[4:7], 0')
    if WE:
        a('s_andn2_b32 s32, s57, s59'); a('s_cbranch_scc0 fz_nowe')
        wdload(0, WE)
        a.lines.append('fz_nowe:')
    if not LATEX:
        a('s_andn2_b32 s32, s3, 3'); a('s_cmp_gt_u32 s32, s59'); a('s_cselect_b32 s32, 1, 0'); a('s_andn2_b32 s32, s32, s59'); a('s_cbranch_scc0 fz_noclr')
        extras()
        a.lines.append('fz_noclr:')
    est(6)
    if BP: a('s_cmp_eq_u32 s57, 0'); a('s_cbranch_scc1 fz_np'); a('s_setprio 1'); a.lines.append('fz_np:')
    a('v_and_b32 v2, 31, v1'); a('v_lshrrev_b32 v3, 5, v1'); a('v_and_b32 v4, 15, v1'); a('v_lshrrev_b32 v5, 4, v1')
    a('v_add_u32 v6, %d, %s' % (CT, v(vL16)))
    TT = XAC
    JT = 128
    def cq_job():
        a('s_and_b32 s32, s3, 1'); a('s_lshl_b32 s33, s32, 2'); a('s_lshl_b32 s32, s32, 11')
        a('v_and_b32 v8, 3, v4'); a('v_lshrrev_b32 v9, 2, v4'); a('v_lshl_add_u32 v8, v8, 3, v9'); a('v_add_u32 v8, s33, v8')
        a('v_cvt_f32_u32 v8, v8'); a('v_mul_f32 v8, %s, v8' % fh(1 / 32)); a('v_cvt_f32_u32 v9, v5'); a('v_mul_f32 v9, 4.0, v9'); a('v_mul_f32 v9, v8, v9')
        angles(8, 9, [0, 1, 2, 3, 16, 17, 18, 19], TT)
        for i in range(8): a('v_sin_f32 %s, %s' % (v(TT + 8 + i), v(TT + i)))
        trig('cos', TT, 8)
        for i in range(16): a('v_mul_f32 %s, %s, %s' % (v(TT + i), fh(1 / 16), v(TT + i)))
        pack(JT, TT, 16); a('v_add_u32 v8, s32, v6')
        for q in range(2): a('ds_write_b128 v8, %s offset:%d' % (v(JT + 4 * q, 4), 1024 * (14 + q)))
    a('v_lshrrev_b32 v10, 1, v2'); a('v_and_b32 v8, 9, v10'); a('v_and_b32 v11, 2, v10'); a('v_lshl_or_b32 v8, v11, 1, v8')
    a('v_bfe_u32 v11, v10, 2, 1'); a('v_lshl_or_b32 v8, v11, 1, v8')
    a('v_and_b32 v12, 1, v5'); a('v_cmp_eq_u32 vcc, 1, v12'); a('v_lshl_add_u32 v9, v4, 1, 1'); a('v_cndmask_b32 v9, v9, 0, vcc')
    a('s_cmp_lt_u32 s3, 5'); a('s_cselect_b64 s[32:33], -1, 0')
    a('s_cmp_lt_u32 s3, 3'); a('s_cselect_b64 s[34:35], -1, 0')
    a('v_cndmask_b32 v9, v9, v2, s[32:33]'); a('v_cndmask_b32 v8, v9, v8, s[34:35]')
    a('s_mov_b32 s36, %s' % fh(1 / 32)); a('s_cmp_gt_u32 s3, 4'); a('s_cselect_b32 s36, %s, s36' % fh(1 / 64))
    a('s_sub_u32 s37, s3, 1'); a('s_cmp_lt_u32 s37, 2'); a('s_cselect_b32 s36, %s, s36' % fh(1 / 1024))
    a('s_cmp_eq_u32 s3, 0'); a('s_cselect_b32 s32, 16, 0'); a('s_cselect_b32 s33, %s, 0' % fh(0.25)); a('s_cselect_b32 s34, 4.0, %s' % fh(8.0)); a('s_cselect_b32 s35, %s, 4.0' % fh(8.0))
    a('v_cmp_eq_u32 vcc, 1, v2'); a('v_mov_b32 v10, s32'); a('v_cndmask_b32 v10, 0, v10, vcc'); a('v_add_u32 v8, v8, v10')
    a('v_cvt_f32_u32 v8, v8'); a('v_mul_f32 v8, s36, v8')
    a('s_cmp_eq_u32 s3, 2'); a('s_cselect_b32 s32, 0x80000000, 0'); a('v_lshlrev_b32 v10, 31, v2'); a('v_and_b32 v10, s32, v10'); a('v_xor_b32 v8, v10, v8')
    a('v_and_b32 v10, 1, v2'); a('v_cvt_f32_u32 v10, v10'); a('v_mul_f32 v10, s33, v10')
    a('s_cmp_eq_u32 s3, 1'); a('s_cselect_b32 s33, %s, 0' % fh(0.25)); a('v_mov_b32 v11, s33'); a('v_cndmask_b32 v10, v10, v11, vcc')
    a('s_cmp_eq_u32 s3, 5'); a('s_cselect_b32 s33, %s, 0' % fh(0.25)); a('v_cvt_f32_u32 v12, v12'); a('v_fma_f32 v10, v12, s33, v10')
    a('s_cmp_eq_u32 s3, 6'); a('s_cselect_b32 s33, %s, 0' % fh(0.25))
    a('s_cmp_eq_u32 s3, 2'); a('s_cselect_b32 s33, %s, s33' % fh(-0.25)); a('s_cmp_eq_u32 s3, 4'); a('s_cselect_b32 s33, %s, s33' % fh(-0.25))
    a('v_add_f32 v10, s33, v10'); a('v_cvt_f32_u32 v11, v3'); a('v_mul_f32 v11, s35, v11'); a('v_fma_f32 v9, v8, v11, v10')
    a('v_mul_f32 v10, s34, v8'); a('v_mul_f32 v11, %s, v8' % fh(16.0))
    angles(8, 9, [0, 1, 2, 3], TT)
    for i in range(4): a('v_add_f32 %s, %s, v10' % (v(TT + 4 + i), v(TT + i)))
    for i in range(8): a('v_add_f32 %s, %s, v11' % (v(TT + 8 + i), v(TT + i)))
    est(7)
    trig('cos', TT, 16)
    a('s_lshl_b32 s32, s3, 11'); a('v_add_u32 v8, s32, v6')
    a('s_cmp_eq_u32 s3, 0'); a('s_cbranch_scc1 fz_jb')
    pack(JT, TT, 16)
    a.lines.append('fz_jend:')
    for q in range(2): a('ds_write_b128 v8, %s offset:%d' % (v(JT + 4 * q, 4), 1024 * q))
    B1, TC2, TS2 = 16, 20, 24
    vA = [vA0, vA1, 100, 101]
    def sync_add(val):
        a('v_mov_b32 v10, %d' % val); a('s_mov_b64 exec, 1'); a('ds_add_u32 v15, v10'); a('s_mov_b64 exec, -1')
    def SETA(full=True):
        a('s_and_b32 s32, s3, 3'); a('s_lshr_b32 s33, s3, 2'); a('s_lshl_b32 s33, s33, 4'); a('s_add_u32 s33, s33, s32')
        a('v_and_b32 v8, 12, v4'); a('v_bfe_u32 v9, v4, 1, 1'); a('v_lshl_add_u32 v8, v9, 5, v8'); a('v_add_u32 v8, s33, v8')
        a('v_cvt_f32_u32 v8, v8'); a('v_and_b32 v12, 1, v1'); a('v_cvt_f32_u32 v9, v12'); a('v_lshlrev_b32 v13, 2, v5'); a('v_cvt_f32_u32 v10, v13')
        a('v_mul_f32 v11, %s, v8' % fh(1 / 64)); a('v_mul_f32 v9, %s, v9' % fh(0.25)); a('v_fma_f32 v9, v11, v10, v9')
        TT = XAC
        angles(11, 9, [0, 1, 2, 3], TT + 24)
        a('v_mul_f32 v11, %s, v8' % fh(1 / 2048)); a('v_lshlrev_b32 v9, 31, v1'); a('v_xor_b32 v11, v9, v11'); a('v_mul_f32 v9, v11, v10')
        angles(11, 9, [0, 1, 2, 3, 16, 17, 18, 19], TT + 8)
        for i in range(8): a('v_%s_f32 %s, %s' % ('sin' if i & 1 else 'cos', v(TT + i), v(TT + 24 + (i >> 1))))
        for i in range(8): a('v_sin_f32 %s, %s' % (v(TT + 16 + i), v(TT + 8 + i)))
        trig('cos', TT + 8, 8)
        pack(B1, TT, 24)
        if full:
            a('v_lshrrev_b32 v8, 3, v1'); a('v_mul_u32_u24 %s, %d, v8' % (v(vHL), PS)); a('v_and_b32 v9, %d, v1' % (3 if WLIN else 7)); a('v_lshl_add_u32 %s, v9, 4, %s' % (v(vHL), v(vHL)))
            if WLIN: a('v_bfe_u32 v9, v1, 2, 1'); a('v_lshl_add_u32 %s, v9, 13, %s' % (v(vHL), v(vHL)))
            a('s_mul_i32 s60, s3, %d' % (32 * PS)); a('s_lshl_b32 s32, s20, %d' % (6 if WLIN else 7)); a('s_add_u32 s60, s60, s32'); a('s_add_u32 s60, s60, 0x%x' % WOFF); a('s_add_u32 s61, s60, %d' % (8 * PS)); a('s_add_u32 s16, s60, %d' % (16 * PS)); a('s_add_u32 s17, s60, %d' % (24 * PS))
            a('v_lshlrev_b32 v8, 1, v8'); a('v_bfe_u32 v9, v1, 2, 1'); a('v_add_u32 v8, v8, v9'); a('s_lshl_b32 s32, s3, 2'); a('s_add_u32 s32, s32, 1')
            a('v_lshl_add_u32 v8, v8, 5, s32')
            a('v_cmp_eq_u32 vcc, 1, v12')
            a('v_bfe_u32 v9, v1, 1, 1'); a('v_mul_u32_u24 v9, %d, v9' % CPS); a('v_add_u32 v9, %d, v9' % AB)
            a('s_cmp_eq_u32 s3, 3'); a('s_cselect_b32 s32, 272, 0')
            for u, dst in enumerate(vA):
                if u == 3: a('v_mul_u32_u24 v10, s32, v3'); a('v_sub_u32 v8, v8, v10')
                if u: a('v_add_u32 v8, 1, v8')
                a('v_sub_u32 v10, 512, v8'); a('v_cndmask_b32 v10, v8, v10, vcc')
                if u == 3: a('v_lshrrev_b32 v11, 1, v10'); a('v_and_b32 v11, 256, v11'); a('v_sub_u32 v10, v10, v11')
                a('v_and_b32 v11, 16, v10'); a('v_lshl_add_u32 v11, v11, 6, v9'); a('v_lshrrev_b32 v12, 7, v10'); a('v_lshl_add_u32 v11, v12, 8, v11')
                a('v_and_b32 v12, 15, v10'); a('v_lshl_add_u32 v11, v12, 4, v11'); a('v_bfe_u32 v12, v10, 5, 2'); a('v_lshl_add_u32 %s, v12, 2, v11' % v(dst))
        a('s_and_b32 s32, s3, 3'); a('s_lshl_b32 s32, s32, 11'); a('s_add_u32 s32, s32, %d' % AB); a('v_add_u32 %s, s32, %s' % (v(vAR), v(vL16)))
        if not YLIN:
            a('v_add_u32 v8, s33, v13')
            a('v_sub_u32 v9, 32, v8'); a('v_min_u32 v9, v8, v9')
            a('v_and_b32 v10, 15, v8'); a('v_cmp_eq_u32 s[32:33], 0, v10')
            a('v_cmp_lt_u32 s[34:35], 16, v8')
            a('v_lshlrev_b32 v10, 10, v9'); a('v_subrev_u32 v10, 1024, v10'); a('v_mov_b32 v11, %d' % (124 * 128)); a('v_cmp_eq_u32 vcc, 0, v8'); a('v_cndmask_b32 v10, v10, v11, vcc')
            a('v_and_b32 v11, 3, v1'); a('v_lshl_add_u32 v10, v11, 4, v10')
            a('v_lshrrev_b32 v11, 2, v4'); a('v_lshlrev_b32 v12, 7, v11')
            for tau, dst in ((0, vY0), (1, vY1)):
                if tau: a('s_or_b64 s[34:35], s[34:35], s[32:33]'); a('v_add_u32 v12, 512, v12')
                a('v_sub_u32 v13, %d, v12' % (7 * 128 + 64))
                a('v_cndmask_b32 v13, v12, v13, s[34:35]'); a('v_add_u32 %s, v10, v13' % v(dst))
        a('s_mul_i32 s56, s20, %d' % PS); a('s_add_u32 s56, s56, 0x%x' % YOFF)
        if YLIN: a('s_lshl_b32 s32, s3, 11'); a('s_add_u32 s56, s56, s32')
        a('v_mov_b32 %s, 0x30003' % v(vMT))
        for k in range(4): a('v_mov_b32 %s, %s' % (v(vE + k), s(44 + k)))
        a('s_waitcnt lgkmcnt(0)')
    def SETB(sfx):
        a('v_sub_u32 v8, 15, v4'); a('v_min_u32 v8, v4, v8')
        a('v_and_b32 v9, 1, v8'); a('v_lshlrev_b32 v9, 5, v9'); a('v_lshrrev_b32 v10, 1, v8'); a('v_lshl_add_u32 v9, v10, 9, v9'); a('v_add_u32 v9, s25, v9')
        a('v_sub_u32 v10, 2048, v9'); a('v_cmp_lt_u32 s[34:35], 7, v4'); a('v_cndmask_b32 %s, v9, v10, s[34:35]' % v(vT))
        a('v_mov_b32 v9, v4'); a('v_mov_b32 v10, s20')
        a('s_cmp_lg_u32 s21, 0'); a('s_cbranch_scc0 fz_spec3%s' % sfx)
        a.lines.append('fz_spec3back%s:' % sfx)
        if YLIN:
            a('v_mul_u32_u24 v11, %d, v5' % (4 * PS)); a('v_and_b32 v10, 0xc0, %s' % v(vT)); a('v_add_u32 v11, v11, v10')
            for pos, wid, dst in ((0, 2, 11), (4, 1, 13), (8, 1, 10), (2, 2, 8), (9, 2, 4)):
                a('v_bfe_u32 v10, %s, %d, %d' % (v(vT), pos, wid)); a('v_lshl_add_u32 v11, v10, %d, v11' % dst)
            a('v_bfe_u32 v9, %s, 5, 1' % v(vT)); a('v_lshl_add_u32 %s, v9, 3, v11' % v(vYL))
        else:
            a('v_lshlrev_b32 v10, 7, v10'); a('v_lshl_add_u32 v10, v9, 3, v10'); a('v_mul_u32_u24 v11, %d, v5' % (4 * PS)); a('v_add_u32 %s, v10, v11' % v(vYL))
        a('v_and_b32 v9, 1, v9'); a('v_cmp_eq_u32 vcc, 1, v9')
        a('v_mov_b32 v9, s44'); a('v_mov_b32 v10, s46'); a('v_cndmask_b32 %s, v9, v10, vcc' % v(vYE))
        a('v_mov_b32 v9, s45'); a('v_mov_b32 v10, s47'); a('v_cndmask_b32 %s, v9, v10, vcc' % v(vYE + 1))
        a('s_lshl_b32 s32, s3, 2'); a('v_add_u32 v8, s32, v5')
        a('v_lshlrev_b32 v9, 6, v8')
        a('v_cmp_gt_u32 vcc, 16, v8'); a('v_cndmask_b32 v10, 0, 32, vcc'); a('v_add_u32 v10, v9, v10')
        a('v_sub_u32 v11, 2048, v10'); a('v_cmp_eq_u32 vcc, 16, v8'); a('v_cndmask_b32 v11, v11, 0, vcc')
        a('v_mov_b32 v12, 0xffff0000'); a('v_cndmask_b32 %s, -1, v12, vcc' % v(vZM))
        a('v_sub_u32 v12, %d, v9' % (2048 - 30))
        a('v_mul_u32_u24 v13, %d, v4' % RS)
        a('v_add_u32 %s, v13, v9' % v(vXR)); a('v_add_u32 %s, v13, v12' % v(vXM)); a('v_add_u32 %s, v13, v10' % v(vE0)); a('v_add_u32 v241, v13, v11')
        a('s_lshl_b32 s32, s3, 8'); a('s_add_u32 s32, s32, %d' % PR)
        a('v_lshlrev_b32 v9, 4, v4'); a('v_add_u32 v10, s32, v9'); a('v_add_u32 v11, %d, %s' % (TRASH, v(vL16)))
        a('v_cmp_gt_u32 vcc, 16, v1'); a('v_cndmask_b32 %s, v11, v10, vcc' % v(vPW))
        a('v_lshrrev_b32 v12, 2, v4'); a('v_cmp_eq_u32 vcc, v12, v5'); a('v_cndmask_b32 %s, v11, v10, vcc' % v(vPD))
        a('v_lshrrev_b32 v12, 5, v1'); a('v_lshl_add_u32 v10, v12, 10, v9'); a('v_add_u32 %s, %d, v10' % (v(vPR), PR))
        a('v_and_b32 v9, 1, v1'); a('v_cmp_eq_u32 s[28:29], 1, v9'); a('v_and_b32 v9, 2, v1'); a('v_cmp_eq_u32 s[30:31], 2, v9')
        a('s_lshl_b32 s37, s3, 2'); a('v_add_u32 v9, s37, v5'); a('v_mul_u32_u24 %s, %d, v9' % (v(vKA), KS))
        a('s_lshl_b32 s26, s20, %d' % KRL); a('s_add_u32 s26, s26, 0x%x' % KOFF)
        a('v_lshlrev_b32 %s, 4, v5' % v(vCA)); a('s_lshl_b32 s27, s20, 11'); a('s_lshl_b32 s37, s3, 8'); a('s_add_u32 s27, s27, s37'); a('s_add_u32 s27, s27, 0x%x' % COFF)
        a('v_sub_u32 %s, 2047, %s' % (v(vTK), v(vT)))
        srd(12, 2048 * 2048)
        a('s_mul_i32 s52, s3, %d' % (16 * PS)); a('s_add_u32 s52, s52, 0x%x' % YOFF)
        for jx in range(1, 4): a('s_add_u32 %s, s52, %d' % (s(52 + jx), jx * PS))
        a('s_mov_b32 s23, s63')
        if XB_:
            a('s_cmp_lg_u32 s3, 7'); a('s_cbranch_scc1 fz_nb%s' % sfx)
            a('s_lshl_b32 s37, s23, 7'); a('s_add_u32 s37, s37, 0x%x' % DLOFF); a('s_not_b32 s36, s40'); a('v_mov_b32 v10, s36'); a('v_lshlrev_b32 v11, 2, v2')
            a('buffer_store_dword v10, v11, s[4:7], s37 offen')
            a.lines.append('fz_nb%s:' % sfx)
        a('s_getreg_b32 s24, hwreg(HW_REG_XCC_ID)'); a('s_and_b32 s24, s24, 15')
        a('v_lshlrev_b32 v10, 4, v0'); a('v_min_u32 v10, 4336, v10'); a('v_add_u32 v10, %d, v10' % ACT)
        for k in range(4): a('v_mov_b32 %s, 0' % v(XAC + k))
        a('ds_write_b128 v10, %s' % v(XAC, 4))
    def SET2():
        XP = 116
        a('ds_read_b128 %s, %s' % (v(XP, 4), v(vXR))); a('ds_read_b128 %s, %s offset:16' % (v(XP + 4, 4), v(vXR)))
        a('ds_read_u16_d16_hi %s, %s' % (v(XD + 16), v(vM0m)))
        for e in range(1, 16): a('ds_read_u16_d16_hi %s, %s offset:%d' % (v(XD + 16 + e), v(vXM), 2 * (15 - e)))
        a('ds_read_u16_d16_hi %s, %s' % (v(XD), v(vE0)))
        a('v_mul_u32_u24 v13, %d, v4' % RS); a('v_subrev_u32 v13, %d, v13' % WR)
        for r, src in ((9, vXR), (10, vE0), (11, vM0m), (12, vXM)): a('v_sub_u32 %s, %s, v13' % (v(r), v(src)))
        a('s_mov_b32 s36, 0xffff0000')
        a('s_waitcnt lgkmcnt(0)')
        a('ds_read_b128 %s, v9' % v(WV, 4)); a('ds_read_b128 %s, v9 offset:16' % v(WV + 4, 4))
        a('ds_read_u16_d16 %s, v11' % v(WV + 8))
        for e in range(1, 16): a('ds_read_u16_d16%s %s, v12 offset:%d' % ('_hi' if e & 1 else '', v((XP + 8 if e & 1 else WV + 8) + (e >> 1)), 2 * (15 - e)))
        a('ds_read_u16_d16 v13, v10')
        for k in range(8):
            if k: a('v_lshlrev_b32 %s, 16, %s' % (v(XD + 2 * k), v(XP + k)))
            a('v_and_b32 %s, s36, %s' % (v(XD + 2 * k + 1), v(XP + k)))
        a('v_cmp_eq_u32 vcc, 1, v4'); a('v_mov_b32 v9, s42'); a('v_cndmask_b32 v9, 0, v9, vcc')
        for k in range(4): a('v_mov_b32 %s, s42' % v(XP + k))
        a('v_cmp_eq_u32 vcc, 0, v4')
        a('s_waitcnt lgkmcnt(0)')
        a('v_and_or_b32 %s, %s, s36, v13' % (v(WV), v(WV)))
        for k in range(8): a('v_or_b32 %s, %s, %s' % (v(WV + 8 + k), v(WV + 8 + k), v(XP + 8 + k)))
        for k in range(16): a('v_cndmask_b32 %s, v9, %s, vcc' % (v(WV + k), v(WV + k)))
        for q in range(4): a('v_mfma_f32_16x16x32_bf16 %s, %s, %s, %s' % (v(XP + 4, 4), v(WV + 4 * q, 4), v(XP, 4), v(XP + 4, 4) if q else '0'))
        a('ds_write_b32 %s, %s offset:12' % (v(vPW), v(XP + 4)))
    a('v_mov_b32 v15, %d' % SYNC); a('v_mov_b32 v10, 0'); a('ds_write_b32 v15, v10')
    est(8)
    a('s_waitcnt lgkmcnt(0)')
    a('s_barrier')
    est(10)
    a('v_lshlrev_b32 %s, 31, v1' % v(vSG)); a('v_lshrrev_b32 v10, 16, %s' % v(vSG)); a('v_or_b32 %s, %s, v10' % (v(vSG), v(vSG)))
    a('v_mov_b32 %s, 0xfffcfffc' % v(vM))
    a('v_mov_b32 v242, 0xffff0000'); a('s_mov_b32 s42, 0x3f803f80')
    a('s_cmp_lg_u32 s57, 0'); a('s_cbranch_scc1 fz_nc1')
    for q in range(14): a('ds_read_b128 %s, v6 offset:%d' % (v(F1 + 4 * q, 4), 1024 * q))
    a('v_lshlrev_b32 v7, 9, v3'); a('v_bfe_u32 v10, v1, 2, 2'); a('v_lshl_add_u32 v7, v10, 6, v7')
    a('v_and_b32 v10, 1, v5'); a('v_lshl_add_u32 v7, v10, 5, v7'); a('v_and_b32 v10, 3, v1'); a('v_lshl_add_u32 v7, v10, 3, v7'); a('v_add_u32 v7, s31, v7')
    a('v_lshlrev_b32 v8, 9, v3'); a('v_lshl_add_u32 v8, v2, 1, v8'); a('v_sub_u32 v9, 2048, v8'); a('v_and_b32 v9, 2047, v9'); a('v_add_u32 v9, s30, v9')
    a('s_add_u32 s32, s30, %d' % (2048 - 64 * 23)); a('v_sub_u32 v8, s32, v8')
    a('v_cmp_eq_u32 vcc, 0, v2'); a('v_cndmask_b32 %s, 0, -2.0, vcc' % v(vM0))
    a('v_mov_b32 %s, %s' % (v(vM0 + 1), fh(256e-5)))
    a('s_lshr_b32 s32, s24, 1'); a('s_lshl_b32 s32, s32, 6'); a('s_mul_i32 s33, s3, 2304'); a('s_add_u32 s32, s32, s33'); a('s_add_u32 s32, s32, %d' % SB)
    a('v_lshl_add_u32 v10, v3, 1, v1'); a('v_lshlrev_b32 v10, 4, v10'); a('v_add_u32 %s, s32, v10' % v(vSW))
    a('v_bfe_u32 v10, v0, 2, 1'); a('v_mul_u32_u24 v10, 34, v10'); a('v_lshrrev_b32 v11, 4, v0'); a('v_add_u32 v10, v10, v11'); a('v_lshlrev_b32 v10, 4, v10')
    a('v_bfe_u32 v11, v0, 3, 1'); a('v_lshl_add_u32 v10, v11, 3, v10'); a('v_bfe_u32 v11, v0, 1, 1'); a('v_lshl_add_u32 v10, v11, 2, v10')
    a('v_and_b32 v12, 1, v0')
    a('s_mov_b32 s33, %d' % (4 * 2304)); a('s_cmp_eq_u32 s2, %d' % SPID)
    for k in range(4):
        pm = 1152 if k >= 2 else 0
        o0 = k * 2304 + pm + (64 if k >= 2 else 0); o1 = (3 - k) * 2304 + pm + (64 if (3 - k) >= 2 else 0)
        a('s_cselect_b32 s32, s33, 0x%x' % ((o1 - o0) & 0xffffffff))
        a('v_mul_lo_u32 v11, v12, s32'); a('v_add_u32 %s, v10, v11' % v(vSR + k)); a('v_add_u32 %s, %d, %s' % (v(vSR + k), SB + o0, v(vSR + k)))
    if WLIN: a('v_lshlrev_b32 %s, 4, v0' % v(vWST))
    else: a('v_lshrrev_b32 v10, 2, v0'); a('v_and_b32 v11, 3, v0'); a('v_lshlrev_b32 v11, 4, v11'); a('v_lshl_add_u32 %s, v10, 7, v11' % v(vWST))
    a('s_mul_i32 s52, s20, %d' % PS); a('s_lshl_b32 s33, s59, %d' % (13 if WLIN else 6)); a('s_add_u32 s52, s52, s33'); a('s_add_u32 s52, s52, 0x%x' % WOFF)
    a('s_add_u32 s53, s52, %d' % (4096 if WLIN else 8192))
    def tags2():
        tags()
        a('s_mov_b32 s38, 0x404'); a('s_cmp_eq_u32 s2, %d' % SPID); a('s_cselect_b32 s39, 8, 4'); a('s_cselect_b32 s38, 8, s38')
    est(9)
    for i in range(4): a('v_mov_b32 %s, 0' % v(ST + i))
    a('s_setprio 3')
    st()
    if '--early' in OPT: a('s_waitcnt lgkmcnt(0)'); est(11)
    a('s_waitcnt vmcnt(0) lgkmcnt(0)')
    st()
    for jx in range(2):
        for hh in range(2): a('ds_read_b64_tr_b16 %s, v7 offset:%d' % (v(XA + 4 * jx + 2 * hh, 2), 1024 * jx + 256 * hh))
    for jx in range(2):
        for i in range(8):
            op = 'ds_read_u16_d16_hi' if i & 1 else 'ds_read_u16_d16'
            dst = (H if i & 1 else XB) + 4 * jx + (i >> 1)
            if jx == 0 and i == 0: a('%s %s, v9' % (op, v(dst)))
            else: a('%s %s, v8 offset:%d' % (op, v(dst), 64 * (23 - 16 * jx - i)))
        if jx == 0: a('s_waitcnt lgkmcnt(8)')
        if jx == 0:
            for j2 in range(2): a('v_mfma_f32_32x32x16_bf16 %s, %s, %s, %s' % (v(XAC, 16), v(XA + 4 * j2, 4), v(F1 + 4 * j2, 4), v(XAC, 16) if j2 else '0'))
    for i in range(8):
        a('v_dot2_f32_bf16 %s, %s, s42, %s' % (v(ST), v(XA + i), v(ST))); a('v_dot2_f32_bf16 %s, %s, %s, %s' % (v(ST + 1), v(XA + i), v(XA + i), v(ST + 1)))
    a('s_waitcnt lgkmcnt(0)')
    for i in range(8): a('v_or_b32 %s, %s, %s' % (v(XB + i), v(XB + i), v(H + i)))
    for j2 in range(2): a('v_mfma_f32_32x32x16_bf16 %s, %s, %s, %s' % (v(XBC, 16), v(XB + 4 * j2, 4), v(F1 + 4 * j2, 4), v(XBC, 16) if j2 else '0'))
    for i in range(8):
        a('v_dot2_f32_bf16 %s, %s, s42, %s' % (v(ST + 2), v(XB + i), v(ST + 2))); a('v_dot2_f32_bf16 %s, %s, %s, %s' % (v(ST + 3), v(XB + i), v(XB + i), v(ST + 3)))
    est(12)
    a('v_permlane32_swap_b32 %s, %s' % (v(ST), v(ST + 2))); a('v_permlane32_swap_b32 %s, %s' % (v(ST + 1), v(ST + 3)))
    a('v_add_f32 %s, %s, %s' % (v(ST), v(ST), v(ST + 2))); a('v_add_f32 %s, %s, %s' % (v(ST + 1), v(ST + 1), v(ST + 3)))
    a('v_permlane16_swap_b32 %s, %s' % (v(ST), v(ST + 1)))
    a('v_add_f32 %s, %s, %s' % (v(ST), v(ST), v(ST + 1)))
    for pat in ['quad_perm:[1,0,3,2]', 'quad_perm:[2,3,0,1]', 'row_half_mirror', 'row_mirror']:
        a('v_add_f32_dpp %s, %s, %s %s %s' % (v(ST), v(ST), v(ST), pat, DPPF))
    a('s_mov_b32 s43, %s' % fh(256 / 1024))
    a('v_mov_b32 %s, %s' % (v(ST + 1), v(ST)))
    a('v_permlane16_swap_b32 %s, %s' % (v(ST), v(ST + 1)))
    a('v_mul_f32 %s, %s, %s' % (v(ST), fh(16 / 1024), v(ST)))
    a('v_fma_f32 %s, %s, s43, %s' % (v(ST + 1), v(ST + 1), v(vM0 + 1)))
    a('v_fma_f32 %s, -%s, %s, %s' % (v(ST + 1), v(ST), v(ST), v(ST + 1)))
    a('v_rsq_f32 %s, %s' % (v(ST + 1), v(ST + 1)))
    a('v_mul_f32 %s, %s, %s' % (v(ST), v(ST), v(ST + 1)))
    a('v_readlane_b32 s32, %s, 0' % v(ST + 1)); a('v_readlane_b32 s34, %s, 32' % v(ST + 1)); a('v_readlane_b32 s36, %s, 0' % v(ST)); a('v_readlane_b32 s37, %s, 32' % v(ST))
    a('v_mul_f32 %s, s36, %s' % (v(ST + 4), v(vM0))); a('v_fmac_f32 %s, s37, %s' % (v(ST + 4), v(vM0)))
    for i in range(8): a('v_pk_fma_f32 %s, %s, s[32:33], %s op_sel_hi:[1,0,0]' % (v(XAC + 2 * i, 2), v(XAC + 2 * i, 2), v(ST + 4, 2)))
    for i in range(8): a('v_pk_fma_f32 %s, %s, s[34:35], %s op_sel_hi:[1,0,1]' % (v(XAC + 2 * i, 2), v(XBC + 2 * i, 2), v(XAC + 2 * i, 2)))
    est(13)
    pack(H, XAC, 16)
    for i in range(8): a('v_mov_b32_dpp %s, %s %s' % (v(TP + i), v(H + i), X1))
    D3C, D3S = XBC, XBC + 4
    for i in range(8): a('v_pk_mul_f16 %s, %s, %s' % (v(T + i), v(H + i), v(TC + i)))
    for j2 in range(2):
        a('v_mfma_f32_16x16x32_f16 %s, %s, %s, %s' % (v(D3C, 4), v(H + 4 * j2, 4), v(B3C + 4 * j2, 4), v(D3C, 4) if j2 else '0'))
        for i in range(4): a('v_pk_fma_f16 %s, %s, %s, %s' % (v(T + 4 * j2 + i), v(TP + 4 * j2 + i), v(TS + 4 * j2 + i), v(T + 4 * j2 + i)))
    a('v_mfma_f32_32x32x16_f16 %s, %s, %s, 0' % (v(XAC, 16), v(T, 4), v(C2, 4)))
    for i in range(4): a('v_xor_b32_dpp %s, %s, %s %s' % (v(TP + i), v(T + i), v(vSG), X1))
    a('v_mfma_f32_32x32x16_f16 %s, %s, %s, %s' % (v(XAC, 16), v(T + 4, 4), v(C2 + 4, 4), v(XAC, 16)))
    for i in range(4, 8): a('v_xor_b32_dpp %s, %s, %s %s' % (v(TP + i), v(T + i), v(vSG), X1))
    for j2 in range(2): a('v_mfma_f32_32x32x16_f16 %s, %s, %s, %s' % (v(XAC, 16), v(TP + 4 * j2, 4), v(S2 + 4 * j2, 4), v(XAC, 16)))
    for j2 in range(2): a('v_mfma_f32_16x16x32_f16 %s, %s, %s, %s' % (v(D3S, 4), v(H + 4 * j2, 4), v(B3S + 4 * j2, 4), v(D3S, 4) if j2 else '0'))
    est(14)
    tags2()
    a('s_mov_b64 vcc, 0xffff')
    for p in (7, 6, 5, 4, 3, 2, 1): a('v_cvt_pk_f16_f32 %s, %s, %s' % (v(H + p), v(XAC + 2 * p), v(XAC + 2 * p + 1)))
    a('v_cndmask_b32 %s, %s, %s, vcc' % (v(XAC), v(XAC), v(D3C + 1))); a('v_cndmask_b32 %s, %s, %s, vcc' % (v(XAC + 1), v(XAC + 1), v(D3S + 1)))
    for p in (3, 2, 1, 0):
        if p == 0: a('v_cvt_pk_f16_f32 %s, %s, %s' % (v(H), v(XAC), v(XAC + 1)))
        a('v_pk_add_f16 %s, %s, %s op_sel:[0,1] op_sel_hi:[1,0] neg_lo:[0,1]' % (v(T + p), v(H + 2 * p), v(H + 2 * p + 1)))
        a('v_pk_add_f16 %s, %s, %s op_sel:[0,1] op_sel_hi:[1,0] neg_hi:[1,0]' % (v(T + 4 + p), v(H + 2 * p), v(H + 2 * p + 1)))
    a('ds_write_b128 %s, %s' % (v(vSW), v(T, 4))); a('ds_write_b128 %s, %s offset:1152' % (v(vSW), v(T + 4, 4)))
    a('s_waitcnt lgkmcnt(0)')
    sync_add(1)
    a('s_cmp_gt_u32 s3, 3'); a('s_cbranch_scc1 fz_bsp0')
    a.lines.append('fz_sy:')
    a('ds_read_b32 v10, v15')
    a('s_waitcnt lgkmcnt(0)')
    a('v_and_b32 v10, 0xff, v10'); a('v_cmp_ne_u32 vcc, s39, v10')
    a('s_cbranch_vccnz fz_sy')
    st.n = 4; st()
    Z = XAC
    for rd in range(2):
        for k in range(4): a('ds_read_b32 %s, %s offset:%d' % (v(Z + 4 * rd + k), v(vSR + k), 256 * rd))
    for rd in range(2):
        z = Z + 4 * rd; u = Z + 8 + 8 * rd; o = u + 4
        a('s_waitcnt lgkmcnt(%d)' % (4 - 4 * rd))
        a('v_pk_add_f16 %s, %s, %s' % (v(u), v(z), v(z + 2))); a('v_pk_add_f16 %s, %s, %s' % (v(u + 2), v(z + 1), v(z + 3)))
        a('v_pk_add_f16 %s, %s, %s neg_lo:[0,1] neg_hi:[0,1]' % (v(u + 1), v(z), v(z + 2))); a('v_pk_add_f16 %s, %s, %s neg_lo:[0,1] neg_hi:[0,1]' % (v(u + 3), v(z + 1), v(z + 3)))
        a('v_pk_add_f16 %s, %s, %s' % (v(o), v(u), v(u + 2))); a('v_pk_add_f16 %s, %s, %s neg_lo:[0,1] neg_hi:[0,1]' % (v(o + 2), v(u), v(u + 2)))
        a('v_pk_add_f16 %s, %s, %s op_sel:[0,1] op_sel_hi:[1,0] neg_hi:[0,1]' % (v(o + 1), v(u + 1), v(u + 3)))
        a('v_pk_add_f16 %s, %s, %s op_sel:[0,1] op_sel_hi:[1,0] neg_lo:[0,1]' % (v(o + 3), v(u + 1), v(u + 3)))
        for k in range(4): a('v_add_u32 %s, 0x20002, %s' % (v(o + k), v(o + k)))
        for k in range(4): a('v_and_or_b32 %s, %s, %s, %s' % (v(o + k), v(o + k), v(vM), s(44 + k)))
        a('buffer_store_dwordx4 %s, %s, s[4:7], %s offen sc1' % (v(o, 4), v(vWST), s(52 + rd)))
    a('s_cmp_lg_u32 s59, 0'); a('s_cbranch_scc1 ffn')
    st()
    SETA()
    a('s_waitcnt vmcnt(0)')
    st()
    R = XAC
    def h1i(u): a('buffer_load_dwordx4 %s, %s, s[4:7], %s offen sc1' % (v(R + 4 * u, 4), v(vHL), s((60, 61, 16, 17)[u])))
    def h1c(u):
        for k in range(4): a('v_xor_b32 %s, %s, %s' % (v(R + 4 * u + k), v(vE + k), v(R + 4 * u + k)))
        a('v_or3_b32 v10, %s, %s, %s' % (v(R + 4 * u), v(R + 4 * u + 1), v(R + 4 * u + 2)))
        a('v_bitop3_b32 v10, v10, %s, %s bitop3:0xa8' % (v(R + 4 * u + 3), v(vMT)))
        a('v_cmp_ne_u32 vcc, 0, v10')
    def h1a(u):
        for k in range(4): a('ds_write_b32 %s, %s offset:%d' % (v(vA[u]), v(R + 4 * u + k), 2048 * k))
    if EP:
        a('s_bitcmp1_b32 s2, 2'); a('s_cbranch_scc1 fz_p1_ok')
        a('s_add_u32 s32, s60, %d' % ((((EP - 1) + POFS) & 7) * PS + 64 * (EP > 8))); a('v_mov_b32 v9, 0')
        a.lines.append('fz_p1:')
        a('buffer_load_dword v10, v9, s[4:7], s32 offen sc1')
        a('s_waitcnt vmcnt(0)')
        a('v_xor_b32 v10, %s, v10' % v(vE)); a('v_and_b32 v10, %s, v10' % v(vMT)); a('v_cmp_ne_u32 vcc, 0, v10')
        poll_retry('fz_p1')
        a('s_mov_b32 s58, 0')
    mst(1)
    for u in range(4): h1i(u)
    prog_poll('fz_h1', 4, h1i, h1c, h1a)
    mst(2)
    a('s_waitcnt lgkmcnt(0)')
    a('s_setprio 0')
    a.lines.append('fz_hb:')
    a('s_barrier')
    st.n = 7; st()
    A2, V2, H2, T2, TP2, D2 = 104, 120, 136, 144, 152, 104
    for cp in range(2):
        for hf in range(2): a('ds_read_b128 %s, %s offset:%d' % (v(A2 + 8 * cp + 4 * hf, 4), v(vAR), CPS * cp + 1024 * hf))
    for q in range(4): a('ds_read_b128 %s, v6 offset:%d' % (v(CQ + 4 * q, 4), 1024 * (14 + q)))
    for q in range(4):
        a('s_waitcnt lgkmcnt(%d)' % (7 - q))
        a('v_mfma_f32_16x16x32_f16 %s, %s, %s, 0' % (v(V2 + 4 * q, 4), v(A2 + 4 * q, 4), v(B1, 4)))
    a('s_waitcnt lgkmcnt(0)')
    for cp in range(2):
        pack(H2 + 4 * cp, V2 + 8 * cp, 8)
    for cp in range(2):
        h, t, tp = H2 + 4 * cp, T2 + 4 * cp, TP2 + 4 * cp
        for i in range(4): a('v_pk_mul_f16 %s, %s, %s' % (v(t + i), v(h + i), v(TC2 + i)))
        for i in range(4): a('v_mov_b32_dpp %s, %s %s' % (v(tp + i), v(h + i), X1))
        for i in range(4): a('v_pk_fma_f16 %s, %s, %s, %s' % (v(t + i), v(tp + i), v(TS2 + i), v(t + i)))
        for tau in range(2): a('v_mfma_f32_16x16x32_f16 %s, %s, %s, 0' % (v(D2 + 8 * cp + 4 * tau, 4), v(t, 4), v(CQ + 8 * tau, 4)))
        for i in range(4): a('v_xor_b32_dpp %s, %s, %s %s' % (v(tp + i), v(t + i), v(vSG), X1))
        for tau in range(2): a('v_mfma_f32_16x16x32_f16 %s, %s, %s, %s' % (v(D2 + 8 * cp + 4 * tau, 4), v(tp, 4), v(CQ + 8 * tau + 4, 4), v(D2 + 8 * cp + 4 * tau, 4)))
    O2 = V2
    for tau in range(2):
        for cp in range(2):
            for b in range(2): a('v_cvt_pk_f16_f32 %s, %s, %s' % (v(O2 + 4 * tau + 2 * b + cp), v(D2 + 8 * cp + 4 * tau + 2 * b), v(D2 + 8 * cp + 4 * tau + 2 * b + 1)))
        for k in range(4): a('v_add_u32 %s, 0x20002, %s' % (v(O2 + 4 * tau + k), v(O2 + 4 * tau + k)))
        for k in range(4): a('v_and_or_b32 %s, %s, %s, %s' % (v(O2 + 4 * tau + k), v(O2 + 4 * tau + k), v(vM), s(44 + k)))
        if YLIN: a('buffer_store_dwordx4 %s, %s, s[4:7], s56 offen offset:%d sc1' % (v(O2 + 4 * tau, 4), v(vL16), 1024 * tau))
        else: a('buffer_store_dwordx4 %s, %s, s[4:7], s56 offen sc1' % (v(O2 + 4 * tau, 4), v(vY0 + tau)))
    st()
    a('s_cmp_lg_u32 s57, 0'); a('s_cbranch_scc1 fz_nc3')
    SETB('a')
    a('s_mov_b32 s58, 0')
    a('s_waitcnt vmcnt(0)')
    st()
    YD, YM, HP, Q1, Q2 = 104, 112, 120, 136, 140
    def h2i(jx): a('buffer_load_dwordx2 %s, %s, s[4:7], %s offen sc1' % (v(YD + 2 * jx, 2), v(vYL), s(52 + jx)))
    def h2load():
        for jx in range(4): h2i(jx)
    h2load()
    SET2()
    a.flush(); a('s_branch fz_h2c')
    a.lines.append('fz_h2:')
    h2load()
    a.lines.append('fz_h2c:')
    mst(3)
    a('s_mov_b32 s36, %s' % fh(128.0))
    def h2c(jx):
        for k in range(2): a('v_xor_b32 %s, %s, %s' % (v(YD + 2 * jx + k), v(vYE + k), v(YD + 2 * jx + k)))
        a('v_bitop3_b32 v9, %s, %s, %s bitop3:0xa8' % (v(YD + 2 * jx), v(YD + 2 * jx + 1), v(vMT)))
        a('v_cmp_ne_u32 vcc, 0, v9')
    def mix(e, src): a('v_fma_mix_f32 %s, %s, s36, %s op_sel:[%d,0,0] op_sel_hi:[1,0,0]' % (v(XD + e), v(src), v(XD + e), e & 1))
    def smf(q):
        a('v_mfma_f32_16x16x32_bf16 %s, %s, %s, %s' % (v(Q1, 4), v(HP + 4 * q, 4), v(HP + 4 * q, 4), v(Q1, 4) if q else '0'))
        a('v_mfma_f32_16x16x32_bf16 %s, %s, %s, %s' % (v(Q2, 4), v(WV + 4 * q, 4), v(HP + 4 * q, 4), v(Q2, 4) if q else '0'))
    def h2a(jx):
        if jx == 3: st()
        for k in range(2 * jx, 2 * jx + 2): a('v_mov_b32_dpp %s, %s row_mirror %s' % (v(YM + k), v(YD + k), DPPF))
        a('s_cmp_eq_u32 s2, %d' % SPID); a('s_cbranch_scc1 fz_spec4%d' % jx)
        a.lines.append('fz_spec4back%d:' % jx)
        for e in range(4 * jx, 4 * jx + 4): mix(e, YD + (e >> 1))
        if jx == 0: a('v_and_b32 %s, %s, %s' % (v(YM), v(vZM), v(YM)))
        for e in range(4 * jx, 4 * jx + 4): mix(16 + e, YM + (e >> 1))
        pack(HP + 2 * jx, XD + 4 * jx, 4, 'bf16'); pack(HP + 8 + 2 * jx, XD + 16 + 4 * jx, 4, 'bf16')
        if jx & 1: smf(jx >> 1); smf(2 + (jx >> 1))
    prog_poll('fz_h2', 4, h2i, h2c, h2a)
    a('v_cndmask_b32 v9, %s, %s, s[28:29]' % (v(Q1), v(Q1 + 1))); a('v_cndmask_b32 v10, %s, %s, s[28:29]' % (v(Q1 + 2), v(Q1 + 3)))
    a('ds_write_b64 %s, %s' % (v(vPW), v(Q2, 2)))
    a('v_cndmask_b32 v9, v9, v10, s[30:31]')
    a('ds_write_b32 %s, v9 offset:8' % v(vPD))
    a('s_cmp_gt_u32 s3, 3'); a('s_cbranch_scc1 fz_lp'); a('s_setprio 2')
    a.lines.append('fz_lp:')
    mst(4)
    a('s_waitcnt lgkmcnt(0)'); a('s_barrier')
    mst(12)
    P = 144
    for q in range(4): a('ds_read_b128 %s, %s offset:%d' % (v(P + 4 * q, 4), v(vPR), 256 * q))
    a('s_waitcnt lgkmcnt(2)')
    for h in range(2): a('v_pk_add_f32 %s, %s, %s' % (v(P + 2 * h, 2), v(P + 2 * h, 2), v(P + 4 + 2 * h, 2)))
    a('s_waitcnt lgkmcnt(0)')
    for h in range(2): a('v_pk_add_f32 %s, %s, %s' % (v(P + 8 + 2 * h, 2), v(P + 8 + 2 * h, 2), v(P + 12 + 2 * h, 2)))
    for h in range(2): a('v_pk_add_f32 %s, %s, %s' % (v(P + 2 * h, 2), v(P + 2 * h, 2), v(P + 8 + 2 * h, 2)))
    for k in range(4): a('v_mov_b32 %s, %s' % (v(P + 4 + k), v(P + k)))
    for k in range(4): a('v_permlane32_swap_b32 %s, %s' % (v(P + k), v(P + 4 + k)))
    for h in range(2): a('v_pk_add_f32 %s, %s, %s' % (v(P + 2 * h, 2), v(P + 2 * h, 2), v(P + 4 + 2 * h, 2)))
    mst(13)
    KR = 152
    a('v_mul_f32 %s, %s, %s' % (v(P + 1), fh(-1 / 1024), v(P + 1)))
    a('v_mul_f32 %s, %s, %s' % (v(P + 2), fh(1 / 1024), v(P + 2)))
    a('v_fma_f32 %s, -%s, %s, %s' % (v(P + 2), v(P + 1), v(P + 1), v(P + 2)))
    a('v_cvt_pk_bf16_f32 %s, 0, %s' % (v(KR + 1), v(P + 1)))
    rbf(a, P + 2); a('v_add_f32 %s, %s, %s' % (v(P + 2), fh(1e-5), v(P + 2))); rbf(a, P + 2)
    a('v_sqrt_f32 %s, %s' % (v(P + 2), v(P + 2)))
    a('v_fmac_f32 %s, %s, %s' % (v(P), v(KR + 1), v(P + 3)))
    rbf(a, P + 2); a('v_rcp_f32 %s, %s' % (v(KR + 2), v(P + 2)))
    a('v_mov_b32 %s, s40' % v(KR + 3))
    a('v_mul_f32 %s, %s, %s' % (v(P), v(P), v(KR + 2))); rbf(a, P)
    a('v_ashrrev_i32 %s, 31, %s' % (v(P + 1), v(P))); a('v_or_b32 %s, 0x80000000, %s' % (v(P + 1), v(P + 1)))
    a('v_bitop3_b32 %s, %s, %s, %s bitop3:0x28' % (v(KR), v(P), v(P + 1), v(242)))
    a('v_or_b32 %s, %s, %s' % (v(KR), v(KR), v(vTK)))
    a('v_max_u32_dpp %s, %s, %s row_ror:1 %s' % (v(P), v(KR), v(KR), DPPF))
    for k in (2, 4, 8): a('v_max_u32_dpp %s, %s, %s row_ror:%d %s' % (v(P), v(P), v(P), k, DPPF))
    a('v_cmp_eq_u32 vcc, %s, %s' % (v(P), v(KR)))
    a('v_or_b32 %s, s24, %s' % (v(KR + 1), v(KR + 1)))
    a('s_mov_b64 exec, vcc')
    if DB & 8: a('s_bitcmp1_b32 s3, 1'); a('s_cbranch_scc1 fz_nk1')
    a('buffer_store_dwordx4 %s, %s, s[4:7], s26 offen sc1' % (v(KR, 4), v(vKA)))
    if DB & 8: a.lines.append('fz_nk1:')
    if DB & 2:
        if DB & 4: a('s_cmp_gt_u32 s3, 3'); a('s_cbranch_scc1 fz_nk2')
        a('s_add_u32 s26, s26, %d' % (32 * KS)); a('buffer_store_dwordx4 %s, %s, s[4:7], s26 offen sc1' % (v(KR, 4), v(vKA)))
        if DB & 4: a.lines.append('fz_nk2:')
    for q in range(4): a('buffer_store_dwordx4 %s, %s, s[4:7], s27 offen offset:%d sc1' % (v(HP + 4 * q, 4), v(vCA), 64 * q))
    a('s_mov_b64 exec, -1')
    st()
    a('s_setprio 0')
    a('s_ff1_i32_b64 s37, vcc')
    a('v_add_f32 %s, 1.0, %s' % (v(P), v(KR + 2))); a('v_and_b32 %s, v242, %s' % (v(P + 2), v(KR + 1))); a('v_mul_f32 %s, %s, %s' % (v(P + 2), v(P + 2), v(KR + 2)))
    for k in range(16): a('v_pk_fma_f32 %s, %s, %s, %s op_sel_hi:[1,0,0]' % (v(XD + 2 * k, 2), v(XD + 2 * k, 2), v(P, 2), v(P + 2, 2)))
    OP = 104
    pack(OP, XD, 32, 'bf16')
    a('ds_write_b128 %s, %s' % (v(vXR), v(OP, 4))); a('ds_write_b128 %s, %s offset:16' % (v(vXR), v(OP + 4, 4)))
    a('s_waitcnt lgkmcnt(0)'); a('s_barrier')
    def wtail():
        if W3 < 8 or WL:
            a('s_cmp_lt_u32 s3, 4'); a('s_cbranch_scc1 fz_now4')
            if WL: a('s_bitcmp0_b32 s2, 2'); a('s_cbranch_scc1 fz_now4')
            wdload(8 - WL if WL else W3, 8)
            a.lines.append('fz_now4:')
    if WT == 1: wtail()
    a('ds_write_b16 %s, %s' % (v(vE0), v(OP))); a('ds_write_b16 %s, %s' % (v(vM0m), v(OP + 8)))
    for e in range(1, 16): a('ds_write_b16%s %s, %s offset:%d' % ('_d16_hi' if e & 1 else '', v(vXM), v(OP + 8 + (e >> 1)), 2 * (15 - e)))
    a('s_lshl_b32 s32, s3, 1'); a('s_add_u32 s33, s32, 1')
    a('v_readlane_b32 s34, %s, s32' % v(vT)); a('v_readlane_b32 s35, %s, s33' % v(vT))
    a('s_mul_i32 s38, s3, %d' % (2 * RS)); a('v_add_u32 v9, s38, %s' % v(vL16))
    a('s_lshl_b32 s34, s34, 11'); a('s_lshl_b32 s35, s35, 11')
    a('s_waitcnt lgkmcnt(0)'); a('s_barrier')
    for q in range(4): a('ds_read_b128 %s, v9 offset:%d' % (v(OP + 4 * q, 4), RS * (q >> 1) + 1024 * (q & 1)))
    if WT == 2: wtail()
    OUTF = '' if '--outplain' in OPT else (' nt' if '--outnt' in OPT else ' sc1 nt' if '--outsn' in OPT else ' sc1')
    a('s_lshr_b32 s59, s37, 1'); a('s_xor_b32 s18, s59, 1'); a('s_and_b32 s18, s18, 3')
    if '--wdearly' not in OPT:
        if OLATE:
            a('s_cmp_eq_u32 s59, s3'); a('s_cselect_b32 s38, 112, s23'); a('s_cmp_lt_u32 s38, 112'); a('s_cbranch_scc1 fz_sk1')
        else:
            a('s_cmp_lt_u32 s23, 112'); a('s_cselect_b32 s38, s18, 8'); a('s_cmp_eq_u32 s38, s3'); a('s_cbranch_scc1 fz_sk1')
    if CL: a('s_cmp_eq_u32 s59, s3'); a('s_cbranch_scc1 fz_sk1')
    a('s_waitcnt lgkmcnt(0)')
    for r in range(2):
        a('s_cmp_eq_u32 s37, %s' % s(32 + r)); a('s_cbranch_scc1 fz_sk%d' % r)
        for q in range(0 if '--xnoout' in OPT else 2): a('buffer_store_dwordx4 %s, %s, s[12:15], %s offen offset:%d%s' % (v(OP + 8 * r + 4 * q, 4), v(vL16), s(34 + r), 1024 * q, OUTF))
        a.lines.append('fz_sk%d:' % r)
    a('v_and_b32 v15, 7, v4'); a('v_mul_u32_u24 v15, 544, v15'); a('v_lshl_add_u32 v15, v5, 4, v15'); a('v_add_u32 v15, %d, v15' % ACT)
    if TWO:
        a('s_and_b32 s60, s2, 7'); a('s_lshr_b32 s61, s2, 3')
        a('s_cmp_lt_u32 s3, 4'); a('s_cselect_b32 s63, 8, s60'); a('s_lshl_b32 s63, s63, 2'); a('s_and_b32 s38, s3, 3'); a('s_add_u32 s63, s63, s38')
        a('s_lshl_b32 s63, s63, 6'); a('s_add_u32 s63, s63, s61'); a('s_lshl_b32 s63, s63, 8'); a('s_add_u32 s63, s63, 0x%x' % POFF)
        a('v_lshlrev_b32 v13, 4, v4'); a('v_lshl_add_u32 v102, v5, 12, v13'); a('v_add_u32 v103, 8192, v102'); a('v_mov_b32 v101, %d' % (ACT + 4352))
    elif PIN:
        a('s_lshl_b32 s63, s23, 5'); a('s_and_b32 s38, s3, 3'); a('s_mul_i32 s38, s38, %d' % (32 * PIS)); a('s_add_u32 s63, s63, s38'); a('s_add_u32 s63, s63, 0x%x' % POFF)
        a('v_lshrrev_b32 v13, 1, v1'); a('v_mul_u32_u24 v13, %d, v13' % PIS); a('v_and_b32 v14, 1, v1'); a('v_lshl_add_u32 v102, v14, 4, v13'); a('v_add_u32 v103, %d, v102' % (16 * PIS))
    else:
        a('s_mul_i32 s63, s23, %d' % PPS); a('s_and_b32 s38, s3, 3'); a('s_lshl_b32 s38, s38, 10'); a('s_add_u32 s63, s63, s38'); a('s_add_u32 s63, s63, 0x%x' % POFF)
    if not TWO: a('s_lshl_b32 s38, s20, %d' % (5 if PIN else 10)); a('s_add_u32 s38, s38, 0x%x' % DOFF); a('s_cmp_lt_u32 s3, 4'); a('s_cselect_b32 s63, s38, s63')
    a('v_mov_b32 v14, 0xffffff00')
    a('s_cmp_eq_u32 s18, s3'); a('s_cbranch_scc1 fz_act')
    a('s_cmp_lg_u32 s59, s3'); a('s_cbranch_scc1 fz_f2')
    st()
    a('s_and_b32 s38, s20, %d' % (7 if DB & 8 else 15)); a('s_add_u32 s38, s38, 16'); a('s_mul_i32 s38, s38, %d' % KS); a('s_add_u32 s38, s38, 0x%x' % KOFF)
    if TWO:
        a('s_lshr_b32 s52, s61, 1'); a('s_lshl_b32 s52, s52, 3'); a('s_add_u32 s52, s52, s60'); a('s_lshl_b32 s52, s52, 2'); a('s_and_b32 s53, s61, 1'); a('s_add_u32 s52, s52, s53'); a('s_lshl_b32 s52, s52, 2')
        a('v_bfe_u32 v2, v1, 2, 1'); a('v_and_b32 v3, 3, v1'); a('v_lshl_add_u32 v2, v2, 3, v3'); a('v_add_u32 v2, s52, v2')
    else:
        a('s_lshr_b32 s52, s20, 4'); a('s_lshl_b32 s52, s52, 7'); a('s_and_b32 s53, s20, 7'); a('s_lshl_b32 s53, s53, 4'); a('s_add_u32 s52, s52, s53')
        a('s_bfe_u32 s53, s20, 0x10003'); a('s_lshl_b32 s53, s53, 2'); a('s_add_u32 s52, s52, s53')
        a('v_and_b32 v2, 1, v1'); a('v_lshl_add_u32 v2, v2, 3, v5'); a('v_add_u32 v2, s52, v2')
    a('v_and_b32 v3, 31, v2'); a('v_lshrrev_b32 v6, 5, v2')
    a('v_cmp_gt_u32 vcc, 16, v6')
    a('v_cmp_lt_u32 s[52:53], 16, v3'); a('v_cmp_eq_u32 s[54:55], 0, v3'); a('s_and_b64 s[54:55], s[54:55], vcc'); a('s_or_b64 s[52:53], s[52:53], s[54:55]')
    a('v_cmp_eq_u32 s[54:55], 16, v3'); a('s_andn2_b64 s[54:55], s[54:55], vcc'); a('s_or_b64 s[52:53], s[52:53], s[54:55]')
    a('v_sub_u32 v7, 1024, v2'); a('v_cndmask_b32 v7, v2, v7, s[52:53]')
    a('v_mov_b32 v8, 512'); a('v_cmp_eq_u32 vcc, 1024, v7'); a('v_cndmask_b32 v7, v7, v8, vcc')
    a('v_lshrrev_b32 v8, 5, v7'); a('v_and_b32 v7, 15, v7')
    a('v_lshrrev_b32 v9, 2, v8'); a('v_lshlrev_b32 v9, 8, v9'); a('v_and_b32 v8, 3, v8'); a('v_lshl_add_u32 v9, v8, 4, v9')
    a('v_lshrrev_b32 v8, 3, v7'); a('v_lshl_add_u32 v9, v8, 6, v9'); a('v_and_b32 v7, 7, v7'); a('v_lshl_add_u32 v9, v7, 1, v9')
    a('v_cndmask_b32 v7, 0, 1, s[52:53]'); a('v_lshl_add_u32 v9, v7, 7, v9')
    a('v_lshlrev_b32 v2, 1, v2')
    if TWO:
        a('s_lshl_b32 s52, s60, 4'); a('s_add_u32 s52, s52, s61'); a('s_lshl_b32 s52, s52, 12'); a('s_add_u32 s52, s52, 0x%x' % POFF)
        a('s_add_u32 s53, s2, 4'); a('s_and_b32 s53, s53, 7'); a('s_cmp_lt_u32 s53, 6'); a('s_cselect_b32 s53, s52, 0x7fff0000')
        for k in range(4): a('s_cselect_b32 %s, %s, 0' % (s(8 + k), s(48 + k)))
        a('s_lshl_b32 s54, s61, 11'); a('s_add_u32 s54, s54, 0x%x' % FIOFF); a('s_lshl_b32 s55, s60, 8'); a('s_add_u32 s55, s55, s54'); a('s_lshl_b32 s62, s60, 5'); a('s_add_u32 s54, s54, s62')
        a('v_lshrrev_b32 v3, 1, v4'); a('v_lshlrev_b32 v3, 8, v3'); a('v_and_b32 v6, 1, v4'); a('v_lshl_add_u32 v3, v6, 4, v3')
        a('v_lshlrev_b32 v6, 2, v1'); a('v_and_b32 v7, 3, v1'); a('v_mov_b32 v16, s48')
        for k in range(1, 4): a('v_cmp_eq_u32 vcc, %d, v7' % k); a('v_mov_b32 v8, %s' % s(48 + k)); a('v_cndmask_b32 v16, v16, v8, vcc')
    else:
        a('v_lshrrev_b32 v3, 1, v1'); a('v_mul_u32_u24 v3, %d, v3' % (32 if PIN else PPS)); a('v_and_b32 v6, 1, v1'); a('v_lshl_add_u32 v3, v6, 4, v3')
        a('v_mov_b32 v6, 0x7fffffff'); a('v_cmp_gt_u32 vcc, 32, v1'); a('v_cndmask_b32 v6, v6, v3, vcc')
        for k in range(4): a('v_mov_b32 v7, %s' % s(48 + k)); a('v_cndmask_b32 %s, 0, v7, vcc' % v(16 + k))
        a('s_mul_i32 s52, s20, %d' % (PIS if PIN else 32)); a('s_add_u32 s52, s52, 0x%x' % POFF)
        for u in range(1, 4): a('s_add_u32 %s, s52, %d' % (s(52 + u), 32 * u * (32 if PIN else PPS)))
    K = 24
    a('v_lshlrev_b32 v20, %d, v1' % KRL); a('v_add_u32 v21, %d, v20' % (64 << KRL))
    a('s_mov_b32 s58, 0')
    a.label('fz_k2')
    a('buffer_load_dwordx4 %s, v20, s[4:7], s38 offen sc1' % v(K, 4)); a('buffer_load_dwordx4 %s, v21, s[4:7], s38 offen sc1' % v(K + 4, 4))
    a('s_waitcnt vmcnt(0)')
    keys_argmax(K, None, 'fz_k2')
    tst(3)
    if TWO:
        a('v_and_b32 v7, 15, %s' % v(K + 1)); a('v_and_b32 v8, 15, %s' % v(K + 5)); a('v_cmp_eq_u32 vcc, s24, v7'); a('v_cmp_eq_u32 s[56:57], s24, v8')
        a('s_and_b64 vcc, vcc, s[56:57]'); a('s_and_b32 s39, vcc_lo, vcc_hi'); a('s_and_b32 s41, s20, 7'); a('s_lshr_b32 s39, s39, s41'); a('s_and_b32 s39, s39, 0x01010101')
        a('s_cmp_eq_u32 s39, 0x01010101'); a('s_cselect_b32 s39, %d, 0' % (1 if LOCAL else 0)); a('v_mov_b32 v7, s39'); a('ds_write_b32 v101, v7')
    a('v_cmp_eq_u32 vcc, s36, %s' % v(K)); a('v_cmp_eq_u32 s[56:57], s36, %s' % v(K + 4))
    a('v_cndmask_b32 %s, %s, %s, s[56:57]' % (v(K + 1), v(K + 1), v(K + 5))); a('v_cndmask_b32 %s, %s, %s, s[56:57]' % (v(K + 2), v(K + 2), v(K + 6)))
    a('s_cmp_lg_u64 vcc, 0'); a('s_cselect_b32 s39, 0, 64'); a('s_or_b64 vcc, vcc, s[56:57]'); a('s_ff1_i32_b64 s41, vcc')
    a('v_readlane_b32 s42, %s, s41' % v(K + 1)); a('v_readlane_b32 s43, %s, s41' % v(K + 2))
    a('s_add_u32 s39, s39, s41'); a('s_and_b32 s42, s42, 0xffff0000')
    if CL: a('s_cmp_eq_u32 s39, s20'); a('s_cselect_b32 s19, s37, 16')
    else:
        a('s_cmp_eq_u32 s39, s20'); a('s_cbranch_scc1 fz_win')
        a('s_bitcmp1_b32 s37, 0'); a('s_cbranch_scc1 fz_d1')
        for q in range(2): a('buffer_store_dwordx4 %s, %s, s[12:15], s34 offen offset:%d%s' % (v(OP + 4 * q, 4), v(vL16), 1024 * q, OUTF))
        a('s_branch fz_win')
        a.lines.append('fz_d1:')
        for q in range(2): a('buffer_store_dwordx4 %s, %s, s[12:15], s35 offen offset:%d%s' % (v(OP + 8 + 4 * q, 4), v(vL16), 1024 * q, OUTF))
        a.lines.append('fz_win:')
    a('s_lshl_b32 s39, s39, 11'); a('s_add_u32 s39, s39, 0x%x' % COFF)
    a('s_mov_b32 s58, 0'); a('s_mov_b32 s41, 0xffff0000')
    a.label('fz_c2')
    a('buffer_load_short_d16_hi v10, v9, s[4:7], s39 offen sc1')
    a('s_waitcnt vmcnt(0)')
    a('v_cmp_eq_u32 vcc, s41, v10')
    poll_retry('fz_c2')
    if CL:
        for r in range(2):
            a('s_cmp_eq_u32 s19, %s' % s(32 + r)); a('s_cbranch_scc1 fz_sc%d' % r)
            for q in range(2): a('buffer_store_dwordx4 %s, %s, s[12:15], %s offen offset:%d%s' % (v(OP + 8 * r + 4 * q, 4), v(vL16), s(34 + r), 1024 * q, OUTF))
            a.lines.append('fz_sc%d:' % r)
    a('v_add_f32 v11, s42, v10'); rbf(a, 11); a('v_mul_f32 v11, s43, v11'); rbf(a, 11)
    a('s_ashr_i32 s39, s36, 31'); a('s_not_b32 s39, s39'); a('s_or_b32 s39, s39, 0x80000000'); a('s_xor_b32 s39, s36, s39'); a('s_and_b32 s39, s39, 0xffff0000')
    a('v_mov_b32 v12, s39'); a('v_mul_f32 v12, %s, v12' % fh(-1.4426950408889634))
    a('v_exp_f32 v12, v12'); a('v_add_f32 v12, 1.0, v12'); a('v_rcp_f32 v12, v12'); rbf(a, 12)
    a('s_and_b32 s39, s36, 0xffff'); a('s_sub_u32 s39, 2047, s39'); a('s_lshl_b32 s39, s39, 11')
    PQ = 40
    a('v_mov_b32 v13, 0xff')
    a('s_waitcnt lgkmcnt(0)')
    tst(4)
    a.lines.append('fz_f2:')
    st.n = 13; st()
    a('s_cmp_gt_u32 s23, 111'); a('s_cbranch_scc1 fz_nof2')
    a('s_barrier')
    tst(5)
    a('s_cmp_eq_u32 s59, s3'); a('s_cselect_b32 s19, 4, s3'); a('s_cmp_lt_u32 s19, 4'); a('s_cbranch_scc1 fz_f2d')
    BH, ACC = 120, 152
    if TWO: a('ds_read_b32 v100, v101')
    for q in range(8): a('ds_read_b128 %s, v15 offset:%d' % (v(BH + 4 * q, 4), 64 * q))
    if W3 < 8 or WL: a('s_waitcnt vmcnt(2)')
    for q in range(8):
        a('s_waitcnt lgkmcnt(%d)' % (7 - q))
        for h in range(2): a('v_mfma_f32_16x16x32_bf16 %s, %s, %s, %s' % (v(ACC + 4 * h, 4), v(BH + 4 * q, 4), v(WQ[2 * q + h], 4), v(ACC + 4 * h, 4) if q else '0'))
    if TWO: a('v_readfirstlane_b32 s19, v100')
    a('s_mov_b32 exec_hi, 0')
    if TWO:
        for k in range(8): a('v_and_or_b32 %s, %s, v14, %s' % (v(ACC + k), v(ACC + k), s(48 + (k & 3))))
        a('s_cmp_eq_u32 s19, 0'); a('s_cbranch_scc1 fz_prem')
        for h in range(2): a('buffer_store_dwordx4 %s, %s, s[4:7], s63 offen' % (v(ACC + 4 * h, 4), v(102 + h)))
    else:
        for h in range(2):
            for k in range(4): a('v_and_or_b32 %s, %s, v14, %s' % (v(ACC + 4 * h + k), v(ACC + 4 * h + k), s(48 + k)))
            if PIN: a('buffer_store_dwordx4 %s, %s, s[4:7], s63 offen sc1' % (v(ACC + 4 * h, 4), v(102 + h)))
            else: a('buffer_store_dwordx4 %s, %s, s[4:7], s63 offen offset:%d sc1' % (v(ACC + 4 * h, 4), v(vL16), 512 * h))
    tst(6)
    a.lines.append('fz_f2d:')
    a('s_mov_b32 exec_hi, -1')
    if OLATE: a('s_cmp_lg_u32 s59, s3'); a('s_cbranch_scc1 fz_late')
    else: a('s_cmp_eq_u32 s18, s3'); a('s_cbranch_scc1 fz_late')
    a('s_cmp_lg_u32 s59, s3'); a('s_cbranch_scc1 fz_xend')
    a('v_mov_b32 v7, 0')
    a('s_waitcnt vmcnt(0)')
    a('s_branch fz_p5_ok')
    a.label('fz_nof2')
    a('s_cmp_lg_u32 s59, s3'); a('s_cbranch_scc1 fz_xend')
    a('s_mov_b32 s58, 0'); a('s_and_b32 s41, s20, %d' % (7 if TWO else 63)); a('s_mul_i32 s41, s41, %d' % (256 if TWO else 32 if PIN else PPS)); a('s_add_u32 s41, s41, s52'); a('v_mov_b32 v7, 0')
    a.label('fz_p5')
    a('buffer_load_dword v8, v7, s[4:7], s41 offen sc1')
    a('s_waitcnt vmcnt(0)')
    a('v_and_b32 v8, 0xff, v8'); a('v_cmp_ne_u32 vcc, s48, v8')
    poll_retry('fz_p5')
    a('s_mov_b32 s58, 0')
    st()
    def h5i(u):
        if TWO: a('buffer_load_dwordx4 %s, %s, s[4:7], %s offen offset:%d sc1' % (v(PQ + 4 * u, 4), v(vL16), s(52 + (u >> 1)), 1024 * u))
        else: a('buffer_load_dwordx4 %s, %s, s[4:7], %s offen sc1' % (v(PQ + 4 * u, 4), 'v6' if u == 3 else 'v3', s(52 + u)))
    def h5c(u):
        for k in range(4): a('v_xor_b32 %s, %s, %s' % (v(PQ + 4 * u + k), (s(8 + k) if u >= 2 else s(48 + k)) if TWO else v(16 + k) if u == 3 else s(48 + k), v(PQ + 4 * u + k)))
        a('v_or3_b32 v8, %s, %s, %s' % (v(PQ + 4 * u), v(PQ + 4 * u + 1), v(PQ + 4 * u + 2)))
        a('v_bitop3_b32 v8, v8, %s, v13 bitop3:0xa8' % v(PQ + 4 * u + 3))
        a('v_cmp_ne_u32 vcc, 0, v8')
    def h5a(u):
        if u:
            for h in range(2): a('v_pk_add_f32 %s, %s, %s' % (v(PQ + 2 * h, 2), v(PQ + 2 * h, 2), v(PQ + 4 * u + 2 * h, 2)))
    for u in range(4): h5i(u)
    prog_poll('fz_h5', 4, h5i, h5c, h5a)
    tst(8)
    if TWO:
        for sw in ('32', '16'):
            for k in range(4): a('v_mov_b32 %s, %s' % (v(PQ + 4 + k), v(PQ + k)))
            for k in range(4): a('v_permlane%s_swap_b32 %s, %s' % (sw, v(PQ + k), v(PQ + 4 + k)))
            for h in range(2): a('v_pk_add_f32 %s, %s, %s' % (v(PQ + 2 * h, 2), v(PQ + 2 * h, 2), v(PQ + 4 + 2 * h, 2)))
        for k in range(4): a('v_and_or_b32 %s, %s, v14, %s' % (v(PQ + k), v(PQ + k), s(48 + k)))
        a('s_mov_b64 exec, 0xffff')
        a('buffer_store_dwordx4 %s, v3, s[4:7], s54 offen sc1' % v(PQ, 4))
        a('s_mov_b64 exec, -1'); a('s_mov_b32 s58, 0')
        a('s_waitcnt vmcnt(0)')
        a.lines.append('fz_h6:')
        a('buffer_load_dword %s, v6, s[4:7], s55 offen sc1' % v(PQ + 8))
        a('s_waitcnt vmcnt(0)')
        a('v_xor_b32 %s, v16, %s' % (v(PQ), v(PQ + 8))); a('v_and_b32 v8, 0xff, %s' % v(PQ)); a('v_cmp_ne_u32 vcc, 0, v8')
        poll_retry('fz_h6')
        a('v_add_f32_dpp %s, %s, %s row_ror:8 %s' % (v(PQ), v(PQ), v(PQ), DPPF))
        for sw in ('32', '16'):
            a('v_mov_b32 %s, %s' % (v(PQ + 1), v(PQ))); a('v_permlane%s_swap_b32 %s, %s' % (sw, v(PQ), v(PQ + 1))); a('v_add_f32 %s, %s, %s' % (v(PQ), v(PQ), v(PQ + 1)))
    else:
        for i in range(2): a('v_permlane32_swap_b32 %s, %s' % (v(PQ + i), v(PQ + 2 + i)))
        a('v_pk_add_f32 %s, %s, %s' % (v(PQ, 2), v(PQ, 2), v(PQ + 2, 2)))
        a('v_permlane16_swap_b32 %s, %s' % (v(PQ), v(PQ + 1)))
        a('v_add_f32 %s, %s, %s' % (v(PQ), v(PQ), v(PQ + 1)))
        a('v_add_f32_dpp %s, %s, %s quad_perm:[2,3,0,1] %s' % (v(PQ), v(PQ), v(PQ), DPPF))
        a('v_add_f32_dpp %s, %s, %s row_ror:4 %s' % (v(PQ), v(PQ), v(PQ), DPPF))
        a('v_add_f32_dpp %s, %s, %s row_ror:8 %s' % (v(PQ), v(PQ), v(PQ), DPPF))
    rbf(a, PQ); a('v_mul_f32 %s, %s, v12' % (v(PQ), v(PQ))); rbf(a, PQ)
    a('v_add_f32 %s, %s, v11' % (v(PQ), v(PQ))); rbf(a, PQ)
    a('v_add_f32 %s, %s, v10' % (v(PQ), v(PQ))); rbf(a, PQ)
    if TWO: a('s_mov_b64 exec, 0xff')
    else: a('s_mov_b32 exec_lo, 0x00030003'); a('s_mov_b32 exec_hi, 0x00030003')
    a('buffer_store_short_d16_hi %s, v2, s[12:15], s39 offen' % v(PQ))
    a('s_cmp_lg_u32 s20, 0'); a('s_cbranch_scc1 fz_xend')
    a('s_mov_b64 exec, 1'); a('v_mov_b32 v8, s40')
    a('buffer_store_dword v8, v7, s[4:7], 0 offen')
    a.lines.append('fz_xend:')
    st.n = 15; st()
    st.dump(n=16, sv=250, wave='s3')
    a.lines.append('fz_end:')
    a('s_endpgm')
    a.lines.append('fz_late:')
    for r in range(2):
        for q in range(2): a('buffer_store_dwordx4 %s, %s, s[12:15], %s offen offset:%d%s' % (v(OP + 8 * r + 4 * q, 4), v(vL16), s(34 + r), 1024 * q, OUTF))
    a('s_branch fz_xend')
    a.lines.append('fz_act:')
    a('s_cmp_gt_u32 s23, 111'); a('s_cbranch_scc1 fz_xend')
    a('v_lshlrev_b32 v2, 2, v1'); a('v_and_b32 v11, 3, v1'); a('v_mov_b32 v3, s48')
    for k in range(1, 4): a('v_cmp_eq_u32 vcc, %d, v11' % k); a('v_mov_b32 v10, %s' % s(48 + k)); a('v_cndmask_b32 v3, v3, v10, vcc')
    a('v_and_b32 v10, 31, v1'); a('v_lshlrev_b32 v6, 4, v10'); a('v_lshrrev_b32 v10, 5, v1'); a('v_mul_u32_u24 v10, %d, v10' % (4 * 546)); a('v_add_u32 v6, v6, v10'); a('v_add_u32 v6, %d, v6' % ACT)
    a('s_lshl_b32 s38, s23, 11'); a('s_add_u32 s38, s38, 0x%x' % XOFF)
    a('s_mov_b32 s58, 0')
    st.n = 12; st()
    if APP:
        a.lines.append('fz_p4:')
        a('buffer_load_dword v8, v2, s[4:7], s38 offen offset:%d sc1' % (256 * (APP - 1)))
        a('s_waitcnt vmcnt(0)')
        a('v_xor_b32 v8, v3, v8'); a('v_and_b32 v8, 0xff, v8'); a('v_cmp_ne_u32 vcc, 0, v8')
        poll_retry('fz_p4')
        a('s_mov_b32 s58, 0')
    if XB_:
        a('s_lshl_b32 s39, s23, 7'); a('s_add_u32 s39, s39, 0x%x' % DLOFF); a('v_and_b32 v7, 28, v2')
        a.lines.append('fz_d4:')
        a('buffer_load_dword v8, v7, s[4:7], s39 offen sc1')
        a('s_add_u32 s58, s58, 1'); a('s_and_b32 s41, s58, 15')
        a('s_waitcnt vmcnt(0)')
        a('v_cmp_ne_u32 vcc, s40, v8')
        a('s_cbranch_scc0 fz_h4'); a('s_cbranch_vccnz fz_d4')
    a.lines.append('fz_h4:')
    for k in range(8): a('buffer_load_dword %s, v2, s[4:7], s38 offen offset:%d sc1' % (v(16 + k), 256 * k))
    for k in range(0, 8, 2):
        a('s_waitcnt vmcnt(%d)' % (6 - k))
        a('v_xor_b32 %s, v3, %s' % (v(16 + k), v(16 + k))); a('v_xor_b32 %s, v3, %s' % (v(17 + k), v(17 + k)))
        a('v_or3_b32 v10, %s, %s, %s' % (v(16 + k), v(17 + k), 'v10' if k else '0'))
        a('v_add_f32 %s, %s, %s' % (v(16 + k), v(16 + k), v(17 + k)))
        if k & 2: a('v_add_f32 %s, %s, %s' % (v(14 + k), v(14 + k), v(16 + k)))
    a('v_and_b32 v10, 0xff, v10'); a('v_add_f32 v8, v16, v20')
    a('v_cmp_ne_u32 vcc, 0, v10')
    if XB_:
        a('s_cmp_gt_u32 s58, 0x%x' % (MAXPOLL * 4)); a('s_cbranch_scc1 fz_h4_ok'); a('s_cbranch_vccnz fz_d4')
        a.lines.append('fz_h4_ok:')
    else: poll_retry('fz_h4')
    tst(1)
    rbf(a, 8)
    a('v_mov_b32 v9, v8')
    a('v_permlane32_swap_b32 v8, v9')
    a('v_mul_f32 v10, %s, v8' % fh(-1.4426950408889634))
    a('v_exp_f32 v10, v10')
    a('v_add_f32 v10, 1.0, v10'); a('v_rcp_f32 v10, v10')
    a('v_mul_f32 v8, v8, v10'); rbf(a, 8)
    a('v_mul_f32 v8, v8, v9'); rbf(a, 8)
    for m in range(4): a('ds_write_b16_d16_hi v6, v8 offset:%d' % (546 * m))
    a('s_waitcnt lgkmcnt(0)')
    tst(2)
    a('s_branch fz_f2')
    a.lines.append('fz_ldh:')
    a('s_load_dwordx2 s[12:13], s[0:1], 56'); a('s_load_dwordx2 s[16:17], s[0:1], 64')
    srd(12, 0x700000); srd(16, 0x700000)
    a('s_branch fz_ldback')
    a.lines.append('fz_spec:')
    a('s_cmp_gt_u32 s3, 3'); a('s_cbranch_scc1 fz_spec_hi')
    for q, sa, sb in ((0, 0, 16), (2, 15, 17), (3, 18, 19)):
        a('s_cmp_eq_u32 s3, %d' % q); a('s_cselect_b32 s31, %d, s31' % (sa * RS)); a('s_cselect_b32 s30, %d, s30' % (sb * RS))
    a('s_branch fz_specback')
    a.lines.append('fz_spec_hi:')
    xload()
    if LATEX: extras()
    for q, ra, rb, sa, sb in ((0, 256, 1792, 4, 11), (1, 768, 1280, 6, 9), (2, 768, 1280, 20, 21), (3, 256, 1792, 22, 23)):
        a('s_cmp_eq_u32 s24, %d' % q); a('s_cselect_b32 s31, %d, s31' % (sa * RS)); a('s_cselect_b32 s30, %d, s30' % (sb * RS))
        a('s_cselect_b32 s27, %d, s27' % (ra * 2048)); a('s_cselect_b32 s28, %d, s28' % (rb * 2048))
    a('s_mov_b32 s57, 0')
    a('s_branch fz_specback')
    a.lines.append('fz_jb:')
    pack(JT, XAC, 16, 'bf16')
    a('s_branch fz_jend')
    if TWO:
        a.lines.append('fz_prem:')
        for h in range(2): a('buffer_store_dwordx4 %s, %s, s[4:7], s63 offen sc1' % (v(152 + 4 * h, 4), v(102 + h)))
        a('s_branch fz_f2d')
    a.lines.append('fz_bsp0:')
    wdload(0, 8 - WL if (WL and SPID & 4) else W3)
    a('s_branch fz_bsp')
    for jx in range(4):
        a.lines.append('fz_spec4%d:' % jx)
        a('s_mov_b32 s38, 0x80018001'); a('s_mov_b32 s39, 0x80018001')
        for k in range(2 * jx, 2 * jx + 2): a('v_cndmask_b32 %s, %s, %s, s[38:39]' % (v(YM + k), v(YM + k), v(YD + k)))
        a('s_branch fz_spec4back%d' % jx)
    a.label('fz_nc1')
    a('s_setprio 0')
    a('s_cmp_lg_u32 s59, 0'); a('s_cbranch_scc1 ffn_b')
    if WL:
        wdload(WE, 8 - WL)
        a('s_bitcmp1_b32 s2, 2'); a('s_cbranch_scc1 fz_wl1')
        wdload(8 - WL, 8)
        a.lines.append('fz_wl1:')
        latex()
        a('s_waitcnt vmcnt(%d)' % (2 * (8 - WL) + 6))
    else:
        wdload(WE, W2)
        latex()
        a('s_waitcnt vmcnt(%d)' % (2 * W2 + 6))
    tags2()
    a.lines.append('fz_bsp:')
    a('s_setprio 0'); a('s_mov_b32 s57, 1')
    a('s_cmp_gt_u32 s3, 5'); a('s_cbranch_scc1 fz_nocq')
    cq_job()
    a.lines.append('fz_nocq:')
    SETA(False)
    SETB('b')
    a('s_cmp_eq_u32 s2, %d' % SPID); a('s_cbranch_scc1 fz_sz')
    a('s_waitcnt vmcnt(0)')
    sync_add(0x100)
    a.lines.append('fz_sz:')
    a('ds_read_b32 v10, v15')
    a('s_waitcnt lgkmcnt(0)')
    a('v_cmp_ne_u32 vcc, s38, v10')
    a('s_cbranch_vccnz fz_sz')
    st.n = 5; st()
    SET2()
    wdload(W2, W3)
    st()
    a('s_waitcnt lgkmcnt(0)')
    a('s_branch fz_hb')
    a.label('fz_nc3')
    a('s_mov_b32 s58, 0')
    a('s_waitcnt vmcnt(0)')
    st.n = 9; st()
    if EP2:
        a('s_lshl_b32 s32, s20, 7'); a('s_add_u32 s32, s32, s55'); a('s_add_u32 s32, s32, %d' % (12 * PS + 64)); a('v_mov_b32 v9, 0')
        a.lines.append('fz_p2:')
        a('buffer_load_dword v10, v9, s[4:7], s32 offen sc1')
        a('s_waitcnt vmcnt(0)')
        a('v_xor_b32 v10, %s, v10' % v(vE)); a('v_and_b32 v10, %s, v10' % v(vMT)); a('v_cmp_ne_u32 vcc, 0, v10')
        poll_retry('fz_p2')
        a('s_mov_b32 s58, 0')
    a('s_branch fz_h2')
    for sfx in 'ab':
        a.lines.append('fz_spec3%s:' % sfx)
        a('v_xor_b32 v11, 1, v4'); a('v_cndmask_b32 v9, v9, v11, s[34:35]')
        a('v_and_b32 v11, 1, v4'); a('v_cndmask_b32 v11, 0, v11, s[34:35]'); a('v_sub_u32 v10, v10, v11')
        a('s_cmp_lg_u32 s22, 0'); a('s_cbranch_scc1 fz_spec3back%s' % sfx)
        for i, tt, pp, po in ((15, 1024, 124, 4), (13, 1536, 124, 6), (4, 256, 127, 8), (11, 1792, 127, 14), (6, 768, 127, 10), (9, 1280, 127, 12)):
            a('v_cmp_eq_u32 vcc, %d, v4' % i); a('v_mov_b32 v11, %d' % tt); a('v_mov_b32 v12, %d' % pp)
            a('v_cndmask_b32 %s, %s, v11, vcc' % (v(vT), v(vT))); a('v_cndmask_b32 v10, v10, v12, vcc'); a('v_cndmask_b32 v9, v9, %d, vcc' % po)
        a.flush(); a('s_branch fz_spec3back%s' % sfx)
    WF, WD, BH, ACC, K = 32, 96, 128, 192, 200
    SNT = '' if '--spl' in OPT else ' nt'
    def ffn_addr():
        a('s_bfe_u32 s21, s2, 0x30003')
        a('v_lshrrev_b32 v2, 5, v1'); a('v_and_b32 v3, 31, v1'); a('v_lshlrev_b32 v4, 1, v2'); a('v_xor_b32 v3, v4, v3')
        a('v_mul_u32_u24 v4, 7168, v2'); a('v_lshl_add_u32 v4, v3, 4, v4')
        for k in range(1, 4): a('v_xor_b32 %s, %d, v4' % (v(4 + k), 64 * k))
        a('s_lshl_b32 s23, s21, 7'); a('s_lshl_b32 s24, s3, 4'); a('s_add_u32 s23, s23, s24'); a('s_mul_i32 s23, s23, 7168'); a('s_lshl_b32 s24, s22, 9'); a('s_add_u32 s23, s23, s24')
        a('s_lshl_b32 s24, s3, 13')
    def gu(m, p):
        a('s_add_u32 s28, s24, %d' % ((0 if m else GT) + 1024 * p)); a('s_mov_b32 m0, s28'); a('s_add_u32 s29, s23, %d' % (p * 2 * 7168))
        if '--xnogu' not in OPT: a('buffer_load_dwordx4 %s, %s, s29 offen%s lds' % (v(4 + (p & 1) + 2 * (p >> 2)), s(16 if m else 12, 4), SNT))
    a.label('ffn_b')
    if not NE:
        a('s_waitcnt vmcnt(0)')
        tags()
    a.label('ffn')
    st.n = 5; st()
    blk(22, 36)
    a('s_cmp_gt_u32 s22, 13'); a('s_cbranch_scc1 fz_xend')
    ffn_addr()
    a('v_mov_b32 v31, %d' % (MSG + 48)); a('v_mov_b32 v10, 0'); a('ds_write_b32 v31, v10'); a('s_waitcnt lgkmcnt(0)')
    if NE:
        a('s_cmp_lt_u32 s3, 4'); a('s_cbranch_scc1 ffn_g1')
        for p in range(NE): gu(0, p)
        a('s_waitcnt vmcnt(%d)' % NE)
        tags()
        a('s_barrier'); a('s_branch ffn_g2')
        a.lines.append('ffn_g1:')
    a('s_setprio 0'); a('s_barrier')
    if GATE:
        a('s_lshl_b32 s26, s3, 3'); a('s_add_u32 s26, s26, %d' % (GATE - 1)); a('s_mul_i32 s26, s26, %d' % PS); a('s_add_u32 s26, s26, 0x%x' % WOFF); a('s_and_b32 s27, s2, 127'); a('s_lshl_b32 s27, s27, 7'); a('s_add_u32 s26, s26, s27')
        a('v_mov_b32 v9, 0'); a('s_mov_b32 s27, 0x30003')
        a('s_waitcnt vmcnt(0)')
        a.lines.append('ffn_gp:')
        a('buffer_load_dword v10, v9, s[4:7], s26 offen sc1')
        a('s_waitcnt vmcnt(0)')
        a('v_xor_b32 v10, s44, v10'); a('v_and_b32 v10, s27, v10'); a('v_cmp_ne_u32 vcc, 0, v10')
        poll_retry('ffn_gp')
        a('s_mov_b32 s58, 0')
    if '--ackfirst' in OPT: a('s_waitcnt vmcnt(0)'); a('s_barrier')
    for p in range(8):
        if NE and p == NE: a.lines.append('ffn_g2:')
        gu(0, p)
        if THR: a('s_waitcnt vmcnt(%d)' % (THR - 1))
    if NE == 8: a.lines.append('ffn_g2:')
    def l2p():
        a('s_lshl_b32 s28, s22, 3'); a('s_add_u32 s28, s28, s21'); a('s_lshl_b32 s28, s28, 16'); a('v_lshlrev_b32 v9, 7, v0')
        a('buffer_load_dword v248, v9, s[64:67], s28 offen')
    if L2P == 1: l2p()
    for p in range(8):
        gu(1, p)
        if THR2: a('s_waitcnt vmcnt(%d)' % (THR2 - 1))
    if L2P == 2: l2p()
    a('v_lshrrev_b32 v2, 4, v1'); a('v_and_b32 v3, 15, v1')
    a('v_bfe_u32 v9, v1, 2, 2'); a('v_lshl_add_u32 v8, v2, 3, v9'); a('v_lshlrev_b32 v8, 9, v8')
    a('v_and_b32 v10, 1, v2'); a('v_lshl_add_u32 v10, v10, 2, v9'); a('s_lshl_b32 s28, s3, 1'); a('v_xor_b32 v10, s28, v10')
    a('v_lshl_add_u32 v8, v10, 5, v8'); a('v_and_b32 v10, 3, v1'); a('v_lshl_add_u32 v8, v10, 3, v8')
    a('v_xor_b32 v12, 32, v8'); a('v_add_u32 v13, %d, v8' % GT); a('v_add_u32 v20, %d, v12' % GT)
    if GH:
        a('s_lshl_b32 s28, s21, 7'); a('v_lshl_add_u32 v9, v1, 1, s28'); cand_off(9, 16, 24, 24)
        a('v_add_u32 v9, 1, v9'); cand_off(9, 17, 24, 24)
        a('s_lshl_b32 s28, s21, 8'); a('s_add_u32 s28, s28, %d' % HN); a('v_lshl_add_u32 v18, v1, 2, s28')
    else:
        a('v_bfe_u32 v9, v0, 2, 2'); a('v_lshrrev_b32 v10, 6, v0'); a('v_lshl_add_u32 v9, v10, 2, v9')
        a('v_bfe_u32 v10, v0, 4, 1'); a('v_and_b32 v11, 3, v0'); a('v_lshlrev_b32 v11, 1, v11'); a('v_lshl_add_u32 v10, v10, 3, v11')
        a('v_lshl_add_u32 v11, v9, 5, v10'); a('v_add_u32 v17, 1, v11')
        a('v_cmp_eq_u32 vcc, 0, v10'); a('v_cmp_gt_u32 s[28:29], 16, v9'); a('s_and_b64 vcc, vcc, s[28:29]'); a('v_cndmask_b32 v14, 0, 16, vcc'); a('v_add_u32 v16, v11, v14')
        a('v_bfe_u32 v10, v0, 5, 1'); a('v_cmp_eq_u32 s[28:29], 1, v10')
        a('v_sub_u32 v14, 1024, v16'); a('v_cmp_eq_u32 vcc, 512, v16'); a('v_cndmask_b32 v14, v14, 0, vcc'); a('v_cndmask_b32 v16, v16, v14, s[28:29]')
        a('v_sub_u32 v14, 1024, v17'); a('v_cndmask_b32 v17, v17, v14, s[28:29]')
        for r in (16, 17): a('v_lshlrev_b32 %s, 1, %s' % (v(r), v(r))); a('v_add_u32 %s, %d, %s' % (v(r), HN, v(r)))
        a('v_lshlrev_b32 v18, 2, v0'); a('v_add_u32 v18, %d, v18' % RAW)
    a('s_lshl_b32 s28, s21, 8'); a('s_add_u32 s28, s28, %d' % HN); a('v_lshlrev_b32 v19, 4, v2'); a('v_add_u32 v19, s28, v19')
    a('v_mov_b32 v28, %d' % MSG)
    a('v_lshlrev_b32 v29, 4, v1')
    a('s_lshl_b32 s30, s22, 3'); a('s_add_u32 s30, s30, s3'); a('s_lshl_b32 s30, s30, 3'); a('s_add_u32 s30, s30, s21'); a('s_lshl_b32 s30, s30, 8'); a('s_add_u32 s30, s30, 0x%x' % XOFF)
    a('v_lshlrev_b32 v30, 4, v2'); a('v_lshl_add_u32 v30, v3, 6, v30')
    for k in range(1, 4): a('v_cmp_eq_u32 %s, %d, v3' % (s(58 + 2 * k, 2), k))
    a('v_add_u32 v21, %d, v29' % RAW)
    a('v_mov_b32 %s, 0xffffff00' % v(197))
    a('s_and_b32 s35, s2, 0x47'); a('s_lshl_b32 s31, s3, 3'); a('s_add_u32 s35, s35, s31'); a('s_add_u32 s35, s35, %d' % POFS); a('s_and_b32 s35, s35, 127')
    a('s_getreg_b32 s33, hwreg(HW_REG_XCC_ID)'); a('s_and_b32 s33, s33, 15')
    a('s_lshr_b32 s31, s35, 5'); a('s_lshl_b32 s31, s31, 2'); a('s_add_u32 s31, s31, %d' % (MSG + 16)); a('v_mov_b32 v22, s31')
    a('s_lshl_b32 s20, s22, 3'); a('s_add_u32 s20, s20, s21')
    if XB_:
        a('s_lshl_b32 s31, s22, 3'); a('s_add_u32 s31, s31, s3'); a('s_lshl_b32 s31, s31, 5'); a('s_add_u32 s31, s31, s21'); a('s_lshl_b32 s31, s31, 2'); a('s_add_u32 s31, s31, 0x%x' % DLOFF)
        a('v_mov_b32 v26, s40'); a('v_mov_b32 v27, 0')
    a('s_and_b32 s34, s20, %d' % (7 if DB & 8 else 15))
    if DB & 2 and not DB & 16: a('s_bfe_u32 s28, s20, 0x10004'); a('s_lshl_b32 s28, s28, 5'); a('s_add_u32 s34, s34, s28')
    a('s_mul_i32 s34, s34, %d' % KS); a('s_add_u32 s34, s34, 0x%x' % KOFF)
    def trw():
        for T_, ad in enumerate((13, 20, 8, 12)):
            for k in range(4):
                for hh in range(2): a('ds_read_b64_tr_b16 %s, %s offset:%d' % (v(WF + 16 * T_ + 4 * k + 2 * hh, 2), v(ad), 16384 * k + 2048 * hh))
            a('s_waitcnt lgkmcnt(0)')
    a('s_waitcnt vmcnt(%d)' % (1 if L2P == 2 else 0))
    if DEC:
        a('v_mov_b32 v10, 1'); a('s_mov_b64 exec, 1'); a('ds_add_u32 v31, v10'); a('s_mov_b64 exec, -1')
        a('s_mov_b32 s23, 0')
        a('s_cmp_eq_u32 s3, 0'); a('s_cbranch_scc1 ffn_z0')
        a.lines.append('ffn_sl:')
        a('ds_read_b32 v10, v31'); a('s_waitcnt lgkmcnt(0)'); a('v_cmp_ne_u32 vcc, 8, v10'); a('s_cbranch_vccnz ffn_sl')
        st()
        trw()
        st()
        a('s_cmp_lg_u32 s3, 0'); a('s_cbranch_scc1 ffn_w3')
        a('s_cmp_eq_u32 s23, 2'); a('s_cbranch_scc1 ffn_w3')
        a('s_mov_b32 s23, 1')
        a.lines.append('ffn_z0:')
    else:
        a('s_barrier')
        st()
        trw()
        st()
        a('s_cmp_lg_u32 s3, 0'); a('s_cbranch_scc1 ffn_w3')
    if KP == 0:
        a('v_lshlrev_b32 v23, %d, v1' % KRL); a('v_add_u32 v24, %d, v23' % (64 << KRL)); a('s_lshl_b32 s28, s20, %d' % KRL); a('s_add_u32 s28, s28, s34'); a('v_mov_b32 v10, %d' % (12 + (32 * KS if DB & 16 else 16 * KS if DB & 1 else 0)))
        if DTH:
            a('v_mul_u32_u24 v11, %d, v1' % (3 << KRL if False else 2 << KRL)); a('v_bfe_u32 v9, v1, 2, 1'); a('v_lshl_add_u32 v11, v9, %d, v11' % KRL); a('v_add_u32 v10, v10, v11'); a('s_mov_b32 s28, s34')
            a.lines.append('ffn_q3:')
            a('buffer_load_dword v11, v10, s[4:7], s28 offen sc1')
            a('s_add_u32 s58, s58, 1')
            a('s_waitcnt vmcnt(0)')
            a('v_cmp_eq_u32 vcc, s40, v11')
            a('s_cmp_gt_u32 s58, 0x%x' % MAXPOLL); a('s_cbranch_scc1 ffn_p3_ok')
            a('s_bcnt1_i32_b64 s29, vcc'); a('s_cmp_lt_u32 s29, %d' % DTH); a('s_cbranch_scc1 ffn_q3'); a('s_branch ffn_p3_ok')
        a.label('ffn_p3')
        a('buffer_load_dword v11, v10, s[4:7], s28 offen sc1')
        if DEC: a('ds_read_b32 v9, v31')
        a('s_waitcnt vmcnt(0) lgkmcnt(0)')
        a('v_cmp_ne_u32 vcc, s40, v11')
        if DEC:
            a('s_cbranch_vccnz ffn_p3_x')
            a.lines.append('ffn_p3_ok:')
        else: poll_retry('ffn_p3')
        a('s_mov_b32 s58, 0'); a('s_mov_b32 s54, -1')
        st()
        a.label('ffn_k3')
        a('buffer_load_dwordx4 %s, v23, s[4:7], s34 offen sc1' % v(K, 4)); a('buffer_load_dwordx4 %s, v24, s[4:7], s34 offen sc1' % v(K + 4, 4))
        a('s_waitcnt vmcnt(0)')
        if SPEC:
            a('v_cmp_eq_u32 s[24:25], s40, %s' % v(K + 3)); a('v_cmp_eq_u32 s[26:27], s40, %s' % v(K + 7))
            a('v_cndmask_b32 %s, 0, %s, s[24:25]' % (v(K), v(K))); a('v_cndmask_b32 %s, 0, %s, s[26:27]' % (v(K + 4), v(K + 4)))
            a('v_max_u32 %s, %s, %s' % (v(K + 10), v(K), v(K + 4)))
            for pat in ['quad_perm:[1,0,3,2] ' + DPPF, 'quad_perm:[2,3,0,1] ' + DPPF, 'row_half_mirror ' + DPPF,
                        'row_mirror ' + DPPF, 'row_bcast:15 row_mask:0xa bank_mask:0xf', 'row_bcast:31 row_mask:0xc bank_mask:0xf']:
                a('v_max_u32_dpp %s, %s, %s %s' % (v(K + 10), v(K + 10), v(K + 10), pat))
            a('s_and_b64 s[52:53], s[24:25], s[26:27]')
            a('v_readlane_b32 s36, %s, 63' % v(K + 10))
        else: keys_argmax(K, None, 'ffn_k3')
    else:
        st()
        KSET = [216 + 8 * i for i in range(KP)]
        def ki(r): a('buffer_load_dwordx4 %s, v29, s[4:7], s34 offen sc1' % v(r, 4)); a('buffer_load_dwordx4 %s, v29, s[4:7], s34 offen offset:1024 sc1' % v(r + 4, 4))
        for r in KSET[:-1]: ki(r)
        a.lines.append('ffn_k3:')
        for i, r in enumerate(KSET):
            ki(KSET[i - 1])
            a('s_waitcnt vmcnt(%d)' % (2 * KP - 2))
            for k in range(8): a('v_mov_b32 %s, %s' % (v(K + k), v(r + k)))
            a('v_max_u32 %s, %s, %s' % (v(K + 10), v(K), v(K + 4)))
            a('v_xor_b32 %s, s40, %s' % (v(K + 8), v(K + 3))); a('v_xor_b32 %s, s40, %s' % (v(K + 9), v(K + 7)))
            for pat in ['quad_perm:[1,0,3,2] ' + DPPF, 'quad_perm:[2,3,0,1] ' + DPPF, 'row_half_mirror ' + DPPF,
                        'row_mirror ' + DPPF, 'row_bcast:15 row_mask:0xa bank_mask:0xf', 'row_bcast:31 row_mask:0xc bank_mask:0xf']:
                a('v_max_u32_dpp %s, %s, %s %s' % (v(K + 10), v(K + 10), v(K + 10), pat))
            a('v_or_b32 %s, %s, %s' % (v(K + 8), v(K + 8), v(K + 9)))
            a('v_readlane_b32 s36, %s, 63' % v(K + 10))
            a('v_cmp_ne_u32 vcc, 0, %s' % v(K + 8))
            a('s_cbranch_vccz ffn_k3_ok')
        a('s_add_u32 s58, s58, 1'); a('s_cmp_lt_u32 s58, 0x%x' % MAXPOLL); a('s_cbranch_scc1 ffn_k3')
        a.label('ffn_k3_ok')
    a('v_cmp_eq_u32 vcc, s36, %s' % v(K)); a('v_cmp_eq_u32 s[28:29], s36, %s' % v(K + 4))
    a('s_cmp_lg_u64 vcc, 0'); a('s_cselect_b32 s39, 0, 64'); a('s_or_b64 vcc, vcc, s[28:29]'); a('s_ff1_i32_b64 s41, vcc')
    a('s_add_u32 s39, s39, s41'); a('s_lshl_b32 s39, s39, 11'); a('s_add_u32 s39, s39, 0x%x' % COFF)
    CR = BH
    if SPEC:
        a('s_cmp_eq_u32 s39, s54'); a('s_cbranch_scc1 ffn_c3h')
        a('buffer_load_dwordx4 %s, v29, s[4:7], s39 offen sc1' % v(CR, 4)); a('buffer_load_dwordx4 %s, v29, s[4:7], s39 offen offset:1024 sc1' % v(CR + 4, 4))
        a.lines.append('ffn_c3h:')
        a('s_cmp_lg_u64 s[52:53], -1'); a('s_cbranch_scc1 ffn_k3_rt')
        a.lines.append('ffn_k3_ok:')
        a('s_mov_b32 s58, 0')
        st()
    else:
        a('s_mov_b32 s58, 0')
        st()
        a.lines.append('ffn_c3:')
        if GH: a('buffer_load_short_d16_hi v14, v16, s[4:7], s39 offen sc1'); a('buffer_load_short_d16_hi v15, v17, s[4:7], s39 offen sc1')
        else: a('buffer_load_dwordx4 %s, v29, s[4:7], s39 offen sc1' % v(CR, 4)); a('buffer_load_dwordx4 %s, v29, s[4:7], s39 offen offset:1024 sc1' % v(CR + 4, 4))
    a.lines.append('ffn_c3d:')
    a('v_and_b32 v10, 15, %s' % v(K + 1)); a('v_and_b32 v11, 15, %s' % v(K + 5))
    a('v_cmp_eq_u32 s[24:25], s33, v10'); a('v_cmp_eq_u32 s[26:27], s33, v11')
    for k in range(4): a('v_mov_b32 %s, %s' % (v(K + 12 + k), s(24 + k) if LOCAL else '0'))
    for k in range(1, 3): a('v_cndmask_b32 %s, %s, %s, s[28:29]' % (v(K + 8 + k), v(K + k), v(K + 4 + k)))
    if GH:
        a('ds_write_b128 v28, %s offset:16' % v(K + 12, 4))
        a('v_readlane_b32 s24, %s, s41' % v(K + 9)); a('v_readlane_b32 s25, %s, s41' % v(K + 10)); a('s_mov_b64 s[42:43], vcc')
        a('s_and_b32 s24, s24, 0xffff0000'); a('s_mov_b32 s26, 0xffff0000')
        a('s_waitcnt vmcnt(0)')
        a('v_max_u32 v10, v14, v15')
        for r in (14, 15): a('v_add_f32 %s, s24, %s' % (v(r), v(r)))
        for r in (14, 15): rbf(a, r)
        for r in (14, 15): a('v_mul_f32 %s, s25, %s' % (v(r), v(r)))
        a('v_cvt_pk_bf16_f32 v14, v14, v15')
        a('ds_write_b32 v18, v14')
        a('v_cmp_eq_u32 vcc, s26, v10')
    else:
        a('v_and_b32 %s, 0xffff0000, %s' % (v(K + 9), v(K + 9)))
        a('s_mov_b64 s[42:43], vcc'); a('s_mov_b64 exec, vcc')
        a('ds_write_b128 v28, %s' % v(K + 8, 4)); a('ds_write_b128 v28, %s offset:16' % v(K + 12, 4))
        a('s_mov_b64 exec, -1')
        a('s_waitcnt vmcnt(1)')
        a('ds_write_b128 v21, %s' % v(CR, 4))
        a('v_max3_u32 v10, %s, %s, %s' % (v(CR), v(CR + 1), v(CR + 2)))
        a('s_waitcnt vmcnt(0)')
        a('ds_write_b128 v21, %s offset:1024' % v(CR + 4, 4))
        a('v_max3_u32 v10, v10, %s, %s' % (v(CR + 3), v(CR + 4))); a('v_max3_u32 v11, %s, %s, %s' % (v(CR + 5), v(CR + 6), v(CR + 7))); a('v_max_u32 v10, v10, v11')
        a('v_cmp_eq_u32 vcc, -1, v10')
    a('s_cbranch_vccnz ffn_c3_rt')
    a.lines.append('ffn_c3_ok:')
    a('s_waitcnt lgkmcnt(0)')
    if DEC:
        a('s_cmp_eq_u32 s23, 0'); a('s_mov_b32 s23, 2'); a('s_cbranch_scc1 ffn_sl')
    a.label('ffn_w3')
    a('s_barrier')
    st.n = 10; st()
    if GH:
        st()
        a('ds_read_b32 %s, v22' % v(K + 3))
    else:
        a('ds_read_b32 v11, v18'); a('ds_read_b128 %s, v28' % v(K, 4)); a('ds_read_b32 %s, v22' % v(K + 3))
        a('s_mov_b32 s28, 0xffff0000')
        a('s_waitcnt lgkmcnt(2)')
        a('v_lshlrev_b32 v14, 16, v11'); a('v_and_b32 v15, s28, v11')
        a('s_waitcnt lgkmcnt(0)')
        for r in (14, 15): a('v_add_f32 %s, %s, %s' % (v(r), v(r), v(K + 1)))
        for r in (14, 15): rbf(a, r)
        for r in (14, 15): a('v_mul_f32 %s, %s, %s' % (v(r), v(r), v(K + 2)))
        a('v_cvt_pk_bf16_f32 v14, v14, v15')
        a('ds_write_b16 v16, v14'); a('ds_write_b16_d16_hi v17, v14')
        a('v_readfirstlane_b32 s24, %s' % v(K + 3))
        a('s_waitcnt lgkmcnt(0)'); a('s_barrier')
        st()
    for k in range(4): a('ds_read_b128 %s, v19 offset:%d' % (v(BH + 4 * k, 4), 64 * k))
    AC = 144
    for k in range(4):
        a('s_waitcnt lgkmcnt(%d)' % (3 - k))
        for T_ in range(4): a('v_mfma_f32_16x16x32_bf16 %s, %s, %s, %s' % (v((AC + 4 * T_) if T_ else ACC, 4), v(WF + 16 * T_ + 4 * k, 4), v(BH + 4 * k, 4), v((AC + 4 * T_) if T_ else ACC, 4) if k else '0'))
    if GH: a('v_readfirstlane_b32 s24, %s' % v(K + 3))
    for T_ in range(1, 4):
        for k in range(4): a('v_cndmask_b32 %s, %s, %s, %s' % (v(ACC + k), v(ACC + k), v(AC + 4 * T_ + k), s(58 + 2 * T_, 2)))
    a('s_mov_b32 exec_lo, 0x000f000f'); a('s_mov_b32 exec_hi, 0x000f000f')
    for k in range(4): a('v_and_or_b32 %s, %s, %s, %s' % (v(ACC + k), v(ACC + k), v(197), s(48 + k)))
    a('s_bitcmp1_b32 s24, s35'); a('s_cbranch_scc0 ffn_rem')
    a('buffer_store_dwordx4 %s, v30, s[4:7], s30 offen' % v(ACC, 4))
    if XB_: a('buffer_store_dword v26, v27, s[4:7], s31 offen')
    a.lines.append('ffn_fin:')
    st()
    st.dump(sv=250, wave='s3')
    a('s_endpgm')
    a.lines.append('ffn_rem:')
    a('buffer_store_dwordx4 %s, v30, s[4:7], s30 offen sc1' % v(ACC, 4))
    a('s_branch ffn_fin')
    if DEC:
        a.lines.append('ffn_p3_x:')
        a('s_add_u32 s58, s58, 1'); a('s_cmp_gt_u32 s58, 0x%x' % MAXPOLL); a('s_cbranch_scc1 ffn_p3_ok')
        a('s_cmp_lg_u32 s23, 0'); a('s_cbranch_scc1 ffn_p3')
        a('v_cmp_eq_u32 vcc, 8, v9'); a('s_cbranch_vccnz ffn_sl'); a('s_branch ffn_p3')
    a.lines.append('ffn_c3_rt:')
    if SPEC:
        a('s_mov_b64 vcc, s[42:43]'); a('s_add_u32 s58, s58, 1'); a('s_cmp_gt_u32 s58, 0x%x' % MAXPOLL); a('s_cbranch_scc1 ffn_c3_ok')
        a('buffer_load_dwordx4 %s, v29, s[4:7], s39 offen sc1' % v(CR, 4)); a('buffer_load_dwordx4 %s, v29, s[4:7], s39 offen offset:1024 sc1' % v(CR + 4, 4))
        a('s_branch ffn_c3d')
        a.lines.append('ffn_k3_rt:')
        a('s_cmp_lg_u32 s36, 0'); a('s_cselect_b32 s54, s39, -1')
        a('s_add_u32 s58, s58, 1'); a('s_cmp_lt_u32 s58, 0x%x' % MAXPOLL); a('s_cbranch_scc1 ffn_k3'); a('s_branch ffn_k3_ok')
    else:
        a('s_mov_b64 vcc, s[42:43]'); a('s_add_u32 s58, s58, 1'); a('s_cmp_lt_u32 s58, 0x%x' % MAXPOLL); a('s_cbranch_scc1 ffn_c3'); a('s_branch ffn_c3_ok')
    emit_stubs()
    a.lines.append('fz_codeend:')

def main(path):
    ref = open('/code/%s.s.ref' % NAME).read().splitlines()
    for l in ref:
        if l.startswith('; Override'): break
        a.raw(l)
    a.raw('; @launch kernel=fz_kernel grid=(256,1,1) block=(512,1,1) lds=163840')
    if STAMPS: a.raw('; @groups fftA=0-127:0-3,fftB=0-127:4-7,ffn=128-255:0-0,ffnall=128-255:1-7')
    a.raw('.amdgcn_target "amdgcn-amd-amdhsa--gfx950"'); a.raw('.text')
    gen()
    a.raw('.section .rodata,"a"')
    a.raw('\n'.join(['.p2align 6', '.amdhsa_kernel fz_kernel', '  .amdhsa_next_free_vgpr 256', '  .amdhsa_next_free_sgpr 102',
        '  .amdhsa_accum_offset 256', '  .amdhsa_group_segment_fixed_size 0', '  .amdhsa_kernarg_size 104', '  .amdhsa_user_sgpr_count 2',
        '  .amdhsa_user_sgpr_kernarg_segment_ptr 1', '  .amdhsa_system_sgpr_workgroup_id_x 1', '.end_amdhsa_kernel', '']))
    open(path, 'w').write(a.text())
    print('wrote', path, 'lines', len(a.lines), 'nops', a.nops)
if __name__ == '__main__':
    ps = [x for x in sys.argv[1:] if x.endswith('.s')]
    main(ps[0] if ps else '/code/%s.s' % NAME)
```

```python
import struct, sys
import os; _d = os.path.dirname(os.path.abspath(__file__)); sys.path.insert(0, _d); sys.path.insert(0, _d + '/mb')
from asmlib import Asm
from mblib import St
NAME = 'sequential_preLN__spectral_fnet__moe_arch_mod__prompt'
def fh(x): return '0x%08x' % struct.unpack('<I', struct.pack('<f', x))[0]
OPT = set(a for a in sys.argv[1:] if a.startswith('--'))
def optv(name, d):
    for o in OPT:
        if o.startswith('--%s=' % name): return int(o.split('=')[1])
    return d
STAMPS = '--stamps' in OPT
def v(i, n=1): return 'v%d' % i if n == 1 else 'v[%d:%d]' % (i, i + n - 1)
def s(i, n=1): return 's%d' % i if n == 1 else 's[%d:%d]' % (i, i + n - 1)
DPPF = 'row_mask:0xf bank_mask:0xf'
X1 = 'quad_perm:[1,0,3,2] ' + DPPF
def rbf(a, r): a('v_cvt_pk_bf16_f32 %s, 0, %s' % (v(r), v(r)))
def kr(r): return (r & 3) + 8 * (r >> 2)
PS = 16384 + 128
WOFF = 0x1000; YOFF = 0x210000; KRL = optv('krl', 4); KOFF = 0x580000; KS = (128 << KRL) + 128; COFF = 0x448000; XOFF = 0x488000; POFF = 0x4c8000; PPS = 4096 + 128; PIS = 3584 + 128
DOFF = 0x548000; FIOFF = 0x558000; DLOFF = 0x560000; WSB = 0x690000
RS = 2064
CT = 24 * RS; SB = CT + 18432; AB = SB + 18432; CPS = 8192 + 64; PR = AB + 2 * CPS; WR = PR + 2048; TRASH = WR + 2048; ACT = TRASH + 1024; SYNC = CT - 16
GT = 81920; SP = 65536; HN = GT + 65536; MSG = HN + 2048; RAW = MSG + 64
MAXPOLL = 0x10000
SPID = optv('spid', 66); POFS = (124 - SPID) & 127
class Asm2(Asm):
    def __call__(self, text):
        if text.startswith('v_cndmask_b32 '): text = 'v_cndmask_b32_e64 ' + text[14:]
        Asm.__call__(self, text)
a = Asm2()
class St2(St):
    def __call__(self):
        if '--early' in OPT and 5 < self.n < 15: self.n += 1; return
        if '--cnt' in OPT and 0 < self.n < 4: self.n += 1; return
        if '--tail' in OPT and 0 < self.n < 10: self.n += 1; return
        if '--mid' in OPT and (0 < self.n < 5 or 11 < self.n < 15): self.n += 1; return
        St.__call__(self)
st = St2(a, STAMPS); st.vw = True
def mst(i):
    if '--mid' in OPT and STAMPS: a('s_memrealtime s[%d:%d]' % (70 + 2 * i, 71 + 2 * i))
def tst(i):
    if '--tail' in OPT and STAMPS: a('s_memrealtime s[%d:%d]' % (70 + 2 * i, 71 + 2 * i))
def est(i):
    if '--early' in OPT and STAMPS: a('s_memrealtime s[%d:%d]' % (70 + 2 * i, 71 + 2 * i))
stubs = []
def poll_retry(name, cnt=58):
    a('s_cbranch_vccnz %s_rt' % name)
    a.lines.append('%s_ok:' % name)
    stubs.append((name, cnt))
prog = []
def prog_poll(name, n, issue, check, after=None):
    for u in range(n):
        a.lines.append('%s_c%d:' % (name, u))
        a('s_waitcnt vmcnt(%d)' % (n - 1 - u))
        check(u)
        a('s_cbranch_vccnz %s_r%d' % (name, u))
        a.lines.append('%s_o%d:' % (name, u))
        if after: after(u)
    prog.append((name, n, issue))
def emit_stubs():
    for name, n, issue in prog:
        for u in range(n):
            a.lines.append('%s_r%d:' % (name, u))
            a('s_add_u32 s58, s58, 1'); a('s_cmp_gt_u32 s58, 0x%x' % MAXPOLL); a('s_cbranch_scc1 %s_o%d' % (name, u))
            if '--cnt' in OPT and name in ('fz_h1', 'fz_h2', 'fz_h5'): r = {'fz_h1': 72, 'fz_h2': 74, 'fz_h5': 76}[name]; a('s_add_u32 s%d, s%d, %d' % (r, r, n - u))
            for k in range(u, n): issue(k)
            a('s_branch %s_c%d' % (name, u))
    for name, cnt in stubs:
        a.lines.append('%s_rt:' % name)
        a('s_add_u32 %s, %s, 1' % (s(cnt), s(cnt))); a('s_cmp_lt_u32 %s, 0x%x' % (s(cnt), MAXPOLL))
        a('s_cbranch_scc1 %s' % name); a('s_branch %s_ok' % name)
def angles(mulreg, basereg, ks, tmp):
    for i, k in enumerate(ks):
        if k == 0: a('v_mov_b32 %s, %s' % (v(tmp + i), v(basereg)))
        else: a('v_fmamk_f32 %s, %s, %s, %s' % (v(tmp + i), v(mulreg), fh(float(k)), v(basereg)))
def trig(fn, t, n):
    for i in range(n): a('v_%s_f32 %s, %s' % (fn, v(t + i), v(t + i)))
def pack(dst, t, n, kind='f16'):
    for p in range(n // 2): a('v_cvt_pk_%s_f32 %s, %s, %s' % (kind, v(dst + p), v(t + 2 * p), v(t + 2 * p + 1)))
def tags():
    a('v_readfirstlane_b32 s40, v250')
    a('s_add_u32 s40, s40, 1'); a('s_and_b32 s38, s40, 3'); a('s_and_b32 s39, s40, 15')
    for i in range(4):
        a('s_bfe_u32 s41, s40, 0x%x' % ((2 << 16) | (2 * i + 2))); a('s_lshl_b32 s41, s41, 16'); a('s_or_b32 %s, s38, s41' % s(44 + i))
        a('s_bfe_u32 s41, s40, 0x%x' % ((4 << 16) | (4 * i + 4))); a('s_lshl_b32 s41, s41, 4'); a('s_or_b32 %s, s39, s41' % s(48 + i))
def srd(d, nbytes): a('s_mov_b32 %s, 0x%x' % (s(d + 2), nbytes)); a('s_mov_b32 %s, 0x00020000' % s(d + 3))
def blk(dst, tmp):
    if optv('bm', 0):
        e = optv('bm', 0) - 1
        a('s_add_u32 %s, s2, %d' % (s(tmp), 7 - e)); a('s_and_b32 %s, %s, 7' % (s(tmp), s(tmp))); a('s_bfe_u32 %s, s2, 0x10006' % s(tmp + 1))
        a('s_lshl_b32 %s, %s, 1' % (s(dst), s(tmp))); a('s_add_u32 %s, %s, %s' % (s(dst), s(dst), s(tmp + 1))); a('s_min_u32 %s, %s, 14' % (s(dst), s(dst)))
        return
    a('s_add_u32 %s, s2, 4' % s(tmp)); a('s_and_b32 %s, %s, 7' % (s(tmp), s(tmp))); a('s_bfe_u32 %s, s2, 0x10006' % s(tmp + 1))
    a('s_lshl_b32 %s, %s, 1' % (s(dst), s(tmp))); a('s_add_u32 %s, %s, %s' % (s(dst), s(dst), s(tmp + 1)))
    a('s_cmp_lg_u32 %s, 0' % s(tmp + 1)); a('s_cselect_b32 %s, 8, %s' % (s(tmp + 1), s(tmp))); a('s_add_u32 %s, %s, 6' % (s(tmp + 1), s(tmp + 1)))
    a('s_cmp_lt_u32 %s, 6' % s(tmp)); a('s_cselect_b32 %s, %s, %s' % (s(dst), s(dst), s(tmp + 1)))
def cand_off(d, o, t, m):
    a('v_and_b32 %s, 31, %s' % (v(t), v(d))); a('v_lshrrev_b32 %s, 5, %s' % (v(t + 1), v(d)))
    a('v_cmp_gt_u32 vcc, 16, %s' % v(t + 1))
    a('v_cmp_lt_u32 %s, 16, %s' % (s(m, 2), v(t))); a('v_cmp_eq_u32 %s, 0, %s' % (s(m + 2, 2), v(t))); a('s_and_b64 %s, %s, vcc' % (s(m + 2, 2), s(m + 2, 2))); a('s_or_b64 %s, %s, %s' % (s(m, 2), s(m, 2), s(m + 2, 2)))
    a('v_cmp_eq_u32 %s, 16, %s' % (s(m + 2, 2), v(t))); a('s_andn2_b64 %s, %s, vcc' % (s(m + 2, 2), s(m + 2, 2))); a('s_or_b64 %s, %s, %s' % (s(m, 2), s(m, 2), s(m + 2, 2)))
    e, u = v(t + 2), v(t + 3)
    a('v_sub_u32 %s, 1024, %s' % (e, v(d))); a('v_cndmask_b32 %s, %s, %s, %s' % (e, v(d), e, s(m, 2)))
    a('v_mov_b32 %s, 512' % u); a('v_cmp_eq_u32 vcc, 1024, %s' % e); a('v_cndmask_b32 %s, %s, %s, vcc' % (e, e, u))
    a('v_lshrrev_b32 %s, 5, %s' % (u, e)); a('v_and_b32 %s, 15, %s' % (e, e))
    a('v_lshrrev_b32 %s, 2, %s' % (v(o), u)); a('v_lshlrev_b32 %s, 8, %s' % (v(o), v(o))); a('v_and_b32 %s, 3, %s' % (u, u)); a('v_lshl_add_u32 %s, %s, 4, %s' % (v(o), u, v(o)))
    a('v_lshrrev_b32 %s, 3, %s' % (u, e)); a('v_lshl_add_u32 %s, %s, 6, %s' % (v(o), u, v(o))); a('v_and_b32 %s, 7, %s' % (e, e)); a('v_lshl_add_u32 %s, %s, 1, %s' % (v(o), e, v(o)))
    a('v_cndmask_b32 %s, 0, 1, %s' % (e, s(m, 2))); a('v_lshl_add_u32 %s, %s, 7, %s' % (v(o), e, v(o)))
def keys_argmax(K, gidx, name):
    a('v_xor_b32 %s, s40, %s' % (v(K + 8), v(K + 3))); a('v_xor_b32 %s, s40, %s' % (v(K + 9), v(K + 7)))
    a('v_max_u32 %s, %s, %s' % (v(K + 10), v(K), v(K + 4)))
    a('v_or_b32 %s, %s, %s' % (v(K + 8), v(K + 8), v(K + 9)))
    a('v_cmp_ne_u32 vcc, 0, %s' % v(K + 8))
    poll_retry(name)
    for pat in ['quad_perm:[1,0,3,2] ' + DPPF, 'quad_perm:[2,3,0,1] ' + DPPF, 'row_half_mirror ' + DPPF,
                'row_mirror ' + DPPF, 'row_bcast:15 row_mask:0xa bank_mask:0xf', 'row_bcast:31 row_mask:0xc bank_mask:0xf']:
        a('v_max_u32_dpp %s, %s, %s %s' % (v(K + 10), v(K + 10), v(K + 10), pat))
    a('v_readlane_b32 s36, %s, 63' % v(K + 10))

def gen():
    PIN = optv('pin', 1); WLIN = optv('wlin', 0); YLIN = optv('ylin', 0); WT = optv('wt', 1); DTH = optv('dth', 0); SPEC = optv('spec', 0); B2L = optv('b2l', 1); A2L = optv('a2l', 1); AC_ = optv('ac', 1); FL = optv('fl', 1); BC = optv('bc', 0); CL = optv('cl', 1); XB_ = optv('xb', 0); GH = optv('gh', 1); EP2 = optv('ep2', 0); EP = optv('ep', 5); TWO = optv('two', 0); L2P = optv('l2p', 0); DEC = optv('dec', 0)
    APP = optv('app', 0); WL = optv('wl', 0)
    BP = optv('bp', 1); THR = optv('thr', 0); THR2 = optv('thr2', 0)
    KP = optv('kp', 0); DB = optv('db', 3)
    PFC = optv('pfc', 1); WSP = optv('wsp', 2204); WE = WSP // 1000; W2 = WE + WSP // 100 % 10; W3 = W2 + WSP // 10 % 10; assert W3 + WSP % 10 == 8; OLATE = '--olate' in OPT; GATE = optv('gate', 0)
    TOUCH = optv('touch', 0); LOCAL = '--nolocal' not in OPT
    NE = optv('ne', 0); LATEX = '--earlyx' not in OPT
    a.raw('.globl fz_kernel'); a.raw('.p2align 8'); a.raw('.type fz_kernel,@function'); a.lines.append('fz_kernel:')
    st()
    if STAMPS:
        for i in range(1, 16): a('s_mov_b32 s%d, %d' % (70 + 2 * i, 0 if ('--cnt' in OPT and i < 4) else -1))
    F1, TC, TS, C2, S2, B3C, B3S, CQ = 16, 24, 32, 40, 48, 56, 64, 72
    XA, XB, XAC, XBC, H, T, TP, ST = 88, 96, 104, 120, 136, 144, 152, 160
    XD, WV, WD = 28, 200, 168
    vSW, vSR, vWST, vHL, vA0, vA1, vAR, vY0, vY1, vYL, vM, vT, vXR, vXM, vE0, vM0, vYE, vZM = 216, 217, 221, 222, 223, 224, 225, 226, 227, 228, 229, 230, 231, 232, 233, 234, 236, 238
    vL16, vSG, vM0m, vPW, vPD, vPR, vKA, vCA, vTK, vMT, vE = 239, 240, 241, 243, 244, 245, 246, 247, 248, 249, 252
    a('s_load_dwordx2 s[4:5], s[0:1], 96'); a('s_load_dwordx2 s[8:9], s[0:1], 0'); a('s_load_dwordx2 s[64:65], s[0:1], 72')
    a('s_cmp_gt_u32 s2, 255'); a('s_cbranch_scc1 fz_end')
    a('v_lshrrev_b32 v2, 6, v0'); a('v_and_b32 v1, 63, v0')
    a('s_lshr_b32 s59, s2, 7')
    a('v_readfirstlane_b32 s3, v2')
    if PFC:
        a('s_and_b32 s20, s2, %d' % (255 if '--pfh0' in OPT else 127)); a('s_cmp_lt_u32 s20, %d' % (8 * PFC)); a('s_cselect_b32 s20, s3, 0'); a('s_cmp_lt_u32 s20, 4'); a('s_cbranch_scc1 fz_pfcback')
        a('s_getpc_b64 s[20:21]')
        a.lines.append('fz_pcb:')
        a('s_sub_u32 s20, s20, fz_pcb-fz_kernel'); a('s_subb_u32 s21, s21, 0')
        a('v_and_b32 v3, 255, v0'); a('v_lshlrev_b32 v3, 7, v3'); a('v_min_u32 v3, fz_codeend-fz_kernel-4, v3')
        a('v_mov_b32 v5, s21'); a('v_add_co_u32 v4, vcc, s20, v3'); a('v_addc_co_u32 v5, vcc, 0, v5, vcc')
        a('global_load_dword v251, v[4:5], off')
        a.lines.append('fz_pfcback:')
    a('s_cmp_lg_u32 s59, 0'); a('s_cbranch_scc1 fz_ldh')
    a('s_load_dwordx2 s[12:13], s[0:1], 80'); a('s_load_dwordx2 s[16:17], s[0:1], 48')
    a.lines.append('fz_ldback:')
    a('s_add_u32 s20, s2, %d' % POFS); a('s_and_b32 s20, s20, 127')
    a('s_lshr_b32 s21, s20, 3'); a('s_add_u32 s21, s21, 1'); a('s_and_b32 s22, s20, 7')
    a('s_sub_u32 s23, s20, 124'); a('s_cmp_ge_u32 s20, 124'); a('s_cselect_b32 s21, 0, s21'); a('s_cselect_b32 s22, s23, s22')
    a('s_lshr_b32 s57, s3, 2'); a('s_or_b32 s23, s57, s59'); a('s_and_b32 s24, s3, 3')
    a('s_lshl_b32 s25, s22, 6'); a('s_add_u32 s25, s25, s21')
    a('s_lshl_b32 s26, s23, 5'); a('s_add_u32 s26, s26, s25')
    a('s_lshl_b32 s27, s24, 9'); a('s_add_u32 s28, s26, s27')
    a('s_sub_u32 s27, 2048, s27'); a('s_sub_u32 s27, s27, s26')
    a('s_lshl_b32 s29, s24, 1'); a('s_add_u32 s29, s29, s23'); a('s_sub_u32 s30, 15, s29')
    a('s_cmp_lt_u32 s24, 2'); a('s_cselect_b32 s27, s28, s27'); a('s_cselect_b32 s31, s29, s30'); a('s_cselect_b32 s30, s30, s29')
    a('s_sub_u32 s28, 2048, s27'); a('s_and_b32 s28, s28, 2047')
    a('s_lshl_b32 s27, s27, 11'); a('s_lshl_b32 s28, s28, 11')
    a('s_mul_i32 s31, s31, %d' % RS); a('s_mul_i32 s30, s30, %d' % RS)
    a('v_lshlrev_b32 %s, 4, v1' % v(vL16))
    srd(8, 2048 * 2048); srd(4, WSB); srd(64, 0x700000)
    a('s_and_b32 s32, s57, s59')
    blk(63, 36); a('s_lshl_b32 s63, s63, 3'); a('s_bfe_u32 s37, s2, 0x30003'); a('s_add_u32 s63, s63, s37')
    a('v_and_b32 v10, 15, v1'); a('v_lshlrev_b32 v10, 4, v10'); a('v_lshrrev_b32 v14, 4, v1'); a('v_lshl_add_u32 v14, v14, 11, v10')
    a('s_lshl_b32 s62, s63, 16'); a('s_and_b32 s37, s3, 3'); a('s_lshl_b32 s37, s37, 9'); a('s_add_u32 s62, s62, s37')
    WQ = [160 + 4 * i for i in range(10)] + [60, 64, 68, 88, 92, 96]
    def wdload(q0=0, q1=8):
        for q in range(q0, q0 if '--xnowd' in OPT else q1):
            for h in range(2): a('buffer_load_dwordx4 %s, v14, s[64:67], s62 offen offset:%d%s' % (v(WQ[2 * q + h], 4), 256 * h, '' if '--wpl' in OPT else ' nt'))
            if q < 7: a('s_add_u32 s62, s62, 8192')
    a('s_mov_b32 s58, 0')
    a('s_waitcnt lgkmcnt(0)')
    st()
    if optv('wsb', 0): a('s_add_u32 s4, s4, 0x%x' % (optv('wsb', 0) << 20)); a('s_addc_u32 s5, s5, 0')
    a('s_cmp_eq_u32 s2, %d' % SPID); a('s_cbranch_scc1 fz_spec')
    a.lines.append('fz_specback:')
    def xload(f=''):
        a('s_mov_b32 m0, s31'); a('s_nop 0')
        a('buffer_load_dwordx4 %s, s[8:11], s27 offen%s lds' % (v(vL16), f)); a('buffer_load_dwordx4 %s, s[8:11], s27 offen offset:1024%s lds' % (v(vL16), f))
        a('s_mov_b32 m0, s30'); a('s_nop 0')
        a('buffer_load_dwordx4 %s, s[8:11], s28 offen%s lds' % (v(vL16), f)); a('buffer_load_dwordx4 %s, s[8:11], s28 offen offset:1024%s lds' % (v(vL16), f))
    def extras():
        a('v_lshlrev_b32 v13, 3, v0'); a('v_mov_b32 v10, -1'); a('v_mov_b32 v11, -1'); a('s_lshl_b32 s32, s20, 11'); a('s_add_u32 s32, s32, 0x%x' % (COFF - 2048))
        srd(16, 2048)
        a('s_lshl_b32 s33, s24, 10'); a('s_min_u32 s34, s33, 2048'); a('s_add_u32 s34, s34, %d' % WR); a('s_mov_b32 m0, s34')
        a('buffer_store_dwordx2 v[10:11], v13, s[4:7], s32 offen sc1')
        a('buffer_load_dwordx4 %s, s[16:19], s33 offen lds' % v(vL16))
    def latex(): xload(' nt' if optv('xnt', 3) & 2 else ''); extras()
    a('s_cmp_lg_u32 %s, 0' % ('s57' if LATEX else 's32')); a('s_cbranch_scc1 fz_nox')
    xload(' nt' if optv('xnt', 3) & 1 else '')
    a.lines.append('fz_nox:')
    a('buffer_load_dword v250, off, s[4:7], 0')
    if WE:
        a('s_andn2_b32 s32, s57, s59'); a('s_cbranch_scc0 fz_nowe')
        wdload(0, WE)
        a.lines.append('fz_nowe:')
    if not LATEX:
        a('s_andn2_b32 s32, s3, 3'); a('s_cmp_gt_u32 s32, s59'); a('s_cselect_b32 s32, 1, 0'); a('s_andn2_b32 s32, s32, s59'); a('s_cbranch_scc0 fz_noclr')
        extras()
        a.lines.append('fz_noclr:')
    est(6)
    if BP: a('s_cmp_eq_u32 s57, 0'); a('s_cbranch_scc1 fz_np'); a('s_setprio 1'); a.lines.append('fz_np:')
    a('v_and_b32 v2, 31, v1'); a('v_lshrrev_b32 v3, 5, v1'); a('v_and_b32 v4, 15, v1'); a('v_lshrrev_b32 v5, 4, v1')
    a('v_add_u32 v6, %d, %s' % (CT, v(vL16)))
    TT = XAC
    JT = 128
    def cq_job():
        a('s_and_b32 s32, s3, 1'); a('s_lshl_b32 s33, s32, 2'); a('s_lshl_b32 s32, s32, 11')
        a('v_and_b32 v8, 3, v4'); a('v_lshrrev_b32 v9, 2, v4'); a('v_lshl_add_u32 v8, v8, 3, v9'); a('v_add_u32 v8, s33, v8')
        a('v_cvt_f32_u32 v8, v8'); a('v_mul_f32 v8, %s, v8' % fh(1 / 32)); a('v_cvt_f32_u32 v9, v5'); a('v_mul_f32 v9, 4.0, v9'); a('v_mul_f32 v9, v8, v9')
        angles(8, 9, [0, 1, 2, 3, 16, 17, 18, 19], TT)
        for i in range(8): a('v_sin_f32 %s, %s' % (v(TT + 8 + i), v(TT + i)))
        trig('cos', TT, 8)
        for i in range(16): a('v_mul_f32 %s, %s, %s' % (v(TT + i), fh(1 / 16), v(TT + i)))
        pack(JT, TT, 16); a('v_add_u32 v8, s32, v6')
        for q in range(2): a('ds_write_b128 v8, %s offset:%d' % (v(JT + 4 * q, 4), 1024 * (14 + q)))
    a('v_lshrrev_b32 v10, 1, v2'); a('v_and_b32 v8, 9, v10'); a('v_and_b32 v11, 2, v10'); a('v_lshl_or_b32 v8, v11, 1, v8')
    a('v_bfe_u32 v11, v10, 2, 1'); a('v_lshl_or_b32 v8, v11, 1, v8')
    a('v_and_b32 v12, 1, v5'); a('v_cmp_eq_u32 vcc, 1, v12'); a('v_lshl_add_u32 v9, v4, 1, 1'); a('v_cndmask_b32 v9, v9, 0, vcc')
    a('s_cmp_lt_u32 s3, 5'); a('s_cselect_b64 s[32:33], -1, 0')
    a('s_cmp_lt_u32 s3, 3'); a('s_cselect_b64 s[34:35], -1, 0')
    a('v_cndmask_b32 v9, v9, v2, s[32:33]'); a('v_cndmask_b32 v8, v9, v8, s[34:35]')
    a('s_mov_b32 s36, %s' % fh(1 / 32)); a('s_cmp_gt_u32 s3, 4'); a('s_cselect_b32 s36, %s, s36' % fh(1 / 64))
    a('s_sub_u32 s37, s3, 1'); a('s_cmp_lt_u32 s37, 2'); a('s_cselect_b32 s36, %s, s36' % fh(1 / 1024))
    a('s_cmp_eq_u32 s3, 0'); a('s_cselect_b32 s32, 16, 0'); a('s_cselect_b32 s33, %s, 0' % fh(0.25)); a('s_cselect_b32 s34, 4.0, %s' % fh(8.0)); a('s_cselect_b32 s35, %s, 4.0' % fh(8.0))
    a('v_cmp_eq_u32 vcc, 1, v2'); a('v_mov_b32 v10, s32'); a('v_cndmask_b32 v10, 0, v10, vcc'); a('v_add_u32 v8, v8, v10')
    a('v_cvt_f32_u32 v8, v8'); a('v_mul_f32 v8, s36, v8')
    a('s_cmp_eq_u32 s3, 2'); a('s_cselect_b32 s32, 0x80000000, 0'); a('v_lshlrev_b32 v10, 31, v2'); a('v_and_b32 v10, s32, v10'); a('v_xor_b32 v8, v10, v8')
    a('v_and_b32 v10, 1, v2'); a('v_cvt_f32_u32 v10, v10'); a('v_mul_f32 v10, s33, v10')
    a('s_cmp_eq_u32 s3, 1'); a('s_cselect_b32 s33, %s, 0' % fh(0.25)); a('v_mov_b32 v11, s33'); a('v_cndmask_b32 v10, v10, v11, vcc')
    a('s_cmp_eq_u32 s3, 5'); a('s_cselect_b32 s33, %s, 0' % fh(0.25)); a('v_cvt_f32_u32 v12, v12'); a('v_fma_f32 v10, v12, s33, v10')
    a('s_cmp_eq_u32 s3, 6'); a('s_cselect_b32 s33, %s, 0' % fh(0.25))
    a('s_cmp_eq_u32 s3, 2'); a('s_cselect_b32 s33, %s, s33' % fh(-0.25)); a('s_cmp_eq_u32 s3, 4'); a('s_cselect_b32 s33, %s, s33' % fh(-0.25))
    a('v_add_f32 v10, s33, v10'); a('v_cvt_f32_u32 v11, v3'); a('v_mul_f32 v11, s35, v11'); a('v_fma_f32 v9, v8, v11, v10')
    a('v_mul_f32 v10, s34, v8'); a('v_mul_f32 v11, %s, v8' % fh(16.0))
    angles(8, 9, [0, 1, 2, 3], TT)
    for i in range(4): a('v_add_f32 %s, %s, v10' % (v(TT + 4 + i), v(TT + i)))
    for i in range(8): a('v_add_f32 %s, %s, v11' % (v(TT + 8 + i), v(TT + i)))
    est(7)
    trig('cos', TT, 16)
    a('s_lshl_b32 s32, s3, 11'); a('v_add_u32 v8, s32, v6')
    a('s_cmp_eq_u32 s3, 0'); a('s_cbranch_scc1 fz_jb')
    pack(JT, TT, 16)
    a.lines.append('fz_jend:')
    for q in range(2): a('ds_write_b128 v8, %s offset:%d' % (v(JT + 4 * q, 4), 1024 * q))
    B1, TC2, TS2 = 16, 20, 24
    vA = [vA0, vA1, 100, 101]
    def sync_add(val):
        a('v_mov_b32 v10, %d' % val); a('s_mov_b64 exec, 1'); a('ds_add_u32 v15, v10'); a('s_mov_b64 exec, -1')
    def SETA(full=True):
        a('s_and_b32 s32, s3, 3'); a('s_lshr_b32 s33, s3, 2'); a('s_lshl_b32 s33, s33, 4'); a('s_add_u32 s33, s33, s32')
        a('v_and_b32 v8, 12, v4'); a('v_bfe_u32 v9, v4, 1, 1'); a('v_lshl_add_u32 v8, v9, 5, v8'); a('v_add_u32 v8, s33, v8')
        a('v_cvt_f32_u32 v8, v8'); a('v_and_b32 v12, 1, v1'); a('v_cvt_f32_u32 v9, v12'); a('v_lshlrev_b32 v13, 2, v5'); a('v_cvt_f32_u32 v10, v13')
        a('v_mul_f32 v11, %s, v8' % fh(1 / 64)); a('v_mul_f32 v9, %s, v9' % fh(0.25)); a('v_fma_f32 v9, v11, v10, v9')
        TT = XAC
        angles(11, 9, [0, 1, 2, 3], TT + 24)
        a('v_mul_f32 v11, %s, v8' % fh(1 / 2048)); a('v_lshlrev_b32 v9, 31, v1'); a('v_xor_b32 v11, v9, v11'); a('v_mul_f32 v9, v11, v10')
        angles(11, 9, [0, 1, 2, 3, 16, 17, 18, 19], TT + 8)
        for i in range(8): a('v_%s_f32 %s, %s' % ('sin' if i & 1 else 'cos', v(TT + i), v(TT + 24 + (i >> 1))))
        for i in range(8): a('v_sin_f32 %s, %s' % (v(TT + 16 + i), v(TT + 8 + i)))
        trig('cos', TT + 8, 8)
        pack(B1, TT, 24)
        if full:
            a('v_lshrrev_b32 v8, 3, v1'); a('v_mul_u32_u24 %s, %d, v8' % (v(vHL), PS)); a('v_and_b32 v9, %d, v1' % (3 if WLIN else 7)); a('v_lshl_add_u32 %s, v9, 4, %s' % (v(vHL), v(vHL)))
            if WLIN: a('v_bfe_u32 v9, v1, 2, 1'); a('v_lshl_add_u32 %s, v9, 13, %s' % (v(vHL), v(vHL)))
            a('s_mul_i32 s60, s3, %d' % (32 * PS)); a('s_lshl_b32 s32, s20, %d' % (6 if WLIN else 7)); a('s_add_u32 s60, s60, s32'); a('s_add_u32 s60, s60, 0x%x' % WOFF); a('s_add_u32 s61, s60, %d' % (8 * PS)); a('s_add_u32 s16, s60, %d' % (16 * PS)); a('s_add_u32 s17, s60, %d' % (24 * PS))
            a('v_lshlrev_b32 v8, 1, v8'); a('v_bfe_u32 v9, v1, 2, 1'); a('v_add_u32 v8, v8, v9'); a('s_lshl_b32 s32, s3, 2'); a('s_add_u32 s32, s32, 1')
            a('v_lshl_add_u32 v8, v8, 5, s32')
            a('v_cmp_eq_u32 vcc, 1, v12')
            a('v_bfe_u32 v9, v1, 1, 1'); a('v_mul_u32_u24 v9, %d, v9' % CPS); a('v_add_u32 v9, %d, v9' % AB)
            a('s_cmp_eq_u32 s3, 3'); a('s_cselect_b32 s32, 272, 0')
            for u, dst in enumerate(vA):
                if u == 3: a('v_mul_u32_u24 v10, s32, v3'); a('v_sub_u32 v8, v8, v10')
                if u: a('v_add_u32 v8, 1, v8')
                a('v_sub_u32 v10, 512, v8'); a('v_cndmask_b32 v10, v8, v10, vcc')
                if u == 3: a('v_lshrrev_b32 v11, 1, v10'); a('v_and_b32 v11, 256, v11'); a('v_sub_u32 v10, v10, v11')
                a('v_and_b32 v11, 16, v10'); a('v_lshl_add_u32 v11, v11, 6, v9'); a('v_lshrrev_b32 v12, 7, v10'); a('v_lshl_add_u32 v11, v12, 8, v11')
                a('v_and_b32 v12, 15, v10'); a('v_lshl_add_u32 v11, v12, 4, v11'); a('v_bfe_u32 v12, v10, 5, 2'); a('v_lshl_add_u32 %s, v12, 2, v11' % v(dst))
        a('s_and_b32 s32, s3, 3'); a('s_lshl_b32 s32, s32, 11'); a('s_add_u32 s32, s32, %d' % AB); a('v_add_u32 %s, s32, %s' % (v(vAR), v(vL16)))
        if not YLIN:
            a('v_add_u32 v8, s33, v13')
            a('v_sub_u32 v9, 32, v8'); a('v_min_u32 v9, v8, v9')
            a('v_and_b32 v10, 15, v8'); a('v_cmp_eq_u32 s[32:33], 0, v10')
            a('v_cmp_lt_u32 s[34:35], 16, v8')
            a('v_lshlrev_b32 v10, 10, v9'); a('v_subrev_u32 v10, 1024, v10'); a('v_mov_b32 v11, %d' % (124 * 128)); a('v_cmp_eq_u32 vcc, 0, v8'); a('v_cndmask_b32 v10, v10, v11, vcc')
            a('v_and_b32 v11, 3, v1'); a('v_lshl_add_u32 v10, v11, 4, v10')
            a('v_lshrrev_b32 v11, 2, v4'); a('v_lshlrev_b32 v12, 7, v11')
            for tau, dst in ((0, vY0), (1, vY1)):
                if tau: a('s_or_b64 s[34:35], s[34:35], s[32:33]'); a('v_add_u32 v12, 512, v12')
                a('v_sub_u32 v13, %d, v12' % (7 * 128 + 64))
                a('v_cndmask_b32 v13, v12, v13, s[34:35]'); a('v_add_u32 %s, v10, v13' % v(dst))
        a('s_mul_i32 s56, s20, %d' % PS); a('s_add_u32 s56, s56, 0x%x' % YOFF)
        if YLIN: a('s_lshl_b32 s32, s3, 11'); a('s_add_u32 s56, s56, s32')
        a('v_mov_b32 %s, 0x30003' % v(vMT))
        for k in range(4): a('v_mov_b32 %s, %s' % (v(vE + k), s(44 + k)))
        a('s_waitcnt lgkmcnt(0)')
    def SETB(sfx):
        a('v_sub_u32 v8, 15, v4'); a('v_min_u32 v8, v4, v8')
        a('v_and_b32 v9, 1, v8'); a('v_lshlrev_b32 v9, 5, v9'); a('v_lshrrev_b32 v10, 1, v8'); a('v_lshl_add_u32 v9, v10, 9, v9'); a('v_add_u32 v9, s25, v9')
        a('v_sub_u32 v10, 2048, v9'); a('v_cmp_lt_u32 s[34:35], 7, v4'); a('v_cndmask_b32 %s, v9, v10, s[34:35]' % v(vT))
        a('v_mov_b32 v9, v4'); a('v_mov_b32 v10, s20')
        a('s_cmp_lg_u32 s21, 0'); a('s_cbranch_scc0 fz_spec3%s' % sfx)
        a.lines.append('fz_spec3back%s:' % sfx)
        if YLIN:
            a('v_mul_u32_u24 v11, %d, v5' % (4 * PS)); a('v_and_b32 v10, 0xc0, %s' % v(vT)); a('v_add_u32 v11, v11, v10')
            for pos, wid, dst in ((0, 2, 11), (4, 1, 13), (8, 1, 10), (2, 2, 8), (9, 2, 4)):
                a('v_bfe_u32 v10, %s, %d, %d' % (v(vT), pos, wid)); a('v_lshl_add_u32 v11, v10, %d, v11' % dst)
            a('v_bfe_u32 v9, %s, 5, 1' % v(vT)); a('v_lshl_add_u32 %s, v9, 3, v11' % v(vYL))
        else:
            a('v_lshlrev_b32 v10, 7, v10'); a('v_lshl_add_u32 v10, v9, 3, v10'); a('v_mul_u32_u24 v11, %d, v5' % (4 * PS)); a('v_add_u32 %s, v10, v11' % v(vYL))
        a('v_and_b32 v9, 1, v9'); a('v_cmp_eq_u32 vcc, 1, v9')
        a('v_mov_b32 v9, s44'); a('v_mov_b32 v10, s46'); a('v_cndmask_b32 %s, v9, v10, vcc' % v(vYE))
        a('v_mov_b32 v9, s45'); a('v_mov_b32 v10, s47'); a('v_cndmask_b32 %s, v9, v10, vcc' % v(vYE + 1))
        a('s_lshl_b32 s32, s3, 2'); a('v_add_u32 v8, s32, v5')
        a('v_lshlrev_b32 v9, 6, v8')
        a('v_cmp_gt_u32 vcc, 16, v8'); a('v_cndmask_b32 v10, 0, 32, vcc'); a('v_add_u32 v10, v9, v10')
        a('v_sub_u32 v11, 2048, v10'); a('v_cmp_eq_u32 vcc, 16, v8'); a('v_cndmask_b32 v11, v11, 0, vcc')
        a('v_mov_b32 v12, 0xffff0000'); a('v_cndmask_b32 %s, -1, v12, vcc' % v(vZM))
        a('v_sub_u32 v12, %d, v9' % (2048 - 30))
        a('v_mul_u32_u24 v13, %d, v4' % RS)
        a('v_add_u32 %s, v13, v9' % v(vXR)); a('v_add_u32 %s, v13, v12' % v(vXM)); a('v_add_u32 %s, v13, v10' % v(vE0)); a('v_add_u32 v241, v13, v11')
        a('s_lshl_b32 s32, s3, 8'); a('s_add_u32 s32, s32, %d' % PR)
        a('v_lshlrev_b32 v9, 4, v4'); a('v_add_u32 v10, s32, v9'); a('v_add_u32 v11, %d, %s' % (TRASH, v(vL16)))
        a('v_cmp_gt_u32 vcc, 16, v1'); a('v_cndmask_b32 %s, v11, v10, vcc' % v(vPW))
        a('v_lshrrev_b32 v12, 2, v4'); a('v_cmp_eq_u32 vcc, v12, v5'); a('v_cndmask_b32 %s, v11, v10, vcc' % v(vPD))
        a('v_lshrrev_b32 v12, 5, v1'); a('v_lshl_add_u32 v10, v12, 10, v9'); a('v_add_u32 %s, %d, v10' % (v(vPR), PR))
        a('v_and_b32 v9, 1, v1'); a('v_cmp_eq_u32 s[28:29], 1, v9'); a('v_and_b32 v9, 2, v1'); a('v_cmp_eq_u32 s[30:31], 2, v9')
        a('s_lshl_b32 s37, s3, 2'); a('v_add_u32 v9, s37, v5'); a('v_mul_u32_u24 %s, %d, v9' % (v(vKA), KS))
        a('s_lshl_b32 s26, s20, %d' % KRL); a('s_add_u32 s26, s26, 0x%x' % KOFF)
        a('v_lshlrev_b32 %s, 4, v5' % v(vCA)); a('s_lshl_b32 s27, s20, 11'); a('s_lshl_b32 s37, s3, 8'); a('s_add_u32 s27, s27, s37'); a('s_add_u32 s27, s27, 0x%x' % COFF)
        a('v_sub_u32 %s, 2047, %s' % (v(vTK), v(vT)))
        srd(12, 2048 * 2048)
        a('s_mul_i32 s52, s3, %d' % (16 * PS)); a('s_add_u32 s52, s52, 0x%x' % YOFF)
        for jx in range(1, 4): a('s_add_u32 %s, s52, %d' % (s(52 + jx), jx * PS))
        a('s_mov_b32 s23, s63')
        if XB_:
            a('s_cmp_lg_u32 s3, 7'); a('s_cbranch_scc1 fz_nb%s' % sfx)
            a('s_lshl_b32 s37, s23, 7'); a('s_add_u32 s37, s37, 0x%x' % DLOFF); a('s_not_b32 s36, s40'); a('v_mov_b32 v10, s36'); a('v_lshlrev_b32 v11, 2, v2')
            a('buffer_store_dword v10, v11, s[4:7], s37 offen')
            a.lines.append('fz_nb%s:' % sfx)
        a('s_getreg_b32 s24, hwreg(HW_REG_XCC_ID)'); a('s_and_b32 s24, s24, 15')
        a('v_lshlrev_b32 v10, 4, v0'); a('v_min_u32 v10, 4336, v10'); a('v_add_u32 v10, %d, v10' % ACT)
        for k in range(4): a('v_mov_b32 %s, 0' % v(XAC + k))
        a('ds_write_b128 v10, %s' % v(XAC, 4))
    def SET2(px=True, pw=True):
        XP = 116
        if px: SET2x(XP)
        if pw: SET2w(XP)
    def SET2x(XP):
        a('ds_read_b128 %s, %s' % (v(XP, 4), v(vXR))); a('ds_read_b128 %s, %s offset:16' % (v(XP + 4, 4), v(vXR)))
        a('ds_read_u16_d16_hi %s, %s' % (v(XD + 16), v(vM0m)))
        for e in range(1, 16): a('ds_read_u16_d16_hi %s, %s offset:%d' % (v(XD + 16 + e), v(vXM), 2 * (15 - e)))
        a('ds_read_u16_d16_hi %s, %s' % (v(XD), v(vE0)))
        a('s_mov_b32 s36, 0xffff0000')
        a('s_waitcnt lgkmcnt(15)')
        for k in range(8):
            if k: a('v_lshlrev_b32 %s, 16, %s' % (v(XD + 2 * k), v(XP + k)))
            a('v_and_b32 %s, s36, %s' % (v(XD + 2 * k + 1), v(XP + k)))
    def SET2w(XP):
        a('v_mul_u32_u24 v13, %d, v4' % RS); a('v_subrev_u32 v13, %d, v13' % WR)
        for r, src in ((9, vXR), (10, vE0), (11, vM0m), (12, vXM)): a('v_sub_u32 %s, %s, v13' % (v(r), v(src)))
        a('s_mov_b32 s36, 0xffff0000')
        a('ds_read_b128 %s, v9' % v(WV, 4)); a('ds_read_b128 %s, v9 offset:16' % v(WV + 4, 4))
        a('ds_read_u16_d16 %s, v11' % v(WV + 8))
        for e in range(1, 16): a('ds_read_u16_d16%s %s, v12 offset:%d' % ('_hi' if e & 1 else '', v((XP + 8 if e & 1 else WV + 8) + (e >> 1)), 2 * (15 - e)))
        a('ds_read_u16_d16 v13, v10')
        a('v_cmp_eq_u32 vcc, 1, v4'); a('v_mov_b32 v9, s42'); a('v_cndmask_b32 v9, 0, v9, vcc')
        for k in range(4): a('v_mov_b32 %s, s42' % v(XP + k))
        a('v_cmp_eq_u32 vcc, 0, v4')
        a('s_waitcnt lgkmcnt(0)')
        a('v_and_or_b32 %s, %s, s36, v13' % (v(WV), v(WV)))
        for k in range(8): a('v_or_b32 %s, %s, %s' % (v(WV + 8 + k), v(WV + 8 + k), v(XP + 8 + k)))
        for k in range(16): a('v_cndmask_b32 %s, v9, %s, vcc' % (v(WV + k), v(WV + k)))
        for q in range(4): a('v_mfma_f32_16x16x32_bf16 %s, %s, %s, %s' % (v(XP + 4, 4), v(WV + 4 * q, 4), v(XP, 4), v(XP + 4, 4) if q else '0'))
        a('ds_write_b32 %s, %s offset:12' % (v(vPW), v(XP + 4)))
    a('v_mov_b32 v15, %d' % SYNC); a('v_mov_b32 v10, 0'); a('v_mov_b32 v11, 0'); a('ds_write_b64 v15, v[10:11]'); a('ds_write_b32 v15, v10 offset:8')
    est(8)
    a('s_waitcnt lgkmcnt(0)')
    a('s_barrier')
    est(10)
    a('v_lshlrev_b32 %s, 31, v1' % v(vSG)); a('v_lshrrev_b32 v10, 16, %s' % v(vSG)); a('v_or_b32 %s, %s, v10' % (v(vSG), v(vSG)))
    a('v_mov_b32 %s, 0xfffcfffc' % v(vM))
    a('v_mov_b32 v242, 0xffff0000'); a('s_mov_b32 s42, 0x3f803f80')
    a('s_cmp_lg_u32 s57, 0'); a('s_cbranch_scc1 fz_nc1')
    for q in range(14): a('ds_read_b128 %s, v6 offset:%d' % (v(F1 + 4 * q, 4), 1024 * q))
    a('v_lshlrev_b32 v7, 9, v3'); a('v_bfe_u32 v10, v1, 2, 2'); a('v_lshl_add_u32 v7, v10, 6, v7')
    a('v_and_b32 v10, 1, v5'); a('v_lshl_add_u32 v7, v10, 5, v7'); a('v_and_b32 v10, 3, v1'); a('v_lshl_add_u32 v7, v10, 3, v7'); a('v_add_u32 v7, s31, v7')
    a('v_lshlrev_b32 v8, 9, v3'); a('v_lshl_add_u32 v8, v2, 1, v8'); a('v_sub_u32 v9, 2048, v8'); a('v_and_b32 v9, 2047, v9'); a('v_add_u32 v9, s30, v9')
    a('s_add_u32 s32, s30, %d' % (2048 - 64 * 23)); a('v_sub_u32 v8, s32, v8')
    a('v_cmp_eq_u32 vcc, 0, v2'); a('v_cndmask_b32 %s, 0, -2.0, vcc' % v(vM0))
    a('v_mov_b32 %s, %s' % (v(vM0 + 1), fh(256e-5)))
    a('s_lshr_b32 s32, s24, 1'); a('s_lshl_b32 s32, s32, 6'); a('s_mul_i32 s33, s3, 2304'); a('s_add_u32 s32, s32, s33'); a('s_add_u32 s32, s32, %d' % SB)
    a('v_lshl_add_u32 v10, v3, 1, v1'); a('v_lshlrev_b32 v10, 4, v10'); a('v_add_u32 %s, s32, v10' % v(vSW))
    a('v_bfe_u32 v10, v0, 2, 1'); a('v_mul_u32_u24 v10, 34, v10'); a('v_lshrrev_b32 v11, 4, v0'); a('v_add_u32 v10, v10, v11'); a('v_lshlrev_b32 v10, 4, v10')
    a('v_bfe_u32 v11, v0, 3, 1'); a('v_lshl_add_u32 v10, v11, 3, v10'); a('v_bfe_u32 v11, v0, 1, 1'); a('v_lshl_add_u32 v10, v11, 2, v10')
    a('v_and_b32 v12, 1, v0')
    a('s_mov_b32 s33, %d' % (4 * 2304)); a('s_cmp_eq_u32 s2, %d' % SPID)
    for k in range(4):
        pm = 1152 if k >= 2 else 0
        o0 = k * 2304 + pm + (64 if k >= 2 else 0); o1 = (3 - k) * 2304 + pm + (64 if (3 - k) >= 2 else 0)
        a('s_cselect_b32 s32, s33, 0x%x' % ((o1 - o0) & 0xffffffff))
        a('v_mul_lo_u32 v11, v12, s32'); a('v_add_u32 %s, v10, v11' % v(vSR + k)); a('v_add_u32 %s, %d, %s' % (v(vSR + k), SB + o0, v(vSR + k)))
    if WLIN: a('v_lshlrev_b32 %s, 4, v0' % v(vWST))
    else: a('v_lshrrev_b32 v10, 2, v0'); a('v_and_b32 v11, 3, v0'); a('v_lshlrev_b32 v11, 4, v11'); a('v_lshl_add_u32 %s, v10, 7, v11' % v(vWST))
    a('s_mul_i32 s52, s20, %d' % PS); a('s_lshl_b32 s33, s59, %d' % (13 if WLIN else 6)); a('s_add_u32 s52, s52, s33'); a('s_add_u32 s52, s52, 0x%x' % WOFF)
    a('s_add_u32 s53, s52, %d' % (4096 if WLIN else 8192))
    def tags2():
        tags()
        a('s_mov_b32 s38, 0x404'); a('s_cmp_eq_u32 s2, %d' % SPID); a('s_cselect_b32 s39, 8, 4'); a('s_cselect_b32 s38, 8, s38')
    est(9)
    for i in range(4): a('v_mov_b32 %s, 0' % v(ST + i))
    a('s_setprio 3')
    st()
    if '--early' in OPT: a('s_waitcnt lgkmcnt(0)'); est(11)
    a('s_waitcnt vmcnt(0) lgkmcnt(0)')
    st()
    for jx in range(2):
        for hh in range(2): a('ds_read_b64_tr_b16 %s, v7 offset:%d' % (v(XA + 4 * jx + 2 * hh, 2), 1024 * jx + 256 * hh))
    for jx in range(2):
        for i in range(8):
            op = 'ds_read_u16_d16_hi' if i & 1 else 'ds_read_u16_d16'
            dst = (H if i & 1 else XB) + 4 * jx + (i >> 1)
            if jx == 0 and i == 0: a('%s %s, v9' % (op, v(dst)))
            else: a('%s %s, v8 offset:%d' % (op, v(dst), 64 * (23 - 16 * jx - i)))
        if jx == 0: a('s_waitcnt lgkmcnt(8)')
        if jx == 0:
            for j2 in range(2): a('v_mfma_f32_32x32x16_bf16 %s, %s, %s, %s' % (v(XAC, 16), v(XA + 4 * j2, 4), v(F1 + 4 * j2, 4), v(XAC, 16) if j2 else '0'))
    for i in range(8):
        a('v_dot2_f32_bf16 %s, %s, s42, %s' % (v(ST), v(XA + i), v(ST))); a('v_dot2_f32_bf16 %s, %s, %s, %s' % (v(ST + 1), v(XA + i), v(XA + i), v(ST + 1)))
    a('s_waitcnt lgkmcnt(0)')
    for i in range(8): a('v_or_b32 %s, %s, %s' % (v(XB + i), v(XB + i), v(H + i)))
    for j2 in range(2): a('v_mfma_f32_32x32x16_bf16 %s, %s, %s, %s' % (v(XBC, 16), v(XB + 4 * j2, 4), v(F1 + 4 * j2, 4), v(XBC, 16) if j2 else '0'))
    for i in range(8):
        a('v_dot2_f32_bf16 %s, %s, s42, %s' % (v(ST + 2), v(XB + i), v(ST + 2))); a('v_dot2_f32_bf16 %s, %s, %s, %s' % (v(ST + 3), v(XB + i), v(XB + i), v(ST + 3)))
    est(12)
    a('v_permlane32_swap_b32 %s, %s' % (v(ST), v(ST + 2))); a('v_permlane32_swap_b32 %s, %s' % (v(ST + 1), v(ST + 3)))
    a('v_add_f32 %s, %s, %s' % (v(ST), v(ST), v(ST + 2))); a('v_add_f32 %s, %s, %s' % (v(ST + 1), v(ST + 1), v(ST + 3)))
    a('v_permlane16_swap_b32 %s, %s' % (v(ST), v(ST + 1)))
    a('v_add_f32 %s, %s, %s' % (v(ST), v(ST), v(ST + 1)))
    for pat in ['quad_perm:[1,0,3,2]', 'quad_perm:[2,3,0,1]', 'row_half_mirror', 'row_mirror']:
        a('v_add_f32_dpp %s, %s, %s %s %s' % (v(ST), v(ST), v(ST), pat, DPPF))
    a('s_mov_b32 s43, %s' % fh(256 / 1024))
    a('v_mov_b32 %s, %s' % (v(ST + 1), v(ST)))
    a('v_permlane16_swap_b32 %s, %s' % (v(ST), v(ST + 1)))
    a('v_mul_f32 %s, %s, %s' % (v(ST), fh(16 / 1024), v(ST)))
    a('v_fma_f32 %s, %s, s43, %s' % (v(ST + 1), v(ST + 1), v(vM0 + 1)))
    a('v_fma_f32 %s, -%s, %s, %s' % (v(ST + 1), v(ST), v(ST), v(ST + 1)))
    a('v_rsq_f32 %s, %s' % (v(ST + 1), v(ST + 1)))
    a('v_mul_f32 %s, %s, %s' % (v(ST), v(ST), v(ST + 1)))
    a('v_readlane_b32 s32, %s, 0' % v(ST + 1)); a('v_readlane_b32 s34, %s, 32' % v(ST + 1)); a('v_readlane_b32 s36, %s, 0' % v(ST)); a('v_readlane_b32 s37, %s, 32' % v(ST))
    a('v_mul_f32 %s, s36, %s' % (v(ST + 4), v(vM0))); a('v_fmac_f32 %s, s37, %s' % (v(ST + 4), v(vM0)))
    for i in range(8): a('v_pk_fma_f32 %s, %s, s[32:33], %s op_sel_hi:[1,0,0]' % (v(XAC + 2 * i, 2), v(XAC + 2 * i, 2), v(ST + 4, 2)))
    for i in range(8): a('v_pk_fma_f32 %s, %s, s[34:35], %s op_sel_hi:[1,0,1]' % (v(XAC + 2 * i, 2), v(XBC + 2 * i, 2), v(XAC + 2 * i, 2)))
    est(13)
    pack(H, XAC, 16)
    for i in range(8): a('v_mov_b32_dpp %s, %s %s' % (v(TP + i), v(H + i), X1))
    D3C, D3S = XBC, XBC + 4
    for i in range(8): a('v_pk_mul_f16 %s, %s, %s' % (v(T + i), v(H + i), v(TC + i)))
    for j2 in range(2):
        a('v_mfma_f32_16x16x32_f16 %s, %s, %s, %s' % (v(D3C, 4), v(H + 4 * j2, 4), v(B3C + 4 * j2, 4), v(D3C, 4) if j2 else '0'))
        for i in range(4): a('v_pk_fma_f16 %s, %s, %s, %s' % (v(T + 4 * j2 + i), v(TP + 4 * j2 + i), v(TS + 4 * j2 + i), v(T + 4 * j2 + i)))
    a('v_mfma_f32_32x32x16_f16 %s, %s, %s, 0' % (v(XAC, 16), v(T, 4), v(C2, 4)))
    for i in range(4): a('v_xor_b32_dpp %s, %s, %s %s' % (v(TP + i), v(T + i), v(vSG), X1))
    a('v_mfma_f32_32x32x16_f16 %s, %s, %s, %s' % (v(XAC, 16), v(T + 4, 4), v(C2 + 4, 4), v(XAC, 16)))
    for i in range(4, 8): a('v_xor_b32_dpp %s, %s, %s %s' % (v(TP + i), v(T + i), v(vSG), X1))
    for j2 in range(2): a('v_mfma_f32_32x32x16_f16 %s, %s, %s, %s' % (v(XAC, 16), v(TP + 4 * j2, 4), v(S2 + 4 * j2, 4), v(XAC, 16)))
    for j2 in range(2): a('v_mfma_f32_16x16x32_f16 %s, %s, %s, %s' % (v(D3S, 4), v(H + 4 * j2, 4), v(B3S + 4 * j2, 4), v(D3S, 4) if j2 else '0'))
    est(14)
    tags2()
    a('s_mov_b64 vcc, 0xffff')
    for p in (7, 6, 5, 4, 3, 2, 1): a('v_cvt_pk_f16_f32 %s, %s, %s' % (v(H + p), v(XAC + 2 * p), v(XAC + 2 * p + 1)))
    a('v_cndmask_b32 %s, %s, %s, vcc' % (v(XAC), v(XAC), v(D3C + 1))); a('v_cndmask_b32 %s, %s, %s, vcc' % (v(XAC + 1), v(XAC + 1), v(D3S + 1)))
    for p in (3, 2, 1, 0):
        if p == 0: a('v_cvt_pk_f16_f32 %s, %s, %s' % (v(H), v(XAC), v(XAC + 1)))
        a('v_pk_add_f16 %s, %s, %s op_sel:[0,1] op_sel_hi:[1,0] neg_lo:[0,1]' % (v(T + p), v(H + 2 * p), v(H + 2 * p + 1)))
        a('v_pk_add_f16 %s, %s, %s op_sel:[0,1] op_sel_hi:[1,0] neg_hi:[1,0]' % (v(T + 4 + p), v(H + 2 * p), v(H + 2 * p + 1)))
    a('ds_write_b128 %s, %s' % (v(vSW), v(T, 4))); a('ds_write_b128 %s, %s offset:1152' % (v(vSW), v(T + 4, 4)))
    a('s_waitcnt lgkmcnt(0)')
    sync_add(1)
    a('s_cmp_gt_u32 s3, 3'); a('s_cbranch_scc1 fz_bsp0')
    a.lines.append('fz_sy:')
    a('ds_read_b32 v10, v15')
    a('s_waitcnt lgkmcnt(0)')
    a('v_and_b32 v10, 0xff, v10'); a('v_cmp_ne_u32 vcc, s39, v10')
    a('s_cbranch_vccnz fz_sy')
    st.n = 4; st()
    Z = XAC
    for rd in range(2):
        for k in range(4): a('ds_read_b32 %s, %s offset:%d' % (v(Z + 4 * rd + k), v(vSR + k), 256 * rd))
    for rd in range(2):
        z = Z + 4 * rd; u = Z + 8 + 8 * rd; o = u + 4
        a('s_waitcnt lgkmcnt(%d)' % (4 - 4 * rd))
        a('v_pk_add_f16 %s, %s, %s' % (v(u), v(z), v(z + 2))); a('v_pk_add_f16 %s, %s, %s' % (v(u + 2), v(z + 1), v(z + 3)))
        a('v_pk_add_f16 %s, %s, %s neg_lo:[0,1] neg_hi:[0,1]' % (v(u + 1), v(z), v(z + 2))); a('v_pk_add_f16 %s, %s, %s neg_lo:[0,1] neg_hi:[0,1]' % (v(u + 3), v(z + 1), v(z + 3)))
        a('v_pk_add_f16 %s, %s, %s' % (v(o), v(u), v(u + 2))); a('v_pk_add_f16 %s, %s, %s neg_lo:[0,1] neg_hi:[0,1]' % (v(o + 2), v(u), v(u + 2)))
        a('v_pk_add_f16 %s, %s, %s op_sel:[0,1] op_sel_hi:[1,0] neg_hi:[0,1]' % (v(o + 1), v(u + 1), v(u + 3)))
        a('v_pk_add_f16 %s, %s, %s op_sel:[0,1] op_sel_hi:[1,0] neg_lo:[0,1]' % (v(o + 3), v(u + 1), v(u + 3)))
        for k in range(4): a('v_add_u32 %s, 0x20002, %s' % (v(o + k), v(o + k)))
        for k in range(4): a('v_and_or_b32 %s, %s, %s, %s' % (v(o + k), v(o + k), v(vM), s(44 + k)))
        a('buffer_store_dwordx4 %s, %s, s[4:7], %s offen sc1' % (v(o, 4), v(vWST), s(52 + rd)))
    a('s_cmp_lg_u32 s59, 0'); a('s_cbranch_scc1 ffn')
    st()
    SETA()
    a('s_waitcnt vmcnt(0)')
    st()
    R = XAC
    def h1i(u): a('buffer_load_dwordx4 %s, %s, s[4:7], %s offen sc1' % (v(R + 4 * u, 4), v(vHL), s((60, 61, 16, 17)[u])))
    def h1c(u):
        for k in range(4): a('v_xor_b32 %s, %s, %s' % (v(R + 4 * u + k), v(vE + k), v(R + 4 * u + k)))
        a('v_or3_b32 v10, %s, %s, %s' % (v(R + 4 * u), v(R + 4 * u + 1), v(R + 4 * u + 2)))
        a('v_bitop3_b32 v10, v10, %s, %s bitop3:0xa8' % (v(R + 4 * u + 3), v(vMT)))
        a('v_cmp_ne_u32 vcc, 0, v10')
    def h1a(u):
        for k in range(4): a('ds_write_b32 %s, %s offset:%d' % (v(vA[u]), v(R + 4 * u + k), 2048 * k))
    if EP:
        a('s_bitcmp1_b32 s2, 2'); a('s_cbranch_scc1 fz_p1_ok')
        a('s_add_u32 s32, s60, %d' % ((((EP - 1) + POFS) & 7) * PS + 64 * (EP > 8))); a('v_mov_b32 v9, 0')
        a.lines.append('fz_p1:')
        a('buffer_load_dword v10, v9, s[4:7], s32 offen sc1')
        a('s_waitcnt vmcnt(0)')
        a('v_xor_b32 v10, %s, v10' % v(vE)); a('v_and_b32 v10, %s, v10' % v(vMT)); a('v_cmp_ne_u32 vcc, 0, v10')
        poll_retry('fz_p1')
        a('s_mov_b32 s58, 0')
    mst(1)
    for u in range(4): h1i(u)
    prog_poll('fz_h1', 4, h1i, h1c, h1a)
    mst(2)
    a('s_waitcnt lgkmcnt(0)')
    a('s_setprio 0')
    a.lines.append('fz_hb:')
    a('s_barrier')
    st.n = 7; st()
    A2, V2, H2, T2, TP2, D2 = 104, 120, 136, 144, 152, 104
    for cp in range(2):
        for hf in range(2): a('ds_read_b128 %s, %s offset:%d' % (v(A2 + 8 * cp + 4 * hf, 4), v(vAR), CPS * cp + 1024 * hf))
    for q in range(4): a('ds_read_b128 %s, v6 offset:%d' % (v(CQ + 4 * q, 4), 1024 * (14 + q)))
    for q in range(4):
        a('s_waitcnt lgkmcnt(%d)' % (7 - q))
        a('v_mfma_f32_16x16x32_f16 %s, %s, %s, 0' % (v(V2 + 4 * q, 4), v(A2 + 4 * q, 4), v(B1, 4)))
    a('s_waitcnt lgkmcnt(0)')
    for cp in range(2):
        pack(H2 + 4 * cp, V2 + 8 * cp, 8)
    for cp in range(2):
        h, t, tp = H2 + 4 * cp, T2 + 4 * cp, TP2 + 4 * cp
        for i in range(4): a('v_pk_mul_f16 %s, %s, %s' % (v(t + i), v(h + i), v(TC2 + i)))
        for i in range(4): a('v_mov_b32_dpp %s, %s %s' % (v(tp + i), v(h + i), X1))
        for i in range(4): a('v_pk_fma_f16 %s, %s, %s, %s' % (v(t + i), v(tp + i), v(TS2 + i), v(t + i)))
        for tau in range(2): a('v_mfma_f32_16x16x32_f16 %s, %s, %s, 0' % (v(D2 + 8 * cp + 4 * tau, 4), v(t, 4), v(CQ + 8 * tau, 4)))
        for i in range(4): a('v_xor_b32_dpp %s, %s, %s %s' % (v(tp + i), v(t + i), v(vSG), X1))
        for tau in range(2): a('v_mfma_f32_16x16x32_f16 %s, %s, %s, %s' % (v(D2 + 8 * cp + 4 * tau, 4), v(tp, 4), v(CQ + 8 * tau + 4, 4), v(D2 + 8 * cp + 4 * tau, 4)))
    O2 = V2
    for tau in range(2):
        for cp in range(2):
            for b in range(2): a('v_cvt_pk_f16_f32 %s, %s, %s' % (v(O2 + 4 * tau + 2 * b + cp), v(D2 + 8 * cp + 4 * tau + 2 * b), v(D2 + 8 * cp + 4 * tau + 2 * b + 1)))
        for k in range(4): a('v_add_u32 %s, 0x20002, %s' % (v(O2 + 4 * tau + k), v(O2 + 4 * tau + k)))
        for k in range(4): a('v_and_or_b32 %s, %s, %s, %s' % (v(O2 + 4 * tau + k), v(O2 + 4 * tau + k), v(vM), s(44 + k)))
        if YLIN: a('buffer_store_dwordx4 %s, %s, s[4:7], s56 offen offset:%d sc1' % (v(O2 + 4 * tau, 4), v(vL16), 1024 * tau))
        else: a('buffer_store_dwordx4 %s, %s, s[4:7], s56 offen sc1' % (v(O2 + 4 * tau, 4), v(vY0 + tau)))
    st()
    a('s_cmp_lg_u32 s57, 0'); a('s_cbranch_scc1 fz_nc3')
    if B2L: a('s_setprio 1')
    SETB('a')
    if A2L: SET2()
    a('s_mov_b32 s58, 0')
    a('s_waitcnt vmcnt(0)')
    st()
    YD, YM, HP, Q1, Q2 = 104, 112, 120, 136, 140
    def h2i(jx): a('buffer_load_dwordx2 %s, %s, s[4:7], %s offen sc1' % (v(YD + 2 * jx, 2), v(vYL), s(52 + jx)))
    def h2load():
        for jx in range(4): h2i(jx)
    if not A2L:
        h2load()
        SET2()
        a.flush(); a('s_branch fz_h2c')
    a.lines.append('fz_h2:')
    h2load()
    a.lines.append('fz_h2c:')
    if B2L: a('s_setprio 0')
    mst(3)
    a('s_mov_b32 s36, %s' % fh(128.0))
    def h2c(jx):
        for k in range(2): a('v_xor_b32 %s, %s, %s' % (v(YD + 2 * jx + k), v(vYE + k), v(YD + 2 * jx + k)))
        a('v_bitop3_b32 v9, %s, %s, %s bitop3:0xa8' % (v(YD + 2 * jx), v(YD + 2 * jx + 1), v(vMT)))
        a('v_cmp_ne_u32 vcc, 0, v9')
    def mix(e, src): a('v_fma_mix_f32 %s, %s, s36, %s op_sel:[%d,0,0] op_sel_hi:[1,0,0]' % (v(XD + e), v(src), v(XD + e), e & 1))
    def smf(q):
        a('v_mfma_f32_16x16x32_bf16 %s, %s, %s, %s' % (v(Q1, 4), v(HP + 4 * q, 4), v(HP + 4 * q, 4), v(Q1, 4) if q else '0'))
        a('v_mfma_f32_16x16x32_bf16 %s, %s, %s, %s' % (v(Q2, 4), v(WV + 4 * q, 4), v(HP + 4 * q, 4), v(Q2, 4) if q else '0'))
    def h2a(jx):
        if jx == 3: st()
        for k in range(2 * jx, 2 * jx + 2): a('v_mov_b32_dpp %s, %s row_mirror %s' % (v(YM + k), v(YD + k), DPPF))
        a('s_cmp_eq_u32 s2, %d' % SPID); a('s_cbranch_scc1 fz_spec4%d' % jx)
        a.lines.append('fz_spec4back%d:' % jx)
        for e in range(4 * jx, 4 * jx + 4): mix(e, YD + (e >> 1))
        if jx == 0: a('v_and_b32 %s, %s, %s' % (v(YM), v(vZM), v(YM)))
        for e in range(4 * jx, 4 * jx + 4): mix(16 + e, YM + (e >> 1))
        pack(HP + 2 * jx, XD + 4 * jx, 4, 'bf16'); pack(HP + 8 + 2 * jx, XD + 16 + 4 * jx, 4, 'bf16')
        if jx & 1: smf(jx >> 1); smf(2 + (jx >> 1))
    prog_poll('fz_h2', 4, h2i, h2c, h2a)
    a('v_cndmask_b32 v9, %s, %s, s[28:29]' % (v(Q1), v(Q1 + 1))); a('v_cndmask_b32 v10, %s, %s, s[28:29]' % (v(Q1 + 2), v(Q1 + 3)))
    a('ds_write_b64 %s, %s' % (v(vPW), v(Q2, 2)))
    a('v_cndmask_b32 v9, v9, v10, s[30:31]')
    a('ds_write_b32 %s, v9 offset:8' % v(vPD))
    a('s_cmp_gt_u32 s3, 3'); a('s_cbranch_scc1 fz_lp'); a('s_setprio 2')
    a.lines.append('fz_lp:')
    mst(4)
    a('s_waitcnt lgkmcnt(0)'); a('s_barrier')
    mst(12)
    P = 144
    for q in range(4): a('ds_read_b128 %s, %s offset:%d' % (v(P + 4 * q, 4), v(vPR), 256 * q))
    a('s_waitcnt lgkmcnt(2)')
    for h in range(2): a('v_pk_add_f32 %s, %s, %s' % (v(P + 2 * h, 2), v(P + 2 * h, 2), v(P + 4 + 2 * h, 2)))
    a('s_waitcnt lgkmcnt(0)')
    for h in range(2): a('v_pk_add_f32 %s, %s, %s' % (v(P + 8 + 2 * h, 2), v(P + 8 + 2 * h, 2), v(P + 12 + 2 * h, 2)))
    for h in range(2): a('v_pk_add_f32 %s, %s, %s' % (v(P + 2 * h, 2), v(P + 2 * h, 2), v(P + 8 + 2 * h, 2)))
    for k in range(4): a('v_mov_b32 %s, %s' % (v(P + 4 + k), v(P + k)))
    for k in range(4): a('v_permlane32_swap_b32 %s, %s' % (v(P + k), v(P + 4 + k)))
    for h in range(2): a('v_pk_add_f32 %s, %s, %s' % (v(P + 2 * h, 2), v(P + 2 * h, 2), v(P + 4 + 2 * h, 2)))
    mst(13)
    KR = 152
    a('v_mul_f32 %s, %s, %s' % (v(P + 1), fh(-1 / 1024), v(P + 1)))
    a('v_mul_f32 %s, %s, %s' % (v(P + 2), fh(1 / 1024), v(P + 2)))
    a('v_fma_f32 %s, -%s, %s, %s' % (v(P + 2), v(P + 1), v(P + 1), v(P + 2)))
    a('v_cvt_pk_bf16_f32 %s, 0, %s' % (v(KR + 1), v(P + 1)))
    rbf(a, P + 2); a('v_add_f32 %s, %s, %s' % (v(P + 2), fh(1e-5), v(P + 2))); rbf(a, P + 2)
    a('v_sqrt_f32 %s, %s' % (v(P + 2), v(P + 2)))
    a('v_fmac_f32 %s, %s, %s' % (v(P), v(KR + 1), v(P + 3)))
    rbf(a, P + 2); a('v_rcp_f32 %s, %s' % (v(KR + 2), v(P + 2)))
    a('v_mov_b32 %s, s40' % v(KR + 3))
    a('v_mul_f32 %s, %s, %s' % (v(P), v(P), v(KR + 2))); rbf(a, P)
    a('v_ashrrev_i32 %s, 31, %s' % (v(P + 1), v(P))); a('v_or_b32 %s, 0x80000000, %s' % (v(P + 1), v(P + 1)))
    a('v_bitop3_b32 %s, %s, %s, %s bitop3:0x28' % (v(KR), v(P), v(P + 1), v(242)))
    a('v_or_b32 %s, %s, %s' % (v(KR), v(KR), v(vTK)))
    a('v_max_u32_dpp %s, %s, %s row_ror:1 %s' % (v(P), v(KR), v(KR), DPPF))
    for k in (2, 4, 8): a('v_max_u32_dpp %s, %s, %s row_ror:%d %s' % (v(P), v(P), v(P), k, DPPF))
    a('v_cmp_eq_u32 vcc, %s, %s' % (v(P), v(KR)))
    a('v_or_b32 %s, s24, %s' % (v(KR + 1), v(KR + 1)))
    a('s_mov_b64 exec, vcc')
    if DB & 8: a('s_bitcmp1_b32 s3, 1'); a('s_cbranch_scc1 fz_nk1')
    a('buffer_store_dwordx4 %s, %s, s[4:7], s26 offen sc1' % (v(KR, 4), v(vKA)))
    if DB & 8: a.lines.append('fz_nk1:')
    if DB & 2:
        if DB & 4: a('s_cmp_gt_u32 s3, 3'); a('s_cbranch_scc1 fz_nk2')
        a('s_add_u32 s26, s26, %d' % (32 * KS)); a('buffer_store_dwordx4 %s, %s, s[4:7], s26 offen sc1' % (v(KR, 4), v(vKA)))
        if DB & 4: a.lines.append('fz_nk2:')
    for q in range(4): a('buffer_store_dwordx4 %s, %s, s[4:7], s27 offen offset:%d sc1' % (v(HP + 4 * q, 4), v(vCA), 64 * q))
    a('s_mov_b64 exec, -1')
    st()
    a('s_setprio 0')
    a('s_ff1_i32_b64 s37, vcc')
    a('v_add_f32 %s, 1.0, %s' % (v(P), v(KR + 2))); a('v_and_b32 %s, v242, %s' % (v(P + 2), v(KR + 1))); a('v_mul_f32 %s, %s, %s' % (v(P + 2), v(P + 2), v(KR + 2)))
    for k in range(16): a('v_pk_fma_f32 %s, %s, %s, %s op_sel_hi:[1,0,0]' % (v(XD + 2 * k, 2), v(XD + 2 * k, 2), v(P, 2), v(P + 2, 2)))
    OP = 104
    pack(OP, XD, 32, 'bf16')
    a('ds_write_b128 %s, %s' % (v(vXR), v(OP, 4))); a('ds_write_b128 %s, %s offset:16' % (v(vXR), v(OP + 4, 4)))
    a('s_waitcnt lgkmcnt(0)'); a('s_barrier')
    def wtail():
        if W3 < 8 or WL:
            a('s_cmp_lt_u32 s3, 4'); a('s_cbranch_scc1 fz_now4')
            if WL: a('s_bitcmp0_b32 s2, 2'); a('s_cbranch_scc1 fz_now4')
            wdload(8 - WL if WL else W3, 8)
            a.lines.append('fz_now4:')
    if WT == 1: wtail()
    a('ds_write_b16 %s, %s' % (v(vE0), v(OP))); a('ds_write_b16 %s, %s' % (v(vM0m), v(OP + 8)))
    for e in range(1, 16): a('ds_write_b16%s %s, %s offset:%d' % ('_d16_hi' if e & 1 else '', v(vXM), v(OP + 8 + (e >> 1)), 2 * (15 - e)))
    a('s_lshl_b32 s32, s3, 1'); a('s_add_u32 s33, s32, 1')
    a('v_readlane_b32 s34, %s, s32' % v(vT)); a('v_readlane_b32 s35, %s, s33' % v(vT))
    a('s_mul_i32 s38, s3, %d' % (2 * RS)); a('v_add_u32 v9, s38, %s' % v(vL16))
    a('s_lshl_b32 s34, s34, 11'); a('s_lshl_b32 s35, s35, 11')
    a('s_waitcnt lgkmcnt(0)'); a('s_barrier')
    for q in range(4): a('ds_read_b128 %s, v9 offset:%d' % (v(OP + 4 * q, 4), RS * (q >> 1) + 1024 * (q & 1)))
    if WT == 2: wtail()
    OUTF = '' if '--outplain' in OPT else (' nt' if '--outnt' in OPT else ' sc1 nt' if '--outsn' in OPT else ' sc1')
    a('s_lshr_b32 s59, s37, 1'); a('s_xor_b32 s18, s59, 1'); a('s_and_b32 s18, s18, 3')
    if AC_: a('s_and_b32 s59, s59, 3')
    if BC: a('s_cmp_eq_u32 s59, s3'); a('s_cselect_b32 s17, 1, 0'); a('s_or_b32 s59, s59, 4'); a('s_cmp_eq_u32 s59, s3'); a('s_cselect_b32 s17, 1, s17')
    if '--wdearly' not in OPT:
        if OLATE:
            a('s_cmp_eq_u32 s59, s3'); a('s_cselect_b32 s38, 112, s23'); a('s_cmp_lt_u32 s38, 112'); a('s_cbranch_scc1 fz_sk1')
        else:
            a('s_cmp_lt_u32 s23, 112'); a('s_cselect_b32 s38, s18, 8'); a('s_cmp_eq_u32 s38, s3'); a('s_cbranch_scc1 fz_sk1')
    if BC: a('s_cmp_lg_u32 s17, 0'); a('s_cbranch_scc1 fz_sk1')
    elif CL: a('s_cmp_eq_u32 s59, s3'); a('s_cbranch_scc1 fz_sk1')
    a('s_waitcnt lgkmcnt(0)')
    for r in range(2):
        a('s_cmp_eq_u32 s37, %s' % s(32 + r)); a('s_cbranch_scc1 fz_sk%d' % r)
        for q in range(0 if '--xnoout' in OPT else 2): a('buffer_store_dwordx4 %s, %s, s[12:15], %s offen offset:%d%s' % (v(OP + 8 * r + 4 * q, 4), v(vL16), s(34 + r), 1024 * q, OUTF))
        a.lines.append('fz_sk%d:' % r)
    a('v_and_b32 v15, 7, v4'); a('v_mul_u32_u24 v15, 544, v15'); a('v_lshl_add_u32 v15, v5, 4, v15'); a('v_add_u32 v15, %d, v15' % ACT)
    if TWO:
        a('s_and_b32 s60, s2, 7'); a('s_lshr_b32 s61, s2, 3')
        a('s_cmp_lt_u32 s3, 4'); a('s_cselect_b32 s63, 8, s60'); a('s_lshl_b32 s63, s63, 2'); a('s_and_b32 s38, s3, 3'); a('s_add_u32 s63, s63, s38')
        a('s_lshl_b32 s63, s63, 6'); a('s_add_u32 s63, s63, s61'); a('s_lshl_b32 s63, s63, 8'); a('s_add_u32 s63, s63, 0x%x' % POFF)
        a('v_lshlrev_b32 v13, 4, v4'); a('v_lshl_add_u32 v102, v5, 12, v13'); a('v_add_u32 v103, 8192, v102'); a('v_mov_b32 v101, %d' % (ACT + 4352))
    elif PIN:
        a('s_lshl_b32 s63, s23, 5'); a('s_and_b32 s38, s3, 3'); a('s_mul_i32 s38, s38, %d' % (32 * PIS)); a('s_add_u32 s63, s63, s38'); a('s_add_u32 s63, s63, 0x%x' % POFF)
        a('v_lshrrev_b32 v13, 1, v1'); a('v_mul_u32_u24 v13, %d, v13' % PIS); a('v_and_b32 v14, 1, v1'); a('v_lshl_add_u32 v102, v14, 4, v13'); a('v_add_u32 v103, %d, v102' % (16 * PIS))
    else:
        a('s_mul_i32 s63, s23, %d' % PPS); a('s_and_b32 s38, s3, 3'); a('s_lshl_b32 s38, s38, 10'); a('s_add_u32 s63, s63, s38'); a('s_add_u32 s63, s63, 0x%x' % POFF)
    if FL: a('v_mov_b32 v101, %d' % SYNC)
    if not TWO and not BC and not FL: a('s_lshl_b32 s38, s20, %d' % (5 if PIN else 10)); a('s_add_u32 s38, s38, 0x%x' % DOFF); a('s_cmp_lt_u32 s3, 4'); a('s_cselect_b32 s63, s38, s63')
    a('v_mov_b32 v14, 0xffffff00')
    a('s_cmp_eq_u32 s18, s3'); a('s_cbranch_scc1 fz_act')
    if BC:
        a('s_cmp_lg_u32 s17, 0'); a('s_cbranch_scc1 fz_coll')
        a('s_cmp_lt_u32 s3, 4'); a('s_cbranch_scc1 fz_xend'); a('s_branch fz_f2')
        a.lines.append('fz_coll:')
    elif FL:
        a('s_cmp_eq_u32 s59, s3'); a('s_cbranch_scc1 fz_coll')
        a('s_cmp_lt_u32 s3, 4'); a('s_cbranch_scc1 fz_xend'); a('s_branch fz_f2')
        a.lines.append('fz_coll:')
    else: a('s_cmp_lg_u32 s59, s3'); a('s_cbranch_scc1 fz_f2')
    st()
    if AC_:
        a('s_mul_i32 s16, s37, %d' % RS); a('v_add_u32 v9, s16, %s' % v(vL16)); a('v_readlane_b32 s16, %s, s37' % v(vT))
        a('ds_read_b128 v[120:123], v9'); a('ds_read_b128 v[124:127], v9 offset:1024'); a('s_lshl_b32 s16, s16, 11')
    a('s_and_b32 s38, s20, %d' % (7 if DB & 8 else 15)); a('s_add_u32 s38, s38, 16'); a('s_mul_i32 s38, s38, %d' % KS); a('s_add_u32 s38, s38, 0x%x' % KOFF)
    if TWO:
        a('s_lshr_b32 s52, s61, 1'); a('s_lshl_b32 s52, s52, 3'); a('s_add_u32 s52, s52, s60'); a('s_lshl_b32 s52, s52, 2'); a('s_and_b32 s53, s61, 1'); a('s_add_u32 s52, s52, s53'); a('s_lshl_b32 s52, s52, 2')
        a('v_bfe_u32 v2, v1, 2, 1'); a('v_and_b32 v3, 3, v1'); a('v_lshl_add_u32 v2, v2, 3, v3'); a('v_add_u32 v2, s52, v2')
    else:
        a('s_lshr_b32 s52, s20, 4'); a('s_lshl_b32 s52, s52, 7'); a('s_and_b32 s53, s20, 7'); a('s_lshl_b32 s53, s53, 4'); a('s_add_u32 s52, s52, s53')
        a('s_bfe_u32 s53, s20, 0x10003'); a('s_lshl_b32 s53, s53, 2'); a('s_add_u32 s52, s52, s53')
        a('v_and_b32 v2, 1, v1'); a('v_lshl_add_u32 v2, v2, 3, v5'); a('v_add_u32 v2, s52, v2')
    a('v_and_b32 v3, 31, v2'); a('v_lshrrev_b32 v6, 5, v2')
    a('v_cmp_gt_u32 vcc, 16, v6')
    a('v_cmp_lt_u32 s[52:53], 16, v3'); a('v_cmp_eq_u32 s[54:55], 0, v3'); a('s_and_b64 s[54:55], s[54:55], vcc'); a('s_or_b64 s[52:53], s[52:53], s[54:55]')
    a('v_cmp_eq_u32 s[54:55], 16, v3'); a('s_andn2_b64 s[54:55], s[54:55], vcc'); a('s_or_b64 s[52:53], s[52:53], s[54:55]')
    a('v_sub_u32 v7, 1024, v2'); a('v_cndmask_b32 v7, v2, v7, s[52:53]')
    a('v_mov_b32 v8, 512'); a('v_cmp_eq_u32 vcc, 1024, v7'); a('v_cndmask_b32 v7, v7, v8, vcc')
    a('v_lshrrev_b32 v8, 5, v7'); a('v_and_b32 v7, 15, v7')
    a('v_lshrrev_b32 v9, 2, v8'); a('v_lshlrev_b32 v9, 8, v9'); a('v_and_b32 v8, 3, v8'); a('v_lshl_add_u32 v9, v8, 4, v9')
    a('v_lshrrev_b32 v8, 3, v7'); a('v_lshl_add_u32 v9, v8, 6, v9'); a('v_and_b32 v7, 7, v7'); a('v_lshl_add_u32 v9, v7, 1, v9')
    a('v_cndmask_b32 v7, 0, 1, s[52:53]'); a('v_lshl_add_u32 v9, v7, 7, v9')
    a('v_lshlrev_b32 v2, 1, v2')
    if TWO:
        a('s_lshl_b32 s52, s60, 4'); a('s_add_u32 s52, s52, s61'); a('s_lshl_b32 s52, s52, 12'); a('s_add_u32 s52, s52, 0x%x' % POFF)
        a('s_add_u32 s53, s2, 4'); a('s_and_b32 s53, s53, 7'); a('s_cmp_lt_u32 s53, 6'); a('s_cselect_b32 s53, s52, 0x7fff0000')
        for k in range(4): a('s_cselect_b32 %s, %s, 0' % (s(8 + k), s(48 + k)))
        a('s_lshl_b32 s54, s61, 11'); a('s_add_u32 s54, s54, 0x%x' % FIOFF); a('s_lshl_b32 s55, s60, 8'); a('s_add_u32 s55, s55, s54'); a('s_lshl_b32 s62, s60, 5'); a('s_add_u32 s54, s54, s62')
        a('v_lshrrev_b32 v3, 1, v4'); a('v_lshlrev_b32 v3, 8, v3'); a('v_and_b32 v6, 1, v4'); a('v_lshl_add_u32 v3, v6, 4, v3')
        a('v_lshlrev_b32 v6, 2, v1'); a('v_and_b32 v7, 3, v1'); a('v_mov_b32 v16, s48')
        for k in range(1, 4): a('v_cmp_eq_u32 vcc, %d, v7' % k); a('v_mov_b32 v8, %s' % s(48 + k)); a('v_cndmask_b32 v16, v16, v8, vcc')
    else:
        a('v_lshrrev_b32 v3, 1, v1'); a('v_mul_u32_u24 v3, %d, v3' % (32 if PIN else PPS)); a('v_and_b32 v6, 1, v1'); a('v_lshl_add_u32 v3, v6, 4, v3')
        a('v_mov_b32 v6, 0x7fffffff'); a('v_cmp_gt_u32 vcc, 32, v1'); a('v_cndmask_b32 v6, v6, v3, vcc')
        for k in range(4): a('v_mov_b32 v7, %s' % s(48 + k)); a('v_cndmask_b32 %s, 0, v7, vcc' % v(16 + k))
        a('s_mul_i32 s52, s20, %d' % (PIS if PIN else 32)); a('s_add_u32 s52, s52, 0x%x' % POFF)
        for u in range(1, 4): a('s_add_u32 %s, s52, %d' % (s(52 + u), 32 * u * (32 if PIN else PPS)))
    K = 24
    a('v_lshlrev_b32 v20, %d, v1' % KRL); a('v_add_u32 v21, %d, v20' % (64 << KRL))
    a('s_mov_b32 s58, 0')
    a.label('fz_k2')
    a('buffer_load_dwordx4 %s, v20, s[4:7], s38 offen sc1' % v(K, 4)); a('buffer_load_dwordx4 %s, v21, s[4:7], s38 offen sc1' % v(K + 4, 4))
    a('s_waitcnt vmcnt(0)')
    keys_argmax(K, None, 'fz_k2')
    tst(3)
    if TWO:
        a('v_and_b32 v7, 15, %s' % v(K + 1)); a('v_and_b32 v8, 15, %s' % v(K + 5)); a('v_cmp_eq_u32 vcc, s24, v7'); a('v_cmp_eq_u32 s[56:57], s24, v8')
        a('s_and_b64 vcc, vcc, s[56:57]'); a('s_and_b32 s39, vcc_lo, vcc_hi'); a('s_and_b32 s41, s20, 7'); a('s_lshr_b32 s39, s39, s41'); a('s_and_b32 s39, s39, 0x01010101')
        a('s_cmp_eq_u32 s39, 0x01010101'); a('s_cselect_b32 s39, %d, 0' % (1 if LOCAL else 0)); a('v_mov_b32 v7, s39'); a('ds_write_b32 v101, v7')
    a('v_cmp_eq_u32 vcc, s36, %s' % v(K)); a('v_cmp_eq_u32 s[56:57], s36, %s' % v(K + 4))
    a('v_cndmask_b32 %s, %s, %s, s[56:57]' % (v(K + 1), v(K + 1), v(K + 5))); a('v_cndmask_b32 %s, %s, %s, s[56:57]' % (v(K + 2), v(K + 2), v(K + 6)))
    a('s_cmp_lg_u64 vcc, 0'); a('s_cselect_b32 s39, 0, 64'); a('s_or_b64 vcc, vcc, s[56:57]'); a('s_ff1_i32_b64 s41, vcc')
    a('v_readlane_b32 s42, %s, s41' % v(K + 1)); a('v_readlane_b32 s43, %s, s41' % v(K + 2))
    a('s_add_u32 s39, s39, s41'); a('s_and_b32 s42, s42, 0xffff0000')
    if AC_: a('s_cmp_eq_u32 s39, s20'); a('s_cselect_b32 s16, 0x7ff00000, s16'); a('s_mov_b32 s19, s37')
    elif CL: a('s_cmp_eq_u32 s39, s20'); a('s_cselect_b32 s19, s37, 16')
    else:
        a('s_cmp_eq_u32 s39, s20'); a('s_cbranch_scc1 fz_win')
        a('s_bitcmp1_b32 s37, 0'); a('s_cbranch_scc1 fz_d1')
        for q in range(2): a('buffer_store_dwordx4 %s, %s, s[12:15], s34 offen offset:%d%s' % (v(OP + 4 * q, 4), v(vL16), 1024 * q, OUTF))
        a('s_branch fz_win')
        a.lines.append('fz_d1:')
        for q in range(2): a('buffer_store_dwordx4 %s, %s, s[12:15], s35 offen offset:%d%s' % (v(OP + 8 + 4 * q, 4), v(vL16), 1024 * q, OUTF))
        a.lines.append('fz_win:')
    a('s_lshl_b32 s39, s39, 11'); a('s_add_u32 s39, s39, 0x%x' % COFF)
    a('s_mov_b32 s58, 0'); a('s_mov_b32 s41, 0xffff0000')
    a.label('fz_c2')
    a('buffer_load_short_d16_hi v10, v9, s[4:7], s39 offen sc1')
    a('s_waitcnt vmcnt(0)')
    a('v_cmp_eq_u32 vcc, s41, v10')
    poll_retry('fz_c2')
    if CL:
        if AC_:
            a('s_waitcnt lgkmcnt(0)')
            for q in range(2): a('buffer_store_dwordx4 %s, %s, s[12:15], s16 offen offset:%d%s' % (v(120 + 4 * q, 4), v(vL16), 1024 * q, OUTF))
        for r in range(2):
            a('s_cmp_eq_u32 s19, %s' % s(32 + r)); a('s_cbranch_scc1 fz_sc%d' % r)
            for q in range(2): a('buffer_store_dwordx4 %s, %s, s[12:15], %s offen offset:%d%s' % (v(OP + 8 * r + 4 * q, 4), v(vL16), s(34 + r), 1024 * q, OUTF))
            a.lines.append('fz_sc%d:' % r)
        if BC: a('s_cmp_lg_u32 s59, s3'); a('s_cbranch_scc1 fz_xend')
    a('v_add_f32 v11, s42, v10'); rbf(a, 11); a('v_mul_f32 v11, s43, v11'); rbf(a, 11)
    a('s_ashr_i32 s39, s36, 31'); a('s_not_b32 s39, s39'); a('s_or_b32 s39, s39, 0x80000000'); a('s_xor_b32 s39, s36, s39'); a('s_and_b32 s39, s39, 0xffff0000')
    a('v_mov_b32 v12, s39'); a('v_mul_f32 v12, %s, v12' % fh(-1.4426950408889634))
    a('v_exp_f32 v12, v12'); a('v_add_f32 v12, 1.0, v12'); a('v_rcp_f32 v12, v12'); rbf(a, 12)
    a('s_and_b32 s39, s36, 0xffff'); a('s_sub_u32 s39, 2047, s39'); a('s_lshl_b32 s39, s39, 11')
    PQ = 40
    a('v_mov_b32 v13, 0xff')
    a('s_waitcnt lgkmcnt(0)')
    tst(4)
    a.lines.append('fz_f2:')
    st.n = 13; st()
    a('s_cmp_gt_u32 s23, 111'); a('s_cbranch_scc1 fz_nof2')
    if FL:
        a('s_cmp_lt_u32 s3, 4'); a('s_cbranch_scc1 fz_ca')
        a.lines.append('fz_fl1:')
        a('ds_read_b32 v100, v101 offset:4'); a('s_waitcnt lgkmcnt(0)'); a('v_cmp_eq_u32 vcc, 0, v100'); a('s_cbranch_vccnz fz_fl1')
    else: a('s_barrier')
    tst(5)
    if FL: pass
    elif BC: a('s_cmp_lt_u32 s3, 4'); a('s_cbranch_scc1 fz_f2d')
    else: a('s_cmp_eq_u32 s59, s3'); a('s_cselect_b32 s19, 4, s3'); a('s_cmp_lt_u32 s19, 4'); a('s_cbranch_scc1 fz_f2d')
    BH, ACC = 120, 152
    if TWO: a('ds_read_b32 v100, v101')
    for q in range(8): a('ds_read_b128 %s, v15 offset:%d' % (v(BH + 4 * q, 4), 64 * q))
    if W3 < 8 or WL: a('s_waitcnt vmcnt(2)')
    for q in range(8):
        a('s_waitcnt lgkmcnt(%d)' % (7 - q))
        for h in range(2): a('v_mfma_f32_16x16x32_bf16 %s, %s, %s, %s' % (v(ACC + 4 * h, 4), v(BH + 4 * q, 4), v(WQ[2 * q + h], 4), v(ACC + 4 * h, 4) if q else '0'))
    if TWO: a('v_readfirstlane_b32 s19, v100')
    a('s_mov_b32 exec_hi, 0')
    if TWO:
        for k in range(8): a('v_and_or_b32 %s, %s, v14, %s' % (v(ACC + k), v(ACC + k), s(48 + (k & 3))))
        a('s_cmp_eq_u32 s19, 0'); a('s_cbranch_scc1 fz_prem')
        for h in range(2): a('buffer_store_dwordx4 %s, %s, s[4:7], s63 offen' % (v(ACC + 4 * h, 4), v(102 + h)))
    else:
        for h in range(2):
            for k in range(4): a('v_and_or_b32 %s, %s, v14, %s' % (v(ACC + 4 * h + k), v(ACC + 4 * h + k), s(48 + k)))
            if PIN: a('buffer_store_dwordx4 %s, %s, s[4:7], s63 offen sc1' % (v(ACC + 4 * h, 4), v(102 + h)))
            else: a('buffer_store_dwordx4 %s, %s, s[4:7], s63 offen offset:%d sc1' % (v(ACC + 4 * h, 4), v(vL16), 512 * h))
    tst(6)
    a.lines.append('fz_f2d:')
    a('s_mov_b32 exec_hi, -1')
    if FL:
        a('v_mov_b32 v100, 1')
        a('s_waitcnt vmcnt(0)')
        a('s_mov_b64 exec, 1'); a('ds_add_u32 v101, v100 offset:8'); a('s_mov_b64 exec, -1')
        if AC_: a('s_branch fz_xend')
        else:
            a('s_cmp_lg_u32 s59, s3'); a('s_cbranch_scc1 fz_xend')
            a('v_mov_b32 v7, 0')
            a('s_branch fz_p5_ok')
        a.lines.append('fz_ca:')
        a('ds_read_b32 v100, v101 offset:8'); a('s_waitcnt lgkmcnt(0)'); a('v_cmp_ne_u32 vcc, 4, v100'); a('s_cbranch_vccnz fz_ca')
        a('v_mov_b32 v7, 0')
        a('s_branch fz_p5_ok')
    else:
        if OLATE: a('s_cmp_lg_u32 s59, s3'); a('s_cbranch_scc1 fz_late')
        else: a('s_cmp_eq_u32 s18, s3'); a('s_cbranch_scc1 fz_late')
        a('s_cmp_lg_u32 s59, s3'); a('s_cbranch_scc1 fz_xend')
        a('v_mov_b32 v7, 0')
        a('s_waitcnt vmcnt(0)')
        a('s_branch fz_p5_ok')
    a.label('fz_nof2')
    a('s_cmp_lg_u32 s59, s3'); a('s_cbranch_scc1 %s' % 'fz_xend')
    a('s_mov_b32 s58, 0'); a('s_and_b32 s41, s20, %d' % (7 if TWO else 63)); a('s_mul_i32 s41, s41, %d' % (256 if TWO else 32 if PIN else PPS)); a('s_add_u32 s41, s41, s52'); a('v_mov_b32 v7, 0')
    a.label('fz_p5')
    a('buffer_load_dword v8, v7, s[4:7], s41 offen sc1')
    a('s_waitcnt vmcnt(0)')
    a('v_and_b32 v8, 0xff, v8'); a('v_cmp_ne_u32 vcc, s48, v8')
    poll_retry('fz_p5')
    a('s_mov_b32 s58, 0')
    st()
    def h5i(u):
        if TWO: a('buffer_load_dwordx4 %s, %s, s[4:7], %s offen offset:%d sc1' % (v(PQ + 4 * u, 4), v(vL16), s(52 + (u >> 1)), 1024 * u))
        else: a('buffer_load_dwordx4 %s, %s, s[4:7], %s offen sc1' % (v(PQ + 4 * u, 4), 'v6' if u == 3 else 'v3', s(52 + u)))
    def h5c(u):
        for k in range(4): a('v_xor_b32 %s, %s, %s' % (v(PQ + 4 * u + k), (s(8 + k) if u >= 2 else s(48 + k)) if TWO else v(16 + k) if u == 3 else s(48 + k), v(PQ + 4 * u + k)))
        a('v_or3_b32 v8, %s, %s, %s' % (v(PQ + 4 * u), v(PQ + 4 * u + 1), v(PQ + 4 * u + 2)))
        a('v_bitop3_b32 v8, v8, %s, v13 bitop3:0xa8' % v(PQ + 4 * u + 3))
        a('v_cmp_ne_u32 vcc, 0, v8')
    def h5a(u):
        if u:
            for h in range(2): a('v_pk_add_f32 %s, %s, %s' % (v(PQ + 2 * h, 2), v(PQ + 2 * h, 2), v(PQ + 4 * u + 2 * h, 2)))
    for u in range(4): h5i(u)
    prog_poll('fz_h5', 4, h5i, h5c, h5a)
    tst(8)
    if TWO:
        for sw in ('32', '16'):
            for k in range(4): a('v_mov_b32 %s, %s' % (v(PQ + 4 + k), v(PQ + k)))
            for k in range(4): a('v_permlane%s_swap_b32 %s, %s' % (sw, v(PQ + k), v(PQ + 4 + k)))
            for h in range(2): a('v_pk_add_f32 %s, %s, %s' % (v(PQ + 2 * h, 2), v(PQ + 2 * h, 2), v(PQ + 4 + 2 * h, 2)))
        for k in range(4): a('v_and_or_b32 %s, %s, v14, %s' % (v(PQ + k), v(PQ + k), s(48 + k)))
        a('s_mov_b64 exec, 0xffff')
        a('buffer_store_dwordx4 %s, v3, s[4:7], s54 offen sc1' % v(PQ, 4))
        a('s_mov_b64 exec, -1'); a('s_mov_b32 s58, 0')
        a('s_waitcnt vmcnt(0)')
        a.lines.append('fz_h6:')
        a('buffer_load_dword %s, v6, s[4:7], s55 offen sc1' % v(PQ + 8))
        a('s_waitcnt vmcnt(0)')
        a('v_xor_b32 %s, v16, %s' % (v(PQ), v(PQ + 8))); a('v_and_b32 v8, 0xff, %s' % v(PQ)); a('v_cmp_ne_u32 vcc, 0, v8')
        poll_retry('fz_h6')
        a('v_add_f32_dpp %s, %s, %s row_ror:8 %s' % (v(PQ), v(PQ), v(PQ), DPPF))
        for sw in ('32', '16'):
            a('v_mov_b32 %s, %s' % (v(PQ + 1), v(PQ))); a('v_permlane%s_swap_b32 %s, %s' % (sw, v(PQ), v(PQ + 1))); a('v_add_f32 %s, %s, %s' % (v(PQ), v(PQ), v(PQ + 1)))
    else:
        for i in range(2): a('v_permlane32_swap_b32 %s, %s' % (v(PQ + i), v(PQ + 2 + i)))
        a('v_pk_add_f32 %s, %s, %s' % (v(PQ, 2), v(PQ, 2), v(PQ + 2, 2)))
        a('v_permlane16_swap_b32 %s, %s' % (v(PQ), v(PQ + 1)))
        a('v_add_f32 %s, %s, %s' % (v(PQ), v(PQ), v(PQ + 1)))
        a('v_add_f32_dpp %s, %s, %s quad_perm:[2,3,0,1] %s' % (v(PQ), v(PQ), v(PQ), DPPF))
        a('v_add_f32_dpp %s, %s, %s row_ror:4 %s' % (v(PQ), v(PQ), v(PQ), DPPF))
        a('v_add_f32_dpp %s, %s, %s row_ror:8 %s' % (v(PQ), v(PQ), v(PQ), DPPF))
    rbf(a, PQ); a('v_mul_f32 %s, %s, v12' % (v(PQ), v(PQ))); rbf(a, PQ)
    a('v_add_f32 %s, %s, v11' % (v(PQ), v(PQ))); rbf(a, PQ)
    a('v_add_f32 %s, %s, v10' % (v(PQ), v(PQ))); rbf(a, PQ)
    if TWO: a('s_mov_b64 exec, 0xff')
    else: a('s_mov_b32 exec_lo, 0x00030003'); a('s_mov_b32 exec_hi, 0x00030003')
    a('buffer_store_short_d16_hi %s, v2, s[12:15], s39 offen' % v(PQ))
    a('s_cmp_lg_u32 s20, 0'); a('s_cbranch_scc1 fz_xend')
    a('s_mov_b64 exec, 1'); a('v_mov_b32 v8, s40')
    a('buffer_store_dword v8, v7, s[4:7], 0 offen')
    a.lines.append('fz_xend:')
    st.n = 15; st()
    st.dump(n=16, sv=250, wave='s3')
    a.lines.append('fz_end:')
    a('s_endpgm')
    a.lines.append('fz_late:')
    for r in range(2):
        for q in range(2): a('buffer_store_dwordx4 %s, %s, s[12:15], %s offen offset:%d%s' % (v(OP + 8 * r + 4 * q, 4), v(vL16), s(34 + r), 1024 * q, OUTF))
    a('s_branch fz_xend')
    a.lines.append('fz_act:')
    a('s_cmp_gt_u32 s23, 111'); a('s_cbranch_scc1 fz_xend')
    a('v_lshlrev_b32 v2, 2, v1'); a('v_and_b32 v11, 3, v1'); a('v_mov_b32 v3, s48')
    for k in range(1, 4): a('v_cmp_eq_u32 vcc, %d, v11' % k); a('v_mov_b32 v10, %s' % s(48 + k)); a('v_cndmask_b32 v3, v3, v10, vcc')
    a('v_and_b32 v10, 31, v1'); a('v_lshlrev_b32 v6, 4, v10'); a('v_lshrrev_b32 v10, 5, v1'); a('v_mul_u32_u24 v10, %d, v10' % (4 * 546)); a('v_add_u32 v6, v6, v10'); a('v_add_u32 v6, %d, v6' % ACT)
    a('s_lshl_b32 s38, s23, 11'); a('s_add_u32 s38, s38, 0x%x' % XOFF)
    a('s_mov_b32 s58, 0')
    st.n = 12; st()
    if APP:
        a.lines.append('fz_p4:')
        a('buffer_load_dword v8, v2, s[4:7], s38 offen offset:%d sc1' % (256 * (APP - 1)))
        a('s_waitcnt vmcnt(0)')
        a('v_xor_b32 v8, v3, v8'); a('v_and_b32 v8, 0xff, v8'); a('v_cmp_ne_u32 vcc, 0, v8')
        poll_retry('fz_p4')
        a('s_mov_b32 s58, 0')
    if XB_:
        a('s_lshl_b32 s39, s23, 7'); a('s_add_u32 s39, s39, 0x%x' % DLOFF); a('v_and_b32 v7, 28, v2')
        a.lines.append('fz_d4:')
        a('buffer_load_dword v8, v7, s[4:7], s39 offen sc1')
        a('s_add_u32 s58, s58, 1'); a('s_and_b32 s41, s58, 15')
        a('s_waitcnt vmcnt(0)')
        a('v_cmp_ne_u32 vcc, s40, v8')
        a('s_cbranch_scc0 fz_h4'); a('s_cbranch_vccnz fz_d4')
    a.lines.append('fz_h4:')
    for k in range(8): a('buffer_load_dword %s, v2, s[4:7], s38 offen offset:%d sc1' % (v(16 + k), 256 * k))
    for k in range(0, 8, 2):
        a('s_waitcnt vmcnt(%d)' % (6 - k))
        a('v_xor_b32 %s, v3, %s' % (v(16 + k), v(16 + k))); a('v_xor_b32 %s, v3, %s' % (v(17 + k), v(17 + k)))
        a('v_or3_b32 v10, %s, %s, %s' % (v(16 + k), v(17 + k), 'v10' if k else '0'))
        a('v_add_f32 %s, %s, %s' % (v(16 + k), v(16 + k), v(17 + k)))
        if k & 2: a('v_add_f32 %s, %s, %s' % (v(14 + k), v(14 + k), v(16 + k)))
    a('v_and_b32 v10, 0xff, v10'); a('v_add_f32 v8, v16, v20')
    a('v_cmp_ne_u32 vcc, 0, v10')
    if XB_:
        a('s_cmp_gt_u32 s58, 0x%x' % (MAXPOLL * 4)); a('s_cbranch_scc1 fz_h4_ok'); a('s_cbranch_vccnz fz_d4')
        a.lines.append('fz_h4_ok:')
    else: poll_retry('fz_h4')
    tst(1)
    rbf(a, 8)
    a('v_mov_b32 v9, v8')
    a('v_permlane32_swap_b32 v8, v9')
    a('v_mul_f32 v10, %s, v8' % fh(-1.4426950408889634))
    a('v_exp_f32 v10, v10')
    a('v_add_f32 v10, 1.0, v10'); a('v_rcp_f32 v10, v10')
    a('v_mul_f32 v8, v8, v10'); rbf(a, 8)
    a('v_mul_f32 v8, v8, v9'); rbf(a, 8)
    for m in range(4): a('ds_write_b16_d16_hi v6, v8 offset:%d' % (546 * m))
    a('s_waitcnt lgkmcnt(0)')
    tst(2)
    if FL: a('v_mov_b32 v8, 1'); a('ds_write_b32 v101, v8 offset:4'); a('s_branch fz_late')
    else: a('s_branch fz_f2')
    a.lines.append('fz_ldh:')
    a('s_load_dwordx2 s[12:13], s[0:1], 56'); a('s_load_dwordx2 s[16:17], s[0:1], 64')
    srd(12, 0x700000); srd(16, 0x700000)
    a('s_branch fz_ldback')
    a.lines.append('fz_spec:')
    a('s_cmp_gt_u32 s3, 3'); a('s_cbranch_scc1 fz_spec_hi')
    for q, sa, sb in ((0, 0, 16), (2, 15, 17), (3, 18, 19)):
        a('s_cmp_eq_u32 s3, %d' % q); a('s_cselect_b32 s31, %d, s31' % (sa * RS)); a('s_cselect_b32 s30, %d, s30' % (sb * RS))
    a('s_branch fz_specback')
    a.lines.append('fz_spec_hi:')
    xload()
    if LATEX: extras()
    for q, ra, rb, sa, sb in ((0, 256, 1792, 4, 11), (1, 768, 1280, 6, 9), (2, 768, 1280, 20, 21), (3, 256, 1792, 22, 23)):
        a('s_cmp_eq_u32 s24, %d' % q); a('s_cselect_b32 s31, %d, s31' % (sa * RS)); a('s_cselect_b32 s30, %d, s30' % (sb * RS))
        a('s_cselect_b32 s27, %d, s27' % (ra * 2048)); a('s_cselect_b32 s28, %d, s28' % (rb * 2048))
    a('s_mov_b32 s57, 0')
    a('s_branch fz_specback')
    a.lines.append('fz_jb:')
    pack(JT, XAC, 16, 'bf16')
    a('s_branch fz_jend')
    if TWO:
        a.lines.append('fz_prem:')
        for h in range(2): a('buffer_store_dwordx4 %s, %s, s[4:7], s63 offen sc1' % (v(152 + 4 * h, 4), v(102 + h)))
        a('s_branch fz_f2d')
    a.lines.append('fz_bsp0:')
    wdload(0, 8 - WL if (WL and SPID & 4) else W3)
    a('s_branch fz_bsp')
    for jx in range(4):
        a.lines.append('fz_spec4%d:' % jx)
        a('s_mov_b32 s38, 0x80018001'); a('s_mov_b32 s39, 0x80018001')
        for k in range(2 * jx, 2 * jx + 2): a('v_cndmask_b32 %s, %s, %s, s[38:39]' % (v(YM + k), v(YM + k), v(YD + k)))
        a('s_branch fz_spec4back%d' % jx)
    a.label('fz_nc1')
    a('s_setprio 0')
    a('s_cmp_lg_u32 s59, 0'); a('s_cbranch_scc1 ffn_b')
    if WL:
        wdload(WE, 8 - WL)
        a('s_bitcmp1_b32 s2, 2'); a('s_cbranch_scc1 fz_wl1')
        wdload(8 - WL, 8)
        a.lines.append('fz_wl1:')
        latex()
        a('s_waitcnt vmcnt(%d)' % (2 * (8 - WL) + 6))
    else:
        wdload(WE, W2)
        latex()
        a('s_waitcnt vmcnt(%d)' % (2 * W2 + 6))
    tags2()
    a.lines.append('fz_bsp:')
    a('s_setprio 0'); a('s_mov_b32 s57, 1')
    a('s_cmp_gt_u32 s3, 5'); a('s_cbranch_scc1 fz_nocq')
    cq_job()
    a.lines.append('fz_nocq:')
    SETA(False)
    SETB('b')
    a('s_cmp_eq_u32 s2, %d' % SPID); a('s_cbranch_scc1 fz_sz')
    a('s_waitcnt vmcnt(0)')
    sync_add(0x100)
    a.lines.append('fz_sz:')
    a('ds_read_b32 v10, v15')
    a('s_waitcnt lgkmcnt(0)')
    a('v_cmp_ne_u32 vcc, s38, v10')
    a('s_cbranch_vccnz fz_sz')
    st.n = 5; st()
    SET2(B2L < 2, B2L < 1)
    wdload(W2, W3)
    st()
    a('s_waitcnt lgkmcnt(0)')
    a('s_branch fz_hb')
    a.label('fz_nc3')
    if B2L: SET2(B2L > 1, True); a('s_waitcnt lgkmcnt(0)')
    a('s_mov_b32 s58, 0')
    a('s_waitcnt vmcnt(0)')
    st.n = 9; st()
    if EP2:
        a('s_lshl_b32 s32, s20, 7'); a('s_add_u32 s32, s32, s55'); a('s_add_u32 s32, s32, %d' % (12 * PS + 64)); a('v_mov_b32 v9, 0')
        a.lines.append('fz_p2:')
        a('buffer_load_dword v10, v9, s[4:7], s32 offen sc1')
        a('s_waitcnt vmcnt(0)')
        a('v_xor_b32 v10, %s, v10' % v(vE)); a('v_and_b32 v10, %s, v10' % v(vMT)); a('v_cmp_ne_u32 vcc, 0, v10')
        poll_retry('fz_p2')
        a('s_mov_b32 s58, 0')
    a('s_branch fz_h2')
    for sfx in 'ab':
        a.lines.append('fz_spec3%s:' % sfx)
        a('v_xor_b32 v11, 1, v4'); a('v_cndmask_b32 v9, v9, v11, s[34:35]')
        a('v_and_b32 v11, 1, v4'); a('v_cndmask_b32 v11, 0, v11, s[34:35]'); a('v_sub_u32 v10, v10, v11')
        a('s_cmp_lg_u32 s22, 0'); a('s_cbranch_scc1 fz_spec3back%s' % sfx)
        for i, tt, pp, po in ((15, 1024, 124, 4), (13, 1536, 124, 6), (4, 256, 127, 8), (11, 1792, 127, 14), (6, 768, 127, 10), (9, 1280, 127, 12)):
            a('v_cmp_eq_u32 vcc, %d, v4' % i); a('v_mov_b32 v11, %d' % tt); a('v_mov_b32 v12, %d' % pp)
            a('v_cndmask_b32 %s, %s, v11, vcc' % (v(vT), v(vT))); a('v_cndmask_b32 v10, v10, v12, vcc'); a('v_cndmask_b32 v9, v9, %d, vcc' % po)
        a.flush(); a('s_branch fz_spec3back%s' % sfx)
    WF, WD, BH, ACC, K = 32, 96, 128, 192, 200
    SNT = '' if '--spl' in OPT else ' nt'
    def ffn_addr():
        a('s_bfe_u32 s21, s2, 0x30003')
        a('v_lshrrev_b32 v2, 5, v1'); a('v_and_b32 v3, 31, v1'); a('v_lshlrev_b32 v4, 1, v2'); a('v_xor_b32 v3, v4, v3')
        a('v_mul_u32_u24 v4, 7168, v2'); a('v_lshl_add_u32 v4, v3, 4, v4')
        for k in range(1, 4): a('v_xor_b32 %s, %d, v4' % (v(4 + k), 64 * k))
        a('s_lshl_b32 s23, s21, 7'); a('s_lshl_b32 s24, s3, 4'); a('s_add_u32 s23, s23, s24'); a('s_mul_i32 s23, s23, 7168'); a('s_lshl_b32 s24, s22, 9'); a('s_add_u32 s23, s23, s24')
        a('s_lshl_b32 s24, s3, 13')
    def gu(m, p):
        a('s_add_u32 s28, s24, %d' % ((0 if m else GT) + 1024 * p)); a('s_mov_b32 m0, s28'); a('s_add_u32 s29, s23, %d' % (p * 2 * 7168))
        if '--xnogu' not in OPT: a('buffer_load_dwordx4 %s, %s, s29 offen%s lds' % (v(4 + (p & 1) + 2 * (p >> 2)), s(16 if m else 12, 4), SNT))
    a.label('ffn_b')
    if not NE:
        a('s_waitcnt vmcnt(0)')
        tags()
    a.label('ffn')
    st.n = 5; st()
    blk(22, 36)
    a('s_cmp_gt_u32 s22, 13'); a('s_cbranch_scc1 fz_xend')
    ffn_addr()
    a('v_mov_b32 v31, %d' % (MSG + 48)); a('v_mov_b32 v10, 0'); a('ds_write_b32 v31, v10'); a('s_waitcnt lgkmcnt(0)')
    if NE:
        a('s_cmp_lt_u32 s3, 4'); a('s_cbranch_scc1 ffn_g1')
        for p in range(NE): gu(0, p)
        a('s_waitcnt vmcnt(%d)' % NE)
        tags()
        a('s_barrier'); a('s_branch ffn_g2')
        a.lines.append('ffn_g1:')
    a('s_setprio 0'); a('s_barrier')
    if GATE:
        a('s_lshl_b32 s26, s3, 3'); a('s_add_u32 s26, s26, %d' % (GATE - 1)); a('s_mul_i32 s26, s26, %d' % PS); a('s_add_u32 s26, s26, 0x%x' % WOFF); a('s_and_b32 s27, s2, 127'); a('s_lshl_b32 s27, s27, 7'); a('s_add_u32 s26, s26, s27')
        a('v_mov_b32 v9, 0'); a('s_mov_b32 s27, 0x30003')
        a('s_waitcnt vmcnt(0)')
        a.lines.append('ffn_gp:')
        a('buffer_load_dword v10, v9, s[4:7], s26 offen sc1')
        a('s_waitcnt vmcnt(0)')
        a('v_xor_b32 v10, s44, v10'); a('v_and_b32 v10, s27, v10'); a('v_cmp_ne_u32 vcc, 0, v10')
        poll_retry('ffn_gp')
        a('s_mov_b32 s58, 0')
    if '--ackfirst' in OPT: a('s_waitcnt vmcnt(0)'); a('s_barrier')
    for p in range(8):
        if NE and p == NE: a.lines.append('ffn_g2:')
        gu(0, p)
        if THR: a('s_waitcnt vmcnt(%d)' % (THR - 1))
    if NE == 8: a.lines.append('ffn_g2:')
    def l2p():
        a('s_lshl_b32 s28, s22, 3'); a('s_add_u32 s28, s28, s21'); a('s_lshl_b32 s28, s28, 16'); a('v_lshlrev_b32 v9, 7, v0')
        a('buffer_load_dword v248, v9, s[64:67], s28 offen')
    if L2P == 1: l2p()
    for p in range(8):
        gu(1, p)
        if THR2: a('s_waitcnt vmcnt(%d)' % (THR2 - 1))
    if L2P == 2: l2p()
    a('v_lshrrev_b32 v2, 4, v1'); a('v_and_b32 v3, 15, v1')
    a('v_bfe_u32 v9, v1, 2, 2'); a('v_lshl_add_u32 v8, v2, 3, v9'); a('v_lshlrev_b32 v8, 9, v8')
    a('v_and_b32 v10, 1, v2'); a('v_lshl_add_u32 v10, v10, 2, v9'); a('s_lshl_b32 s28, s3, 1'); a('v_xor_b32 v10, s28, v10')
    a('v_lshl_add_u32 v8, v10, 5, v8'); a('v_and_b32 v10, 3, v1'); a('v_lshl_add_u32 v8, v10, 3, v8')
    a('v_xor_b32 v12, 32, v8'); a('v_add_u32 v13, %d, v8' % GT); a('v_add_u32 v20, %d, v12' % GT)
    if GH:
        a('s_lshl_b32 s28, s21, 7'); a('v_lshl_add_u32 v9, v1, 1, s28'); cand_off(9, 16, 24, 24)
        a('v_add_u32 v9, 1, v9'); cand_off(9, 17, 24, 24)
        a('s_lshl_b32 s28, s21, 8'); a('s_add_u32 s28, s28, %d' % HN); a('v_lshl_add_u32 v18, v1, 2, s28')
    else:
        a('v_bfe_u32 v9, v0, 2, 2'); a('v_lshrrev_b32 v10, 6, v0'); a('v_lshl_add_u32 v9, v10, 2, v9')
        a('v_bfe_u32 v10, v0, 4, 1'); a('v_and_b32 v11, 3, v0'); a('v_lshlrev_b32 v11, 1, v11'); a('v_lshl_add_u32 v10, v10, 3, v11')
        a('v_lshl_add_u32 v11, v9, 5, v10'); a('v_add_u32 v17, 1, v11')
        a('v_cmp_eq_u32 vcc, 0, v10'); a('v_cmp_gt_u32 s[28:29], 16, v9'); a('s_and_b64 vcc, vcc, s[28:29]'); a('v_cndmask_b32 v14, 0, 16, vcc'); a('v_add_u32 v16, v11, v14')
        a('v_bfe_u32 v10, v0, 5, 1'); a('v_cmp_eq_u32 s[28:29], 1, v10')
        a('v_sub_u32 v14, 1024, v16'); a('v_cmp_eq_u32 vcc, 512, v16'); a('v_cndmask_b32 v14, v14, 0, vcc'); a('v_cndmask_b32 v16, v16, v14, s[28:29]')
        a('v_sub_u32 v14, 1024, v17'); a('v_cndmask_b32 v17, v17, v14, s[28:29]')
        for r in (16, 17): a('v_lshlrev_b32 %s, 1, %s' % (v(r), v(r))); a('v_add_u32 %s, %d, %s' % (v(r), HN, v(r)))
        a('v_lshlrev_b32 v18, 2, v0'); a('v_add_u32 v18, %d, v18' % RAW)
    a('s_lshl_b32 s28, s21, 8'); a('s_add_u32 s28, s28, %d' % HN); a('v_lshlrev_b32 v19, 4, v2'); a('v_add_u32 v19, s28, v19')
    a('v_mov_b32 v28, %d' % MSG)
    a('v_lshlrev_b32 v29, 4, v1')
    a('s_lshl_b32 s30, s22, 3'); a('s_add_u32 s30, s30, s3'); a('s_lshl_b32 s30, s30, 3'); a('s_add_u32 s30, s30, s21'); a('s_lshl_b32 s30, s30, 8'); a('s_add_u32 s30, s30, 0x%x' % XOFF)
    a('v_lshlrev_b32 v30, 4, v2'); a('v_lshl_add_u32 v30, v3, 6, v30')
    for k in range(1, 4): a('v_cmp_eq_u32 %s, %d, v3' % (s(58 + 2 * k, 2), k))
    a('v_add_u32 v21, %d, v29' % RAW)
    a('v_mov_b32 %s, 0xffffff00' % v(197))
    a('s_and_b32 s35, s2, 0x47'); a('s_lshl_b32 s31, s3, 3'); a('s_add_u32 s35, s35, s31'); a('s_add_u32 s35, s35, %d' % POFS); a('s_and_b32 s35, s35, 127')
    a('s_getreg_b32 s33, hwreg(HW_REG_XCC_ID)'); a('s_and_b32 s33, s33, 15')
    a('s_lshr_b32 s31, s35, 5'); a('s_lshl_b32 s31, s31, 2'); a('s_add_u32 s31, s31, %d' % (MSG + 16)); a('v_mov_b32 v22, s31')
    a('s_lshl_b32 s20, s22, 3'); a('s_add_u32 s20, s20, s21')
    if XB_:
        a('s_lshl_b32 s31, s22, 3'); a('s_add_u32 s31, s31, s3'); a('s_lshl_b32 s31, s31, 5'); a('s_add_u32 s31, s31, s21'); a('s_lshl_b32 s31, s31, 2'); a('s_add_u32 s31, s31, 0x%x' % DLOFF)
        a('v_mov_b32 v26, s40'); a('v_mov_b32 v27, 0')
    a('s_and_b32 s34, s20, %d' % (7 if DB & 8 else 15))
    if DB & 2 and not DB & 16: a('s_bfe_u32 s28, s20, 0x10004'); a('s_lshl_b32 s28, s28, 5'); a('s_add_u32 s34, s34, s28')
    a('s_mul_i32 s34, s34, %d' % KS); a('s_add_u32 s34, s34, 0x%x' % KOFF)
    def trw():
        for T_, ad in enumerate((13, 20, 8, 12)):
            for k in range(4):
                for hh in range(2): a('ds_read_b64_tr_b16 %s, %s offset:%d' % (v(WF + 16 * T_ + 4 * k + 2 * hh, 2), v(ad), 16384 * k + 2048 * hh))
            a('s_waitcnt lgkmcnt(0)')
    a('s_waitcnt vmcnt(%d)' % (1 if L2P == 2 else 0))
    if DEC:
        a('v_mov_b32 v10, 1'); a('s_mov_b64 exec, 1'); a('ds_add_u32 v31, v10'); a('s_mov_b64 exec, -1')
        a('s_mov_b32 s23, 0')
        a('s_cmp_eq_u32 s3, 0'); a('s_cbranch_scc1 ffn_z0')
        a.lines.append('ffn_sl:')
        a('ds_read_b32 v10, v31'); a('s_waitcnt lgkmcnt(0)'); a('v_cmp_ne_u32 vcc, 8, v10'); a('s_cbranch_vccnz ffn_sl')
        st()
        trw()
        st()
        a('s_cmp_lg_u32 s3, 0'); a('s_cbranch_scc1 ffn_w3')
        a('s_cmp_eq_u32 s23, 2'); a('s_cbranch_scc1 ffn_w3')
        a('s_mov_b32 s23, 1')
        a.lines.append('ffn_z0:')
    else:
        a('s_barrier')
        st()
        trw()
        st()
        a('s_cmp_lg_u32 s3, 0'); a('s_cbranch_scc1 ffn_w3')
    if KP == 0:
        a('v_lshlrev_b32 v23, %d, v1' % KRL); a('v_add_u32 v24, %d, v23' % (64 << KRL)); a('s_lshl_b32 s28, s20, %d' % KRL); a('s_add_u32 s28, s28, s34'); a('v_mov_b32 v10, %d' % (12 + (32 * KS if DB & 16 else 16 * KS if DB & 1 else 0)))
        if DTH:
            a('v_mul_u32_u24 v11, %d, v1' % (3 << KRL if False else 2 << KRL)); a('v_bfe_u32 v9, v1, 2, 1'); a('v_lshl_add_u32 v11, v9, %d, v11' % KRL); a('v_add_u32 v10, v10, v11'); a('s_mov_b32 s28, s34')
            a.lines.append('ffn_q3:')
            a('buffer_load_dword v11, v10, s[4:7], s28 offen sc1')
            a('s_add_u32 s58, s58, 1')
            a('s_waitcnt vmcnt(0)')
            a('v_cmp_eq_u32 vcc, s40, v11')
            a('s_cmp_gt_u32 s58, 0x%x' % MAXPOLL); a('s_cbranch_scc1 ffn_p3_ok')
            a('s_bcnt1_i32_b64 s29, vcc'); a('s_cmp_lt_u32 s29, %d' % DTH); a('s_cbranch_scc1 ffn_q3'); a('s_branch ffn_p3_ok')
        a.label('ffn_p3')
        a('buffer_load_dword v11, v10, s[4:7], s28 offen sc1')
        if DEC: a('ds_read_b32 v9, v31')
        a('s_waitcnt vmcnt(0) lgkmcnt(0)')
        a('v_cmp_ne_u32 vcc, s40, v11')
        if DEC:
            a('s_cbranch_vccnz ffn_p3_x')
            a.lines.append('ffn_p3_ok:')
        else: poll_retry('ffn_p3')
        a('s_mov_b32 s58, 0'); a('s_mov_b32 s54, -1')
        st()
        a.label('ffn_k3')
        a('buffer_load_dwordx4 %s, v23, s[4:7], s34 offen sc1' % v(K, 4)); a('buffer_load_dwordx4 %s, v24, s[4:7], s34 offen sc1' % v(K + 4, 4))
        a('s_waitcnt vmcnt(0)')
        if SPEC:
            a('v_cmp_eq_u32 s[24:25], s40, %s' % v(K + 3)); a('v_cmp_eq_u32 s[26:27], s40, %s' % v(K + 7))
            a('v_cndmask_b32 %s, 0, %s, s[24:25]' % (v(K), v(K))); a('v_cndmask_b32 %s, 0, %s, s[26:27]' % (v(K + 4), v(K + 4)))
            a('v_max_u32 %s, %s, %s' % (v(K + 10), v(K), v(K + 4)))
            for pat in ['quad_perm:[1,0,3,2] ' + DPPF, 'quad_perm:[2,3,0,1] ' + DPPF, 'row_half_mirror ' + DPPF,
                        'row_mirror ' + DPPF, 'row_bcast:15 row_mask:0xa bank_mask:0xf', 'row_bcast:31 row_mask:0xc bank_mask:0xf']:
                a('v_max_u32_dpp %s, %s, %s %s' % (v(K + 10), v(K + 10), v(K + 10), pat))
            a('s_and_b64 s[52:53], s[24:25], s[26:27]')
            a('v_readlane_b32 s36, %s, 63' % v(K + 10))
        else: keys_argmax(K, None, 'ffn_k3')
    else:
        st()
        KSET = [216 + 8 * i for i in range(KP)]
        def ki(r): a('buffer_load_dwordx4 %s, v29, s[4:7], s34 offen sc1' % v(r, 4)); a('buffer_load_dwordx4 %s, v29, s[4:7], s34 offen offset:1024 sc1' % v(r + 4, 4))
        for r in KSET[:-1]: ki(r)
        a.lines.append('ffn_k3:')
        for i, r in enumerate(KSET):
            ki(KSET[i - 1])
            a('s_waitcnt vmcnt(%d)' % (2 * KP - 2))
            for k in range(8): a('v_mov_b32 %s, %s' % (v(K + k), v(r + k)))
            a('v_max_u32 %s, %s, %s' % (v(K + 10), v(K), v(K + 4)))
            a('v_xor_b32 %s, s40, %s' % (v(K + 8), v(K + 3))); a('v_xor_b32 %s, s40, %s' % (v(K + 9), v(K + 7)))
            for pat in ['quad_perm:[1,0,3,2] ' + DPPF, 'quad_perm:[2,3,0,1] ' + DPPF, 'row_half_mirror ' + DPPF,
                        'row_mirror ' + DPPF, 'row_bcast:15 row_mask:0xa bank_mask:0xf', 'row_bcast:31 row_mask:0xc bank_mask:0xf']:
                a('v_max_u32_dpp %s, %s, %s %s' % (v(K + 10), v(K + 10), v(K + 10), pat))
            a('v_or_b32 %s, %s, %s' % (v(K + 8), v(K + 8), v(K + 9)))
            a('v_readlane_b32 s36, %s, 63' % v(K + 10))
            a('v_cmp_ne_u32 vcc, 0, %s' % v(K + 8))
            a('s_cbranch_vccz ffn_k3_ok')
        a('s_add_u32 s58, s58, 1'); a('s_cmp_lt_u32 s58, 0x%x' % MAXPOLL); a('s_cbranch_scc1 ffn_k3')
        a.label('ffn_k3_ok')
    a('v_cmp_eq_u32 vcc, s36, %s' % v(K)); a('v_cmp_eq_u32 s[28:29], s36, %s' % v(K + 4))
    a('s_cmp_lg_u64 vcc, 0'); a('s_cselect_b32 s39, 0, 64'); a('s_or_b64 vcc, vcc, s[28:29]'); a('s_ff1_i32_b64 s41, vcc')
    a('s_add_u32 s39, s39, s41'); a('s_lshl_b32 s39, s39, 11'); a('s_add_u32 s39, s39, 0x%x' % COFF)
    CR = BH
    if SPEC:
        a('s_cmp_eq_u32 s39, s54'); a('s_cbranch_scc1 ffn_c3h')
        a('buffer_load_dwordx4 %s, v29, s[4:7], s39 offen sc1' % v(CR, 4)); a('buffer_load_dwordx4 %s, v29, s[4:7], s39 offen offset:1024 sc1' % v(CR + 4, 4))
        a.lines.append('ffn_c3h:')
        a('s_cmp_lg_u64 s[52:53], -1'); a('s_cbranch_scc1 ffn_k3_rt')
        a.lines.append('ffn_k3_ok:')
        a('s_mov_b32 s58, 0')
        st()
    else:
        a('s_mov_b32 s58, 0')
        st()
        a.lines.append('ffn_c3:')
        if GH: a('buffer_load_short_d16_hi v14, v16, s[4:7], s39 offen sc1'); a('buffer_load_short_d16_hi v15, v17, s[4:7], s39 offen sc1')
        else: a('buffer_load_dwordx4 %s, v29, s[4:7], s39 offen sc1' % v(CR, 4)); a('buffer_load_dwordx4 %s, v29, s[4:7], s39 offen offset:1024 sc1' % v(CR + 4, 4))
    a.lines.append('ffn_c3d:')
    a('v_and_b32 v10, 15, %s' % v(K + 1)); a('v_and_b32 v11, 15, %s' % v(K + 5))
    a('v_cmp_eq_u32 s[24:25], s33, v10'); a('v_cmp_eq_u32 s[26:27], s33, v11')
    for k in range(4): a('v_mov_b32 %s, %s' % (v(K + 12 + k), s(24 + k) if LOCAL else '0'))
    for k in range(1, 3): a('v_cndmask_b32 %s, %s, %s, s[28:29]' % (v(K + 8 + k), v(K + k), v(K + 4 + k)))
    if GH:
        a('ds_write_b128 v28, %s offset:16' % v(K + 12, 4))
        a('v_readlane_b32 s24, %s, s41' % v(K + 9)); a('v_readlane_b32 s25, %s, s41' % v(K + 10)); a('s_mov_b64 s[42:43], vcc')
        a('s_and_b32 s24, s24, 0xffff0000'); a('s_mov_b32 s26, 0xffff0000')
        a('s_waitcnt vmcnt(0)')
        a('v_max_u32 v10, v14, v15')
        for r in (14, 15): a('v_add_f32 %s, s24, %s' % (v(r), v(r)))
        for r in (14, 15): rbf(a, r)
        for r in (14, 15): a('v_mul_f32 %s, s25, %s' % (v(r), v(r)))
        a('v_cvt_pk_bf16_f32 v14, v14, v15')
        a('ds_write_b32 v18, v14')
        a('v_cmp_eq_u32 vcc, s26, v10')
    else:
        a('v_and_b32 %s, 0xffff0000, %s' % (v(K + 9), v(K + 9)))
        a('s_mov_b64 s[42:43], vcc'); a('s_mov_b64 exec, vcc')
        a('ds_write_b128 v28, %s' % v(K + 8, 4)); a('ds_write_b128 v28, %s offset:16' % v(K + 12, 4))
        a('s_mov_b64 exec, -1')
        a('s_waitcnt vmcnt(1)')
        a('ds_write_b128 v21, %s' % v(CR, 4))
        a('v_max3_u32 v10, %s, %s, %s' % (v(CR), v(CR + 1), v(CR + 2)))
        a('s_waitcnt vmcnt(0)')
        a('ds_write_b128 v21, %s offset:1024' % v(CR + 4, 4))
        a('v_max3_u32 v10, v10, %s, %s' % (v(CR + 3), v(CR + 4))); a('v_max3_u32 v11, %s, %s, %s' % (v(CR + 5), v(CR + 6), v(CR + 7))); a('v_max_u32 v10, v10, v11')
        a('v_cmp_eq_u32 vcc, -1, v10')
    a('s_cbranch_vccnz ffn_c3_rt')
    a.lines.append('ffn_c3_ok:')
    a('s_waitcnt lgkmcnt(0)')
    if DEC:
        a('s_cmp_eq_u32 s23, 0'); a('s_mov_b32 s23, 2'); a('s_cbranch_scc1 ffn_sl')
    a.label('ffn_w3')
    a('s_barrier')
    st.n = 10; st()
    if GH:
        st()
        a('ds_read_b32 %s, v22' % v(K + 3))
    else:
        a('ds_read_b32 v11, v18'); a('ds_read_b128 %s, v28' % v(K, 4)); a('ds_read_b32 %s, v22' % v(K + 3))
        a('s_mov_b32 s28, 0xffff0000')
        a('s_waitcnt lgkmcnt(2)')
        a('v_lshlrev_b32 v14, 16, v11'); a('v_and_b32 v15, s28, v11')
        a('s_waitcnt lgkmcnt(0)')
        for r in (14, 15): a('v_add_f32 %s, %s, %s' % (v(r), v(r), v(K + 1)))
        for r in (14, 15): rbf(a, r)
        for r in (14, 15): a('v_mul_f32 %s, %s, %s' % (v(r), v(r), v(K + 2)))
        a('v_cvt_pk_bf16_f32 v14, v14, v15')
        a('ds_write_b16 v16, v14'); a('ds_write_b16_d16_hi v17, v14')
        a('v_readfirstlane_b32 s24, %s' % v(K + 3))
        a('s_waitcnt lgkmcnt(0)'); a('s_barrier')
        st()
    for k in range(4): a('ds_read_b128 %s, v19 offset:%d' % (v(BH + 4 * k, 4), 64 * k))
    AC = 144
    for k in range(4):
        a('s_waitcnt lgkmcnt(%d)' % (3 - k))
        for T_ in range(4): a('v_mfma_f32_16x16x32_bf16 %s, %s, %s, %s' % (v((AC + 4 * T_) if T_ else ACC, 4), v(WF + 16 * T_ + 4 * k, 4), v(BH + 4 * k, 4), v((AC + 4 * T_) if T_ else ACC, 4) if k else '0'))
    if GH: a('v_readfirstlane_b32 s24, %s' % v(K + 3))
    for T_ in range(1, 4):
        for k in range(4): a('v_cndmask_b32 %s, %s, %s, %s' % (v(ACC + k), v(ACC + k), v(AC + 4 * T_ + k), s(58 + 2 * T_, 2)))
    a('s_mov_b32 exec_lo, 0x000f000f'); a('s_mov_b32 exec_hi, 0x000f000f')
    for k in range(4): a('v_and_or_b32 %s, %s, %s, %s' % (v(ACC + k), v(ACC + k), v(197), s(48 + k)))
    a('s_bitcmp1_b32 s24, s35'); a('s_cbranch_scc0 ffn_rem')
    a('buffer_store_dwordx4 %s, v30, s[4:7], s30 offen' % v(ACC, 4))
    if XB_: a('buffer_store_dword v26, v27, s[4:7], s31 offen')
    a.lines.append('ffn_fin:')
    st()
    st.dump(sv=250, wave='s3')
    a('s_endpgm')
    a.lines.append('ffn_rem:')
    a('buffer_store_dwordx4 %s, v30, s[4:7], s30 offen sc1' % v(ACC, 4))
    a('s_branch ffn_fin')
    if DEC:
        a.lines.append('ffn_p3_x:')
        a('s_add_u32 s58, s58, 1'); a('s_cmp_gt_u32 s58, 0x%x' % MAXPOLL); a('s_cbranch_scc1 ffn_p3_ok')
        a('s_cmp_lg_u32 s23, 0'); a('s_cbranch_scc1 ffn_p3')
        a('v_cmp_eq_u32 vcc, 8, v9'); a('s_cbranch_vccnz ffn_sl'); a('s_branch ffn_p3')
    a.lines.append('ffn_c3_rt:')
    if SPEC:
        a('s_mov_b64 vcc, s[42:43]'); a('s_add_u32 s58, s58, 1'); a('s_cmp_gt_u32 s58, 0x%x' % MAXPOLL); a('s_cbranch_scc1 ffn_c3_ok')
        a('buffer_load_dwordx4 %s, v29, s[4:7], s39 offen sc1' % v(CR, 4)); a('buffer_load_dwordx4 %s, v29, s[4:7], s39 offen offset:1024 sc1' % v(CR + 4, 4))
        a('s_branch ffn_c3d')
        a.lines.append('ffn_k3_rt:')
        a('s_cmp_lg_u32 s36, 0'); a('s_cselect_b32 s54, s39, -1')
        a('s_add_u32 s58, s58, 1'); a('s_cmp_lt_u32 s58, 0x%x' % MAXPOLL); a('s_cbranch_scc1 ffn_k3'); a('s_branch ffn_k3_ok')
    else:
        a('s_mov_b64 vcc, s[42:43]'); a('s_add_u32 s58, s58, 1'); a('s_cmp_lt_u32 s58, 0x%x' % MAXPOLL); a('s_cbranch_scc1 ffn_c3'); a('s_branch ffn_c3_ok')
    emit_stubs()
    a.lines.append('fz_codeend:')

def main(path):
    ref = open('/code/%s.s.ref' % NAME).read().splitlines()
    for l in ref:
        if l.startswith('; Override'): break
        a.raw(l)
    a.raw('; @launch kernel=fz_kernel grid=(256,1,1) block=(512,1,1) lds=163840')
    if STAMPS: a.raw('; @groups fftA=0-127:0-3,fftB=0-127:4-7,ffn=128-255:0-0,ffnall=128-255:1-7')
    a.raw('.amdgcn_target "amdgcn-amd-amdhsa--gfx950"'); a.raw('.text')
    gen()
    a.raw('.section .rodata,"a"')
    a.raw('\n'.join(['.p2align 6', '.amdhsa_kernel fz_kernel', '  .amdhsa_next_free_vgpr 256', '  .amdhsa_next_free_sgpr 102',
        '  .amdhsa_accum_offset 256', '  .amdhsa_group_segment_fixed_size 0', '  .amdhsa_kernarg_size 104', '  .amdhsa_user_sgpr_count 2',
        '  .amdhsa_user_sgpr_kernarg_segment_ptr 1', '  .amdhsa_system_sgpr_workgroup_id_x 1', '.end_amdhsa_kernel', '']))
    open(path, 'w').write(a.text())
    print('wrote', path, 'lines', len(a.lines), 'nops', a.nops)
if __name__ == '__main__':
    ps = [x for x in sys.argv[1:] if x.endswith('.s')]
    main(ps[0] if ps else '/code/%s.s' % NAME)
```

```python
import struct, sys
import os; _d = os.path.dirname(os.path.abspath(__file__)); sys.path.insert(0, _d); sys.path.insert(0, _d + '/mb')
from asmlib import Asm
from mblib import St
NAME = 'sequential_preLN__spectral_fnet__moe_arch_mod__prompt'
def fh(x): return '0x%08x' % struct.unpack('<I', struct.pack('<f', x))[0]
OPT = set(a for a in sys.argv[1:] if a.startswith('--'))
def optv(name, d):
    for o in OPT:
        if o.startswith('--%s=' % name): return int(o.split('=')[1])
    return d
STAMPS = '--stamps' in OPT
def v(i, n=1): return 'v%d' % i if n == 1 else 'v[%d:%d]' % (i, i + n - 1)
def s(i, n=1): return 's%d' % i if n == 1 else 's[%d:%d]' % (i, i + n - 1)
DPPF = 'row_mask:0xf bank_mask:0xf'
X1 = 'quad_perm:[1,0,3,2] ' + DPPF
def rbf(a, r): a('v_cvt_pk_bf16_f32 %s, 0, %s' % (v(r), v(r)))
def kr(r): return (r & 3) + 8 * (r >> 2)
PS = 16384 + 128
WOFF = 0x1000; YOFF = 0x210000; KRL = optv('krl', 4); KOFF = 0x580000; KS = (128 << KRL) + 128; COFF = 0x448000; XOFF = 0x488000; POFF = 0x4c8000; PPS = 4096 + 128; PIS = 3584 + 128
DOFF = 0x548000; FIOFF = 0x558000; DLOFF = 0x560000; WSB = 0x690000
RS = 2064
CT = 24 * RS; SB = CT + 18432; AB = SB + 18432; CPS = 8192 + 64; PR = AB + 2 * CPS; WR = PR + 2048; TRASH = WR + 2048; ACT = TRASH + 1024; SYNC = CT - 16
GT = 81920; SP = 65536; HN = GT + 65536; MSG = HN + 2048; RAW = MSG + 64
MAXPOLL = 0x10000
SPID = optv('spid', 66); POFS = (124 - SPID) & 127
class Asm2(Asm):
    def __call__(self, text):
        if text.startswith('v_cndmask_b32 '): text = 'v_cndmask_b32_e64 ' + text[14:]
        Asm.__call__(self, text)
a = Asm2()
class St2(St):
    def __call__(self):
        if '--early' in OPT and 5 < self.n < 15: self.n += 1; return
        if '--cnt' in OPT and 0 < self.n < 4: self.n += 1; return
        if '--tail' in OPT and 0 < self.n < 10: self.n += 1; return
        if '--mid' in OPT and (0 < self.n < 5 or 11 < self.n < 15): self.n += 1; return
        St.__call__(self)
st = St2(a, STAMPS); st.vw = True
def mst(i):
    if '--mid' in OPT and STAMPS: a('s_memrealtime s[%d:%d]' % (70 + 2 * i, 71 + 2 * i))
def tst(i):
    if '--tail' in OPT and STAMPS: a('s_memrealtime s[%d:%d]' % (70 + 2 * i, 71 + 2 * i))
def est(i):
    if '--early' in OPT and STAMPS: a('s_memrealtime s[%d:%d]' % (70 + 2 * i, 71 + 2 * i))
stubs = []
def poll_retry(name, cnt=58):
    a('s_cbranch_vccnz %s_rt' % name)
    a.lines.append('%s_ok:' % name)
    stubs.append((name, cnt))
prog = []
def prog_poll(name, n, issue, check, after=None):
    for u in range(n):
        a.lines.append('%s_c%d:' % (name, u))
        a('s_waitcnt vmcnt(%d)' % (n - 1 - u))
        check(u)
        a('s_cbranch_vccnz %s_r%d' % (name, u))
        a.lines.append('%s_o%d:' % (name, u))
        if after: after(u)
    prog.append((name, n, issue))
mstubs = []
def mask_poll(name, n, issue, check, after, masks):
    for u in range(n):
        a('s_waitcnt vmcnt(%d)' % (n - 1 - u))
        check(u)
        a('s_mov_b64 %s, vcc' % s(masks[u], 2))
        a('s_cbranch_vccnz %s_s%d' % (name, u))
        after(u, 'i')
        a.lines.append('%s_s%d:' % (name, u))
    a('s_or_b64 vcc, %s, %s' % (s(masks[0], 2), s(masks[1], 2)))
    for u in range(2, n): a('s_or_b64 vcc, vcc, %s' % s(masks[u], 2))
    a('s_cbranch_scc1 %s_L' % name)
    a.lines.append('%s_ok:' % name)
    mstubs.append((name, n, issue, check, after, masks))
def emit_mstubs():
    for name, n, issue, check, after, masks in mstubs:
        a.label('%s_L' % name)
        a('s_add_u32 s58, s58, 1'); a('s_cmp_gt_u32 s58, 0x%x' % MAXPOLL); a('s_cbranch_scc1 %s_ok' % name)
        for u in range(n):
            a('s_cmp_eq_u64 %s, 0' % s(masks[u], 2)); a('s_cbranch_scc1 %s_i%d' % (name, u))
            a('s_mov_b64 exec, %s' % s(masks[u], 2)); issue(u)
            a.lines.append('%s_i%d:' % (name, u))
        a('s_waitcnt vmcnt(0)')
        for u in range(n):
            a('s_cmp_eq_u64 %s, 0' % s(masks[u], 2)); a('s_cbranch_scc1 %s_k%d' % (name, u))
            a('s_mov_b64 exec, %s' % s(masks[u], 2)); check(u)
            a('s_mov_b64 exec, -1'); a('s_mov_b64 %s, vcc' % s(masks[u], 2))
            a('s_cbranch_vccnz %s_k%d' % (name, u))
            after(u, 'r')
            a.label('%s_k%d' % (name, u))
        a('s_mov_b64 exec, -1')
        a('s_or_b64 vcc, %s, %s' % (s(masks[0], 2), s(masks[1], 2)))
        for u in range(2, n): a('s_or_b64 vcc, vcc, %s' % s(masks[u], 2))
        a('s_cbranch_scc1 %s_L' % name); a('s_branch %s_ok' % name)
def emit_stubs():
    emit_mstubs()
    for name, n, issue in prog:
        for u in range(n):
            a.lines.append('%s_r%d:' % (name, u))
            a('s_add_u32 s58, s58, 1'); a('s_cmp_gt_u32 s58, 0x%x' % MAXPOLL); a('s_cbranch_scc1 %s_o%d' % (name, u))
            if '--cnt' in OPT and name in ('fz_h1', 'fz_h2', 'fz_h5'): r = {'fz_h1': 72, 'fz_h2': 74, 'fz_h5': 76}[name]; a('s_add_u32 s%d, s%d, %d' % (r, r, n - u))
            for k in range(u, n): issue(k)
            a('s_branch %s_c%d' % (name, u))
    for name, cnt in stubs:
        a.lines.append('%s_rt:' % name)
        a('s_add_u32 %s, %s, 1' % (s(cnt), s(cnt))); a('s_cmp_lt_u32 %s, 0x%x' % (s(cnt), MAXPOLL))
        a('s_cbranch_scc1 %s' % name); a('s_branch %s_ok' % name)
def angles(mulreg, basereg, ks, tmp):
    for i, k in enumerate(ks):
        if k == 0: a('v_mov_b32 %s, %s' % (v(tmp + i), v(basereg)))
        else: a('v_fmamk_f32 %s, %s, %s, %s' % (v(tmp + i), v(mulreg), fh(float(k)), v(basereg)))
def trig(fn, t, n):
    for i in range(n): a('v_%s_f32 %s, %s' % (fn, v(t + i), v(t + i)))
def pack(dst, t, n, kind='f16'):
    for p in range(n // 2): a('v_cvt_pk_%s_f32 %s, %s, %s' % (kind, v(dst + p), v(t + 2 * p), v(t + 2 * p + 1)))
def tags():
    a('v_readfirstlane_b32 s40, v250')
    a('s_add_u32 s40, s40, 1'); a('s_and_b32 s38, s40, 3'); a('s_and_b32 s39, s40, 15')
    for i in range(4):
        a('s_bfe_u32 s41, s40, 0x%x' % ((2 << 16) | (2 * i + 2))); a('s_lshl_b32 s41, s41, 16'); a('s_or_b32 %s, s38, s41' % s(44 + i))
        a('s_bfe_u32 s41, s40, 0x%x' % ((4 << 16) | (4 * i + 4))); a('s_lshl_b32 s41, s41, 4'); a('s_or_b32 %s, s39, s41' % s(48 + i))
def srd(d, nbytes): a('s_mov_b32 %s, 0x%x' % (s(d + 2), nbytes)); a('s_mov_b32 %s, 0x00020000' % s(d + 3))
def blk(dst, tmp):
    if optv('bm', 0):
        e = optv('bm', 0) - 1
        a('s_add_u32 %s, s2, %d' % (s(tmp), 7 - e)); a('s_and_b32 %s, %s, 7' % (s(tmp), s(tmp))); a('s_bfe_u32 %s, s2, 0x10006' % s(tmp + 1))
        a('s_lshl_b32 %s, %s, 1' % (s(dst), s(tmp))); a('s_add_u32 %s, %s, %s' % (s(dst), s(dst), s(tmp + 1))); a('s_min_u32 %s, %s, 14' % (s(dst), s(dst)))
        return
    a('s_add_u32 %s, s2, 4' % s(tmp)); a('s_and_b32 %s, %s, 7' % (s(tmp), s(tmp))); a('s_bfe_u32 %s, s2, 0x10006' % s(tmp + 1))
    a('s_lshl_b32 %s, %s, 1' % (s(dst), s(tmp))); a('s_add_u32 %s, %s, %s' % (s(dst), s(dst), s(tmp + 1)))
    a('s_cmp_lg_u32 %s, 0' % s(tmp + 1)); a('s_cselect_b32 %s, 8, %s' % (s(tmp + 1), s(tmp))); a('s_add_u32 %s, %s, 6' % (s(tmp + 1), s(tmp + 1)))
    a('s_cmp_lt_u32 %s, 6' % s(tmp)); a('s_cselect_b32 %s, %s, %s' % (s(dst), s(dst), s(tmp + 1)))
def cand_off(d, o, t, m):
    a('v_and_b32 %s, 31, %s' % (v(t), v(d))); a('v_lshrrev_b32 %s, 5, %s' % (v(t + 1), v(d)))
    a('v_cmp_gt_u32 vcc, 16, %s' % v(t + 1))
    a('v_cmp_lt_u32 %s, 16, %s' % (s(m, 2), v(t))); a('v_cmp_eq_u32 %s, 0, %s' % (s(m + 2, 2), v(t))); a('s_and_b64 %s, %s, vcc' % (s(m + 2, 2), s(m + 2, 2))); a('s_or_b64 %s, %s, %s' % (s(m, 2), s(m, 2), s(m + 2, 2)))
    a('v_cmp_eq_u32 %s, 16, %s' % (s(m + 2, 2), v(t))); a('s_andn2_b64 %s, %s, vcc' % (s(m + 2, 2), s(m + 2, 2))); a('s_or_b64 %s, %s, %s' % (s(m, 2), s(m, 2), s(m + 2, 2)))
    e, u = v(t + 2), v(t + 3)
    a('v_sub_u32 %s, 1024, %s' % (e, v(d))); a('v_cndmask_b32 %s, %s, %s, %s' % (e, v(d), e, s(m, 2)))
    a('v_mov_b32 %s, 512' % u); a('v_cmp_eq_u32 vcc, 1024, %s' % e); a('v_cndmask_b32 %s, %s, %s, vcc' % (e, e, u))
    a('v_lshrrev_b32 %s, 5, %s' % (u, e)); a('v_and_b32 %s, 15, %s' % (e, e))
    a('v_lshrrev_b32 %s, 2, %s' % (v(o), u)); a('v_lshlrev_b32 %s, 8, %s' % (v(o), v(o))); a('v_and_b32 %s, 3, %s' % (u, u)); a('v_lshl_add_u32 %s, %s, 4, %s' % (v(o), u, v(o)))
    a('v_lshrrev_b32 %s, 3, %s' % (u, e)); a('v_lshl_add_u32 %s, %s, 6, %s' % (v(o), u, v(o))); a('v_and_b32 %s, 7, %s' % (e, e)); a('v_lshl_add_u32 %s, %s, 1, %s' % (v(o), e, v(o)))
    a('v_cndmask_b32 %s, 0, 1, %s' % (e, s(m, 2))); a('v_lshl_add_u32 %s, %s, 7, %s' % (v(o), e, v(o)))
def keys_argmax(K, gidx, name):
    a('v_xor_b32 %s, s40, %s' % (v(K + 8), v(K + 3))); a('v_xor_b32 %s, s40, %s' % (v(K + 9), v(K + 7)))
    a('v_max_u32 %s, %s, %s' % (v(K + 10), v(K), v(K + 4)))
    a('v_or_b32 %s, %s, %s' % (v(K + 8), v(K + 8), v(K + 9)))
    a('v_cmp_ne_u32 vcc, 0, %s' % v(K + 8))
    poll_retry(name)
    for pat in ['quad_perm:[1,0,3,2] ' + DPPF, 'quad_perm:[2,3,0,1] ' + DPPF, 'row_half_mirror ' + DPPF,
                'row_mirror ' + DPPF, 'row_bcast:15 row_mask:0xa bank_mask:0xf', 'row_bcast:31 row_mask:0xc bank_mask:0xf']:
        a('v_max_u32_dpp %s, %s, %s %s' % (v(K + 10), v(K + 10), v(K + 10), pat))
    a('v_readlane_b32 s36, %s, 63' % v(K + 10))

def gen():
    PIN = optv('pin', 1); WLIN = optv('wlin', 0); YLIN = optv('ylin', 0); WT = optv('wt', 1); DTH = optv('dth', 0); SPEC = optv('spec', 0); A1B = optv('a1b', 0); MP = optv('mp', 0); B2L = optv('b2l', 1); A2L = optv('a2l', 1); AC_ = optv('ac', 1); FL = optv('fl', 1); BC = optv('bc', 0); CL = optv('cl', 1); XB_ = optv('xb', 0); GH = optv('gh', 1); EP2 = optv('ep2', 0); EP = optv('ep', 5); TWO = optv('two', 0); L2P = optv('l2p', 0); DEC = optv('dec', 0)
    APP = optv('app', 0); WL = optv('wl', 0)
    BP = optv('bp', 1); THR = optv('thr', 0); THR2 = optv('thr2', 0)
    KP = optv('kp', 0); DB = optv('db', 3)
    PFC = optv('pfc', 1); WSP = optv('wsp', 2204); WE = WSP // 1000; W2 = WE + WSP // 100 % 10; W3 = W2 + WSP // 10 % 10; assert W3 + WSP % 10 == 8; OLATE = '--olate' in OPT; GATE = optv('gate', 0)
    TOUCH = optv('touch', 0); LOCAL = '--nolocal' not in OPT
    NE = optv('ne', 0); LATEX = '--earlyx' not in OPT
    a.raw('.globl fz_kernel'); a.raw('.p2align 8'); a.raw('.type fz_kernel,@function'); a.lines.append('fz_kernel:')
    st()
    if STAMPS:
        for i in range(1, 16): a('s_mov_b32 s%d, %d' % (70 + 2 * i, 0 if ('--cnt' in OPT and i < 4) else -1))
    F1, TC, TS, C2, S2, B3C, B3S, CQ = 16, 24, 32, 40, 48, 56, 64, 72
    XA, XB, XAC, XBC, H, T, TP, ST = 88, 96, 104, 120, 136, 144, 152, 160
    XD, WV, WD = 28, 200, 168
    vSW, vSR, vWST, vHL, vA0, vA1, vAR, vY0, vY1, vYL, vM, vT, vXR, vXM, vE0, vM0, vYE, vZM = 216, 217, 221, 222, 223, 224, 225, 226, 227, 228, 229, 230, 231, 232, 233, 234, 236, 238
    vL16, vSG, vM0m, vPW, vPD, vPR, vKA, vCA, vTK, vMT, vE = 239, 240, 241, 243, 244, 245, 246, 247, 248, 249, 252
    a('s_load_dwordx2 s[4:5], s[0:1], 96'); a('s_load_dwordx2 s[8:9], s[0:1], 0'); a('s_load_dwordx2 s[64:65], s[0:1], 72')
    a('s_cmp_gt_u32 s2, 255'); a('s_cbranch_scc1 fz_end')
    a('v_lshrrev_b32 v2, 6, v0'); a('v_and_b32 v1, 63, v0')
    a('s_lshr_b32 s59, s2, 7')
    a('v_readfirstlane_b32 s3, v2')
    if PFC:
        a('s_and_b32 s20, s2, %d' % (255 if '--pfh0' in OPT else 127)); a('s_cmp_lt_u32 s20, %d' % (8 * PFC)); a('s_cselect_b32 s20, s3, 0'); a('s_cmp_lt_u32 s20, 4'); a('s_cbranch_scc1 fz_pfcback')
        a('s_getpc_b64 s[20:21]')
        a.lines.append('fz_pcb:')
        a('s_sub_u32 s20, s20, fz_pcb-fz_kernel'); a('s_subb_u32 s21, s21, 0')
        a('v_and_b32 v3, 255, v0'); a('v_lshlrev_b32 v3, 7, v3'); a('v_min_u32 v3, fz_codeend-fz_kernel-4, v3')
        a('v_mov_b32 v5, s21'); a('v_add_co_u32 v4, vcc, s20, v3'); a('v_addc_co_u32 v5, vcc, 0, v5, vcc')
        a('global_load_dword v251, v[4:5], off')
        a.lines.append('fz_pfcback:')
    a('s_cmp_lg_u32 s59, 0'); a('s_cbranch_scc1 fz_ldh')
    a('s_load_dwordx2 s[12:13], s[0:1], 80'); a('s_load_dwordx2 s[16:17], s[0:1], 48')
    a.lines.append('fz_ldback:')
    a('s_add_u32 s20, s2, %d' % POFS); a('s_and_b32 s20, s20, 127')
    a('s_lshr_b32 s21, s20, 3'); a('s_add_u32 s21, s21, 1'); a('s_and_b32 s22, s20, 7')
    a('s_sub_u32 s23, s20, 124'); a('s_cmp_ge_u32 s20, 124'); a('s_cselect_b32 s21, 0, s21'); a('s_cselect_b32 s22, s23, s22')
    a('s_lshr_b32 s57, s3, 2'); a('s_or_b32 s23, s57, s59'); a('s_and_b32 s24, s3, 3')
    a('s_lshl_b32 s25, s22, 6'); a('s_add_u32 s25, s25, s21')
    a('s_lshl_b32 s26, s23, 5'); a('s_add_u32 s26, s26, s25')
    a('s_lshl_b32 s27, s24, 9'); a('s_add_u32 s28, s26, s27')
    a('s_sub_u32 s27, 2048, s27'); a('s_sub_u32 s27, s27, s26')
    a('s_lshl_b32 s29, s24, 1'); a('s_add_u32 s29, s29, s23'); a('s_sub_u32 s30, 15, s29')
    a('s_cmp_lt_u32 s24, 2'); a('s_cselect_b32 s27, s28, s27'); a('s_cselect_b32 s31, s29, s30'); a('s_cselect_b32 s30, s30, s29')
    a('s_sub_u32 s28, 2048, s27'); a('s_and_b32 s28, s28, 2047')
    a('s_lshl_b32 s27, s27, 11'); a('s_lshl_b32 s28, s28, 11')
    a('s_mul_i32 s31, s31, %d' % RS); a('s_mul_i32 s30, s30, %d' % RS)
    a('v_lshlrev_b32 %s, 4, v1' % v(vL16))
    srd(8, 2048 * 2048); srd(4, WSB); srd(64, 0x700000)
    a('s_and_b32 s32, s57, s59')
    blk(63, 36); a('s_lshl_b32 s63, s63, 3'); a('s_bfe_u32 s37, s2, 0x30003'); a('s_add_u32 s63, s63, s37')
    a('v_and_b32 v10, 15, v1'); a('v_lshlrev_b32 v10, 4, v10'); a('v_lshrrev_b32 v14, 4, v1'); a('v_lshl_add_u32 v14, v14, 11, v10')
    a('s_lshl_b32 s62, s63, 16'); a('s_and_b32 s37, s3, 3'); a('s_lshl_b32 s37, s37, 9'); a('s_add_u32 s62, s62, s37')
    WQ = [160 + 4 * i for i in range(10)] + [60, 64, 68, 88, 92, 96]
    def wdload(q0=0, q1=8):
        for q in range(q0, q0 if '--xnowd' in OPT else q1):
            for h in range(2): a('buffer_load_dwordx4 %s, v14, s[64:67], s62 offen offset:%d%s' % (v(WQ[2 * q + h], 4), 256 * h, '' if '--wpl' in OPT else ' nt'))
            if q < 7: a('s_add_u32 s62, s62, 8192')
    a('s_mov_b32 s58, 0')
    a('s_waitcnt lgkmcnt(0)')
    st()
    if optv('wsb', 0): a('s_add_u32 s4, s4, 0x%x' % (optv('wsb', 0) << 20)); a('s_addc_u32 s5, s5, 0')
    a('s_cmp_eq_u32 s2, %d' % SPID); a('s_cbranch_scc1 fz_spec')
    a.lines.append('fz_specback:')
    def xload(f=''):
        a('s_mov_b32 m0, s31'); a('s_nop 0')
        a('buffer_load_dwordx4 %s, s[8:11], s27 offen%s lds' % (v(vL16), f)); a('buffer_load_dwordx4 %s, s[8:11], s27 offen offset:1024%s lds' % (v(vL16), f))
        a('s_mov_b32 m0, s30'); a('s_nop 0')
        a('buffer_load_dwordx4 %s, s[8:11], s28 offen%s lds' % (v(vL16), f)); a('buffer_load_dwordx4 %s, s[8:11], s28 offen offset:1024%s lds' % (v(vL16), f))
    def extras():
        a('v_lshlrev_b32 v13, 3, v0'); a('v_mov_b32 v10, -1'); a('v_mov_b32 v11, -1'); a('s_lshl_b32 s32, s20, 11'); a('s_add_u32 s32, s32, 0x%x' % (COFF - 2048))
        srd(16, 2048)
        a('s_lshl_b32 s33, s24, 10'); a('s_min_u32 s34, s33, 2048'); a('s_add_u32 s34, s34, %d' % WR); a('s_mov_b32 m0, s34')
        a('buffer_store_dwordx2 v[10:11], v13, s[4:7], s32 offen sc1')
        a('buffer_load_dwordx4 %s, s[16:19], s33 offen lds' % v(vL16))
    def latex(): xload(' nt' if optv('xnt', 3) & 2 else ''); extras()
    a('s_cmp_lg_u32 %s, 0' % ('s57' if LATEX else 's32')); a('s_cbranch_scc1 fz_nox')
    xload(' nt' if optv('xnt', 3) & 1 else '')
    a.lines.append('fz_nox:')
    a('buffer_load_dword v250, off, s[4:7], 0')
    if WE:
        a('s_andn2_b32 s32, s57, s59'); a('s_cbranch_scc0 fz_nowe')
        wdload(0, WE)
        a.lines.append('fz_nowe:')
    if not LATEX:
        a('s_andn2_b32 s32, s3, 3'); a('s_cmp_gt_u32 s32, s59'); a('s_cselect_b32 s32, 1, 0'); a('s_andn2_b32 s32, s32, s59'); a('s_cbranch_scc0 fz_noclr')
        extras()
        a.lines.append('fz_noclr:')
    est(6)
    if BP: a('s_cmp_eq_u32 s57, 0'); a('s_cbranch_scc1 fz_np'); a('s_setprio 1'); a.lines.append('fz_np:')
    a('v_and_b32 v2, 31, v1'); a('v_lshrrev_b32 v3, 5, v1'); a('v_and_b32 v4, 15, v1'); a('v_lshrrev_b32 v5, 4, v1')
    a('v_add_u32 v6, %d, %s' % (CT, v(vL16)))
    TT = XAC
    JT = 128
    def cq_job():
        a('s_and_b32 s32, s3, 1'); a('s_lshl_b32 s33, s32, 2'); a('s_lshl_b32 s32, s32, 11')
        a('v_and_b32 v8, 3, v4'); a('v_lshrrev_b32 v9, 2, v4'); a('v_lshl_add_u32 v8, v8, 3, v9'); a('v_add_u32 v8, s33, v8')
        a('v_cvt_f32_u32 v8, v8'); a('v_mul_f32 v8, %s, v8' % fh(1 / 32)); a('v_cvt_f32_u32 v9, v5'); a('v_mul_f32 v9, 4.0, v9'); a('v_mul_f32 v9, v8, v9')
        angles(8, 9, [0, 1, 2, 3, 16, 17, 18, 19], TT)
        for i in range(8): a('v_sin_f32 %s, %s' % (v(TT + 8 + i), v(TT + i)))
        trig('cos', TT, 8)
        for i in range(16): a('v_mul_f32 %s, %s, %s' % (v(TT + i), fh(1 / 16), v(TT + i)))
        pack(JT, TT, 16); a('v_add_u32 v8, s32, v6')
        for q in range(2): a('ds_write_b128 v8, %s offset:%d' % (v(JT + 4 * q, 4), 1024 * (14 + q)))
    a('v_lshrrev_b32 v10, 1, v2'); a('v_and_b32 v8, 9, v10'); a('v_and_b32 v11, 2, v10'); a('v_lshl_or_b32 v8, v11, 1, v8')
    a('v_bfe_u32 v11, v10, 2, 1'); a('v_lshl_or_b32 v8, v11, 1, v8')
    a('v_and_b32 v12, 1, v5'); a('v_cmp_eq_u32 vcc, 1, v12'); a('v_lshl_add_u32 v9, v4, 1, 1'); a('v_cndmask_b32 v9, v9, 0, vcc')
    a('s_cmp_lt_u32 s3, 5'); a('s_cselect_b64 s[32:33], -1, 0')
    a('s_cmp_lt_u32 s3, 3'); a('s_cselect_b64 s[34:35], -1, 0')
    a('v_cndmask_b32 v9, v9, v2, s[32:33]'); a('v_cndmask_b32 v8, v9, v8, s[34:35]')
    a('s_mov_b32 s36, %s' % fh(1 / 32)); a('s_cmp_gt_u32 s3, 4'); a('s_cselect_b32 s36, %s, s36' % fh(1 / 64))
    a('s_sub_u32 s37, s3, 1'); a('s_cmp_lt_u32 s37, 2'); a('s_cselect_b32 s36, %s, s36' % fh(1 / 1024))
    a('s_cmp_eq_u32 s3, 0'); a('s_cselect_b32 s32, 16, 0'); a('s_cselect_b32 s33, %s, 0' % fh(0.25)); a('s_cselect_b32 s34, 4.0, %s' % fh(8.0)); a('s_cselect_b32 s35, %s, 4.0' % fh(8.0))
    a('v_cmp_eq_u32 vcc, 1, v2'); a('v_mov_b32 v10, s32'); a('v_cndmask_b32 v10, 0, v10, vcc'); a('v_add_u32 v8, v8, v10')
    a('v_cvt_f32_u32 v8, v8'); a('v_mul_f32 v8, s36, v8')
    a('s_cmp_eq_u32 s3, 2'); a('s_cselect_b32 s32, 0x80000000, 0'); a('v_lshlrev_b32 v10, 31, v2'); a('v_and_b32 v10, s32, v10'); a('v_xor_b32 v8, v10, v8')
    a('v_and_b32 v10, 1, v2'); a('v_cvt_f32_u32 v10, v10'); a('v_mul_f32 v10, s33, v10')
    a('s_cmp_eq_u32 s3, 1'); a('s_cselect_b32 s33, %s, 0' % fh(0.25)); a('v_mov_b32 v11, s33'); a('v_cndmask_b32 v10, v10, v11, vcc')
    a('s_cmp_eq_u32 s3, 5'); a('s_cselect_b32 s33, %s, 0' % fh(0.25)); a('v_cvt_f32_u32 v12, v12'); a('v_fma_f32 v10, v12, s33, v10')
    a('s_cmp_eq_u32 s3, 6'); a('s_cselect_b32 s33, %s, 0' % fh(0.25))
    a('s_cmp_eq_u32 s3, 2'); a('s_cselect_b32 s33, %s, s33' % fh(-0.25)); a('s_cmp_eq_u32 s3, 4'); a('s_cselect_b32 s33, %s, s33' % fh(-0.25))
    a('v_add_f32 v10, s33, v10'); a('v_cvt_f32_u32 v11, v3'); a('v_mul_f32 v11, s35, v11'); a('v_fma_f32 v9, v8, v11, v10')
    a('v_mul_f32 v10, s34, v8'); a('v_mul_f32 v11, %s, v8' % fh(16.0))
    angles(8, 9, [0, 1, 2, 3], TT)
    for i in range(4): a('v_add_f32 %s, %s, v10' % (v(TT + 4 + i), v(TT + i)))
    for i in range(8): a('v_add_f32 %s, %s, v11' % (v(TT + 8 + i), v(TT + i)))
    est(7)
    trig('cos', TT, 16)
    a('s_lshl_b32 s32, s3, 11'); a('v_add_u32 v8, s32, v6')
    a('s_cmp_eq_u32 s3, 0'); a('s_cbranch_scc1 fz_jb')
    pack(JT, TT, 16)
    a.lines.append('fz_jend:')
    for q in range(2): a('ds_write_b128 v8, %s offset:%d' % (v(JT + 4 * q, 4), 1024 * q))
    B1, TC2, TS2 = 16, 20, 24
    vA = [vA0, vA1, 100, 101]
    def sync_add(val):
        a('v_mov_b32 v10, %d' % val); a('s_mov_b64 exec, 1'); a('ds_add_u32 v15, v10'); a('s_mov_b64 exec, -1')
    def SETA(full=True):
        a('s_and_b32 s32, s3, 3'); a('s_lshr_b32 s33, s3, 2'); a('s_lshl_b32 s33, s33, 4'); a('s_add_u32 s33, s33, s32')
        a('v_and_b32 v8, 12, v4'); a('v_bfe_u32 v9, v4, 1, 1'); a('v_lshl_add_u32 v8, v9, 5, v8'); a('v_add_u32 v8, s33, v8')
        a('v_cvt_f32_u32 v8, v8'); a('v_and_b32 v12, 1, v1'); a('v_cvt_f32_u32 v9, v12'); a('v_lshlrev_b32 v13, 2, v5'); a('v_cvt_f32_u32 v10, v13')
        a('v_mul_f32 v11, %s, v8' % fh(1 / 64)); a('v_mul_f32 v9, %s, v9' % fh(0.25)); a('v_fma_f32 v9, v11, v10, v9')
        TT = XAC
        angles(11, 9, [0, 1, 2, 3], TT + 24)
        a('v_mul_f32 v11, %s, v8' % fh(1 / 2048)); a('v_lshlrev_b32 v9, 31, v1'); a('v_xor_b32 v11, v9, v11'); a('v_mul_f32 v9, v11, v10')
        angles(11, 9, [0, 1, 2, 3, 16, 17, 18, 19], TT + 8)
        for i in range(8): a('v_%s_f32 %s, %s' % ('sin' if i & 1 else 'cos', v(TT + i), v(TT + 24 + (i >> 1))))
        for i in range(8): a('v_sin_f32 %s, %s' % (v(TT + 16 + i), v(TT + 8 + i)))
        trig('cos', TT + 8, 8)
        pack(B1, TT, 24)
        if full:
            a('v_lshrrev_b32 v8, 3, v1'); a('v_mul_u32_u24 %s, %d, v8' % (v(vHL), PS)); a('v_and_b32 v9, %d, v1' % (3 if WLIN else 7)); a('v_lshl_add_u32 %s, v9, 4, %s' % (v(vHL), v(vHL)))
            if WLIN: a('v_bfe_u32 v9, v1, 2, 1'); a('v_lshl_add_u32 %s, v9, 13, %s' % (v(vHL), v(vHL)))
            a('s_mul_i32 s60, s3, %d' % (32 * PS)); a('s_lshl_b32 s32, s20, %d' % (6 if WLIN else 7)); a('s_add_u32 s60, s60, s32'); a('s_add_u32 s60, s60, 0x%x' % WOFF); a('s_add_u32 s61, s60, %d' % (8 * PS)); a('s_add_u32 s16, s60, %d' % (16 * PS)); a('s_add_u32 s17, s60, %d' % (24 * PS))
            a('v_lshlrev_b32 v8, 1, v8'); a('v_bfe_u32 v9, v1, 2, 1'); a('v_add_u32 v8, v8, v9'); a('s_lshl_b32 s32, s3, 2'); a('s_add_u32 s32, s32, 1')
            a('v_lshl_add_u32 v8, v8, 5, s32')
            a('v_cmp_eq_u32 vcc, 1, v12')
            a('v_bfe_u32 v9, v1, 1, 1'); a('v_mul_u32_u24 v9, %d, v9' % CPS); a('v_add_u32 v9, %d, v9' % AB)
            a('s_cmp_eq_u32 s3, 3'); a('s_cselect_b32 s32, 272, 0')
            for u, dst in enumerate(vA):
                if u == 3: a('v_mul_u32_u24 v10, s32, v3'); a('v_sub_u32 v8, v8, v10')
                if u: a('v_add_u32 v8, 1, v8')
                a('v_sub_u32 v10, 512, v8'); a('v_cndmask_b32 v10, v8, v10, vcc')
                if u == 3: a('v_lshrrev_b32 v11, 1, v10'); a('v_and_b32 v11, 256, v11'); a('v_sub_u32 v10, v10, v11')
                a('v_and_b32 v11, 16, v10'); a('v_lshl_add_u32 v11, v11, 6, v9'); a('v_lshrrev_b32 v12, 7, v10'); a('v_lshl_add_u32 v11, v12, 8, v11')
                a('v_and_b32 v12, 15, v10'); a('v_lshl_add_u32 v11, v12, 4, v11'); a('v_bfe_u32 v12, v10, 5, 2'); a('v_lshl_add_u32 %s, v12, 2, v11' % v(dst))
        a('s_and_b32 s32, s3, 3'); a('s_lshl_b32 s32, s32, 11'); a('s_add_u32 s32, s32, %d' % AB); a('v_add_u32 %s, s32, %s' % (v(vAR), v(vL16)))
        if not YLIN:
            a('v_add_u32 v8, s33, v13')
            a('v_sub_u32 v9, 32, v8'); a('v_min_u32 v9, v8, v9')
            a('v_and_b32 v10, 15, v8'); a('v_cmp_eq_u32 s[32:33], 0, v10')
            a('v_cmp_lt_u32 s[34:35], 16, v8')
            a('v_lshlrev_b32 v10, 10, v9'); a('v_subrev_u32 v10, 1024, v10'); a('v_mov_b32 v11, %d' % (124 * 128)); a('v_cmp_eq_u32 vcc, 0, v8'); a('v_cndmask_b32 v10, v10, v11, vcc')
            a('v_and_b32 v11, 3, v1'); a('v_lshl_add_u32 v10, v11, 4, v10')
            a('v_lshrrev_b32 v11, 2, v4'); a('v_lshlrev_b32 v12, 7, v11')
            for tau, dst in ((0, vY0), (1, vY1)):
                if tau: a('s_or_b64 s[34:35], s[34:35], s[32:33]'); a('v_add_u32 v12, 512, v12')
                a('v_sub_u32 v13, %d, v12' % (7 * 128 + 64))
                a('v_cndmask_b32 v13, v12, v13, s[34:35]'); a('v_add_u32 %s, v10, v13' % v(dst))
        a('s_mul_i32 s56, s20, %d' % PS); a('s_add_u32 s56, s56, 0x%x' % YOFF)
        if YLIN: a('s_lshl_b32 s32, s3, 11'); a('s_add_u32 s56, s56, s32')
        a('v_mov_b32 %s, 0x30003' % v(vMT))
        for k in range(4): a('v_mov_b32 %s, %s' % (v(vE + k), s(44 + k)))
        a('s_waitcnt lgkmcnt(0)')
    def SETB(sfx):
        a('v_sub_u32 v8, 15, v4'); a('v_min_u32 v8, v4, v8')
        a('v_and_b32 v9, 1, v8'); a('v_lshlrev_b32 v9, 5, v9'); a('v_lshrrev_b32 v10, 1, v8'); a('v_lshl_add_u32 v9, v10, 9, v9'); a('v_add_u32 v9, s25, v9')
        a('v_sub_u32 v10, 2048, v9'); a('v_cmp_lt_u32 s[34:35], 7, v4'); a('v_cndmask_b32 %s, v9, v10, s[34:35]' % v(vT))
        a('v_mov_b32 v9, v4'); a('v_mov_b32 v10, s20')
        a('s_cmp_lg_u32 s21, 0'); a('s_cbranch_scc0 fz_spec3%s' % sfx)
        a.lines.append('fz_spec3back%s:' % sfx)
        if YLIN:
            a('v_mul_u32_u24 v11, %d, v5' % (4 * PS)); a('v_and_b32 v10, 0xc0, %s' % v(vT)); a('v_add_u32 v11, v11, v10')
            for pos, wid, dst in ((0, 2, 11), (4, 1, 13), (8, 1, 10), (2, 2, 8), (9, 2, 4)):
                a('v_bfe_u32 v10, %s, %d, %d' % (v(vT), pos, wid)); a('v_lshl_add_u32 v11, v10, %d, v11' % dst)
            a('v_bfe_u32 v9, %s, 5, 1' % v(vT)); a('v_lshl_add_u32 %s, v9, 3, v11' % v(vYL))
        else:
            a('v_lshlrev_b32 v10, 7, v10'); a('v_lshl_add_u32 v10, v9, 3, v10'); a('v_mul_u32_u24 v11, %d, v5' % (4 * PS)); a('v_add_u32 %s, v10, v11' % v(vYL))
        a('v_and_b32 v9, 1, v9'); a('v_cmp_eq_u32 vcc, 1, v9')
        a('v_mov_b32 v9, s44'); a('v_mov_b32 v10, s46'); a('v_cndmask_b32 %s, v9, v10, vcc' % v(vYE))
        a('v_mov_b32 v9, s45'); a('v_mov_b32 v10, s47'); a('v_cndmask_b32 %s, v9, v10, vcc' % v(vYE + 1))
        a('s_lshl_b32 s32, s3, 2'); a('v_add_u32 v8, s32, v5')
        a('v_lshlrev_b32 v9, 6, v8')
        a('v_cmp_gt_u32 vcc, 16, v8'); a('v_cndmask_b32 v10, 0, 32, vcc'); a('v_add_u32 v10, v9, v10')
        a('v_sub_u32 v11, 2048, v10'); a('v_cmp_eq_u32 vcc, 16, v8'); a('v_cndmask_b32 v11, v11, 0, vcc')
        a('v_mov_b32 v12, 0xffff0000'); a('v_cndmask_b32 %s, -1, v12, vcc' % v(vZM))
        a('v_sub_u32 v12, %d, v9' % (2048 - 30))
        a('v_mul_u32_u24 v13, %d, v4' % RS)
        a('v_add_u32 %s, v13, v9' % v(vXR)); a('v_add_u32 %s, v13, v12' % v(vXM)); a('v_add_u32 %s, v13, v10' % v(vE0)); a('v_add_u32 v241, v13, v11')
        a('s_lshl_b32 s32, s3, 8'); a('s_add_u32 s32, s32, %d' % PR)
        a('v_lshlrev_b32 v9, 4, v4'); a('v_add_u32 v10, s32, v9'); a('v_add_u32 v11, %d, %s' % (TRASH, v(vL16)))
        a('v_cmp_gt_u32 vcc, 16, v1'); a('v_cndmask_b32 %s, v11, v10, vcc' % v(vPW))
        a('v_lshrrev_b32 v12, 2, v4'); a('v_cmp_eq_u32 vcc, v12, v5'); a('v_cndmask_b32 %s, v11, v10, vcc' % v(vPD))
        a('v_lshrrev_b32 v12, 5, v1'); a('v_lshl_add_u32 v10, v12, 10, v9'); a('v_add_u32 %s, %d, v10' % (v(vPR), PR))
        a('v_and_b32 v9, 1, v1'); a('v_cmp_eq_u32 s[28:29], 1, v9'); a('v_and_b32 v9, 2, v1'); a('v_cmp_eq_u32 s[30:31], 2, v9')
        a('s_lshl_b32 s37, s3, 2'); a('v_add_u32 v9, s37, v5'); a('v_mul_u32_u24 %s, %d, v9' % (v(vKA), KS))
        a('s_lshl_b32 s26, s20, %d' % KRL); a('s_add_u32 s26, s26, 0x%x' % KOFF)
        a('v_lshlrev_b32 %s, 4, v5' % v(vCA)); a('s_lshl_b32 s27, s20, 11'); a('s_lshl_b32 s37, s3, 8'); a('s_add_u32 s27, s27, s37'); a('s_add_u32 s27, s27, 0x%x' % COFF)
        a('v_sub_u32 %s, 2047, %s' % (v(vTK), v(vT)))
        srd(12, 2048 * 2048)
        a('s_mul_i32 s52, s3, %d' % (16 * PS)); a('s_add_u32 s52, s52, 0x%x' % YOFF)
        for jx in range(1, 4): a('s_add_u32 %s, s52, %d' % (s(52 + jx), jx * PS))
        a('s_mov_b32 s23, s63')
        if XB_:
            a('s_cmp_lg_u32 s3, 7'); a('s_cbranch_scc1 fz_nb%s' % sfx)
            a('s_lshl_b32 s37, s23, 7'); a('s_add_u32 s37, s37, 0x%x' % DLOFF); a('s_not_b32 s36, s40'); a('v_mov_b32 v10, s36'); a('v_lshlrev_b32 v11, 2, v2')
            a('buffer_store_dword v10, v11, s[4:7], s37 offen')
            a.lines.append('fz_nb%s:' % sfx)
        a('s_getreg_b32 s24, hwreg(HW_REG_XCC_ID)'); a('s_and_b32 s24, s24, 15')
        a('v_lshlrev_b32 v10, 4, v0'); a('v_min_u32 v10, 4336, v10'); a('v_add_u32 v10, %d, v10' % ACT)
        for k in range(4): a('v_mov_b32 %s, 0' % v(XAC + k))
        a('ds_write_b128 v10, %s' % v(XAC, 4))
    def SET2(px=True, pw=True):
        XP = 116
        if px: SET2x(XP)
        if pw: SET2w(XP)
    def SET2x(XP):
        a('ds_read_b128 %s, %s' % (v(XP, 4), v(vXR))); a('ds_read_b128 %s, %s offset:16' % (v(XP + 4, 4), v(vXR)))
        a('ds_read_u16_d16_hi %s, %s' % (v(XD + 16), v(vM0m)))
        for e in range(1, 16): a('ds_read_u16_d16_hi %s, %s offset:%d' % (v(XD + 16 + e), v(vXM), 2 * (15 - e)))
        a('ds_read_u16_d16_hi %s, %s' % (v(XD), v(vE0)))
        a('s_mov_b32 s36, 0xffff0000')
        a('s_waitcnt lgkmcnt(15)')
        for k in range(8):
            if k: a('v_lshlrev_b32 %s, 16, %s' % (v(XD + 2 * k), v(XP + k)))
            a('v_and_b32 %s, s36, %s' % (v(XD + 2 * k + 1), v(XP + k)))
    def SET2w(XP):
        a('v_mul_u32_u24 v13, %d, v4' % RS); a('v_subrev_u32 v13, %d, v13' % WR)
        for r, src in ((9, vXR), (10, vE0), (11, vM0m), (12, vXM)): a('v_sub_u32 %s, %s, v13' % (v(r), v(src)))
        a('s_mov_b32 s36, 0xffff0000')
        a('ds_read_b128 %s, v9' % v(WV, 4)); a('ds_read_b128 %s, v9 offset:16' % v(WV + 4, 4))
        a('ds_read_u16_d16 %s, v11' % v(WV + 8))
        for e in range(1, 16): a('ds_read_u16_d16%s %s, v12 offset:%d' % ('_hi' if e & 1 else '', v((XP + 8 if e & 1 else WV + 8) + (e >> 1)), 2 * (15 - e)))
        a('ds_read_u16_d16 v13, v10')
        a('v_cmp_eq_u32 vcc, 1, v4'); a('v_mov_b32 v9, s42'); a('v_cndmask_b32 v9, 0, v9, vcc')
        for k in range(4): a('v_mov_b32 %s, s42' % v(XP + k))
        a('v_cmp_eq_u32 vcc, 0, v4')
        a('s_waitcnt lgkmcnt(0)')
        a('v_and_or_b32 %s, %s, s36, v13' % (v(WV), v(WV)))
        for k in range(8): a('v_or_b32 %s, %s, %s' % (v(WV + 8 + k), v(WV + 8 + k), v(XP + 8 + k)))
        for k in range(16): a('v_cndmask_b32 %s, v9, %s, vcc' % (v(WV + k), v(WV + k)))
        for q in range(4): a('v_mfma_f32_16x16x32_bf16 %s, %s, %s, %s' % (v(XP + 4, 4), v(WV + 4 * q, 4), v(XP, 4), v(XP + 4, 4) if q else '0'))
        a('ds_write_b32 %s, %s offset:12' % (v(vPW), v(XP + 4)))
    a('v_mov_b32 v15, %d' % SYNC); a('v_mov_b32 v10, 0'); a('v_mov_b32 v11, 0'); a('ds_write_b64 v15, v[10:11]'); a('ds_write_b32 v15, v10 offset:8')
    est(8)
    a('s_waitcnt lgkmcnt(0)')
    a('s_barrier')
    est(10)
    a('v_lshlrev_b32 %s, 31, v1' % v(vSG)); a('v_lshrrev_b32 v10, 16, %s' % v(vSG)); a('v_or_b32 %s, %s, v10' % (v(vSG), v(vSG)))
    a('v_mov_b32 %s, 0xfffcfffc' % v(vM))
    a('v_mov_b32 v242, 0xffff0000'); a('s_mov_b32 s42, 0x3f803f80')
    a('s_cmp_lg_u32 s57, 0'); a('s_cbranch_scc1 fz_nc1')
    for q in range(14): a('ds_read_b128 %s, v6 offset:%d' % (v(F1 + 4 * q, 4), 1024 * q))
    a('v_lshlrev_b32 v7, 9, v3'); a('v_bfe_u32 v10, v1, 2, 2'); a('v_lshl_add_u32 v7, v10, 6, v7')
    a('v_and_b32 v10, 1, v5'); a('v_lshl_add_u32 v7, v10, 5, v7'); a('v_and_b32 v10, 3, v1'); a('v_lshl_add_u32 v7, v10, 3, v7'); a('v_add_u32 v7, s31, v7')
    a('v_lshlrev_b32 v8, 9, v3'); a('v_lshl_add_u32 v8, v2, 1, v8'); a('v_sub_u32 v9, 2048, v8'); a('v_and_b32 v9, 2047, v9'); a('v_add_u32 v9, s30, v9')
    a('s_add_u32 s32, s30, %d' % (2048 - 64 * 23)); a('v_sub_u32 v8, s32, v8')
    a('v_cmp_eq_u32 vcc, 0, v2'); a('v_cndmask_b32 %s, 0, -2.0, vcc' % v(vM0))
    a('v_mov_b32 %s, %s' % (v(vM0 + 1), fh(256e-5)))
    a('s_lshr_b32 s32, s24, 1'); a('s_lshl_b32 s32, s32, 6'); a('s_mul_i32 s33, s3, 2304'); a('s_add_u32 s32, s32, s33'); a('s_add_u32 s32, s32, %d' % SB)
    a('v_lshl_add_u32 v10, v3, 1, v1'); a('v_lshlrev_b32 v10, 4, v10'); a('v_add_u32 %s, s32, v10' % v(vSW))
    a('v_bfe_u32 v10, v0, 2, 1'); a('v_mul_u32_u24 v10, 34, v10'); a('v_lshrrev_b32 v11, 4, v0'); a('v_add_u32 v10, v10, v11'); a('v_lshlrev_b32 v10, 4, v10')
    a('v_bfe_u32 v11, v0, 3, 1'); a('v_lshl_add_u32 v10, v11, 3, v10'); a('v_bfe_u32 v11, v0, 1, 1'); a('v_lshl_add_u32 v10, v11, 2, v10')
    a('v_and_b32 v12, 1, v0')
    a('s_mov_b32 s33, %d' % (4 * 2304)); a('s_cmp_eq_u32 s2, %d' % SPID)
    for k in range(4):
        pm = 1152 if k >= 2 else 0
        o0 = k * 2304 + pm + (64 if k >= 2 else 0); o1 = (3 - k) * 2304 + pm + (64 if (3 - k) >= 2 else 0)
        a('s_cselect_b32 s32, s33, 0x%x' % ((o1 - o0) & 0xffffffff))
        a('v_mul_lo_u32 v11, v12, s32'); a('v_add_u32 %s, v10, v11' % v(vSR + k)); a('v_add_u32 %s, %d, %s' % (v(vSR + k), SB + o0, v(vSR + k)))
    if WLIN: a('v_lshlrev_b32 %s, 4, v0' % v(vWST))
    else: a('v_lshrrev_b32 v10, 2, v0'); a('v_and_b32 v11, 3, v0'); a('v_lshlrev_b32 v11, 4, v11'); a('v_lshl_add_u32 %s, v10, 7, v11' % v(vWST))
    a('s_mul_i32 s52, s20, %d' % PS); a('s_lshl_b32 s33, s59, %d' % (13 if WLIN else 6)); a('s_add_u32 s52, s52, s33'); a('s_add_u32 s52, s52, 0x%x' % WOFF)
    a('s_add_u32 s53, s52, %d' % (4096 if WLIN else 8192))
    def tags2():
        tags()
        a('s_mov_b32 s38, 0x404'); a('s_cmp_eq_u32 s2, %d' % SPID); a('s_cselect_b32 s39, 8, 4'); a('s_cselect_b32 s38, 8, s38')
    est(9)
    for i in range(4): a('v_mov_b32 %s, 0' % v(ST + i))
    a('s_setprio 3')
    st()
    if '--early' in OPT: a('s_waitcnt lgkmcnt(0)'); est(11)
    a('s_waitcnt vmcnt(0) lgkmcnt(0)')
    st()
    for jx in range(2):
        for hh in range(2): a('ds_read_b64_tr_b16 %s, v7 offset:%d' % (v(XA + 4 * jx + 2 * hh, 2), 1024 * jx + 256 * hh))
    for jx in range(2):
        for i in range(8):
            op = 'ds_read_u16_d16_hi' if i & 1 else 'ds_read_u16_d16'
            dst = (H if i & 1 else XB) + 4 * jx + (i >> 1)
            if jx == 0 and i == 0: a('%s %s, v9' % (op, v(dst)))
            else: a('%s %s, v8 offset:%d' % (op, v(dst), 64 * (23 - 16 * jx - i)))
        if jx == 0: a('s_waitcnt lgkmcnt(8)')
        if jx == 0:
            for j2 in range(2): a('v_mfma_f32_32x32x16_bf16 %s, %s, %s, %s' % (v(XAC, 16), v(XA + 4 * j2, 4), v(F1 + 4 * j2, 4), v(XAC, 16) if j2 else '0'))
    for i in range(8):
        a('v_dot2_f32_bf16 %s, %s, s42, %s' % (v(ST), v(XA + i), v(ST))); a('v_dot2_f32_bf16 %s, %s, %s, %s' % (v(ST + 1), v(XA + i), v(XA + i), v(ST + 1)))
    a('s_waitcnt lgkmcnt(0)')
    for i in range(8): a('v_or_b32 %s, %s, %s' % (v(XB + i), v(XB + i), v(H + i)))
    for j2 in range(2): a('v_mfma_f32_32x32x16_bf16 %s, %s, %s, %s' % (v(XBC, 16), v(XB + 4 * j2, 4), v(F1 + 4 * j2, 4), v(XBC, 16) if j2 else '0'))
    for i in range(8):
        a('v_dot2_f32_bf16 %s, %s, s42, %s' % (v(ST + 2), v(XB + i), v(ST + 2))); a('v_dot2_f32_bf16 %s, %s, %s, %s' % (v(ST + 3), v(XB + i), v(XB + i), v(ST + 3)))
    est(12)
    a('v_permlane32_swap_b32 %s, %s' % (v(ST), v(ST + 2))); a('v_permlane32_swap_b32 %s, %s' % (v(ST + 1), v(ST + 3)))
    a('v_add_f32 %s, %s, %s' % (v(ST), v(ST), v(ST + 2))); a('v_add_f32 %s, %s, %s' % (v(ST + 1), v(ST + 1), v(ST + 3)))
    a('v_permlane16_swap_b32 %s, %s' % (v(ST), v(ST + 1)))
    a('v_add_f32 %s, %s, %s' % (v(ST), v(ST), v(ST + 1)))
    for pat in ['quad_perm:[1,0,3,2]', 'quad_perm:[2,3,0,1]', 'row_half_mirror', 'row_mirror']:
        a('v_add_f32_dpp %s, %s, %s %s %s' % (v(ST), v(ST), v(ST), pat, DPPF))
    a('s_mov_b32 s43, %s' % fh(256 / 1024))
    a('v_mov_b32 %s, %s' % (v(ST + 1), v(ST)))
    a('v_permlane16_swap_b32 %s, %s' % (v(ST), v(ST + 1)))
    a('v_mul_f32 %s, %s, %s' % (v(ST), fh(16 / 1024), v(ST)))
    a('v_fma_f32 %s, %s, s43, %s' % (v(ST + 1), v(ST + 1), v(vM0 + 1)))
    a('v_fma_f32 %s, -%s, %s, %s' % (v(ST + 1), v(ST), v(ST), v(ST + 1)))
    a('v_rsq_f32 %s, %s' % (v(ST + 1), v(ST + 1)))
    a('v_mul_f32 %s, %s, %s' % (v(ST), v(ST), v(ST + 1)))
    a('v_readlane_b32 s32, %s, 0' % v(ST + 1)); a('v_readlane_b32 s34, %s, 32' % v(ST + 1)); a('v_readlane_b32 s36, %s, 0' % v(ST)); a('v_readlane_b32 s37, %s, 32' % v(ST))
    a('v_mul_f32 %s, s36, %s' % (v(ST + 4), v(vM0))); a('v_fmac_f32 %s, s37, %s' % (v(ST + 4), v(vM0)))
    for i in range(8): a('v_pk_fma_f32 %s, %s, s[32:33], %s op_sel_hi:[1,0,0]' % (v(XAC + 2 * i, 2), v(XAC + 2 * i, 2), v(ST + 4, 2)))
    for i in range(8): a('v_pk_fma_f32 %s, %s, s[34:35], %s op_sel_hi:[1,0,1]' % (v(XAC + 2 * i, 2), v(XBC + 2 * i, 2), v(XAC + 2 * i, 2)))
    est(13)
    pack(H, XAC, 16)
    for i in range(8): a('v_mov_b32_dpp %s, %s %s' % (v(TP + i), v(H + i), X1))
    D3C, D3S = XBC, XBC + 4
    for i in range(8): a('v_pk_mul_f16 %s, %s, %s' % (v(T + i), v(H + i), v(TC + i)))
    for j2 in range(2):
        a('v_mfma_f32_16x16x32_f16 %s, %s, %s, %s' % (v(D3C, 4), v(H + 4 * j2, 4), v(B3C + 4 * j2, 4), v(D3C, 4) if j2 else '0'))
        for i in range(4): a('v_pk_fma_f16 %s, %s, %s, %s' % (v(T + 4 * j2 + i), v(TP + 4 * j2 + i), v(TS + 4 * j2 + i), v(T + 4 * j2 + i)))
    a('v_mfma_f32_32x32x16_f16 %s, %s, %s, 0' % (v(XAC, 16), v(T, 4), v(C2, 4)))
    for i in range(4): a('v_xor_b32_dpp %s, %s, %s %s' % (v(TP + i), v(T + i), v(vSG), X1))
    a('v_mfma_f32_32x32x16_f16 %s, %s, %s, %s' % (v(XAC, 16), v(T + 4, 4), v(C2 + 4, 4), v(XAC, 16)))
    for i in range(4, 8): a('v_xor_b32_dpp %s, %s, %s %s' % (v(TP + i), v(T + i), v(vSG), X1))
    for j2 in range(2): a('v_mfma_f32_32x32x16_f16 %s, %s, %s, %s' % (v(XAC, 16), v(TP + 4 * j2, 4), v(S2 + 4 * j2, 4), v(XAC, 16)))
    for j2 in range(2): a('v_mfma_f32_16x16x32_f16 %s, %s, %s, %s' % (v(D3S, 4), v(H + 4 * j2, 4), v(B3S + 4 * j2, 4), v(D3S, 4) if j2 else '0'))
    est(14)
    tags2()
    a('s_mov_b64 vcc, 0xffff')
    for p in (7, 6, 5, 4, 3, 2, 1): a('v_cvt_pk_f16_f32 %s, %s, %s' % (v(H + p), v(XAC + 2 * p), v(XAC + 2 * p + 1)))
    a('v_cndmask_b32 %s, %s, %s, vcc' % (v(XAC), v(XAC), v(D3C + 1))); a('v_cndmask_b32 %s, %s, %s, vcc' % (v(XAC + 1), v(XAC + 1), v(D3S + 1)))
    for p in (3, 2, 1, 0):
        if p == 0: a('v_cvt_pk_f16_f32 %s, %s, %s' % (v(H), v(XAC), v(XAC + 1)))
        a('v_pk_add_f16 %s, %s, %s op_sel:[0,1] op_sel_hi:[1,0] neg_lo:[0,1]' % (v(T + p), v(H + 2 * p), v(H + 2 * p + 1)))
        a('v_pk_add_f16 %s, %s, %s op_sel:[0,1] op_sel_hi:[1,0] neg_hi:[1,0]' % (v(T + 4 + p), v(H + 2 * p), v(H + 2 * p + 1)))
    a('ds_write_b128 %s, %s' % (v(vSW), v(T, 4))); a('ds_write_b128 %s, %s offset:1152' % (v(vSW), v(T + 4, 4)))
    a('s_waitcnt lgkmcnt(0)')
    sync_add(1)
    a('s_cmp_gt_u32 s3, 3'); a('s_cbranch_scc1 fz_bsp0')
    a.lines.append('fz_sy:')
    a('ds_read_b32 v10, v15')
    a('s_waitcnt lgkmcnt(0)')
    a('v_and_b32 v10, 0xff, v10'); a('v_cmp_ne_u32 vcc, s39, v10')
    a('s_cbranch_vccnz fz_sy')
    st.n = 4; st()
    Z = XAC
    for rd in range(2):
        for k in range(4): a('ds_read_b32 %s, %s offset:%d' % (v(Z + 4 * rd + k), v(vSR + k), 256 * rd))
    for rd in range(2):
        z = Z + 4 * rd; u = Z + 8 + 8 * rd; o = u + 4
        a('s_waitcnt lgkmcnt(%d)' % (4 - 4 * rd))
        a('v_pk_add_f16 %s, %s, %s' % (v(u), v(z), v(z + 2))); a('v_pk_add_f16 %s, %s, %s' % (v(u + 2), v(z + 1), v(z + 3)))
        a('v_pk_add_f16 %s, %s, %s neg_lo:[0,1] neg_hi:[0,1]' % (v(u + 1), v(z), v(z + 2))); a('v_pk_add_f16 %s, %s, %s neg_lo:[0,1] neg_hi:[0,1]' % (v(u + 3), v(z + 1), v(z + 3)))
        a('v_pk_add_f16 %s, %s, %s' % (v(o), v(u), v(u + 2))); a('v_pk_add_f16 %s, %s, %s neg_lo:[0,1] neg_hi:[0,1]' % (v(o + 2), v(u), v(u + 2)))
        a('v_pk_add_f16 %s, %s, %s op_sel:[0,1] op_sel_hi:[1,0] neg_hi:[0,1]' % (v(o + 1), v(u + 1), v(u + 3)))
        a('v_pk_add_f16 %s, %s, %s op_sel:[0,1] op_sel_hi:[1,0] neg_lo:[0,1]' % (v(o + 3), v(u + 1), v(u + 3)))
        for k in range(4): a('v_add_u32 %s, 0x20002, %s' % (v(o + k), v(o + k)))
        for k in range(4): a('v_and_or_b32 %s, %s, %s, %s' % (v(o + k), v(o + k), v(vM), s(44 + k)))
        a('buffer_store_dwordx4 %s, %s, s[4:7], %s offen sc1' % (v(o, 4), v(vWST), s(52 + rd)))
    a('s_cmp_lg_u32 s59, 0'); a('s_cbranch_scc1 ffn')
    st()
    SETA()
    if A1B == 2: SETB('a')
    a('s_waitcnt vmcnt(0)')
    if A1B == 1: SETB('a')
    st()
    R = XAC
    def h1i(u): a('buffer_load_dwordx4 %s, %s, s[4:7], %s offen sc1' % (v(R + 4 * u, 4), v(vHL), s((60, 61, 16, 17)[u])))
    def h1c(u):
        for k in range(4): a('v_xor_b32 %s, %s, %s' % (v(R + 4 * u + k), v(vE + k), v(R + 4 * u + k)))
        a('v_or3_b32 v10, %s, %s, %s' % (v(R + 4 * u), v(R + 4 * u + 1), v(R + 4 * u + 2)))
        a('v_bitop3_b32 v10, v10, %s, %s bitop3:0xa8' % (v(R + 4 * u + 3), v(vMT)))
        a('v_cmp_ne_u32 vcc, 0, v10')
    def h1a(u):
        for k in range(4): a('ds_write_b32 %s, %s offset:%d' % (v(vA[u]), v(R + 4 * u + k), 2048 * k))
    if EP:
        if not optv('epall', 0): a('s_bitcmp1_b32 s2, 2'); a('s_cbranch_scc1 fz_p1_ok')
        a('s_add_u32 s32, s60, %d' % ((((EP - 1) + POFS) & 7) * PS + 64 * (EP > 8))); a('v_mov_b32 v9, 0')
        a.lines.append('fz_p1:')
        a('buffer_load_dword v10, v9, s[4:7], s32 offen sc1')
        a('s_waitcnt vmcnt(0)')
        a('v_xor_b32 v10, %s, v10' % v(vE)); a('v_and_b32 v10, %s, v10' % v(vMT)); a('v_cmp_ne_u32 vcc, 0, v10')
        poll_retry('fz_p1')
        a('s_mov_b32 s58, 0')
    mst(1)
    for u in range(4): h1i(u)
    if MP & 1: mask_poll('fz_h1', 4, h1i, h1c, lambda u, x: h1a(u), [26, 28, 30, 34])
    else: prog_poll('fz_h1', 4, h1i, h1c, h1a)
    mst(2)
    a('s_waitcnt lgkmcnt(0)')
    a('s_setprio 0')
    a.lines.append('fz_hb:')
    a('s_barrier')
    st.n = 7; st()
    A2, V2, H2, T2, TP2, D2 = 104, 120, 136, 144, 152, 104
    for cp in range(2):
        for hf in range(2): a('ds_read_b128 %s, %s offset:%d' % (v(A2 + 8 * cp + 4 * hf, 4), v(vAR), CPS * cp + 1024 * hf))
    for q in range(4): a('ds_read_b128 %s, v6 offset:%d' % (v(CQ + 4 * q, 4), 1024 * (14 + q)))
    for q in range(4):
        a('s_waitcnt lgkmcnt(%d)' % (7 - q))
        a('v_mfma_f32_16x16x32_f16 %s, %s, %s, 0' % (v(V2 + 4 * q, 4), v(A2 + 4 * q, 4), v(B1, 4)))
    a('s_waitcnt lgkmcnt(0)')
    for cp in range(2):
        pack(H2 + 4 * cp, V2 + 8 * cp, 8)
    for cp in range(2):
        h, t, tp = H2 + 4 * cp, T2 + 4 * cp, TP2 + 4 * cp
        for i in range(4): a('v_pk_mul_f16 %s, %s, %s' % (v(t + i), v(h + i), v(TC2 + i)))
        for i in range(4): a('v_mov_b32_dpp %s, %s %s' % (v(tp + i), v(h + i), X1))
        for i in range(4): a('v_pk_fma_f16 %s, %s, %s, %s' % (v(t + i), v(tp + i), v(TS2 + i), v(t + i)))
        for tau in range(2): a('v_mfma_f32_16x16x32_f16 %s, %s, %s, 0' % (v(D2 + 8 * cp + 4 * tau, 4), v(t, 4), v(CQ + 8 * tau, 4)))
        for i in range(4): a('v_xor_b32_dpp %s, %s, %s %s' % (v(tp + i), v(t + i), v(vSG), X1))
        for tau in range(2): a('v_mfma_f32_16x16x32_f16 %s, %s, %s, %s' % (v(D2 + 8 * cp + 4 * tau, 4), v(tp, 4), v(CQ + 8 * tau + 4, 4), v(D2 + 8 * cp + 4 * tau, 4)))
    O2 = V2
    for tau in range(2):
        for cp in range(2):
            for b in range(2): a('v_cvt_pk_f16_f32 %s, %s, %s' % (v(O2 + 4 * tau + 2 * b + cp), v(D2 + 8 * cp + 4 * tau + 2 * b), v(D2 + 8 * cp + 4 * tau + 2 * b + 1)))
        for k in range(4): a('v_add_u32 %s, 0x20002, %s' % (v(O2 + 4 * tau + k), v(O2 + 4 * tau + k)))
        for k in range(4): a('v_and_or_b32 %s, %s, %s, %s' % (v(O2 + 4 * tau + k), v(O2 + 4 * tau + k), v(vM), s(44 + k)))
        if YLIN: a('buffer_store_dwordx4 %s, %s, s[4:7], s56 offen offset:%d sc1' % (v(O2 + 4 * tau, 4), v(vL16), 1024 * tau))
        else: a('buffer_store_dwordx4 %s, %s, s[4:7], s56 offen sc1' % (v(O2 + 4 * tau, 4), v(vY0 + tau)))
    st()
    a('s_cmp_lg_u32 s57, 0'); a('s_cbranch_scc1 fz_nc3')
    if B2L: a('s_setprio 1')
    if not A1B: SETB('a')
    if A2L: SET2()
    a('s_mov_b32 s58, 0')
    a('s_waitcnt vmcnt(0)')
    st()
    YD, YM, HP, Q1, Q2 = 104, 112, 120, 136, 140
    def h2i(jx): a('buffer_load_dwordx2 %s, %s, s[4:7], %s offen sc1' % (v(YD + 2 * jx, 2), v(vYL), s(52 + jx)))
    def h2load():
        for jx in range(4): h2i(jx)
    if not A2L:
        h2load()
        SET2()
        a.flush(); a('s_branch fz_h2c')
    a.lines.append('fz_h2:')
    h2load()
    a.lines.append('fz_h2c:')
    if B2L: a('s_setprio 0')
    mst(3)
    a('s_mov_b32 s36, %s' % fh(128.0))
    def h2c(jx):
        for k in range(2): a('v_xor_b32 %s, %s, %s' % (v(YD + 2 * jx + k), v(vYE + k), v(YD + 2 * jx + k)))
        a('v_bitop3_b32 v9, %s, %s, %s bitop3:0xa8' % (v(YD + 2 * jx), v(YD + 2 * jx + 1), v(vMT)))
        a('v_cmp_ne_u32 vcc, 0, v9')
    def mix(e, src): a('v_fma_mix_f32 %s, %s, s36, %s op_sel:[%d,0,0] op_sel_hi:[1,0,0]' % (v(XD + e), v(src), v(XD + e), e & 1))
    def smf(q):
        a('v_mfma_f32_16x16x32_bf16 %s, %s, %s, %s' % (v(Q1, 4), v(HP + 4 * q, 4), v(HP + 4 * q, 4), v(Q1, 4) if q else '0'))
        a('v_mfma_f32_16x16x32_bf16 %s, %s, %s, %s' % (v(Q2, 4), v(WV + 4 * q, 4), v(HP + 4 * q, 4), v(Q2, 4) if q else '0'))
    def h2a(jx, x=''):
        if jx == 3 and not MP & 2: st()
        for k in range(2 * jx, 2 * jx + 2): a('v_mov_b32_dpp %s, %s row_mirror %s' % (v(YM + k), v(YD + k), DPPF))
        a('s_cmp_eq_u32 s2, %d' % SPID); a('s_cbranch_scc1 fz_spec4%d%s' % (jx, x))
        a.lines.append('fz_spec4back%d%s:' % (jx, x))
        for e in range(4 * jx, 4 * jx + 4): mix(e, YD + (e >> 1))
        if jx == 0: a('v_and_b32 %s, %s, %s' % (v(YM), v(vZM), v(YM)))
        for e in range(4 * jx, 4 * jx + 4): mix(16 + e, YM + (e >> 1))
        pack(HP + 2 * jx, XD + 4 * jx, 4, 'bf16'); pack(HP + 8 + 2 * jx, XD + 16 + 4 * jx, 4, 'bf16')
        if jx & 1 and not MP & 2: smf(jx >> 1); smf(2 + (jx >> 1))
    if MP & 2:
        mask_poll('fz_h2', 4, h2i, h2c, h2a, [8, 10, 16, 18])
        st()
        for q in range(4): smf(q)
    else: prog_poll('fz_h2', 4, h2i, h2c, h2a)
    a('v_cndmask_b32 v9, %s, %s, s[28:29]' % (v(Q1), v(Q1 + 1))); a('v_cndmask_b32 v10, %s, %s, s[28:29]' % (v(Q1 + 2), v(Q1 + 3)))
    a('ds_write_b64 %s, %s' % (v(vPW), v(Q2, 2)))
    a('v_cndmask_b32 v9, v9, v10, s[30:31]')
    a('ds_write_b32 %s, v9 offset:8' % v(vPD))
    a('s_cmp_gt_u32 s3, 3'); a('s_cbranch_scc1 fz_lp'); a('s_setprio 2')
    a.lines.append('fz_lp:')
    mst(4)
    a('s_waitcnt lgkmcnt(0)'); a('s_barrier')
    mst(12)
    P = 144
    for q in range(4): a('ds_read_b128 %s, %s offset:%d' % (v(P + 4 * q, 4), v(vPR), 256 * q))
    a('s_waitcnt lgkmcnt(2)')
    for h in range(2): a('v_pk_add_f32 %s, %s, %s' % (v(P + 2 * h, 2), v(P + 2 * h, 2), v(P + 4 + 2 * h, 2)))
    a('s_waitcnt lgkmcnt(0)')
    for h in range(2): a('v_pk_add_f32 %s, %s, %s' % (v(P + 8 + 2 * h, 2), v(P + 8 + 2 * h, 2), v(P + 12 + 2 * h, 2)))
    for h in range(2): a('v_pk_add_f32 %s, %s, %s' % (v(P + 2 * h, 2), v(P + 2 * h, 2), v(P + 8 + 2 * h, 2)))
    for k in range(4): a('v_mov_b32 %s, %s' % (v(P + 4 + k), v(P + k)))
    for k in range(4): a('v_permlane32_swap_b32 %s, %s' % (v(P + k), v(P + 4 + k)))
    for h in range(2): a('v_pk_add_f32 %s, %s, %s' % (v(P + 2 * h, 2), v(P + 2 * h, 2), v(P + 4 + 2 * h, 2)))
    mst(13)
    KR = 152
    a('v_mul_f32 %s, %s, %s' % (v(P + 1), fh(-1 / 1024), v(P + 1)))
    a('v_mul_f32 %s, %s, %s' % (v(P + 2), fh(1 / 1024), v(P + 2)))
    a('v_fma_f32 %s, -%s, %s, %s' % (v(P + 2), v(P + 1), v(P + 1), v(P + 2)))
    a('v_cvt_pk_bf16_f32 %s, 0, %s' % (v(KR + 1), v(P + 1)))
    rbf(a, P + 2); a('v_add_f32 %s, %s, %s' % (v(P + 2), fh(1e-5), v(P + 2))); rbf(a, P + 2)
    a('v_sqrt_f32 %s, %s' % (v(P + 2), v(P + 2)))
    a('v_fmac_f32 %s, %s, %s' % (v(P), v(KR + 1), v(P + 3)))
    rbf(a, P + 2); a('v_rcp_f32 %s, %s' % (v(KR + 2), v(P + 2)))
    a('v_mov_b32 %s, s40' % v(KR + 3))
    a('v_mul_f32 %s, %s, %s' % (v(P), v(P), v(KR + 2))); rbf(a, P)
    a('v_ashrrev_i32 %s, 31, %s' % (v(P + 1), v(P))); a('v_or_b32 %s, 0x80000000, %s' % (v(P + 1), v(P + 1)))
    a('v_bitop3_b32 %s, %s, %s, %s bitop3:0x28' % (v(KR), v(P), v(P + 1), v(242)))
    a('v_or_b32 %s, %s, %s' % (v(KR), v(KR), v(vTK)))
    a('v_max_u32_dpp %s, %s, %s row_ror:1 %s' % (v(P), v(KR), v(KR), DPPF))
    for k in (2, 4, 8): a('v_max_u32_dpp %s, %s, %s row_ror:%d %s' % (v(P), v(P), v(P), k, DPPF))
    a('v_cmp_eq_u32 vcc, %s, %s' % (v(P), v(KR)))
    a('v_or_b32 %s, s24, %s' % (v(KR + 1), v(KR + 1)))
    a('s_mov_b64 exec, vcc')
    if DB & 8: a('s_bitcmp1_b32 s3, 1'); a('s_cbranch_scc1 fz_nk1')
    a('buffer_store_dwordx4 %s, %s, s[4:7], s26 offen sc1' % (v(KR, 4), v(vKA)))
    if DB & 8: a.lines.append('fz_nk1:')
    if DB & 2:
        if DB & 4: a('s_cmp_gt_u32 s3, 3'); a('s_cbranch_scc1 fz_nk2')
        a('s_add_u32 s26, s26, %d' % (32 * KS)); a('buffer_store_dwordx4 %s, %s, s[4:7], s26 offen sc1' % (v(KR, 4), v(vKA)))
        if DB & 4: a.lines.append('fz_nk2:')
    for q in range(4): a('buffer_store_dwordx4 %s, %s, s[4:7], s27 offen offset:%d sc1' % (v(HP + 4 * q, 4), v(vCA), 64 * q))
    a('s_mov_b64 exec, -1')
    st()
    a('s_setprio 0')
    a('s_ff1_i32_b64 s37, vcc')
    a('v_add_f32 %s, 1.0, %s' % (v(P), v(KR + 2))); a('v_and_b32 %s, v242, %s' % (v(P + 2), v(KR + 1))); a('v_mul_f32 %s, %s, %s' % (v(P + 2), v(P + 2), v(KR + 2)))
    for k in range(16): a('v_pk_fma_f32 %s, %s, %s, %s op_sel_hi:[1,0,0]' % (v(XD + 2 * k, 2), v(XD + 2 * k, 2), v(P, 2), v(P + 2, 2)))
    OP = 104
    pack(OP, XD, 32, 'bf16')
    a('ds_write_b128 %s, %s' % (v(vXR), v(OP, 4))); a('ds_write_b128 %s, %s offset:16' % (v(vXR), v(OP + 4, 4)))
    a('s_waitcnt lgkmcnt(0)'); a('s_barrier')
    def wtail():
        if W3 < 8 or WL:
            a('s_cmp_lt_u32 s3, 4'); a('s_cbranch_scc1 fz_now4')
            if WL: a('s_bitcmp0_b32 s2, 2'); a('s_cbranch_scc1 fz_now4')
            wdload(8 - WL if WL else W3, 8)
            a.lines.append('fz_now4:')
    if WT == 1: wtail()
    a('ds_write_b16 %s, %s' % (v(vE0), v(OP))); a('ds_write_b16 %s, %s' % (v(vM0m), v(OP + 8)))
    for e in range(1, 16): a('ds_write_b16%s %s, %s offset:%d' % ('_d16_hi' if e & 1 else '', v(vXM), v(OP + 8 + (e >> 1)), 2 * (15 - e)))
    a('s_lshl_b32 s32, s3, 1'); a('s_add_u32 s33, s32, 1')
    a('v_readlane_b32 s34, %s, s32' % v(vT)); a('v_readlane_b32 s35, %s, s33' % v(vT))
    a('s_mul_i32 s38, s3, %d' % (2 * RS)); a('v_add_u32 v9, s38, %s' % v(vL16))
    a('s_lshl_b32 s34, s34, 11'); a('s_lshl_b32 s35, s35, 11')
    a('s_waitcnt lgkmcnt(0)'); a('s_barrier')
    for q in range(4): a('ds_read_b128 %s, v9 offset:%d' % (v(OP + 4 * q, 4), RS * (q >> 1) + 1024 * (q & 1)))
    if WT == 2: wtail()
    OUTF = '' if '--outplain' in OPT else (' nt' if '--outnt' in OPT else ' sc1 nt' if '--outsn' in OPT else ' sc1')
    a('s_lshr_b32 s59, s37, 1'); a('s_xor_b32 s18, s59, 1'); a('s_and_b32 s18, s18, 3')
    if AC_: a('s_and_b32 s59, s59, 3')
    if BC: a('s_cmp_eq_u32 s59, s3'); a('s_cselect_b32 s17, 1, 0'); a('s_or_b32 s59, s59, 4'); a('s_cmp_eq_u32 s59, s3'); a('s_cselect_b32 s17, 1, s17')
    if '--wdearly' not in OPT:
        if OLATE:
            a('s_cmp_eq_u32 s59, s3'); a('s_cselect_b32 s38, 112, s23'); a('s_cmp_lt_u32 s38, 112'); a('s_cbranch_scc1 fz_sk1')
        else:
            a('s_cmp_lt_u32 s23, 112'); a('s_cselect_b32 s38, s18, 8'); a('s_cmp_eq_u32 s38, s3'); a('s_cbranch_scc1 fz_sk1')
    if BC: a('s_cmp_lg_u32 s17, 0'); a('s_cbranch_scc1 fz_sk1')
    elif CL: a('s_cmp_eq_u32 s59, s3'); a('s_cbranch_scc1 fz_sk1')
    a('s_waitcnt lgkmcnt(0)')
    for r in range(2):
        a('s_cmp_eq_u32 s37, %s' % s(32 + r)); a('s_cbranch_scc1 fz_sk%d' % r)
        for q in range(0 if '--xnoout' in OPT else 2): a('buffer_store_dwordx4 %s, %s, s[12:15], %s offen offset:%d%s' % (v(OP + 8 * r + 4 * q, 4), v(vL16), s(34 + r), 1024 * q, OUTF))
        a.lines.append('fz_sk%d:' % r)
    a('v_and_b32 v15, 7, v4'); a('v_mul_u32_u24 v15, 544, v15'); a('v_lshl_add_u32 v15, v5, 4, v15'); a('v_add_u32 v15, %d, v15' % ACT)
    if TWO:
        a('s_and_b32 s60, s2, 7'); a('s_lshr_b32 s61, s2, 3')
        a('s_cmp_lt_u32 s3, 4'); a('s_cselect_b32 s63, 8, s60'); a('s_lshl_b32 s63, s63, 2'); a('s_and_b32 s38, s3, 3'); a('s_add_u32 s63, s63, s38')
        a('s_lshl_b32 s63, s63, 6'); a('s_add_u32 s63, s63, s61'); a('s_lshl_b32 s63, s63, 8'); a('s_add_u32 s63, s63, 0x%x' % POFF)
        a('v_lshlrev_b32 v13, 4, v4'); a('v_lshl_add_u32 v102, v5, 12, v13'); a('v_add_u32 v103, 8192, v102'); a('v_mov_b32 v101, %d' % (ACT + 4352))
    elif PIN:
        a('s_lshl_b32 s63, s23, 5'); a('s_and_b32 s38, s3, 3'); a('s_mul_i32 s38, s38, %d' % (32 * PIS)); a('s_add_u32 s63, s63, s38'); a('s_add_u32 s63, s63, 0x%x' % POFF)
        a('v_lshrrev_b32 v13, 1, v1'); a('v_mul_u32_u24 v13, %d, v13' % PIS); a('v_and_b32 v14, 1, v1'); a('v_lshl_add_u32 v102, v14, 4, v13'); a('v_add_u32 v103, %d, v102' % (16 * PIS))
    else:
        a('s_mul_i32 s63, s23, %d' % PPS); a('s_and_b32 s38, s3, 3'); a('s_lshl_b32 s38, s38, 10'); a('s_add_u32 s63, s63, s38'); a('s_add_u32 s63, s63, 0x%x' % POFF)
    if FL: a('v_mov_b32 v101, %d' % SYNC)
    if not TWO and not BC and not FL: a('s_lshl_b32 s38, s20, %d' % (5 if PIN else 10)); a('s_add_u32 s38, s38, 0x%x' % DOFF); a('s_cmp_lt_u32 s3, 4'); a('s_cselect_b32 s63, s38, s63')
    a('v_mov_b32 v14, 0xffffff00')
    a('s_cmp_eq_u32 s18, s3'); a('s_cbranch_scc1 fz_act')
    if BC:
        a('s_cmp_lg_u32 s17, 0'); a('s_cbranch_scc1 fz_coll')
        a('s_cmp_lt_u32 s3, 4'); a('s_cbranch_scc1 fz_xend'); a('s_branch fz_f2')
        a.lines.append('fz_coll:')
    elif FL:
        a('s_cmp_eq_u32 s59, s3'); a('s_cbranch_scc1 fz_coll')
        a('s_cmp_lt_u32 s3, 4'); a('s_cbranch_scc1 fz_xend'); a('s_branch fz_f2')
        a.lines.append('fz_coll:')
    else: a('s_cmp_lg_u32 s59, s3'); a('s_cbranch_scc1 fz_f2')
    st()
    if AC_:
        a('s_mul_i32 s16, s37, %d' % RS); a('v_add_u32 v9, s16, %s' % v(vL16)); a('v_readlane_b32 s16, %s, s37' % v(vT))
        a('ds_read_b128 v[120:123], v9'); a('ds_read_b128 v[124:127], v9 offset:1024'); a('s_lshl_b32 s16, s16, 11')
    a('s_and_b32 s38, s20, %d' % (7 if DB & 8 else 15)); a('s_add_u32 s38, s38, 16'); a('s_mul_i32 s38, s38, %d' % KS); a('s_add_u32 s38, s38, 0x%x' % KOFF)
    if TWO:
        a('s_lshr_b32 s52, s61, 1'); a('s_lshl_b32 s52, s52, 3'); a('s_add_u32 s52, s52, s60'); a('s_lshl_b32 s52, s52, 2'); a('s_and_b32 s53, s61, 1'); a('s_add_u32 s52, s52, s53'); a('s_lshl_b32 s52, s52, 2')
        a('v_bfe_u32 v2, v1, 2, 1'); a('v_and_b32 v3, 3, v1'); a('v_lshl_add_u32 v2, v2, 3, v3'); a('v_add_u32 v2, s52, v2')
    else:
        a('s_lshr_b32 s52, s20, 4'); a('s_lshl_b32 s52, s52, 7'); a('s_and_b32 s53, s20, 7'); a('s_lshl_b32 s53, s53, 4'); a('s_add_u32 s52, s52, s53')
        a('s_bfe_u32 s53, s20, 0x10003'); a('s_lshl_b32 s53, s53, 2'); a('s_add_u32 s52, s52, s53')
        a('v_and_b32 v2, 1, v1'); a('v_lshl_add_u32 v2, v2, 3, v5'); a('v_add_u32 v2, s52, v2')
    a('v_and_b32 v3, 31, v2'); a('v_lshrrev_b32 v6, 5, v2')
    a('v_cmp_gt_u32 vcc, 16, v6')
    a('v_cmp_lt_u32 s[52:53], 16, v3'); a('v_cmp_eq_u32 s[54:55], 0, v3'); a('s_and_b64 s[54:55], s[54:55], vcc'); a('s_or_b64 s[52:53], s[52:53], s[54:55]')
    a('v_cmp_eq_u32 s[54:55], 16, v3'); a('s_andn2_b64 s[54:55], s[54:55], vcc'); a('s_or_b64 s[52:53], s[52:53], s[54:55]')
    a('v_sub_u32 v7, 1024, v2'); a('v_cndmask_b32 v7, v2, v7, s[52:53]')
    a('v_mov_b32 v8, 512'); a('v_cmp_eq_u32 vcc, 1024, v7'); a('v_cndmask_b32 v7, v7, v8, vcc')
    a('v_lshrrev_b32 v8, 5, v7'); a('v_and_b32 v7, 15, v7')
    a('v_lshrrev_b32 v9, 2, v8'); a('v_lshlrev_b32 v9, 8, v9'); a('v_and_b32 v8, 3, v8'); a('v_lshl_add_u32 v9, v8, 4, v9')
    a('v_lshrrev_b32 v8, 3, v7'); a('v_lshl_add_u32 v9, v8, 6, v9'); a('v_and_b32 v7, 7, v7'); a('v_lshl_add_u32 v9, v7, 1, v9')
    a('v_cndmask_b32 v7, 0, 1, s[52:53]'); a('v_lshl_add_u32 v9, v7, 7, v9')
    a('v_lshlrev_b32 v2, 1, v2')
    if TWO:
        a('s_lshl_b32 s52, s60, 4'); a('s_add_u32 s52, s52, s61'); a('s_lshl_b32 s52, s52, 12'); a('s_add_u32 s52, s52, 0x%x' % POFF)
        a('s_add_u32 s53, s2, 4'); a('s_and_b32 s53, s53, 7'); a('s_cmp_lt_u32 s53, 6'); a('s_cselect_b32 s53, s52, 0x7fff0000')
        for k in range(4): a('s_cselect_b32 %s, %s, 0' % (s(8 + k), s(48 + k)))
        a('s_lshl_b32 s54, s61, 11'); a('s_add_u32 s54, s54, 0x%x' % FIOFF); a('s_lshl_b32 s55, s60, 8'); a('s_add_u32 s55, s55, s54'); a('s_lshl_b32 s62, s60, 5'); a('s_add_u32 s54, s54, s62')
        a('v_lshrrev_b32 v3, 1, v4'); a('v_lshlrev_b32 v3, 8, v3'); a('v_and_b32 v6, 1, v4'); a('v_lshl_add_u32 v3, v6, 4, v3')
        a('v_lshlrev_b32 v6, 2, v1'); a('v_and_b32 v7, 3, v1'); a('v_mov_b32 v16, s48')
        for k in range(1, 4): a('v_cmp_eq_u32 vcc, %d, v7' % k); a('v_mov_b32 v8, %s' % s(48 + k)); a('v_cndmask_b32 v16, v16, v8, vcc')
    else:
        a('v_lshrrev_b32 v3, 1, v1'); a('v_mul_u32_u24 v3, %d, v3' % (32 if PIN else PPS)); a('v_and_b32 v6, 1, v1'); a('v_lshl_add_u32 v3, v6, 4, v3')
        a('v_mov_b32 v6, 0x7fffffff'); a('v_cmp_gt_u32 vcc, 32, v1'); a('v_cndmask_b32 v6, v6, v3, vcc')
        for k in range(4): a('v_mov_b32 v7, %s' % s(48 + k)); a('v_cndmask_b32 %s, 0, v7, vcc' % v(16 + k))
        a('s_mul_i32 s52, s20, %d' % (PIS if PIN else 32)); a('s_add_u32 s52, s52, 0x%x' % POFF)
        for u in range(1, 4): a('s_add_u32 %s, s52, %d' % (s(52 + u), 32 * u * (32 if PIN else PPS)))
    K = 24
    a('v_lshlrev_b32 v20, %d, v1' % KRL); a('v_add_u32 v21, %d, v20' % (64 << KRL))
    a('s_mov_b32 s58, 0')
    a.label('fz_k2')
    a('buffer_load_dwordx4 %s, v20, s[4:7], s38 offen sc1' % v(K, 4)); a('buffer_load_dwordx4 %s, v21, s[4:7], s38 offen sc1' % v(K + 4, 4))
    a('s_waitcnt vmcnt(0)')
    keys_argmax(K, None, 'fz_k2')
    tst(3)
    if TWO:
        a('v_and_b32 v7, 15, %s' % v(K + 1)); a('v_and_b32 v8, 15, %s' % v(K + 5)); a('v_cmp_eq_u32 vcc, s24, v7'); a('v_cmp_eq_u32 s[56:57], s24, v8')
        a('s_and_b64 vcc, vcc, s[56:57]'); a('s_and_b32 s39, vcc_lo, vcc_hi'); a('s_and_b32 s41, s20, 7'); a('s_lshr_b32 s39, s39, s41'); a('s_and_b32 s39, s39, 0x01010101')
        a('s_cmp_eq_u32 s39, 0x01010101'); a('s_cselect_b32 s39, %d, 0' % (1 if LOCAL else 0)); a('v_mov_b32 v7, s39'); a('ds_write_b32 v101, v7')
    a('v_cmp_eq_u32 vcc, s36, %s' % v(K)); a('v_cmp_eq_u32 s[56:57], s36, %s' % v(K + 4))
    a('v_cndmask_b32 %s, %s, %s, s[56:57]' % (v(K + 1), v(K + 1), v(K + 5))); a('v_cndmask_b32 %s, %s, %s, s[56:57]' % (v(K + 2), v(K + 2), v(K + 6)))
    a('s_cmp_lg_u64 vcc, 0'); a('s_cselect_b32 s39, 0, 64'); a('s_or_b64 vcc, vcc, s[56:57]'); a('s_ff1_i32_b64 s41, vcc')
    a('v_readlane_b32 s42, %s, s41' % v(K + 1)); a('v_readlane_b32 s43, %s, s41' % v(K + 2))
    a('s_add_u32 s39, s39, s41'); a('s_and_b32 s42, s42, 0xffff0000')
    if AC_: a('s_cmp_eq_u32 s39, s20'); a('s_cselect_b32 s16, 0x7ff00000, s16'); a('s_mov_b32 s19, s37')
    elif CL: a('s_cmp_eq_u32 s39, s20'); a('s_cselect_b32 s19, s37, 16')
    else:
        a('s_cmp_eq_u32 s39, s20'); a('s_cbranch_scc1 fz_win')
        a('s_bitcmp1_b32 s37, 0'); a('s_cbranch_scc1 fz_d1')
        for q in range(2): a('buffer_store_dwordx4 %s, %s, s[12:15], s34 offen offset:%d%s' % (v(OP + 4 * q, 4), v(vL16), 1024 * q, OUTF))
        a('s_branch fz_win')
        a.lines.append('fz_d1:')
        for q in range(2): a('buffer_store_dwordx4 %s, %s, s[12:15], s35 offen offset:%d%s' % (v(OP + 8 + 4 * q, 4), v(vL16), 1024 * q, OUTF))
        a.lines.append('fz_win:')
    a('s_lshl_b32 s39, s39, 11'); a('s_add_u32 s39, s39, 0x%x' % COFF)
    a('s_mov_b32 s58, 0'); a('s_mov_b32 s41, 0xffff0000')
    a.label('fz_c2')
    a('buffer_load_short_d16_hi v10, v9, s[4:7], s39 offen sc1')
    a('s_waitcnt vmcnt(0)')
    a('v_cmp_eq_u32 vcc, s41, v10')
    poll_retry('fz_c2')
    if CL:
        if AC_:
            a('s_waitcnt lgkmcnt(0)')
            for q in range(2): a('buffer_store_dwordx4 %s, %s, s[12:15], s16 offen offset:%d%s' % (v(120 + 4 * q, 4), v(vL16), 1024 * q, OUTF))
        for r in range(2):
            a('s_cmp_eq_u32 s19, %s' % s(32 + r)); a('s_cbranch_scc1 fz_sc%d' % r)
            for q in range(2): a('buffer_store_dwordx4 %s, %s, s[12:15], %s offen offset:%d%s' % (v(OP + 8 * r + 4 * q, 4), v(vL16), s(34 + r), 1024 * q, OUTF))
            a.lines.append('fz_sc%d:' % r)
        if BC: a('s_cmp_lg_u32 s59, s3'); a('s_cbranch_scc1 fz_xend')
    a('v_add_f32 v11, s42, v10'); rbf(a, 11); a('v_mul_f32 v11, s43, v11'); rbf(a, 11)
    a('s_ashr_i32 s39, s36, 31'); a('s_not_b32 s39, s39'); a('s_or_b32 s39, s39, 0x80000000'); a('s_xor_b32 s39, s36, s39'); a('s_and_b32 s39, s39, 0xffff0000')
    a('v_mov_b32 v12, s39'); a('v_mul_f32 v12, %s, v12' % fh(-1.4426950408889634))
    a('v_exp_f32 v12, v12'); a('v_add_f32 v12, 1.0, v12'); a('v_rcp_f32 v12, v12'); rbf(a, 12)
    a('s_and_b32 s39, s36, 0xffff'); a('s_sub_u32 s39, 2047, s39'); a('s_lshl_b32 s39, s39, 11')
    PQ = 40
    a('v_mov_b32 v13, 0xff')
    a('s_waitcnt lgkmcnt(0)')
    tst(4)
    a.lines.append('fz_f2:')
    st.n = 13; st()
    a('s_cmp_gt_u32 s23, 111'); a('s_cbranch_scc1 fz_nof2')
    if FL:
        a('s_cmp_lt_u32 s3, 4'); a('s_cbranch_scc1 fz_ca')
        a.lines.append('fz_fl1:')
        a('ds_read_b32 v100, v101 offset:4'); a('s_waitcnt lgkmcnt(0)'); a('v_cmp_eq_u32 vcc, 0, v100'); a('s_cbranch_vccnz fz_fl1')
    else: a('s_barrier')
    tst(5)
    if FL: pass
    elif BC: a('s_cmp_lt_u32 s3, 4'); a('s_cbranch_scc1 fz_f2d')
    else: a('s_cmp_eq_u32 s59, s3'); a('s_cselect_b32 s19, 4, s3'); a('s_cmp_lt_u32 s19, 4'); a('s_cbranch_scc1 fz_f2d')
    BH, ACC = 120, 152
    if TWO: a('ds_read_b32 v100, v101')
    for q in range(8): a('ds_read_b128 %s, v15 offset:%d' % (v(BH + 4 * q, 4), 64 * q))
    if W3 < 8 or WL: a('s_waitcnt vmcnt(2)')
    for q in range(8):
        a('s_waitcnt lgkmcnt(%d)' % (7 - q))
        for h in range(2): a('v_mfma_f32_16x16x32_bf16 %s, %s, %s, %s' % (v(ACC + 4 * h, 4), v(BH + 4 * q, 4), v(WQ[2 * q + h], 4), v(ACC + 4 * h, 4) if q else '0'))
    if TWO: a('v_readfirstlane_b32 s19, v100')
    a('s_mov_b32 exec_hi, 0')
    if TWO:
        for k in range(8): a('v_and_or_b32 %s, %s, v14, %s' % (v(ACC + k), v(ACC + k), s(48 + (k & 3))))
        a('s_cmp_eq_u32 s19, 0'); a('s_cbranch_scc1 fz_prem')
        for h in range(2): a('buffer_store_dwordx4 %s, %s, s[4:7], s63 offen' % (v(ACC + 4 * h, 4), v(102 + h)))
    else:
        for h in range(2):
            for k in range(4): a('v_and_or_b32 %s, %s, v14, %s' % (v(ACC + 4 * h + k), v(ACC + 4 * h + k), s(48 + k)))
            if PIN: a('buffer_store_dwordx4 %s, %s, s[4:7], s63 offen sc1' % (v(ACC + 4 * h, 4), v(102 + h)))
            else: a('buffer_store_dwordx4 %s, %s, s[4:7], s63 offen offset:%d sc1' % (v(ACC + 4 * h, 4), v(vL16), 512 * h))
    tst(6)
    a.lines.append('fz_f2d:')
    a('s_mov_b32 exec_hi, -1')
    if FL:
        a('v_mov_b32 v100, 1')
        a('s_waitcnt vmcnt(0)')
        a('s_mov_b64 exec, 1'); a('ds_add_u32 v101, v100 offset:8'); a('s_mov_b64 exec, -1')
        if AC_: a('s_branch fz_xend')
        else:
            a('s_cmp_lg_u32 s59, s3'); a('s_cbranch_scc1 fz_xend')
            a('v_mov_b32 v7, 0')
            a('s_branch fz_p5_ok')
        a.lines.append('fz_ca:')
        a('ds_read_b32 v100, v101 offset:8'); a('s_waitcnt lgkmcnt(0)'); a('v_cmp_ne_u32 vcc, 4, v100'); a('s_cbranch_vccnz fz_ca')
        a('v_mov_b32 v7, 0')
        a('s_branch fz_p5_ok')
    else:
        if OLATE: a('s_cmp_lg_u32 s59, s3'); a('s_cbranch_scc1 fz_late')
        else: a('s_cmp_eq_u32 s18, s3'); a('s_cbranch_scc1 fz_late')
        a('s_cmp_lg_u32 s59, s3'); a('s_cbranch_scc1 fz_xend')
        a('v_mov_b32 v7, 0')
        a('s_waitcnt vmcnt(0)')
        a('s_branch fz_p5_ok')
    a.label('fz_nof2')
    a('s_cmp_lg_u32 s59, s3'); a('s_cbranch_scc1 %s' % 'fz_xend')
    a('s_mov_b32 s58, 0'); a('s_and_b32 s41, s20, %d' % (7 if TWO else 63)); a('s_mul_i32 s41, s41, %d' % (256 if TWO else 32 if PIN else PPS)); a('s_add_u32 s41, s41, s52'); a('v_mov_b32 v7, 0')
    a.label('fz_p5')
    a('buffer_load_dword v8, v7, s[4:7], s41 offen sc1')
    a('s_waitcnt vmcnt(0)')
    a('v_and_b32 v8, 0xff, v8'); a('v_cmp_ne_u32 vcc, s48, v8')
    poll_retry('fz_p5')
    a('s_mov_b32 s58, 0')
    st()
    def h5i(u):
        if TWO: a('buffer_load_dwordx4 %s, %s, s[4:7], %s offen offset:%d sc1' % (v(PQ + 4 * u, 4), v(vL16), s(52 + (u >> 1)), 1024 * u))
        else: a('buffer_load_dwordx4 %s, %s, s[4:7], %s offen sc1' % (v(PQ + 4 * u, 4), 'v6' if u == 3 else 'v3', s(52 + u)))
    def h5c(u):
        for k in range(4): a('v_xor_b32 %s, %s, %s' % (v(PQ + 4 * u + k), (s(8 + k) if u >= 2 else s(48 + k)) if TWO else v(16 + k) if u == 3 else s(48 + k), v(PQ + 4 * u + k)))
        a('v_or3_b32 v8, %s, %s, %s' % (v(PQ + 4 * u), v(PQ + 4 * u + 1), v(PQ + 4 * u + 2)))
        a('v_bitop3_b32 v8, v8, %s, v13 bitop3:0xa8' % v(PQ + 4 * u + 3))
        a('v_cmp_ne_u32 vcc, 0, v8')
    def h5a(u):
        if u:
            for h in range(2): a('v_pk_add_f32 %s, %s, %s' % (v(PQ + 2 * h, 2), v(PQ + 2 * h, 2), v(PQ + 4 * u + 2 * h, 2)))
    for u in range(4): h5i(u)
    if MP & 4:
        mask_poll('fz_h5', 4, h5i, h5c, lambda u, x: None, [8, 10, 26, 28])
        for u in range(1, 4): h5a(u)
    else: prog_poll('fz_h5', 4, h5i, h5c, h5a)
    tst(8)
    if TWO:
        for sw in ('32', '16'):
            for k in range(4): a('v_mov_b32 %s, %s' % (v(PQ + 4 + k), v(PQ + k)))
            for k in range(4): a('v_permlane%s_swap_b32 %s, %s' % (sw, v(PQ + k), v(PQ + 4 + k)))
            for h in range(2): a('v_pk_add_f32 %s, %s, %s' % (v(PQ + 2 * h, 2), v(PQ + 2 * h, 2), v(PQ + 4 + 2 * h, 2)))
        for k in range(4): a('v_and_or_b32 %s, %s, v14, %s' % (v(PQ + k), v(PQ + k), s(48 + k)))
        a('s_mov_b64 exec, 0xffff')
        a('buffer_store_dwordx4 %s, v3, s[4:7], s54 offen sc1' % v(PQ, 4))
        a('s_mov_b64 exec, -1'); a('s_mov_b32 s58, 0')
        a('s_waitcnt vmcnt(0)')
        a.lines.append('fz_h6:')
        a('buffer_load_dword %s, v6, s[4:7], s55 offen sc1' % v(PQ + 8))
        a('s_waitcnt vmcnt(0)')
        a('v_xor_b32 %s, v16, %s' % (v(PQ), v(PQ + 8))); a('v_and_b32 v8, 0xff, %s' % v(PQ)); a('v_cmp_ne_u32 vcc, 0, v8')
        poll_retry('fz_h6')
        a('v_add_f32_dpp %s, %s, %s row_ror:8 %s' % (v(PQ), v(PQ), v(PQ), DPPF))
        for sw in ('32', '16'):
            a('v_mov_b32 %s, %s' % (v(PQ + 1), v(PQ))); a('v_permlane%s_swap_b32 %s, %s' % (sw, v(PQ), v(PQ + 1))); a('v_add_f32 %s, %s, %s' % (v(PQ), v(PQ), v(PQ + 1)))
    else:
        for i in range(2): a('v_permlane32_swap_b32 %s, %s' % (v(PQ + i), v(PQ + 2 + i)))
        a('v_pk_add_f32 %s, %s, %s' % (v(PQ, 2), v(PQ, 2), v(PQ + 2, 2)))
        a('v_permlane16_swap_b32 %s, %s' % (v(PQ), v(PQ + 1)))
        a('v_add_f32 %s, %s, %s' % (v(PQ), v(PQ), v(PQ + 1)))
        a('v_add_f32_dpp %s, %s, %s quad_perm:[2,3,0,1] %s' % (v(PQ), v(PQ), v(PQ), DPPF))
        a('v_add_f32_dpp %s, %s, %s row_ror:4 %s' % (v(PQ), v(PQ), v(PQ), DPPF))
        a('v_add_f32_dpp %s, %s, %s row_ror:8 %s' % (v(PQ), v(PQ), v(PQ), DPPF))
    rbf(a, PQ); a('v_mul_f32 %s, %s, v12' % (v(PQ), v(PQ))); rbf(a, PQ)
    a('v_add_f32 %s, %s, v11' % (v(PQ), v(PQ))); rbf(a, PQ)
    a('v_add_f32 %s, %s, v10' % (v(PQ), v(PQ))); rbf(a, PQ)
    if TWO: a('s_mov_b64 exec, 0xff')
    else: a('s_mov_b32 exec_lo, 0x00030003'); a('s_mov_b32 exec_hi, 0x00030003')
    a('buffer_store_short_d16_hi %s, v2, s[12:15], s39 offen' % v(PQ))
    a('s_cmp_lg_u32 s20, 0'); a('s_cbranch_scc1 fz_xend')
    a('s_mov_b64 exec, 1'); a('v_mov_b32 v8, s40')
    a('buffer_store_dword v8, v7, s[4:7], 0 offen')
    a.lines.append('fz_xend:')
    st.n = 15; st()
    st.dump(n=16, sv=250, wave='s3')
    a.lines.append('fz_end:')
    a('s_endpgm')
    a.lines.append('fz_late:')
    for r in range(2):
        for q in range(2): a('buffer_store_dwordx4 %s, %s, s[12:15], %s offen offset:%d%s' % (v(OP + 8 * r + 4 * q, 4), v(vL16), s(34 + r), 1024 * q, OUTF))
    a('s_branch fz_xend')
    a.lines.append('fz_act:')
    a('s_cmp_gt_u32 s23, 111'); a('s_cbranch_scc1 fz_xend')
    a('v_lshlrev_b32 v2, 2, v1'); a('v_and_b32 v11, 3, v1'); a('v_mov_b32 v3, s48')
    for k in range(1, 4): a('v_cmp_eq_u32 vcc, %d, v11' % k); a('v_mov_b32 v10, %s' % s(48 + k)); a('v_cndmask_b32 v3, v3, v10, vcc')
    a('v_and_b32 v10, 31, v1'); a('v_lshlrev_b32 v6, 4, v10'); a('v_lshrrev_b32 v10, 5, v1'); a('v_mul_u32_u24 v10, %d, v10' % (4 * 546)); a('v_add_u32 v6, v6, v10'); a('v_add_u32 v6, %d, v6' % ACT)
    a('s_lshl_b32 s38, s23, 11'); a('s_add_u32 s38, s38, 0x%x' % XOFF)
    a('s_mov_b32 s58, 0')
    st.n = 12; st()
    if APP:
        a.lines.append('fz_p4:')
        a('buffer_load_dword v8, v2, s[4:7], s38 offen offset:%d sc1' % (256 * (APP - 1)))
        a('s_waitcnt vmcnt(0)')
        a('v_xor_b32 v8, v3, v8'); a('v_and_b32 v8, 0xff, v8'); a('v_cmp_ne_u32 vcc, 0, v8')
        poll_retry('fz_p4')
        a('s_mov_b32 s58, 0')
    if XB_:
        a('s_lshl_b32 s39, s23, 7'); a('s_add_u32 s39, s39, 0x%x' % DLOFF); a('v_and_b32 v7, 28, v2')
        a.lines.append('fz_d4:')
        a('buffer_load_dword v8, v7, s[4:7], s39 offen sc1')
        a('s_add_u32 s58, s58, 1'); a('s_and_b32 s41, s58, 15')
        a('s_waitcnt vmcnt(0)')
        a('v_cmp_ne_u32 vcc, s40, v8')
        a('s_cbranch_scc0 fz_h4'); a('s_cbranch_vccnz fz_d4')
    a.lines.append('fz_h4:')
    for k in range(8): a('buffer_load_dword %s, v2, s[4:7], s38 offen offset:%d sc1' % (v(16 + k), 256 * k))
    for k in range(0, 8, 2):
        a('s_waitcnt vmcnt(%d)' % (6 - k))
        a('v_xor_b32 %s, v3, %s' % (v(16 + k), v(16 + k))); a('v_xor_b32 %s, v3, %s' % (v(17 + k), v(17 + k)))
        a('v_or3_b32 v10, %s, %s, %s' % (v(16 + k), v(17 + k), 'v10' if k else '0'))
        a('v_add_f32 %s, %s, %s' % (v(16 + k), v(16 + k), v(17 + k)))
        if k & 2: a('v_add_f32 %s, %s, %s' % (v(14 + k), v(14 + k), v(16 + k)))
    a('v_and_b32 v10, 0xff, v10'); a('v_add_f32 v8, v16, v20')
    a('v_cmp_ne_u32 vcc, 0, v10')
    if XB_:
        a('s_cmp_gt_u32 s58, 0x%x' % (MAXPOLL * 4)); a('s_cbranch_scc1 fz_h4_ok'); a('s_cbranch_vccnz fz_d4')
        a.lines.append('fz_h4_ok:')
    else: poll_retry('fz_h4')
    tst(1)
    rbf(a, 8)
    a('v_mov_b32 v9, v8')
    a('v_permlane32_swap_b32 v8, v9')
    a('v_mul_f32 v10, %s, v8' % fh(-1.4426950408889634))
    a('v_exp_f32 v10, v10')
    a('v_add_f32 v10, 1.0, v10'); a('v_rcp_f32 v10, v10')
    a('v_mul_f32 v8, v8, v10'); rbf(a, 8)
    a('v_mul_f32 v8, v8, v9'); rbf(a, 8)
    for m in range(4): a('ds_write_b16_d16_hi v6, v8 offset:%d' % (546 * m))
    a('s_waitcnt lgkmcnt(0)')
    tst(2)
    if FL: a('v_mov_b32 v8, 1'); a('ds_write_b32 v101, v8 offset:4'); a('s_branch fz_late')
    else: a('s_branch fz_f2')
    a.lines.append('fz_ldh:')
    a('s_load_dwordx2 s[12:13], s[0:1], 56'); a('s_load_dwordx2 s[16:17], s[0:1], 64')
    srd(12, 0x700000); srd(16, 0x700000)
    a('s_branch fz_ldback')
    a.lines.append('fz_spec:')
    a('s_cmp_gt_u32 s3, 3'); a('s_cbranch_scc1 fz_spec_hi')
    for q, sa, sb in ((0, 0, 16), (2, 15, 17), (3, 18, 19)):
        a('s_cmp_eq_u32 s3, %d' % q); a('s_cselect_b32 s31, %d, s31' % (sa * RS)); a('s_cselect_b32 s30, %d, s30' % (sb * RS))
    a('s_branch fz_specback')
    a.lines.append('fz_spec_hi:')
    xload()
    if LATEX: extras()
    for q, ra, rb, sa, sb in ((0, 256, 1792, 4, 11), (1, 768, 1280, 6, 9), (2, 768, 1280, 20, 21), (3, 256, 1792, 22, 23)):
        a('s_cmp_eq_u32 s24, %d' % q); a('s_cselect_b32 s31, %d, s31' % (sa * RS)); a('s_cselect_b32 s30, %d, s30' % (sb * RS))
        a('s_cselect_b32 s27, %d, s27' % (ra * 2048)); a('s_cselect_b32 s28, %d, s28' % (rb * 2048))
    a('s_mov_b32 s57, 0')
    a('s_branch fz_specback')
    a.lines.append('fz_jb:')
    pack(JT, XAC, 16, 'bf16')
    a('s_branch fz_jend')
    if TWO:
        a.lines.append('fz_prem:')
        for h in range(2): a('buffer_store_dwordx4 %s, %s, s[4:7], s63 offen sc1' % (v(152 + 4 * h, 4), v(102 + h)))
        a('s_branch fz_f2d')
    a.lines.append('fz_bsp0:')
    wdload(0, 8 - WL if (WL and SPID & 4) else W3)
    a('s_branch fz_bsp')
    for jx, x in [(j, y) for j in range(4) for y in (('i', 'r') if MP & 2 else ('',))]:
        a.lines.append('fz_spec4%d%s:' % (jx, x))
        a('s_mov_b32 s38, 0x80018001'); a('s_mov_b32 s39, 0x80018001')
        for k in range(2 * jx, 2 * jx + 2): a('v_cndmask_b32 %s, %s, %s, s[38:39]' % (v(YM + k), v(YM + k), v(YD + k)))
        a('s_branch fz_spec4back%d%s' % (jx, x))
    a.label('fz_nc1')
    a('s_setprio 0')
    a('s_cmp_lg_u32 s59, 0'); a('s_cbranch_scc1 ffn_b')
    if WL:
        wdload(WE, 8 - WL)
        a('s_bitcmp1_b32 s2, 2'); a('s_cbranch_scc1 fz_wl1')
        wdload(8 - WL, 8)
        a.lines.append('fz_wl1:')
        latex()
        a('s_waitcnt vmcnt(%d)' % (2 * (8 - WL) + 6))
    else:
        wdload(WE, W2)
        latex()
        a('s_waitcnt vmcnt(%d)' % (2 * W2 + 6))
    tags2()
    a.lines.append('fz_bsp:')
    a('s_setprio 0'); a('s_mov_b32 s57, 1')
    a('s_cmp_gt_u32 s3, 5'); a('s_cbranch_scc1 fz_nocq')
    cq_job()
    a.lines.append('fz_nocq:')
    SETA(False)
    SETB('b')
    a('s_cmp_eq_u32 s2, %d' % SPID); a('s_cbranch_scc1 fz_sz')
    a('s_waitcnt vmcnt(0)')
    sync_add(0x100)
    a.lines.append('fz_sz:')
    a('ds_read_b32 v10, v15')
    a('s_waitcnt lgkmcnt(0)')
    a('v_cmp_ne_u32 vcc, s38, v10')
    a('s_cbranch_vccnz fz_sz')
    st.n = 5; st()
    SET2(B2L < 2, B2L < 1)
    wdload(W2, W3)
    st()
    a('s_waitcnt lgkmcnt(0)')
    a('s_branch fz_hb')
    a.label('fz_nc3')
    if B2L: SET2(B2L > 1, True); a('s_waitcnt lgkmcnt(0)')
    a('s_mov_b32 s58, 0')
    a('s_waitcnt vmcnt(0)')
    st.n = 9; st()
    if EP2:
        a('s_lshl_b32 s32, s20, 7'); a('s_add_u32 s32, s32, s55'); a('s_add_u32 s32, s32, %d' % (12 * PS + 64)); a('v_mov_b32 v9, 0')
        a.lines.append('fz_p2:')
        a('buffer_load_dword v10, v9, s[4:7], s32 offen sc1')
        a('s_waitcnt vmcnt(0)')
        a('v_xor_b32 v10, %s, v10' % v(vE)); a('v_and_b32 v10, %s, v10' % v(vMT)); a('v_cmp_ne_u32 vcc, 0, v10')
        poll_retry('fz_p2')
        a('s_mov_b32 s58, 0')
    a('s_branch fz_h2')
    for sfx in 'ab':
        a.lines.append('fz_spec3%s:' % sfx)
        a('v_xor_b32 v11, 1, v4'); a('v_cndmask_b32 v9, v9, v11, s[34:35]')
        a('v_and_b32 v11, 1, v4'); a('v_cndmask_b32 v11, 0, v11, s[34:35]'); a('v_sub_u32 v10, v10, v11')
        a('s_cmp_lg_u32 s22, 0'); a('s_cbranch_scc1 fz_spec3back%s' % sfx)
        for i, tt, pp, po in ((15, 1024, 124, 4), (13, 1536, 124, 6), (4, 256, 127, 8), (11, 1792, 127, 14), (6, 768, 127, 10), (9, 1280, 127, 12)):
            a('v_cmp_eq_u32 vcc, %d, v4' % i); a('v_mov_b32 v11, %d' % tt); a('v_mov_b32 v12, %d' % pp)
            a('v_cndmask_b32 %s, %s, v11, vcc' % (v(vT), v(vT))); a('v_cndmask_b32 v10, v10, v12, vcc'); a('v_cndmask_b32 v9, v9, %d, vcc' % po)
        a.flush(); a('s_branch fz_spec3back%s' % sfx)
    WF, WD, BH, ACC, K = 32, 96, 128, 192, 200
    SNT = '' if '--spl' in OPT else ' nt'
    def ffn_addr():
        a('s_bfe_u32 s21, s2, 0x30003')
        a('v_lshrrev_b32 v2, 5, v1'); a('v_and_b32 v3, 31, v1'); a('v_lshlrev_b32 v4, 1, v2'); a('v_xor_b32 v3, v4, v3')
        a('v_mul_u32_u24 v4, 7168, v2'); a('v_lshl_add_u32 v4, v3, 4, v4')
        for k in range(1, 4): a('v_xor_b32 %s, %d, v4' % (v(4 + k), 64 * k))
        a('s_lshl_b32 s23, s21, 7'); a('s_lshl_b32 s24, s3, 4'); a('s_add_u32 s23, s23, s24'); a('s_mul_i32 s23, s23, 7168'); a('s_lshl_b32 s24, s22, 9'); a('s_add_u32 s23, s23, s24')
        a('s_lshl_b32 s24, s3, 13')
    def gu(m, p):
        a('s_add_u32 s28, s24, %d' % ((0 if m else GT) + 1024 * p)); a('s_mov_b32 m0, s28'); a('s_add_u32 s29, s23, %d' % (p * 2 * 7168))
        if '--xnogu' not in OPT: a('buffer_load_dwordx4 %s, %s, s29 offen%s lds' % (v(4 + (p & 1) + 2 * (p >> 2)), s(16 if m else 12, 4), SNT))
    a.label('ffn_b')
    if not NE:
        a('s_waitcnt vmcnt(0)')
        tags()
    a.label('ffn')
    st.n = 5; st()
    blk(22, 36)
    a('s_cmp_gt_u32 s22, 13'); a('s_cbranch_scc1 fz_xend')
    ffn_addr()
    a('v_mov_b32 v31, %d' % (MSG + 48)); a('v_mov_b32 v10, 0'); a('ds_write_b32 v31, v10'); a('s_waitcnt lgkmcnt(0)')
    if NE:
        a('s_cmp_lt_u32 s3, 4'); a('s_cbranch_scc1 ffn_g1')
        for p in range(NE): gu(0, p)
        a('s_waitcnt vmcnt(%d)' % NE)
        tags()
        a('s_barrier'); a('s_branch ffn_g2')
        a.lines.append('ffn_g1:')
    a('s_setprio 0'); a('s_barrier')
    if GATE:
        a('s_lshl_b32 s26, s3, 3'); a('s_add_u32 s26, s26, %d' % (GATE - 1)); a('s_mul_i32 s26, s26, %d' % PS); a('s_add_u32 s26, s26, 0x%x' % WOFF); a('s_and_b32 s27, s2, 127'); a('s_lshl_b32 s27, s27, 7'); a('s_add_u32 s26, s26, s27')
        a('v_mov_b32 v9, 0'); a('s_mov_b32 s27, 0x30003')
        a('s_waitcnt vmcnt(0)')
        a.lines.append('ffn_gp:')
        a('buffer_load_dword v10, v9, s[4:7], s26 offen sc1')
        a('s_waitcnt vmcnt(0)')
        a('v_xor_b32 v10, s44, v10'); a('v_and_b32 v10, s27, v10'); a('v_cmp_ne_u32 vcc, 0, v10')
        poll_retry('ffn_gp')
        a('s_mov_b32 s58, 0')
    if '--ackfirst' in OPT: a('s_waitcnt vmcnt(0)'); a('s_barrier')
    for p in range(8):
        if NE and p == NE: a.lines.append('ffn_g2:')
        gu(0, p)
        if THR: a('s_waitcnt vmcnt(%d)' % (THR - 1))
    if NE == 8: a.lines.append('ffn_g2:')
    def l2p():
        a('s_lshl_b32 s28, s22, 3'); a('s_add_u32 s28, s28, s21'); a('s_lshl_b32 s28, s28, 16'); a('v_lshlrev_b32 v9, 7, v0')
        a('buffer_load_dword v248, v9, s[64:67], s28 offen')
    if L2P == 1: l2p()
    for p in range(8):
        gu(1, p)
        if THR2: a('s_waitcnt vmcnt(%d)' % (THR2 - 1))
    if L2P == 2: l2p()
    a('v_lshrrev_b32 v2, 4, v1'); a('v_and_b32 v3, 15, v1')
    a('v_bfe_u32 v9, v1, 2, 2'); a('v_lshl_add_u32 v8, v2, 3, v9'); a('v_lshlrev_b32 v8, 9, v8')
    a('v_and_b32 v10, 1, v2'); a('v_lshl_add_u32 v10, v10, 2, v9'); a('s_lshl_b32 s28, s3, 1'); a('v_xor_b32 v10, s28, v10')
    a('v_lshl_add_u32 v8, v10, 5, v8'); a('v_and_b32 v10, 3, v1'); a('v_lshl_add_u32 v8, v10, 3, v8')
    a('v_xor_b32 v12, 32, v8'); a('v_add_u32 v13, %d, v8' % GT); a('v_add_u32 v20, %d, v12' % GT)
    if GH:
        a('s_lshl_b32 s28, s21, 7'); a('v_lshl_add_u32 v9, v1, 1, s28'); cand_off(9, 16, 24, 24)
        a('v_add_u32 v9, 1, v9'); cand_off(9, 17, 24, 24)
        a('s_lshl_b32 s28, s21, 8'); a('s_add_u32 s28, s28, %d' % HN); a('v_lshl_add_u32 v18, v1, 2, s28')
    else:
        a('v_bfe_u32 v9, v0, 2, 2'); a('v_lshrrev_b32 v10, 6, v0'); a('v_lshl_add_u32 v9, v10, 2, v9')
        a('v_bfe_u32 v10, v0, 4, 1'); a('v_and_b32 v11, 3, v0'); a('v_lshlrev_b32 v11, 1, v11'); a('v_lshl_add_u32 v10, v10, 3, v11')
        a('v_lshl_add_u32 v11, v9, 5, v10'); a('v_add_u32 v17, 1, v11')
        a('v_cmp_eq_u32 vcc, 0, v10'); a('v_cmp_gt_u32 s[28:29], 16, v9'); a('s_and_b64 vcc, vcc, s[28:29]'); a('v_cndmask_b32 v14, 0, 16, vcc'); a('v_add_u32 v16, v11, v14')
        a('v_bfe_u32 v10, v0, 5, 1'); a('v_cmp_eq_u32 s[28:29], 1, v10')
        a('v_sub_u32 v14, 1024, v16'); a('v_cmp_eq_u32 vcc, 512, v16'); a('v_cndmask_b32 v14, v14, 0, vcc'); a('v_cndmask_b32 v16, v16, v14, s[28:29]')
        a('v_sub_u32 v14, 1024, v17'); a('v_cndmask_b32 v17, v17, v14, s[28:29]')
        for r in (16, 17): a('v_lshlrev_b32 %s, 1, %s' % (v(r), v(r))); a('v_add_u32 %s, %d, %s' % (v(r), HN, v(r)))
        a('v_lshlrev_b32 v18, 2, v0'); a('v_add_u32 v18, %d, v18' % RAW)
    a('s_lshl_b32 s28, s21, 8'); a('s_add_u32 s28, s28, %d' % HN); a('v_lshlrev_b32 v19, 4, v2'); a('v_add_u32 v19, s28, v19')
    a('v_mov_b32 v28, %d' % MSG)
    a('v_lshlrev_b32 v29, 4, v1')
    a('s_lshl_b32 s30, s22, 3'); a('s_add_u32 s30, s30, s3'); a('s_lshl_b32 s30, s30, 3'); a('s_add_u32 s30, s30, s21'); a('s_lshl_b32 s30, s30, 8'); a('s_add_u32 s30, s30, 0x%x' % XOFF)
    a('v_lshlrev_b32 v30, 4, v2'); a('v_lshl_add_u32 v30, v3, 6, v30')
    for k in range(1, 4): a('v_cmp_eq_u32 %s, %d, v3' % (s(58 + 2 * k, 2), k))
    a('v_add_u32 v21, %d, v29' % RAW)
    a('v_mov_b32 %s, 0xffffff00' % v(197))
    a('s_and_b32 s35, s2, 0x47'); a('s_lshl_b32 s31, s3, 3'); a('s_add_u32 s35, s35, s31'); a('s_add_u32 s35, s35, %d' % POFS); a('s_and_b32 s35, s35, 127')
    a('s_getreg_b32 s33, hwreg(HW_REG_XCC_ID)'); a('s_and_b32 s33, s33, 15')
    a('s_lshr_b32 s31, s35, 5'); a('s_lshl_b32 s31, s31, 2'); a('s_add_u32 s31, s31, %d' % (MSG + 16)); a('v_mov_b32 v22, s31')
    a('s_lshl_b32 s20, s22, 3'); a('s_add_u32 s20, s20, s21')
    if XB_:
        a('s_lshl_b32 s31, s22, 3'); a('s_add_u32 s31, s31, s3'); a('s_lshl_b32 s31, s31, 5'); a('s_add_u32 s31, s31, s21'); a('s_lshl_b32 s31, s31, 2'); a('s_add_u32 s31, s31, 0x%x' % DLOFF)
        a('v_mov_b32 v26, s40'); a('v_mov_b32 v27, 0')
    a('s_and_b32 s34, s20, %d' % (7 if DB & 8 else 15))
    if DB & 2 and not DB & 16: a('s_bfe_u32 s28, s20, 0x10004'); a('s_lshl_b32 s28, s28, 5'); a('s_add_u32 s34, s34, s28')
    a('s_mul_i32 s34, s34, %d' % KS); a('s_add_u32 s34, s34, 0x%x' % KOFF)
    def trw():
        for T_, ad in enumerate((13, 20, 8, 12)):
            for k in range(4):
                for hh in range(2): a('ds_read_b64_tr_b16 %s, %s offset:%d' % (v(WF + 16 * T_ + 4 * k + 2 * hh, 2), v(ad), 16384 * k + 2048 * hh))
            a('s_waitcnt lgkmcnt(0)')
    a('s_waitcnt vmcnt(%d)' % (1 if L2P == 2 else 0))
    if DEC:
        a('v_mov_b32 v10, 1'); a('s_mov_b64 exec, 1'); a('ds_add_u32 v31, v10'); a('s_mov_b64 exec, -1')
        a('s_mov_b32 s23, 0')
        a('s_cmp_eq_u32 s3, 0'); a('s_cbranch_scc1 ffn_z0')
        a.lines.append('ffn_sl:')
        a('ds_read_b32 v10, v31'); a('s_waitcnt lgkmcnt(0)'); a('v_cmp_ne_u32 vcc, 8, v10'); a('s_cbranch_vccnz ffn_sl')
        st()
        trw()
        st()
        a('s_cmp_lg_u32 s3, 0'); a('s_cbranch_scc1 ffn_w3')
        a('s_cmp_eq_u32 s23, 2'); a('s_cbranch_scc1 ffn_w3')
        a('s_mov_b32 s23, 1')
        a.lines.append('ffn_z0:')
    else:
        a('s_barrier')
        st()
        trw()
        st()
        a('s_cmp_lg_u32 s3, 0'); a('s_cbranch_scc1 ffn_w3')
    if KP == 0:
        a('v_lshlrev_b32 v23, %d, v1' % KRL); a('v_add_u32 v24, %d, v23' % (64 << KRL)); a('s_lshl_b32 s28, s20, %d' % KRL); a('s_add_u32 s28, s28, s34'); a('v_mov_b32 v10, %d' % (12 + (32 * KS if DB & 16 else 16 * KS if DB & 1 else 0)))
        if DTH:
            a('v_mul_u32_u24 v11, %d, v1' % (3 << KRL if False else 2 << KRL)); a('v_bfe_u32 v9, v1, 2, 1'); a('v_lshl_add_u32 v11, v9, %d, v11' % KRL); a('v_add_u32 v10, v10, v11'); a('s_mov_b32 s28, s34')
            a.lines.append('ffn_q3:')
            a('buffer_load_dword v11, v10, s[4:7], s28 offen sc1')
            a('s_add_u32 s58, s58, 1')
            a('s_waitcnt vmcnt(0)')
            a('v_cmp_eq_u32 vcc, s40, v11')
            a('s_cmp_gt_u32 s58, 0x%x' % MAXPOLL); a('s_cbranch_scc1 ffn_p3_ok')
            a('s_bcnt1_i32_b64 s29, vcc'); a('s_cmp_lt_u32 s29, %d' % DTH); a('s_cbranch_scc1 ffn_q3'); a('s_branch ffn_p3_ok')
        a.label('ffn_p3')
        a('buffer_load_dword v11, v10, s[4:7], s28 offen sc1')
        if DEC: a('ds_read_b32 v9, v31')
        a('s_waitcnt vmcnt(0) lgkmcnt(0)')
        a('v_cmp_ne_u32 vcc, s40, v11')
        if DEC:
            a('s_cbranch_vccnz ffn_p3_x')
            a.lines.append('ffn_p3_ok:')
        else: poll_retry('ffn_p3')
        a('s_mov_b32 s58, 0'); a('s_mov_b32 s54, -1')
        st()
        a.label('ffn_k3')
        a('buffer_load_dwordx4 %s, v23, s[4:7], s34 offen sc1' % v(K, 4)); a('buffer_load_dwordx4 %s, v24, s[4:7], s34 offen sc1' % v(K + 4, 4))
        a('s_waitcnt vmcnt(0)')
        if SPEC:
            a('v_cmp_eq_u32 s[24:25], s40, %s' % v(K + 3)); a('v_cmp_eq_u32 s[26:27], s40, %s' % v(K + 7))
            a('v_cndmask_b32 %s, 0, %s, s[24:25]' % (v(K), v(K))); a('v_cndmask_b32 %s, 0, %s, s[26:27]' % (v(K + 4), v(K + 4)))
            a('v_max_u32 %s, %s, %s' % (v(K + 10), v(K), v(K + 4)))
            for pat in ['quad_perm:[1,0,3,2] ' + DPPF, 'quad_perm:[2,3,0,1] ' + DPPF, 'row_half_mirror ' + DPPF,
                        'row_mirror ' + DPPF, 'row_bcast:15 row_mask:0xa bank_mask:0xf', 'row_bcast:31 row_mask:0xc bank_mask:0xf']:
                a('v_max_u32_dpp %s, %s, %s %s' % (v(K + 10), v(K + 10), v(K + 10), pat))
            a('s_and_b64 s[52:53], s[24:25], s[26:27]')
            a('v_readlane_b32 s36, %s, 63' % v(K + 10))
        else: keys_argmax(K, None, 'ffn_k3')
    else:
        st()
        KSET = [216 + 8 * i for i in range(KP)]
        def ki(r): a('buffer_load_dwordx4 %s, v29, s[4:7], s34 offen sc1' % v(r, 4)); a('buffer_load_dwordx4 %s, v29, s[4:7], s34 offen offset:1024 sc1' % v(r + 4, 4))
        for r in KSET[:-1]: ki(r)
        a.lines.append('ffn_k3:')
        for i, r in enumerate(KSET):
            ki(KSET[i - 1])
            a('s_waitcnt vmcnt(%d)' % (2 * KP - 2))
            for k in range(8): a('v_mov_b32 %s, %s' % (v(K + k), v(r + k)))
            a('v_max_u32 %s, %s, %s' % (v(K + 10), v(K), v(K + 4)))
            a('v_xor_b32 %s, s40, %s' % (v(K + 8), v(K + 3))); a('v_xor_b32 %s, s40, %s' % (v(K + 9), v(K + 7)))
            for pat in ['quad_perm:[1,0,3,2] ' + DPPF, 'quad_perm:[2,3,0,1] ' + DPPF, 'row_half_mirror ' + DPPF,
                        'row_mirror ' + DPPF, 'row_bcast:15 row_mask:0xa bank_mask:0xf', 'row_bcast:31 row_mask:0xc bank_mask:0xf']:
                a('v_max_u32_dpp %s, %s, %s %s' % (v(K + 10), v(K + 10), v(K + 10), pat))
            a('v_or_b32 %s, %s, %s' % (v(K + 8), v(K + 8), v(K + 9)))
            a('v_readlane_b32 s36, %s, 63' % v(K + 10))
            a('v_cmp_ne_u32 vcc, 0, %s' % v(K + 8))
            a('s_cbranch_vccz ffn_k3_ok')
        a('s_add_u32 s58, s58, 1'); a('s_cmp_lt_u32 s58, 0x%x' % MAXPOLL); a('s_cbranch_scc1 ffn_k3')
        a.label('ffn_k3_ok')
    a('v_cmp_eq_u32 vcc, s36, %s' % v(K)); a('v_cmp_eq_u32 s[28:29], s36, %s' % v(K + 4))
    a('s_cmp_lg_u64 vcc, 0'); a('s_cselect_b32 s39, 0, 64'); a('s_or_b64 vcc, vcc, s[28:29]'); a('s_ff1_i32_b64 s41, vcc')
    a('s_add_u32 s39, s39, s41'); a('s_lshl_b32 s39, s39, 11'); a('s_add_u32 s39, s39, 0x%x' % COFF)
    CR = BH
    if SPEC:
        a('s_cmp_eq_u32 s39, s54'); a('s_cbranch_scc1 ffn_c3h')
        a('buffer_load_dwordx4 %s, v29, s[4:7], s39 offen sc1' % v(CR, 4)); a('buffer_load_dwordx4 %s, v29, s[4:7], s39 offen offset:1024 sc1' % v(CR + 4, 4))
        a.lines.append('ffn_c3h:')
        a('s_cmp_lg_u64 s[52:53], -1'); a('s_cbranch_scc1 ffn_k3_rt')
        a.lines.append('ffn_k3_ok:')
        a('s_mov_b32 s58, 0')
        st()
    else:
        a('s_mov_b32 s58, 0')
        st()
        a.lines.append('ffn_c3:')
        if GH: a('buffer_load_short_d16_hi v14, v16, s[4:7], s39 offen sc1'); a('buffer_load_short_d16_hi v15, v17, s[4:7], s39 offen sc1')
        else: a('buffer_load_dwordx4 %s, v29, s[4:7], s39 offen sc1' % v(CR, 4)); a('buffer_load_dwordx4 %s, v29, s[4:7], s39 offen offset:1024 sc1' % v(CR + 4, 4))
    a.lines.append('ffn_c3d:')
    a('v_and_b32 v10, 15, %s' % v(K + 1)); a('v_and_b32 v11, 15, %s' % v(K + 5))
    a('v_cmp_eq_u32 s[24:25], s33, v10'); a('v_cmp_eq_u32 s[26:27], s33, v11')
    for k in range(4): a('v_mov_b32 %s, %s' % (v(K + 12 + k), s(24 + k) if LOCAL else '0'))
    for k in range(1, 3): a('v_cndmask_b32 %s, %s, %s, s[28:29]' % (v(K + 8 + k), v(K + k), v(K + 4 + k)))
    if GH:
        a('ds_write_b128 v28, %s offset:16' % v(K + 12, 4))
        a('v_readlane_b32 s24, %s, s41' % v(K + 9)); a('v_readlane_b32 s25, %s, s41' % v(K + 10)); a('s_mov_b64 s[42:43], vcc')
        a('s_and_b32 s24, s24, 0xffff0000'); a('s_mov_b32 s26, 0xffff0000')
        a('s_waitcnt vmcnt(0)')
        a('v_max_u32 v10, v14, v15')
        for r in (14, 15): a('v_add_f32 %s, s24, %s' % (v(r), v(r)))
        for r in (14, 15): rbf(a, r)
        for r in (14, 15): a('v_mul_f32 %s, s25, %s' % (v(r), v(r)))
        a('v_cvt_pk_bf16_f32 v14, v14, v15')
        a('ds_write_b32 v18, v14')
        a('v_cmp_eq_u32 vcc, s26, v10')
    else:
        a('v_and_b32 %s, 0xffff0000, %s' % (v(K + 9), v(K + 9)))
        a('s_mov_b64 s[42:43], vcc'); a('s_mov_b64 exec, vcc')
        a('ds_write_b128 v28, %s' % v(K + 8, 4)); a('ds_write_b128 v28, %s offset:16' % v(K + 12, 4))
        a('s_mov_b64 exec, -1')
        a('s_waitcnt vmcnt(1)')
        a('ds_write_b128 v21, %s' % v(CR, 4))
        a('v_max3_u32 v10, %s, %s, %s' % (v(CR), v(CR + 1), v(CR + 2)))
        a('s_waitcnt vmcnt(0)')
        a('ds_write_b128 v21, %s offset:1024' % v(CR + 4, 4))
        a('v_max3_u32 v10, v10, %s, %s' % (v(CR + 3), v(CR + 4))); a('v_max3_u32 v11, %s, %s, %s' % (v(CR + 5), v(CR + 6), v(CR + 7))); a('v_max_u32 v10, v10, v11')
        a('v_cmp_eq_u32 vcc, -1, v10')
    a('s_cbranch_vccnz ffn_c3_rt')
    a.lines.append('ffn_c3_ok:')
    a('s_waitcnt lgkmcnt(0)')
    if DEC:
        a('s_cmp_eq_u32 s23, 0'); a('s_mov_b32 s23, 2'); a('s_cbranch_scc1 ffn_sl')
    a.label('ffn_w3')
    a('s_barrier')
    st.n = 10; st()
    if GH:
        st()
        a('ds_read_b32 %s, v22' % v(K + 3))
    else:
        a('ds_read_b32 v11, v18'); a('ds_read_b128 %s, v28' % v(K, 4)); a('ds_read_b32 %s, v22' % v(K + 3))
        a('s_mov_b32 s28, 0xffff0000')
        a('s_waitcnt lgkmcnt(2)')
        a('v_lshlrev_b32 v14, 16, v11'); a('v_and_b32 v15, s28, v11')
        a('s_waitcnt lgkmcnt(0)')
        for r in (14, 15): a('v_add_f32 %s, %s, %s' % (v(r), v(r), v(K + 1)))
        for r in (14, 15): rbf(a, r)
        for r in (14, 15): a('v_mul_f32 %s, %s, %s' % (v(r), v(r), v(K + 2)))
        a('v_cvt_pk_bf16_f32 v14, v14, v15')
        a('ds_write_b16 v16, v14'); a('ds_write_b16_d16_hi v17, v14')
        a('v_readfirstlane_b32 s24, %s' % v(K + 3))
        a('s_waitcnt lgkmcnt(0)'); a('s_barrier')
        st()
    for k in range(4): a('ds_read_b128 %s, v19 offset:%d' % (v(BH + 4 * k, 4), 64 * k))
    AC = 144
    for k in range(4):
        a('s_waitcnt lgkmcnt(%d)' % (3 - k))
        for T_ in range(4): a('v_mfma_f32_16x16x32_bf16 %s, %s, %s, %s' % (v((AC + 4 * T_) if T_ else ACC, 4), v(WF + 16 * T_ + 4 * k, 4), v(BH + 4 * k, 4), v((AC + 4 * T_) if T_ else ACC, 4) if k else '0'))
    if GH: a('v_readfirstlane_b32 s24, %s' % v(K + 3))
    for T_ in range(1, 4):
        for k in range(4): a('v_cndmask_b32 %s, %s, %s, %s' % (v(ACC + k), v(ACC + k), v(AC + 4 * T_ + k), s(58 + 2 * T_, 2)))
    a('s_mov_b32 exec_lo, 0x000f000f'); a('s_mov_b32 exec_hi, 0x000f000f')
    for k in range(4): a('v_and_or_b32 %s, %s, %s, %s' % (v(ACC + k), v(ACC + k), v(197), s(48 + k)))
    a('s_bitcmp1_b32 s24, s35'); a('s_cbranch_scc0 ffn_rem')
    a('buffer_store_dwordx4 %s, v30, s[4:7], s30 offen' % v(ACC, 4))
    if XB_: a('buffer_store_dword v26, v27, s[4:7], s31 offen')
    a.lines.append('ffn_fin:')
    st()
    st.dump(sv=250, wave='s3')
    a('s_endpgm')
    a.lines.append('ffn_rem:')
    a('buffer_store_dwordx4 %s, v30, s[4:7], s30 offen sc1' % v(ACC, 4))
    a('s_branch ffn_fin')
    if DEC:
        a.lines.append('ffn_p3_x:')
        a('s_add_u32 s58, s58, 1'); a('s_cmp_gt_u32 s58, 0x%x' % MAXPOLL); a('s_cbranch_scc1 ffn_p3_ok')
        a('s_cmp_lg_u32 s23, 0'); a('s_cbranch_scc1 ffn_p3')
        a('v_cmp_eq_u32 vcc, 8, v9'); a('s_cbranch_vccnz ffn_sl'); a('s_branch ffn_p3')
    a.lines.append('ffn_c3_rt:')
    if SPEC:
        a('s_mov_b64 vcc, s[42:43]'); a('s_add_u32 s58, s58, 1'); a('s_cmp_gt_u32 s58, 0x%x' % MAXPOLL); a('s_cbranch_scc1 ffn_c3_ok')
        a('buffer_load_dwordx4 %s, v29, s[4:7], s39 offen sc1' % v(CR, 4)); a('buffer_load_dwordx4 %s, v29, s[4:7], s39 offen offset:1024 sc1' % v(CR + 4, 4))
        a('s_branch ffn_c3d')
        a.lines.append('ffn_k3_rt:')
        a('s_cmp_lg_u32 s36, 0'); a('s_cselect_b32 s54, s39, -1')
        a('s_add_u32 s58, s58, 1'); a('s_cmp_lt_u32 s58, 0x%x' % MAXPOLL); a('s_cbranch_scc1 ffn_k3'); a('s_branch ffn_k3_ok')
    else:
        a('s_mov_b64 vcc, s[42:43]'); a('s_add_u32 s58, s58, 1'); a('s_cmp_lt_u32 s58, 0x%x' % MAXPOLL); a('s_cbranch_scc1 ffn_c3'); a('s_branch ffn_c3_ok')
    emit_stubs()
    a.lines.append('fz_codeend:')

def main(path):
    ref = open('/code/%s.s.ref' % NAME).read().splitlines()
    for l in ref:
        if l.startswith('; Override'): break
        a.raw(l)
    a.raw('; @launch kernel=fz_kernel grid=(256,1,1) block=(512,1,1) lds=163840')
    if STAMPS: a.raw('; @groups fftA=0-127:0-3,fftB=0-127:4-7,ffn=128-255:0-0,ffnall=128-255:1-7')
    a.raw('.amdgcn_target "amdgcn-amd-amdhsa--gfx950"'); a.raw('.text')
    gen()
    a.raw('.section .rodata,"a"')
    a.raw('\n'.join(['.p2align 6', '.amdhsa_kernel fz_kernel', '  .amdhsa_next_free_vgpr 256', '  .amdhsa_next_free_sgpr 102',
        '  .amdhsa_accum_offset 256', '  .amdhsa_group_segment_fixed_size 0', '  .amdhsa_kernarg_size 104', '  .amdhsa_user_sgpr_count 2',
        '  .amdhsa_user_sgpr_kernarg_segment_ptr 1', '  .amdhsa_system_sgpr_workgroup_id_x 1', '.end_amdhsa_kernel', '']))
    open(path, 'w').write(a.text())
    print('wrote', path, 'lines', len(a.lines), 'nops', a.nops)
if __name__ == '__main__':
    ps = [x for x in sys.argv[1:] if x.endswith('.s')]
    main(ps[0] if ps else '/code/%s.s' % NAME)
```
